```python
import torch

def _softmax(x, axis=-1):
    return torch.softmax(x, dim=axis)
def _gelu(x):
    return torch.nn.functional.gelu(x, approximate="tanh")
def _silu(x):
    return torch.nn.functional.silu(x)
def _sigmoid(x):
    return torch.sigmoid(x)
def _layernorm(x, axis=-1, eps=1e-5):
    m = x.mean(dim=axis, keepdim=True)
    v = x.var(dim=axis, keepdim=True, unbiased=False)
    return (x - m) / torch.sqrt(v + eps)
def _scatter_add(tgt, idx, src, axis=0):
    return tgt.clone().index_add_(axis, idx, src)
def _segment_sum(src, seg, n):
    out = torch.zeros((n,) + src.shape[1:], dtype=src.dtype)
    return out.index_add_(0, seg, src)
def _pad(x, pw):
    flat = tuple(v for pair in reversed(pw) for v in pair)
    return torch.nn.functional.pad(x, flat)

kernel_name = 'gated_mix__ssm_conv_s5__glu_gated_bilinear__prompt'

def setup_inputs():

    _w = (lambda a: (lambda t: t.to(torch.bfloat16) if t.is_floating_point() else t)(torch.as_tensor(a)))
    def _A_setup():
        B, S, D = 1, 2048, 640
        P = D
        Lambda_re = -0.5 * (lambda _x: torch.exp(torch.as_tensor(_x)))((lambda *s: torch.randn(*s, dtype=torch.bfloat16) * 0.2)(P))
        Lambda_im = (lambda *s: torch.randn(*s, dtype=torch.bfloat16) * 0.4)(P) * 1.0
        B_re = (lambda *s: torch.randn(*s, dtype=torch.bfloat16) * 0.2)(P, D) * (D ** -0.5)
        B_im = (lambda *s: torch.randn(*s, dtype=torch.bfloat16) * 0.2)(P, D) * (D ** -0.5)
        C_re = (lambda *s: torch.randn(*s, dtype=torch.bfloat16) * 0.2)(D, P) * (P ** -0.5)
        C_im = (lambda *s: torch.randn(*s, dtype=torch.bfloat16) * 0.2)(D, P) * (P ** -0.5)
        log_dt = (lambda *s: torch.randn(*s, dtype=torch.bfloat16) * 0.2)(P) * 0.3 - 2.0
        Dskip = (lambda *s: torch.randn(*s, dtype=torch.bfloat16) * 0.05)(D)
        return {
            "x": _w((lambda *s: torch.randn(*s, dtype=torch.bfloat16) * 0.05)(B, S, D)),
            "Lambda_re": _w(Lambda_re),
            "Lambda_im": _w(Lambda_im),
            "B_re": _w(B_re),
            "B_im": _w(B_im),
            "C_re": _w(C_re),
            "C_im": _w(C_im),
            "log_dt": _w(log_dt),
            "Dskip": _w(Dskip),
        }
    _A_in = _A_setup()

    def _B_setup():
        B, S, D, F = 1, 2048, 640, 1536
        return {
            "x": _w((lambda *s: torch.randn(*s, dtype=torch.bfloat16) * 0.05)(B, S, D)),
            "w_gate": _w((lambda *s: torch.randn(*s, dtype=torch.bfloat16) * 0.8)(D, F) * (D ** -0.5)),
            "w_up": _w((lambda *s: torch.randn(*s, dtype=torch.bfloat16) * 0.8)(D, F) * (D ** -0.5)),
            "w_down": _w((lambda *s: torch.randn(*s, dtype=torch.bfloat16) * 0.8)(F, D) * (F ** -0.5)),
        }
    _B_in = _B_setup()

    return {
        "A_x": _A_in["x"],
        "A_Lambda_re": _A_in["Lambda_re"],
        "A_Lambda_im": _A_in["Lambda_im"],
        "A_B_re": _A_in["B_re"],
        "A_B_im": _A_in["B_im"],
        "A_C_re": _A_in["C_re"],
        "A_C_im": _A_in["C_im"],
        "A_log_dt": _A_in["log_dt"],
        "A_Dskip": _A_in["Dskip"],
        "B_x": _B_in["x"],
        "B_w_gate": _B_in["w_gate"],
        "B_w_up": _B_in["w_up"],
        "B_w_down": _B_in["w_down"],
        "gate_w": _w((lambda *s: torch.randn(*s, dtype=torch.bfloat16) * 0.05)(640) * 16.0),
    }

def reference(A_x, A_Lambda_re, A_Lambda_im, A_B_re, A_B_im, A_C_re, A_C_im, A_log_dt, A_Dskip, B_x, B_w_gate, B_w_up, B_w_down, gate_w):
    def _A_ref(x, Lambda_re, Lambda_im, B_re, B_im, C_re, C_im, log_dt, Dskip):
        Bsz, L, H = x.shape
        Lam = Lambda_re + 1j * Lambda_im
        Bmat = B_re + 1j * B_im
        Cmat = C_re + 1j * C_im
        dt = torch.exp(log_dt)
        Lam_bar = torch.exp(dt * Lam)
        B_bar = ((Lam_bar - 1.0) / Lam)[:, None] * Bmat
        Bu = torch.einsum("bld,pd->blp", x + 0j, B_bar)
        h = torch.zeros_like(Bu[:, 0, :])
        hs = []
        for t in range(L):
            h = Lam_bar[None, :] * h + Bu[:, t, :]
            hs.append(h)
        hseq = torch.stack(hs, 1)
        y = 2.0 * torch.einsum("blp,dp->bld", hseq, Cmat).real + x * Dskip[None, None, :]
        return y

    def _B_ref(x, w_gate, w_up, w_down):
        g = torch.einsum("bsd,df->bsf", x, w_gate)
        u = torch.einsum("bsd,df->bsf", x, w_up)
        h = g * u
        return torch.einsum("bsf,fd->bsd", h, w_down)

    x = A_x
    g = _sigmoid((x * gate_w).sum(-1, keepdims=True))
    a = _A_ref(x, A_Lambda_re, A_Lambda_im, A_B_re, A_B_im, A_C_re, A_C_im, A_log_dt, A_Dskip)
    b = _B_ref(x, B_w_gate, B_w_up, B_w_down)
    return g * a + (1 - g) * b
```

```python
class Asm:
    def __init__(self):
        self.lines = []
        self.nlabel = 0
    def __call__(self, s):
        for ln in s.split("\n"):
            ln = ln.strip()
            if ln: self.lines.append("    " + ln if not ln.endswith(":") else ln)
    def label(self, name):
        self.lines.append(name + ":")
    def newlabel(self, prefix="L"):
        self.nlabel += 1
        return f"{prefix}_{self.nlabel}"
    def comment(self, s):
        self.lines.append("    ; " + s)
    def text(self):
        return "\n".join(self.lines) + "\n"

def vr(base, n=1):
    return f"v{base}" if n == 1 else f"v[{base}:{base+n-1}]"
def ar(base, n=1):
    return f"a{base}" if n == 1 else f"a[{base}:{base+n-1}]"
def sr(base, n=1):
    return f"s{base}" if n == 1 else f"s[{base}:{base+n-1}]"

def interleave(main, fillers, start=0, per=1, gap=1):
    out = []
    fi = 0
    for i, m in enumerate(main):
        out.append(m)
        if i >= start and (i - start) % gap == 0:
            for _ in range(per):
                if fi < len(fillers):
                    out.extend(fillers[fi]); fi += 1
    while fi < len(fillers):
        out.extend(fillers[fi]); fi += 1
    return out
```

```python
import sys
from asmlib import *

STAMP = "--stamp" in sys.argv

WS_H   = 0
WS_G   = 0xB00000
WS_S   = 0xB10000
WS_STAMP = 0xC00000
H_TT_STRIDE = 88*1024

KA = dict(x=0, lre=8, lim=16, bre=24, bim=32, cre=40, cim=48, ldt=56, dsk=64, bx=72, wg=80, wu=88, wd=96, gw=104, out=112, dbg=120, ws=128)

LOG2E = 0x3fb8aa3b
INV2PI = 0x3e22f983

def srd(a, d, base, size, shift=None):
    if shift is None:
        a(f"s_mov_b32 s{d}, s{base}")
        a(f"s_mov_b32 s{d+1}, s{base+1}")
    else:
        a(f"s_add_u32 s{d}, s{base}, {shift & 0xffffffff}")
        a(f"s_addc_u32 s{d+1}, s{base+1}, {(shift >> 32) & 0xffffffff}")
    a(f"s_mov_b32 s{d+2}, {size}")
    a(f"s_mov_b32 s{d+3}, 0x00020000")

STAMPREGS1 = [90, 92, 94, 96, 98, 100, 14, 16, 20, 22, 28, 32]
def stamp(a, idx, regs=STAMPREGS1):
    if STAMP:
        a(f"s_memtime s[{regs[idx]}:{regs[idx]+1}]")
def dump_stamps(a, n, regs, sW, sT0, P_WS, base, endlabel):
    if not STAMP: return
    a("s_waitcnt vmcnt(0) lgkmcnt(0)")
    a(f"s_memtime s[{regs[n]}:{regs[n]+1}]")
    a(f"s_getreg_b32 s{sT0+1}, hwreg(HW_REG_XCC_ID)")
    a("s_waitcnt lgkmcnt(0)")
    a(f"s_lshl_b32 s{sT0}, s2, 2")
    a(f"s_add_u32 s{sT0}, s{sT0}, s{sW}")
    a(f"s_lshl_b32 s{sT0}, s{sT0}, 6")
    a(f"s_add_u32 s{sT0}, s{sT0}, {base}")
    a(f"v_mov_b32 v2, s{sT0}")
    for i in range(n+1):
        a(f"v_mov_b32 v3, s{regs[i]}")
        a(f"global_store_dword v2, v3, s[{P_WS}:{P_WS+1}] offset:{4*i}")
    a(f"v_mov_b32 v3, s{sT0+1}")
    a(f"global_store_dword v2, v3, s[{P_WS}:{P_WS+1}] offset:60")

def gen_k1():
    a = Asm()
    P_X, P_LRE, P_LIM, P_BRE, P_BIM, P_CRE, P_CIM, P_LDT = 4,6,8,10,12,14,16,18
    P_DSK, P_BX, P_WG, P_WU = 20,22,24,26
    P_WD, P_GW, P_OUT, P_DBG = 28,30,32,34
    P_WS = 36
    SX, SG, SU, SB0, SB1, SB2, SH, SM = 40,44,48,52,56,60,64,68
    sW, sRH, sCH, sRB, sCG = 72,73,74,75,76
    sDB, sCur, sD, sC3, sStage = 77,78,79,80,81
    sKX, sKG, sKU, sKB = 82,83,84,85
    sOX, sOW, sT0, sT1 = 86,87,88,89
    sNonce = 3
    vTid, vSig = 0, 1
    vDX, vDW, vDB = 2, 6, 9
    vX0, vX1, vW0, vW1, vB0, vB1 = 12,13,14,15,16,17
    vT = 18
    vA0, vBb0, vA1, vBb1 = 24,25,26,27
    vLAM = [28,30]; vL16 = [32,34]; vC2 = [36,38]
    vU = 40
    vE = [104,108,112,116, 2,6,10,14]
    vNon = 23
    ACC = 120
    BUF = 53248
    RX, RG, RU, RB = 0, 16384, 28672, 40960

    a.label("k1_kernel")
    a(f"s_cmp_ge_u32 s2, 256")
    a(f"s_cbranch_scc1 k1_end")
    a(f"s_load_dwordx16 s[4:19], s[0:1], 0")
    a(f"s_load_dwordx8 s[20:27], s[0:1], 64")
    a(f"s_load_dwordx8 s[28:35], s[0:1], 96")
    a(f"s_load_dwordx2 s[36:37], s[0:1], 128")
    stamp(a, 0)
    a(f"v_lshrrev_b32 v{vT}, 6, v0")
    a(f"v_and_b32 v{vT+1}, 63, v0")
    a(f"v_readfirstlane_b32 s{sW}, v{vT}")
    a(f"s_and_b32 s{sT0}, s2, 1")
    a(f"s_lshl_b32 s{sT0}, s{sT0}, 3")
    a(f"s_lshr_b32 s{sT1}, s2, 3")
    a(f"s_and_b32 s{sRB}, s{sT1}, 7")
    a(f"s_add_u32 s{sRB}, s{sRB}, s{sT0}")
    a(f"s_lshr_b32 s{sT0}, s2, 1")
    a(f"s_and_b32 s{sT0}, s{sT0}, 3")
    a(f"s_lshl_b32 s{sT0}, s{sT0}, 2")
    a(f"s_lshr_b32 s{sT1}, s2, 6")
    a(f"s_add_u32 s{sCG}, s{sT0}, s{sT1}")
    a(f"s_lshr_b32 s{sRH}, s{sW}, 1")
    a(f"s_and_b32 s{sCH}, s{sW}, 1")
    a(f"s_lshl_b32 s{sOX}, s{sW}, 12")
    a(f"s_mul_i32 s{sOW}, s{sW}, 3072")
    L = vT+1
    t0, t1, t2, t3 = vT+2, vT+3, vT+4, vT+5
    a(f"v_lshrrev_b32 v{t0}, 3, v{L}")
    a(f"v_and_b32 v{t1}, 7, v{L}")
    a(f"v_xor_b32 v{t1}, v{t1}, v{t0}")
    a(f"s_lshl_b32 s{sT0}, s{sRB}, 7")
    a(f"s_lshl_b32 s{sT1}, s{sW}, 5")
    a(f"s_add_u32 s{sT0}, s{sT0}, s{sT1}")
    a(f"v_add_u32 v{t2}, s{sT0}, v{t0}")
    a(f"v_mul_u32_u24 v{t2}, 1280, v{t2}")
    a(f"v_lshl_add_u32 v{vDX}, v{t1}, 4, v{t2}")
    for i in range(1,4):
        a(f"v_add_u32 v{vDX+i}, {9216*i}, v{vDX}")
    a(f"s_mul_i32 s{sT0}, s{sW}, 192")
    a(f"s_mul_i32 s{sT1}, s{sCG}, 192")
    for i in range(3):
        a(f"v_add_u32 v{t0}, s{sT0}, v{L}")
        if i: a(f"v_add_u32 v{t0}, {64*i}, v{t0}")
        a(f"v_mul_u32_u24 v{t1}, 43691, v{t0}")
        a(f"v_lshrrev_b32 v{t1}, 19, v{t1}")
        a(f"v_mul_u32_u24 v{t2}, 12, v{t1}")
        a(f"v_sub_u32 v{t2}, v{t0}, v{t2}")
        a(f"v_lshrrev_b32 v{t3}, 2, v{t1}")
        a(f"v_and_b32 v{t3}, 2, v{t3}")
        a(f"v_xor_b32 v{t2}, v{t2}, v{t3}")
        a(f"v_mul_u32_u24 v{t1}, 3072, v{t1}")
        a(f"v_lshl_add_u32 v{t1}, v{t2}, 4, v{t1}")
        a(f"v_add_u32 v{t1}, s{sT1}, v{t1}")
        if i: a(f"v_subrev_u32 v{t1}, {1024*i}, v{t1}")
        a(f"v_mov_b32 v{vDW+i}, v{t1}")
    a(f"s_mul_i32 s{sKX}, s{sCG}, 40")
    for i in range(3):
        a(f"s_mul_i32 s{sT0}, s{sW}, 3")
        a(f"s_add_u32 s{sT0}, s{sT0}, {i}")
        a(f"s_cmp_ge_u32 s{sT0}, 5")
        a(f"s_cselect_b32 s{sT1}, 1, 0")
        a(f"s_cselect_b32 s{sKG}, 5, 0")
        a(f"s_sub_u32 s{sT0}, s{sT0}, s{sKG}")
        a(f"s_lshl_b32 s{sT0}, s{sT0}, 3")
        a(f"s_add_u32 s{sT0}, s{sT0}, s{sKX}")
        a(f"v_lshrrev_b32 v{t0}, 3, v{L}")
        a(f"v_add_u32 v{t0}, s{sT0}, v{t0}")
        a(f"v_mul_u32_u24 v{t0}, 1280, v{t0}")
        a(f"v_lshrrev_b32 v{t1}, 4, v{L}")
        a(f"v_lshlrev_b32 v{t1}, 1, v{t1}")
        a(f"v_add_u32 v{t1}, s{sT1}, v{t1}")
        a(f"v_and_b32 v{t2}, 7, v{L}")
        a(f"v_xor_b32 v{t1}, v{t1}, v{t2}")
        a(f"v_lshl_add_u32 v{t0}, v{t1}, 4, v{t0}")
        a(f"v_add_u32 v{vDB+i}, {4096-1024*i}, v{t0}")
    a("s_waitcnt lgkmcnt(0)")
    srd(a, SX, P_X, 2621440)
    srd(a, SG, P_WG, 1966080)
    srd(a, SU, P_WU, 1966080)
    for i, S in enumerate([SB0, SB1, SB2]):
        a(f"s_mul_i32 s{sT0}, s{sW}, 3")
        a(f"s_add_u32 s{sT0}, s{sT0}, {i}")
        a(f"s_cmp_ge_u32 s{sT0}, 5")
        a(f"s_cselect_b32 s{S}, s{P_BIM}, s{P_BRE}")
        a(f"s_cselect_b32 s{S+1}, s{P_BIM+1}, s{P_BRE+1}")
        a(f"s_sub_u32 s{S}, s{S}, 4096")
        a(f"s_subb_u32 s{S+1}, s{S+1}, 0")
        a(f"s_cmp_ge_u32 s{sT0}, 10")
        a(f"s_cselect_b32 s{S+2}, 0, {819200+4096}")
        a(f"s_mov_b32 s{S+3}, 0x00020000")
    def dma(vo, S, so, off):
        o = f" offset:{off}" if off else ""
        return f"buffer_load_dwordx4 v{vo}, s[{S}:{S+3}], s{so} offen{o} lds"
    def dma_first(sdb):
        g = []
        g.append([f"s_add_u32 m0, s{sdb}, s{sOX}", "s_nop 0", dma(vDX, SX, sKX, 0)])
        for i in range(1,4): g.append([dma(vDX+i, SX, sKX, 1024*i)])
        g.append([f"s_add_u32 s{sT0}, s{sdb}, s{sOW}", f"s_add_u32 m0, s{sT0}, {RG}", "s_nop 0", dma(vDW, SG, sKG, 0)])
        for i in range(1,3): g.append([dma(vDW+i, SG, sKG, 1024*i)])
        g[-1] += [f"s_add_u32 s{sKX}, s{sKX}, 128", f"s_add_u32 s{sKG}, s{sKG}, 196608"]
        return g
    def dma_second(sdb):
        g = []
        g.append([f"s_add_u32 s{sT0}, s{sdb}, s{sOW}", f"s_add_u32 m0, s{sT0}, {RU}", "s_nop 0", dma(vDW, SU, sKU, 0)])
        for i in range(1,3): g.append([dma(vDW+i, SU, sKU, 1024*i)])
        g.append([f"s_add_u32 m0, s{sT0}, {RB}", "s_nop 0", dma(vDB, SB0, sKB, 0)])
        g.append([dma(vDB+1, SB1, sKB, 1024)])
        g.append([dma(vDB+2, SB2, sKB, 2048), f"s_add_u32 s{sKU}, s{sKU}, 196608", f"s_add_u32 s{sKB}, s{sKB}, 128"])
        return g
    for r in (sKX, sKG, sKU, sKB): a(f"s_mov_b32 s{r}, 0")
    for st in range(3):
        a(f"s_mov_b32 s{sDB}, {st*BUF}")
        for g in dma_first(sDB):
            for x in g: a(x)
        if st < 2:
            for g in dma_second(sDB):
                for x in g: a(x)
    stamp(a, 1)
    a(f"s_or_b32 s{sT0}, s2, s{sW}")
    a(f"s_cmp_lg_u32 s{sT0}, 0")
    a(f"s_cbranch_scc1 k1_no_nonce")
    a(f"s_memrealtime s[{sT0}:{sT0+1}]")
    a(f"s_waitcnt lgkmcnt(0)")
    a(f"s_or_b32 s{sT0}, s{sT0}, 1")
    a(f"v_mov_b32 v{t0}, s{sT0}")
    a(f"v_mov_b32 v{t1}, 0")
    a(f"global_store_dword v{t1}, v{t0}, s[{P_DBG}:{P_DBG+1}] sc0 sc1")
    a.label("k1_no_nonce")
    m, q = t0, t1
    a(f"v_and_b32 v{m}, 15, v{L}")
    a(f"v_lshrrev_b32 v{q}, 4, v{L}")
    a(f"s_lshl_b32 s{sT0}, s{sRH}, 13")
    a(f"v_lshlrev_b32 v{t2}, 7, v{m}")
    a(f"v_add_u32 v{t2}, s{sT0}, v{t2}")
    a(f"v_and_b32 v{t3}, 7, v{m}")
    a(f"v_xor_b32 v{t3}, v{t3}, v{q}")
    a(f"v_lshl_add_u32 v{vX0}, v{t3}, 4, v{t2}")
    a(f"v_xor_b32 v{t3}, 4, v{t3}")
    a(f"v_lshl_add_u32 v{vX1}, v{t3}, 4, v{t2}")
    a(f"v_lshrrev_b32 v{t2}, 2, v{m}")
    a(f"v_lshl_add_u32 v{t2}, v{q}, 3, v{t2}")
    a(f"v_mul_u32_u24 v{t2}, 192, v{t2}")
    a(f"v_and_b32 v{t3}, 3, v{m}")
    a(f"v_lshl_add_u32 v{t2}, v{t3}, 3, v{t2}")
    a(f"v_and_b32 v{t3}, 1, v{q}")
    a(f"v_lshl_add_u32 v{vW0}, v{t3}, 5, v{t2}")
    a(f"v_xor_b32 v{t3}, 1, v{t3}")
    a(f"v_lshl_add_u32 v{vW1}, v{t3}, 5, v{t2}")
    a(f"v_and_b32 v{t2}, 1, v{m}")
    a(f"v_lshrrev_b32 v{t3}, 2, v{m}")
    a(f"v_lshl_add_u32 v{t3}, v{t3}, 1, v{t2}")
    a(f"v_xor_b32 v{t3}, v{t3}, v{q}")
    a(f"v_mul_u32_u24 v{t2}, 40, v{t2}")
    a(f"v_lshrrev_b32 v{vB1}, 1, v{m}")
    a(f"v_add_u32 v{t2}, v{t2}, v{vB1}")
    a(f"v_lshlrev_b32 v{t2}, 7, v{t2}")
    a(f"v_lshl_add_u32 v{vB0}, v{t3}, 4, v{t2}")
    a(f"v_xor_b32 v{t3}, 4, v{t3}")
    a(f"v_lshl_add_u32 v{vB1}, v{t3}, 4, v{t2}")
    for i in range(136): a(f"v_mov_b32 v{ACC+i}, 0")
    a(f"v_lshrrev_b32 v{vSig}, 5, v{L}")
    a(f"s_lshl_b32 s{sT0}, s{sW}, 1")
    a(f"v_add_u32 v{vSig}, s{sT0}, v{vSig}")
    a(f"v_and_b32 v{t0}, 31, v{L}")
    a(f"v_min_u32 v{t0}, 19, v{t0}")
    a(f"s_mul_i32 s{sT0}, s{sCG}, 80")
    a(f"v_lshl_add_u32 v{t0}, v{t0}, 2, s{sT0}")
    a(f"global_load_dword v{vU}, v{t0}, s[{P_LRE}:{P_LRE+1}]")
    a(f"global_load_dword v{vU+1}, v{t0}, s[{P_LIM}:{P_LIM+1}]")
    a(f"global_load_dword v{vU+2}, v{t0}, s[{P_LDT}:{P_LDT+1}]")
    a(f"s_lshl_b32 s{sT0}, s{sRB}, 7")
    a(f"s_lshl_b32 s{sT1}, s{sCG}, 3")
    a(f"s_add_u32 s{sT0}, s{sT0}, s{sT1}")
    a(f"s_lshl_b32 s{sT1}, s{sW}, 1")
    a(f"s_add_u32 s{sT0}, s{sT0}, s{sT1}")
    a(f"s_mul_i32 s{sT1}, s{sT0}, 1280")
    a(f"v_lshlrev_b32 v{t1}, 2, v{L}")
    a(f"v_add_u32 v{t2}, s{sT1}, v{t1}")
    for i in range(5):
        a(f"global_load_dword v{vU+4+i}, v{t1}, s[{P_GW}:{P_GW+1}] offset:{256*i}")
    for r in range(2):
        for i in range(5):
            a(f"global_load_dword v{vU+10+5*r+i}, v{t2}, s[{P_X}:{P_X+1}] offset:{1280*r+256*i}")
    a("s_waitcnt vmcnt(0)")
    stamp(a, 2)
    gw = vU+4
    for r in range(2):
        acc = vU+20+r
        a(f"v_mov_b32 v{acc}, 0")
        for i in range(5):
            xr = vU+10+5*r+i
            a(f"v_lshlrev_b32 v{t2}, 16, v{xr}")
            a(f"v_and_b32 v{t3}, 0xffff0000, v{xr}")
            a(f"v_lshlrev_b32 v{vU+22}, 16, v{gw+i}")
            a(f"v_and_b32 v{vU+23}, 0xffff0000, v{gw+i}")
            a(f"v_fmac_f32 v{acc}, v{t2}, v{vU+22}")
            a(f"v_fmac_f32 v{acc}, v{t3}, v{vU+23}")
        for sh in ("row_shr:1","row_shr:2","row_shr:4","row_shr:8"):
            a("s_nop 1")
            a(f"v_add_f32_dpp v{acc}, v{acc}, v{acc} {sh} row_mask:0xf bank_mask:0xf bound_ctrl:0")
        a("s_nop 1")
        a(f"v_add_f32_dpp v{acc}, v{acc}, v{acc} row_bcast:15 row_mask:0xa bank_mask:0xf")
        a("s_nop 1")
        a(f"v_add_f32_dpp v{acc}, v{acc}, v{acc} row_bcast:31 row_mask:0xc bank_mask:0xf")
        a("s_nop 1")
    a(f"v_readlane_b32 s{sT0}, v{vU+20}, 63")
    a(f"v_readlane_b32 s{sT1}, v{vU+21}, 63")
    a("s_nop 1")
    a(f"v_mov_b32 v{t2}, s{sT1}")
    a(f"v_mov_b32 v{t3}, s{sT0}")
    a(f"v_cmp_eq_u32 vcc, 0, v{L}")
    a("s_nop 1")
    a(f"v_cndmask_b32 v{t2}, v{t2}, v{t3}, vcc")
    a(f"v_cvt_pk_bf16_f32 v{t2}, v{t2}, v{t2}")
    a(f"v_lshlrev_b32 v{t2}, 16, v{t2}")
    a(f"v_mul_f32 v{t2}, 0xbfb8aa3b, v{t2}")
    a(f"v_exp_f32 v{t2}, v{t2}")
    a("s_nop 0")
    a(f"v_add_f32 v{t2}, 1.0, v{t2}")
    a(f"v_rcp_f32 v{t2}, v{t2}")
    a("s_nop 0")
    a(f"v_cvt_pk_bf16_f32 v{t2}, v{t2}, v{t2}")
    a(f"v_lshlrev_b32 v{t2}, 16, v{t2}")
    a(f"s_lshl_b32 s{sT0}, s{sRB}, 7")
    a(f"s_lshl_b32 s{sT1}, s{sCG}, 3")
    a(f"s_add_u32 s{sT0}, s{sT0}, s{sT1}")
    a(f"s_lshl_b32 s{sT1}, s{sW}, 1")
    a(f"s_add_u32 s{sT0}, s{sT0}, s{sT1}")
    a(f"s_lshl_b32 s{sT0}, s{sT0}, 2")
    a(f"s_add_u32 s{sT0}, s{sT0}, {WS_G}")
    a(f"v_lshl_add_u32 v{t3}, v{L}, 2, s{sT0}")
    a(f"v_cmp_gt_u32 vcc, 2, v{L}")
    a(f"s_and_saveexec_b64 s[{sKX}:{sKX+1}], vcc")
    a(f"global_store_dword v{t3}, v{t2}, s[{P_WS}:{P_WS+1}]")
    a(f"s_mov_b64 exec, s[{sKX}:{sKX+1}]")
    a(f"s_mov_b32 s{sKX}, {3*128}")
    a(f"s_mov_b32 s{sKG}, {3*196608}")
    def cpow(dst, A, B, n, tmp):
        if n is None:
            a(f"v_exp_f32 v{tmp}, v{A}")
            a(f"v_mov_b32 v{tmp+1}, v{B}")
        else:
            a(f"v_mul_f32 v{tmp}, {n}, v{A}")
            a(f"v_mul_f32 v{tmp+1}, {n}, v{B}")
            a(f"v_exp_f32 v{tmp}, v{tmp}")
        a(f"v_rndne_f32 v{dst}, v{tmp+1}")
        a(f"v_sub_f32 v{tmp+1}, v{tmp+1}, v{dst}")
        a(f"v_cos_f32 v{dst}, v{tmp+1}")
        a(f"v_sin_f32 v{dst+1}, v{tmp+1}")
        a("s_nop 0")
        a(f"v_mul_f32 v{dst}, v{tmp}, v{dst}")
        a(f"v_mul_f32 v{dst+1}, v{tmp}, v{dst+1}")
    for c in range(2):
        A, B = (vA0, vBb0) if c == 0 else (vA1, vBb1)
        lre, lim, dt = vU+24, vU+25, vU+26
        if c == 0:
            a(f"v_lshlrev_b32 v{lre}, 16, v{vU}")
            a(f"v_lshlrev_b32 v{lim}, 16, v{vU+1}")
            a(f"v_lshlrev_b32 v{dt}, 16, v{vU+2}")
        else:
            a(f"v_and_b32 v{lre}, 0xffff0000, v{vU}")
            a(f"v_and_b32 v{lim}, 0xffff0000, v{vU+1}")
            a(f"v_and_b32 v{dt}, 0xffff0000, v{vU+2}")
        a(f"v_mul_f32 v{dt}, {LOG2E:#x}, v{dt}")
        a(f"v_exp_f32 v{dt}, v{dt}")
        a("s_nop 0")
        a(f"v_cvt_pk_bf16_f32 v{dt}, v{dt}, v{dt}")
        a(f"v_lshlrev_b32 v{dt}, 16, v{dt}")
        a(f"v_mul_f32 v{A}, v{dt}, v{lre}")
        a(f"v_mul_f32 v{B}, v{dt}, v{lim}")
        a(f"v_mul_f32 v{A}, {LOG2E:#x}, v{A}")
        a(f"v_mul_f32 v{B}, {INV2PI:#x}, v{B}")
        cpow(vLAM[c], A, B, None, vU+28)
        a(f"v_mov_b32 v{vU+30}, 0x41800000")
        cpow(vL16[c], A, B, f"v{vU+30}", vU+28)
        nr, d = vU+28, vU+29
        a(f"v_add_f32 v{nr}, -1.0, v{vLAM[c]}")
        a(f"v_mul_f32 v{d}, v{lre}, v{lre}")
        a(f"v_fmac_f32 v{d}, v{lim}, v{lim}")
        a(f"v_rcp_f32 v{d}, v{d}")
        a(f"v_mul_f32 v{vC2[c]}, v{nr}, v{lre}")
        a(f"v_fmac_f32 v{vC2[c]}, v{vLAM[c]+1}, v{lim}")
        a(f"v_mul_f32 v{vC2[c]+1}, v{vLAM[c]+1}, v{lre}")
        a(f"v_fma_f32 v{vC2[c]+1}, -v{nr}, v{lim}, v{vC2[c]+1}")
        a(f"v_add_f32 v{d}, v{d}, v{d}")
        a(f"v_mul_f32 v{vC2[c]}, v{d}, v{vC2[c]}")
        a(f"v_mul_f32 v{vC2[c]+1}, v{d}, v{vC2[c]+1}")
    a(f"s_mov_b32 s{sKU}, {2*196608}")
    a(f"s_mov_b32 s{sKB}, {2*128}")
    a(f"s_mov_b32 s{sDB}, {2*BUF}")
    a(f"s_mov_b32 s{sCur}, 0")
    a(f"s_mov_b32 s{sD}, {BUF}")
    a(f"s_mov_b32 s{sC3}, 0")
    a(f"s_mov_b32 s{sStage}, 0")
    a("s_waitcnt vmcnt(0)")
    a("s_barrier")

    def reads(ch, s, setb):
        vX = vX0 if s == 0 else vX1
        vB = vB0 if s == 0 else vB1
        out = []
        X = [f"ds_read_b128 a[{setb+4*tt}:{setb+4*tt+3}], v{vX} offset:{RX+tt*2048}" for tt in range(4)]
        def tr(n, region, j):
            jj, p = j >> 1, j & 1
            vW = vW0 if p == 0 else vW1
            b = setb + 16 + 4*n
            o = region + 6144*s + 64*jj
            return [f"ds_read_b64_tr_b16 a[{b}:{b+1}], v{vW} offset:{o}",
                    f"ds_read_b64_tr_b16 a[{b+2}:{b+3}], v{vW} offset:{o+768}"]
        def sb(n, j):
            b = setb + 16 + 4*n
            return [f"ds_read_b128 a[{b}:{b+3}], v{vB} offset:{RB+1024*j}"]
        W = []
        if ch == 0:
            for k in range(4):
                W += tr(2*k, RG, k); W += tr(2*k+1, RU, k)
            W += sb(8, 4)
        else:
            for k in range(2):
                W += tr(2*k, RG, 4+k); W += tr(2*k+1, RU, 4+k)
            for j in range(4): W += sb(4+j, j)
            W += sb(8, 4)
        return X[:1] + W[:2] + X[1:] + W[2:]
    def mfmas(ch, setb):
        out = []
        for n in range(8):
            for tt in range(4):
                d = ACC + (n*4+tt)*4
                out.append(f"v_mfma_f32_16x16x32_bf16 v[{d}:{d+3}], a[{setb+16+4*n}:{setb+16+4*n+3}], a[{setb+4*tt}:{setb+4*tt+3}], v[{d}:{d+3}]")
        for k in range(2):
            tt = k if ch == 0 else 2+k
            d = ACC + 128 + 4*k
            out.append(f"v_mfma_f32_16x16x32_bf16 v[{d}:{d+3}], a[{setb+16+32}:{setb+16+35}], a[{setb+4*tt}:{setb+4*tt+3}], v[{d}:{d+3}]")
        return out
    def place(main, slots):
        out = []
        for i, mm in enumerate(main):
            out.append(mm)
            out.extend(slots.get(i, []))
        return out
    def substep(ch, setb, rd, dmas, upd):
        main = mfmas(ch, setb)
        slots = {}
        for i, r in enumerate(rd):
            slots.setdefault(i, []).append(r)
        n = len(rd)
        for k, u in enumerate(upd):
            slots.setdefault(n + k, []).append(u)
        pos = [2, 7, 12, 17, 22, 26, 30]
        for g, p in zip(dmas, pos):
            slots.setdefault(p, []).extend(g)
        return place(main, slots)

    A_, B_ = 0, 52
    a(f"s_cmp_eq_u32 s{sCH}, 1")
    a(f"s_cbranch_scc1 k1_ch1")
    for ch in (0, 1):
        a.label(f"k1_ch{ch}")
        for r in reads(ch, 0, A_): a(r)
        a(f"v_add_u32 v{vX0}, {BUF}, v{vX0}")
        a(f"v_add_u32 v{vB0}, {BUF}, v{vB0}")
        a("s_waitcnt lgkmcnt(0)")
        stamp(a, 3)
        a.label(f"k1_loop{ch}")
        upd = [f"v_add_u32 v{r}, s{sD}, v{r}" for r in (vW0, vW1, vX1, vB1)]
        for x in substep(ch, A_, reads(ch, 1, B_), dma_second(sDB), upd): a(x)
        a(f"s_cmp_eq_u32 s{sStage}, 7")
        a(f"s_cbranch_scc1 k1_z1_{ch}")
        a.label(f"k1_z1r_{ch}")
        a(f"s_mov_b32 s{sDB}, s{sCur}")
        a(f"s_add_u32 s{sCur}, s{sCur}, s{sD}")
        a(f"s_add_u32 s{sC3}, s{sC3}, 1")
        a(f"s_cmp_eq_u32 s{sC3}, 3")
        a(f"s_cselect_b32 s{sC3}, 0, s{sC3}")
        a(f"s_cmp_eq_u32 s{sC3}, 2")
        a(f"s_cselect_b32 s{sD}, {3*BUF}, 0")
        a(f"s_sub_u32 s{sD}, {BUF}, s{sD}")
        a("s_waitcnt vmcnt(13) lgkmcnt(0)")
        a("s_barrier")
        upd = [f"v_add_u32 v{r}, s{sD}, v{r}" for r in (vX0, vB0)]
        for x in substep(ch, B_, reads(ch, 0, A_), dma_first(sDB), upd): a(x)
        a(f"s_cmp_eq_u32 s{sStage}, 7")
        a(f"s_cbranch_scc1 k1_z2_{ch}")
        a.label(f"k1_z2r_{ch}")
        a(f"s_add_u32 s{sStage}, s{sStage}, 1")
        a(f"s_cmp_lt_u32 s{sStage}, 10")
        a("s_waitcnt lgkmcnt(0)")
        a(f"s_cbranch_scc1 k1_loop{ch}")
        a(f"s_branch k1_epi")
        a.label(f"k1_z1_{ch}")
        a(f"s_mov_b32 s{SX+2}, 0")
        a(f"s_mov_b32 s{SG+2}, 0")
        a(f"s_branch k1_z1r_{ch}")
        a.label(f"k1_z2_{ch}")
        for S in (SU, SB0, SB1, SB2): a(f"s_mov_b32 s{S+2}, 0")
        a(f"v_mov_b32 v{vT}, 0")
        a(f"global_load_dword v{vNon}, v{vT}, s[{P_DBG}:{P_DBG+1}] sc0 sc1")
        a(f"s_branch k1_z2r_{ch}")

    a.label("k1_epi")
    stamp(a, 4)
    a("s_waitcnt vmcnt(0)")
    a("s_barrier")
    a(f"v_and_b32 v{L}, 63, v0")
    a.label("k1_npoll")
    a(f"v_readfirstlane_b32 s{sNonce}, v{vNon}")
    a(f"s_cmp_lg_u32 s{sNonce}, 0")
    a(f"s_cbranch_scc1 k1_nok")
    a(f"v_mov_b32 v{vT+2}, 0")
    a(f"global_load_dword v{vNon}, v{vT+2}, s[{P_DBG}:{P_DBG+1}] sc0 sc1")
    a("s_waitcnt vmcnt(0)")
    a("s_branch k1_npoll")
    a.label("k1_nok")
    UST = 336
    a(f"v_and_b32 v{t0}, 15, v{L}")
    a(f"v_lshrrev_b32 v{t1}, 4, v{L}")
    a(f"s_lshl_b32 s{sT0}, s{sRH}, 6")
    a(f"v_add_u32 v{t0}, s{sT0}, v{t0}")
    a(f"v_mul_u32_u24 v{t0}, {UST}, v{t0}")
    a(f"v_lshl_add_u32 v{t0}, v{t1}, 4, v{t0}")
    a(f"s_cmp_eq_u32 s{sCH}, 0")
    a(f"s_cbranch_scc1 k1_dump0")
    for j in range(4):
        for tt in range(4):
            r = ACC + ((4+j)*4+tt)*4
            a(f"ds_write_b128 v{t0}, v[{r}:{r+3}] offset:{tt*16*UST + 64*j}")
    for k in range(2):
        r = ACC+128+4*k
        a(f"ds_write_b128 v{t0}, v[{r}:{r+3}] offset:{(2+k)*16*UST + 256}")
    a("s_branch k1_dump1")
    a.label("k1_dump0")
    for k in range(2):
        r = ACC+128+4*k
        a(f"ds_write_b128 v{t0}, v[{r}:{r+3}] offset:{k*16*UST + 256}")
    a.label("k1_dump1")
    a("s_waitcnt lgkmcnt(0)")
    a("s_barrier")
    vP = vT+2
    a(f"v_and_b32 v{vP}, 31, v{L}")
    a(f"v_mul_u32_u24 v{t1}, {16*UST}, v{vSig}")
    a(f"v_lshl_add_u32 v{t1}, v{vP}, 4, v{t1}")
    for i in range(16):
        a(f"ds_read_b128 v[{vU+4*i}:{vU+4*i+3}], v{t1} offset:{i*UST}")
    def cstep(dst, lam, src, add, tmp):
        a(f"v_pk_fma_f32 v[{tmp}:{tmp+1}], v[{lam}:{lam+1}], v[{src}:{src+1}], v[{add}:{add+1}] op_sel:[0,0,0] op_sel_hi:[0,1,1]")
        a(f"v_pk_fma_f32 v[{dst}:{dst+1}], v[{lam}:{lam+1}], v[{src}:{src+1}], v[{tmp}:{tmp+1}] op_sel:[1,1,0] op_sel_hi:[1,0,1] neg_lo:[1,0,0]")
    def cstep2(dst, lam, src, add, tmps):
        for c in range(2):
            a(f"v_pk_fma_f32 v[{tmps[c]}:{tmps[c]+1}], v[{lam[c]}:{lam[c]+1}], v[{src[c]}:{src[c]+1}], v[{add[c]}:{add[c]+1}] op_sel:[0,0,0] op_sel_hi:[0,1,1]")
        for c in range(2):
            a(f"v_pk_fma_f32 v[{dst[c]}:{dst[c]+1}], v[{lam[c]}:{lam[c]+1}], v[{src[c]}:{src[c]+1}], v[{tmps[c]}:{tmps[c]+1}] op_sel:[1,1,0] op_sel_hi:[1,0,1] neg_lo:[1,0,0]")
    def cmul2(dst, w, src, tmps):
        for c in range(2):
            a(f"v_pk_mul_f32 v[{tmps[c]}:{tmps[c]+1}], v[{w[c]}:{w[c]+1}], v[{src[c]}:{src[c]+1}] op_sel:[0,0] op_sel_hi:[0,1]")
        for c in range(2):
            a(f"v_pk_fma_f32 v[{dst[c]}:{dst[c]+1}], v[{w[c]}:{w[c]+1}], v[{src[c]}:{src[c]+1}], v[{tmps[c]}:{tmps[c]+1}] op_sel:[1,1,0] op_sel_hi:[1,0,1] neg_lo:[1,0,0]")
    eR = [6, 8]; tm = [10, 12]
    a("s_waitcnt lgkmcnt(15)")
    a(f"v_mov_b32 v6, v{vU}"); a(f"v_mov_b32 v7, v{vU+1}"); a(f"v_mov_b32 v8, v{vU+2}"); a(f"v_mov_b32 v9, v{vU+3}")
    for i in range(1,16):
        a(f"s_waitcnt lgkmcnt({15-i})")
        cstep2(eR, vLAM, eR, [vU+4*i, vU+4*i+2], tm)
    EB = 43008; RBUF = 47104; HAB = 51200
    vEa = 14
    a(f"v_lshlrev_b32 v{vEa}, 5, v{vSig}")
    a(f"v_add_u32 v{vEa}, v{vEa}, v{vP}")
    a(f"v_lshlrev_b32 v{vEa}, 4, v{vEa}")
    a(f"ds_write_b128 v{vEa}, v[6:9] offset:{EB}")
    a("s_waitcnt lgkmcnt(0)")
    a("s_barrier")
    a(f"v_lshlrev_b32 v{t1}, 4, v{vP}")
    for s_ in range(8):
        a(f"ds_read_b128 v[{vE[s_]}:{vE[s_]+3}], v{t1} offset:{EB + s_*512}")
    Tt = [vE[0], vE[0]+2]
    Lc = [ACC+128, ACC+130]
    tm2 = [ACC+132, ACC+134]
    for k in range(4): a(f"v_mov_b32 v{ACC+128+k}, 0")
    a("s_waitcnt lgkmcnt(0)")
    for s_ in range(1, 8):
        a(f"v_cmp_eq_u32 vcc, {s_}, v{vSig}")
        a("s_nop 1")
        for k in range(4):
            a(f"v_cndmask_b32 v{ACC+128+k}, v{ACC+128+k}, v{vE[0]+k}, vcc")
        cstep2(Tt, vL16, Tt, [vE[s_], vE[s_]+2], tm2)
    stamp(a, 5)
    a(f"s_cmp_lg_u32 s{sW}, 0")
    a(f"s_cbranch_scc1 k1_nopub")
    a(f"s_lshl_b32 s{sT0}, s{sCG}, 4")
    a(f"s_add_u32 s{sT0}, s{sT0}, s{sRB}")
    a(f"s_mul_i32 s{sT0}, s{sT0}, 640")
    a(f"s_add_u32 s{sT0}, s{sT0}, {WS_S}")
    a(f"v_lshlrev_b32 v{t1}, 5, v{vP}")
    a(f"v_add_u32 v{t1}, s{sT0}, v{t1}")
    a(f"v_mov_b32 v2, v{vE[0]}");   a(f"v_mov_b32 v3, s{sNonce}"); a(f"v_mov_b32 v4, v{vE[0]+1}"); a(f"v_mov_b32 v5, s{sNonce}")
    a(f"v_mov_b32 v6, v{vE[0]+2}"); a(f"v_mov_b32 v7, s{sNonce}"); a(f"v_mov_b32 v8, v{vE[0]+3}"); a(f"v_mov_b32 v9, s{sNonce}")
    a(f"v_cmp_gt_u32 vcc, 20, v{L}")
    a(f"s_and_saveexec_b64 s[{sKX}:{sKX+1}], vcc")
    a(f"global_store_dwordx4 v{t1}, v[2:5], s[{P_WS}:{P_WS+1}] sc0 sc1")
    a(f"global_store_dwordx4 v{t1}, v[6:9], s[{P_WS}:{P_WS+1}] offset:16 sc0 sc1")
    a(f"s_mov_b64 exec, s[{sKX}:{sKX+1}]")
    a.label("k1_nopub")
    a(f"s_lshl_b32 s{sT0}, s{sRB}, 3")
    a(f"s_lshl_b32 s{sT1}, s{sRH}, 2")
    a(f"s_add_u32 s{sT0}, s{sT0}, s{sT1}")
    a(f"s_mul_i32 s{sT0}, s{sT0}, 88")
    a(f"s_mul_i32 s{sT1}, s{sCG}, 3")
    a(f"s_add_u32 s{sT0}, s{sT0}, s{sT1}")
    a(f"s_add_u32 s{sT0}, s{sT0}, 40")
    a(f"s_lshl_b32 s{sT0}, s{sT0}, 10")
    a(f"v_lshlrev_b32 v{t1}, 4, v{L}")
    a(f"v_add_u32 v{t1}, s{sT0}, v{t1}")
    def glu(nb, mglob):
        for tt in range(4):
            G0 = ACC + ((nb+0)*4+tt)*4; U0 = ACC + ((nb+1)*4+tt)*4
            G1 = ACC + ((nb+2)*4+tt)*4; U1 = ACC + ((nb+3)*4+tt)*4
            a(f"v_pk_mul_f32 v[{G0}:{G0+1}], v[{G0}:{G0+1}], v[{U0}:{U0+1}]")
            a(f"v_pk_mul_f32 v[{G0+2}:{G0+3}], v[{G0+2}:{G0+3}], v[{U0+2}:{U0+3}]")
            a(f"v_pk_mul_f32 v[{G1}:{G1+1}], v[{G1}:{G1+1}], v[{U1}:{U1+1}]")
            a(f"v_pk_mul_f32 v[{G1+2}:{G1+3}], v[{G1+2}:{G1+3}], v[{U1+2}:{U1+3}]")
            a(f"v_cvt_pk_bf16_f32 v{U0}, v{G0}, v{G0+1}")
            a(f"v_cvt_pk_bf16_f32 v{U0+1}, v{G0+2}, v{G0+3}")
            a(f"v_cvt_pk_bf16_f32 v{U0+2}, v{G1}, v{G1+1}")
            a(f"v_cvt_pk_bf16_f32 v{U0+3}, v{G1+2}, v{G1+3}")
            off = tt*H_TT_STRIDE + mglob*1024
            a(f"v_add_u32 v{G0}, {off}, v{t1}")
            a(f"global_store_dwordx4 v{G0}, v[{U0}:{U0+3}], s[{P_WS}:{P_WS+1}]")
    a(f"s_cmp_eq_u32 s{sCH}, 1")
    a(f"s_cbranch_scc1 k1_glu1")
    glu(0, 0); glu(4, 1)
    a("s_branch k1_glud")
    a.label("k1_glu1")
    glu(0, 2)
    a.label("k1_glud")
    tmA = [2, 4]
    for i in range(16):
        cmul2([vU+4*i, vU+4*i+2], vC2, [vU+4*i, vU+4*i+2], tmA)
    cmul2(Lc, vC2, Lc, tmA)
    WS_ = [104, 106]; W0_ = [108, 110]; W1_ = [112, 114]
    nf = 116
    a(f"v_cvt_f32_u32 v{nf}, v{vSig}")
    a(f"v_mul_f32 v{nf}, 0x41800000, v{nf}")
    for c in range(2):
        A, B = (vA0, vBb0) if c == 0 else (vA1, vBb1)
        cpow(WS_[c], A, B, f"v{nf}", 2)
    cmul2(WS_, vC2, WS_, tmA)
    a(f"s_sub_u32 s{sT0}, s{sRB}, 1")
    a(f"v_sub_u32 v{nf+1}, s{sT0}, v{vSig}")
    for (Wd, sub) in ((W0_, 0), (W1_, 8)):
        a(f"v_subrev_u32 v{nf+2}, {sub}, v{nf+1}")
        a(f"v_cmp_le_i32 vcc, 0, v{nf+2}")
        a(f"v_max_i32 v{nf}, 0, v{nf+2}")
        a(f"v_cvt_f32_i32 v{nf}, v{nf}")
        a(f"v_mul_f32 v{nf}, 0x43000000, v{nf}")
        for c in range(2):
            A, B = (vA0, vBb0) if c == 0 else (vA1, vBb1)
            cpow(Wd[c], A, B, f"v{nf}", 2)
            a(f"v_cndmask_b32 v{Wd[c]}, 0, v{Wd[c]}, vcc")
            a(f"v_cndmask_b32 v{Wd[c]+1}, 0, v{Wd[c]+1}, vcc")
    a("v_mov_b32 v2, 0"); a("v_mov_b32 v3, 0"); a("v_mov_b32 v4, 0"); a("v_mov_b32 v5, 0")
    a(f"s_cmp_eq_u32 s{sRB}, 0")
    a(f"s_cbranch_scc1 k1_nopoll")
    srd(a, SM, P_WS, (WS_S + 256*640))
    vA_0, vA_1, vV0, vV1 = 6, 7, 8, 9
    a(f"s_lshl_b32 s{sT0}, s{sCG}, 4")
    a(f"v_add_u32 v{vA_0}, s{sT0}, v{vSig}")
    a(f"v_mul_u32_u24 v{vA_0}, 640, v{vA_0}")
    a(f"v_lshl_add_u32 v{vA_0}, v{vP}, 5, v{vA_0}")
    a(f"v_add_u32 v{vA_0}, {WS_S}, v{vA_0}")
    a(f"v_add_u32 v{vA_1}, {8*640}, v{vA_0}")
    a(f"v_cmp_gt_u32 s[{sKX}:{sKX+1}], 20, v{vP}")
    a(f"v_cmp_gt_u32 vcc, s{sRB}, v{vSig}")
    a(f"s_and_b64 vcc, vcc, s[{sKX}:{sKX+1}]")
    a(f"v_cndmask_b32 v{vV0}, 0, -1, vcc")
    a(f"v_add_u32 v10, 8, v{vSig}")
    a(f"v_cmp_gt_u32 vcc, s{sRB}, v10")
    a(f"s_and_b64 vcc, vcc, s[{sKX}:{sKX+1}]")
    a(f"v_cndmask_b32 v{vV1}, 0, -1, vcc")
    a(f"v_not_b32 v10, v{vV0}")
    a(f"v_and_b32 v10, 0x7f000000, v10")
    a(f"v_or_b32 v{vA_0}, v{vA_0}, v10")
    a(f"v_not_b32 v10, v{vV1}")
    a(f"v_and_b32 v10, 0x7f000000, v10")
    a(f"v_or_b32 v{vA_1}, v{vA_1}, v10")
    R0, R1, R2, R3 = ACC+0, ACC+4, ACC+8, ACC+12
    a.label("k1_poll")
    a(f"buffer_load_dwordx4 v[{R0}:{R0+3}], v{vA_0}, s[{SM}:{SM+3}], 0 offen sc0 sc1")
    a(f"buffer_load_dwordx4 v[{R1}:{R1+3}], v{vA_0}, s[{SM}:{SM+3}], 0 offen offset:16 sc0 sc1")
    a(f"buffer_load_dwordx4 v[{R2}:{R2+3}], v{vA_1}, s[{SM}:{SM+3}], 0 offen sc0 sc1")
    a(f"buffer_load_dwordx4 v[{R3}:{R3+3}], v{vA_1}, s[{SM}:{SM+3}], 0 offen offset:16 sc0 sc1")
    a("s_waitcnt vmcnt(0)")
    def tagchk(dst, Ra, Rb, valid):
        a(f"v_xor_b32 v{dst}, s{sNonce}, v{Ra+1}")
        a(f"v_xor_b32 v11, s{sNonce}, v{Ra+3}")
        a(f"v_or_b32 v{dst}, v{dst}, v11")
        a(f"v_xor_b32 v11, s{sNonce}, v{Rb+1}")
        a(f"v_or_b32 v{dst}, v{dst}, v11")
        a(f"v_xor_b32 v11, s{sNonce}, v{Rb+3}")
        a(f"v_or_b32 v{dst}, v{dst}, v11")
        a(f"v_and_b32 v{dst}, v{dst}, v{valid}")
    tagchk(10, R0, R1, vV0)
    tagchk(12, R2, R3, vV1)
    a("v_or_b32 v10, v10, v12")
    a("v_cmp_ne_u32 vcc, 0, v10")
    a("s_nop 4")
    a("s_cbranch_vccnz k1_poll")
    a(f"v_mov_b32 v{R0+1}, v{R0+2}"); a(f"v_mov_b32 v{R0+2}, v{R1}"); a(f"v_mov_b32 v{R0+3}, v{R1+2}")
    a(f"v_mov_b32 v{R2+1}, v{R2+2}"); a(f"v_mov_b32 v{R2+2}, v{R3}"); a(f"v_mov_b32 v{R2+3}, v{R3+2}")
    cmul2([2,4], W0_, [R0, R0+2], [R1, R1+2])
    cstep2([2,4], W1_, [R2, R2+2], [2,4], [R1, R1+2])
    a.label("k1_nopoll")
    stamp(a, 6)
    a(f"v_lshlrev_b32 v{vEa}, 5, v{vSig}")
    a(f"v_add_u32 v{vEa}, v{vEa}, v{vP}")
    a(f"v_lshlrev_b32 v{vEa}, 4, v{vEa}")
    a(f"ds_write_b128 v{vEa}, v[2:5] offset:{RBUF}")
    a("s_waitcnt lgkmcnt(0)")
    a("s_barrier")
    a(f"v_lshlrev_b32 v{t1}, 4, v{vP}")
    for s_ in range(8):
        a(f"ds_read_b128 v[{ACC+4*s_}:{ACC+4*s_+3}], v{t1} offset:{RBUF + s_*512}")
    a("s_waitcnt lgkmcnt(0)")
    for s_ in range(1, 8):
        a(f"v_pk_add_f32 v[{ACC}:{ACC+1}], v[{ACC}:{ACC+1}], v[{ACC+4*s_}:{ACC+4*s_+1}]")
        a(f"v_pk_add_f32 v[{ACC+2}:{ACC+3}], v[{ACC+2}:{ACC+3}], v[{ACC+4*s_+2}:{ACC+4*s_+3}]")
    hR = [2, 4]
    cstep2(hR, WS_, [ACC, ACC+2], Lc, [6, 8])
    a(f"v_mul_u32_u24 v{t1}, {16*80}, v{vSig}")
    a(f"v_lshl_add_u32 v{t1}, v{vP}, 2, v{t1}")
    a(f"v_cmp_gt_u32 vcc, 20, v{vP}")
    a(f"s_and_saveexec_b64 s[{sKX}:{sKX+1}], vcc")
    for i in range(16):
        cstep2(hR, vLAM, hR, [vU+4*i, vU+4*i+2], [6, 8])
        r0, r1 = 10 + 2*(i&1), 11 + 2*(i&1)
        a(f"v_cvt_pk_bf16_f32 v{r0}, v2, v4")
        a(f"v_cvt_pk_bf16_f32 v{r1}, -v3, -v5")
        a(f"ds_write_b32 v{t1}, v{r0} offset:{HAB + i*80}")
        a(f"ds_write_b32 v{t1}, v{r1} offset:{HAB + 10240 + i*80}")
    a(f"s_mov_b64 exec, s[{sKX}:{sKX+1}]")
    a("s_waitcnt lgkmcnt(0)")
    a("s_barrier")
    t16, quad = 2, 3
    a(f"v_and_b32 v{t16}, 15, v{L}")
    a(f"v_lshrrev_b32 v{quad}, 4, v{L}")
    a(f"s_mul_i32 s{sT0}, s{sW}, 20")
    a(f"s_mul_i32 s{sT1}, s{sCG}, 5")
    for i in range(5):
        n, comp, tt, u8, la, ga = 4, 5, 6, 7, 20+0, 8
        a(f"v_add_u32 v{n}, s{sT0}, v{quad}")
        if i: a(f"v_add_u32 v{n}, {4*i}, v{n}")
        a(f"v_cmp_le_u32 vcc, 40, v{n}")
        a("s_nop 1")
        a(f"v_cndmask_b32 v{comp}, 0, 1, vcc")
        a(f"v_mul_u32_u24 v{tt}, 40, v{comp}")
        a(f"v_sub_u32 v{n}, v{n}, v{tt}")
        a(f"v_mul_u32_u24 v{tt}, 52, v{n}")
        a(f"v_lshrrev_b32 v{tt}, 8, v{tt}")
        a(f"v_mul_u32_u24 v{u8}, 5, v{tt}")
        a(f"v_sub_u32 v{u8}, v{n}, v{u8}")
        a(f"v_lshl_add_u32 v9, v{tt}, 4, v{t16}")
        a(f"v_mul_u32_u24 v9, 80, v9")
        a(f"v_lshl_add_u32 v9, v{u8}, 4, v9")
        a(f"v_mul_u32_u24 v10, 10240, v{comp}")
        a(f"v_add_u32 v9, v9, v10")
        a(f"ds_read_b128 v[{ACC+4*i}:{ACC+4*i+3}], v9 offset:{HAB}")
        a(f"v_add_u32 v{u8}, s{sT1}, v{u8}")
        a(f"v_lshrrev_b32 v10, 2, v{u8}")
        a(f"v_mul_u32_u24 v11, 20, v{comp}")
        a(f"v_add_u32 v10, v10, v11")
        a(f"s_lshl_b32 s{sKX}, s{sRB}, 3")
        a(f"v_add_u32 v{tt}, s{sKX}, v{tt}")
        a(f"v_mul_u32_u24 v{tt}, 88, v{tt}")
        a(f"v_add_u32 v10, v10, v{tt}")
        a(f"v_lshlrev_b32 v10, 10, v10")
        a(f"v_and_b32 v{u8}, 3, v{u8}")
        a(f"v_lshl_add_u32 v{u8}, v{u8}, 4, v{t16}")
        a(f"v_lshl_add_u32 v{ACC+32+i}, v{u8}, 4, v10")
    a("s_waitcnt lgkmcnt(0)")
    for i in range(5):
        a(f"global_store_dwordx4 v{ACC+32+i}, v[{ACC+4*i}:{ACC+4*i+3}], s[{P_WS}:{P_WS+1}]")
    stamp(a, 7)
    dump_stamps(a, 8, STAMPREGS1, sW, sT0, P_WS, WS_STAMP, "k1_end")
    a.label("k1_end")
    a("s_endpgm")
    return a.text()

STAMPREGS2 = [90, 92, 94, 96, 98, 100, 6, 8]
def gen_k2():
    a = Asm()
    P_X, P_LRE, P_LIM, P_BRE, P_BIM, P_CRE, P_CIM, P_LDT = 4,6,8,10,12,14,16,18
    P_DSK, P_BX, P_WG, P_WU = 20,22,24,26
    P_WD, P_GW, P_OUT, P_DBG = 28,30,32,34
    P_WS = 36
    SH, SW = 40, 44
    sW, sRB, sCB, sT0, sT1 = 72,73,74,75,76
    sKH, sKW, sIt, sNit, sRing = 77,78,79,80,81
    ACC = 120
    vT = 2
    vH = 10
    vC = 14
    vWr = 19
    a.label("k2_kernel")
    a(f"s_cmp_ge_u32 s2, 256")
    a(f"s_cbranch_scc1 k2_end")
    a(f"s_load_dwordx16 s[4:19], s[0:1], 0")
    a(f"s_load_dwordx8 s[20:27], s[0:1], 64")
    a(f"s_load_dwordx8 s[28:35], s[0:1], 96")
    a(f"s_load_dwordx2 s[36:37], s[0:1], 128")
    stamp(a, 0, STAMPREGS2)
    L = vT
    a(f"v_lshrrev_b32 v{vT+1}, 6, v0")
    a(f"v_and_b32 v{L}, 63, v0")
    a(f"v_readfirstlane_b32 s{sW}, v{vT+1}")
    a(f"s_lshr_b32 s{sT0}, s2, 1")
    a(f"s_and_b32 s{sT0}, s{sT0}, 3")
    a(f"s_lshl_b32 s{sT0}, s{sT0}, 3")
    a(f"s_lshr_b32 s{sT1}, s2, 3")
    a(f"s_and_b32 s{sRB}, s{sT1}, 7")
    a(f"s_add_u32 s{sRB}, s{sRB}, s{sT0}")
    a(f"s_and_b32 s{sT0}, s2, 1")
    a(f"s_lshl_b32 s{sT0}, s{sT0}, 2")
    a(f"s_lshr_b32 s{sT1}, s2, 6")
    a(f"s_add_u32 s{sCB}, s{sT0}, s{sT1}")
    a(f"s_mul_i32 s{sT0}, s{sRB}, {4*H_TT_STRIDE}")
    a(f"v_lshlrev_b32 v{vT+1}, 4, v{L}")
    a(f"v_add_u32 v{vH}, s{sT0}, v{vT+1}")
    for tt in range(1,4): a(f"v_add_u32 v{vH+tt}, {tt*H_TT_STRIDE}, v{vH}")
    for i in range(80): a(f"v_mov_b32 v{ACC+i}, 0")
    a(f"s_cmp_ge_u32 s{sW}, 2")
    a(f"s_cbranch_scc1 k2_glu")
    a(f"s_mul_i32 s{sT0}, s{sCB}, 80")
    a(f"v_and_b32 v{vT+1}, 15, v{L}")
    a(f"v_add_u32 v{vT+1}, s{sT0}, v{vT+1}")
    a(f"v_mul_u32_u24 v{vT+1}, 1280, v{vT+1}")
    a(f"v_lshrrev_b32 v{vT+2}, 4, v{L}")
    a(f"v_lshl_add_u32 v{vC}, v{vT+2}, 4, v{vT+1}")
    for j in range(1,5): a(f"v_add_u32 v{vC+j}, {j*16*1280}, v{vC}")
    a("s_waitcnt lgkmcnt(0)")
    srd(a, SH, P_WS, WS_G)
    a(f"s_cmp_eq_u32 s{sW}, 0")
    a(f"s_cselect_b32 s{SW}, s{P_CRE}, s{P_CIM}")
    a(f"s_cselect_b32 s{SW+1}, s{P_CRE+1}, s{P_CIM+1}")
    a(f"s_mov_b32 s{SW+2}, 819200")
    a(f"s_mov_b32 s{SW+3}, 0x00020000")
    a(f"s_mul_i32 s{sKH}, s{sW}, {20*1024}")
    a(f"s_mov_b32 s{sKW}, 0")
    def ssm_loads(k):
        b = 36*k
        out = []
        for j in range(5):
            out.append(f"buffer_load_dwordx4 a[{b+16+4*j}:{b+16+4*j+3}], v{vC+j}, s[{SW}:{SW+3}], s{sKW} offen")
        for tt in range(4):
            out.append(f"buffer_load_dwordx4 a[{b+4*tt}:{b+4*tt+3}], v{vH+tt}, s[{SH}:{SH+3}], s{sKH} offen")
        inc = [f"s_add_u32 s{sKH}, s{sKH}, 1024", f"s_add_u32 s{sKW}, s{sKW}, 64"]
        return out, inc
    for k in range(4):
        ld, inc = ssm_loads(k)
        for x in ld + inc: a(x)
    stamp(a, 1, STAMPREGS2)
    a(f"s_mov_b32 s{sIt}, 0")
    a.label("k2_sloop")
    a(f"s_cmp_eq_u32 s{sIt}, 4")
    a(f"s_cselect_b32 s{SH+2}, 0, s{SH+2}")
    a(f"s_cselect_b32 s{SW+2}, 0, s{SW+2}")
    for k in range(4):
        b = 36*k
        ld, inc = ssm_loads(k)
        a("s_waitcnt vmcnt(27)")
        for j in range(5):
            for tt in range(4):
                d = ACC + (j*4+tt)*4
                a(f"v_mfma_f32_16x16x32_bf16 v[{d}:{d+3}], a[{b+16+4*j}:{b+16+4*j+3}], a[{b+4*tt}:{b+4*tt+3}], v[{d}:{d+3}]")
            if j >= 1: a(ld[j-1])
        a(ld[4])
        for x in ld[5:] + inc: a(x)
    a(f"s_add_u32 s{sIt}, s{sIt}, 1")
    a(f"s_cmp_lt_u32 s{sIt}, 5")
    a(f"s_cbranch_scc1 k2_sloop")
    a("s_branch k2_red")
    a.label("k2_glu")
    a(f"s_mul_i32 s{sT0}, s{sCB}, 160")
    for i in range(5):
        a(f"v_add_u32 v{vT+1}, {64*i}, v{L}")
        a(f"v_mul_u32_u24 v{vT+2}, 6554, v{vT+1}")
        a(f"v_lshrrev_b32 v{vT+2}, 16, v{vT+2}")
        a(f"v_mul_u32_u24 v{vT+3}, 10, v{vT+2}")
        a(f"v_sub_u32 v{vT+3}, v{vT+1}, v{vT+3}")
        a(f"v_mul_u32_u24 v{vT+2}, 1280, v{vT+2}")
        a(f"v_lshl_add_u32 v{vT+2}, v{vT+3}, 4, v{vT+2}")
        a(f"v_add_u32 v{vT+2}, s{sT0}, v{vT+2}")
        if 0 < i < 4: a(f"v_subrev_u32 v{vT+2}, {1024*i}, v{vT+2}")
        a(f"v_mov_b32 v{vC+i}, v{vT+2}")
    RING = 4*5120
    a(f"v_and_b32 v{vT+1}, 15, v{L}")
    a(f"v_lshrrev_b32 v{vT+2}, 4, v{L}")
    a(f"v_lshrrev_b32 v{vT+3}, 2, v{vT+1}")
    a(f"v_lshl_add_u32 v{vT+3}, v{vT+2}, 2, v{vT+3}")
    a(f"v_mul_u32_u24 v{vT+3}, 160, v{vT+3}")
    a(f"v_and_b32 v{vT+1}, 3, v{vT+1}")
    a(f"v_lshl_add_u32 v{vT+3}, v{vT+1}, 3, v{vT+3}")
    a(f"s_sub_u32 s{sT0}, s{sW}, 2")
    a(f"s_mul_i32 s{sRing}, s{sT0}, {RING}")
    a(f"v_add_u32 v{vWr}, s{sRing}, v{vT+3}")
    a("s_waitcnt lgkmcnt(0)")
    srd(a, SH, P_WS, WS_G)
    srd(a, SW, P_WD, 1966080)
    a(f"s_mul_i32 s{sKH}, s{sT0}, {24*1024}")
    a(f"s_add_u32 s{sKH}, s{sKH}, {40*1024}")
    a(f"s_mul_i32 s{sKW}, s{sT0}, {768*1280}")
    def glu_dma(k):
        out = []
        out.append([f"s_add_u32 m0, s{sRing}, {k*5120}", "s_nop 0", f"buffer_load_dwordx4 v{vC}, s[{SW}:{SW+3}], s{sKW} offen lds"])
        for i in range(1,4):
            out.append([f"buffer_load_dwordx4 v{vC+i}, s[{SW}:{SW+3}], s{sKW} offen offset:{1024*i} lds"])
        out.append([f"s_add_u32 m0, s{sRing}, {k*5120+4096}", "s_nop 0", f"buffer_load_dwordx4 v{vC+4}, s[{SW}:{SW+3}], s{sKW} offen lds",
                    f"s_add_u32 s{sKW}, s{sKW}, {32*1280}"])
        return out
    def glu_h(k):
        b = 16*k
        out = [f"buffer_load_dwordx4 a[{b+4*tt}:{b+4*tt+3}], v{vH+tt}, s[{SH}:{SH+3}], s{sKH} offen" for tt in range(4)]
        return out + [f"s_add_u32 s{sKH}, s{sKH}, 1024"]
    def glu_rd(k, wset):
        b = 64 + 20*wset
        out = []
        for j in range(5):
            out.append(f"ds_read_b64_tr_b16 a[{b+4*j}:{b+4*j+1}], v{vWr} offset:{k*5120 + 32*j}")
            out.append(f"ds_read_b64_tr_b16 a[{b+4*j+2}:{b+4*j+3}], v{vWr} offset:{k*5120 + 32*j + 2560}")
        return out
    for k in range(4):
        for g in glu_dma(k):
            for x in g: a(x)
        for x in glu_h(k): a(x)
    stamp(a, 1, STAMPREGS2)
    a("s_waitcnt vmcnt(31)")
    for x in glu_rd(0, 0): a(x)
    a(f"s_mov_b32 s{sIt}, 0")
    a.label("k2_gloop")
    a(f"s_cmp_eq_u32 s{sIt}, 5")
    a(f"s_cselect_b32 s{SH+2}, 0, s{SH+2}")
    a(f"s_cselect_b32 s{SW+2}, 0, s{SW+2}")
    for k in range(4):
        a("s_waitcnt vmcnt(22) lgkmcnt(0)")
        rd = glu_rd((k+1) % 4, (k+1) & 1)
        dm = glu_dma(k)
        wb = 64 + 20*(k & 1)
        hb = 16*k
        mf = []
        for j in range(5):
            for tt in range(4):
                d = ACC + (j*4+tt)*4
                mf.append(f"v_mfma_f32_16x16x32_bf16 v[{d}:{d+3}], a[{wb+4*j}:{wb+4*j+3}], a[{hb+4*tt}:{hb+4*tt+3}], v[{d}:{d+3}]")
        for i, mm in enumerate(mf):
            a(mm)
            if i < 10: a(rd[i])
            elif i < 15:
                for x in dm[i-10]: a(x)
        for x in glu_h(k): a(x)
    a(f"s_add_u32 s{sIt}, s{sIt}, 1")
    a(f"s_cmp_lt_u32 s{sIt}, 6")
    a(f"s_cbranch_scc1 k2_gloop")
    a.label("k2_red")
    stamp(a, 2, STAMPREGS2)
    a("s_waitcnt vmcnt(0) lgkmcnt(0)")
    a("s_barrier")
    RS = 336
    RED = 64*RS
    a(f"v_and_b32 v{vT+1}, 15, v{L}")
    a(f"v_lshrrev_b32 v{vT+2}, 4, v{L}")
    a(f"v_mul_u32_u24 v{vT+1}, {RS}, v{vT+1}")
    a(f"v_lshl_add_u32 v{vT+1}, v{vT+2}, 4, v{vT+1}")
    a(f"s_mul_i32 s{sT0}, s{sW}, {RED}")
    a(f"v_add_u32 v{vT+1}, s{sT0}, v{vT+1}")
    a("s_nop 4")
    for j in range(5):
        for tt in range(4):
            d = ACC + (j*4+tt)*4
            a(f"ds_write_b128 v{vT+1}, v[{d}:{d+3}] offset:{tt*16*RS + 64*j}")
    OA = 20
    for i in range(5):
        a(f"v_add_u32 v{vT+3}, {256*i}, v0")
        a(f"v_mul_u32_u24 v{vT+4}, 3277, v{vT+3}")
        a(f"v_lshrrev_b32 v{vT+4}, 16, v{vT+4}")
        a(f"v_mul_u32_u24 v{vT+5}, 20, v{vT+4}")
        a(f"v_sub_u32 v{vT+5}, v{vT+3}, v{vT+5}")
        a(f"v_mul_u32_u24 v{20+i}, {RS}, v{vT+4}")
        a(f"v_lshl_add_u32 v{20+i}, v{vT+5}, 4, v{20+i}")
        a(f"s_lshl_b32 s{sT0}, s{sRB}, 6")
        a(f"v_add_u32 v{vT+4}, s{sT0}, v{vT+4}")
        a(f"v_lshlrev_b32 v{38+i}, 2, v{vT+4}")
        a(f"v_mul_u32_u24 v{vT+4}, 640, v{vT+4}")
        a(f"s_mul_i32 s{sT1}, s{sCB}, 80")
        a(f"v_lshl_add_u32 v{vT+5}, v{vT+5}, 2, s{sT1}")
        a(f"v_lshlrev_b32 v{44+i}, 1, v{vT+5}")
        a(f"v_add_u32 v{vT+4}, v{vT+4}, v{vT+5}")
        a(f"v_lshlrev_b32 v{26+i}, 2, v{vT+4}")
        a(f"v_lshlrev_b32 v{32+i}, 1, v{vT+4}")
    a(f"s_add_u32 s{sT0}, s{P_WS}, {WS_G}")
    a(f"s_addc_u32 s{sT1}, s{P_WS+1}, 0")
    a(f"s_mov_b32 s{SH}, s{sT0}")
    a(f"s_mov_b32 s{SH+1}, s{sT1}")
    XR, DR, GR = 50, 60, 70
    for i in range(5):
        a(f"global_load_dwordx2 v[{XR+2*i}:{XR+2*i+1}], v{32+i}, s[{P_X}:{P_X+1}]")
        a(f"global_load_dwordx2 v[{DR+2*i}:{DR+2*i+1}], v{44+i}, s[{P_DSK}:{P_DSK+1}]")
        a(f"global_load_dword v{GR+i}, v{38+i}, s[{SH}:{SH+1}]")
    a("s_waitcnt lgkmcnt(0)")
    a("s_barrier")
    stamp(a, 3, STAMPREGS2)
    for i in range(5):
        b = ACC + 16*i
        for w in range(4):
            a(f"ds_read_b128 v[{b+4*w}:{b+4*w+3}], v{20+i} offset:{w*RED}")
    a("s_waitcnt vmcnt(0)")
    for i in range(5):
        b = ACC + 16*i
        a(f"s_waitcnt lgkmcnt({min(15,4*(4-i))})")
        a(f"v_pk_add_f32 v[{b}:{b+1}], v[{b}:{b+1}], v[{b+4}:{b+5}]")
        a(f"v_pk_add_f32 v[{b+2}:{b+3}], v[{b+2}:{b+3}], v[{b+6}:{b+7}]")
        a(f"v_pk_add_f32 v[{b+8}:{b+9}], v[{b+8}:{b+9}], v[{b+12}:{b+13}]")
        a(f"v_pk_add_f32 v[{b+10}:{b+11}], v[{b+10}:{b+11}], v[{b+14}:{b+15}]")
        x0, d0_ = XR+2*i, DR+2*i
        for h in range(2):
            a(f"v_lshlrev_b32 v{vT+1}, 16, v{x0+h}")
            a(f"v_and_b32 v{vT+2}, 0xffff0000, v{x0+h}")
            a(f"v_lshlrev_b32 v{vT+3}, 16, v{d0_+h}")
            a(f"v_and_b32 v{vT+4}, 0xffff0000, v{d0_+h}")
            a(f"v_fmac_f32 v{b+2*h}, v{vT+1}, v{vT+3}")
            a(f"v_fmac_f32 v{b+2*h+1}, v{vT+2}, v{vT+4}")
        a(f"v_sub_f32 v{vT+1}, 1.0, v{GR+i}")
        for e in range(4):
            a(f"v_mul_f32 v{b+e}, v{GR+i}, v{b+e}")
            a(f"v_fmac_f32 v{b+e}, v{vT+1}, v{b+8+e}")
        a(f"global_store_dwordx4 v{26+i}, v[{b}:{b+3}], s[{P_OUT}:{P_OUT+1}]")
    stamp(a, 4, STAMPREGS2)
    dump_stamps(a, 5, STAMPREGS2, sW, sT0, P_WS, WS_STAMP + 0x10000, "k2_end")
    a.label("k2_end")
    a("s_endpgm")
    return a.text()

HEADER = open("gated_mix__ssm_conv_s5__glu_gated_bilinear__prompt.s.ref").read().split("; Override launch")[0]

def kdesc(name, nv=512, acc=256, ns=102):
    return f""".amdhsa_kernel {name}
  .amdhsa_next_free_vgpr {nv}
  .amdhsa_next_free_sgpr {ns}
  .amdhsa_accum_offset {acc}
  .amdhsa_group_segment_fixed_size 0
  .amdhsa_kernarg_size 136
  .amdhsa_user_sgpr_count 2
  .amdhsa_user_sgpr_kernarg_segment_ptr 1
  .amdhsa_system_sgpr_workgroup_id_x 1
  .amdhsa_float_denorm_mode_32 3
.end_amdhsa_kernel
"""

def main():
    out = HEADER
    out += "; @launch kernel=k1_kernel grid=(256,1,1) block=(256,1,1) lds=159744\n"
    out += "; @launch kernel=k2_kernel grid=(256,1,1) block=(256,1,1) lds=86016\n"
    out += '.amdgcn_target "amdgcn-amd-amdhsa--gfx950"\n.text\n'
    for name, body in (("k1_kernel", gen_k1()), ("k2_kernel", gen_k2())):
        out += f".globl {name}\n.p2align 8\n.type {name},@function\n" + body
    out += '.section .rodata,"a"\n'
    for name in ("k1_kernel", "k2_kernel"):
        out += ".p2align 6\n" + kdesc(name)
    path = [x for x in sys.argv[1:] if not x.startswith("--")][0]
    open(path, "w").write(out)
main()
```

```python
import sys, json
from asmlib import *

FLAGS = set(x[2:] for x in sys.argv[1:] if x.startswith("--"))
STAMP = "stamp" in FLAGS
NAMES = []
KNAME = "gated_mix__ssm_conv_s5__glu_gated_bilinear__prompt_kernel"

WS_H   = 0
WS_G   = 0xB00000
WS_S   = 0xB10000
WS_FB  = 0xB40000
WS_FA  = 0xB42000
WS_PF  = 0xB44000
WS_W2  = 0xC00000
W2_SIZE = 8*88*5*1024
WS_STAMP = 0x1000000
LOG2E = 0x3fb8aa3b
INV2PI = 0x3e22f983
SC = "" if "nosc" in FLAGS else " sc1"
SCL = "" if ("nosc" in FLAGS or "noscl" in FLAGS) else " sc1"
LSTAMP = "lstamp" in FLAGS

def srd(a, d, base, size, add=0):
    o = []
    if add == 0:
        o += [f"s_mov_b32 s{d}, s{base}", f"s_mov_b32 s{d+1}, s{base+1}"]
    elif add > 0:
        o += [f"s_add_u32 s{d}, s{base}, {add}", f"s_addc_u32 s{d+1}, s{base+1}, 0"]
    else:
        o += [f"s_sub_u32 s{d}, s{base}, {-add}", f"s_subb_u32 s{d+1}, s{base+1}, 0"]
    o += [f"s_mov_b32 s{d+2}, {size}", f"s_mov_b32 s{d+3}, 0x00020000"]
    if a is None: return o
    for x in o: a(x)

class Stamper:
    def __init__(self, store):
        self.store = store; self.n = 0; self.tmp = [98, 100]; self.names = {}
        NAMES.append(self.names)
    def __call__(self, a, name=""):
        if not STAMP: return
        if self.n > 0:
            a(f"s_mov_b32 s{self.store[self.n-1]}, s{self.tmp[(self.n-1)&1]}")
        assert self.n < len(self.store), "too many stamps"
        a(f"s_memtime s[{self.tmp[self.n&1]}:{self.tmp[self.n&1]+1}]")
        self.names[self.n] = name
        self.n += 1
    def dump(self, a, sW, sT0, P_WS, base):
        if not STAMP: return
        a("s_waitcnt vmcnt(0) lgkmcnt(0)")
        self(a, "end")
        a("s_waitcnt lgkmcnt(0)")
        a(f"s_mov_b32 s{self.store[self.n-1]}, s{self.tmp[(self.n-1)&1]}")
        a(f"s_lshl_b32 s{sT0}, s2, 2")
        a(f"s_add_u32 s{sT0}, s{sT0}, s{sW}")
        a(f"s_lshl_b32 s{sT0}, s{sT0}, 7")
        a(f"s_add_u32 s{sT0}, s{sT0}, {base}")
        a(f"v_mov_b32 v2, s{sT0}")
        for i in range(self.n):
            a(f"v_mov_b32 v3, s{self.store[i]}")
            a(f"global_store_dword v2, v3, s[{P_WS}:{P_WS+1}] offset:{4*i}")

def rr(*streams):
    out = []
    n = max(len(s) for s in streams)
    for i in range(n):
        for s in streams:
            if i < len(s): out.append(s[i])
    return out

def weave(a, work, mem, start=0, every=None):
    n = len(work); m = len(mem)
    if m == 0: pos = []
    elif every is None: pos = [start + int((n - start) * i / m) for i in range(m)]
    else: pos = [start + every*i for i in range(m)]
    mi = 0
    def emit(it):
        if isinstance(it, str): a(it)
        else:
            for x in it: a(x)
    for i, w in enumerate(work):
        while mi < m and pos[mi] <= i:
            emit(mem[mi]); mi += 1
        emit(w)
    while mi < m:
        emit(mem[mi]); mi += 1

SPIN_MAX = 100000
def spin_init(a): a("s_mov_b32 s95, 0")
def spin_guard(a, out_label):
    a("s_add_u32 s95, s95, 1")
    a(f"s_cmp_gt_u32 s95, {SPIN_MAX}")
    a(f"s_cbranch_scc1 {out_label}")

DPPSW = "quad_perm:[1,0,3,2] row_mask:0xf bank_mask:0xf"
P_X, P_LRE, P_LIM, P_BRE, P_BIM, P_CRE, P_CIM, P_LDT = 4,6,8,10,12,14,16,18
P_DSK, P_BX, P_WG, P_WU = 20,22,24,26
P_WD, P_GW, P_OUT, P_DBG = 28,30,32,34
P_WS = 36

def gen():
    a = Asm()
    stp = Stamper([96,97,22,23,6,7,8,9,18,19,10,11,12,13,24,25,26,27,95,94,73,74,75,76,77,80,81,82,83])
    SX, SG, SU, SB0, SB1, SB2, SM = 40,44,48,52,56,60,64
    sEX = 38
    sW, sRH, sCH, sRB, sCG = 68,69,70,71,72
    sDB, sCur, sD, sC3, sStage = 73,74,75,76,77
    sKX, sKG, sKU, sKB = 78,79,80,81
    sOX, sOG, sOU, sOB, sOB2 = 82,83,84,85,86
    sT0, sT1, sT2 = 87,88,89
    sF = 87
    sBlk, sRB2, sCB = 90, 91, 92
    sT3 = 93
    sNonce = 3
    vL = 1
    vDX, vDW, vDB = 2, 6, 9
    vX0, vX1, vWa, vWb, vWc, vB0, vB1 = 12,13,14,15,16,17,18
    t0, t1, t2, t3, t4 = 19,20,21,22,23
    vA  = [24,25,26]; vBx = [27,28,29]; vLRE = [30,31,32]; vLIM = [33,34,35]
    vLr = [36,37,38]; vLi = [39,40,41]; vWSr = [42,43,44]; vWSi = [45,46,47]
    vSgn, vNon, vSig, vWp = 48, 49, 50, 51
    vPF = 52
    SCR = 52
    vC, vAe, vAe4, vRw = 90, 91, 92, 93
    pa = [94, 95, 96]
    RA, GA = 100, 105
    Ps = [110, 111, 112]
    vAs, vCm = 113, 114
    vH = 116
    ACC = 120
    BUF = 51200
    RX, RG, RU, RB = 0, 16384, 28672, 40960
    MISC = 3*BUF
    SWB, EF, E4, RWB = 0, 1280, 5120, 7104
    EF0 = EF + 7*256; E40 = E4 + 15*64
    HTS = 272
    def acc(n, i): return ACC + n*16 + 4*i
    SA, SBt, S4 = ACC+96, ACC+112, ACC+128
    CL = ACC
    GL = ACC+12
    PK = ACC+28
    vPWs, vPCs, vPWd, vPCd, vPtr = ACC+44, ACC+46, ACC+48, ACC+50, ACC+52
    TP = ACC+56

    a.label(KNAME)
    a(f"s_cmp_ge_u32 s2, 256")
    a(f"s_cbranch_scc1 L_end")
    a(f"s_load_dwordx16 s[4:19], s[0:1], 0")
    a(f"s_load_dwordx8 s[20:27], s[0:1], 64")
    a(f"s_load_dwordx8 s[28:35], s[0:1], 96")
    a(f"s_load_dwordx2 s[36:37], s[0:1], 128")
    a(f"s_memrealtime s[{sEX}:{sEX+1}]")
    stp(a, "s0")
    a(f"v_lshrrev_b32 v{t0}, 6, v0")
    a(f"v_and_b32 v{vL}, 63, v0")
    a(f"s_and_b32 s{sT0}, s2, 1")
    a(f"v_readfirstlane_b32 s{sW}, v{t0}")
    a(f"s_lshl_b32 s{sT0}, s{sT0}, 3")
    a(f"s_lshr_b32 s{sT1}, s2, 3")
    a(f"s_and_b32 s{sRB}, s{sT1}, 7")
    a(f"s_add_u32 s{sRB}, s{sRB}, s{sT0}")
    a(f"s_lshr_b32 s{sT0}, s2, 1")
    a(f"s_and_b32 s{sT0}, s{sT0}, 3")
    a(f"s_lshl_b32 s{sT2}, s{sT0}, 2")
    a(f"s_lshr_b32 s{sT3}, s2, 6")
    a(f"s_add_u32 s{sCG}, s{sT2}, s{sT3}")
    a(f"s_lshl_b32 s{sT0}, s{sT0}, 3")
    a(f"s_and_b32 s{sT1}, s{sT1}, 7")
    a(f"s_add_u32 s{sRB2}, s{sT0}, s{sT1}")
    a(f"s_and_b32 s{sT0}, s2, 1")
    a(f"s_lshl_b32 s{sT0}, s{sT0}, 2")
    a(f"s_add_u32 s{sCB}, s{sT0}, s{sT3}")
    a(f"s_lshr_b32 s{sRH}, s{sW}, 1")
    a(f"s_and_b32 s{sCH}, s{sW}, 1")
    a(f"v_lshrrev_b32 v{t0}, 3, v{vL}")
    a(f"v_and_b32 v{t1}, 2, v{t0}")
    a(f"s_lshl_b32 s{sT0}, s{sCH}, 2")
    a(f"v_or_b32 v{t1}, s{sT0}, v{t1}")
    a(f"v_and_b32 v{t2}, 7, v{vL}")
    a(f"v_xor_b32 v{t1}, v{t1}, v{t2}")
    a(f"s_lshl_b32 s{sT0}, s{sRB}, 7")
    a(f"s_lshl_b32 s{sT1}, s{sW}, 5")
    a(f"s_add_u32 s{sT0}, s{sT0}, s{sT1}")
    a(f"v_add_u32 v{t0}, s{sT0}, v{t0}")
    a(f"v_mul_u32_u24 v{t0}, 1280, v{t0}")
    a(f"v_lshl_add_u32 v{vDX}, v{t1}, 4, v{t0}")
    for i in range(1,4):
        a(f"v_add_u32 v{vDX+i}, {9216*i}, v{vDX}")
    a(f"s_lshl_b32 s{sOX}, s{sW}, 12")
    a(f"s_mul_i32 s{sOG}, s{sW}, 3072")
    a(f"s_add_u32 s{sOU}, s{sOG}, {RU}")
    a(f"s_add_u32 s{sOG}, s{sOG}, {RG}")
    for r in (sKX, sKG, sKU, sKB): a(f"s_mov_b32 s{r}, 0")
    a("s_waitcnt lgkmcnt(0)")
    a(f"s_or_b32 s{sT0}, s2, s{sW}")
    a(f"s_cmp_lg_u32 s{sT0}, 0")
    a(f"s_cbranch_scc1 L_no_nonce")
    a(f"s_or_b32 s{sT0}, s{sEX}, 1")
    a(f"v_mov_b32 v{t0}, s{sT0}")
    a(f"v_mov_b32 v{t1}, 0")
    a(f"s_mov_b64 exec, 1")
    a(f"global_store_dword v{t1}, v{t0}, s[{P_DBG}:{P_DBG+1}]{SC}")
    a(f"s_mov_b64 exec, -1")
    a.label("L_no_nonce")
    srd(a, SX, P_X, 2621440)
    def dma(vo, S, so, off):
        o = f" offset:{off}" if off else ""
        return f"buffer_load_dwordx4 v{vo}, s[{S}:{S+3}], s{so} offen{o} lds"
    def dgrp(base_expr, items):
        g = [[f"s_add_u32 m0, {base_expr}", "s_nop 0", items[0]]]
        g += [[x] for x in items[1:]]
        return g
    def stage_x(b):  return dgrp(f"s{sOX}, {b}", [dma(vDX+i, SX, sKX, 1024*i) for i in range(4)])
    def stage_g(b):  return dgrp(f"s{sOG}, {b}", [dma(vDW+i, SG, sKG, 1024*i) for i in range(3)])
    def stage_u(b):  return dgrp(f"s{sOU}, {b}", [dma(vDW+i, SU, sKU, 1024*i) for i in range(3)])
    def stage_b(b):  return dgrp(f"s{sOB}, {b}", [dma(vDB, SB0, sKB, 0), dma(vDB+1, SB1, sKB, 1024)]) + dgrp(f"s{sOB2}, {b}", [dma(vDB+2, SB2, sKB, 0)])
    wW = [f"s_mul_i32 s{sT0}, s{sW}, 192", f"s_mul_i32 s{sT1}, s{sCG}, 192"]
    for i in range(3):
        wW += [f"v_add_u32 v{t0}, s{sT0}, v{vL}"]
        if i: wW += [f"v_add_u32 v{t0}, {64*i}, v{t0}"]
        wW += [f"v_mul_u32_u24 v{t1}, 43691, v{t0}", f"v_lshrrev_b32 v{t1}, 19, v{t1}", f"v_mul_u32_u24 v{t2}, 12, v{t1}",
               f"v_sub_u32 v{t2}, v{t0}, v{t2}", f"v_lshrrev_b32 v{t3}, 2, v{t1}", f"v_and_b32 v{t3}, 2, v{t3}",
               f"v_xor_b32 v{t2}, v{t2}, v{t3}", f"v_mul_u32_u24 v{t1}, 3072, v{t1}", f"v_lshl_add_u32 v{t1}, v{t2}, 4, v{t1}",
               f"v_add_u32 v{vDW+i}, s{sT1}, v{t1}"]
        if i: wW += [f"v_subrev_u32 v{vDW+i}, {1024*i}, v{vDW+i}"]
    wW += srd(None, SG, P_WG, 1966080) + srd(None, SU, P_WU, 1966080)
    weave(a, wW, stage_x(0), start=0)
    wB = [f"s_mul_i32 s{sT3}, s{sCG}, 40", f"s_mul_i32 s{sT2}, s{sW}, 3",
          [f"s_cmp_eq_u32 s{sW}, 3", f"s_cselect_b32 s{sT2}, 8, s{sT2}"],
          f"s_add_u32 s{sD}, s{sT2}, 2",
          [f"s_cmp_ge_u32 s{sW}, 2", f"s_cselect_b32 s{sT0}, 1, 0"],
          f"s_sub_u32 s{sD}, s{sD}, s{sT0}",
          f"s_lshl_b32 s{sOB}, s{sT2}, 10", f"s_add_u32 s{sOB}, s{sOB}, {RB}",
          f"s_lshl_b32 s{sOB2}, s{sD}, 10", f"s_add_u32 s{sOB2}, s{sOB2}, {RB}",
          f"v_lshrrev_b32 v{t3}, 4, v{vL}", f"v_lshlrev_b32 v{t3}, 1, v{t3}", f"v_and_b32 v{t4}, 7, v{vL}"]
    for i in range(3):
        wB += [f"s_mov_b32 s{sT0}, s{sT2}" if i == 0 else (f"s_add_u32 s{sT0}, s{sT2}, 1" if i == 1 else f"s_mov_b32 s{sT0}, s{sD}")]
        wB += [[f"s_cmp_ge_u32 s{sT0}, 5", f"s_cselect_b32 s{sT1}, 1, 0", f"s_cselect_b32 s{sC3}, 5, 0"],
               f"s_sub_u32 s{sT0}, s{sT0}, s{sC3}", f"s_lshl_b32 s{sT0}, s{sT0}, 3", f"s_add_u32 s{sT0}, s{sT0}, s{sT3}",
               f"v_lshrrev_b32 v{t0}, 3, v{vL}", f"v_add_u32 v{t0}, s{sT0}, v{t0}", f"v_mul_u32_u24 v{t0}, 1280, v{t0}",
               f"v_add_u32 v{t1}, s{sT1}, v{t3}", f"v_xor_b32 v{t1}, v{t1}, v{t4}", f"v_lshl_add_u32 v{t0}, v{t1}, 4, v{t0}",
               f"v_add_u32 v{vDB+i}, {4096 - (1024*i if i < 2 else 0)}, v{t0}"]
    for i, S in enumerate([SB0, SB1, SB2]):
        wB += [[f"s_cmp_ge_u32 s{sW}, {2 if i < 2 else 1}", f"s_cselect_b32 s{S}, s{P_BIM}, s{P_BRE}", f"s_cselect_b32 s{S+1}, s{P_BIM+1}, s{P_BRE+1}"],
               [f"s_sub_u32 s{S}, s{S}, 4096", f"s_subb_u32 s{S+1}, s{S+1}, 0"],
               f"s_mov_b32 s{S+2}, {819200+4096}", f"s_mov_b32 s{S+3}, 0x00020000"]
    weave(a, wB, stage_g(0) + stage_u(0), start=0)
    c1, c2, g1, g2 = TP, TP+1, TP+2, TP+3
    wC = [f"v_and_b32 v{t0}, 15, v{vL}", f"v_lshrrev_b32 v{t0}, 1, v{t0}", f"s_mul_i32 s{sT0}, s{sCG}, 40",
          f"s_lshl_b32 s{sT1}, s{sCH}, 4", f"s_add_u32 s{sT1}, s{sT1}, s{sT0}", f"v_add_u32 v{c1}, s{sT1}, v{t0}",
          f"v_lshlrev_b32 v{c1}, 1, v{c1}", f"s_add_u32 s{sT0}, s{sT0}, 32", f"v_add_u32 v{c2}, s{sT0}, v{t0}",
          f"v_lshlrev_b32 v{c2}, 1, v{c2}",
          f"s_lshl_b32 s{sT0}, s{sRB}, 7", f"s_lshl_b32 s{sT1}, s{sRH}, 6", f"s_add_u32 s{sT0}, s{sT0}, s{sT1}",
          f"s_lshl_b32 s{sT1}, s{sCG}, 2", f"s_add_u32 s{sT0}, s{sT0}, s{sT1}", f"s_lshl_b32 s{sT1}, s{sCH}, 1",
          f"s_add_u32 s94, s{sT0}, s{sT1}", f"s_mul_i32 s{sT1}, s94, 1280",
          f"v_lshlrev_b32 v{g1}, 2, v{vL}", f"v_add_u32 v{g2}, s{sT1}, v{g1}"]
    wC += [f"s_mul_i32 s{sT0}, s2, 52429", f"s_lshr_b32 s{sT0}, s{sT0}, 18", f"s_mul_i32 s{sT1}, s{sT0}, 5", f"s_sub_u32 s{sT1}, s2, s{sT1}",
           f"v_lshrrev_b32 v{t0}, 2, v{vL}", f"s_lshl_b32 s{sT2}, s{sT0}, 5", f"v_add_u32 v{t0}, s{sT2}, v{t0}",
           f"v_mul_u32_u24 v{t0}, 1280, v{t0}", f"v_and_b32 v{t1}, 3, v{vL}", f"v_lshl_add_u32 v{t0}, v{t1}, 4, v{t0}",
           f"s_lshl_b32 s{sT2}, s{sT1}, 8", f"v_add_u32 v{t0}, s{sT2}, v{t0}", f"s_lshl_b32 s{sT2}, s{sW}, 6",
           f"v_add_u32 v{vPWs}, s{sT2}, v{t0}", f"v_add_u32 v{vPWs+1}, {16*1280-1024}, v{vPWs}"]
    for k in range(2):
        wC += [f"s_lshl_b32 s{sT2}, s{sT1}, 3", f"s_lshl_b32 s{sT3}, s{sW}, 1", f"s_add_u32 s{sT2}, s{sT2}, s{sT3}"]
        if k: wC += [f"s_add_u32 s{sT2}, s{sT2}, 1"]
        wC += [f"s_mul_i32 s{sT3}, s{sT2}, 52429", f"s_lshr_b32 s{sT3}, s{sT3}, 18", f"s_mul_i32 s{sD}, s{sT3}, 5",
               f"s_sub_u32 s{sT2}, s{sT2}, s{sD}", f"s_mul_i32 s{sT3}, s{sT3}, 88", f"s_add_u32 s{sT3}, s{sT3}, s{sT0}",
               f"s_add_u32 s{sT3}, s{sT3}, 40", f"s_mul_i32 s{sT3}, s{sT3}, 5", f"s_add_u32 s{sT3}, s{sT3}, s{sT2}",
               f"s_lshl_b32 s{sT3}, s{sT3}, 10", f"s_add_u32 s{sT3}, s{sT3}, {WS_W2}",
               f"v_lshlrev_b32 v{vPWd+k}, 4, v{vL}", f"v_add_u32 v{vPWd+k}, s{sT3}, v{vPWd+k}"]
    wC += [f"s_lshl_b32 s{sT0}, s2, 3", f"s_lshl_b32 s{sT1}, s{sW}, 1", f"s_add_u32 s{sT0}, s{sT0}, s{sT1}",
           f"s_mul_i32 s{sT1}, s{sT0}, 52429", f"s_lshr_b32 s{sT1}, s{sT1}, 21", f"s_mul_i32 s{sT2}, s{sT1}, 40",
           f"s_sub_u32 s{sT0}, s{sT0}, s{sT2}",
           [f"s_cmp_ge_u32 s{sT0}, 20", f"s_cselect_b32 s{sC3}, 1, 0", f"s_cselect_b32 s{sT2}, 20, 0"],
           f"s_sub_u32 s{sT2}, s{sT0}, s{sT2}",
           f"v_and_b32 v{t0}, 15, v{vL}", f"s_lshl_b32 s{sT3}, s{sT1}, 4", f"v_add_u32 v{t0}, s{sT3}, v{t0}",
           f"v_mul_u32_u24 v{t0}, 1280, v{t0}", f"v_lshrrev_b32 v{t1}, 4, v{vL}", f"v_lshl_add_u32 v{t0}, v{t1}, 4, v{t0}",
           f"s_lshl_b32 s{sT2}, s{sT2}, 6", f"v_add_u32 v{vPCs}, s{sT2}, v{t0}",
           f"s_mul_i32 s{sT3}, s{sT1}, 52429", f"s_lshr_b32 s{sT3}, s{sT3}, 18", f"s_mul_i32 s{sD}, s{sT3}, 5",
           f"s_sub_u32 s{sT1}, s{sT1}, s{sD}", f"s_mul_i32 s{sT3}, s{sT3}, 88", f"s_add_u32 s{sT3}, s{sT3}, s{sT0}",
           f"s_mul_i32 s{sT3}, s{sT3}, 5", f"s_add_u32 s{sT3}, s{sT3}, s{sT1}", f"s_lshl_b32 s{sT3}, s{sT3}, 10",
           f"s_add_u32 s{sT3}, s{sT3}, {WS_W2}", f"v_lshlrev_b32 v{vPCd}, 4, v{vL}", f"v_add_u32 v{vPCd}, s{sT3}, v{vPCd}",
           f"v_add_u32 v{vPCd+1}, {5*1024}, v{vPCd}",
           f"s_lshl_b32 s{sT0}, s{sW}, 11", f"s_add_u32 s95, s{sT0}, {MISC}"]
    weave(a, wC, stage_b(0), start=0)
    stp(a, "S0 issued")
    sm = []
    for k, P in enumerate((P_LRE, P_LIM, P_LDT)):
        sm += [f"global_load_ushort v{CL+3*k}, v{c1}, s[{P}:{P+1}]", f"global_load_ushort v{CL+3*k+1}, v{c1}, s[{P}:{P+1}] offset:16",
               f"global_load_ushort v{CL+3*k+2}, v{c2}, s[{P}:{P+1}]"]
    sm += [f"global_load_dword v{GL+i}, v{g1}, s[{P_GW}:{P_GW+1}] offset:{256*i}" for i in range(5)]
    for r in range(2):
        sm += [f"global_load_dword v{GL+5+5*r+i}, v{g2}, s[{P_X}:{P_X+1}] offset:{1280*r+256*i}" for i in range(5)]
    sm += [srd(None, SM, P_WD, 1966080) + [f"s_cmp_lt_u32 s2, 240", f"s_cselect_b32 s{SM+2}, s{SM+2}, 0", "s_mov_b32 m0, s95", "s_nop 0",
           f"buffer_load_dwordx4 v{vPWs}, s[{SM}:{SM+3}], 0 offen lds"],
           [f"buffer_load_dwordx4 v{vPWs+1}, s[{SM}:{SM+3}], 0 offen offset:1024 lds"],
           [f"s_cmp_eq_u32 s{sC3}, 1", f"s_cselect_b32 s{SM}, s{P_CIM}, s{P_CRE}", f"s_cselect_b32 s{SM+1}, s{P_CIM+1}, s{P_CRE+1}",
            f"s_mov_b32 s{SM+2}, 819200", f"s_cmp_lt_u32 s2, 200", f"s_cselect_b32 s{SM+2}, s{SM+2}, 0",
            f"buffer_load_dwordx4 v[{PK}:{PK+3}], v{vPCs}, s[{SM}:{SM+3}], 0 offen"],
           [f"buffer_load_dwordx4 v[{PK+4}:{PK+7}], v{vPCs}, s[{SM}:{SM+3}], 0 offen offset:64"]]
    m, q = t0, t1
    wL = [f"v_and_b32 v{m}, 15, v{vL}", f"v_lshrrev_b32 v{q}, 4, v{vL}",
          f"v_lshrrev_b32 v{t2}, 2, v{m}", f"v_lshlrev_b32 v{t2}, 4, v{t2}", f"v_and_b32 v{t3}, 3, v{m}", f"v_add_u32 v{t2}, v{t2}, v{t3}",
          f"s_lshl_b32 s{sT0}, s{sRH}, 6", f"v_add_u32 v{t2}, s{sT0}, v{t2}", f"v_lshlrev_b32 v{t2}, 7, v{t2}",
          f"v_and_b32 v{t3}, 2, v{m}", f"v_lshrrev_b32 v{t4}, 3, v{m}", f"v_lshl_or_b32 v{t3}, v{t4}, 2, v{t3}",
          f"v_xor_b32 v{t3}, v{t3}, v{q}", f"v_lshl_add_u32 v{vX0}, v{t3}, 4, v{t2}", f"v_xor_b32 v{t3}, 4, v{t3}",
          f"v_lshl_add_u32 v{vX1}, v{t3}, 4, v{t2}",
          f"v_lshrrev_b32 v{t2}, 2, v{m}", f"v_lshl_add_u32 v{t2}, v{q}, 3, v{t2}", f"v_mul_u32_u24 v{t2}, 192, v{t2}",
          f"v_and_b32 v{t3}, 3, v{m}", f"v_lshl_add_u32 v{t2}, v{t3}, 3, v{t2}", f"v_and_b32 v{t3}, 1, v{q}",
          f"v_lshl_add_u32 v{vWa}, v{t3}, 5, v{t2}", f"v_xor_b32 v{t3}, 1, v{t3}", f"v_lshl_add_u32 v{vWb}, v{t3}, 5, v{t2}",
          [f"s_cmp_eq_u32 s{sCH}, 1", f"s_cselect_b64 vcc, -1, 0", f"v_cndmask_b32 v{vWc}, v{vWa}, v{vWb}, vcc"],
          f"v_add_u32 v{vWc}, 64, v{vWc}", f"s_lshl_b32 s{sT0}, s{sCH}, 7", f"v_add_u32 v{vWa}, s{sT0}, v{vWa}", f"v_add_u32 v{vWb}, s{sT0}, v{vWb}",
          f"v_and_b32 v{t2}, 1, v{m}", f"v_lshrrev_b32 v{t3}, 2, v{m}", f"v_lshl_add_u32 v{t3}, v{t3}, 1, v{t2}", f"v_xor_b32 v{t3}, v{t3}, v{q}",
          f"v_mul_u32_u24 v{t2}, 40, v{t2}", f"v_lshrrev_b32 v{t4}, 1, v{m}", f"v_add_u32 v{t2}, v{t2}, v{t4}", f"v_lshlrev_b32 v{t2}, 7, v{t2}",
          f"s_lshl_b32 s{sT0}, s{sCH}, 11", f"v_add_u32 v{t2}, s{sT0}, v{t2}", f"v_lshl_add_u32 v{vB0}, v{t3}, 4, v{t2}",
          f"v_xor_b32 v{t3}, 4, v{t3}", f"v_lshl_add_u32 v{vB1}, v{t3}, 4, v{t2}",
          f"s_lshl_b32 s{sT0}, s{sRH}, 2", f"v_add_u32 v{vSig}, s{sT0}, v{q}",
          f"v_and_b32 v{t2}, 1, v{vL}", f"v_cvt_f32_u32 v{t2}, v{t2}", f"v_fma_f32 v{vSgn}, v{t2}, 2.0, -1.0",
          f"v_lshrrev_b32 v{t2}, 2, v{m}", f"v_lshl_add_u32 v{t2}, v{q}, 2, v{t2}", f"v_lshlrev_b32 v{t2}, 6, v{t2}",
          f"v_and_b32 v{t3}, 3, v{m}", f"v_lshl_add_u32 v{t2}, v{t3}, 3, v{t2}", f"v_add_u32 v{vPtr}, s95, v{t2}",
          f"v_lshlrev_b32 v{vC}, 2, v{m}", f"s_lshl_b32 s{sT0}, s{sCH}, 7", f"v_add_u32 v{vAs}, s{sT0}, v{vC}",
          f"v_add_u32 v{vCm}, {MISC}, v{vC}", f"v_add_u32 v{vAe}, {MISC}, v{vAs}", f"v_lshl_add_u32 v{vAe}, v{vSig}, 8, v{vAe}",
          f"v_lshlrev_b32 v{vAe4}, 1, v{vSig}", f"v_add_u32 v{vAe4}, s{sCH}, v{vAe4}", f"v_lshl_add_u32 v{vAe4}, v{vAe4}, 6, v{vCm}",
          f"s_mul_i32 s{sT0}, s{sW}, 320", f"s_add_u32 s{sT0}, s{sT0}, {MISC}", f"v_add_u32 v{vRw}, s{sT0}, v{vAs}",
          f"v_lshlrev_b32 v{vWp}, 4, v{vL}", f"s_mul_i32 s{sT0}, s{sRB2}, {4*88*1024}", f"v_add_u32 v{vH}, s{sT0}, v{vWp}"]
    wL += [f"v_add_u32 v{vH+i}, {i*88*1024}, v{vH}" for i in range(1,4)]
    weave(a, wL, sm, start=0)
    stp(a, "small issued")
    a(f"s_mov_b32 s{sKX}, 128"); a(f"s_mov_b32 s{sKG}, 196608"); a(f"s_mov_b32 s{sKU}, 196608"); a(f"s_mov_b32 s{sKB}, 128")
    wQ = [f"v_lshrrev_b32 v{t2}, 4, v{vL}", f"v_and_b32 v{t3}, 15, v{vL}", f"s_mul_i32 s{sT0}, s{sW}, 20", f"s_mul_i32 s{sT1}, s{sCG}, 5",
          f"s_lshl_b32 s{sT3}, s{sRB}, 1"]
    for it in range(5):
        n, rh_, r, ii, u8, comp, w1, w2 = TP+4, TP+5, TP+6, TP+7, TP+8, TP+9, TP+10, TP+11
        wQ += [f"v_add_u32 v{n}, s{sT0}, v{t2}"]
        if it: wQ += [f"v_add_u32 v{n}, {4*it}, v{n}"]
        wQ += [[f"v_cmp_le_u32 vcc, 40, v{n}", "s_nop 1", f"v_cndmask_b32 v{rh_}, 0, 1, vcc"],
              f"v_mul_u32_u24 v{r}, 40, v{rh_}", f"v_sub_u32 v{r}, v{n}, v{r}", f"v_mul_u32_u24 v{ii}, 26, v{r}", f"v_lshrrev_b32 v{ii}, 8, v{ii}",
              f"v_mul_u32_u24 v{w1}, 10, v{ii}", f"v_sub_u32 v{w1}, v{r}, v{w1}", f"v_lshrrev_b32 v{u8}, 1, v{w1}", f"v_and_b32 v{comp}, 1, v{w1}",
              f"v_lshrrev_b32 v{w1}, 2, v{t3}", f"v_lshl_add_u32 v{w1}, v{u8}, 3, v{w1}", f"v_lshl_add_u32 v{w1}, v{w1}, 1, v{comp}",
              f"v_mul_u32_u24 v{w1}, {HTS}, v{w1}", f"v_and_b32 v{w2}, 3, v{t3}", f"v_lshlrev_b32 v{w2}, 2, v{w2}", f"v_add_u32 v{w2}, v{w2}, v{ii}",
              f"v_lshl_add_u32 v{w2}, v{rh_}, 4, v{w2}", f"v_lshl_add_u32 v{RA+it}, v{w2}, 3, v{w1}",
              f"v_add_u32 v{u8}, s{sT1}, v{u8}", f"v_lshrrev_b32 v{w1}, 2, v{u8}", f"v_mad_u32_u24 v{w1}, v{comp}, 20, v{w1}",
              f"v_add_u32 v{rh_}, s{sT3}, v{rh_}", f"v_lshl_add_u32 v{rh_}, v{rh_}, 2, v{ii}", f"v_mul_u32_u24 v{rh_}, 88, v{rh_}",
              f"v_add_u32 v{w1}, v{w1}, v{rh_}", f"v_lshlrev_b32 v{w1}, 10, v{w1}", f"v_and_b32 v{u8}, 3, v{u8}",
              f"v_lshl_add_u32 v{u8}, v{u8}, 4, v{t3}", f"v_lshl_add_u32 v{GA+it}, v{u8}, 4, v{w1}"]
    wQ += [f"s_mul_i32 s{sT0}, s{sCG}, {16*640}", f"s_add_u32 s{sT0}, s{sT0}, {WS_S}",
           f"v_mul_u32_u24 v{pa[0]}, 640, v{vSig}", f"v_lshl_add_u32 v{pa[0]}, v{vAs}, 1, v{pa[0]}", f"v_add_u32 v{pa[0]}, s{sT0}, v{pa[0]}",
           f"v_add_u32 v{pa[1]}, {8*640}, v{pa[0]}", f"v_lshlrev_b32 v{t0}, 1, v{vSig}", f"v_add_u32 v{t0}, s{sCH}, v{t0}",
           f"v_mul_u32_u24 v{pa[2]}, 640, v{t0}", f"v_lshl_add_u32 v{pa[2]}, v{vC}, 1, v{pa[2]}", f"v_add_u32 v{pa[2]}, s{sT0}, v{pa[2]}",
           f"v_add_u32 v{pa[2]}, {64*8}, v{pa[2]}", f"v_mov_b32 v{t4}, 0x7f000000", f"v_add_u32 v{t1}, 8, v{vSig}"]
    for (p_, src) in ((pa[0], vSig), (pa[1], t1), (pa[2], t0)):
        wQ += [[f"v_cmp_le_u32 vcc, s{sRB}, v{src}", "s_nop 1", f"v_cndmask_b32 v{p_}, v{p_}, v{t4}, vcc"]]
    S1 = stage_x(BUF) + stage_g(BUF) + stage_u(BUF) + stage_b(BUF)
    weave(a, wQ, S1[:4], start=0)
    stp(a, "S1a issued")
    a("s_waitcnt vmcnt(4)")
    stp(a, "S0 landed")
    def cpow_s(dr, di, A, B, n, tm, sgn):
        o = []
        if n is None:
            o += [f"v_exp_f32 v{tm}, v{A}", f"v_rndne_f32 v{dr}, v{B}", f"v_sub_f32 v{tm+1}, v{B}, v{dr}"]
        else:
            o += [f"v_mul_f32 v{tm}, {n}, v{A}", f"v_mul_f32 v{tm+1}, {n}, v{B}", f"v_exp_f32 v{tm}, v{tm}",
                  f"v_rndne_f32 v{dr}, v{tm+1}", f"v_sub_f32 v{tm+1}, v{tm+1}, v{dr}"]
        o += [f"v_cos_f32 v{dr}, v{tm+1}", f"v_sin_f32 v{di}, v{tm+1}"]
        if sgn is not None:
            o += [f"v_mul_f32 v{dr}, v{tm}, v{dr}", f"v_mul_f32 v{tm}, v{sgn}, v{tm}", f"v_mul_f32 v{di}, v{tm}, v{di}"]
        else:
            o += [f"v_mul_f32 v{dr}, v{tm}, v{dr}", f"v_mul_f32 v{di}, v{tm}, v{di}"]
        return o
    Wk = []
    for k in range(2):
        Wk += [f"ds_read_b64_tr_b16 v[{PK+8+4*k}:{PK+9+4*k}], v{vPtr} offset:{32*k}", f"ds_read_b64_tr_b16 v[{PK+10+4*k}:{PK+11+4*k}], v{vPtr} offset:{32*k+1024}"]
    Wk += [srd(None, SM, P_WS, WS_W2 + W2_SIZE) + [f"s_cmp_lt_u32 s2, 200", f"s_cselect_b32 s{SM+2}, s{SM+2}, 0",
            f"buffer_store_dwordx4 v[{PK}:{PK+3}], v{vPCd}, s[{SM}:{SM+3}], 0 offen{SC}",
            f"buffer_store_dwordx4 v[{PK+4}:{PK+7}], v{vPCd+1}, s[{SM}:{SM+3}], 0 offen{SC}"]]
    vN = TP+12
    Wk += [f"v_cvt_f32_u32 v{vN}, v{vSig}", f"v_mov_b32 v{vN+1}, 0x42e00000", f"s_mov_b32 s{sT0}, 0xc1800000",
           f"v_fma_f32 v{vN}, v{vN}, s{sT0}, v{vN+1}", f"s_lshl_b32 s{sT0}, s{sCH}, 3", f"s_sub_u32 s{sT0}, 8, s{sT0}",
           f"v_cvt_f32_u32 v{vN+2}, s{sT0}", f"v_add_f32 v{vN+2}, v{vN+2}, v{vN}"]
    Wk += [["s_waitcnt lgkmcnt(0)", f"s_mov_b32 s{SM+2}, {WS_W2 + W2_SIZE}", f"s_cmp_lt_u32 s2, 240", f"s_cselect_b32 s{SM+2}, s{SM+2}, 0",
            f"buffer_store_dwordx4 v[{PK+8}:{PK+11}], v{vPWd}, s[{SM}:{SM+3}], 0 offen{SC}",
            f"buffer_store_dwordx4 v[{PK+12}:{PK+15}], v{vPWd+1}, s[{SM}:{SM+3}], 0 offen{SC}"]]
    Z = TP+16
    Wk += [f"v_mov_b32 v{Z+k}, 0" for k in range(4)]
    Wk += [f"v_lshlrev_b32 v{t0}, 5, v0", f"v_add_u32 v{t0}, {MISC}, v{t0}", f"ds_write_b128 v{t0}, v[{Z}:{Z+3}]", f"ds_write_b128 v{t0}, v[{Z}:{Z+3}] offset:16"]
    streams = []
    for T in range(3):
        tm = TP+20+2*T; dt = TP+26+T
        s_ = [f"v_lshlrev_b32 v{vLRE[T]}, 16, v{CL+T}", f"v_lshlrev_b32 v{vLIM[T]}, 16, v{CL+3+T}", f"v_lshlrev_b32 v{dt}, 16, v{CL+6+T}",
              f"v_mul_f32 v{dt}, {LOG2E:#x}, v{dt}", f"v_exp_f32 v{dt}, v{dt}",
              f"v_cvt_pk_bf16_f32 v{dt}, v{dt}, v{dt}", f"v_lshlrev_b32 v{dt}, 16, v{dt}",
              f"v_mul_f32 v{vA[T]}, v{dt}, v{vLRE[T]}", f"v_mul_f32 v{vBx[T]}, v{dt}, v{vLIM[T]}",
              f"v_mul_f32 v{vA[T]}, {LOG2E:#x}, v{vA[T]}", f"v_mul_f32 v{vBx[T]}, {INV2PI:#x}, v{vBx[T]}"]
        s_ += cpow_s(vLr[T], vLi[T], vA[T], vBx[T], None, tm, vSgn)
        s_ += cpow_s(vWSr[T], vWSi[T], vA[T], vBx[T], f"v{vN if T < 2 else vN+2}", tm, vSgn)
        streams.append(s_)
    Wk += [[x, y, z] for x, y, z in zip(*streams)]
    gacc = [TP+30, TP+31]
    Wk += [f"v_mov_b32 v{gacc[0]}, 0", f"v_mov_b32 v{gacc[1]}, 0"]
    for i in range(5):
        Wk += [f"v_lshlrev_b32 v{t0}, 16, v{GL+i}", f"v_and_b32 v{t1}, 0xffff0000, v{GL+i}"]
        for r in range(2):
            xr = GL+5+5*r+i
            Wk += [f"v_lshlrev_b32 v{t2}, 16, v{xr}", f"v_and_b32 v{t3}, 0xffff0000, v{xr}", f"v_mul_f32 v{t2}, v{t2}, v{t0}",
                   f"v_mul_f32 v{t3}, v{t3}, v{t1}", f"v_cvt_pk_bf16_f32 v{t2}, v{t2}, v{t3}", f"v_and_b32 v{t3}, 0xffff0000, v{t2}",
                   f"v_lshlrev_b32 v{t2}, 16, v{t2}", f"v_add_f32 v{gacc[r]}, v{gacc[r]}, v{t2}", f"v_add_f32 v{gacc[r]}, v{gacc[r]}, v{t3}"]
    for sh, rm in (("row_shr:1","0xf"),("row_shr:2","0xf"),("row_shr:4","0xf"),("row_shr:8","0xf"),("row_bcast:15","0xa"),("row_bcast:31","0xc")):
        bc = " bound_ctrl:0" if sh.startswith("row_shr") else ""
        Wk.append(["s_nop 0"] + [f"v_add_f32_dpp v{gacc[r]}, v{gacc[r]}, v{gacc[r]} {sh} row_mask:{rm} bank_mask:0xf{bc}" for r in range(2)])
    Wk.append(["s_nop 1", f"v_readlane_b32 s{sT0}, v{gacc[0]}, 63", f"v_readlane_b32 s{sT1}, v{gacc[1]}, 63", "s_nop 1",
               f"v_mov_b32 v{t2}, s{sT1}", f"v_mov_b32 v{t3}, s{sT0}", f"v_cmp_eq_u32 vcc, 0, v{vL}", "s_nop 1",
               f"v_cndmask_b32 v{t2}, v{t2}, v{t3}, vcc"])
    Wk += [f"v_cvt_pk_bf16_f32 v{t2}, v{t2}, v{t2}", f"v_lshlrev_b32 v{t2}, 16, v{t2}", f"v_mul_f32 v{t2}, 0xbfb8aa3b, v{t2}",
           [f"v_exp_f32 v{t2}, v{t2}", "s_nop 0", f"v_add_f32 v{t2}, 1.0, v{t2}", f"v_rcp_f32 v{t2}, v{t2}", "s_nop 0",
            f"v_cvt_pk_bf16_f32 v{t2}, v{t2}, v{t2}"], f"v_lshlrev_b32 v{t2}, 16, v{t2}",
           f"s_lshl_b32 s{sT0}, s94, 2", f"s_add_u32 s{sT0}, s{sT0}, {WS_G}", f"v_lshl_add_u32 v{t3}, v{vL}, 2, s{sT0}",
           [f"s_mov_b64 exec, 3", f"global_store_dword v{t3}, v{t2}, s[{P_WS}:{P_WS+1}]{SC}", f"s_mov_b64 exec, -1"]]
    weave(a, Wk, S1[4:], start=2)
    a(f"v_mov_b32 v{t0}, 0")
    a(f"global_load_dword v{vNon}, v{t0}, s[{P_DBG}:{P_DBG+1}]{SC}")
    Z2 = 52
    for k in range(4): a(f"v_mov_b32 v{Z2+k}, 0")
    a("s_nop 1")
    for k in range(8): a(f"v_mfma_f32_32x32x16_bf16 v[{ACC+16*k}:{ACC+16*k+15}], v[{Z2}:{Z2+3}], v[{Z2}:{Z2+3}], 0")
    a(f"v_mfma_f32_16x16x32_bf16 v[{ACC+128}:{ACC+131}], v[{Z2}:{Z2+3}], v[{Z2}:{Z2+3}], 0")
    a(f"v_mfma_f32_16x16x32_bf16 v[{ACC+132}:{ACC+135}], v[{Z2}:{Z2+3}], v[{Z2}:{Z2+3}], 0")
    for k in range(3): a(f"v_mfma_f32_32x32x16_bf16 a[{52+16*k}:{52+16*k+15}], v[{Z2}:{Z2+3}], v[{Z2}:{Z2+3}], 0")
    a(f"v_mfma_f32_16x16x32_bf16 a[100:103], v[{Z2}:{Z2+3}], v[{Z2}:{Z2+3}], 0")
    a(f"s_mov_b32 s{sKX}, {2*128}"); a(f"s_mov_b32 s{sKG}, {2*196608}")
    a(f"s_mov_b32 s{sKU}, {2*196608}"); a(f"s_mov_b32 s{sKB}, {2*128}")
    a(f"s_mov_b32 s{sF}, {2*BUF}")
    a(f"s_mov_b32 s{sCur}, 0"); a(f"s_mov_b32 s{sD}, {BUF}"); a(f"s_mov_b32 s{sC3}, 0")
    a(f"s_mov_b32 s{sStage}, -1")
    a(f"s_mov_b32 s{sBlk}, {(1<<0)|(1<<4):#x}")
    a("s_nop 7")
    a("s_waitcnt lgkmcnt(0)")
    a("s_barrier")
    stp(a, "prologue")

    def dma_first(sdb):
        g = [f"s_add_u32 m0, s{sdb}, s{sOX}"] + [dma(vDX+i, SX, sKX, 1024*i) for i in range(4)]
        g += [f"s_add_u32 m0, s{sdb}, s{sOG}"] + [dma(vDW+i, SG, sKG, 1024*i) for i in range(3)]
        g += [f"s_add_u32 s{sKX}, s{sKX}, 128", f"s_add_u32 s{sKG}, s{sKG}, 196608"]
        return g
    def dma_second(sdb):
        g = [f"s_add_u32 m0, s{sdb}, s{sOU}"] + [dma(vDW+i, SU, sKU, 1024*i) for i in range(3)]
        g += [f"s_add_u32 m0, s{sdb}, s{sOB}", dma(vDB, SB0, sKB, 0), dma(vDB+1, SB1, sKB, 1024)]
        g += [f"s_add_u32 m0, s{sdb}, s{sOB2}", dma(vDB+2, SB2, sKB, 0)]
        g += [f"s_add_u32 s{sKU}, s{sKU}, 196608", f"s_add_u32 s{sKB}, s{sKB}, 128"]
        return g
    def reads(ch, s, setb):
        vX = vX0 if s == 0 else vX1
        vB = vB0 if s == 0 else vB1
        X = [f"ds_read_b128 a[{setb+4*i}:{setb+4*i+3}], v{vX} offset:{RX+i*512}" for i in range(4)]
        def tr(n, region, k):
            vW = (vWa, vWb, vWc)[k]
            b = setb + 16 + 4*n
            o = region + 6144*s
            return [f"ds_read_b64_tr_b16 a[{b}:{b+1}], v{vW} offset:{o}", f"ds_read_b64_tr_b16 a[{b+2}:{b+3}], v{vW} offset:{o+768}"]
        def sb(n, off):
            b = setb + 16 + 4*n
            return [f"ds_read_b128 a[{b}:{b+3}], v{vB} offset:{RB+off}"]
        W = []
        for k in range(3):
            W += tr(2*k, RG, k); W += tr(2*k+1, RU, k)
        W += sb(6, 0) + sb(7, 1024) + sb(8, 4096 - 2048*ch)
        return X[:1] + W[:2] + X[1:] + W[2:]
    def mfmas(ch, setb):
        out = []
        for n in range(6):
            for i in range(4):
                d = acc(n, i)
                out.append(f"v_mfma_f32_16x16x32_bf16 v[{d}:{d+3}], a[{setb+16+4*n}:{setb+16+4*n+3}], a[{setb+4*i}:{setb+4*i+3}], v[{d}:{d+3}]")
        for n in (6, 7):
            for i in range(4):
                d = acc(n, i)
                out.append(f"v_mfma_f32_16x16x32_bf16 v[{d}:{d+3}], a[{setb+4*i}:{setb+4*i+3}], a[{setb+16+4*n}:{setb+16+4*n+3}], v[{d}:{d+3}]")
        for k in range(2):
            i = 2*ch + k
            d = S4 + 4*k
            out.append(f"v_mfma_f32_16x16x32_bf16 v[{d}:{d+3}], a[{setb+4*i}:{setb+4*i+3}], a[{setb+16+32}:{setb+16+35}], v[{d}:{d+3}]")
        return out
    def substep(ch, setb, rd, dmas, late):
        main = mfmas(ch, setb)
        gaps = [[] for _ in range(34)]
        for i, r in enumerate(rd): gaps[i].append(r)
        loads = [x for x in dmas if "buffer_load" in x]
        nl = len(loads)
        last = 0
        if nl:
            pos = [1 + int(i*30/nl) for i in range(nl)]
            li = 0; pend = []
            for x in dmas:
                if "buffer_load" in x:
                    p = pos[li]; pp = p - 1
                    for y in reversed(pend):
                        while len(gaps[pp]) >= 2: pp -= 1
                        assert pp >= 0
                        gaps[pp].append(y)
                    pend = []
                    while len(gaps[p]) >= 2: p += 1
                    gaps[p].append(x); last = p
                    li += 1
                else: pend.append(x)
            p = last + 1
            for y in pend:
                while len(gaps[p]) >= 2: p += 1
                gaps[p].append(y)
        g = 0
        for (e, ins) in late:
            g = max(g, e)
            while len(gaps[g]) + len(ins) > 2:
                g += 1
                assert g < 34, "late overflow"
            gaps[g].extend(ins)
        out = []
        for i in range(34):
            out.append(main[i]); out.extend(gaps[i])
        return out
    def wbase(g, j):
        if g < 7: return 104 + 20*g + 4*j
        if g < 11: return 20*(g-7) + 4*j
        return 80 + 4*j if j < 2 else 244 + 4*(j-2)
    SW2, SH = SX, SG
    sKW, sKW4, sKH = sKX, sKG, sKU
    def wload(g, j):
        b = wbase(g, j)
        if j < 4:
            o = f" offset:{1024*j}" if j else ""
            return f"buffer_load_dwordx4 a[{b}:{b+3}], v{vWp}, s[{SW2}:{SW2+3}], s{sKW} offen{o}{SCL}"
        return f"buffer_load_dwordx4 a[{b}:{b+3}], v{vWp}, s[{SW2}:{SW2+3}], s{sKW4} offen{SCL}"
    def wstep(g, inc=5120):
        return [wload(g, j) for j in range(5)] + [f"s_add_u32 s{sKW}, s{sKW}, {inc}", f"s_add_u32 s{sKW4}, s{sKW4}, {inc}"]

    A_, B_ = 0, 52
    a(f"s_cmp_eq_u32 s{sCH}, 1")
    a(f"s_cbranch_scc1 L_mid1")
    a(f"s_branch L_mid0")
    rot0 = lambda: [(24, [f"s_mov_b32 s{sF}, s{sCur}"]), (24, [f"s_add_u32 s{sCur}, s{sCur}, s{sD}"]),
                  (24, [f"s_add_u32 s{sC3}, s{sC3}, 1"]),
                  (24, [f"s_cmp_eq_u32 s{sC3}, 3", f"s_cselect_b32 s{sC3}, 0, s{sC3}"]),
                  (24, [f"s_cmp_eq_u32 s{sC3}, 2", f"s_cselect_b32 s{sD}, {3*BUF}, 0"]),
                  (24, [f"s_sub_u32 s{sD}, {BUF}, s{sD}"])]
    n0 = stp.n
    for ch in (0, 1):
        stp.n = n0
        a(".p2align 3")
        a.label(f"L_loop{ch}")
        late0 = [(19, [f"v_add_u32 v{r}, s{sD}, v{r}"]) for r in (vWa, vWb, vWc, vX1, vB1)] + rot0()
        for x in substep(ch, A_, reads(ch, 1, B_), dma_second(sDB), late0): a(x)
        a(f"s_waitcnt vmcnt(13) lgkmcnt(0)")
        a("s_barrier")
        a.label(f"L_mid{ch}")
        if LSTAMP: a("s_memtime s[38:39]")
        late1 = [(19, [f"v_add_u32 v{r}, s{sD}, v{r}"]) for r in (vX0, vB0)]
        late1 += [(20, [f"s_mov_b32 s{sDB}, s{sF}"])]
        late1 += [(32, [f"s_bitcmp1_b32 s{sBlk}, s{sStage}", f"s_cbranch_scc1 L_blk{ch}"])]
        body = substep(ch, B_, reads(ch, 0, A_), dma_first(sF), late1)
        for x in body:
            a(x)
            if x.startswith("s_cbranch_scc1 L_blk"): a.label(f"L_blkr{ch}")
        a(f"s_add_u32 s{sStage}, s{sStage}, 1")
        a(f"s_cmp_lt_u32 s{sStage}, 7")
        a("s_waitcnt lgkmcnt(0)")
        if LSTAMP:
            a(f"v_cmp_eq_u32 vcc, s{sStage}, v{vL}"); a(f"v_mov_b32 v98, s38"); a("s_nop 0"); a(f"v_cndmask_b32 v99, v99, v98, vcc")
        a(f"s_cbranch_scc1 L_loop{ch}")
        stp(a, "loop")
        lt = [(19, [f"v_add_u32 v{r}, {BUF}, v{r}"]) for r in (vWa, vWb, vWc, vX1, vB1)]
        lt += [(24, [x]) for x in srd(None, SW2, P_WS, W2_SIZE, add=WS_W2)[:0]]
        for x in substep(ch, A_, reads(ch, 1, B_), dma_second(sDB), lt): a(x)
        a(f"s_waitcnt vmcnt(13) lgkmcnt(0)")
        a("s_barrier")
        spin_init(a)
        a.label(f"L_pf{ch}")
        a(f"v_cmp_ne_u32 vcc, s{sNonce}, v{vPF}")
        a(f"v_cmp_ne_u32 s[{sEX}:{sEX+1}], s{sNonce}, v{vPF+1}")
        a(f"s_or_b64 vcc, vcc, s[{sEX}:{sEX+1}]")
        a(f"v_cmp_ne_u32 s[{sEX}:{sEX+1}], s{sNonce}, v{vPF+2}")
        a(f"s_or_b64 vcc, vcc, s[{sEX}:{sEX+1}]")
        a(f"v_cmp_ne_u32 s[{sEX}:{sEX+1}], s{sNonce}, v{vPF+3}")
        a(f"s_or_b64 vcc, vcc, s[{sEX}:{sEX+1}]")
        a(f"s_cmp_eq_u64 vcc, 0")
        a(f"s_cbranch_scc1 L_pfok{ch}")
        spin_guard(a, f"L_pfok{ch}")
        a(f"v_lshlrev_b32 v{t0}, 4, v{vL}")
        a(f"v_add_u32 v{t0}, {WS_PF}, v{t0}")
        a(f"global_load_dwordx4 v[{vPF}:{vPF+3}], v{t0}, s[{P_WS}:{P_WS+1}]{SC}")
        a("s_waitcnt vmcnt(0)")
        a(f"s_branch L_pf{ch}")
        a.label(f"L_pfok{ch}")
        srd(a, SW2, P_WS, W2_SIZE, add=WS_W2)
        a(f"s_mul_i32 s{sKW}, s{sCB}, 88")
        a(f"s_mul_i32 s{sT0}, s{sW}, 12")
        a(f"s_add_u32 s{sKW}, s{sKW}, s{sT0}")
        a(f"s_add_u32 s{sKW}, s{sKW}, 40")
        a(f"s_mul_i32 s{sKW}, s{sKW}, 5120")
        a(f"s_add_u32 s{sKW4}, s{sKW}, 4096")
        allw = []
        for g in range(7): allw += wstep(g)
        def take(n):
            out = []; c = 0
            while allw and (c < n or "buffer_load" not in allw[0]):
                x = allw.pop(0); out.append(x)
                if "buffer_load" in x: c += 1
            return out
        lt = [(19, [f"v_add_u32 v{r}, {(-2*BUF) & 0xffffffff:#x}, v{r}"]) for r in (vX0, vB0)]
        for x in substep(ch, B_, reads(ch, 0, A_), take(8), lt): a(x)
        a("s_waitcnt lgkmcnt(0)")
        lt = [(19, [f"v_add_u32 v{r}, {(-2*BUF) & 0xffffffff:#x}, v{r}"]) for r in (vWa, vWb, vWc, vX1, vB1)]
        for x in substep(ch, A_, reads(ch, 1, B_), take(8), lt): a(x)
        a(f"s_waitcnt vmcnt(16) lgkmcnt(0)")
        a("s_barrier")
        for x in substep(ch, B_, reads(ch, 0, A_), take(8), []): a(x)
        a("s_waitcnt lgkmcnt(0)")
        for x in substep(ch, A_, reads(ch, 1, B_), take(8), []): a(x)
        a("s_waitcnt lgkmcnt(0)")
        for x in substep(ch, B_, [], take(3), []): a(x)
        assert not allw
        a(f"s_branch L_epi")
        a.label(f"L_blk{ch}")
        a(f"s_cmp_eq_u32 s{sStage}, 0")
        a(f"s_cbranch_scc1 L_b0_{ch}")
        a(f"v_lshlrev_b32 v{t0}, 4, v{vL}")
        a(f"v_add_u32 v{t0}, {WS_PF}, v{t0}")
        a(f"global_load_dwordx4 v[{vPF}:{vPF+3}], v{t0}, s[{P_WS}:{P_WS+1}]{SC}")
        a(f"s_branch L_blkr{ch}")
        a.label(f"L_b0_{ch}")
        spin_init(a)
        a.label(f"L_np{ch}")
        a(f"v_readfirstlane_b32 s{sNonce}, v{vNon}")
        a(f"s_cmp_lg_u32 s{sNonce}, 0")
        a(f"s_cbranch_scc1 L_nok{ch}")
        spin_guard(a, f"L_nok{ch}")
        a(f"v_mov_b32 v{t0}, 0")
        a(f"global_load_dword v{vNon}, v{t0}, s[{P_DBG}:{P_DBG+1}]{SC}")
        a("s_waitcnt vmcnt(0)")
        a(f"s_branch L_np{ch}")
        a.label(f"L_nok{ch}")
        a(f"s_cmp_lg_u32 s{sW}, 0")
        a(f"s_cbranch_scc1 L_blkr{ch}")
        a(f"s_lshl_b32 s{sT1}, s2, 2")
        a(f"s_add_u32 s{sT1}, s{sT1}, {WS_PF}")
        a(f"v_mov_b32 v{t0}, s{sT1}")
        a(f"v_mov_b32 v{t1}, s{sNonce}")
        a(f"s_mov_b64 exec, 1")
        a(f"global_store_dword v{t0}, v{t1}, s[{P_WS}:{P_WS+1}]{SC}")
        a(f"s_mov_b64 exec, -1")
        a(f"s_branch L_blkr{ch}")

    a.label("L_epi")
    stp(a, "tail")
    if LSTAMP:
        a(f"s_lshl_b32 s{sT0}, s2, 2")
        a(f"s_add_u32 s{sT0}, s{sT0}, s{sW}")
        a(f"s_lshl_b32 s{sT0}, s{sT0}, 8")
        a(f"s_add_u32 s{sT0}, s{sT0}, {WS_STAMP + 0x40000}")
        a(f"v_lshl_add_u32 v98, v{vL}, 2, s{sT0}")
        a(f"global_store_dword v98, v99, s[{P_WS}:{P_WS+1}]")
    a("s_nop 7")
    U = [SA, SBt, S4]; NS = [16, 16, 8]
    eA = [56, 57, 58]; eB = [59, 60, 61]
    cur = [U[T] for T in range(3)]
    for k in range(1, 16):
        Ts = [T for T in range(3) if k < NS[T]]
        dst = eA if (k & 1) else eB
        for T in Ts: a(f"v_fma_f32 v{dst[T]}, v{vLr[T]}, v{cur[T]}, v{U[T]+k}")
        for T in Ts:
            a(f"v_fmac_f32_dpp v{dst[T]}, v{cur[T]}, v{vLi[T]} {DPPSW}")
            cur[T] = dst[T]
    ew = [62, 63, 64]; ex = [65, 66, 67]
    a(f"s_mul_i32 s{sT0}, s{sW}, 320")
    a(f"s_add_u32 s{sT0}, s{sT0}, {MISC}")
    for T in range(3): a(f"v_mul_f32 v{ew[T]}, v{vWSr[T]}, v{cur[T]}")
    for T in range(3): a(f"v_fmac_f32_dpp v{ew[T]}, v{cur[T]}, v{vWSi[T]} {DPPSW}")
    a(f"v_add_u32 v{t0}, s{sT0}, v{vC}")
    a(f"ds_write_b32 v{vAe}, v{cur[0]} offset:{EF0}")
    a(f"ds_write_b32 v{vAe}, v{cur[1]} offset:{EF0+64}")
    a(f"ds_write_b32 v{vAe4}, v{cur[2]} offset:{E40}")
    def qreduce(vals, tmps):
        for v, t in zip(vals, tmps): a(f"v_mov_b32 v{t}, v{v}")
        a("s_nop 0")
        for v, t in zip(vals, tmps): a(f"v_permlane16_swap_b32 v{v}, v{t}")
        a("s_nop 0")
        for v, t in zip(vals, tmps): a(f"v_add_f32 v{v}, v{v}, v{t}")
        for v, t in zip(vals, tmps): a(f"v_mov_b32 v{t}, v{v}")
        a("s_nop 0")
        for v, t in zip(vals, tmps): a(f"v_permlane32_swap_b32 v{v}, v{t}")
        a("s_nop 0")
        for v, t in zip(vals, tmps): a(f"v_add_f32 v{v}, v{v}, v{t}")
    qreduce(ew, ex)
    a(f"ds_write_b32 v{vRw}, v{ew[0]} offset:{SWB}")
    a(f"ds_write_b32 v{vRw}, v{ew[1]} offset:{SWB+64}")
    a(f"ds_write_b32 v{t0}, v{ew[2]} offset:{SWB+256}")
    a("s_waitcnt lgkmcnt(0)")
    a("s_barrier")
    stp(a, "passA")
    a(f"s_cmp_lg_u32 s{sW}, 0")
    a(f"s_cbranch_scc1 L_nopub")
    PB = 68
    a(f"v_lshlrev_b32 v{t0}, 3, v{vL}")
    a(f"v_add_u32 v{t0}, {MISC}, v{t0}")
    for w in range(4): a(f"ds_read_b64 v[{PB+2*w}:{PB+2*w+1}], v{t0} offset:{SWB+320*w}")
    a(f"s_lshl_b32 s{sT0}, s{sCG}, 4")
    a(f"s_add_u32 s{sT0}, s{sT0}, s{sRB}")
    a(f"s_mul_i32 s{sT0}, s{sT0}, 640")
    a(f"s_add_u32 s{sT0}, s{sT0}, {WS_S}")
    a(f"v_lshlrev_b32 v{t0}, 4, v{vL}")
    a(f"v_add_u32 v{t0}, s{sT0}, v{t0}")
    a(f"v_mov_b32 v{PB+9}, s{sNonce}")
    a(f"v_mov_b32 v{PB+11}, s{sNonce}")
    a(f"v_cmp_gt_u32 vcc, 40, v{vL}")
    a("s_waitcnt lgkmcnt(0)")
    a(f"v_pk_add_f32 v[{PB}:{PB+1}], v[{PB}:{PB+1}], v[{PB+2}:{PB+3}]")
    a(f"v_pk_add_f32 v[{PB+4}:{PB+5}], v[{PB+4}:{PB+5}], v[{PB+6}:{PB+7}]")
    a(f"v_pk_add_f32 v[{PB}:{PB+1}], v[{PB}:{PB+1}], v[{PB+4}:{PB+5}]")
    a(f"s_and_saveexec_b64 s[{sEX}:{sEX+1}], vcc")
    a(f"v_mov_b32 v{PB+8}, v{PB}")
    a(f"v_mov_b32 v{PB+10}, v{PB+1}")
    a(f"global_store_dwordx4 v{t0}, v[{PB+8}:{PB+11}], s[{P_WS}:{P_WS+1}]{SC}")
    a(f"s_mov_b64 exec, s[{sEX}:{sEX+1}]")
    a.label("L_nopub")
    stp(a, "pub")
    vHo, vHo2 = t3, t4
    a(f"s_lshl_b32 s{sT0}, s{sRB}, 1")
    a(f"s_add_u32 s{sT0}, s{sT0}, s{sRH}")
    a(f"s_mul_i32 s{sT0}, s{sT0}, {4*88}")
    a(f"s_mul_i32 s{sT1}, s{sCG}, 3")
    a(f"s_add_u32 s{sT0}, s{sT0}, s{sT1}")
    a(f"s_add_u32 s{sT0}, s{sT0}, 40")
    a(f"s_lshl_b32 s{sT1}, s{sCH}, 1")
    a(f"s_add_u32 s{sT1}, s{sT1}, s{sT0}")
    a(f"s_lshl_b32 s{sT1}, s{sT1}, 10")
    a(f"s_add_u32 s{sT0}, s{sT0}, 1")
    a(f"s_lshl_b32 s{sT0}, s{sT0}, 10")
    a(f"s_lshl_b32 s{sT3}, s{sCH}, 3")
    a(f"s_add_u32 s{sT0}, s{sT0}, s{sT3}")
    a(f"v_add_u32 v{vHo}, s{sT1}, v{vWp}")
    a(f"v_add_u32 v{vHo2}, s{sT0}, v{vWp}")
    for i in range(4):
        G0, U0, G1, U1, G2, U2 = [acc(n, i) for n in range(6)]
        for (G, Uu) in ((G0, U0), (G1, U1), (G2, U2)):
            a(f"v_pk_mul_f32 v[{G}:{G+1}], v[{G}:{G+1}], v[{Uu}:{Uu+1}]")
            a(f"v_pk_mul_f32 v[{G+2}:{G+3}], v[{G+2}:{G+3}], v[{Uu+2}:{Uu+3}]")
        a(f"v_cvt_pk_bf16_f32 v{U0}, v{G0}, v{G0+1}")
        a(f"v_cvt_pk_bf16_f32 v{U0+1}, v{G0+2}, v{G0+3}")
        a(f"v_cvt_pk_bf16_f32 v{U0+2}, v{G1}, v{G1+1}")
        a(f"v_cvt_pk_bf16_f32 v{U0+3}, v{G1+2}, v{G1+3}")
        a(f"v_cvt_pk_bf16_f32 v{U2}, v{G2}, v{G2+1}")
        a(f"v_cvt_pk_bf16_f32 v{U2+1}, v{G2+2}, v{G2+3}")
        a(f"v_add_u32 v{G0}, {i*88*1024}, v{vHo}")
        a(f"v_add_u32 v{G1}, {i*88*1024}, v{vHo2}")
        a(f"global_store_dwordx4 v{G0}, v[{U0}:{U0+3}], s[{P_WS}:{P_WS+1}]{SC}")
        a(f"global_store_dwordx2 v{G1}, v[{U2}:{U2+1}], s[{P_WS}:{P_WS+1}]{SC}")
    stp(a, "glu")
    pre = []
    for g in range(7, 12):
        ws_ = wstep(g)
        pre += [[x] for x in ws_[:4]] + [[ws_[4], ws_[5], ws_[6]]]
    X = ACC
    vMr = [X, X+1, X+2]; vMi = [X+3, X+4, X+5]
    vC2r = [X+6, X+7, X+8]; vC2i = [X+9, X+10, X+11]
    vHr = [X+12, X+13, X+14]; vHi = [X+15, X+16, X+17]
    vW0r = [X+18, X+19, X+20]; vW0i = [X+21, X+22, X+23]
    vW1r = [X+24, X+25]; vW1i = [X+26, X+27]
    vLi2 = [X+28, X+29, X+30]
    nOff, nW0, nW1, nOff4, nW4 = X+32, X+33, X+34, X+35, X+36
    vm0, vm1, vm4 = X+37, X+38, X+39
    W = []
    W += [f"v_cvt_f32_u32 v{nOff}, v{vSig}", f"v_mul_f32 v{nOff}, 0x41800000, v{nOff}", f"s_lshl_b32 s{sT0}, s{sCH}, 3",
          f"v_cvt_f32_u32 v{nOff4}, s{sT0}", f"v_add_f32 v{nOff4}, v{nOff4}, v{nOff}",
          f"s_sub_u32 s{sT0}, s{sRB}, 1", f"v_sub_u32 v{t0}, s{sT0}, v{vSig}", f"v_subrev_u32 v{t1}, 8, v{t0}",
          f"v_sub_u32 v{t2}, v{t0}, v{vSig}", f"v_subrev_u32 v{t2}, s{sCH}, v{t2}"]
    for (n_, mreg, src) in ((nW0, vm0, t0), (nW1, vm1, t1), (nW4, vm4, t2)):
        W += [[f"v_cmp_le_i32 vcc, 0, v{src}", f"v_max_i32 v{n_}, 0, v{src}", f"v_cvt_f32_i32 v{n_}, v{n_}",
               f"v_cndmask_b32 v{mreg}, 0, 1.0, vcc"], f"v_mul_f32 v{n_}, 0x43000000, v{n_}"]
    W += [f"v_mov_b32 v{X+40}, 0x41800000", f"v_mov_b32 v{X+41}, 0x41000000"]
    streams = []
    for T in range(3):
        tm = X+44+6*T
        pr, pi, cr, ci = tm+2, tm+3, tm+4, tm+5
        s_ = cpow_s(vMr[T], vMi[T], vA[T], vBx[T], f"v{X+40 if T < 2 else X+41}", tm, vSgn)
        s_ += [f"v_mul_f32 v{pi}, v{vSgn}, v{vLi[T]}", f"v_add_f32 v{pr}, -1.0, v{vLr[T]}",
               f"v_mul_f32 v{tm}, v{vLRE[T]}, v{vLRE[T]}", f"v_fmac_f32 v{tm}, v{vLIM[T]}, v{vLIM[T]}", f"v_rcp_f32 v{tm}, v{tm}",
               f"v_mul_f32 v{cr}, v{pr}, v{vLRE[T]}", f"v_fmac_f32 v{cr}, v{pi}, v{vLIM[T]}",
               f"v_mul_f32 v{ci}, v{pi}, v{vLRE[T]}", f"v_fma_f32 v{ci}, -v{pr}, v{vLIM[T]}, v{ci}",
               f"v_add_f32 v{tm}, v{tm}, v{tm}", f"v_mul_f32 v{cr}, v{tm}, v{cr}", f"v_mul_f32 v{ci}, v{tm}, v{ci}",
               f"v_mul_f32_e64 v{vC2r[T]}, -v{vSgn}, v{cr}", f"v_sub_f32 v{vC2i[T]}, 0, v{ci}", f"v_sub_f32 v{vLi2[T]}, 0, v{vLi[T]}"]
        s_ += cpow_s(pr, pi, vA[T], vBx[T], f"v{nOff if T < 2 else nOff4}", tm, None)
        s_ += [f"v_mul_f32 v{vHr[T]}, v{cr}, v{pr}", f"v_fma_f32 v{vHr[T]}, -v{ci}, v{pi}, v{vHr[T]}",
               f"v_mul_f32 v{vHi[T]}, v{cr}, v{pi}", f"v_fmac_f32 v{vHi[T]}, v{ci}, v{pr}",
               f"v_mul_f32_e64 v{vHr[T]}, -v{vSgn}, v{vHr[T]}", f"v_sub_f32 v{vHi[T]}, 0, v{vHi[T]}"]
        s_ += cpow_s(vW0r[T], vW0i[T], vA[T], vBx[T], f"v{nW0 if T < 2 else nW4}", tm, vSgn)
        mk = vm0 if T < 2 else vm4
        s_ += [f"v_mul_f32 v{vW0r[T]}, v{mk}, v{vW0r[T]}", f"v_mul_f32 v{vW0i[T]}, v{mk}, v{vW0i[T]}"]
        if T < 2:
            s_ += cpow_s(vW1r[T], vW1i[T], vA[T], vBx[T], f"v{nW1}", tm, vSgn)
            s_ += [f"v_mul_f32 v{vW1r[T]}, v{vm1}, v{vW1r[T]}", f"v_mul_f32 v{vW1i[T]}, v{vm1}, v{vW1i[T]}"]
        streams.append(s_)
    W += rr(*streams)
    NPRE1 = 12
    weave(a, W, pre[:NPRE1], start=0)
    stp(a, "consts2")
    a(f"s_waitcnt vmcnt({NPRE1})")
    vFo = 18
    a(f"s_lshl_b32 s{sT0}, s{sRB}, 1")
    a(f"s_add_u32 s{sT0}, s{sT0}, s{sRH}")
    a(f"s_lshl_b32 s{sT0}, s{sT0}, 4")
    a(f"s_add_u32 s{sT0}, s{sT0}, s{sCG}")
    a(f"s_lshl_b32 s{sT0}, s{sT0}, 1")
    a(f"s_add_u32 s{sT0}, s{sT0}, s{sCH}")
    a(f"s_lshl_b32 s{sT0}, s{sT0}, 2")
    a(f"s_add_u32 s{sT0}, s{sT0}, {WS_FB}")
    a(f"v_mov_b32 v{vFo}, s{sT0}")
    a(f"v_mov_b32 v{t0}, s{sNonce}")
    a(f"s_mov_b64 exec, 1")
    a(f"global_store_dword v{vFo}, v{t0}, s[{P_WS}:{P_WS+1}]{SC}")
    a(f"s_mov_b64 exec, -1")
    stp(a, "flagB")
    PE = X+64
    W = [f"v_subrev_u32 v{t0}, 256, v{vAe}"]
    for T in range(2):
        for k in range(7): W.append(f"ds_read_b32 v{PE+7*T+k}, v{t0} offset:{EF0 + 64*T - 256*k}")
    W.append(f"v_subrev_u32 v{t1}, 64, v{vAe4}")
    for k in range(15): W.append(f"ds_read_b32 v{PE+14+k}, v{t1} offset:{E40 - 64*k}")
    tu = [56, 57, 58]
    for k in range(16):
        Ts = [T for T in range(3) if k < NS[T]]
        for T in Ts: W.append(f"v_mul_f32 v{tu[T]}, v{vC2r[T]}, v{U[T]+k}")
        for T in Ts: W.append(f"v_fmac_f32_dpp v{tu[T]}, v{U[T]+k}, v{vC2i[T]} {DPPSW}")
        for T in Ts: W.append(f"v_mov_b32 v{U[T]+k}, v{tu[T]}")
    W.append("s_waitcnt lgkmcnt(0)")
    Pc = [PE+6, PE+13, PE+14+14]
    Pt = [[59, 60], [61, 62], [63, 64]]
    nch = [7, 7, 15]; base = [PE, PE+7, PE+14]
    for stepk in range(1, 15):
        Ts = [T for T in range(3) if stepk < nch[T]]
        dst = {T: Pt[T][stepk & 1] for T in Ts}
        grp = []
        for T in Ts: grp.append(f"v_fma_f32 v{dst[T]}, v{vMr[T]}, v{Pc[T]}, v{base[T] + nch[T]-1-stepk}")
        if len(Ts) == 1: grp.append("s_nop 0")
        for T in Ts:
            grp.append(f"v_fmac_f32_dpp v{dst[T]}, v{Pc[T]}, v{vMi[T]} {DPPSW}")
            Pc[T] = dst[T]
        if len(Ts) == 1: grp.append("s_nop 0")
        W += grp
    W.append("s_nop 1")
    for T in range(3): W.append(f"v_mul_f32 v{Ps[T]}, v{vC2r[T]}, v{Pc[T]}")
    for T in range(3): W.append(f"v_fmac_f32_dpp v{Ps[T]}, v{Pc[T]}, v{vC2i[T]} {DPPSW}")
    weave(a, W, pre[NPRE1:], start=0)
    stp(a, "prefix")
    Hp = [65, 66, 67]; hx = [56, 57, 58]; bad = 68
    for T in range(3): a(f"v_mov_b32 v{Hp[T]}, 0")
    a(f"s_cmp_eq_u32 s{sRB}, 0")
    a(f"s_cbranch_scc1 L_nopoll")
    srd(a, SM, P_WS, WS_S + 256*640)
    R = X+64
    spin_init(a)
    a.label("L_poll")
    spin_guard(a, "L_pollx")
    a(f"buffer_load_dwordx2 v[{R}:{R+1}], v{pa[0]}, s[{SM}:{SM+3}], 0 offen{SC}")
    a(f"buffer_load_dwordx2 v[{R+2}:{R+3}], v{pa[0]}, s[{SM}:{SM+3}], 0 offen offset:128{SC}")
    a(f"buffer_load_dwordx2 v[{R+4}:{R+5}], v{pa[1]}, s[{SM}:{SM+3}], 0 offen{SC}")
    a(f"buffer_load_dwordx2 v[{R+6}:{R+7}], v{pa[1]}, s[{SM}:{SM+3}], 0 offen offset:128{SC}")
    a(f"buffer_load_dwordx2 v[{R+8}:{R+9}], v{pa[2]}, s[{SM}:{SM+3}], 0 offen{SC}")
    a("s_waitcnt vmcnt(0)")
    a(f"v_mov_b32 v{bad}, 0")
    for (ri, mreg) in ((R+1, vm0), (R+3, vm0), (R+5, vm1), (R+7, vm1), (R+9, vm4)):
        a(f"v_cmp_ne_u32 vcc, s{sNonce}, v{ri}")
        a("s_nop 1")
        a(f"v_cndmask_b32 v{t0}, 0, v{mreg}, vcc")
        a(f"v_or_b32 v{bad}, v{bad}, v{t0}")
    a(f"v_cmp_ne_u32 vcc, 0, v{bad}")
    a("s_nop 4")
    a("s_cbranch_vccnz L_poll")
    a.label("L_pollx")
    for (T, ri) in ((0, R), (1, R+2), (2, R+8)): a(f"v_mul_f32 v{Hp[T]}, v{vW0r[T]}, v{ri}")
    for (T, ri) in ((0, R), (1, R+2), (2, R+8)): a(f"v_fmac_f32_dpp v{Hp[T]}, v{ri}, v{vW0i[T]} {DPPSW}")
    for (T, ri) in ((0, R+4), (1, R+6)): a(f"v_fmac_f32 v{Hp[T]}, v{vW1r[T]}, v{ri}")
    for (T, ri) in ((0, R+4), (1, R+6)): a(f"v_fmac_f32_dpp v{Hp[T]}, v{ri}, v{vW1i[T]} {DPPSW}")
    qreduce(Hp, hx)
    a.label("L_nopoll")
    a(f"s_mul_i32 s{sT0}, s{sW}, 320")
    a(f"s_add_u32 s{sT0}, s{sT0}, {MISC}")
    a(f"v_add_u32 v{t0}, s{sT0}, v{vC}")
    a(f"ds_write_b32 v{vRw}, v{Hp[0]} offset:{RWB}")
    a(f"ds_write_b32 v{vRw}, v{Hp[1]} offset:{RWB+64}")
    a(f"ds_write_b32 v{t0}, v{Hp[2]} offset:{RWB+256}")
    stp(a, "poll")
    vFl = 24
    a(f"s_lshl_b32 s{sT0}, s{sRB2}, 7")
    a(f"s_lshl_b32 s{sT1}, s{sW}, 5")
    a(f"s_add_u32 s{sT0}, s{sT0}, s{sT1}")
    a(f"v_and_b32 v{vFl}, 7, v{vL}")
    a(f"v_lshlrev_b32 v{vFl}, 2, v{vFl}")
    a(f"v_add_u32 v{vFl}, s{sT0}, v{vFl}")
    a(f"v_add_u32 v{vFl}, {WS_FB}, v{vFl}")
    srd(a, SH, P_WS, WS_G)
    spin_init(a)
    a.label("L_fbpoll")
    spin_guard(a, "L_fbx")
    a(f"global_load_dword v{t1}, v{vFl}, s[{P_WS}:{P_WS+1}]{SC}")
    a("s_waitcnt vmcnt(0)")
    a(f"v_cmp_ne_u32 vcc, s{sNonce}, v{t1}")
    a("s_nop 4")
    a("s_cbranch_vccnz L_fbpoll")
    a.label("L_fbx")
    stp(a, "flagB seen")
    slots = [52, 68, 84, "a88", 100]
    def hreg(slot, i):
        sl = slots[slot]
        if isinstance(sl, str): return f"a[{88+4*i}:{91+4*i}]"
        return f"v[{sl+4*i}:{sl+4*i+3}]"
    def hloads(g):
        return [f"buffer_load_dwordx4 {hreg(g % 5, i)}, v{vH+i}, s[{SH}:{SH+3}], s{sKH} offen{SCL}" for i in range(4)]
    a(f"s_mul_i32 s{sKH}, s{sW}, 12")
    a(f"s_add_u32 s{sKH}, s{sKH}, 40")
    a(f"s_lshl_b32 s{sKH}, s{sKH}, 10")
    a("s_waitcnt lgkmcnt(0)")
    for g in range(4):
        for x in hloads(g): a(x)
        a(f"s_add_u32 s{sKH}, s{sKH}, 1024")
    a("s_barrier")
    Hw = [X+48, X+49, X+50]
    a(f"s_mul_i32 s{sT0}, s{sCH}, 320")
    a(f"s_add_u32 s{sT0}, s{sT0}, {MISC}")
    a(f"v_add_u32 v{t0}, s{sT0}, v{vAs}")
    hr = [X+40, X+41, X+42, X+43, X+44, X+45, X+46, X+47]
    a(f"ds_read_b32 v{hr[0]}, v{t0} offset:{RWB}")
    a(f"ds_read_b32 v{hr[1]}, v{t0} offset:{RWB+640}")
    a(f"ds_read_b32 v{hr[2]}, v{t0} offset:{RWB+64}")
    a(f"ds_read_b32 v{hr[3]}, v{t0} offset:{RWB+704}")
    for w in range(4): a(f"ds_read_b32 v{hr[4+w]}, v{vCm} offset:{RWB+256+320*w}")
    a("s_waitcnt lgkmcnt(0)")
    a(f"v_add_f32 v{Hw[0]}, v{hr[0]}, v{hr[1]}")
    a(f"v_add_f32 v{Hw[1]}, v{hr[2]}, v{hr[3]}")
    a(f"v_add_f32 v{hr[4]}, v{hr[4]}, v{hr[5]}")
    a(f"v_add_f32 v{hr[6]}, v{hr[6]}, v{hr[7]}")
    a(f"v_add_f32 v{Hw[2]}, v{hr[4]}, v{hr[6]}")
    for T in range(3): a(f"v_fmac_f32 v{Ps[T]}, v{vHr[T]}, v{Hw[T]}")
    a("s_nop 0")
    for T in range(3): a(f"v_fmac_f32_dpp v{Ps[T]}, v{Hw[T]}, v{vHi[T]} {DPPSW}")
    cur = list(Ps)
    a("s_nop 0")
    for k in range(16):
        Ts = [T for T in range(3) if k < NS[T]]
        for T in Ts: a(f"v_fmac_f32 v{U[T]+k}, v{vLr[T]}, v{cur[T]}")
        for T in Ts:
            a(f"v_fmac_f32_dpp v{U[T]+k}, v{cur[T]}, v{vLi2[T]} {DPPSW}")
            cur[T] = U[T]+k
    stp(a, "passB")
    for T in range(3):
        for k in range(NS[T]//2):
            a(f"v_cvt_pk_bf16_f32 v{X + 16*T + k}, v{U[T]+2*k}, v{U[T]+2*k+1}")
    a(f"v_and_b32 v{t0}, 15, v{vL}")
    a(f"s_lshl_b32 s{sT0}, s{sCH}, 5")
    a(f"v_add_u32 v{t1}, s{sT0}, v{t0}")
    a(f"v_mul_u32_u24 v{t1}, {HTS}, v{t1}")
    a(f"v_lshl_add_u32 v{t1}, v{vSig}, 5, v{t1}")
    a(f"ds_write_b128 v{t1}, v[{X}:{X+3}]")
    a(f"ds_write_b128 v{t1}, v[{X+4}:{X+7}] offset:16")
    a(f"ds_write_b128 v{t1}, v[{X+16}:{X+19}] offset:{16*HTS}")
    a(f"ds_write_b128 v{t1}, v[{X+20}:{X+23}] offset:{16*HTS+16}")
    a(f"v_add_u32 v{t0}, 64, v{t0}")
    a(f"v_mul_u32_u24 v{t0}, {HTS}, v{t0}")
    a(f"v_lshl_add_u32 v{t0}, v{vSig}, 5, v{t0}")
    a(f"s_lshl_b32 s{sT0}, s{sCH}, 4")
    a(f"v_add_u32 v{t0}, s{sT0}, v{t0}")
    a(f"ds_write_b128 v{t0}, v[{X+32}:{X+35}]")
    a("s_waitcnt lgkmcnt(0)")
    a("s_barrier")
    DT = X+64
    for it in range(5):
        a(f"ds_read_b64_tr_b16 v[{DT+4*it}:{DT+4*it+1}], v{RA+it}")
        a(f"ds_read_b64_tr_b16 v[{DT+4*it+2}:{DT+4*it+3}], v{RA+it} offset:{8*HTS}")
    for it in range(5):
        a(f"s_waitcnt lgkmcnt({2*(4-it)})")
        a(f"global_store_dwordx4 v{GA+it}, v[{DT+4*it}:{DT+4*it+3}], s[{P_WS}:{P_WS+1}]{SC}")
    stp(a, "hA stored")
    accB = lambda j, i: 120 + (j*4+i)*4
    def accA(j, i):
        t = j*4+i
        return 200 + 4*t if t < 14 else 26 + 4*(t-14)
    def wreg(g, j): b = wbase(g, j); return f"a[{b}:{b+3}]"
    fifo = [("h", g) for g in range(4) for _ in range(4)] + [("st", 0)]*5
    def issue(x, tag):
        a(x); fifo.append(tag)
    def wait_for(pred):
        idx = [i for i, tg in enumerate(fifo) if pred(tg)]
        if not idx: return
        n = len(fifo) - 1 - max(idx)
        assert n <= 63, n
        a(f"s_waitcnt vmcnt({n})")
        del fifo[:max(idx)+1]
    for x in hloads(4): issue(x, ("h", 4))
    a(f"s_add_u32 s{sKH}, s{sKH}, 1024")
    a(f"s_mul_i32 s{sKW}, s{sCB}, 88")
    a(f"s_mul_i32 s{sT0}, s{sW}, 5")
    a(f"s_add_u32 s{sKW}, s{sKW}, s{sT0}")
    a(f"s_mul_i32 s{sKW}, s{sKW}, 5120")
    a(f"s_add_u32 s{sKW4}, s{sKW}, 4096")
    LA, OA = 2, 7
    vG = [12, 14, 16, 22]
    vLW = 25
    XR, GR, DR = 84, 94, 100
    RS = 336; RED = 64*RS
    fill = []
    for i in range(5):
        w1, w2, w3 = t0, t1, t3
        fill += [f"v_add_u32 v{w1}, {256*i}, v0", f"v_mul_u32_u24 v{w2}, 3277, v{w1}", f"v_lshrrev_b32 v{w2}, 16, v{w2}",
                 f"v_mul_u32_u24 v{w3}, 20, v{w2}", f"v_sub_u32 v{w3}, v{w1}, v{w3}", f"v_mul_u32_u24 v{LA+i}, {RS}, v{w2}",
                 f"v_lshl_add_u32 v{LA+i}, v{w3}, 4, v{LA+i}", f"s_lshl_b32 s{sT0}, s{sRB2}, 6", f"v_add_u32 v{w2}, s{sT0}, v{w2}",
                 f"v_mul_u32_u24 v{w2}, 640, v{w2}", f"s_mul_i32 s{sT1}, s{sCB}, 80", f"v_lshl_add_u32 v{w3}, v{w3}, 2, s{sT1}",
                 f"v_add_u32 v{w2}, v{w2}, v{w3}", f"v_lshlrev_b32 v{OA+i}, 2, v{w2}"]
    fill += [f"v_and_b32 v{t0}, 15, v{vL}", f"v_lshrrev_b32 v{t1}, 2, v{t0}", f"v_lshlrev_b32 v{t1}, 4, v{t1}", f"v_and_b32 v{t0}, 3, v{t0}",
             f"v_add_u32 v{t0}, v{t0}, v{t1}", f"s_lshl_b32 s{sT0}, s{sRB2}, 6", f"v_add_u32 v{t1}, s{sT0}, v{t0}",
             f"v_lshlrev_b32 v{t1}, 2, v{t1}", f"v_add_u32 v50, {WS_G}, v{t1}",
             f"v_mul_u32_u24 v{t0}, {RS}, v{t0}", f"v_lshrrev_b32 v{t3}, 4, v{vL}", f"v_lshl_add_u32 v{t0}, v{t3}, 4, v{t0}",
             f"s_mul_i32 s{sT0}, s{sW}, {RED}", f"v_add_u32 v{vLW}, s{sT0}, v{t0}"]
    for g in range(22):
        glu = g < 12
        slot = g % 5
        wg = g if glu else g-12
        wait_for(lambda tg: tg == ("h", g) or (not glu and tg == ("w", g-12)))
        if g == 3:
            wait_for(lambda tg: tg[0] == "st")
            a(f"v_add_u32 v{t0}, {WS_FA-WS_FB}, v{vFo}")
            a(f"v_mov_b32 v{t1}, s{sNonce}")
            a(f"s_mov_b64 exec, 1")
            issue(f"global_store_dword v{t0}, v{t1}, s[{P_WS}:{P_WS+1}]{SC}", ("fa", 0))
            a(f"s_mov_b64 exec, -1")
        if g == 5:
            a(f"v_add_u32 v{vFl}, {WS_FA-WS_FB}, v{vFl}")
            issue(f"global_load_dword v{t2}, v{vFl}, s[{P_WS}:{P_WS+1}]{SC}", ("fp", 0))
        if g == 7:
            wait_for(lambda tg: tg[0] == "fp")
            spin_init(a)
            a.label("L_fachk")
            a(f"v_cmp_ne_u32 vcc, s{sNonce}, v{t2}")
            a("s_nop 4")
            a("s_cbranch_vccz L_faok")
            spin_guard(a, "L_faok")
            a(f"global_load_dword v{t2}, v{vFl}, s[{P_WS}:{P_WS+1}]{SC}")
            a("s_waitcnt vmcnt(0)")
            a("s_branch L_fachk")
            a.label("L_faok")
        if g == 15:
            a("s_barrier")
            for i in range(4): issue(f"global_load_dword v{vG[i]}, v50, s[{P_WS}:{P_WS+1}] offset:{16*i}{SC}", ("g", 0))
        mf = []
        for j in range(5):
            for i in range(4):
                d = accB(j, i) if glu else accA(j, i)
                c = "0" if g in (0, 12) else f"v[{d}:{d+3}]"
                mf.append(f"v_mfma_f32_16x16x32_bf16 v[{d}:{d+3}], {wreg(wg, j)}, {hreg(slot, i)}, {c}")
        wl = [wload(g, j) for j in range(5)] if g < 10 else []
        for idx, x in enumerate(mf):
            a(x)
            j = idx // 4
            if idx % 4 == 1 and j >= 1 and wl: issue(wl[j-1], ("w", g))
            elif g >= 8 and fill and idx % 4 != 1: a(fill.pop(0))
        if wl:
            issue(wl[4], ("w", g))
            inc = (20-4)*5120 if g == 4 else 5120
            a(f"s_add_u32 s{sKW}, s{sKW}, {inc}"); a(f"s_add_u32 s{sKW4}, s{sKW4}, {inc}")
        gn = g + 5
        if gn < 22:
            if gn == 12: a(f"s_mul_i32 s{sKH}, s{sW}, {5*1024}")
            elif gn == 17: a(f"s_add_u32 s{sKH}, s{sKH}, {15*1024}")
            for x in hloads(gn): issue(x, ("h", gn))
            a(f"s_add_u32 s{sKH}, s{sKH}, 1024")
        if g == 17:
            for i in range(5):
                a(f"v_lshrrev_b32 v{t0}, 1, v{OA+i}")
                issue(f"global_load_dwordx2 v[{XR+2*i}:{XR+2*i+1}], v{t0}, s[{P_X}:{P_X+1}]", ("f", 0))
            for i in range(5):
                a(f"v_mul_u32_u24 v{t1}, 49933, v{LA+i}")
                a(f"v_lshrrev_b32 v{t1}, 24, v{t1}")
                a(f"s_lshl_b32 s{sT0}, s{sRB2}, 6")
                a(f"v_add_u32 v{t1}, s{sT0}, v{t1}")
                a(f"v_lshlrev_b32 v{t1}, 2, v{t1}")
                a(f"v_add_u32 v{t1}, {WS_G}, v{t1}")
                issue(f"global_load_dword v{GR+i}, v{t1}, s[{P_WS}:{P_WS+1}]{SC}", ("f", 0))
        if g == 19:
            for i in range(5):
                a(f"v_mul_u32_u24 v{t1}, 49933, v{LA+i}")
                a(f"v_lshrrev_b32 v{t1}, 24, v{t1}")
                a(f"v_mul_u32_u24 v{t1}, {RS}, v{t1}")
                a(f"v_sub_u32 v{t1}, v{LA+i}, v{t1}")
                a(f"v_lshrrev_b32 v{t1}, 1, v{t1}")
                a(f"s_mul_i32 s{sT1}, s{sCB}, 160")
                a(f"v_add_u32 v{t1}, s{sT1}, v{t1}")
                issue(f"global_load_dwordx2 v[{DR+2*i}:{DR+2*i+1}], v{t1}, s[{P_DSK}:{P_DSK+1}]", ("f", 0))
    assert not fill
    stp(a, "K2 loop")
    wait_for(lambda tg: tg[0] == "g")
    for j in range(5):
        for i in range(4):
            A_r, B_r = accA(j, i), accB(j, i)
            for h in (0, 2):
                a(f"v_pk_add_f32 v[{A_r+h}:{A_r+h+1}], v[{A_r+h}:{A_r+h+1}], v[{B_r+h}:{B_r+h+1}] neg_lo:[0,1] neg_hi:[0,1]")
            for h in (0, 2):
                a(f"v_pk_fma_f32 v[{B_r+h}:{B_r+h+1}], v[{vG[i]}:{vG[i]+1}], v[{A_r+h}:{A_r+h+1}], v[{B_r+h}:{B_r+h+1}] op_sel_hi:[0,1,1]")
            a(f"ds_write_b128 v{vLW}, v[{B_r}:{B_r+3}] offset:{i*4*RS + 64*j}")
    a("s_waitcnt lgkmcnt(0)")
    a("s_barrier")
    stp(a, "red written")
    for i in range(5):
        b = 120 + 16*i
        for w in range(4):
            a(f"ds_read_b128 v[{b+4*w}:{b+4*w+3}], v{LA+i} offset:{w*RED}")
    a("s_waitcnt vmcnt(0)")
    for i in range(5):
        b = 120 + 16*i
        a(f"s_waitcnt lgkmcnt({min(15,4*(4-i))})")
        a(f"v_pk_add_f32 v[{b}:{b+1}], v[{b}:{b+1}], v[{b+4}:{b+5}]")
        a(f"v_pk_add_f32 v[{b+2}:{b+3}], v[{b+2}:{b+3}], v[{b+6}:{b+7}]")
        a(f"v_pk_add_f32 v[{b+8}:{b+9}], v[{b+8}:{b+9}], v[{b+12}:{b+13}]")
        a(f"v_pk_add_f32 v[{b+10}:{b+11}], v[{b+10}:{b+11}], v[{b+14}:{b+15}]")
        a(f"v_pk_add_f32 v[{b}:{b+1}], v[{b}:{b+1}], v[{b+8}:{b+9}]")
        a(f"v_pk_add_f32 v[{b+2}:{b+3}], v[{b+2}:{b+3}], v[{b+10}:{b+11}]")
        x0, d0_ = XR+2*i, DR+2*i
        for h in range(2):
            a(f"v_lshlrev_b32 v{t1}, 16, v{x0+h}")
            a(f"v_and_b32 v{t2}, 0xffff0000, v{x0+h}")
            a(f"v_lshlrev_b32 v{t3}, 16, v{d0_+h}")
            a(f"v_and_b32 v{t4}, 0xffff0000, v{d0_+h}")
            a(f"v_mul_f32 v{t1}, v{t1}, v{t3}")
            a(f"v_mul_f32 v{t2}, v{t2}, v{t4}")
            a(f"v_fmac_f32 v{b+2*h}, v{GR+i}, v{t1}")
            a(f"v_fmac_f32 v{b+2*h+1}, v{GR+i}, v{t2}")
        a(f"global_store_dwordx4 v{OA+i}, v[{b}:{b+3}], s[{P_OUT}:{P_OUT+1}]")
    stp(a, "out stored")
    if LSTAMP:
        pass
    stp.dump(a, sW, sT0, P_WS, WS_STAMP)
    a.label("L_end")
    a("s_endpgm")
    return a.text()

HEADER = open("gated_mix__ssm_conv_s5__glu_gated_bilinear__prompt.s.ref").read().split("; Override launch")[0]
def main():
    out = HEADER
    out += "; Override launch geometry by editing the next line. Harness parses it; keep it on one line.\n"
    out += "; @launch grid=(256,1,1) block=(256,1,1) lds=163840\n"
    out += '.amdgcn_target "amdgcn-amd-amdhsa--gfx950"\n.text\n'
    out += f".globl {KNAME}\n.p2align 8\n.type {KNAME},@function\n" + gen()
    out += f""".section .rodata,"a"
.p2align 6
.amdhsa_kernel {KNAME}
  .amdhsa_next_free_vgpr 512
  .amdhsa_next_free_sgpr 102
  .amdhsa_accum_offset 256
  .amdhsa_group_segment_fixed_size 0
  .amdhsa_kernarg_size 136
  .amdhsa_user_sgpr_count 2
  .amdhsa_user_sgpr_kernarg_segment_ptr 1
  .amdhsa_system_sgpr_workgroup_id_x 1
  .amdhsa_float_denorm_mode_32 3
.end_amdhsa_kernel
"""
    path = [x for x in sys.argv[1:] if not x.startswith("--")][0]
    open(path, "w").write(out)
    json.dump([[d[i] for i in sorted(d)] for d in NAMES], open(path + ".names", "w"))
main()
```

```python
import sys, json
from asmlib import *

FLAGS = set(x[2:] for x in sys.argv[1:] if x.startswith("--"))
STAMP = "stamp" in FLAGS
NAMES = []
KNAME = "gated_mix__ssm_conv_s5__glu_gated_bilinear__prompt_kernel"

WS_H   = 0
WS_G   = 0xB00000
WS_S   = 0xB10000
WS_FB  = 0xB40000
WS_FA  = 0xB42000
WS_PF  = 0xB44000
WS_W2  = 0xC00000
W2_SIZE = 8*88*5*1024
WS_STAMP = 0x1000000
LOG2E = 0x3fb8aa3b
INV2PI = 0x3e22f983
SC = "" if "nosc" in FLAGS else " sc1"
SCL = "" if ("nosc" in FLAGS or "noscl" in FLAGS) else " sc1"
LSTAMP = "lstamp" in FLAGS

def srd(a, d, base, size, add=0):
    o = []
    if add == 0:
        o += [f"s_mov_b32 s{d}, s{base}", f"s_mov_b32 s{d+1}, s{base+1}"]
    elif add > 0:
        o += [f"s_add_u32 s{d}, s{base}, {add}", f"s_addc_u32 s{d+1}, s{base+1}, 0"]
    else:
        o += [f"s_sub_u32 s{d}, s{base}, {-add}", f"s_subb_u32 s{d+1}, s{base+1}, 0"]
    o += [f"s_mov_b32 s{d+2}, {size}", f"s_mov_b32 s{d+3}, 0x00020000"]
    if a is None: return o
    for x in o: a(x)

class Stamper:
    def __init__(self, store):
        self.store = store; self.n = 0; self.tmp = [98, 100]; self.names = {}
        NAMES.append(self.names)
    def __call__(self, a, name=""):
        if not STAMP: return
        if self.n > 0:
            a(f"s_mov_b32 s{self.store[self.n-1]}, s{self.tmp[(self.n-1)&1]}")
        assert self.n < len(self.store), "too many stamps"
        a(f"s_memtime s[{self.tmp[self.n&1]}:{self.tmp[self.n&1]+1}]")
        self.names[self.n] = name
        self.n += 1
    def dump(self, a, sW, sT0, P_WS, base):
        if not STAMP: return
        a("s_waitcnt vmcnt(0) lgkmcnt(0)")
        self(a, "end")
        a("s_waitcnt lgkmcnt(0)")
        a(f"s_mov_b32 s{self.store[self.n-1]}, s{self.tmp[(self.n-1)&1]}")
        a(f"s_lshl_b32 s{sT0}, s2, 2")
        a(f"s_add_u32 s{sT0}, s{sT0}, s{sW}")
        a(f"s_lshl_b32 s{sT0}, s{sT0}, 7")
        a(f"s_add_u32 s{sT0}, s{sT0}, {base}")
        a(f"v_mov_b32 v2, s{sT0}")
        for i in range(self.n):
            a(f"v_mov_b32 v3, s{self.store[i]}")
            a(f"global_store_dword v2, v3, s[{P_WS}:{P_WS+1}] offset:{4*i}")

def rr(*streams):
    out = []
    n = max(len(s) for s in streams)
    for i in range(n):
        for s in streams:
            if i < len(s): out.append(s[i])
    return out

def weave(a, work, mem, start=0, every=None):
    n = len(work); m = len(mem)
    if m == 0: pos = []
    elif every is None: pos = [start + int((n - start) * i / m) for i in range(m)]
    else: pos = [start + every*i for i in range(m)]
    mi = 0
    def emit(it):
        if isinstance(it, str): a(it)
        else:
            for x in it: a(x)
    for i, w in enumerate(work):
        while mi < m and pos[mi] <= i:
            emit(mem[mi]); mi += 1
        emit(w)
    while mi < m:
        emit(mem[mi]); mi += 1

SPIN_MAX = 100000
def spin_init(a): a("s_mov_b32 s95, 0")
def spin_guard(a, out_label):
    a("s_add_u32 s95, s95, 1")
    a(f"s_cmp_gt_u32 s95, {SPIN_MAX}")
    a(f"s_cbranch_scc1 {out_label}")

DPPSW = "quad_perm:[1,0,3,2] row_mask:0xf bank_mask:0xf"
P_X, P_LRE, P_LIM, P_BRE, P_BIM, P_CRE, P_CIM, P_LDT = 4,6,8,10,12,14,16,18
P_DSK, P_BX, P_WG, P_WU = 20,22,24,26
P_WD, P_GW, P_OUT, P_DBG = 28,30,32,34
P_WS = 36

def gen():
    a = Asm()
    stp = Stamper([96,97,22,23,6,7,8,9,18,19,10,11,12,13,24,25,26,27,95,94,73,74,75,76,77,80,81,82,83])
    SX, SG, SU, SB0, SB1, SB2, SM = 40,44,48,52,56,60,64
    sEX = 38
    sW, sRH, sCH, sRB, sCG = 68,69,70,71,72
    sDB, sCur, sD, sC3, sStage = 73,74,75,76,77
    sKX, sKG, sKU, sKB = 78,79,80,81
    sOX, sOG, sOU, sOB, sOB2 = 82,83,84,85,86
    sT0, sT1, sT2 = 87,88,89
    sF = 87
    sBlk, sRB2, sCB = 90, 91, 92
    sT3 = 93
    sNonce = 3
    vL = 1
    vDX, vDW, vDB = 2, 6, 9
    vX0, vX1, vWa, vWb, vWc, vB0, vB1 = 12,13,14,15,16,17,18
    t0, t1, t2, t3, t4 = 19,20,21,22,23
    vA  = [24,25,26]; vBx = [27,28,29]; vLRE = [30,31,32]; vLIM = [33,34,35]
    vLr = [36,37,38]; vLi = [39,40,41]; vWSr = [42,43,44]; vWSi = [45,46,47]
    vSgn, vNon, vSig, vWp = 48, 49, 50, 51
    vPF = 52
    SCR = 52
    vC, vAe, vAe4, vRw = 90, 91, 92, 93
    pa = [94, 95, 96]
    GLD = 56
    vGst, vGv = 71, 72
    RA, GA = 2, 3
    Ps = [4, 5, 6]
    vAs, vCm = 97, 98
    vAs2, vCm2 = 7, 8
    vH = 116
    ACC = 120
    BUF = 51200
    RX, RG, RU, RB = 0, 16384, 28672, 40960
    MISC = 3*BUF
    SWB, EF, E4, RWB = 0, 1280, 5120, 7104
    EF0 = EF + 7*256; E40 = E4 + 15*64
    HTS = 272
    def acc(n, i): return ACC + n*16 + 4*i
    SA, SBt, S4 = ACC+96, ACC+112, ACC+128
    CL = 52
    PK = 100
    vPWs, vPCs, vPWd, vPCd, vPtr = 61, 63, 64, 66, 68
    TP = 69

    a.label(KNAME)
    a(f"s_cmp_ge_u32 s2, 256")
    a(f"s_cbranch_scc1 L_end")
    a(f"s_load_dwordx16 s[4:19], s[0:1], 0")
    a(f"s_load_dwordx8 s[20:27], s[0:1], 64")
    a(f"s_load_dwordx8 s[28:35], s[0:1], 96")
    a(f"s_load_dwordx2 s[36:37], s[0:1], 128")
    a(f"s_memrealtime s[{sEX}:{sEX+1}]")
    stp(a, "s0")
    a(f"v_lshrrev_b32 v{t0}, 6, v0")
    a(f"v_and_b32 v{vL}, 63, v0")
    a(f"s_and_b32 s{sT0}, s2, 1")
    a(f"v_readfirstlane_b32 s{sW}, v{t0}")
    a(f"s_lshl_b32 s{sT0}, s{sT0}, 3")
    a(f"s_lshr_b32 s{sT1}, s2, 3")
    a(f"s_and_b32 s{sRB}, s{sT1}, 7")
    a(f"s_add_u32 s{sRB}, s{sRB}, s{sT0}")
    a(f"s_lshr_b32 s{sT0}, s2, 1")
    a(f"s_and_b32 s{sT0}, s{sT0}, 3")
    a(f"s_lshl_b32 s{sT2}, s{sT0}, 2")
    a(f"s_lshr_b32 s{sT3}, s2, 6")
    a(f"s_add_u32 s{sCG}, s{sT2}, s{sT3}")
    a(f"s_lshl_b32 s{sT0}, s{sT0}, 3")
    a(f"s_and_b32 s{sT1}, s{sT1}, 7")
    a(f"s_add_u32 s{sRB2}, s{sT0}, s{sT1}")
    a(f"s_and_b32 s{sT0}, s2, 1")
    a(f"s_lshl_b32 s{sT0}, s{sT0}, 2")
    a(f"s_add_u32 s{sCB}, s{sT0}, s{sT3}")
    a(f"s_lshr_b32 s{sRH}, s{sW}, 1")
    a(f"s_and_b32 s{sCH}, s{sW}, 1")
    a(f"v_lshrrev_b32 v{t0}, 3, v{vL}")
    a(f"v_and_b32 v{t1}, 2, v{t0}")
    a(f"s_lshl_b32 s{sT0}, s{sCH}, 2")
    a(f"v_or_b32 v{t1}, s{sT0}, v{t1}")
    a(f"v_and_b32 v{t2}, 7, v{vL}")
    a(f"v_xor_b32 v{t1}, v{t1}, v{t2}")
    a(f"s_lshl_b32 s{sT0}, s{sRB}, 7")
    a(f"s_lshl_b32 s{sT1}, s{sW}, 5")
    a(f"s_add_u32 s{sT0}, s{sT0}, s{sT1}")
    a(f"v_add_u32 v{t0}, s{sT0}, v{t0}")
    a(f"v_mul_u32_u24 v{t0}, 1280, v{t0}")
    a(f"v_lshl_add_u32 v{vDX}, v{t1}, 4, v{t0}")
    for i in range(1,4):
        a(f"v_add_u32 v{vDX+i}, {9216*i}, v{vDX}")
    a(f"s_lshl_b32 s{sOX}, s{sW}, 12")
    a(f"s_mul_i32 s{sOG}, s{sW}, 3072")
    a(f"s_add_u32 s{sOU}, s{sOG}, {RU}")
    a(f"s_add_u32 s{sOG}, s{sOG}, {RG}")
    for r in (sKX, sKG, sKU, sKB): a(f"s_mov_b32 s{r}, 0")
    a("s_waitcnt lgkmcnt(0)")
    a(f"s_or_b32 s{sT0}, s2, s{sW}")
    a(f"s_cmp_lg_u32 s{sT0}, 0")
    a(f"s_cbranch_scc1 L_no_nonce")
    a(f"s_or_b32 s{sT0}, s{sEX}, 1")
    a(f"v_mov_b32 v{t0}, s{sT0}")
    a(f"v_mov_b32 v{t1}, 0")
    a(f"s_mov_b64 exec, 1")
    a(f"global_store_dword v{t1}, v{t0}, s[{P_DBG}:{P_DBG+1}]{SC}")
    a(f"s_mov_b64 exec, -1")
    a.label("L_no_nonce")
    srd(a, SX, P_X, 2621440)
    def dma(vo, S, so, off):
        o = f" offset:{off}" if off else ""
        return f"buffer_load_dwordx4 v{vo}, s[{S}:{S+3}], s{so} offen{o} lds"
    def dgrp(base_expr, items):
        g = [[f"s_add_u32 m0, {base_expr}", "s_nop 0", items[0]]]
        g += [[x] for x in items[1:]]
        return g
    def stage_x(b):  return dgrp(f"s{sOX}, {b}", [dma(vDX+i, SX, sKX, 1024*i) for i in range(4)])
    def stage_g(b):  return dgrp(f"s{sOG}, {b}", [dma(vDW+i, SG, sKG, 1024*i) for i in range(3)])
    def stage_u(b):  return dgrp(f"s{sOU}, {b}", [dma(vDW+i, SU, sKU, 1024*i) for i in range(3)])
    def stage_b(b):  return dgrp(f"s{sOB}, {b}", [dma(vDB, SB0, sKB, 0), dma(vDB+1, SB1, sKB, 1024)]) + dgrp(f"s{sOB2}, {b}", [dma(vDB+2, SB2, sKB, 0)])
    wW = [f"s_mul_i32 s{sT0}, s{sW}, 192", f"s_mul_i32 s{sT1}, s{sCG}, 192"]
    for i in range(3):
        wW += [f"v_add_u32 v{t0}, s{sT0}, v{vL}"]
        if i: wW += [f"v_add_u32 v{t0}, {64*i}, v{t0}"]
        wW += [f"v_mul_u32_u24 v{t1}, 43691, v{t0}", f"v_lshrrev_b32 v{t1}, 19, v{t1}", f"v_mul_u32_u24 v{t2}, 12, v{t1}",
               f"v_sub_u32 v{t2}, v{t0}, v{t2}", f"v_lshrrev_b32 v{t3}, 2, v{t1}", f"v_and_b32 v{t3}, 2, v{t3}",
               f"v_xor_b32 v{t2}, v{t2}, v{t3}", f"v_mul_u32_u24 v{t1}, 3072, v{t1}", f"v_lshl_add_u32 v{t1}, v{t2}, 4, v{t1}",
               f"v_add_u32 v{vDW+i}, s{sT1}, v{t1}"]
        if i: wW += [f"v_subrev_u32 v{vDW+i}, {1024*i}, v{vDW+i}"]
    wW += srd(None, SG, P_WG, 1966080) + srd(None, SU, P_WU, 1966080)
    weave(a, wW, stage_x(0), start=0)
    wB = [f"s_mul_i32 s{sT3}, s{sCG}, 40", f"s_mul_i32 s{sT2}, s{sW}, 3",
          [f"s_cmp_eq_u32 s{sW}, 3", f"s_cselect_b32 s{sT2}, 8, s{sT2}"],
          f"s_add_u32 s{sD}, s{sT2}, 2",
          [f"s_cmp_ge_u32 s{sW}, 2", f"s_cselect_b32 s{sT0}, 1, 0"],
          f"s_sub_u32 s{sD}, s{sD}, s{sT0}",
          f"s_lshl_b32 s{sOB}, s{sT2}, 10", f"s_add_u32 s{sOB}, s{sOB}, {RB}",
          f"s_lshl_b32 s{sOB2}, s{sD}, 10", f"s_add_u32 s{sOB2}, s{sOB2}, {RB}",
          f"v_lshrrev_b32 v{t3}, 4, v{vL}", f"v_lshlrev_b32 v{t3}, 1, v{t3}", f"v_and_b32 v{t4}, 7, v{vL}"]
    for i in range(3):
        wB += [f"s_mov_b32 s{sT0}, s{sT2}" if i == 0 else (f"s_add_u32 s{sT0}, s{sT2}, 1" if i == 1 else f"s_mov_b32 s{sT0}, s{sD}")]
        wB += [[f"s_cmp_ge_u32 s{sT0}, 5", f"s_cselect_b32 s{sT1}, 1, 0", f"s_cselect_b32 s{sC3}, 5, 0"],
               f"s_sub_u32 s{sT0}, s{sT0}, s{sC3}", f"s_lshl_b32 s{sT0}, s{sT0}, 3", f"s_add_u32 s{sT0}, s{sT0}, s{sT3}",
               f"v_lshrrev_b32 v{t0}, 3, v{vL}", f"v_add_u32 v{t0}, s{sT0}, v{t0}", f"v_mul_u32_u24 v{t0}, 1280, v{t0}",
               f"v_add_u32 v{t1}, s{sT1}, v{t3}", f"v_xor_b32 v{t1}, v{t1}, v{t4}", f"v_lshl_add_u32 v{t0}, v{t1}, 4, v{t0}",
               f"v_add_u32 v{vDB+i}, {4096 - (1024*i if i < 2 else 0)}, v{t0}"]
    for i, S in enumerate([SB0, SB1, SB2]):
        wB += [[f"s_cmp_ge_u32 s{sW}, {2 if i < 2 else 1}", f"s_cselect_b32 s{S}, s{P_BIM}, s{P_BRE}", f"s_cselect_b32 s{S+1}, s{P_BIM+1}, s{P_BRE+1}"],
               [f"s_sub_u32 s{S}, s{S}, 4096", f"s_subb_u32 s{S+1}, s{S+1}, 0"],
               f"s_mov_b32 s{S+2}, {819200+4096}", f"s_mov_b32 s{S+3}, 0x00020000"]
    weave(a, wB, stage_g(0) + stage_u(0), start=0)
    c1, c2 = TP, TP+1
    wC = [f"v_and_b32 v{t0}, 15, v{vL}", f"v_lshrrev_b32 v{t0}, 1, v{t0}", f"s_mul_i32 s{sT0}, s{sCG}, 40",
          f"s_lshl_b32 s{sT1}, s{sCH}, 4", f"s_add_u32 s{sT1}, s{sT1}, s{sT0}", f"v_add_u32 v{c1}, s{sT1}, v{t0}",
          f"v_lshlrev_b32 v{c1}, 1, v{c1}", f"s_add_u32 s{sT0}, s{sT0}, 32", f"v_add_u32 v{c2}, s{sT0}, v{t0}",
          f"v_lshlrev_b32 v{c2}, 1, v{c2}"]
    wC += [f"s_mul_i32 s{sT0}, s2, 52429", f"s_lshr_b32 s{sT0}, s{sT0}, 18", f"s_mul_i32 s{sT1}, s{sT0}, 5", f"s_sub_u32 s{sT1}, s2, s{sT1}",
           f"v_lshrrev_b32 v{t0}, 2, v{vL}", f"s_lshl_b32 s{sT2}, s{sT0}, 5", f"v_add_u32 v{t0}, s{sT2}, v{t0}",
           f"v_mul_u32_u24 v{t0}, 1280, v{t0}", f"v_and_b32 v{t1}, 3, v{vL}", f"v_lshl_add_u32 v{t0}, v{t1}, 4, v{t0}",
           f"s_lshl_b32 s{sT2}, s{sT1}, 8", f"v_add_u32 v{t0}, s{sT2}, v{t0}", f"s_lshl_b32 s{sT2}, s{sW}, 6",
           f"v_add_u32 v{vPWs}, s{sT2}, v{t0}", f"v_add_u32 v{vPWs+1}, {16*1280-1024}, v{vPWs}"]
    for k in range(2):
        wC += [f"s_lshl_b32 s{sT2}, s{sT1}, 3", f"s_lshl_b32 s{sT3}, s{sW}, 1", f"s_add_u32 s{sT2}, s{sT2}, s{sT3}"]
        if k: wC += [f"s_add_u32 s{sT2}, s{sT2}, 1"]
        wC += [f"s_mul_i32 s{sT3}, s{sT2}, 52429", f"s_lshr_b32 s{sT3}, s{sT3}, 18", f"s_mul_i32 s{sD}, s{sT3}, 5",
               f"s_sub_u32 s{sT2}, s{sT2}, s{sD}", f"s_mul_i32 s{sT3}, s{sT3}, 88", f"s_add_u32 s{sT3}, s{sT3}, s{sT0}",
               f"s_add_u32 s{sT3}, s{sT3}, 40", f"s_mul_i32 s{sT3}, s{sT3}, 5", f"s_add_u32 s{sT3}, s{sT3}, s{sT2}",
               f"s_lshl_b32 s{sT3}, s{sT3}, 10", f"s_add_u32 s{sT3}, s{sT3}, {WS_W2}",
               f"v_lshlrev_b32 v{vPWd+k}, 4, v{vL}", f"v_add_u32 v{vPWd+k}, s{sT3}, v{vPWd+k}"]
    wC += [f"s_lshl_b32 s{sT0}, s2, 3", f"s_lshl_b32 s{sT1}, s{sW}, 1", f"s_add_u32 s{sT0}, s{sT0}, s{sT1}",
           f"s_mul_i32 s{sT1}, s{sT0}, 52429", f"s_lshr_b32 s{sT1}, s{sT1}, 21", f"s_mul_i32 s{sT2}, s{sT1}, 40",
           f"s_sub_u32 s{sT0}, s{sT0}, s{sT2}",
           [f"s_cmp_ge_u32 s{sT0}, 20", f"s_cselect_b32 s{sC3}, 1, 0", f"s_cselect_b32 s{sT2}, 20, 0"],
           f"s_sub_u32 s{sT2}, s{sT0}, s{sT2}",
           f"v_and_b32 v{t0}, 15, v{vL}", f"s_lshl_b32 s{sT3}, s{sT1}, 4", f"v_add_u32 v{t0}, s{sT3}, v{t0}",
           f"v_mul_u32_u24 v{t0}, 1280, v{t0}", f"v_lshrrev_b32 v{t1}, 4, v{vL}", f"v_lshl_add_u32 v{t0}, v{t1}, 4, v{t0}",
           f"s_lshl_b32 s{sT2}, s{sT2}, 6", f"v_add_u32 v{vPCs}, s{sT2}, v{t0}",
           f"s_mul_i32 s{sT3}, s{sT1}, 52429", f"s_lshr_b32 s{sT3}, s{sT3}, 18", f"s_mul_i32 s{sD}, s{sT3}, 5",
           f"s_sub_u32 s{sT1}, s{sT1}, s{sD}", f"s_mul_i32 s{sT3}, s{sT3}, 88", f"s_add_u32 s{sT3}, s{sT3}, s{sT0}",
           f"s_mul_i32 s{sT3}, s{sT3}, 5", f"s_add_u32 s{sT3}, s{sT3}, s{sT1}", f"s_lshl_b32 s{sT3}, s{sT3}, 10",
           f"s_add_u32 s{sT3}, s{sT3}, {WS_W2}", f"v_lshlrev_b32 v{vPCd}, 4, v{vL}", f"v_add_u32 v{vPCd}, s{sT3}, v{vPCd}",
           f"v_add_u32 v{vPCd+1}, {5*1024}, v{vPCd}",
           f"s_lshl_b32 s{sT0}, s{sW}, 11", f"s_add_u32 s95, s{sT0}, {MISC}"]
    weave(a, wC, stage_b(0), start=0)
    stp(a, "S0 issued")
    sm = []
    for k, P in enumerate((P_LRE, P_LIM, P_LDT)):
        sm += [f"global_load_ushort v{CL+3*k}, v{c1}, s[{P}:{P+1}]", f"global_load_ushort v{CL+3*k+1}, v{c1}, s[{P}:{P+1}] offset:16",
               f"global_load_ushort v{CL+3*k+2}, v{c2}, s[{P}:{P+1}]"]
    sm += [srd(None, SM, P_WD, 1966080) + [f"s_cmp_lt_u32 s2, 240", f"s_cselect_b32 s{SM+2}, s{SM+2}, 0", "s_mov_b32 m0, s95", "s_nop 0",
           f"buffer_load_dwordx4 v{vPWs}, s[{SM}:{SM+3}], 0 offen lds"],
           [f"buffer_load_dwordx4 v{vPWs+1}, s[{SM}:{SM+3}], 0 offen offset:1024 lds"],
           [f"s_cmp_eq_u32 s{sC3}, 1", f"s_cselect_b32 s{SM}, s{P_CIM}, s{P_CRE}", f"s_cselect_b32 s{SM+1}, s{P_CIM+1}, s{P_CRE+1}",
            f"s_mov_b32 s{SM+2}, 819200", f"s_cmp_lt_u32 s2, 200", f"s_cselect_b32 s{SM+2}, s{SM+2}, 0",
            f"buffer_load_dwordx4 v[{PK}:{PK+3}], v{vPCs}, s[{SM}:{SM+3}], 0 offen"],
           [f"buffer_load_dwordx4 v[{PK+4}:{PK+7}], v{vPCs}, s[{SM}:{SM+3}], 0 offen offset:64"]]
    m, q = t0, t1
    wL = [f"v_and_b32 v{m}, 15, v{vL}", f"v_lshrrev_b32 v{q}, 4, v{vL}",
          f"v_lshrrev_b32 v{t2}, 2, v{m}", f"v_lshlrev_b32 v{t2}, 4, v{t2}", f"v_and_b32 v{t3}, 3, v{m}", f"v_add_u32 v{t2}, v{t2}, v{t3}",
          f"s_lshl_b32 s{sT0}, s{sRH}, 6", f"v_add_u32 v{t2}, s{sT0}, v{t2}", f"v_lshlrev_b32 v{t2}, 7, v{t2}",
          f"v_and_b32 v{t3}, 2, v{m}", f"v_lshrrev_b32 v{t4}, 3, v{m}", f"v_lshl_or_b32 v{t3}, v{t4}, 2, v{t3}",
          f"v_xor_b32 v{t3}, v{t3}, v{q}", f"v_lshl_add_u32 v{vX0}, v{t3}, 4, v{t2}", f"v_xor_b32 v{t3}, 4, v{t3}",
          f"v_lshl_add_u32 v{vX1}, v{t3}, 4, v{t2}",
          f"v_lshrrev_b32 v{t2}, 2, v{m}", f"v_lshl_add_u32 v{t2}, v{q}, 3, v{t2}", f"v_mul_u32_u24 v{t2}, 192, v{t2}",
          f"v_and_b32 v{t3}, 3, v{m}", f"v_lshl_add_u32 v{t2}, v{t3}, 3, v{t2}", f"v_and_b32 v{t3}, 1, v{q}",
          f"v_lshl_add_u32 v{vWa}, v{t3}, 5, v{t2}", f"v_xor_b32 v{t3}, 1, v{t3}", f"v_lshl_add_u32 v{vWb}, v{t3}, 5, v{t2}",
          [f"s_cmp_eq_u32 s{sCH}, 1", f"s_cselect_b64 vcc, -1, 0", f"v_cndmask_b32 v{vWc}, v{vWa}, v{vWb}, vcc"],
          f"v_add_u32 v{vWc}, 64, v{vWc}", f"s_lshl_b32 s{sT0}, s{sCH}, 7", f"v_add_u32 v{vWa}, s{sT0}, v{vWa}", f"v_add_u32 v{vWb}, s{sT0}, v{vWb}",
          f"v_and_b32 v{t2}, 1, v{m}", f"v_lshrrev_b32 v{t3}, 2, v{m}", f"v_lshl_add_u32 v{t3}, v{t3}, 1, v{t2}", f"v_xor_b32 v{t3}, v{t3}, v{q}",
          f"v_mul_u32_u24 v{t2}, 40, v{t2}", f"v_lshrrev_b32 v{t4}, 1, v{m}", f"v_add_u32 v{t2}, v{t2}, v{t4}", f"v_lshlrev_b32 v{t2}, 7, v{t2}",
          f"s_lshl_b32 s{sT0}, s{sCH}, 11", f"v_add_u32 v{t2}, s{sT0}, v{t2}", f"v_lshl_add_u32 v{vB0}, v{t3}, 4, v{t2}",
          f"v_xor_b32 v{t3}, 4, v{t3}", f"v_lshl_add_u32 v{vB1}, v{t3}, 4, v{t2}",
          f"s_lshl_b32 s{sT0}, s{sRH}, 2", f"v_add_u32 v{vSig}, s{sT0}, v{q}",
          f"v_and_b32 v{t2}, 1, v{vL}", f"v_cvt_f32_u32 v{t2}, v{t2}", f"v_fma_f32 v{vSgn}, v{t2}, 2.0, -1.0",
          f"v_lshrrev_b32 v{t2}, 2, v{m}", f"v_lshl_add_u32 v{t2}, v{q}, 2, v{t2}", f"v_lshlrev_b32 v{t2}, 6, v{t2}",
          f"v_and_b32 v{t3}, 3, v{m}", f"v_lshl_add_u32 v{t2}, v{t3}, 3, v{t2}", f"v_add_u32 v{vPtr}, s95, v{t2}",
          f"v_lshlrev_b32 v{vC}, 2, v{m}", f"s_lshl_b32 s{sT0}, s{sCH}, 7", f"v_add_u32 v{vAs}, s{sT0}, v{vC}",
          f"v_add_u32 v{vCm}, {MISC}, v{vC}", f"v_add_u32 v{vAe}, {MISC}, v{vAs}", f"v_lshl_add_u32 v{vAe}, v{vSig}, 8, v{vAe}",
          f"v_lshlrev_b32 v{vAe4}, 1, v{vSig}", f"v_add_u32 v{vAe4}, s{sCH}, v{vAe4}", f"v_lshl_add_u32 v{vAe4}, v{vAe4}, 6, v{vCm}",
          f"s_mul_i32 s{sT0}, s{sW}, 320", f"s_add_u32 s{sT0}, s{sT0}, {MISC}", f"v_add_u32 v{vRw}, s{sT0}, v{vAs}",
          f"v_lshlrev_b32 v{vWp}, 4, v{vL}", f"s_mul_i32 s{sT0}, s{sRB2}, {4*88*1024}", f"v_add_u32 v{vH}, s{sT0}, v{vWp}"]
    wL += [f"v_add_u32 v{vH+i}, {i*88*1024}, v{vH}" for i in range(1,4)]
    weave(a, wL, sm, start=0)
    stp(a, "small issued")
    a(f"s_mov_b32 s{sKX}, 128"); a(f"s_mov_b32 s{sKG}, 196608"); a(f"s_mov_b32 s{sKU}, 196608"); a(f"s_mov_b32 s{sKB}, 128")
    wQ = []
    wQ += [f"s_mul_i32 s{sT0}, s{sCG}, {16*640}", f"s_add_u32 s{sT0}, s{sT0}, {WS_S}",
           f"v_mul_u32_u24 v{pa[0]}, 640, v{vSig}", f"v_lshl_add_u32 v{pa[0]}, v{vAs}, 1, v{pa[0]}", f"v_add_u32 v{pa[0]}, s{sT0}, v{pa[0]}",
           f"v_add_u32 v{pa[1]}, {8*640}, v{pa[0]}", f"v_lshlrev_b32 v{t0}, 1, v{vSig}", f"v_add_u32 v{t0}, s{sCH}, v{t0}",
           f"v_mul_u32_u24 v{pa[2]}, 640, v{t0}", f"v_lshl_add_u32 v{pa[2]}, v{vC}, 1, v{pa[2]}", f"v_add_u32 v{pa[2]}, s{sT0}, v{pa[2]}",
           f"v_add_u32 v{pa[2]}, {64*8}, v{pa[2]}", f"v_mov_b32 v{t4}, 0x7f000000", f"v_add_u32 v{t1}, 8, v{vSig}"]
    for (p_, src) in ((pa[0], vSig), (pa[1], t1), (pa[2], t0)):
        wQ += [[f"v_cmp_le_u32 vcc, s{sRB}, v{src}", "s_nop 1", f"v_cndmask_b32 v{p_}, v{p_}, v{t4}, vcc"]]
    S1 = stage_x(BUF) + stage_g(BUF) + stage_u(BUF) + stage_b(BUF)
    Z2 = 76
    wQ += [f"v_mov_b32 v{Z2+k}, 0" for k in range(4)] + ["s_nop 1"]
    wQ += [f"v_mfma_f32_32x32x16_bf16 v[{ACC+16*k}:{ACC+16*k+15}], v[{Z2}:{Z2+3}], v[{Z2}:{Z2+3}], 0" for k in range(8)]
    wQ += [f"v_mfma_f32_16x16x32_bf16 v[{ACC+128}:{ACC+131}], v[{Z2}:{Z2+3}], v[{Z2}:{Z2+3}], 0",
           f"v_mfma_f32_16x16x32_bf16 v[{ACC+132}:{ACC+135}], v[{Z2}:{Z2+3}], v[{Z2}:{Z2+3}], 0"]
    weave(a, wQ, S1, start=0)
    a(f"s_mov_b32 s{sKX}, {2*128}"); a(f"s_mov_b32 s{sKG}, {2*196608}")
    a(f"s_mov_b32 s{sKU}, {2*196608}"); a(f"s_mov_b32 s{sKB}, {2*128}")
    a(f"s_mov_b32 s{sDB}, {2*BUF}")
    a(f"s_mov_b32 s{sCur}, 0"); a(f"s_mov_b32 s{sD}, {BUF}"); a(f"s_mov_b32 s{sC3}, 0")
    a(f"s_mov_b32 s{sStage}, 0")
    a(f"s_mov_b32 s{sBlk}, {(1<<1)|(1<<5):#x}")
    stp(a, "S1 issued")
    a("s_waitcnt vmcnt(13)")
    a("s_barrier")
    stp(a, "S0 landed")
    def cpow_s(dr, di, A, B, n, tm, sgn):
        o = []
        if n is None:
            o += [f"v_exp_f32 v{tm}, v{A}", f"v_rndne_f32 v{dr}, v{B}", f"v_sub_f32 v{tm+1}, v{B}, v{dr}"]
        else:
            o += [f"v_mul_f32 v{tm}, {n}, v{A}", f"v_mul_f32 v{tm+1}, {n}, v{B}", f"v_exp_f32 v{tm}, v{tm}",
                  f"v_rndne_f32 v{dr}, v{tm+1}", f"v_sub_f32 v{tm+1}, v{tm+1}, v{dr}"]
        o += [f"v_cos_f32 v{dr}, v{tm+1}", f"v_sin_f32 v{di}, v{tm+1}"]
        if sgn is not None:
            o += [f"v_mul_f32 v{dr}, v{tm}, v{dr}", f"v_mul_f32 v{tm}, v{sgn}, v{tm}", f"v_mul_f32 v{di}, v{tm}, v{di}"]
        else:
            o += [f"v_mul_f32 v{dr}, v{tm}, v{dr}", f"v_mul_f32 v{di}, v{tm}, v{di}"]
        return o
    def make_Wk():
        Wk = []
        for k in range(2):
            Wk += [f"ds_read_b64_tr_b16 v[{PK+8+4*k}:{PK+9+4*k}], v{vPtr} offset:{32*k}", f"ds_read_b64_tr_b16 v[{PK+10+4*k}:{PK+11+4*k}], v{vPtr} offset:{32*k+1024}"]
        Wk += [srd(None, SM, P_WS, WS_W2 + W2_SIZE) + [f"s_cmp_lt_u32 s2, 200", f"s_cselect_b32 s{SM+2}, s{SM+2}, 0",
                f"buffer_store_dwordx4 v[{PK}:{PK+3}], v{vPCd}, s[{SM}:{SM+3}], 0 offen{SC}",
                f"buffer_store_dwordx4 v[{PK+4}:{PK+7}], v{vPCd+1}, s[{SM}:{SM+3}], 0 offen{SC}"]]
        vN = 71
        Wk += [f"v_cvt_f32_u32 v{vN}, v{vSig}", f"v_mov_b32 v{vN+1}, 0x42e00000", f"s_mov_b32 s{sT0}, 0xc1800000",
               f"v_fma_f32 v{vN}, v{vN}, s{sT0}, v{vN+1}", f"s_lshl_b32 s{sT0}, s{sCH}, 3", f"s_sub_u32 s{sT0}, 8, s{sT0}",
               f"v_cvt_f32_u32 v{vN+2}, s{sT0}", f"v_add_f32 v{vN+2}, v{vN+2}, v{vN}"]
        Wk += [["s_waitcnt lgkmcnt(0)", f"s_mov_b32 s{SM+2}, {WS_W2 + W2_SIZE}", f"s_cmp_lt_u32 s2, 240", f"s_cselect_b32 s{SM+2}, s{SM+2}, 0",
                f"buffer_store_dwordx4 v[{PK+8}:{PK+11}], v{vPWd}, s[{SM}:{SM+3}], 0 offen{SC}",
                f"buffer_store_dwordx4 v[{PK+12}:{PK+15}], v{vPWd+1}, s[{SM}:{SM+3}], 0 offen{SC}"]]
        Z = 76
        Wk += [f"v_lshlrev_b32 v{t0}, 5, v0", f"v_add_u32 v{t0}, {MISC}, v{t0}", f"ds_write_b128 v{t0}, v[{Z}:{Z+3}]", f"ds_write_b128 v{t0}, v[{Z}:{Z+3}] offset:16"]
        streams = []
        for T in range(3):
            tm = 80+2*T; dt = 86+T
            s_ = [f"v_lshlrev_b32 v{vLRE[T]}, 16, v{CL+T}", f"v_lshlrev_b32 v{vLIM[T]}, 16, v{CL+3+T}", f"v_lshlrev_b32 v{dt}, 16, v{CL+6+T}",
                  f"v_mul_f32 v{dt}, {LOG2E:#x}, v{dt}", f"v_exp_f32 v{dt}, v{dt}",
                  f"v_cvt_pk_bf16_f32 v{dt}, v{dt}, v{dt}", f"v_lshlrev_b32 v{dt}, 16, v{dt}",
                  f"v_mul_f32 v{vA[T]}, v{dt}, v{vLRE[T]}", f"v_mul_f32 v{vBx[T]}, v{dt}, v{vLIM[T]}",
                  f"v_mul_f32 v{vA[T]}, {LOG2E:#x}, v{vA[T]}", f"v_mul_f32 v{vBx[T]}, {INV2PI:#x}, v{vBx[T]}"]
            s_ += cpow_s(vLr[T], vLi[T], vA[T], vBx[T], None, tm, vSgn)
            s_ += cpow_s(vWSr[T], vWSi[T], vA[T], vBx[T], f"v{vN if T < 2 else vN+2}", tm, vSgn)
            streams.append(s_)
        Wk += [[x, y, z] for x, y, z in zip(*streams)]
        Wk += [[f"v_mov_b32 v{t0}, 0", f"global_load_dword v{vNon}, v{t0}, s[{P_DBG}:{P_DBG+1}]{SC}"]]
        return Wk

    def dma_first(sdb):
        g = [f"s_add_u32 m0, s{sdb}, s{sOX}"] + [dma(vDX+i, SX, sKX, 1024*i) for i in range(4)]
        g += [f"s_add_u32 m0, s{sdb}, s{sOG}"] + [dma(vDW+i, SG, sKG, 1024*i) for i in range(3)]
        g += [f"s_add_u32 s{sKX}, s{sKX}, 128", f"s_add_u32 s{sKG}, s{sKG}, 196608"]
        return g
    def dma_second(sdb):
        g = [f"s_add_u32 m0, s{sdb}, s{sOU}"] + [dma(vDW+i, SU, sKU, 1024*i) for i in range(3)]
        g += [f"s_add_u32 m0, s{sdb}, s{sOB}", dma(vDB, SB0, sKB, 0), dma(vDB+1, SB1, sKB, 1024)]
        g += [f"s_add_u32 m0, s{sdb}, s{sOB2}", dma(vDB+2, SB2, sKB, 0)]
        g += [f"s_add_u32 s{sKU}, s{sKU}, 196608", f"s_add_u32 s{sKB}, s{sKB}, 128"]
        return g
    def reads(ch, s, setb):
        vX = vX0 if s == 0 else vX1
        vB = vB0 if s == 0 else vB1
        X = [f"ds_read_b128 a[{setb+4*i}:{setb+4*i+3}], v{vX} offset:{RX+i*512}" for i in range(4)]
        def tr(n, region, k):
            vW = (vWa, vWb, vWc)[k]
            b = setb + 16 + 4*n
            o = region + 6144*s
            return [f"ds_read_b64_tr_b16 a[{b}:{b+1}], v{vW} offset:{o}", f"ds_read_b64_tr_b16 a[{b+2}:{b+3}], v{vW} offset:{o+768}"]
        def sb(n, off):
            b = setb + 16 + 4*n
            return [f"ds_read_b128 a[{b}:{b+3}], v{vB} offset:{RB+off}"]
        W = []
        for k in range(3):
            W += tr(2*k, RG, k); W += tr(2*k+1, RU, k)
        W += sb(6, 0) + sb(7, 1024) + sb(8, 4096 - 2048*ch)
        return X[:1] + W[:2] + X[1:] + W[2:]
    def mfmas(ch, setb):
        out = []
        for n in range(6):
            for i in range(4):
                d = acc(n, i)
                out.append(f"v_mfma_f32_16x16x32_bf16 v[{d}:{d+3}], a[{setb+16+4*n}:{setb+16+4*n+3}], a[{setb+4*i}:{setb+4*i+3}], v[{d}:{d+3}]")
        for n in (6, 7):
            for i in range(4):
                d = acc(n, i)
                out.append(f"v_mfma_f32_16x16x32_bf16 v[{d}:{d+3}], a[{setb+4*i}:{setb+4*i+3}], a[{setb+16+4*n}:{setb+16+4*n+3}], v[{d}:{d+3}]")
        for k in range(2):
            i = 2*ch + k
            d = S4 + 4*k
            out.append(f"v_mfma_f32_16x16x32_bf16 v[{d}:{d+3}], a[{setb+4*i}:{setb+4*i+3}], a[{setb+16+32}:{setb+16+35}], v[{d}:{d+3}]")
        return out
    def substep(ch, setb, rd, dmas, late, seq=None):
        main = mfmas(ch, setb)
        gaps = [[] for _ in range(34)]
        for i, r in enumerate(rd): gaps[i].append(r)
        loads = [x for x in dmas if "buffer_load" in x]
        nl = len(loads)
        last = 0
        if nl:
            pos = [1 + int(i*30/nl) for i in range(nl)]
            li = 0; pend = []
            for x in dmas:
                if "buffer_load" in x:
                    p = pos[li]; pp = p - 1
                    for y in reversed(pend):
                        while len(gaps[pp]) >= 2: pp -= 1
                        assert pp >= 0
                        gaps[pp].append(y)
                    pend = []
                    while len(gaps[p]) >= 2: p += 1
                    gaps[p].append(x); last = p
                    li += 1
                else: pend.append(x)
            p = last + 1
            for y in pend:
                while len(gaps[p]) >= 2: p += 1
                gaps[p].append(y)
        g = 0
        for (e, ins) in late:
            g = max(g, e)
            while len(gaps[g]) + len(ins) > 2:
                g += 1
                assert g < 34, "late overflow"
            gaps[g].extend(ins)
        if seq is not None:
            g = 0
            while seq and g < 34:
                if len(gaps[g]) + len(seq[0]) <= 2:
                    gaps[g].extend(seq.pop(0))
                g += 1
        out = []
        for i in range(34):
            out.append(main[i]); out.extend(gaps[i])
        return out
    def gate_seq():
        gw = [GLD, GLD+1, GLD+2, GLD+3, GLD+4]
        xr = [[GLD+6, GLD+7, GLD+8, GLD+9, GLD+5], [GLD+10, GLD+11, GLD+12, GLD+13, GLD+14]]
        ga = [73, 74]; u0, u1, u2, u3 = 75, 76, 77, 78
        q_ = [[f"v_mov_b32 v{ga[0]}, 0", f"v_mov_b32 v{ga[1]}, 0"]]
        for i in range(5):
            q_.append([f"v_lshlrev_b32 v{u0}, 16, v{gw[i]}", f"v_and_b32 v{u1}, 0xffff0000, v{gw[i]}"])
            for r in range(2):
                x_ = xr[r][i]
                q_ += [[f"v_lshlrev_b32 v{u2}, 16, v{x_}", f"v_and_b32 v{u3}, 0xffff0000, v{x_}"],
                       [f"v_mul_f32 v{u2}, v{u2}, v{u0}", f"v_mul_f32 v{u3}, v{u3}, v{u1}"],
                       [f"v_cvt_pk_bf16_f32 v{u2}, v{u2}, v{u3}"],
                       [f"v_and_b32 v{u3}, 0xffff0000, v{u2}", f"v_lshlrev_b32 v{u2}, 16, v{u2}"],
                       [f"v_add_f32 v{ga[r]}, v{ga[r]}, v{u2}", f"v_add_f32 v{ga[r]}, v{ga[r]}, v{u3}"]]
        for sh, rm in (("row_shr:1","0xf"),("row_shr:2","0xf"),("row_shr:4","0xf"),("row_shr:8","0xf"),("row_bcast:15","0xa"),("row_bcast:31","0xc")):
            bc = " bound_ctrl:0" if sh.startswith("row_shr") else ""
            q_.append([f"v_add_f32_dpp v{ga[r]}, v{ga[r]}, v{ga[r]} {sh} row_mask:{rm} bank_mask:0xf{bc}" for r in range(2)])
        q_ += [[f"v_readlane_b32 s{sT1}, v{ga[0]}, 63", f"v_readlane_b32 s{sT2}, v{ga[1]}, 63"],
               [f"v_cmp_eq_u32 vcc, 0, v{vL}"],
               [f"v_mov_b32 v{u3}, s{sT1}", f"v_mov_b32 v{u2}, s{sT2}"],
               [f"v_cndmask_b32 v{u2}, v{u2}, v{u3}, vcc"], [f"v_cvt_pk_bf16_f32 v{u2}, v{u2}, v{u2}"],
               [f"v_lshlrev_b32 v{u2}, 16, v{u2}", f"v_mul_f32 v{u2}, 0xbfb8aa3b, v{u2}"],
               [f"v_exp_f32 v{u2}, v{u2}"], [f"v_add_f32 v{u2}, 1.0, v{u2}"], [f"v_rcp_f32 v{u2}, v{u2}"],
               [f"v_cvt_pk_bf16_f32 v{u2}, v{u2}, v{u2}"], [f"v_lshlrev_b32 v{vGv}, 16, v{u2}", f"s_lshl_b32 s{sT1}, s94, 2"],
               [f"s_add_u32 s{sT1}, s{sT1}, {WS_G}"], [f"v_lshl_add_u32 v{vGst}, v{vL}, 2, s{sT1}"]]
        return q_
    def wbase(g, j):
        if g < 7: return 104 + 20*g + 4*j
        if g < 11: return 20*(g-7) + 4*j
        return 80 + 4*j if j < 2 else 244 + 4*(j-2)
    SW2, SH = SX, SG
    sKW, sKW4, sKH = sKX, sKG, sKU
    def wload(g, j):
        b = wbase(g, j)
        if j < 4:
            o = f" offset:{1024*j}" if j else ""
            return f"buffer_load_dwordx4 a[{b}:{b+3}], v{vWp}, s[{SW2}:{SW2+3}], s{sKW} offen{o}{SCL}"
        return f"buffer_load_dwordx4 a[{b}:{b+3}], v{vWp}, s[{SW2}:{SW2+3}], s{sKW4} offen{SCL}"
    def wstep(g, inc=5120):
        return [wload(g, j) for j in range(5)] + [f"s_add_u32 s{sKW}, s{sKW}, {inc}", f"s_add_u32 s{sKW4}, s{sKW4}, {inc}"]

    A_, B_ = 0, 52
    a(f"s_cmp_eq_u32 s{sCH}, 1")
    a(f"s_cbranch_scc1 L_pre1")
    rot0 = lambda: [(24, [f"s_mov_b32 s{sF}, s{sCur}"]), (24, [f"s_add_u32 s{sCur}, s{sCur}, s{sD}"]),
                  (24, [f"s_add_u32 s{sC3}, s{sC3}, 1"]),
                  (24, [f"s_cmp_eq_u32 s{sC3}, 3", f"s_cselect_b32 s{sC3}, 0, s{sC3}"]),
                  (24, [f"s_cmp_eq_u32 s{sC3}, 2", f"s_cselect_b32 s{sD}, {3*BUF}, 0"]),
                  (24, [f"s_sub_u32 s{sD}, {BUF}, s{sD}"])]
    n0 = stp.n
    for ch in (0, 1):
        stp.n = n0
        a.label(f"L_pre{ch}")
        for r in reads(ch, 0, A_): a(r)
        a(f"v_add_u32 v{vX0}, {BUF}, v{vX0}")
        a(f"v_add_u32 v{vB0}, {BUF}, v{vB0}")
        d1 = dma_first(sDB)
        grp = []; cur_ = []
        for x in d1:
            cur_.append(x)
            if "m0" in x.split(",")[0]: cur_.append("s_nop 0")
            if "buffer_load" in x: grp.append(cur_); cur_ = []
        grp[-1] += cur_
        weave(a, make_Wk(), grp, start=1)
        a("s_waitcnt lgkmcnt(0)")
        stp(a, "prologue")
        a(".p2align 3")
        a.label(f"L_loop{ch}")
        late0 = [(19, [f"v_add_u32 v{r}, s{sD}, v{r}"]) for r in (vWa, vWb, vWc, vX1, vB1)] + rot0()
        for x in substep(ch, A_, reads(ch, 1, B_), dma_second(sDB), late0): a(x)
        a(f"s_waitcnt vmcnt(13) lgkmcnt(0)")
        a("s_barrier")
        if LSTAMP: a("s_memtime s[38:39]")
        late1 = [(19, [f"v_add_u32 v{r}, s{sD}, v{r}"]) for r in (vX0, vB0)]
        late1 += [(20, [f"s_mov_b32 s{sDB}, s{sF}"])]
        late1 += [(32, [f"s_bitcmp1_b32 s{sBlk}, s{sStage}", f"s_cbranch_scc1 L_blk{ch}"])]
        body = substep(ch, B_, reads(ch, 0, A_), dma_first(sF), late1)
        for x in body:
            a(x)
            if x.startswith("s_cbranch_scc1 L_blk"): a.label(f"L_blkr{ch}")
        a(f"s_add_u32 s{sStage}, s{sStage}, 1")
        a(f"s_cmp_lt_u32 s{sStage}, 7")
        a("s_waitcnt lgkmcnt(0)")
        if LSTAMP:
            a(f"v_cmp_eq_u32 vcc, s{sStage}, v{vL}"); a(f"v_mov_b32 v79, s38"); a("s_nop 0"); a(f"v_cndmask_b32 v80, v80, v79, vcc")
        a(f"s_cbranch_scc1 L_loop{ch}")
        stp(a, "loop")
        lt = [(19, [f"v_add_u32 v{r}, {BUF}, v{r}"]) for r in (vWa, vWb, vWc, vX1, vB1)]
        lt += [(24, [x]) for x in srd(None, SW2, P_WS, W2_SIZE, add=WS_W2)[:0]]
        for x in substep(ch, A_, reads(ch, 1, B_), dma_second(sDB), lt): a(x)
        a(f"s_waitcnt vmcnt(13) lgkmcnt(0)")
        a("s_barrier")
        spin_init(a)
        a.label(f"L_pf{ch}")
        a(f"v_cmp_ne_u32 vcc, s{sNonce}, v{vPF}")
        a(f"v_cmp_ne_u32 s[{sEX}:{sEX+1}], s{sNonce}, v{vPF+1}")
        a(f"s_or_b64 vcc, vcc, s[{sEX}:{sEX+1}]")
        a(f"v_cmp_ne_u32 s[{sEX}:{sEX+1}], s{sNonce}, v{vPF+2}")
        a(f"s_or_b64 vcc, vcc, s[{sEX}:{sEX+1}]")
        a(f"v_cmp_ne_u32 s[{sEX}:{sEX+1}], s{sNonce}, v{vPF+3}")
        a(f"s_or_b64 vcc, vcc, s[{sEX}:{sEX+1}]")
        a(f"s_cmp_eq_u64 vcc, 0")
        a(f"s_cbranch_scc1 L_pfok{ch}")
        spin_guard(a, f"L_pfok{ch}")
        a(f"v_lshlrev_b32 v{t0}, 4, v{vL}")
        a(f"v_add_u32 v{t0}, {WS_PF}, v{t0}")
        a(f"global_load_dwordx4 v[{vPF}:{vPF+3}], v{t0}, s[{P_WS}:{P_WS+1}]{SC}")
        a("s_waitcnt vmcnt(0)")
        a(f"s_branch L_pf{ch}")
        a.label(f"L_pfok{ch}")
        srd(a, SW2, P_WS, W2_SIZE, add=WS_W2)
        a(f"s_mul_i32 s{sKW}, s{sCB}, 88")
        a(f"s_mul_i32 s{sT0}, s{sW}, 12")
        a(f"s_add_u32 s{sKW}, s{sKW}, s{sT0}")
        a(f"s_add_u32 s{sKW}, s{sKW}, 40")
        a(f"s_mul_i32 s{sKW}, s{sKW}, 5120")
        a(f"s_add_u32 s{sKW4}, s{sKW}, 4096")
        allw = []
        for g in range(7): allw += wstep(g)
        def take(n):
            out = []; c = 0
            while allw and (c < n or "buffer_load" not in allw[0]):
                x = allw.pop(0); out.append(x)
                if "buffer_load" in x: c += 1
            return out
        lt = [(19, [f"v_add_u32 v{r}, {(-2*BUF) & 0xffffffff:#x}, v{r}"]) for r in (vX0, vB0)]
        gq = gate_seq()
        for x in substep(ch, B_, reads(ch, 0, A_), take(8), lt, gq): a(x)
        a("s_waitcnt lgkmcnt(0)")
        lt = [(19, [f"v_add_u32 v{r}, {(-2*BUF) & 0xffffffff:#x}, v{r}"]) for r in (vWa, vWb, vWc, vX1, vB1)]
        for x in substep(ch, A_, reads(ch, 1, B_), take(8), lt, gq): a(x)
        a(f"s_waitcnt vmcnt(16) lgkmcnt(0)")
        a("s_barrier")
        for x in substep(ch, B_, reads(ch, 0, A_), take(8), [], gq): a(x)
        a("s_waitcnt lgkmcnt(0)")
        for x in substep(ch, A_, reads(ch, 1, B_), take(8), [], gq): a(x)
        a("s_waitcnt lgkmcnt(0)")
        for x in substep(ch, B_, [], take(3), [], gq): a(x)
        assert not allw and not gq, (len(allw), len(gq))
        a("s_mov_b64 exec, 3")
        a(f"global_store_dword v{vGst}, v{vGv}, s[{P_WS}:{P_WS+1}]{SC}")
        a("s_mov_b64 exec, -1")
        a(f"s_branch L_epi")
        a.label(f"L_blk{ch}")
        a(f"s_cmp_eq_u32 s{sStage}, 1")
        a(f"s_cbranch_scc1 L_b0_{ch}")
        a(f"v_lshlrev_b32 v{t0}, 4, v{vL}")
        a(f"v_add_u32 v{t0}, {WS_PF}, v{t0}")
        a(f"global_load_dwordx4 v[{vPF}:{vPF+3}], v{t0}, s[{P_WS}:{P_WS+1}]{SC}")
        a(f"s_lshl_b32 s{sT1}, s{sRB}, 7")
        a(f"s_lshl_b32 s{sT2}, s{sRH}, 6")
        a(f"s_add_u32 s{sT1}, s{sT1}, s{sT2}")
        a(f"s_lshl_b32 s{sT2}, s{sCG}, 2")
        a(f"s_add_u32 s{sT1}, s{sT1}, s{sT2}")
        a(f"s_lshl_b32 s{sT2}, s{sCH}, 1")
        a(f"s_add_u32 s94, s{sT1}, s{sT2}")
        a(f"s_mul_i32 s{sT1}, s94, 1280")
        a(f"v_lshlrev_b32 v{t0}, 2, v{vL}")
        a(f"v_add_u32 v{t1}, s{sT1}, v{vWp}")
        a(f"v_add_u32 v{t2}, s{sT1}, v{t0}")
        a(f"global_load_dwordx4 v[{GLD}:{GLD+3}], v{vWp}, s[{P_GW}:{P_GW+1}]")
        a(f"global_load_dword v{GLD+4}, v{t0}, s[{P_GW}:{P_GW+1}] offset:1024")
        a(f"global_load_dwordx4 v[{GLD+6}:{GLD+9}], v{t1}, s[{P_X}:{P_X+1}]")
        a(f"global_load_dword v{GLD+5}, v{t2}, s[{P_X}:{P_X+1}] offset:1024")
        a(f"global_load_dwordx4 v[{GLD+10}:{GLD+13}], v{t1}, s[{P_X}:{P_X+1}] offset:1280")
        a(f"global_load_dword v{GLD+14}, v{t2}, s[{P_X}:{P_X+1}] offset:2304")
        a(f"s_branch L_blkr{ch}")
        a.label(f"L_b0_{ch}")
        spin_init(a)
        a.label(f"L_np{ch}")
        a(f"v_readfirstlane_b32 s{sNonce}, v{vNon}")
        a(f"s_cmp_lg_u32 s{sNonce}, 0")
        a(f"s_cbranch_scc1 L_nok{ch}")
        spin_guard(a, f"L_nok{ch}")
        a(f"v_mov_b32 v{t0}, 0")
        a(f"global_load_dword v{vNon}, v{t0}, s[{P_DBG}:{P_DBG+1}]{SC}")
        a("s_waitcnt vmcnt(0)")
        a(f"s_branch L_np{ch}")
        a.label(f"L_nok{ch}")
        a(f"s_cmp_lg_u32 s{sW}, 0")
        a(f"s_cbranch_scc1 L_blkr{ch}")
        a(f"s_lshl_b32 s{sT1}, s2, 2")
        a(f"s_add_u32 s{sT1}, s{sT1}, {WS_PF}")
        a(f"v_mov_b32 v{t0}, s{sT1}")
        a(f"v_mov_b32 v{t1}, s{sNonce}")
        a(f"s_mov_b64 exec, 1")
        a(f"global_store_dword v{t0}, v{t1}, s[{P_WS}:{P_WS+1}]{SC}")
        a(f"s_mov_b64 exec, -1")
        a(f"s_branch L_blkr{ch}")

    a.label("L_epi")
    stp(a, "tail")
    if LSTAMP:
        a(f"s_lshl_b32 s{sT0}, s2, 2")
        a(f"s_add_u32 s{sT0}, s{sT0}, s{sW}")
        a(f"s_lshl_b32 s{sT0}, s{sT0}, 8")
        a(f"s_add_u32 s{sT0}, s{sT0}, {WS_STAMP + 0x40000}")
        a(f"v_lshl_add_u32 v79, v{vL}, 2, s{sT0}")
        a(f"global_store_dword v79, v80, s[{P_WS}:{P_WS+1}]")
    XCH = BUF
    vHo, vHo2 = 81, 82
    a(f"s_lshl_b32 s{sT0}, s{sRB}, 1")
    a(f"s_add_u32 s{sT0}, s{sT0}, s{sRH}")
    a(f"s_mul_i32 s{sT0}, s{sT0}, {4*88}")
    a(f"s_mul_i32 s{sT1}, s{sCG}, 3")
    a(f"s_add_u32 s{sT0}, s{sT0}, s{sT1}")
    a(f"s_add_u32 s{sT0}, s{sT0}, 40")
    a(f"s_lshl_b32 s{sT1}, s{sCH}, 1")
    a(f"s_add_u32 s{sT1}, s{sT1}, s{sT0}")
    a(f"s_lshl_b32 s{sT1}, s{sT1}, 10")
    a(f"s_add_u32 s{sT0}, s{sT0}, 1")
    a(f"s_mul_i32 s{sT3}, s{sCH}, {2*88}")
    a(f"s_add_u32 s{sT0}, s{sT0}, s{sT3}")
    a(f"s_lshl_b32 s{sT0}, s{sT0}, 10")
    a(f"v_add_u32 v{vHo}, s{sT1}, v{vWp}")
    a(f"v_add_u32 v{vHo2}, s{sT0}, v{vWp}")
    for i in range(4):
        G0, U0, G1, U1 = [acc(n, i) for n in range(4)]
        for (G, Uu) in ((G0, U0), (G1, U1)):
            a(f"v_pk_mul_f32 v[{G}:{G+1}], v[{G}:{G+1}], v[{Uu}:{Uu+1}]")
            a(f"v_pk_mul_f32 v[{G+2}:{G+3}], v[{G+2}:{G+3}], v[{Uu+2}:{Uu+3}]")
        a(f"v_cvt_pk_bf16_f32 v{U0}, v{G0}, v{G0+1}")
        a(f"v_cvt_pk_bf16_f32 v{U0+1}, v{G0+2}, v{G0+3}")
        a(f"v_cvt_pk_bf16_f32 v{U0+2}, v{G1}, v{G1+1}")
        a(f"v_cvt_pk_bf16_f32 v{U0+3}, v{G1+2}, v{G1+3}")
        a(f"v_add_u32 v{G0}, {i*88*1024}, v{vHo}")
        a(f"global_store_dwordx4 v{G0}, v[{U0}:{U0+3}], s[{P_WS}:{P_WS+1}]{SC}")
    for i in range(4):
        G2, U2 = acc(4, i), acc(5, i)
        a(f"v_pk_mul_f32 v[{G2}:{G2+1}], v[{G2}:{G2+1}], v[{U2}:{U2+1}]")
        a(f"v_pk_mul_f32 v[{G2+2}:{G2+3}], v[{G2+2}:{G2+3}], v[{U2+2}:{U2+3}]")
    for i in range(4):
        G2, U2 = acc(4, i), acc(5, i)
        a(f"v_cvt_pk_bf16_f32 v{U2}, v{G2}, v{G2+1}")
        a(f"v_cvt_pk_bf16_f32 v{U2+1}, v{G2+2}, v{G2+3}")
    a(f"s_lshl_b32 s{sT1}, s{sW}, 10")
    a(f"v_lshlrev_b32 v{t1}, 3, v{vL}")
    a(f"v_add_u32 v{t2}, s{sT1}, v{t1}")
    a(f"s_cmp_eq_u32 s{sCH}, 1")
    a(f"s_cbranch_scc1 L_xw1")
    a(f"ds_write_b64 v{t2}, v[{acc(5,2)}:{acc(5,2)+1}] offset:{XCH}")
    a(f"ds_write_b64 v{t2}, v[{acc(5,3)}:{acc(5,3)+1}] offset:{XCH+512}")
    a(f"s_branch L_xw2")
    a.label("L_xw1")
    a(f"ds_write_b64 v{t2}, v[{acc(5,0)}:{acc(5,0)+1}] offset:{XCH}")
    a(f"ds_write_b64 v{t2}, v[{acc(5,1)}:{acc(5,1)+1}] offset:{XCH+512}")
    a.label("L_xw2")
    stp(a, "glu1")
    U = [SA, SBt, S4]; NS = [16, 16, 8]
    eA = [56, 57, 58]; eB = [59, 60, 61]
    cur = [U[T] for T in range(3)]
    for k in range(1, 16):
        Ts = [T for T in range(3) if k < NS[T]]
        dst = eA if (k & 1) else eB
        for T in Ts: a(f"v_fma_f32 v{dst[T]}, v{vLr[T]}, v{cur[T]}, v{U[T]+k}")
        for T in Ts:
            a(f"v_fmac_f32_dpp v{dst[T]}, v{cur[T]}, v{vLi[T]} {DPPSW}")
            cur[T] = dst[T]
    ew = [62, 63, 64]; ex = [65, 66, 67]
    a(f"s_mul_i32 s{sT0}, s{sW}, 320")
    a(f"s_add_u32 s{sT0}, s{sT0}, {MISC}")
    for T in range(3): a(f"v_mul_f32 v{ew[T]}, v{vWSr[T]}, v{cur[T]}")
    for T in range(3): a(f"v_fmac_f32_dpp v{ew[T]}, v{cur[T]}, v{vWSi[T]} {DPPSW}")
    a(f"v_add_u32 v{t0}, s{sT0}, v{vC}")
    a(f"ds_write_b32 v{vAe}, v{cur[0]} offset:{EF0}")
    a(f"ds_write_b32 v{vAe}, v{cur[1]} offset:{EF0+64}")
    a(f"ds_write_b32 v{vAe4}, v{cur[2]} offset:{E40}")
    def qreduce(vals, tmps):
        for v, t in zip(vals, tmps): a(f"v_mov_b32 v{t}, v{v}")
        a("s_nop 0")
        for v, t in zip(vals, tmps): a(f"v_permlane16_swap_b32 v{v}, v{t}")
        a("s_nop 0")
        for v, t in zip(vals, tmps): a(f"v_add_f32 v{v}, v{v}, v{t}")
        for v, t in zip(vals, tmps): a(f"v_mov_b32 v{t}, v{v}")
        a("s_nop 0")
        for v, t in zip(vals, tmps): a(f"v_permlane32_swap_b32 v{v}, v{t}")
        a("s_nop 0")
        for v, t in zip(vals, tmps): a(f"v_add_f32 v{v}, v{v}, v{t}")
    qreduce(ew, ex)
    a(f"ds_write_b32 v{vRw}, v{ew[0]} offset:{SWB}")
    a(f"ds_write_b32 v{vRw}, v{ew[1]} offset:{SWB+64}")
    a(f"ds_write_b32 v{t0}, v{ew[2]} offset:{SWB+256}")
    a("s_waitcnt lgkmcnt(0)")
    a("s_barrier")
    stp(a, "passA")
    a(f"s_xor_b32 s{sT1}, s{sW}, 1")
    a(f"s_lshl_b32 s{sT1}, s{sT1}, 10")
    a(f"v_lshlrev_b32 v{t1}, 3, v{vL}")
    a(f"v_add_u32 v{t2}, s{sT1}, v{t1}")
    a(f"v_add_u32 v{t4}, {88*1024}, v{vHo2}")
    a(f"s_cmp_eq_u32 s{sCH}, 1")
    a(f"s_cbranch_scc1 L_xr1")
    for k in range(2):
        a(f"ds_read_b64 v[{acc(5,k)+2}:{acc(5,k)+3}], v{t2} offset:{XCH+512*k}")
    a("s_waitcnt lgkmcnt(0)")
    a(f"global_store_dwordx4 v{vHo2}, v[{acc(5,0)}:{acc(5,0)+3}], s[{P_WS}:{P_WS+1}]{SC}")
    a(f"global_store_dwordx4 v{t4}, v[{acc(5,1)}:{acc(5,1)+3}], s[{P_WS}:{P_WS+1}]{SC}")
    a(f"s_branch L_xr2")
    a.label("L_xr1")
    for k in range(2):
        a(f"ds_read_b64 v[{acc(4,2+k)}:{acc(4,2+k)+1}], v{t2} offset:{XCH+512*k}")
        a(f"v_mov_b32 v{acc(4,2+k)+2}, v{acc(5,2+k)}")
        a(f"v_mov_b32 v{acc(4,2+k)+3}, v{acc(5,2+k)+1}")
    a("s_waitcnt lgkmcnt(0)")
    a(f"global_store_dwordx4 v{vHo2}, v[{acc(4,2)}:{acc(4,2)+3}], s[{P_WS}:{P_WS+1}]{SC}")
    a(f"global_store_dwordx4 v{t4}, v[{acc(4,3)}:{acc(4,3)+3}], s[{P_WS}:{P_WS+1}]{SC}")
    a.label("L_xr2")
    a(f"s_cmp_lg_u32 s{sW}, 0")
    a(f"s_cbranch_scc1 L_nopub")
    PB = 68
    a(f"v_lshlrev_b32 v{t0}, 3, v{vL}")
    a(f"v_add_u32 v{t0}, {MISC}, v{t0}")
    for w in range(4): a(f"ds_read_b64 v[{PB+2*w}:{PB+2*w+1}], v{t0} offset:{SWB+320*w}")
    a(f"s_lshl_b32 s{sT0}, s{sCG}, 4")
    a(f"s_add_u32 s{sT0}, s{sT0}, s{sRB}")
    a(f"s_mul_i32 s{sT0}, s{sT0}, 640")
    a(f"s_add_u32 s{sT0}, s{sT0}, {WS_S}")
    a(f"v_lshlrev_b32 v{t0}, 4, v{vL}")
    a(f"v_add_u32 v{t0}, s{sT0}, v{t0}")
    a(f"v_mov_b32 v{PB+9}, s{sNonce}")
    a(f"v_mov_b32 v{PB+11}, s{sNonce}")
    a(f"v_cmp_gt_u32 vcc, 40, v{vL}")
    a("s_waitcnt lgkmcnt(0)")
    a(f"v_pk_add_f32 v[{PB}:{PB+1}], v[{PB}:{PB+1}], v[{PB+2}:{PB+3}]")
    a(f"v_pk_add_f32 v[{PB+4}:{PB+5}], v[{PB+4}:{PB+5}], v[{PB+6}:{PB+7}]")
    a(f"v_pk_add_f32 v[{PB}:{PB+1}], v[{PB}:{PB+1}], v[{PB+4}:{PB+5}]")
    a(f"s_and_saveexec_b64 s[{sEX}:{sEX+1}], vcc")
    a(f"v_mov_b32 v{PB+8}, v{PB}")
    a(f"v_mov_b32 v{PB+10}, v{PB+1}")
    a(f"global_store_dwordx4 v{t0}, v[{PB+8}:{PB+11}], s[{P_WS}:{P_WS+1}]{SC}")
    a(f"s_mov_b64 exec, s[{sEX}:{sEX+1}]")
    a.label("L_nopub")
    stp(a, "pub")
    pre = []
    for g in range(7, 12):
        ws_ = wstep(g)
        pre += [[x] for x in ws_[:4]] + [[ws_[4], ws_[5], ws_[6]]]
    X = ACC
    vMr = [X, X+1, X+2]; vMi = [X+3, X+4, X+5]
    vC2r = [X+6, X+7, X+8]; vC2i = [X+9, X+10, X+11]
    vHr = [X+12, X+13, X+14]; vHi = [X+15, X+16, X+17]
    vW0r = [X+18, X+19, X+20]; vW0i = [X+21, X+22, X+23]
    vW1r = [X+24, X+25]; vW1i = [X+26, X+27]
    vLi2 = [X+28, X+29, X+30]
    nOff, nW0, nW1, nOff4, nW4 = X+32, X+33, X+34, X+35, X+36
    vm0, vm1, vm4 = X+37, X+38, X+39
    W = []
    W += [f"v_cvt_f32_u32 v{nOff}, v{vSig}", f"v_mul_f32 v{nOff}, 0x41800000, v{nOff}", f"s_lshl_b32 s{sT0}, s{sCH}, 3",
          f"v_cvt_f32_u32 v{nOff4}, s{sT0}", f"v_add_f32 v{nOff4}, v{nOff4}, v{nOff}",
          f"s_sub_u32 s{sT0}, s{sRB}, 1", f"v_sub_u32 v{t0}, s{sT0}, v{vSig}", f"v_subrev_u32 v{t1}, 8, v{t0}",
          f"v_sub_u32 v{t2}, v{t0}, v{vSig}", f"v_subrev_u32 v{t2}, s{sCH}, v{t2}"]
    for (n_, mreg, src) in ((nW0, vm0, t0), (nW1, vm1, t1), (nW4, vm4, t2)):
        W += [[f"v_cmp_le_i32 vcc, 0, v{src}", f"v_max_i32 v{n_}, 0, v{src}", f"v_cvt_f32_i32 v{n_}, v{n_}",
               f"v_cndmask_b32 v{mreg}, 0, 1.0, vcc"], f"v_mul_f32 v{n_}, 0x43000000, v{n_}"]
    W += [f"v_mov_b32 v{X+40}, 0x41800000", f"v_mov_b32 v{X+41}, 0x41000000"]
    streams = []
    for T in range(3):
        tm = X+44+6*T
        pr, pi, cr, ci = tm+2, tm+3, tm+4, tm+5
        s_ = cpow_s(vMr[T], vMi[T], vA[T], vBx[T], f"v{X+40 if T < 2 else X+41}", tm, vSgn)
        s_ += [f"v_mul_f32 v{pi}, v{vSgn}, v{vLi[T]}", f"v_add_f32 v{pr}, -1.0, v{vLr[T]}",
               f"v_mul_f32 v{tm}, v{vLRE[T]}, v{vLRE[T]}", f"v_fmac_f32 v{tm}, v{vLIM[T]}, v{vLIM[T]}", f"v_rcp_f32 v{tm}, v{tm}",
               f"v_mul_f32 v{cr}, v{pr}, v{vLRE[T]}", f"v_fmac_f32 v{cr}, v{pi}, v{vLIM[T]}",
               f"v_mul_f32 v{ci}, v{pi}, v{vLRE[T]}", f"v_fma_f32 v{ci}, -v{pr}, v{vLIM[T]}, v{ci}",
               f"v_add_f32 v{tm}, v{tm}, v{tm}", f"v_mul_f32 v{cr}, v{tm}, v{cr}", f"v_mul_f32 v{ci}, v{tm}, v{ci}",
               f"v_mul_f32_e64 v{vC2r[T]}, -v{vSgn}, v{cr}", f"v_sub_f32 v{vC2i[T]}, 0, v{ci}", f"v_sub_f32 v{vLi2[T]}, 0, v{vLi[T]}"]
        s_ += cpow_s(pr, pi, vA[T], vBx[T], f"v{nOff if T < 2 else nOff4}", tm, None)
        s_ += [f"v_mul_f32 v{vHr[T]}, v{cr}, v{pr}", f"v_fma_f32 v{vHr[T]}, -v{ci}, v{pi}, v{vHr[T]}",
               f"v_mul_f32 v{vHi[T]}, v{cr}, v{pi}", f"v_fmac_f32 v{vHi[T]}, v{ci}, v{pr}",
               f"v_mul_f32_e64 v{vHr[T]}, -v{vSgn}, v{vHr[T]}", f"v_sub_f32 v{vHi[T]}, 0, v{vHi[T]}"]
        s_ += cpow_s(vW0r[T], vW0i[T], vA[T], vBx[T], f"v{nW0 if T < 2 else nW4}", tm, vSgn)
        mk = vm0 if T < 2 else vm4
        s_ += [f"v_mul_f32 v{vW0r[T]}, v{mk}, v{vW0r[T]}", f"v_mul_f32 v{vW0i[T]}, v{mk}, v{vW0i[T]}"]
        if T < 2:
            s_ += cpow_s(vW1r[T], vW1i[T], vA[T], vBx[T], f"v{nW1}", tm, vSgn)
            s_ += [f"v_mul_f32 v{vW1r[T]}, v{vm1}, v{vW1r[T]}", f"v_mul_f32 v{vW1i[T]}, v{vm1}, v{vW1i[T]}"]
        streams.append(s_)
    W += rr(*streams)
    for x in W:
        if isinstance(x, str): a(x)
        else:
            for y in x: a(y)
    stp(a, "consts2")
    a("s_waitcnt vmcnt(0)")
    vFo = 18
    a(f"s_lshl_b32 s{sT0}, s{sRB}, 1")
    a(f"s_add_u32 s{sT0}, s{sT0}, s{sRH}")
    a(f"s_lshl_b32 s{sT0}, s{sT0}, 4")
    a(f"s_add_u32 s{sT0}, s{sT0}, s{sCG}")
    a(f"s_lshl_b32 s{sT0}, s{sT0}, 1")
    a(f"s_add_u32 s{sT0}, s{sT0}, s{sCH}")
    a(f"s_lshl_b32 s{sT0}, s{sT0}, 2")
    a(f"s_add_u32 s{sT0}, s{sT0}, {WS_FB}")
    a(f"v_mov_b32 v{vFo}, s{sT0}")
    a(f"v_mov_b32 v{t0}, s{sNonce}")
    a(f"s_mov_b64 exec, 1")
    a(f"global_store_dword v{vFo}, v{t0}, s[{P_WS}:{P_WS+1}]{SC}")
    a(f"s_mov_b64 exec, -1")
    stp(a, "flagB")


    PE = X+64
    W = [f"v_subrev_u32 v{t0}, 256, v{vAe}"]
    for T in range(2):
        for k in range(7): W.append(f"ds_read_b32 v{PE+7*T+k}, v{t0} offset:{EF0 + 64*T - 256*k}")
    W.append(f"v_subrev_u32 v{t1}, 64, v{vAe4}")
    for k in range(15): W.append(f"ds_read_b32 v{PE+14+k}, v{t1} offset:{E40 - 64*k}")
    tu = [56, 57, 58]
    for k in range(16):
        Ts = [T for T in range(3) if k < NS[T]]
        for T in Ts: W.append(f"v_mul_f32 v{tu[T]}, v{vC2r[T]}, v{U[T]+k}")
        for T in Ts: W.append(f"v_fmac_f32_dpp v{tu[T]}, v{U[T]+k}, v{vC2i[T]} {DPPSW}")
        for T in Ts: W.append(f"v_mov_b32 v{U[T]+k}, v{tu[T]}")
    W.append("s_waitcnt lgkmcnt(0)")
    Pc = [PE+6, PE+13, PE+14+14]
    Pt = [[59, 60], [61, 62], [63, 64]]
    nch = [7, 7, 15]; base = [PE, PE+7, PE+14]
    for stepk in range(1, 15):
        Ts = [T for T in range(3) if stepk < nch[T]]
        dst = {T: Pt[T][stepk & 1] for T in Ts}
        grp = []
        for T in Ts: grp.append(f"v_fma_f32 v{dst[T]}, v{vMr[T]}, v{Pc[T]}, v{base[T] + nch[T]-1-stepk}")
        if len(Ts) == 1: grp.append("s_nop 0")
        for T in Ts:
            grp.append(f"v_fmac_f32_dpp v{dst[T]}, v{Pc[T]}, v{vMi[T]} {DPPSW}")
            Pc[T] = dst[T]
        if len(Ts) == 1: grp.append("s_nop 0")
        W += grp
    W.append("s_nop 1")
    for T in range(3): W.append(f"v_mul_f32 v{Ps[T]}, v{vC2r[T]}, v{Pc[T]}")
    for T in range(3): W.append(f"v_fmac_f32_dpp v{Ps[T]}, v{Pc[T]}, v{vC2i[T]} {DPPSW}")
    W += [f"v_mov_b32 v7, v{vAs}", f"v_mov_b32 v8, v{vCm}",
          f"v_and_b32 v{t0}, 15, v{vL}", f"v_lshrrev_b32 v{t1}, 2, v{t0}", f"v_lshlrev_b32 v{t1}, 1, v{t1}", f"v_add_u32 v{t1}, s{sCH}, v{t1}",
          f"v_mul_u32_u24 v{t1}, {HTS}, v{t1}", f"v_and_b32 v{t2}, 3, v{t0}", f"v_lshlrev_b32 v{t2}, 2, v{t2}", f"v_lshrrev_b32 v{t3}, 4, v{vL}",
          f"v_add_u32 v{t2}, v{t2}, v{t3}", f"s_lshl_b32 s{sT0}, s{sRH}, 4", f"v_add_u32 v{t2}, s{sT0}, v{t2}",
          f"v_lshl_add_u32 v{RA}, v{t2}, 3, v{t1}",
          f"s_lshl_b32 s{sT0}, s{sRB}, 1", f"s_add_u32 s{sT0}, s{sT0}, s{sRH}", f"s_lshl_b32 s{sT0}, s{sT0}, 2",
          f"v_add_u32 v{t3}, s{sT0}, v{t3}", f"v_mul_u32_u24 v{t3}, 88, v{t3}", f"s_mul_i32 s{sT0}, s{sCH}, 20",
          f"v_add_u32 v{t3}, s{sT0}, v{t3}", f"v_lshlrev_b32 v{t3}, 10, v{t3}", f"v_lshl_add_u32 v{GA}, v{t0}, 4, v{t3}"]
    NPF = 16
    weave(a, W, pre[:NPF], start=0)
    stp(a, "prefix")
    Hp = [65, 66, 67]; hx = [56, 57, 58]; bad = 68
    vFl = 24
    a(f"s_lshl_b32 s{sT0}, s{sRB2}, 7")
    a(f"s_lshl_b32 s{sT1}, s{sW}, 5")
    a(f"s_add_u32 s{sT0}, s{sT0}, s{sT1}")
    a(f"v_and_b32 v{vFl}, 7, v{vL}")
    a(f"v_lshlrev_b32 v{vFl}, 2, v{vFl}")
    a(f"v_add_u32 v{vFl}, s{sT0}, v{vFl}")
    a(f"v_add_u32 v{vFl}, {WS_FB}, v{vFl}")
    srd(a, SH, P_WS, WS_G)
    srd(a, SM, P_WS, WS_S + 256*640)
    R = X+64
    FBV = X+74
    def poll_loads():
        a(f"buffer_load_dwordx2 v[{R}:{R+1}], v{pa[0]}, s[{SM}:{SM+3}], 0 offen{SC}")
        a(f"buffer_load_dwordx2 v[{R+2}:{R+3}], v{pa[0]}, s[{SM}:{SM+3}], 0 offen offset:128{SC}")
        a(f"buffer_load_dwordx2 v[{R+4}:{R+5}], v{pa[1]}, s[{SM}:{SM+3}], 0 offen{SC}")
        a(f"buffer_load_dwordx2 v[{R+6}:{R+7}], v{pa[1]}, s[{SM}:{SM+3}], 0 offen offset:128{SC}")
        a(f"buffer_load_dwordx2 v[{R+8}:{R+9}], v{pa[2]}, s[{SM}:{SM+3}], 0 offen{SC}")
        a(f"global_load_dword v{FBV}, v{vFl}, s[{P_WS}:{P_WS+1}]{SC}")
    poll_loads()
    NW0 = 5
    for it in pre[NPF:]:
        for x in it: a(x)
    a(f"s_waitcnt vmcnt({len(pre)-NPF})")
    spin_init(a)
    a(f"s_branch L_pollc")
    a.label("L_poll")
    spin_guard(a, "L_pollx")
    poll_loads()
    a("s_waitcnt vmcnt(0)")
    a.label("L_pollc")
    a(f"v_mov_b32 v{bad}, 0")
    for (ri, mreg) in ((R+1, vm0), (R+3, vm0), (R+5, vm1), (R+7, vm1), (R+9, vm4)):
        a(f"v_cmp_ne_u32 vcc, s{sNonce}, v{ri}")
        a("s_nop 1")
        a(f"v_cndmask_b32 v{t0}, 0, v{mreg}, vcc")
        a(f"v_or_b32 v{bad}, v{bad}, v{t0}")
    a(f"v_cmp_ne_u32 vcc, 0, v{bad}")
    a("s_nop 4")
    a("s_cbranch_vccnz L_poll")
    a.label("L_pollx")
    for (T, ri) in ((0, R), (1, R+2), (2, R+8)): a(f"v_mul_f32 v{Hp[T]}, v{vW0r[T]}, v{ri}")
    for (T, ri) in ((0, R), (1, R+2), (2, R+8)): a(f"v_fmac_f32_dpp v{Hp[T]}, v{ri}, v{vW0i[T]} {DPPSW}")
    for (T, ri) in ((0, R+4), (1, R+6)): a(f"v_fmac_f32 v{Hp[T]}, v{vW1r[T]}, v{ri}")
    for (T, ri) in ((0, R+4), (1, R+6)): a(f"v_fmac_f32_dpp v{Hp[T]}, v{ri}, v{vW1i[T]} {DPPSW}")
    qreduce(Hp, hx)
    a(f"s_mul_i32 s{sT0}, s{sW}, 320")
    a(f"s_add_u32 s{sT0}, s{sT0}, {MISC}")
    a(f"v_add_u32 v{t0}, s{sT0}, v{vC}")
    a(f"ds_write_b32 v{vRw}, v{Hp[0]} offset:{RWB}")
    a(f"ds_write_b32 v{vRw}, v{Hp[1]} offset:{RWB+64}")
    a(f"ds_write_b32 v{t0}, v{Hp[2]} offset:{RWB+256}")
    stp(a, "poll")
    spin_init(a)
    a.label("L_fbpoll")
    a(f"v_cmp_ne_u32 vcc, s{sNonce}, v{FBV}")
    a("s_nop 4")
    a("s_cbranch_vccz L_fbx")
    spin_guard(a, "L_fbx")
    a(f"global_load_dword v{FBV}, v{vFl}, s[{P_WS}:{P_WS+1}]{SC}")
    a("s_waitcnt vmcnt(0)")
    a("s_branch L_fbpoll")
    a.label("L_fbx")
    stp(a, "flagB seen")
    slots = [52, 68, 84, "a88", 100]
    def hreg(slot, i):
        sl = slots[slot]
        if isinstance(sl, str): return f"a[{88+4*i}:{91+4*i}]"
        return f"v[{sl+4*i}:{sl+4*i+3}]"
    def hloads(g):
        return [f"buffer_load_dwordx4 {hreg(g % 5, i)}, v{vH+i}, s[{SH}:{SH+3}], s{sKH} offen{SCL}" for i in range(4)]
    a(f"s_mul_i32 s{sKH}, s{sW}, 12")
    a(f"s_add_u32 s{sKH}, s{sKH}, 40")
    a(f"s_lshl_b32 s{sKH}, s{sKH}, 10")
    a("s_waitcnt lgkmcnt(0)")
    early = []
    for g in range(5):
        hl = hloads(g)
        early += [[x] for x in hl[:3]] + [[hl[3], f"s_add_u32 s{sKH}, s{sKH}, 1024"]]
    sOff = [73, 74, 75, 76, 77]
    for it in range(5):
        a(f"s_mul_i32 s{sT0}, s{sCG}, 5")
        a(f"s_add_u32 s{sT0}, s{sT0}, {it}")
        a(f"s_lshr_b32 s{sT1}, s{sT0}, 2")
        a(f"s_lshl_b32 s{sT1}, s{sT1}, 10")
        a(f"s_and_b32 s{sT0}, s{sT0}, 3")
        a(f"s_lshl_b32 s{sT0}, s{sT0}, 8")
        a(f"s_add_u32 s{sOff[it]}, s{sT0}, s{sT1}")
    for it in early[:4]:
        for x in it: a(x)
    early = early[4:]
    a("s_barrier")
    Hw = [X+48, X+49, X+50]
    a(f"s_mul_i32 s{sT0}, s{sCH}, 320")
    a(f"s_add_u32 s{sT0}, s{sT0}, {MISC}")
    a(f"v_add_u32 v{t0}, s{sT0}, v{vAs2}")
    hr = [X+40, X+41, X+42, X+43, X+44, X+45, X+46, X+47]
    a(f"ds_read_b32 v{hr[0]}, v{t0} offset:{RWB}")
    a(f"ds_read_b32 v{hr[1]}, v{t0} offset:{RWB+640}")
    a(f"ds_read_b32 v{hr[2]}, v{t0} offset:{RWB+64}")
    a(f"ds_read_b32 v{hr[3]}, v{t0} offset:{RWB+704}")
    for w in range(4): a(f"ds_read_b32 v{hr[4+w]}, v{vCm2} offset:{RWB+256+320*w}")
    a("s_waitcnt lgkmcnt(0)")
    W = [f"v_add_f32 v{Hw[0]}, v{hr[0]}, v{hr[1]}", f"v_add_f32 v{Hw[1]}, v{hr[2]}, v{hr[3]}", f"v_add_f32 v{hr[4]}, v{hr[4]}, v{hr[5]}",
         f"v_add_f32 v{hr[6]}, v{hr[6]}, v{hr[7]}", f"v_add_f32 v{Hw[2]}, v{hr[4]}, v{hr[6]}"]
    for T in range(3): W.append(f"v_fmac_f32 v{Ps[T]}, v{vHr[T]}, v{Hw[T]}")
    W.append("s_nop 0")
    for T in range(3): W.append(f"v_fmac_f32_dpp v{Ps[T]}, v{Hw[T]}, v{vHi[T]} {DPPSW}")
    cur = list(Ps)
    W.append("s_nop 0")
    for k in range(16):
        Ts = [T for T in range(3) if k < NS[T]]
        for T in Ts: W.append(f"v_fmac_f32 v{U[T]+k}, v{vLr[T]}, v{cur[T]}")
        for T in Ts:
            W.append(f"v_fmac_f32_dpp v{U[T]+k}, v{cur[T]}, v{vLi2[T]} {DPPSW}")
            cur[T] = U[T]+k
    for T in range(3):
        for k in range(NS[T]//2):
            W.append(f"v_cvt_pk_bf16_f32 v{X + 16*T + k}, v{U[T]+2*k}, v{U[T]+2*k+1}")
    W += [f"v_and_b32 v{t0}, 15, v{vL}", f"s_lshl_b32 s{sT0}, s{sCH}, 5", f"v_add_u32 v{t1}, s{sT0}, v{t0}",
          f"v_mul_u32_u24 v{t1}, {HTS}, v{t1}", f"v_lshl_add_u32 v{t1}, v{vSig}, 5, v{t1}",
          f"v_add_u32 v{t0}, 64, v{t0}", f"v_mul_u32_u24 v{t0}, {HTS}, v{t0}", f"v_lshl_add_u32 v{t0}, v{vSig}, 5, v{t0}",
          f"s_lshl_b32 s{sT0}, s{sCH}, 4", f"v_add_u32 v{t0}, s{sT0}, v{t0}"]
    weave(a, W, early, start=6)
    stp(a, "passB")
    a(f"ds_write_b128 v{t1}, v[{X}:{X+3}]")
    a(f"ds_write_b128 v{t1}, v[{X+4}:{X+7}] offset:16")
    a(f"ds_write_b128 v{t1}, v[{X+16}:{X+19}] offset:{16*HTS}")
    a(f"ds_write_b128 v{t1}, v[{X+20}:{X+23}] offset:{16*HTS+16}")
    a(f"ds_write_b128 v{t0}, v[{X+32}:{X+35}]")
    a("s_waitcnt lgkmcnt(0)")
    a("s_barrier")
    DT = X+64
    for it in range(5):
        a(f"ds_read_b64_tr_b16 v[{DT+4*it}:{DT+4*it+1}], v{RA} offset:{it*16*HTS}")
        a(f"ds_read_b64_tr_b16 v[{DT+4*it+2}:{DT+4*it+3}], v{RA} offset:{it*16*HTS+8*HTS}")
    for it in range(5):
        a(f"s_waitcnt lgkmcnt({2*(4-it)})")
        a(f"buffer_store_dwordx4 v[{DT+4*it}:{DT+4*it+3}], v{GA}, s[{SH}:{SH+3}], s{sOff[it]} offen{SC}")
    stp(a, "hA stored")
    accB = lambda j, i: 120 + (j*4+i)*4
    def accA(j, i):
        t = j*4+i
        return 200 + 4*t if t < 14 else 26 + 4*(t-14)
    def wreg(g, j): b = wbase(g, j); return f"a[{b}:{b+3}]"
    fifo = [("h", g) for g in range(5) for _ in range(4)] + [("st", 0)]*5
    def issue(x, tag):
        a(x); fifo.append(tag)
    def wait_for(pred):
        idx = [i for i, tg in enumerate(fifo) if pred(tg)]
        if not idx: return
        n = len(fifo) - 1 - max(idx)
        assert n <= 63, n
        a(f"s_waitcnt vmcnt({n})")
        del fifo[:max(idx)+1]
    sKS, sKS4 = 85, 86
    a(f"s_mul_i32 s{sKS}, s{sCB}, 88")
    a(f"s_mul_i32 s{sT0}, s{sW}, 5")
    a(f"s_add_u32 s{sKS}, s{sKS}, s{sT0}")
    a(f"s_mul_i32 s{sKS}, s{sKS}, 5120")
    a(f"s_add_u32 s{sKS4}, s{sKS}, 4096")
    wq = []
    for g in range(7+NW0, 12):
        st_ = wstep(g)
        for j in range(5): wq.append((("wg", g), 0, st_[j], st_[5:] if j == 4 else []))
    for sidx in range(10):
        for j in range(5):
            x = wload(sidx, j).replace(f"s{sKW} offen", f"s{sKS} offen").replace(f"s{sKW4} offen", f"s{sKS4} offen")
            inc = (20-4)*5120 if sidx == 4 else 5120
            wq.append((("w", sidx), sidx, x, [f"s_add_u32 s{sKS}, s{sKS}, {inc}", f"s_add_u32 s{sKS4}, s{sKS4}, {inc}"] if j == 4 else []))
    RATE = 3
    LA, OA = 2, 7
    vG = [12, 14, 16, 22]
    vLW = 25
    XR, GR, DR = 84, 94, 100
    RS = 336; RED = 64*RS
    fill = []
    for i in range(5):
        w1, w2, w3 = t0, t1, t3
        fill += [f"v_add_u32 v{w1}, {256*i}, v0", f"v_mul_u32_u24 v{w2}, 3277, v{w1}", f"v_lshrrev_b32 v{w2}, 16, v{w2}",
                 f"v_mul_u32_u24 v{w3}, 20, v{w2}", f"v_sub_u32 v{w3}, v{w1}, v{w3}", f"v_mul_u32_u24 v{LA+i}, {RS}, v{w2}",
                 f"v_lshl_add_u32 v{LA+i}, v{w3}, 4, v{LA+i}", f"s_lshl_b32 s{sT0}, s{sRB2}, 6", f"v_add_u32 v{w2}, s{sT0}, v{w2}",
                 f"v_mul_u32_u24 v{w2}, 640, v{w2}", f"s_mul_i32 s{sT1}, s{sCB}, 80", f"v_lshl_add_u32 v{w3}, v{w3}, 2, s{sT1}",
                 f"v_add_u32 v{w2}, v{w2}, v{w3}", f"v_lshlrev_b32 v{OA+i}, 2, v{w2}"]
    fill += [f"v_and_b32 v{t0}, 15, v{vL}", f"v_lshrrev_b32 v{t1}, 2, v{t0}", f"v_lshlrev_b32 v{t1}, 4, v{t1}", f"v_and_b32 v{t0}, 3, v{t0}",
             f"v_add_u32 v{t0}, v{t0}, v{t1}", f"s_lshl_b32 s{sT0}, s{sRB2}, 6", f"v_add_u32 v{t1}, s{sT0}, v{t0}",
             f"v_lshlrev_b32 v{t1}, 2, v{t1}", f"v_add_u32 v50, {WS_G}, v{t1}",
             f"v_mul_u32_u24 v{t0}, {RS}, v{t0}", f"v_lshrrev_b32 v{t3}, 4, v{vL}", f"v_lshl_add_u32 v{t0}, v{t3}, 4, v{t0}",
             f"s_mul_i32 s{sT0}, s{sW}, {RED}", f"v_add_u32 v{vLW}, s{sT0}, v{t0}"]
    for g in range(22):
        glu = g < 12
        slot = g % 5
        wg = g if glu else g-12
        wait_for(lambda tg: tg == ("h", g) or (not glu and tg == ("w", g-12)) or (glu and tg == ("wg", g)))
        if "kstamp" in FLAGS:
            if g > 0:
                a("s_waitcnt lgkmcnt(0)"); a(f"v_writelane_b32 v23, s38, {g-1}")
            a("s_memtime s[38:39]")
        if g == 3:
            wait_for(lambda tg: tg[0] == "st")
            a(f"v_add_u32 v{t0}, {WS_FA-WS_FB}, v{vFo}")
            a(f"v_mov_b32 v{t1}, s{sNonce}")
            a(f"s_mov_b64 exec, 1")
            issue(f"global_store_dword v{t0}, v{t1}, s[{P_WS}:{P_WS+1}]{SC}", ("fa", 0))
            a(f"s_mov_b64 exec, -1")
        if g == 5:
            a(f"v_add_u32 v{vFl}, {WS_FA-WS_FB}, v{vFl}")
            issue(f"global_load_dword v{t2}, v{vFl}, s[{P_WS}:{P_WS+1}]{SC}", ("fp", 0))
        if g == 7:
            wait_for(lambda tg: tg[0] == "fp")
            spin_init(a)
            a.label("L_fachk")
            a(f"v_cmp_ne_u32 vcc, s{sNonce}, v{t2}")
            a("s_nop 4")
            a("s_cbranch_vccz L_faok")
            spin_guard(a, "L_faok")
            a(f"global_load_dword v{t2}, v{vFl}, s[{P_WS}:{P_WS+1}]{SC}")
            a("s_waitcnt vmcnt(0)")
            a("s_branch L_fachk")
            a.label("L_faok")
        if g == 15:
            a("s_barrier")
            for i in range(4): issue(f"global_load_dword v{vG[i]}, v50, s[{P_WS}:{P_WS+1}] offset:{16*i}{SC}", ("g", 0))
        mf = []
        for j in range(5):
            for i in range(4):
                d = accB(j, i) if glu else accA(j, i)
                c = "0" if g in (0, 12) else f"v[{d}:{d+3}]"
                mf.append(f"v_mfma_f32_16x16x32_bf16 v[{d}:{d+3}], {wreg(wg, j)}, {hreg(slot, i)}, {c}")
        nw = 0
        for idx, x in enumerate(mf):
            a(x)
            if idx % 4 == 1 and nw < RATE and wq and wq[0][1] < g:
                tg, e_, ins, post = wq.pop(0); issue(ins, tg); nw += 1
                for y in post: a(y)
            elif g >= 8 and fill and idx % 4 != 1: a(fill.pop(0))
        while nw < RATE and wq and wq[0][1] <= g:
            tg, e_, ins, post = wq.pop(0); issue(ins, tg); nw += 1
            for y in post: a(y)
        gn = g + 5
        if gn < 22:
            if gn == 12: a(f"s_mul_i32 s{sKH}, s{sW}, {5*1024}")
            elif gn == 17: a(f"s_add_u32 s{sKH}, s{sKH}, {15*1024}")
            for x in hloads(gn): issue(x, ("h", gn))
            a(f"s_add_u32 s{sKH}, s{sKH}, 1024")
        if g == 17:
            for i in range(5):
                a(f"v_lshrrev_b32 v{t0}, 1, v{OA+i}")
                issue(f"global_load_dwordx2 v[{XR+2*i}:{XR+2*i+1}], v{t0}, s[{P_X}:{P_X+1}]", ("f", 0))
            for i in range(5):
                a(f"v_mul_u32_u24 v{t1}, 49933, v{LA+i}")
                a(f"v_lshrrev_b32 v{t1}, 24, v{t1}")
                a(f"s_lshl_b32 s{sT0}, s{sRB2}, 6")
                a(f"v_add_u32 v{t1}, s{sT0}, v{t1}")
                a(f"v_lshlrev_b32 v{t1}, 2, v{t1}")
                a(f"v_add_u32 v{t1}, {WS_G}, v{t1}")
                issue(f"global_load_dword v{GR+i}, v{t1}, s[{P_WS}:{P_WS+1}]{SC}", ("f", 0))
        if g == 19:
            for i in range(5):
                a(f"v_mul_u32_u24 v{t1}, 49933, v{LA+i}")
                a(f"v_lshrrev_b32 v{t1}, 24, v{t1}")
                a(f"v_mul_u32_u24 v{t1}, {RS}, v{t1}")
                a(f"v_sub_u32 v{t1}, v{LA+i}, v{t1}")
                a(f"v_lshrrev_b32 v{t1}, 1, v{t1}")
                a(f"s_mul_i32 s{sT1}, s{sCB}, 160")
                a(f"v_add_u32 v{t1}, s{sT1}, v{t1}")
                issue(f"global_load_dwordx2 v[{DR+2*i}:{DR+2*i+1}], v{t1}, s[{P_DSK}:{P_DSK+1}]", ("f", 0))
    assert not fill and not wq, (len(fill), len(wq))
    if "kstamp" in FLAGS:
        a("s_waitcnt lgkmcnt(0)"); a(f"v_writelane_b32 v23, s38, 21")
        a("s_memtime s[38:39]"); a("s_waitcnt lgkmcnt(0)"); a(f"v_writelane_b32 v23, s38, 22")
        a(f"s_lshl_b32 s{sT0}, s2, 2"); a(f"s_add_u32 s{sT0}, s{sT0}, s{sW}"); a(f"s_lshl_b32 s{sT0}, s{sT0}, 8")
        a(f"s_add_u32 s{sT0}, s{sT0}, {WS_STAMP + 0x80000}")
        a(f"v_lshl_add_u32 v{t0}, v{vL}, 2, s{sT0}")
        a(f"global_store_dword v{t0}, v23, s[{P_WS}:{P_WS+1}]")
    stp(a, "K2 loop")
    wait_for(lambda tg: tg[0] == "g")
    for j in range(5):
        for i in range(4):
            A_r, B_r = accA(j, i), accB(j, i)
            for h in (0, 2):
                a(f"v_pk_add_f32 v[{A_r+h}:{A_r+h+1}], v[{A_r+h}:{A_r+h+1}], v[{B_r+h}:{B_r+h+1}] neg_lo:[0,1] neg_hi:[0,1]")
            for h in (0, 2):
                a(f"v_pk_fma_f32 v[{B_r+h}:{B_r+h+1}], v[{vG[i]}:{vG[i]+1}], v[{A_r+h}:{A_r+h+1}], v[{B_r+h}:{B_r+h+1}] op_sel_hi:[0,1,1]")
            a(f"ds_write_b128 v{vLW}, v[{B_r}:{B_r+3}] offset:{i*4*RS + 64*j}")
    a("s_waitcnt lgkmcnt(0)")
    a("s_barrier")
    stp(a, "red written")
    for i in range(5):
        b = 120 + 16*i
        for w in range(4):
            a(f"ds_read_b128 v[{b+4*w}:{b+4*w+3}], v{LA+i} offset:{w*RED}")
    a("s_waitcnt vmcnt(0)")
    for i in range(5):
        b = 120 + 16*i
        a(f"s_waitcnt lgkmcnt({min(15,4*(4-i))})")
        a(f"v_pk_add_f32 v[{b}:{b+1}], v[{b}:{b+1}], v[{b+4}:{b+5}]")
        a(f"v_pk_add_f32 v[{b+2}:{b+3}], v[{b+2}:{b+3}], v[{b+6}:{b+7}]")
        a(f"v_pk_add_f32 v[{b+8}:{b+9}], v[{b+8}:{b+9}], v[{b+12}:{b+13}]")
        a(f"v_pk_add_f32 v[{b+10}:{b+11}], v[{b+10}:{b+11}], v[{b+14}:{b+15}]")
        a(f"v_pk_add_f32 v[{b}:{b+1}], v[{b}:{b+1}], v[{b+8}:{b+9}]")
        a(f"v_pk_add_f32 v[{b+2}:{b+3}], v[{b+2}:{b+3}], v[{b+10}:{b+11}]")
        x0, d0_ = XR+2*i, DR+2*i
        for h in range(2):
            a(f"v_lshlrev_b32 v{t1}, 16, v{x0+h}")
            a(f"v_and_b32 v{t2}, 0xffff0000, v{x0+h}")
            a(f"v_lshlrev_b32 v{t3}, 16, v{d0_+h}")
            a(f"v_and_b32 v{t4}, 0xffff0000, v{d0_+h}")
            a(f"v_mul_f32 v{t1}, v{t1}, v{t3}")
            a(f"v_mul_f32 v{t2}, v{t2}, v{t4}")
            a(f"v_fmac_f32 v{b+2*h}, v{GR+i}, v{t1}")
            a(f"v_fmac_f32 v{b+2*h+1}, v{GR+i}, v{t2}")
        a(f"global_store_dwordx4 v{OA+i}, v[{b}:{b+3}], s[{P_OUT}:{P_OUT+1}]")
    stp(a, "out stored")
    if LSTAMP:
        pass
    stp.dump(a, sW, sT0, P_WS, WS_STAMP)
    a.label("L_end")
    a("s_endpgm")
    return a.text()

HEADER = open("gated_mix__ssm_conv_s5__glu_gated_bilinear__prompt.s.ref").read().split("; Override launch")[0]
def main():
    out = HEADER
    out += "; Override launch geometry by editing the next line. Harness parses it; keep it on one line.\n"
    out += "; @launch grid=(256,1,1) block=(256,1,1) lds=163840\n"
    out += '.amdgcn_target "amdgcn-amd-amdhsa--gfx950"\n.text\n'
    out += f".globl {KNAME}\n.p2align 8\n.type {KNAME},@function\n" + gen()
    out += f""".section .rodata,"a"
.p2align 6
.amdhsa_kernel {KNAME}
  .amdhsa_next_free_vgpr 512
  .amdhsa_next_free_sgpr 102
  .amdhsa_accum_offset 256
  .amdhsa_group_segment_fixed_size 0
  .amdhsa_kernarg_size 136
  .amdhsa_user_sgpr_count 2
  .amdhsa_user_sgpr_kernarg_segment_ptr 1
  .amdhsa_system_sgpr_workgroup_id_x 1
  .amdhsa_float_denorm_mode_32 3
.end_amdhsa_kernel
"""
    path = [x for x in sys.argv[1:] if not x.startswith("--")][0]
    open(path, "w").write(out)
    json.dump([[d[i] for i in sorted(d)] for d in NAMES], open(path + ".names", "w"))
main()
```

```python
import sys, json
from asmlib import *

FLAGS = set(x[2:] for x in sys.argv[1:] if x.startswith("--"))
STAMP = "stamp" in FLAGS
NAMES = []
KNAME = "gated_mix__ssm_conv_s5__glu_gated_bilinear__prompt_kernel"

WS_H   = 0
WS_G   = 0xB00000
WS_S   = 0xB10000
WS_FB  = 0xB40000
WS_FA  = 0xB42000
WS_PF  = 0xB44000
WS_W2  = 0xC00000
W2_SIZE = 8*88*5*1024
WS_STAMP = 0x1000000
LOG2E = 0x3fb8aa3b
INV2PI = 0x3e22f983
SC = "" if "nosc" in FLAGS else " sc1"
SCL = "" if ("nosc" in FLAGS or "noscl" in FLAGS) else " sc1"
LSTAMP = "lstamp" in FLAGS

def srd(a, d, base, size, add=0):
    o = []
    if add == 0:
        o += [f"s_mov_b32 s{d}, s{base}", f"s_mov_b32 s{d+1}, s{base+1}"]
    elif add > 0:
        o += [f"s_add_u32 s{d}, s{base}, {add}", f"s_addc_u32 s{d+1}, s{base+1}, 0"]
    else:
        o += [f"s_sub_u32 s{d}, s{base}, {-add}", f"s_subb_u32 s{d+1}, s{base+1}, 0"]
    o += [f"s_mov_b32 s{d+2}, {size}", f"s_mov_b32 s{d+3}, 0x00020000"]
    if a is None: return o
    for x in o: a(x)

class Stamper:
    def __init__(self, store):
        self.store = store; self.n = 0; self.tmp = [98, 100]; self.names = {}
        NAMES.append(self.names)
    def __call__(self, a, name=""):
        if not STAMP: return
        if self.n > 0:
            a(f"s_mov_b32 s{self.store[self.n-1]}, s{self.tmp[(self.n-1)&1]}")
        assert self.n < len(self.store), "too many stamps"
        a(f"s_memtime s[{self.tmp[self.n&1]}:{self.tmp[self.n&1]+1}]")
        self.names[self.n] = name
        self.n += 1
    def dump(self, a, sW, sT0, P_WS, base):
        if not STAMP: return
        a("s_waitcnt vmcnt(0) lgkmcnt(0)")
        self(a, "end")
        a("s_waitcnt lgkmcnt(0)")
        a(f"s_mov_b32 s{self.store[self.n-1]}, s{self.tmp[(self.n-1)&1]}")
        a(f"s_lshl_b32 s{sT0}, s2, 2")
        a(f"s_add_u32 s{sT0}, s{sT0}, s{sW}")
        a(f"s_lshl_b32 s{sT0}, s{sT0}, 7")
        a(f"s_add_u32 s{sT0}, s{sT0}, {base}")
        a(f"v_mov_b32 v2, s{sT0}")
        for i in range(self.n):
            a(f"v_mov_b32 v3, s{self.store[i]}")
            a(f"global_store_dword v2, v3, s[{P_WS}:{P_WS+1}] offset:{4*i}")

def rr(*streams):
    out = []
    n = max(len(s) for s in streams)
    for i in range(n):
        for s in streams:
            if i < len(s): out.append(s[i])
    return out

def weave(a, work, mem, start=0, every=None):
    n = len(work); m = len(mem)
    if m == 0: pos = []
    elif every is None: pos = [start + int((n - start) * i / m) for i in range(m)]
    else: pos = [start + every*i for i in range(m)]
    mi = 0
    def emit(it):
        if isinstance(it, str): a(it)
        else:
            for x in it: a(x)
    for i, w in enumerate(work):
        while mi < m and pos[mi] <= i:
            emit(mem[mi]); mi += 1
        emit(w)
    while mi < m:
        emit(mem[mi]); mi += 1

SPIN_MAX = 100000
def spin_init(a): a("s_mov_b32 s95, 0")
def spin_guard(a, out_label):
    a("s_add_u32 s95, s95, 1")
    a(f"s_cmp_gt_u32 s95, {SPIN_MAX}")
    a(f"s_cbranch_scc1 {out_label}")

DPPSW = "quad_perm:[1,0,3,2] row_mask:0xf bank_mask:0xf"
P_X, P_LRE, P_LIM, P_BRE, P_BIM, P_CRE, P_CIM, P_LDT = 4,6,8,10,12,14,16,18
P_DSK, P_BX, P_WG, P_WU = 20,22,24,26
P_WD, P_GW, P_OUT, P_DBG = 28,30,32,34
P_WS = 36

def gen():
    a = Asm()
    stp = Stamper([96,97,22,23,6,7,8,9,18,19,10,11,12,13,24,25,26,27,95,94,73,74,75,76,77,80,81,82,83])
    SX, SG, SU, SB0, SB1, SB2, SM = 40,44,48,52,56,60,64
    sEX = 38
    sW, sRH, sCH, sRB, sCG = 68,69,70,71,72
    sDB, sCur, sD, sC3, sStage = 73,74,75,76,77
    sKX, sKG, sKU, sKB = 78,79,80,81
    sOX, sOG, sOU, sOB, sOB2 = 82,83,84,85,86
    sT0, sT1, sT2 = 87,88,89
    sF = 87
    sBlk, sRB2, sCB = 90, 91, 92
    sT3 = 93
    sNonce = 3
    vL = 1
    vDX, vDW, vDB = 2, 6, 9
    vX0, vX1, vWa, vWb, vWc, vB0, vB1 = 12,13,14,15,16,17,18
    t0, t1, t2, t3, t4 = 19,20,21,22,23
    vA  = [24,25,26]; vBx = [27,28,29]; vLRE = [30,31,32]; vLIM = [33,34,35]
    vLr = [36,37,38]; vLi = [39,40,41]; vWSr = [42,43,44]; vWSi = [45,46,47]
    vSgn, vNon, vSig, vWp = 48, 49, 50, 51
    vPF = 52
    SCR = 52
    vC, vAe, vAe4, vRw = 90, 91, 92, 93
    pa = [94, 95, 96]
    GLD = 56
    vGst, vGv = 71, 72
    RA, GA = 2, 3
    Ps = [4, 5, 6]
    vAs, vCm = 97, 98
    vAs2, vCm2 = 7, 8
    vH = 116
    ACC = 120
    BUF = 51200
    RX, RG, RU, RB = 0, 16384, 28672, 40960
    MISC = 3*BUF
    SWB, EF, E4, RWB = 0, 1280, 5120, 7104
    EF0 = EF + 7*256; E40 = E4 + 15*64
    HTS = 272
    def acc(n, i): return ACC + n*16 + 4*i
    SA, SBt, S4 = ACC+96, ACC+112, ACC+128
    CL = 52
    PK = 100
    vPWs, vPCs, vPWd, vPCd, vPtr = 61, 63, 64, 66, 68
    TP = 69

    a.label(KNAME)
    a(f"s_cmp_ge_u32 s2, 256")
    a(f"s_cbranch_scc1 L_end")
    if "nocodepf" not in FLAGS:
        a("s_getpc_b64 s[40:41]")
        a.label("L_pc")
        a("v_lshlrev_b32 v2, 2, v0")
        a("s_lshr_b32 s42, s2, 3")
        a("s_lshl_b32 s42, s42, 10")
        a("v_add_u32 v2, s42, v2")
        a("v_min_u32 v2, L_codeend-L_pc-4, v2")
        a("v_mov_b32 v3, s41")
        a("v_add_co_u32 v2, vcc, s40, v2")
        a("v_addc_co_u32 v3, vcc, 0, v3, vcc")
        a("global_load_dword v99, v[2:3], off")
    a(f"s_load_dwordx16 s[4:19], s[0:1], 0")
    a(f"s_load_dwordx8 s[20:27], s[0:1], 64")
    a(f"s_load_dwordx8 s[28:35], s[0:1], 96")
    a(f"s_load_dwordx2 s[36:37], s[0:1], 128")
    a(f"s_memrealtime s[{sEX}:{sEX+1}]")
    stp(a, "s0")
    a(f"v_lshrrev_b32 v{t0}, 6, v0")
    a(f"v_and_b32 v{vL}, 63, v0")
    a(f"s_and_b32 s{sT0}, s2, 1")
    a(f"v_readfirstlane_b32 s{sW}, v{t0}")
    a(f"s_lshl_b32 s{sT0}, s{sT0}, 3")
    a(f"s_lshr_b32 s{sT1}, s2, 3")
    a(f"s_and_b32 s{sRB}, s{sT1}, 7")
    a(f"s_add_u32 s{sRB}, s{sRB}, s{sT0}")
    a(f"s_lshr_b32 s{sT0}, s2, 1")
    a(f"s_and_b32 s{sT0}, s{sT0}, 3")
    a(f"s_lshl_b32 s{sT2}, s{sT0}, 2")
    a(f"s_lshr_b32 s{sT3}, s2, 6")
    a(f"s_add_u32 s{sCG}, s{sT2}, s{sT3}")
    a(f"s_lshl_b32 s{sT0}, s{sT0}, 3")
    a(f"s_and_b32 s{sT1}, s{sT1}, 7")
    a(f"s_add_u32 s{sRB2}, s{sT0}, s{sT1}")
    a(f"s_and_b32 s{sT0}, s2, 1")
    a(f"s_lshl_b32 s{sT0}, s{sT0}, 2")
    a(f"s_add_u32 s{sCB}, s{sT0}, s{sT3}")
    a(f"s_lshr_b32 s{sRH}, s{sW}, 1")
    a(f"s_and_b32 s{sCH}, s{sW}, 1")
    a(f"v_lshrrev_b32 v{t0}, 3, v{vL}")
    a(f"v_and_b32 v{t1}, 2, v{t0}")
    a(f"s_lshl_b32 s{sT0}, s{sCH}, 2")
    a(f"v_or_b32 v{t1}, s{sT0}, v{t1}")
    a(f"v_and_b32 v{t2}, 7, v{vL}")
    a(f"v_xor_b32 v{t1}, v{t1}, v{t2}")
    a(f"s_lshl_b32 s{sT0}, s{sRB}, 7")
    a(f"s_lshl_b32 s{sT1}, s{sW}, 5")
    a(f"s_add_u32 s{sT0}, s{sT0}, s{sT1}")
    a(f"v_add_u32 v{t0}, s{sT0}, v{t0}")
    a(f"v_mul_u32_u24 v{t0}, 1280, v{t0}")
    a(f"v_lshl_add_u32 v{vDX}, v{t1}, 4, v{t0}")
    for i in range(1,4):
        a(f"v_add_u32 v{vDX+i}, {9216*i}, v{vDX}")
    a(f"s_lshl_b32 s{sOX}, s{sW}, 12")
    a(f"s_mul_i32 s{sOG}, s{sW}, 3072")
    a(f"s_add_u32 s{sOU}, s{sOG}, {RU}")
    a(f"s_add_u32 s{sOG}, s{sOG}, {RG}")
    for r in (sKX, sKG, sKU, sKB): a(f"s_mov_b32 s{r}, 0")
    a("s_waitcnt lgkmcnt(0)")
    a(f"s_or_b32 s{sT0}, s2, s{sW}")
    a(f"s_cmp_lg_u32 s{sT0}, 0")
    a(f"s_cbranch_scc1 L_no_nonce")
    a(f"s_or_b32 s{sT0}, s{sEX}, 1")
    a(f"v_mov_b32 v{t0}, s{sT0}")
    a(f"v_mov_b32 v{t1}, 0")
    a(f"s_mov_b64 exec, 1")
    a(f"global_store_dword v{t1}, v{t0}, s[{P_DBG}:{P_DBG+1}]{SC}")
    a(f"s_mov_b64 exec, -1")
    a.label("L_no_nonce")
    srd(a, SX, P_X, 2621440)
    def dma(vo, S, so, off):
        o = f" offset:{off}" if off else ""
        return f"buffer_load_dwordx4 v{vo}, s[{S}:{S+3}], s{so} offen{o} lds"
    def dgrp(base_expr, items):
        g = [[f"s_add_u32 m0, {base_expr}", "s_nop 0", items[0]]]
        g += [[x] for x in items[1:]]
        return g
    def stage_x(b):  return dgrp(f"s{sOX}, {b}", [dma(vDX+i, SX, sKX, 1024*i) for i in range(4)])
    def stage_g(b):  return dgrp(f"s{sOG}, {b}", [dma(vDW+i, SG, sKG, 1024*i) for i in range(3)])
    def stage_u(b):  return dgrp(f"s{sOU}, {b}", [dma(vDW+i, SU, sKU, 1024*i) for i in range(3)])
    def stage_b(b):  return dgrp(f"s{sOB}, {b}", [dma(vDB, SB0, sKB, 0), dma(vDB+1, SB1, sKB, 1024)]) + dgrp(f"s{sOB2}, {b}", [dma(vDB+2, SB2, sKB, 0)])
    wW = [f"s_mul_i32 s{sT0}, s{sW}, 192", f"s_mul_i32 s{sT1}, s{sCG}, 192"]
    for i in range(3):
        wW += [f"v_add_u32 v{t0}, s{sT0}, v{vL}"]
        if i: wW += [f"v_add_u32 v{t0}, {64*i}, v{t0}"]
        wW += [f"v_mul_u32_u24 v{t1}, 43691, v{t0}", f"v_lshrrev_b32 v{t1}, 19, v{t1}", f"v_mul_u32_u24 v{t2}, 12, v{t1}",
               f"v_sub_u32 v{t2}, v{t0}, v{t2}", f"v_lshrrev_b32 v{t3}, 2, v{t1}", f"v_and_b32 v{t3}, 2, v{t3}",
               f"v_xor_b32 v{t2}, v{t2}, v{t3}", f"v_mul_u32_u24 v{t1}, 3072, v{t1}", f"v_lshl_add_u32 v{t1}, v{t2}, 4, v{t1}",
               f"v_add_u32 v{vDW+i}, s{sT1}, v{t1}"]
        if i: wW += [f"v_subrev_u32 v{vDW+i}, {1024*i}, v{vDW+i}"]
    wW += srd(None, SG, P_WG, 1966080) + srd(None, SU, P_WU, 1966080)
    weave(a, wW, stage_x(0), start=0)
    wB = [f"s_mul_i32 s{sT3}, s{sCG}, 40", f"s_mul_i32 s{sT2}, s{sW}, 3",
          [f"s_cmp_eq_u32 s{sW}, 3", f"s_cselect_b32 s{sT2}, 8, s{sT2}"],
          f"s_add_u32 s{sD}, s{sT2}, 2",
          [f"s_cmp_ge_u32 s{sW}, 2", f"s_cselect_b32 s{sT0}, 1, 0"],
          f"s_sub_u32 s{sD}, s{sD}, s{sT0}",
          f"s_lshl_b32 s{sOB}, s{sT2}, 10", f"s_add_u32 s{sOB}, s{sOB}, {RB}",
          f"s_lshl_b32 s{sOB2}, s{sD}, 10", f"s_add_u32 s{sOB2}, s{sOB2}, {RB}",
          f"v_lshrrev_b32 v{t3}, 4, v{vL}", f"v_lshlrev_b32 v{t3}, 1, v{t3}", f"v_and_b32 v{t4}, 7, v{vL}"]
    for i in range(3):
        wB += [f"s_mov_b32 s{sT0}, s{sT2}" if i == 0 else (f"s_add_u32 s{sT0}, s{sT2}, 1" if i == 1 else f"s_mov_b32 s{sT0}, s{sD}")]
        wB += [[f"s_cmp_ge_u32 s{sT0}, 5", f"s_cselect_b32 s{sT1}, 1, 0", f"s_cselect_b32 s{sC3}, 5, 0"],
               f"s_sub_u32 s{sT0}, s{sT0}, s{sC3}", f"s_lshl_b32 s{sT0}, s{sT0}, 3", f"s_add_u32 s{sT0}, s{sT0}, s{sT3}",
               f"v_lshrrev_b32 v{t0}, 3, v{vL}", f"v_add_u32 v{t0}, s{sT0}, v{t0}", f"v_mul_u32_u24 v{t0}, 1280, v{t0}",
               f"v_add_u32 v{t1}, s{sT1}, v{t3}", f"v_xor_b32 v{t1}, v{t1}, v{t4}", f"v_lshl_add_u32 v{t0}, v{t1}, 4, v{t0}",
               f"v_add_u32 v{vDB+i}, {4096 - (1024*i if i < 2 else 0)}, v{t0}"]
    for i, S in enumerate([SB0, SB1, SB2]):
        wB += [[f"s_cmp_ge_u32 s{sW}, {2 if i < 2 else 1}", f"s_cselect_b32 s{S}, s{P_BIM}, s{P_BRE}", f"s_cselect_b32 s{S+1}, s{P_BIM+1}, s{P_BRE+1}"],
               [f"s_sub_u32 s{S}, s{S}, 4096", f"s_subb_u32 s{S+1}, s{S+1}, 0"],
               f"s_mov_b32 s{S+2}, {819200+4096}", f"s_mov_b32 s{S+3}, 0x00020000"]
    weave(a, wB, stage_g(0) + stage_u(0), start=0)
    c1, c2 = TP, TP+1
    wC = [f"v_and_b32 v{t0}, 15, v{vL}", f"v_lshrrev_b32 v{t0}, 1, v{t0}", f"s_mul_i32 s{sT0}, s{sCG}, 40",
          f"s_lshl_b32 s{sT1}, s{sCH}, 4", f"s_add_u32 s{sT1}, s{sT1}, s{sT0}", f"v_add_u32 v{c1}, s{sT1}, v{t0}",
          f"v_lshlrev_b32 v{c1}, 1, v{c1}", f"s_add_u32 s{sT0}, s{sT0}, 32", f"v_add_u32 v{c2}, s{sT0}, v{t0}",
          f"v_lshlrev_b32 v{c2}, 1, v{c2}"]
    wC += [f"s_mul_i32 s{sT0}, s2, 52429", f"s_lshr_b32 s{sT0}, s{sT0}, 18", f"s_mul_i32 s{sT1}, s{sT0}, 5", f"s_sub_u32 s{sT1}, s2, s{sT1}",
           f"v_lshrrev_b32 v{t0}, 2, v{vL}", f"s_lshl_b32 s{sT2}, s{sT0}, 5", f"v_add_u32 v{t0}, s{sT2}, v{t0}",
           f"v_mul_u32_u24 v{t0}, 1280, v{t0}", f"v_and_b32 v{t1}, 3, v{vL}", f"v_lshl_add_u32 v{t0}, v{t1}, 4, v{t0}",
           f"s_lshl_b32 s{sT2}, s{sT1}, 8", f"v_add_u32 v{t0}, s{sT2}, v{t0}", f"s_lshl_b32 s{sT2}, s{sW}, 6",
           f"v_add_u32 v{vPWs}, s{sT2}, v{t0}", f"v_add_u32 v{vPWs+1}, {16*1280-1024}, v{vPWs}"]
    for k in range(2):
        wC += [f"s_lshl_b32 s{sT2}, s{sT1}, 3", f"s_lshl_b32 s{sT3}, s{sW}, 1", f"s_add_u32 s{sT2}, s{sT2}, s{sT3}"]
        if k: wC += [f"s_add_u32 s{sT2}, s{sT2}, 1"]
        wC += [f"s_mul_i32 s{sT3}, s{sT2}, 52429", f"s_lshr_b32 s{sT3}, s{sT3}, 18", f"s_mul_i32 s{sD}, s{sT3}, 5",
               f"s_sub_u32 s{sT2}, s{sT2}, s{sD}", f"s_mul_i32 s{sT3}, s{sT3}, 88", f"s_add_u32 s{sT3}, s{sT3}, s{sT0}",
               f"s_add_u32 s{sT3}, s{sT3}, 40", f"s_mul_i32 s{sT3}, s{sT3}, 5", f"s_add_u32 s{sT3}, s{sT3}, s{sT2}",
               f"s_lshl_b32 s{sT3}, s{sT3}, 10", f"s_add_u32 s{sT3}, s{sT3}, {WS_W2}",
               f"v_lshlrev_b32 v{vPWd+k}, 4, v{vL}", f"v_add_u32 v{vPWd+k}, s{sT3}, v{vPWd+k}"]
    wC += [f"s_lshl_b32 s{sT0}, s2, 3", f"s_lshl_b32 s{sT1}, s{sW}, 1", f"s_add_u32 s{sT0}, s{sT0}, s{sT1}",
           f"s_mul_i32 s{sT1}, s{sT0}, 52429", f"s_lshr_b32 s{sT1}, s{sT1}, 21", f"s_mul_i32 s{sT2}, s{sT1}, 40",
           f"s_sub_u32 s{sT0}, s{sT0}, s{sT2}",
           [f"s_cmp_ge_u32 s{sT0}, 20", f"s_cselect_b32 s{sC3}, 1, 0", f"s_cselect_b32 s{sT2}, 20, 0"],
           f"s_sub_u32 s{sT2}, s{sT0}, s{sT2}",
           f"v_and_b32 v{t0}, 15, v{vL}", f"s_lshl_b32 s{sT3}, s{sT1}, 4", f"v_add_u32 v{t0}, s{sT3}, v{t0}",
           f"v_mul_u32_u24 v{t0}, 1280, v{t0}", f"v_lshrrev_b32 v{t1}, 4, v{vL}", f"v_lshl_add_u32 v{t0}, v{t1}, 4, v{t0}",
           f"s_lshl_b32 s{sT2}, s{sT2}, 6", f"v_add_u32 v{vPCs}, s{sT2}, v{t0}",
           f"s_mul_i32 s{sT3}, s{sT1}, 52429", f"s_lshr_b32 s{sT3}, s{sT3}, 18", f"s_mul_i32 s{sD}, s{sT3}, 5",
           f"s_sub_u32 s{sT1}, s{sT1}, s{sD}", f"s_mul_i32 s{sT3}, s{sT3}, 88", f"s_add_u32 s{sT3}, s{sT3}, s{sT0}",
           f"s_mul_i32 s{sT3}, s{sT3}, 5", f"s_add_u32 s{sT3}, s{sT3}, s{sT1}", f"s_lshl_b32 s{sT3}, s{sT3}, 10",
           f"s_add_u32 s{sT3}, s{sT3}, {WS_W2}", f"v_lshlrev_b32 v{vPCd}, 4, v{vL}", f"v_add_u32 v{vPCd}, s{sT3}, v{vPCd}",
           f"v_add_u32 v{vPCd+1}, {5*1024}, v{vPCd}",
           f"s_lshl_b32 s{sT0}, s{sW}, 11", f"s_add_u32 s95, s{sT0}, {MISC}"]
    weave(a, wC, stage_b(0), start=0)
    stp(a, "S0 issued")
    sm = []
    for k, P in enumerate((P_LRE, P_LIM, P_LDT)):
        sm += [f"global_load_ushort v{CL+3*k}, v{c1}, s[{P}:{P+1}]", f"global_load_ushort v{CL+3*k+1}, v{c1}, s[{P}:{P+1}] offset:16",
               f"global_load_ushort v{CL+3*k+2}, v{c2}, s[{P}:{P+1}]"]
    sm += [srd(None, SM, P_WD, 1966080) + [f"s_cmp_lt_u32 s2, 240", f"s_cselect_b32 s{SM+2}, s{SM+2}, 0", "s_mov_b32 m0, s95", "s_nop 0",
           f"buffer_load_dwordx4 v{vPWs}, s[{SM}:{SM+3}], 0 offen lds"],
           [f"buffer_load_dwordx4 v{vPWs+1}, s[{SM}:{SM+3}], 0 offen offset:1024 lds"],
           [f"s_cmp_eq_u32 s{sC3}, 1", f"s_cselect_b32 s{SM}, s{P_CIM}, s{P_CRE}", f"s_cselect_b32 s{SM+1}, s{P_CIM+1}, s{P_CRE+1}",
            f"s_mov_b32 s{SM+2}, 819200", f"s_cmp_lt_u32 s2, 200", f"s_cselect_b32 s{SM+2}, s{SM+2}, 0",
            f"buffer_load_dwordx4 v[{PK}:{PK+3}], v{vPCs}, s[{SM}:{SM+3}], 0 offen"],
           [f"buffer_load_dwordx4 v[{PK+4}:{PK+7}], v{vPCs}, s[{SM}:{SM+3}], 0 offen offset:64"]]
    m, q = t0, t1
    wL = [f"v_and_b32 v{m}, 15, v{vL}", f"v_lshrrev_b32 v{q}, 4, v{vL}",
          f"v_lshrrev_b32 v{t2}, 2, v{m}", f"v_lshlrev_b32 v{t2}, 4, v{t2}", f"v_and_b32 v{t3}, 3, v{m}", f"v_add_u32 v{t2}, v{t2}, v{t3}",
          f"s_lshl_b32 s{sT0}, s{sRH}, 6", f"v_add_u32 v{t2}, s{sT0}, v{t2}", f"v_lshlrev_b32 v{t2}, 7, v{t2}",
          f"v_and_b32 v{t3}, 2, v{m}", f"v_lshrrev_b32 v{t4}, 3, v{m}", f"v_lshl_or_b32 v{t3}, v{t4}, 2, v{t3}",
          f"v_xor_b32 v{t3}, v{t3}, v{q}", f"v_lshl_add_u32 v{vX0}, v{t3}, 4, v{t2}", f"v_xor_b32 v{t3}, 4, v{t3}",
          f"v_lshl_add_u32 v{vX1}, v{t3}, 4, v{t2}",
          f"v_lshrrev_b32 v{t2}, 2, v{m}", f"v_lshl_add_u32 v{t2}, v{q}, 3, v{t2}", f"v_mul_u32_u24 v{t2}, 192, v{t2}",
          f"v_and_b32 v{t3}, 3, v{m}", f"v_lshl_add_u32 v{t2}, v{t3}, 3, v{t2}", f"v_and_b32 v{t3}, 1, v{q}",
          f"v_lshl_add_u32 v{vWa}, v{t3}, 5, v{t2}", f"v_xor_b32 v{t3}, 1, v{t3}", f"v_lshl_add_u32 v{vWb}, v{t3}, 5, v{t2}",
          [f"s_cmp_eq_u32 s{sCH}, 1", f"s_cselect_b64 vcc, -1, 0", f"v_cndmask_b32 v{vWc}, v{vWa}, v{vWb}, vcc"],
          f"v_add_u32 v{vWc}, 64, v{vWc}", f"s_lshl_b32 s{sT0}, s{sCH}, 7", f"v_add_u32 v{vWa}, s{sT0}, v{vWa}", f"v_add_u32 v{vWb}, s{sT0}, v{vWb}",
          f"v_and_b32 v{t2}, 1, v{m}", f"v_lshrrev_b32 v{t3}, 2, v{m}", f"v_lshl_add_u32 v{t3}, v{t3}, 1, v{t2}", f"v_xor_b32 v{t3}, v{t3}, v{q}",
          f"v_mul_u32_u24 v{t2}, 40, v{t2}", f"v_lshrrev_b32 v{t4}, 1, v{m}", f"v_add_u32 v{t2}, v{t2}, v{t4}", f"v_lshlrev_b32 v{t2}, 7, v{t2}",
          f"s_lshl_b32 s{sT0}, s{sCH}, 11", f"v_add_u32 v{t2}, s{sT0}, v{t2}", f"v_lshl_add_u32 v{vB0}, v{t3}, 4, v{t2}",
          f"v_xor_b32 v{t3}, 4, v{t3}", f"v_lshl_add_u32 v{vB1}, v{t3}, 4, v{t2}",
          f"s_lshl_b32 s{sT0}, s{sRH}, 2", f"v_add_u32 v{vSig}, s{sT0}, v{q}",
          f"v_and_b32 v{t2}, 1, v{vL}", f"v_cvt_f32_u32 v{t2}, v{t2}", f"v_fma_f32 v{vSgn}, v{t2}, 2.0, -1.0",
          f"v_lshrrev_b32 v{t2}, 2, v{m}", f"v_lshl_add_u32 v{t2}, v{q}, 2, v{t2}", f"v_lshlrev_b32 v{t2}, 6, v{t2}",
          f"v_and_b32 v{t3}, 3, v{m}", f"v_lshl_add_u32 v{t2}, v{t3}, 3, v{t2}", f"v_add_u32 v{vPtr}, s95, v{t2}",
          f"v_lshlrev_b32 v{vC}, 2, v{m}", f"s_lshl_b32 s{sT0}, s{sCH}, 7", f"v_add_u32 v{vAs}, s{sT0}, v{vC}",
          f"v_add_u32 v{vCm}, {MISC}, v{vC}", f"v_add_u32 v{vAe}, {MISC}, v{vAs}", f"v_lshl_add_u32 v{vAe}, v{vSig}, 8, v{vAe}",
          f"v_lshlrev_b32 v{vAe4}, 1, v{vSig}", f"v_add_u32 v{vAe4}, s{sCH}, v{vAe4}", f"v_lshl_add_u32 v{vAe4}, v{vAe4}, 6, v{vCm}",
          f"s_mul_i32 s{sT0}, s{sW}, 320", f"s_add_u32 s{sT0}, s{sT0}, {MISC}", f"v_add_u32 v{vRw}, s{sT0}, v{vAs}",
          f"v_lshlrev_b32 v{vWp}, 4, v{vL}", f"s_mul_i32 s{sT0}, s{sRB2}, {4*88*1024}", f"v_add_u32 v{vH}, s{sT0}, v{vWp}"]
    wL += [f"v_add_u32 v{vH+i}, {i*88*1024}, v{vH}" for i in range(1,4)]
    weave(a, wL, sm, start=0)
    stp(a, "small issued")
    a(f"s_mov_b32 s{sKX}, 128"); a(f"s_mov_b32 s{sKG}, 196608"); a(f"s_mov_b32 s{sKU}, 196608"); a(f"s_mov_b32 s{sKB}, 128")
    wQ = []
    wQ += [f"s_mul_i32 s{sT0}, s{sCG}, {16*640}", f"s_add_u32 s{sT0}, s{sT0}, {WS_S}",
           f"v_mul_u32_u24 v{pa[0]}, 640, v{vSig}", f"v_lshl_add_u32 v{pa[0]}, v{vAs}, 1, v{pa[0]}", f"v_add_u32 v{pa[0]}, s{sT0}, v{pa[0]}",
           f"v_add_u32 v{pa[1]}, {8*640}, v{pa[0]}", f"v_lshlrev_b32 v{t0}, 1, v{vSig}", f"v_add_u32 v{t0}, s{sCH}, v{t0}",
           f"v_mul_u32_u24 v{pa[2]}, 640, v{t0}", f"v_lshl_add_u32 v{pa[2]}, v{vC}, 1, v{pa[2]}", f"v_add_u32 v{pa[2]}, s{sT0}, v{pa[2]}",
           f"v_add_u32 v{pa[2]}, {64*8}, v{pa[2]}", f"v_mov_b32 v{t4}, 0x7f000000", f"v_add_u32 v{t1}, 8, v{vSig}"]
    for (p_, src) in ((pa[0], vSig), (pa[1], t1), (pa[2], t0)):
        wQ += [[f"v_cmp_le_u32 vcc, s{sRB}, v{src}", "s_nop 1", f"v_cndmask_b32 v{p_}, v{p_}, v{t4}, vcc"]]
    S1 = stage_x(BUF) + stage_g(BUF) + stage_u(BUF) + stage_b(BUF)
    Z2 = 76
    wQ += [f"v_mov_b32 v{Z2+k}, 0" for k in range(4)] + ["s_nop 1"]
    wQ += [f"v_mfma_f32_32x32x16_bf16 v[{ACC+16*k}:{ACC+16*k+15}], v[{Z2}:{Z2+3}], v[{Z2}:{Z2+3}], 0" for k in range(8)]
    wQ += [f"v_mfma_f32_16x16x32_bf16 v[{ACC+128}:{ACC+131}], v[{Z2}:{Z2+3}], v[{Z2}:{Z2+3}], 0",
           f"v_mfma_f32_16x16x32_bf16 v[{ACC+132}:{ACC+135}], v[{Z2}:{Z2+3}], v[{Z2}:{Z2+3}], 0"]
    weave(a, wQ, S1, start=0)
    a(f"s_mov_b32 s{sKX}, {2*128}"); a(f"s_mov_b32 s{sKG}, {2*196608}")
    a(f"s_mov_b32 s{sKU}, {2*196608}"); a(f"s_mov_b32 s{sKB}, {2*128}")
    a(f"s_mov_b32 s{sDB}, {2*BUF}")
    a(f"s_mov_b32 s{sCur}, 0"); a(f"s_mov_b32 s{sD}, {BUF}"); a(f"s_mov_b32 s{sC3}, 0")
    a(f"s_mov_b32 s{sStage}, 0")
    a(f"s_mov_b32 s{sBlk}, {(1<<1)|(1<<5):#x}")
    stp(a, "S1 issued")
    a("s_waitcnt vmcnt(13)")
    a("s_barrier")
    stp(a, "S0 landed")
    def cpow_s(dr, di, A, B, n, tm, sgn):
        o = []
        if n is None:
            o += [f"v_exp_f32 v{tm}, v{A}", f"v_rndne_f32 v{dr}, v{B}", f"v_sub_f32 v{tm+1}, v{B}, v{dr}"]
        else:
            o += [f"v_mul_f32 v{tm}, {n}, v{A}", f"v_mul_f32 v{tm+1}, {n}, v{B}", f"v_exp_f32 v{tm}, v{tm}",
                  f"v_rndne_f32 v{dr}, v{tm+1}", f"v_sub_f32 v{tm+1}, v{tm+1}, v{dr}"]
        o += [f"v_cos_f32 v{dr}, v{tm+1}", f"v_sin_f32 v{di}, v{tm+1}"]
        if sgn is not None:
            o += [f"v_mul_f32 v{dr}, v{tm}, v{dr}", f"v_mul_f32 v{tm}, v{sgn}, v{tm}", f"v_mul_f32 v{di}, v{tm}, v{di}"]
        else:
            o += [f"v_mul_f32 v{dr}, v{tm}, v{dr}", f"v_mul_f32 v{di}, v{tm}, v{di}"]
        return o
    def make_Wk():
        Wk = []
        for k in range(2):
            Wk += [f"ds_read_b64_tr_b16 v[{PK+8+4*k}:{PK+9+4*k}], v{vPtr} offset:{32*k}", f"ds_read_b64_tr_b16 v[{PK+10+4*k}:{PK+11+4*k}], v{vPtr} offset:{32*k+1024}"]
        Wk += [srd(None, SM, P_WS, WS_W2 + W2_SIZE) + [f"s_cmp_lt_u32 s2, 200", f"s_cselect_b32 s{SM+2}, s{SM+2}, 0",
                f"buffer_store_dwordx4 v[{PK}:{PK+3}], v{vPCd}, s[{SM}:{SM+3}], 0 offen{SC}",
                f"buffer_store_dwordx4 v[{PK+4}:{PK+7}], v{vPCd+1}, s[{SM}:{SM+3}], 0 offen{SC}"]]
        vN = 71
        Wk += [f"v_cvt_f32_u32 v{vN}, v{vSig}", f"v_mov_b32 v{vN+1}, 0x42e00000", f"s_mov_b32 s{sT0}, 0xc1800000",
               f"v_fma_f32 v{vN}, v{vN}, s{sT0}, v{vN+1}", f"s_lshl_b32 s{sT0}, s{sCH}, 3", f"s_sub_u32 s{sT0}, 8, s{sT0}",
               f"v_cvt_f32_u32 v{vN+2}, s{sT0}", f"v_add_f32 v{vN+2}, v{vN+2}, v{vN}"]
        Wk += [["s_waitcnt lgkmcnt(0)", f"s_mov_b32 s{SM+2}, {WS_W2 + W2_SIZE}", f"s_cmp_lt_u32 s2, 240", f"s_cselect_b32 s{SM+2}, s{SM+2}, 0",
                f"buffer_store_dwordx4 v[{PK+8}:{PK+11}], v{vPWd}, s[{SM}:{SM+3}], 0 offen{SC}",
                f"buffer_store_dwordx4 v[{PK+12}:{PK+15}], v{vPWd+1}, s[{SM}:{SM+3}], 0 offen{SC}"]]
        Z = 76
        Wk += [f"v_lshlrev_b32 v{t0}, 5, v0", f"v_add_u32 v{t0}, {MISC}, v{t0}", f"ds_write_b128 v{t0}, v[{Z}:{Z+3}]", f"ds_write_b128 v{t0}, v[{Z}:{Z+3}] offset:16"]
        streams = []
        for T in range(3):
            tm = 80+2*T; dt = 86+T
            s_ = [f"v_lshlrev_b32 v{vLRE[T]}, 16, v{CL+T}", f"v_lshlrev_b32 v{vLIM[T]}, 16, v{CL+3+T}", f"v_lshlrev_b32 v{dt}, 16, v{CL+6+T}",
                  f"v_mul_f32 v{dt}, {LOG2E:#x}, v{dt}", f"v_exp_f32 v{dt}, v{dt}",
                  f"v_cvt_pk_bf16_f32 v{dt}, v{dt}, v{dt}", f"v_lshlrev_b32 v{dt}, 16, v{dt}",
                  f"v_mul_f32 v{vA[T]}, v{dt}, v{vLRE[T]}", f"v_mul_f32 v{vBx[T]}, v{dt}, v{vLIM[T]}",
                  f"v_mul_f32 v{vA[T]}, {LOG2E:#x}, v{vA[T]}", f"v_mul_f32 v{vBx[T]}, {INV2PI:#x}, v{vBx[T]}"]
            s_ += cpow_s(vLr[T], vLi[T], vA[T], vBx[T], None, tm, vSgn)
            s_ += cpow_s(vWSr[T], vWSi[T], vA[T], vBx[T], f"v{vN if T < 2 else vN+2}", tm, vSgn)
            streams.append(s_)
        Wk += [[x, y, z] for x, y, z in zip(*streams)]
        Wk += [[f"v_mov_b32 v{t0}, 0", f"global_load_dword v{vNon}, v{t0}, s[{P_DBG}:{P_DBG+1}]{SC}"]]
        return Wk

    def dma_first(sdb):
        g = [f"s_add_u32 m0, s{sdb}, s{sOX}"] + [dma(vDX+i, SX, sKX, 1024*i) for i in range(4)]
        g += [f"s_add_u32 m0, s{sdb}, s{sOG}"] + [dma(vDW+i, SG, sKG, 1024*i) for i in range(3)]
        g += [f"s_add_u32 s{sKX}, s{sKX}, 128", f"s_add_u32 s{sKG}, s{sKG}, 196608"]
        return g
    def dma_second(sdb):
        g = [f"s_add_u32 m0, s{sdb}, s{sOU}"] + [dma(vDW+i, SU, sKU, 1024*i) for i in range(3)]
        g += [f"s_add_u32 m0, s{sdb}, s{sOB}", dma(vDB, SB0, sKB, 0), dma(vDB+1, SB1, sKB, 1024)]
        g += [f"s_add_u32 m0, s{sdb}, s{sOB2}", dma(vDB+2, SB2, sKB, 0)]
        g += [f"s_add_u32 s{sKU}, s{sKU}, 196608", f"s_add_u32 s{sKB}, s{sKB}, 128"]
        return g
    def reads(ch, s, setb):
        vX = vX0 if s == 0 else vX1
        vB = vB0 if s == 0 else vB1
        X = [f"ds_read_b128 a[{setb+4*i}:{setb+4*i+3}], v{vX} offset:{RX+i*512}" for i in range(4)]
        def tr(n, region, k):
            vW = (vWa, vWb, vWc)[k]
            b = setb + 16 + 4*n
            o = region + 6144*s
            return [f"ds_read_b64_tr_b16 a[{b}:{b+1}], v{vW} offset:{o}", f"ds_read_b64_tr_b16 a[{b+2}:{b+3}], v{vW} offset:{o+768}"]
        def sb(n, off):
            b = setb + 16 + 4*n
            return [f"ds_read_b128 a[{b}:{b+3}], v{vB} offset:{RB+off}"]
        W = []
        for k in range(3):
            W += tr(2*k, RG, k); W += tr(2*k+1, RU, k)
        W += sb(6, 0) + sb(7, 1024) + sb(8, 4096 - 2048*ch)
        return X[:1] + W[:2] + X[1:] + W[2:]
    def mfmas(ch, setb):
        out = []
        for n in range(6):
            for i in range(4):
                d = acc(n, i)
                out.append(f"v_mfma_f32_16x16x32_bf16 v[{d}:{d+3}], a[{setb+16+4*n}:{setb+16+4*n+3}], a[{setb+4*i}:{setb+4*i+3}], v[{d}:{d+3}]")
        for n in (6, 7):
            for i in range(4):
                d = acc(n, i)
                out.append(f"v_mfma_f32_16x16x32_bf16 v[{d}:{d+3}], a[{setb+4*i}:{setb+4*i+3}], a[{setb+16+4*n}:{setb+16+4*n+3}], v[{d}:{d+3}]")
        for k in range(2):
            i = 2*ch + k
            d = S4 + 4*k
            out.append(f"v_mfma_f32_16x16x32_bf16 v[{d}:{d+3}], a[{setb+4*i}:{setb+4*i+3}], a[{setb+16+32}:{setb+16+35}], v[{d}:{d+3}]")
        return out
    def substep(ch, setb, rd, dmas, late, seq=None):
        main = mfmas(ch, setb)
        gaps = [[] for _ in range(34)]
        for i, r in enumerate(rd): gaps[i].append(r)
        loads = [x for x in dmas if "buffer_load" in x]
        nl = len(loads)
        last = 0
        if nl:
            pos = [1 + int(i*30/nl) for i in range(nl)]
            li = 0; pend = []
            for x in dmas:
                if "buffer_load" in x:
                    p = pos[li]; pp = p - 1
                    for y in reversed(pend):
                        while len(gaps[pp]) >= 2: pp -= 1
                        assert pp >= 0
                        gaps[pp].append(y)
                    pend = []
                    while len(gaps[p]) >= 2: p += 1
                    gaps[p].append(x); last = p
                    li += 1
                else: pend.append(x)
            p = last + 1
            for y in pend:
                while len(gaps[p]) >= 2: p += 1
                gaps[p].append(y)
        g = 0
        for (e, ins) in late:
            g = max(g, e)
            while len(gaps[g]) + len(ins) > 2:
                g += 1
                assert g < 34, "late overflow"
            gaps[g].extend(ins)
        if seq is not None:
            g = 0
            while seq and g < 34:
                if len(gaps[g]) + len(seq[0]) <= 2:
                    gaps[g].extend(seq.pop(0))
                g += 1
        out = []
        for i in range(34):
            out.append(main[i]); out.extend(gaps[i])
        return out
    def gate_seq():
        gw = [GLD, GLD+1, GLD+2, GLD+3, GLD+4]
        xr = [[GLD+6, GLD+7, GLD+8, GLD+9, GLD+5], [GLD+10, GLD+11, GLD+12, GLD+13, GLD+14]]
        ga = [73, 74]; u0, u1, u2, u3 = 75, 76, 77, 78
        q_ = [[f"v_mov_b32 v{ga[0]}, 0", f"v_mov_b32 v{ga[1]}, 0"]]
        for i in range(5):
            q_.append([f"v_lshlrev_b32 v{u0}, 16, v{gw[i]}", f"v_and_b32 v{u1}, 0xffff0000, v{gw[i]}"])
            for r in range(2):
                x_ = xr[r][i]
                q_ += [[f"v_lshlrev_b32 v{u2}, 16, v{x_}", f"v_and_b32 v{u3}, 0xffff0000, v{x_}"],
                       [f"v_mul_f32 v{u2}, v{u2}, v{u0}", f"v_mul_f32 v{u3}, v{u3}, v{u1}"],
                       [f"v_cvt_pk_bf16_f32 v{u2}, v{u2}, v{u3}"],
                       [f"v_and_b32 v{u3}, 0xffff0000, v{u2}", f"v_lshlrev_b32 v{u2}, 16, v{u2}"],
                       [f"v_add_f32 v{ga[r]}, v{ga[r]}, v{u2}", f"v_add_f32 v{ga[r]}, v{ga[r]}, v{u3}"]]
        for sh, rm in (("row_shr:1","0xf"),("row_shr:2","0xf"),("row_shr:4","0xf"),("row_shr:8","0xf"),("row_bcast:15","0xa"),("row_bcast:31","0xc")):
            bc = " bound_ctrl:0" if sh.startswith("row_shr") else ""
            q_.append([f"v_add_f32_dpp v{ga[r]}, v{ga[r]}, v{ga[r]} {sh} row_mask:{rm} bank_mask:0xf{bc}" for r in range(2)])
        q_ += [[f"v_readlane_b32 s{sT1}, v{ga[0]}, 63", f"v_readlane_b32 s{sT2}, v{ga[1]}, 63"],
               [f"v_cmp_eq_u32 vcc, 0, v{vL}"],
               [f"v_mov_b32 v{u3}, s{sT1}", f"v_mov_b32 v{u2}, s{sT2}"],
               [f"v_cndmask_b32 v{u2}, v{u2}, v{u3}, vcc"], [f"v_cvt_pk_bf16_f32 v{u2}, v{u2}, v{u2}"],
               [f"v_lshlrev_b32 v{u2}, 16, v{u2}", f"v_mul_f32 v{u2}, 0xbfb8aa3b, v{u2}"],
               [f"v_exp_f32 v{u2}, v{u2}"], [f"v_add_f32 v{u2}, 1.0, v{u2}"], [f"v_rcp_f32 v{u2}, v{u2}"],
               [f"v_cvt_pk_bf16_f32 v{u2}, v{u2}, v{u2}"], [f"v_lshlrev_b32 v{vGv}, 16, v{u2}", f"s_lshl_b32 s{sT1}, s94, 2"],
               [f"s_add_u32 s{sT1}, s{sT1}, {WS_G}"], [f"v_lshl_add_u32 v{vGst}, v{vL}, 2, s{sT1}"]]
        return q_
    def wbase(g, j):
        if g < 7: return 104 + 20*g + 4*j
        if g < 11: return 20*(g-7) + 4*j
        return 80 + 4*j if j < 2 else 244 + 4*(j-2)
    SW2, SH = SX, SG
    sKW, sKW4, sKH = sKX, sKG, sKU
    def wload(g, j):
        b = wbase(g, j)
        if j < 4:
            o = f" offset:{1024*j}" if j else ""
            return f"buffer_load_dwordx4 a[{b}:{b+3}], v{vWp}, s[{SW2}:{SW2+3}], s{sKW} offen{o}{SCL}"
        return f"buffer_load_dwordx4 a[{b}:{b+3}], v{vWp}, s[{SW2}:{SW2+3}], s{sKW4} offen{SCL}"
    def wstep(g, inc=5120):
        return [wload(g, j) for j in range(5)] + [f"s_add_u32 s{sKW}, s{sKW}, {inc}", f"s_add_u32 s{sKW4}, s{sKW4}, {inc}"]

    A_, B_ = 0, 52
    a(f"s_cmp_eq_u32 s{sCH}, 1")
    a(f"s_cbranch_scc1 L_pre1")
    rot0 = lambda: [(24, [f"s_mov_b32 s{sF}, s{sCur}"]), (24, [f"s_add_u32 s{sCur}, s{sCur}, s{sD}"]),
                  (24, [f"s_add_u32 s{sC3}, s{sC3}, 1"]),
                  (24, [f"s_cmp_eq_u32 s{sC3}, 3", f"s_cselect_b32 s{sC3}, 0, s{sC3}"]),
                  (24, [f"s_cmp_eq_u32 s{sC3}, 2", f"s_cselect_b32 s{sD}, {3*BUF}, 0"]),
                  (24, [f"s_sub_u32 s{sD}, {BUF}, s{sD}"])]
    n0 = stp.n
    for ch in (0, 1):
        stp.n = n0
        a.label(f"L_pre{ch}")
        for r in reads(ch, 0, A_): a(r)
        a(f"v_add_u32 v{vX0}, {BUF}, v{vX0}")
        a(f"v_add_u32 v{vB0}, {BUF}, v{vB0}")
        d1 = dma_first(sDB)
        grp = []; cur_ = []
        for x in d1:
            cur_.append(x)
            if "m0" in x.split(",")[0]: cur_.append("s_nop 0")
            if "buffer_load" in x: grp.append(cur_); cur_ = []
        grp[-1] += cur_
        weave(a, make_Wk(), grp, start=1)
        a("s_waitcnt lgkmcnt(0)")
        stp(a, "prologue")
        a(".p2align 3")
        a.label(f"L_loop{ch}")
        late0 = [(19, [f"v_add_u32 v{r}, s{sD}, v{r}"]) for r in (vWa, vWb, vWc, vX1, vB1)] + rot0()
        for x in substep(ch, A_, reads(ch, 1, B_), dma_second(sDB), late0): a(x)
        a(f"s_waitcnt vmcnt(13) lgkmcnt(0)")
        a("s_barrier")
        if LSTAMP: a("s_memtime s[38:39]")
        late1 = [(19, [f"v_add_u32 v{r}, s{sD}, v{r}"]) for r in (vX0, vB0)]
        late1 += [(20, [f"s_mov_b32 s{sDB}, s{sF}"])]
        late1 += [(32, [f"s_bitcmp1_b32 s{sBlk}, s{sStage}", f"s_cbranch_scc1 L_blk{ch}"])]
        body = substep(ch, B_, reads(ch, 0, A_), dma_first(sF), late1)
        for x in body:
            a(x)
            if x.startswith("s_cbranch_scc1 L_blk"): a.label(f"L_blkr{ch}")
        a(f"s_add_u32 s{sStage}, s{sStage}, 1")
        a(f"s_cmp_lt_u32 s{sStage}, 7")
        a("s_waitcnt lgkmcnt(0)")
        if LSTAMP:
            a(f"v_cmp_eq_u32 vcc, s{sStage}, v{vL}"); a(f"v_mov_b32 v79, s38"); a("s_nop 0"); a(f"v_cndmask_b32 v80, v80, v79, vcc")
        a(f"s_cbranch_scc1 L_loop{ch}")
        stp(a, "loop")
        lt = [(19, [f"v_add_u32 v{r}, {BUF}, v{r}"]) for r in (vWa, vWb, vWc, vX1, vB1)]
        lt += [(24, [x]) for x in srd(None, SW2, P_WS, W2_SIZE, add=WS_W2)[:0]]
        for x in substep(ch, A_, reads(ch, 1, B_), dma_second(sDB), lt): a(x)
        a(f"s_waitcnt vmcnt(13) lgkmcnt(0)")
        a("s_barrier")
        spin_init(a)
        a.label(f"L_pf{ch}")
        a(f"v_cmp_ne_u32 vcc, s{sNonce}, v{vPF}")
        a(f"v_cmp_ne_u32 s[{sEX}:{sEX+1}], s{sNonce}, v{vPF+1}")
        a(f"s_or_b64 vcc, vcc, s[{sEX}:{sEX+1}]")
        a(f"v_cmp_ne_u32 s[{sEX}:{sEX+1}], s{sNonce}, v{vPF+2}")
        a(f"s_or_b64 vcc, vcc, s[{sEX}:{sEX+1}]")
        a(f"v_cmp_ne_u32 s[{sEX}:{sEX+1}], s{sNonce}, v{vPF+3}")
        a(f"s_or_b64 vcc, vcc, s[{sEX}:{sEX+1}]")
        a(f"s_cmp_eq_u64 vcc, 0")
        a(f"s_cbranch_scc1 L_pfok{ch}")
        spin_guard(a, f"L_pfok{ch}")
        a(f"v_lshlrev_b32 v{t0}, 4, v{vL}")
        a(f"v_add_u32 v{t0}, {WS_PF}, v{t0}")
        a(f"global_load_dwordx4 v[{vPF}:{vPF+3}], v{t0}, s[{P_WS}:{P_WS+1}]{SC}")
        a("s_waitcnt vmcnt(0)")
        a(f"s_branch L_pf{ch}")
        a.label(f"L_pfok{ch}")
        srd(a, SW2, P_WS, W2_SIZE, add=WS_W2)
        a(f"s_mul_i32 s{sKW}, s{sCB}, 88")
        a(f"s_mul_i32 s{sT0}, s{sW}, 12")
        a(f"s_add_u32 s{sKW}, s{sKW}, s{sT0}")
        a(f"s_add_u32 s{sKW}, s{sKW}, 40")
        a(f"s_mul_i32 s{sKW}, s{sKW}, 5120")
        a(f"s_add_u32 s{sKW4}, s{sKW}, 4096")
        allw = []
        for g in range(7): allw += wstep(g)
        def take(n):
            out = []; c = 0
            while allw and (c < n or "buffer_load" not in allw[0]):
                x = allw.pop(0); out.append(x)
                if "buffer_load" in x: c += 1
            return out
        lt = [(19, [f"v_add_u32 v{r}, {(-2*BUF) & 0xffffffff:#x}, v{r}"]) for r in (vX0, vB0)]
        gq = gate_seq()
        for x in substep(ch, B_, reads(ch, 0, A_), take(8), lt, gq): a(x)
        a("s_waitcnt lgkmcnt(0)")
        lt = [(19, [f"v_add_u32 v{r}, {(-2*BUF) & 0xffffffff:#x}, v{r}"]) for r in (vWa, vWb, vWc, vX1, vB1)]
        for x in substep(ch, A_, reads(ch, 1, B_), take(8), lt, gq): a(x)
        a(f"s_waitcnt vmcnt(16) lgkmcnt(0)")
        a("s_barrier")
        for x in substep(ch, B_, reads(ch, 0, A_), take(8), [], gq): a(x)
        a("s_waitcnt lgkmcnt(0)")
        for x in substep(ch, A_, reads(ch, 1, B_), take(8), [], gq): a(x)
        a("s_waitcnt lgkmcnt(0)")
        for x in substep(ch, B_, [], take(3), [], gq): a(x)
        assert not allw and not gq, (len(allw), len(gq))
        a("s_mov_b64 exec, 3")
        a(f"global_store_dword v{vGst}, v{vGv}, s[{P_WS}:{P_WS+1}]{SC}")
        a("s_mov_b64 exec, -1")
        a(f"s_branch L_epi")
        a.label(f"L_blk{ch}")
        a(f"s_cmp_eq_u32 s{sStage}, 1")
        a(f"s_cbranch_scc1 L_b0_{ch}")
        a(f"v_lshlrev_b32 v{t0}, 4, v{vL}")
        a(f"v_add_u32 v{t0}, {WS_PF}, v{t0}")
        a(f"global_load_dwordx4 v[{vPF}:{vPF+3}], v{t0}, s[{P_WS}:{P_WS+1}]{SC}")
        a(f"s_lshl_b32 s{sT1}, s{sRB}, 7")
        a(f"s_lshl_b32 s{sT2}, s{sRH}, 6")
        a(f"s_add_u32 s{sT1}, s{sT1}, s{sT2}")
        a(f"s_lshl_b32 s{sT2}, s{sCG}, 2")
        a(f"s_add_u32 s{sT1}, s{sT1}, s{sT2}")
        a(f"s_lshl_b32 s{sT2}, s{sCH}, 1")
        a(f"s_add_u32 s94, s{sT1}, s{sT2}")
        a(f"s_mul_i32 s{sT1}, s94, 1280")
        a(f"v_lshlrev_b32 v{t0}, 2, v{vL}")
        a(f"v_add_u32 v{t1}, s{sT1}, v{vWp}")
        a(f"v_add_u32 v{t2}, s{sT1}, v{t0}")
        a(f"global_load_dwordx4 v[{GLD}:{GLD+3}], v{vWp}, s[{P_GW}:{P_GW+1}]")
        a(f"global_load_dword v{GLD+4}, v{t0}, s[{P_GW}:{P_GW+1}] offset:1024")
        a(f"global_load_dwordx4 v[{GLD+6}:{GLD+9}], v{t1}, s[{P_X}:{P_X+1}]")
        a(f"global_load_dword v{GLD+5}, v{t2}, s[{P_X}:{P_X+1}] offset:1024")
        a(f"global_load_dwordx4 v[{GLD+10}:{GLD+13}], v{t1}, s[{P_X}:{P_X+1}] offset:1280")
        a(f"global_load_dword v{GLD+14}, v{t2}, s[{P_X}:{P_X+1}] offset:2304")
        a(f"s_branch L_blkr{ch}")
        a.label(f"L_b0_{ch}")
        spin_init(a)
        a.label(f"L_np{ch}")
        a(f"v_readfirstlane_b32 s{sNonce}, v{vNon}")
        a(f"s_cmp_lg_u32 s{sNonce}, 0")
        a(f"s_cbranch_scc1 L_nok{ch}")
        spin_guard(a, f"L_nok{ch}")
        a(f"v_mov_b32 v{t0}, 0")
        a(f"global_load_dword v{vNon}, v{t0}, s[{P_DBG}:{P_DBG+1}]{SC}")
        a("s_waitcnt vmcnt(0)")
        a(f"s_branch L_np{ch}")
        a.label(f"L_nok{ch}")
        a(f"s_cmp_lg_u32 s{sW}, 0")
        a(f"s_cbranch_scc1 L_blkr{ch}")
        a(f"s_lshl_b32 s{sT1}, s2, 2")
        a(f"s_add_u32 s{sT1}, s{sT1}, {WS_PF}")
        a(f"v_mov_b32 v{t0}, s{sT1}")
        a(f"v_mov_b32 v{t1}, s{sNonce}")
        a(f"s_mov_b64 exec, 1")
        a(f"global_store_dword v{t0}, v{t1}, s[{P_WS}:{P_WS+1}]{SC}")
        a(f"s_mov_b64 exec, -1")
        a(f"s_branch L_blkr{ch}")

    a.label("L_epi")
    stp(a, "tail")
    if LSTAMP:
        a(f"s_lshl_b32 s{sT0}, s2, 2")
        a(f"s_add_u32 s{sT0}, s{sT0}, s{sW}")
        a(f"s_lshl_b32 s{sT0}, s{sT0}, 8")
        a(f"s_add_u32 s{sT0}, s{sT0}, {WS_STAMP + 0x40000}")
        a(f"v_lshl_add_u32 v79, v{vL}, 2, s{sT0}")
        a(f"global_store_dword v79, v80, s[{P_WS}:{P_WS+1}]")
    XCH = BUF
    vHo, vHo2 = 81, 82
    a(f"s_lshl_b32 s{sT0}, s{sRB}, 1")
    a(f"s_add_u32 s{sT0}, s{sT0}, s{sRH}")
    a(f"s_mul_i32 s{sT0}, s{sT0}, {4*88}")
    a(f"s_mul_i32 s{sT1}, s{sCG}, 3")
    a(f"s_add_u32 s{sT0}, s{sT0}, s{sT1}")
    a(f"s_add_u32 s{sT0}, s{sT0}, 40")
    a(f"s_lshl_b32 s{sT1}, s{sCH}, 1")
    a(f"s_add_u32 s{sT1}, s{sT1}, s{sT0}")
    a(f"s_lshl_b32 s{sT1}, s{sT1}, 10")
    a(f"s_add_u32 s{sT0}, s{sT0}, 1")
    a(f"s_mul_i32 s{sT3}, s{sCH}, {2*88}")
    a(f"s_add_u32 s{sT0}, s{sT0}, s{sT3}")
    a(f"s_lshl_b32 s{sT0}, s{sT0}, 10")
    a(f"v_add_u32 v{vHo}, s{sT1}, v{vWp}")
    a(f"v_add_u32 v{vHo2}, s{sT0}, v{vWp}")
    for i in range(4):
        G0, U0, G1, U1 = [acc(n, i) for n in range(4)]
        for (G, Uu) in ((G0, U0), (G1, U1)):
            a(f"v_pk_mul_f32 v[{G}:{G+1}], v[{G}:{G+1}], v[{Uu}:{Uu+1}]")
            a(f"v_pk_mul_f32 v[{G+2}:{G+3}], v[{G+2}:{G+3}], v[{Uu+2}:{Uu+3}]")
        a(f"v_cvt_pk_bf16_f32 v{U0}, v{G0}, v{G0+1}")
        a(f"v_cvt_pk_bf16_f32 v{U0+1}, v{G0+2}, v{G0+3}")
        a(f"v_cvt_pk_bf16_f32 v{U0+2}, v{G1}, v{G1+1}")
        a(f"v_cvt_pk_bf16_f32 v{U0+3}, v{G1+2}, v{G1+3}")
        a(f"v_add_u32 v{G0}, {i*88*1024}, v{vHo}")
        a(f"global_store_dwordx4 v{G0}, v[{U0}:{U0+3}], s[{P_WS}:{P_WS+1}]{SC}")
    for i in range(4):
        G2, U2 = acc(4, i), acc(5, i)
        a(f"v_pk_mul_f32 v[{G2}:{G2+1}], v[{G2}:{G2+1}], v[{U2}:{U2+1}]")
        a(f"v_pk_mul_f32 v[{G2+2}:{G2+3}], v[{G2+2}:{G2+3}], v[{U2+2}:{U2+3}]")
    for i in range(4):
        G2, U2 = acc(4, i), acc(5, i)
        a(f"v_cvt_pk_bf16_f32 v{U2}, v{G2}, v{G2+1}")
        a(f"v_cvt_pk_bf16_f32 v{U2+1}, v{G2+2}, v{G2+3}")
    a(f"s_lshl_b32 s{sT1}, s{sW}, 10")
    a(f"v_lshlrev_b32 v{t1}, 3, v{vL}")
    a(f"v_add_u32 v{t2}, s{sT1}, v{t1}")
    a(f"s_cmp_eq_u32 s{sCH}, 1")
    a(f"s_cbranch_scc1 L_xw1")
    a(f"ds_write_b64 v{t2}, v[{acc(5,2)}:{acc(5,2)+1}] offset:{XCH}")
    a(f"ds_write_b64 v{t2}, v[{acc(5,3)}:{acc(5,3)+1}] offset:{XCH+512}")
    a(f"s_branch L_xw2")
    a.label("L_xw1")
    a(f"ds_write_b64 v{t2}, v[{acc(5,0)}:{acc(5,0)+1}] offset:{XCH}")
    a(f"ds_write_b64 v{t2}, v[{acc(5,1)}:{acc(5,1)+1}] offset:{XCH+512}")
    a.label("L_xw2")
    stp(a, "glu1")
    U = [SA, SBt, S4]; NS = [16, 16, 8]
    eA = [56, 57, 58]; eB = [59, 60, 61]
    cur = [U[T] for T in range(3)]
    for k in range(1, 16):
        Ts = [T for T in range(3) if k < NS[T]]
        dst = eA if (k & 1) else eB
        for T in Ts: a(f"v_fma_f32 v{dst[T]}, v{vLr[T]}, v{cur[T]}, v{U[T]+k}")
        for T in Ts:
            a(f"v_fmac_f32_dpp v{dst[T]}, v{cur[T]}, v{vLi[T]} {DPPSW}")
            cur[T] = dst[T]
    ew = [62, 63, 64]; ex = [65, 66, 67]
    a(f"s_mul_i32 s{sT0}, s{sW}, 320")
    a(f"s_add_u32 s{sT0}, s{sT0}, {MISC}")
    for T in range(3): a(f"v_mul_f32 v{ew[T]}, v{vWSr[T]}, v{cur[T]}")
    for T in range(3): a(f"v_fmac_f32_dpp v{ew[T]}, v{cur[T]}, v{vWSi[T]} {DPPSW}")
    a(f"v_add_u32 v{t0}, s{sT0}, v{vC}")
    a(f"ds_write_b32 v{vAe}, v{cur[0]} offset:{EF0}")
    a(f"ds_write_b32 v{vAe}, v{cur[1]} offset:{EF0+64}")
    a(f"ds_write_b32 v{vAe4}, v{cur[2]} offset:{E40}")
    def qreduce(vals, tmps):
        for v, t in zip(vals, tmps): a(f"v_mov_b32 v{t}, v{v}")
        a("s_nop 0")
        for v, t in zip(vals, tmps): a(f"v_permlane16_swap_b32 v{v}, v{t}")
        a("s_nop 0")
        for v, t in zip(vals, tmps): a(f"v_add_f32 v{v}, v{v}, v{t}")
        for v, t in zip(vals, tmps): a(f"v_mov_b32 v{t}, v{v}")
        a("s_nop 0")
        for v, t in zip(vals, tmps): a(f"v_permlane32_swap_b32 v{v}, v{t}")
        a("s_nop 0")
        for v, t in zip(vals, tmps): a(f"v_add_f32 v{v}, v{v}, v{t}")
    qreduce(ew, ex)
    a(f"ds_write_b32 v{vRw}, v{ew[0]} offset:{SWB}")
    a(f"ds_write_b32 v{vRw}, v{ew[1]} offset:{SWB+64}")
    a(f"ds_write_b32 v{t0}, v{ew[2]} offset:{SWB+256}")
    a("s_waitcnt lgkmcnt(0)")
    a("s_barrier")
    stp(a, "passA")
    a(f"s_xor_b32 s{sT1}, s{sW}, 1")
    a(f"s_lshl_b32 s{sT1}, s{sT1}, 10")
    a(f"v_lshlrev_b32 v{t1}, 3, v{vL}")
    a(f"v_add_u32 v{t2}, s{sT1}, v{t1}")
    a(f"v_add_u32 v{t4}, {88*1024}, v{vHo2}")
    a(f"s_cmp_eq_u32 s{sCH}, 1")
    a(f"s_cbranch_scc1 L_xr1")
    for k in range(2):
        a(f"ds_read_b64 v[{acc(5,k)+2}:{acc(5,k)+3}], v{t2} offset:{XCH+512*k}")
    a("s_waitcnt lgkmcnt(0)")
    a(f"global_store_dwordx4 v{vHo2}, v[{acc(5,0)}:{acc(5,0)+3}], s[{P_WS}:{P_WS+1}]{SC}")
    a(f"global_store_dwordx4 v{t4}, v[{acc(5,1)}:{acc(5,1)+3}], s[{P_WS}:{P_WS+1}]{SC}")
    a(f"s_branch L_xr2")
    a.label("L_xr1")
    for k in range(2):
        a(f"ds_read_b64 v[{acc(4,2+k)}:{acc(4,2+k)+1}], v{t2} offset:{XCH+512*k}")
        a(f"v_mov_b32 v{acc(4,2+k)+2}, v{acc(5,2+k)}")
        a(f"v_mov_b32 v{acc(4,2+k)+3}, v{acc(5,2+k)+1}")
    a("s_waitcnt lgkmcnt(0)")
    a(f"global_store_dwordx4 v{vHo2}, v[{acc(4,2)}:{acc(4,2)+3}], s[{P_WS}:{P_WS+1}]{SC}")
    a(f"global_store_dwordx4 v{t4}, v[{acc(4,3)}:{acc(4,3)+3}], s[{P_WS}:{P_WS+1}]{SC}")
    a.label("L_xr2")
    a(f"s_cmp_lg_u32 s{sW}, 0")
    a(f"s_cbranch_scc1 L_nopub")
    PB = 68
    a(f"v_lshlrev_b32 v{t0}, 3, v{vL}")
    a(f"v_add_u32 v{t0}, {MISC}, v{t0}")
    for w in range(4): a(f"ds_read_b64 v[{PB+2*w}:{PB+2*w+1}], v{t0} offset:{SWB+320*w}")
    a(f"s_lshl_b32 s{sT0}, s{sCG}, 4")
    a(f"s_add_u32 s{sT0}, s{sT0}, s{sRB}")
    a(f"s_mul_i32 s{sT0}, s{sT0}, 640")
    a(f"s_add_u32 s{sT0}, s{sT0}, {WS_S}")
    a(f"v_lshlrev_b32 v{t0}, 4, v{vL}")
    a(f"v_add_u32 v{t0}, s{sT0}, v{t0}")
    a(f"v_mov_b32 v{PB+9}, s{sNonce}")
    a(f"v_mov_b32 v{PB+11}, s{sNonce}")
    a(f"v_cmp_gt_u32 vcc, 40, v{vL}")
    a("s_waitcnt lgkmcnt(0)")
    a(f"v_pk_add_f32 v[{PB}:{PB+1}], v[{PB}:{PB+1}], v[{PB+2}:{PB+3}]")
    a(f"v_pk_add_f32 v[{PB+4}:{PB+5}], v[{PB+4}:{PB+5}], v[{PB+6}:{PB+7}]")
    a(f"v_pk_add_f32 v[{PB}:{PB+1}], v[{PB}:{PB+1}], v[{PB+4}:{PB+5}]")
    a(f"s_and_saveexec_b64 s[{sEX}:{sEX+1}], vcc")
    a(f"v_mov_b32 v{PB+8}, v{PB}")
    a(f"v_mov_b32 v{PB+10}, v{PB+1}")
    a(f"global_store_dwordx4 v{t0}, v[{PB+8}:{PB+11}], s[{P_WS}:{P_WS+1}]{SC}")
    a(f"s_mov_b64 exec, s[{sEX}:{sEX+1}]")
    a.label("L_nopub")
    stp(a, "pub")
    pre = []
    for g in range(7, 12):
        ws_ = wstep(g)
        pre += [[x] for x in ws_[:4]] + [[ws_[4], ws_[5], ws_[6]]]
    X = ACC
    vMr = [X, X+1, X+2]; vMi = [X+3, X+4, X+5]
    vC2r = [X+6, X+7, X+8]; vC2i = [X+9, X+10, X+11]
    vHr = [X+12, X+13, X+14]; vHi = [X+15, X+16, X+17]
    vW0r = [X+18, X+19, X+20]; vW0i = [X+21, X+22, X+23]
    vW1r = [X+24, X+25]; vW1i = [X+26, X+27]
    vLi2 = [X+28, X+29, X+30]
    nOff, nW0, nW1, nOff4, nW4 = X+32, X+33, X+34, X+35, X+36
    vm0, vm1, vm4 = X+37, X+38, X+39
    W = []
    W += [f"v_cvt_f32_u32 v{nOff}, v{vSig}", f"v_mul_f32 v{nOff}, 0x41800000, v{nOff}", f"s_lshl_b32 s{sT0}, s{sCH}, 3",
          f"v_cvt_f32_u32 v{nOff4}, s{sT0}", f"v_add_f32 v{nOff4}, v{nOff4}, v{nOff}",
          f"s_sub_u32 s{sT0}, s{sRB}, 1", f"v_sub_u32 v{t0}, s{sT0}, v{vSig}", f"v_subrev_u32 v{t1}, 8, v{t0}",
          f"v_sub_u32 v{t2}, v{t0}, v{vSig}", f"v_subrev_u32 v{t2}, s{sCH}, v{t2}"]
    for (n_, mreg, src) in ((nW0, vm0, t0), (nW1, vm1, t1), (nW4, vm4, t2)):
        W += [[f"v_cmp_le_i32 vcc, 0, v{src}", f"v_max_i32 v{n_}, 0, v{src}", f"v_cvt_f32_i32 v{n_}, v{n_}",
               f"v_cndmask_b32 v{mreg}, 0, 1.0, vcc"], f"v_mul_f32 v{n_}, 0x43000000, v{n_}"]
    W += [f"v_mov_b32 v{X+40}, 0x41800000", f"v_mov_b32 v{X+41}, 0x41000000"]
    streams = []
    for T in range(3):
        tm = X+44+6*T
        pr, pi, cr, ci = tm+2, tm+3, tm+4, tm+5
        s_ = cpow_s(vMr[T], vMi[T], vA[T], vBx[T], f"v{X+40 if T < 2 else X+41}", tm, vSgn)
        s_ += [f"v_mul_f32 v{pi}, v{vSgn}, v{vLi[T]}", f"v_add_f32 v{pr}, -1.0, v{vLr[T]}",
               f"v_mul_f32 v{tm}, v{vLRE[T]}, v{vLRE[T]}", f"v_fmac_f32 v{tm}, v{vLIM[T]}, v{vLIM[T]}", f"v_rcp_f32 v{tm}, v{tm}",
               f"v_mul_f32 v{cr}, v{pr}, v{vLRE[T]}", f"v_fmac_f32 v{cr}, v{pi}, v{vLIM[T]}",
               f"v_mul_f32 v{ci}, v{pi}, v{vLRE[T]}", f"v_fma_f32 v{ci}, -v{pr}, v{vLIM[T]}, v{ci}",
               f"v_add_f32 v{tm}, v{tm}, v{tm}", f"v_mul_f32 v{cr}, v{tm}, v{cr}", f"v_mul_f32 v{ci}, v{tm}, v{ci}",
               f"v_mul_f32_e64 v{vC2r[T]}, -v{vSgn}, v{cr}", f"v_sub_f32 v{vC2i[T]}, 0, v{ci}", f"v_sub_f32 v{vLi2[T]}, 0, v{vLi[T]}"]
        s_ += cpow_s(pr, pi, vA[T], vBx[T], f"v{nOff if T < 2 else nOff4}", tm, None)
        s_ += [f"v_mul_f32 v{vHr[T]}, v{cr}, v{pr}", f"v_fma_f32 v{vHr[T]}, -v{ci}, v{pi}, v{vHr[T]}",
               f"v_mul_f32 v{vHi[T]}, v{cr}, v{pi}", f"v_fmac_f32 v{vHi[T]}, v{ci}, v{pr}",
               f"v_mul_f32_e64 v{vHr[T]}, -v{vSgn}, v{vHr[T]}", f"v_sub_f32 v{vHi[T]}, 0, v{vHi[T]}"]
        s_ += cpow_s(vW0r[T], vW0i[T], vA[T], vBx[T], f"v{nW0 if T < 2 else nW4}", tm, vSgn)
        mk = vm0 if T < 2 else vm4
        s_ += [f"v_mul_f32 v{vW0r[T]}, v{mk}, v{vW0r[T]}", f"v_mul_f32 v{vW0i[T]}, v{mk}, v{vW0i[T]}"]
        if T < 2:
            s_ += cpow_s(vW1r[T], vW1i[T], vA[T], vBx[T], f"v{nW1}", tm, vSgn)
            s_ += [f"v_mul_f32 v{vW1r[T]}, v{vm1}, v{vW1r[T]}", f"v_mul_f32 v{vW1i[T]}, v{vm1}, v{vW1i[T]}"]
        streams.append(s_)
    W += rr(*streams)
    for x in W:
        if isinstance(x, str): a(x)
        else:
            for y in x: a(y)
    stp(a, "consts2")
    a("s_waitcnt vmcnt(0)")
    vFo = 18
    a(f"s_lshl_b32 s{sT0}, s{sRB}, 1")
    a(f"s_add_u32 s{sT0}, s{sT0}, s{sRH}")
    a(f"s_lshl_b32 s{sT0}, s{sT0}, 4")
    a(f"s_add_u32 s{sT0}, s{sT0}, s{sCG}")
    a(f"s_lshl_b32 s{sT0}, s{sT0}, 1")
    a(f"s_add_u32 s{sT0}, s{sT0}, s{sCH}")
    a(f"s_lshl_b32 s{sT0}, s{sT0}, 2")
    a(f"s_add_u32 s{sT0}, s{sT0}, {WS_FB}")
    a(f"v_mov_b32 v{vFo}, s{sT0}")
    a(f"v_mov_b32 v{t0}, s{sNonce}")
    a(f"s_mov_b64 exec, 1")
    a(f"global_store_dword v{vFo}, v{t0}, s[{P_WS}:{P_WS+1}]{SC}")
    a(f"s_mov_b64 exec, -1")
    stp(a, "flagB")


    PE = X+64
    W = [f"v_subrev_u32 v{t0}, 256, v{vAe}"]
    for T in range(2):
        for k in range(7): W.append(f"ds_read_b32 v{PE+7*T+k}, v{t0} offset:{EF0 + 64*T - 256*k}")
    W.append(f"v_subrev_u32 v{t1}, 64, v{vAe4}")
    for k in range(15): W.append(f"ds_read_b32 v{PE+14+k}, v{t1} offset:{E40 - 64*k}")
    tu = [56, 57, 58]
    for k in range(16):
        Ts = [T for T in range(3) if k < NS[T]]
        for T in Ts: W.append(f"v_mul_f32 v{tu[T]}, v{vC2r[T]}, v{U[T]+k}")
        for T in Ts: W.append(f"v_fmac_f32_dpp v{tu[T]}, v{U[T]+k}, v{vC2i[T]} {DPPSW}")
        for T in Ts: W.append(f"v_mov_b32 v{U[T]+k}, v{tu[T]}")
    W.append("s_waitcnt lgkmcnt(0)")
    Pc = [PE+6, PE+13, PE+14+14]
    Pt = [[59, 60], [61, 62], [63, 64]]
    nch = [7, 7, 15]; base = [PE, PE+7, PE+14]
    for stepk in range(1, 15):
        Ts = [T for T in range(3) if stepk < nch[T]]
        dst = {T: Pt[T][stepk & 1] for T in Ts}
        grp = []
        for T in Ts: grp.append(f"v_fma_f32 v{dst[T]}, v{vMr[T]}, v{Pc[T]}, v{base[T] + nch[T]-1-stepk}")
        if len(Ts) == 1: grp.append("s_nop 0")
        for T in Ts:
            grp.append(f"v_fmac_f32_dpp v{dst[T]}, v{Pc[T]}, v{vMi[T]} {DPPSW}")
            Pc[T] = dst[T]
        if len(Ts) == 1: grp.append("s_nop 0")
        W += grp
    W.append("s_nop 1")
    for T in range(3): W.append(f"v_mul_f32 v{Ps[T]}, v{vC2r[T]}, v{Pc[T]}")
    for T in range(3): W.append(f"v_fmac_f32_dpp v{Ps[T]}, v{Pc[T]}, v{vC2i[T]} {DPPSW}")
    W += [f"v_mov_b32 v7, v{vAs}", f"v_mov_b32 v8, v{vCm}",
          f"v_and_b32 v{t0}, 15, v{vL}", f"v_lshrrev_b32 v{t1}, 2, v{t0}", f"v_lshlrev_b32 v{t1}, 1, v{t1}", f"v_add_u32 v{t1}, s{sCH}, v{t1}",
          f"v_mul_u32_u24 v{t1}, {HTS}, v{t1}", f"v_and_b32 v{t2}, 3, v{t0}", f"v_lshlrev_b32 v{t2}, 2, v{t2}", f"v_lshrrev_b32 v{t3}, 4, v{vL}",
          f"v_add_u32 v{t2}, v{t2}, v{t3}", f"s_lshl_b32 s{sT0}, s{sRH}, 4", f"v_add_u32 v{t2}, s{sT0}, v{t2}",
          f"v_lshl_add_u32 v{RA}, v{t2}, 3, v{t1}",
          f"s_lshl_b32 s{sT0}, s{sRB}, 1", f"s_add_u32 s{sT0}, s{sT0}, s{sRH}", f"s_lshl_b32 s{sT0}, s{sT0}, 2",
          f"v_add_u32 v{t3}, s{sT0}, v{t3}", f"v_mul_u32_u24 v{t3}, 88, v{t3}", f"s_mul_i32 s{sT0}, s{sCH}, 20",
          f"v_add_u32 v{t3}, s{sT0}, v{t3}", f"v_lshlrev_b32 v{t3}, 10, v{t3}", f"v_lshl_add_u32 v{GA}, v{t0}, 4, v{t3}"]
    NPF = 16
    weave(a, W, pre[:NPF], start=0)
    stp(a, "prefix")
    Hp = [65, 66, 67]; hx = [56, 57, 58]; bad = 68
    vFl = 24
    a(f"s_lshl_b32 s{sT0}, s{sRB2}, 7")
    a(f"s_lshl_b32 s{sT1}, s{sW}, 5")
    a(f"s_add_u32 s{sT0}, s{sT0}, s{sT1}")
    a(f"v_and_b32 v{vFl}, 7, v{vL}")
    a(f"v_lshlrev_b32 v{vFl}, 2, v{vFl}")
    a(f"v_add_u32 v{vFl}, s{sT0}, v{vFl}")
    a(f"v_add_u32 v{vFl}, {WS_FB}, v{vFl}")
    srd(a, SH, P_WS, WS_G)
    srd(a, SM, P_WS, WS_S + 256*640)
    R = X+64
    FBV = X+74
    def poll_loads():
        a(f"buffer_load_dwordx2 v[{R}:{R+1}], v{pa[0]}, s[{SM}:{SM+3}], 0 offen{SC}")
        a(f"buffer_load_dwordx2 v[{R+2}:{R+3}], v{pa[0]}, s[{SM}:{SM+3}], 0 offen offset:128{SC}")
        a(f"buffer_load_dwordx2 v[{R+4}:{R+5}], v{pa[1]}, s[{SM}:{SM+3}], 0 offen{SC}")
        a(f"buffer_load_dwordx2 v[{R+6}:{R+7}], v{pa[1]}, s[{SM}:{SM+3}], 0 offen offset:128{SC}")
        a(f"buffer_load_dwordx2 v[{R+8}:{R+9}], v{pa[2]}, s[{SM}:{SM+3}], 0 offen{SC}")
        a(f"global_load_dword v{FBV}, v{vFl}, s[{P_WS}:{P_WS+1}]{SC}")
    poll_loads()
    NW0 = 5
    for it in pre[NPF:]:
        for x in it: a(x)
    a(f"s_waitcnt vmcnt({len(pre)-NPF})")
    spin_init(a)
    a(f"s_branch L_pollc")
    a.label("L_poll")
    spin_guard(a, "L_pollx")
    poll_loads()
    a("s_waitcnt vmcnt(0)")
    a.label("L_pollc")
    a(f"v_mov_b32 v{bad}, 0")
    for (ri, mreg) in ((R+1, vm0), (R+3, vm0), (R+5, vm1), (R+7, vm1), (R+9, vm4)):
        a(f"v_cmp_ne_u32 vcc, s{sNonce}, v{ri}")
        a("s_nop 1")
        a(f"v_cndmask_b32 v{t0}, 0, v{mreg}, vcc")
        a(f"v_or_b32 v{bad}, v{bad}, v{t0}")
    a(f"v_cmp_ne_u32 vcc, 0, v{bad}")
    a("s_nop 4")
    a("s_cbranch_vccnz L_poll")
    a.label("L_pollx")
    for (T, ri) in ((0, R), (1, R+2), (2, R+8)): a(f"v_mul_f32 v{Hp[T]}, v{vW0r[T]}, v{ri}")
    for (T, ri) in ((0, R), (1, R+2), (2, R+8)): a(f"v_fmac_f32_dpp v{Hp[T]}, v{ri}, v{vW0i[T]} {DPPSW}")
    for (T, ri) in ((0, R+4), (1, R+6)): a(f"v_fmac_f32 v{Hp[T]}, v{vW1r[T]}, v{ri}")
    for (T, ri) in ((0, R+4), (1, R+6)): a(f"v_fmac_f32_dpp v{Hp[T]}, v{ri}, v{vW1i[T]} {DPPSW}")
    qreduce(Hp, hx)
    a(f"s_mul_i32 s{sT0}, s{sW}, 320")
    a(f"s_add_u32 s{sT0}, s{sT0}, {MISC}")
    a(f"v_add_u32 v{t0}, s{sT0}, v{vC}")
    a(f"ds_write_b32 v{vRw}, v{Hp[0]} offset:{RWB}")
    a(f"ds_write_b32 v{vRw}, v{Hp[1]} offset:{RWB+64}")
    a(f"ds_write_b32 v{t0}, v{Hp[2]} offset:{RWB+256}")
    stp(a, "poll")
    spin_init(a)
    a.label("L_fbpoll")
    a(f"v_cmp_ne_u32 vcc, s{sNonce}, v{FBV}")
    a("s_nop 4")
    a("s_cbranch_vccz L_fbx")
    spin_guard(a, "L_fbx")
    a(f"global_load_dword v{FBV}, v{vFl}, s[{P_WS}:{P_WS+1}]{SC}")
    a("s_waitcnt vmcnt(0)")
    a("s_branch L_fbpoll")
    a.label("L_fbx")
    stp(a, "flagB seen")
    slots = [52, 68, 84, "a88", 100]
    def hreg(slot, i):
        sl = slots[slot]
        if isinstance(sl, str): return f"a[{88+4*i}:{91+4*i}]"
        return f"v[{sl+4*i}:{sl+4*i+3}]"
    def hloads(g):
        return [f"buffer_load_dwordx4 {hreg(g % 5, i)}, v{vH+i}, s[{SH}:{SH+3}], s{sKH} offen{SCL}" for i in range(4)]
    a(f"s_mul_i32 s{sKH}, s{sW}, 12")
    a(f"s_add_u32 s{sKH}, s{sKH}, 40")
    a(f"s_lshl_b32 s{sKH}, s{sKH}, 10")
    a("s_waitcnt lgkmcnt(0)")
    early = []
    for g in range(5):
        hl = hloads(g)
        early += [[x] for x in hl[:3]] + [[hl[3], f"s_add_u32 s{sKH}, s{sKH}, 1024"]]
    sOff = [73, 74, 75, 76, 77]
    for it in range(5):
        a(f"s_mul_i32 s{sT0}, s{sCG}, 5")
        a(f"s_add_u32 s{sT0}, s{sT0}, {it}")
        a(f"s_lshr_b32 s{sT1}, s{sT0}, 2")
        a(f"s_lshl_b32 s{sT1}, s{sT1}, 10")
        a(f"s_and_b32 s{sT0}, s{sT0}, 3")
        a(f"s_lshl_b32 s{sT0}, s{sT0}, 8")
        a(f"s_add_u32 s{sOff[it]}, s{sT0}, s{sT1}")
    for it in early[:4]:
        for x in it: a(x)
    early = early[4:]
    a("s_barrier")
    Hw = [X+48, X+49, X+50]
    a(f"s_mul_i32 s{sT0}, s{sCH}, 320")
    a(f"s_add_u32 s{sT0}, s{sT0}, {MISC}")
    a(f"v_add_u32 v{t0}, s{sT0}, v{vAs2}")
    hr = [X+40, X+41, X+42, X+43, X+44, X+45, X+46, X+47]
    a(f"ds_read_b32 v{hr[0]}, v{t0} offset:{RWB}")
    a(f"ds_read_b32 v{hr[1]}, v{t0} offset:{RWB+640}")
    a(f"ds_read_b32 v{hr[2]}, v{t0} offset:{RWB+64}")
    a(f"ds_read_b32 v{hr[3]}, v{t0} offset:{RWB+704}")
    for w in range(4): a(f"ds_read_b32 v{hr[4+w]}, v{vCm2} offset:{RWB+256+320*w}")
    a("s_waitcnt lgkmcnt(0)")
    W = [f"v_add_f32 v{Hw[0]}, v{hr[0]}, v{hr[1]}", f"v_add_f32 v{Hw[1]}, v{hr[2]}, v{hr[3]}", f"v_add_f32 v{hr[4]}, v{hr[4]}, v{hr[5]}",
         f"v_add_f32 v{hr[6]}, v{hr[6]}, v{hr[7]}", f"v_add_f32 v{Hw[2]}, v{hr[4]}, v{hr[6]}"]
    for T in range(3): W.append(f"v_fmac_f32 v{Ps[T]}, v{vHr[T]}, v{Hw[T]}")
    W.append("s_nop 0")
    for T in range(3): W.append(f"v_fmac_f32_dpp v{Ps[T]}, v{Hw[T]}, v{vHi[T]} {DPPSW}")
    cur = list(Ps)
    W.append("s_nop 0")
    for k in range(16):
        Ts = [T for T in range(3) if k < NS[T]]
        for T in Ts: W.append(f"v_fmac_f32 v{U[T]+k}, v{vLr[T]}, v{cur[T]}")
        for T in Ts:
            W.append(f"v_fmac_f32_dpp v{U[T]+k}, v{cur[T]}, v{vLi2[T]} {DPPSW}")
            cur[T] = U[T]+k
    for T in range(3):
        for k in range(NS[T]//2):
            W.append(f"v_cvt_pk_bf16_f32 v{X + 16*T + k}, v{U[T]+2*k}, v{U[T]+2*k+1}")
    W += [f"v_and_b32 v{t0}, 15, v{vL}", f"s_lshl_b32 s{sT0}, s{sCH}, 5", f"v_add_u32 v{t1}, s{sT0}, v{t0}",
          f"v_mul_u32_u24 v{t1}, {HTS}, v{t1}", f"v_lshl_add_u32 v{t1}, v{vSig}, 5, v{t1}",
          f"v_add_u32 v{t0}, 64, v{t0}", f"v_mul_u32_u24 v{t0}, {HTS}, v{t0}", f"v_lshl_add_u32 v{t0}, v{vSig}, 5, v{t0}",
          f"s_lshl_b32 s{sT0}, s{sCH}, 4", f"v_add_u32 v{t0}, s{sT0}, v{t0}"]
    weave(a, W, early, start=6)
    stp(a, "passB")
    a(f"ds_write_b128 v{t1}, v[{X}:{X+3}]")
    a(f"ds_write_b128 v{t1}, v[{X+4}:{X+7}] offset:16")
    a(f"ds_write_b128 v{t1}, v[{X+16}:{X+19}] offset:{16*HTS}")
    a(f"ds_write_b128 v{t1}, v[{X+20}:{X+23}] offset:{16*HTS+16}")
    a(f"ds_write_b128 v{t0}, v[{X+32}:{X+35}]")
    a("s_waitcnt lgkmcnt(0)")
    a("s_barrier")
    DT = X+64
    for it in range(5):
        a(f"ds_read_b64_tr_b16 v[{DT+4*it}:{DT+4*it+1}], v{RA} offset:{it*16*HTS}")
        a(f"ds_read_b64_tr_b16 v[{DT+4*it+2}:{DT+4*it+3}], v{RA} offset:{it*16*HTS+8*HTS}")
    for it in range(5):
        a(f"s_waitcnt lgkmcnt({2*(4-it)})")
        a(f"buffer_store_dwordx4 v[{DT+4*it}:{DT+4*it+3}], v{GA}, s[{SH}:{SH+3}], s{sOff[it]} offen{SC}")
    stp(a, "hA stored")
    accB = lambda j, i: 120 + (j*4+i)*4
    def accA(j, i):
        t = j*4+i
        return 200 + 4*t if t < 14 else 26 + 4*(t-14)
    def wreg(g, j): b = wbase(g, j); return f"a[{b}:{b+3}]"
    fifo = [("h", g) for g in range(5) for _ in range(4)] + [("st", 0)]*5
    def issue(x, tag):
        a(x); fifo.append(tag)
    def wait_for(pred):
        idx = [i for i, tg in enumerate(fifo) if pred(tg)]
        if not idx: return
        n = len(fifo) - 1 - max(idx)
        assert n <= 63, n
        a(f"s_waitcnt vmcnt({n})")
        del fifo[:max(idx)+1]
    sKS, sKS4 = 85, 86
    a(f"s_mul_i32 s{sKS}, s{sCB}, 88")
    a(f"s_mul_i32 s{sT0}, s{sW}, 5")
    a(f"s_add_u32 s{sKS}, s{sKS}, s{sT0}")
    a(f"s_mul_i32 s{sKS}, s{sKS}, 5120")
    a(f"s_add_u32 s{sKS4}, s{sKS}, 4096")
    wq = []
    for g in range(7+NW0, 12):
        st_ = wstep(g)
        for j in range(5): wq.append((("wg", g), 0, st_[j], st_[5:] if j == 4 else []))
    for sidx in range(10):
        for j in range(5):
            x = wload(sidx, j).replace(f"s{sKW} offen", f"s{sKS} offen").replace(f"s{sKW4} offen", f"s{sKS4} offen")
            inc = (20-4)*5120 if sidx == 4 else 5120
            wq.append((("w", sidx), sidx, x, [f"s_add_u32 s{sKS}, s{sKS}, {inc}", f"s_add_u32 s{sKS4}, s{sKS4}, {inc}"] if j == 4 else []))
    RATE = 3
    LA, OA = 2, 7
    vG = [12, 14, 16, 22]
    vLW = 25
    XR, GR, DR = 84, 94, 100
    RS = 336; RED = 64*RS
    fill = []
    for i in range(5):
        w1, w2, w3 = t0, t1, t3
        fill += [f"v_add_u32 v{w1}, {256*i}, v0", f"v_mul_u32_u24 v{w2}, 3277, v{w1}", f"v_lshrrev_b32 v{w2}, 16, v{w2}",
                 f"v_mul_u32_u24 v{w3}, 20, v{w2}", f"v_sub_u32 v{w3}, v{w1}, v{w3}", f"v_mul_u32_u24 v{LA+i}, {RS}, v{w2}",
                 f"v_lshl_add_u32 v{LA+i}, v{w3}, 4, v{LA+i}", f"s_lshl_b32 s{sT0}, s{sRB2}, 6", f"v_add_u32 v{w2}, s{sT0}, v{w2}",
                 f"v_mul_u32_u24 v{w2}, 640, v{w2}", f"s_mul_i32 s{sT1}, s{sCB}, 80", f"v_lshl_add_u32 v{w3}, v{w3}, 2, s{sT1}",
                 f"v_add_u32 v{w2}, v{w2}, v{w3}", f"v_lshlrev_b32 v{OA+i}, 2, v{w2}"]
    fill += [f"v_and_b32 v{t0}, 15, v{vL}", f"v_lshrrev_b32 v{t1}, 2, v{t0}", f"v_lshlrev_b32 v{t1}, 4, v{t1}", f"v_and_b32 v{t0}, 3, v{t0}",
             f"v_add_u32 v{t0}, v{t0}, v{t1}", f"s_lshl_b32 s{sT0}, s{sRB2}, 6", f"v_add_u32 v{t1}, s{sT0}, v{t0}",
             f"v_lshlrev_b32 v{t1}, 2, v{t1}", f"v_add_u32 v50, {WS_G}, v{t1}",
             f"v_mul_u32_u24 v{t0}, {RS}, v{t0}", f"v_lshrrev_b32 v{t3}, 4, v{vL}", f"v_lshl_add_u32 v{t0}, v{t3}, 4, v{t0}",
             f"s_mul_i32 s{sT0}, s{sW}, {RED}", f"v_add_u32 v{vLW}, s{sT0}, v{t0}"]
    for g in range(22):
        glu = g < 12
        slot = g % 5
        wg = g if glu else g-12
        wait_for(lambda tg: tg == ("h", g) or (not glu and tg == ("w", g-12)) or (glu and tg == ("wg", g)))
        if "kstamp" in FLAGS:
            if g > 0:
                a("s_waitcnt lgkmcnt(0)"); a(f"v_writelane_b32 v23, s38, {g-1}")
            a("s_memtime s[38:39]")
        if g == 3:
            wait_for(lambda tg: tg[0] == "st")
            a(f"v_add_u32 v{t0}, {WS_FA-WS_FB}, v{vFo}")
            a(f"v_mov_b32 v{t1}, s{sNonce}")
            a(f"s_mov_b64 exec, 1")
            issue(f"global_store_dword v{t0}, v{t1}, s[{P_WS}:{P_WS+1}]{SC}", ("fa", 0))
            a(f"s_mov_b64 exec, -1")
        if g == 5:
            a(f"v_add_u32 v{vFl}, {WS_FA-WS_FB}, v{vFl}")
            issue(f"global_load_dword v{t2}, v{vFl}, s[{P_WS}:{P_WS+1}]{SC}", ("fp", 0))
        if g == 7:
            wait_for(lambda tg: tg[0] == "fp")
            spin_init(a)
            a.label("L_fachk")
            a(f"v_cmp_ne_u32 vcc, s{sNonce}, v{t2}")
            a("s_nop 4")
            a("s_cbranch_vccz L_faok")
            spin_guard(a, "L_faok")
            a(f"global_load_dword v{t2}, v{vFl}, s[{P_WS}:{P_WS+1}]{SC}")
            a("s_waitcnt vmcnt(0)")
            a("s_branch L_fachk")
            a.label("L_faok")
        if g == 15:
            a("s_barrier")
            for i in range(4): issue(f"global_load_dword v{vG[i]}, v50, s[{P_WS}:{P_WS+1}] offset:{16*i}{SC}", ("g", 0))
        mf = []
        for j in range(5):
            for i in range(4):
                d = accB(j, i) if glu else accA(j, i)
                c = "0" if g in (0, 12) else f"v[{d}:{d+3}]"
                mf.append(f"v_mfma_f32_16x16x32_bf16 v[{d}:{d+3}], {wreg(wg, j)}, {hreg(slot, i)}, {c}")
        nw = 0
        for idx, x in enumerate(mf):
            a(x)
            if idx % 4 == 1 and nw < RATE and wq and wq[0][1] < g:
                tg, e_, ins, post = wq.pop(0); issue(ins, tg); nw += 1
                for y in post: a(y)
            elif g >= 8 and fill and idx % 4 != 1: a(fill.pop(0))
        while nw < RATE and wq and wq[0][1] <= g:
            tg, e_, ins, post = wq.pop(0); issue(ins, tg); nw += 1
            for y in post: a(y)
        gn = g + 5
        if gn < 22:
            if gn == 12: a(f"s_mul_i32 s{sKH}, s{sW}, {5*1024}")
            elif gn == 17: a(f"s_add_u32 s{sKH}, s{sKH}, {15*1024}")
            for x in hloads(gn): issue(x, ("h", gn))
            a(f"s_add_u32 s{sKH}, s{sKH}, 1024")
        if g == 17:
            for i in range(5):
                a(f"v_lshrrev_b32 v{t0}, 1, v{OA+i}")
                issue(f"global_load_dwordx2 v[{XR+2*i}:{XR+2*i+1}], v{t0}, s[{P_X}:{P_X+1}]", ("f", 0))
            for i in range(5):
                a(f"v_mul_u32_u24 v{t1}, 49933, v{LA+i}")
                a(f"v_lshrrev_b32 v{t1}, 24, v{t1}")
                a(f"s_lshl_b32 s{sT0}, s{sRB2}, 6")
                a(f"v_add_u32 v{t1}, s{sT0}, v{t1}")
                a(f"v_lshlrev_b32 v{t1}, 2, v{t1}")
                a(f"v_add_u32 v{t1}, {WS_G}, v{t1}")
                issue(f"global_load_dword v{GR+i}, v{t1}, s[{P_WS}:{P_WS+1}]{SC}", ("f", 0))
        if g == 19:
            for i in range(5):
                a(f"v_mul_u32_u24 v{t1}, 49933, v{LA+i}")
                a(f"v_lshrrev_b32 v{t1}, 24, v{t1}")
                a(f"v_mul_u32_u24 v{t1}, {RS}, v{t1}")
                a(f"v_sub_u32 v{t1}, v{LA+i}, v{t1}")
                a(f"v_lshrrev_b32 v{t1}, 1, v{t1}")
                a(f"s_mul_i32 s{sT1}, s{sCB}, 160")
                a(f"v_add_u32 v{t1}, s{sT1}, v{t1}")
                issue(f"global_load_dwordx2 v[{DR+2*i}:{DR+2*i+1}], v{t1}, s[{P_DSK}:{P_DSK+1}]", ("f", 0))
    assert not fill and not wq, (len(fill), len(wq))
    if "kstamp" in FLAGS:
        a("s_waitcnt lgkmcnt(0)"); a(f"v_writelane_b32 v23, s38, 21")
        a("s_memtime s[38:39]"); a("s_waitcnt lgkmcnt(0)"); a(f"v_writelane_b32 v23, s38, 22")
        a(f"s_lshl_b32 s{sT0}, s2, 2"); a(f"s_add_u32 s{sT0}, s{sT0}, s{sW}"); a(f"s_lshl_b32 s{sT0}, s{sT0}, 8")
        a(f"s_add_u32 s{sT0}, s{sT0}, {WS_STAMP + 0x80000}")
        a(f"v_lshl_add_u32 v{t0}, v{vL}, 2, s{sT0}")
        a(f"global_store_dword v{t0}, v23, s[{P_WS}:{P_WS+1}]")
    stp(a, "K2 loop")
    wait_for(lambda tg: tg[0] == "g")
    for j in range(5):
        for i in range(4):
            A_r, B_r = accA(j, i), accB(j, i)
            for h in (0, 2):
                a(f"v_pk_add_f32 v[{A_r+h}:{A_r+h+1}], v[{A_r+h}:{A_r+h+1}], v[{B_r+h}:{B_r+h+1}] neg_lo:[0,1] neg_hi:[0,1]")
            for h in (0, 2):
                a(f"v_pk_fma_f32 v[{B_r+h}:{B_r+h+1}], v[{vG[i]}:{vG[i]+1}], v[{A_r+h}:{A_r+h+1}], v[{B_r+h}:{B_r+h+1}] op_sel_hi:[0,1,1]")
            a(f"ds_write_b128 v{vLW}, v[{B_r}:{B_r+3}] offset:{i*4*RS + 64*j}")
    a("s_waitcnt lgkmcnt(0)")
    a("s_barrier")
    stp(a, "red written")
    for i in range(5):
        b = 120 + 16*i
        for w in range(4):
            a(f"ds_read_b128 v[{b+4*w}:{b+4*w+3}], v{LA+i} offset:{w*RED}")
    a("s_waitcnt vmcnt(0)")
    for i in range(5):
        b = 120 + 16*i
        a(f"s_waitcnt lgkmcnt({min(15,4*(4-i))})")
        a(f"v_pk_add_f32 v[{b}:{b+1}], v[{b}:{b+1}], v[{b+4}:{b+5}]")
        a(f"v_pk_add_f32 v[{b+2}:{b+3}], v[{b+2}:{b+3}], v[{b+6}:{b+7}]")
        a(f"v_pk_add_f32 v[{b+8}:{b+9}], v[{b+8}:{b+9}], v[{b+12}:{b+13}]")
        a(f"v_pk_add_f32 v[{b+10}:{b+11}], v[{b+10}:{b+11}], v[{b+14}:{b+15}]")
        a(f"v_pk_add_f32 v[{b}:{b+1}], v[{b}:{b+1}], v[{b+8}:{b+9}]")
        a(f"v_pk_add_f32 v[{b+2}:{b+3}], v[{b+2}:{b+3}], v[{b+10}:{b+11}]")
        x0, d0_ = XR+2*i, DR+2*i
        for h in range(2):
            a(f"v_lshlrev_b32 v{t1}, 16, v{x0+h}")
            a(f"v_and_b32 v{t2}, 0xffff0000, v{x0+h}")
            a(f"v_lshlrev_b32 v{t3}, 16, v{d0_+h}")
            a(f"v_and_b32 v{t4}, 0xffff0000, v{d0_+h}")
            a(f"v_mul_f32 v{t1}, v{t1}, v{t3}")
            a(f"v_mul_f32 v{t2}, v{t2}, v{t4}")
            a(f"v_fmac_f32 v{b+2*h}, v{GR+i}, v{t1}")
            a(f"v_fmac_f32 v{b+2*h+1}, v{GR+i}, v{t2}")
        a(f"global_store_dwordx4 v{OA+i}, v[{b}:{b+3}], s[{P_OUT}:{P_OUT+1}]")
    stp(a, "out stored")
    if LSTAMP:
        pass
    stp.dump(a, sW, sT0, P_WS, WS_STAMP)
    a.label("L_end")
    a("s_endpgm")
    a.label("L_codeend")
    return a.text()

HEADER = open("gated_mix__ssm_conv_s5__glu_gated_bilinear__prompt.s.ref").read().split("; Override launch")[0]
def main():
    out = HEADER
    out += "; Override launch geometry by editing the next line. Harness parses it; keep it on one line.\n"
    out += "; @launch grid=(256,1,1) block=(256,1,1) lds=163840\n"
    out += '.amdgcn_target "amdgcn-amd-amdhsa--gfx950"\n.text\n'
    out += f".globl {KNAME}\n.p2align 8\n.type {KNAME},@function\n" + gen()
    out += f""".section .rodata,"a"
.p2align 6
.amdhsa_kernel {KNAME}
  .amdhsa_next_free_vgpr 512
  .amdhsa_next_free_sgpr 102
  .amdhsa_accum_offset 256
  .amdhsa_group_segment_fixed_size 0
  .amdhsa_kernarg_size 136
  .amdhsa_user_sgpr_count 2
  .amdhsa_user_sgpr_kernarg_segment_ptr 1
  .amdhsa_system_sgpr_workgroup_id_x 1
  .amdhsa_float_denorm_mode_32 3
.end_amdhsa_kernel
"""
    path = [x for x in sys.argv[1:] if not x.startswith("--")][0]
    open(path, "w").write(out)
    json.dump([[d[i] for i in sorted(d)] for d in NAMES], open(path + ".names", "w"))
main()
```

```python
import sys, json
from asmlib import *

FLAGS = set(x[2:] for x in sys.argv[1:] if x.startswith("--"))
STAMP = "stamp" in FLAGS
NAMES = []
KNAME = "gated_mix__ssm_conv_s5__glu_gated_bilinear__prompt_kernel"

WS_H   = 0
WS_G   = 0xB00000
WS_S   = 0xB10000
WS_FB  = 0xB40000
WS_FA  = 0xB42000
WS_PF  = 0xB44000
WS_W2  = 0xC00000
W2_SIZE = 8*88*5*1024
WS_STAMP = 0x1000000
LOG2E = 0x3fb8aa3b
INV2PI = 0x3e22f983
SC = "" if "nosc" in FLAGS else " sc1"
SCL = "" if ("nosc" in FLAGS or "noscl" in FLAGS) else " sc1"
LSTAMP = "lstamp" in FLAGS

def srd(a, d, base, size, add=0):
    o = []
    if add == 0:
        o += [f"s_mov_b32 s{d}, s{base}", f"s_mov_b32 s{d+1}, s{base+1}"]
    elif add > 0:
        o += [f"s_add_u32 s{d}, s{base}, {add}", f"s_addc_u32 s{d+1}, s{base+1}, 0"]
    else:
        o += [f"s_sub_u32 s{d}, s{base}, {-add}", f"s_subb_u32 s{d+1}, s{base+1}, 0"]
    o += [f"s_mov_b32 s{d+2}, {size}", f"s_mov_b32 s{d+3}, 0x00020000"]
    if a is None: return o
    for x in o: a(x)

class Stamper:
    def __init__(self, store):
        self.store = store; self.n = 0; self.tmp = [98, 100]; self.names = {}
        NAMES.append(self.names)
    def __call__(self, a, name=""):
        if not STAMP: return
        if self.n > 0:
            a(f"s_mov_b32 s{self.store[self.n-1]}, s{self.tmp[(self.n-1)&1]}")
        assert self.n < len(self.store), "too many stamps"
        a(f"s_memtime s[{self.tmp[self.n&1]}:{self.tmp[self.n&1]+1}]")
        self.names[self.n] = name
        self.n += 1
    def dump(self, a, sW, sT0, P_WS, base):
        if not STAMP: return
        a("s_waitcnt vmcnt(0) lgkmcnt(0)")
        self(a, "end")
        a("s_waitcnt lgkmcnt(0)")
        a(f"s_mov_b32 s{self.store[self.n-1]}, s{self.tmp[(self.n-1)&1]}")
        a(f"s_lshl_b32 s{sT0}, s2, 2")
        a(f"s_add_u32 s{sT0}, s{sT0}, s{sW}")
        a(f"s_lshl_b32 s{sT0}, s{sT0}, 7")
        a(f"s_add_u32 s{sT0}, s{sT0}, {base}")
        a(f"v_mov_b32 v2, s{sT0}")
        for i in range(self.n):
            a(f"v_mov_b32 v3, s{self.store[i]}")
            a(f"global_store_dword v2, v3, s[{P_WS}:{P_WS+1}] offset:{4*i}")

def rr(*streams):
    out = []
    n = max(len(s) for s in streams)
    for i in range(n):
        for s in streams:
            if i < len(s): out.append(s[i])
    return out

def weave(a, work, mem, start=0, every=None):
    n = len(work); m = len(mem)
    if m == 0: pos = []
    elif every is None: pos = [start + int((n - start) * i / m) for i in range(m)]
    else: pos = [start + every*i for i in range(m)]
    mi = 0
    def emit(it):
        if isinstance(it, str): a(it)
        else:
            for x in it: a(x)
    for i, w in enumerate(work):
        while mi < m and pos[mi] <= i:
            emit(mem[mi]); mi += 1
        emit(w)
    while mi < m:
        emit(mem[mi]); mi += 1

SPIN_MAX = 100000
def spin_init(a): a("s_mov_b32 s95, 0")
def spin_guard(a, out_label):
    a("s_add_u32 s95, s95, 1")
    a(f"s_cmp_gt_u32 s95, {SPIN_MAX}")
    a(f"s_cbranch_scc1 {out_label}")

DPPSW = "quad_perm:[1,0,3,2] row_mask:0xf bank_mask:0xf"
P_X, P_LRE, P_LIM, P_BRE, P_BIM, P_CRE, P_CIM, P_LDT = 4,6,8,10,12,14,16,18
P_DSK, P_BX, P_WG, P_WU = 20,22,24,26
P_WD, P_GW, P_OUT, P_DBG = 28,30,32,34
P_WS = 36

def gen():
    a = Asm()
    stp = Stamper([96,97,22,23,6,7,8,9,18,19,10,11,12,13,24,25,26,27,95,94,73,74,75,76,77,80,81,82,83])
    SX, SG, SU, SB0, SB1, SB2, SM = 40,44,48,52,56,60,64
    sEX = 38
    sW, sRH, sCH, sRB, sCG = 68,69,70,71,72
    sDB, sCur, sD, sC3, sStage = 73,74,75,76,77
    sKX, sKG, sKU, sKB = 78,79,80,81
    sOX, sOG, sOU, sOB, sOB2 = 82,83,84,85,86
    sT0, sT1, sT2 = 87,88,89
    sF = 87
    sBlk, sRB2, sCB = 90, 91, 92
    sT3 = 93
    sNonce = 3
    vL = 1
    vDX, vDW, vDB = 2, 6, 9
    vX0, vX1, vWa, vWb, vWc, vB0, vB1 = 12,13,14,15,16,17,18
    t0, t1, t2, t3, t4 = 19,20,21,22,23
    vA  = [24,25,26]; vBx = [27,28,29]; vLRE = [30,31,32]; vLIM = [33,34,35]
    vLr = [36,37,38]; vLi = [39,40,41]; vWSr = [42,43,44]; vWSi = [45,46,47]
    vSgn, vNon, vSig, vWp = 48, 49, 50, 51
    vPF = 52
    SCR = 52
    vC, vAe, vAe4, vRw = 90, 91, 92, 93
    pa = [94, 95, 96]
    GLD = 56
    vGst, vGv = 71, 72
    RA, GA = 2, 3
    Ps = [4, 5, 6]
    vAs, vCm = 97, 98
    vAs2, vCm2 = 7, 8
    vH = 116
    ACC = 120
    BUF = 51200
    RX, RG, RU, RB = 0, 16384, 28672, 40960
    MISC = 3*BUF
    SWB, EF, E4, RWB = 0, 1280, 5120, 7104
    EF0 = EF + 7*256; E40 = E4 + 15*64
    HTS = 272
    def acc(n, i): return ACC + n*16 + 4*i
    SA, SBt, S4 = ACC+96, ACC+112, ACC+128
    CL = 52
    PK = 100
    vPWs, vPCs, vPWd, vPCd, vPtr = 61, 63, 64, 66, 68
    TP = 69

    a.label(KNAME)
    a(f"s_cmp_ge_u32 s2, 256")
    a(f"s_cbranch_scc1 L_end")
    if "nocodepf" not in FLAGS:
        a("s_getpc_b64 s[40:41]")
        a.label("L_pc")
        a("v_lshlrev_b32 v2, 2, v0")
        a("s_lshr_b32 s42, s2, 3")
        a("s_lshl_b32 s42, s42, 10")
        a("v_add_u32 v2, s42, v2")
        a("v_min_u32 v2, L_codeend-L_pc-4, v2")
        a("v_mov_b32 v3, s41")
        a("v_add_co_u32 v2, vcc, s40, v2")
        a("v_addc_co_u32 v3, vcc, 0, v3, vcc")
        a("global_load_dword v99, v[2:3], off")
    a(f"s_load_dwordx16 s[4:19], s[0:1], 0")
    a(f"s_load_dwordx8 s[20:27], s[0:1], 64")
    a(f"s_load_dwordx8 s[28:35], s[0:1], 96")
    a(f"s_load_dwordx2 s[36:37], s[0:1], 128")
    a(f"s_memrealtime s[{sEX}:{sEX+1}]")
    if "dbgt" in FLAGS: a("s_memtime s[96:97]")
    stp(a, "s0")
    a(f"v_lshrrev_b32 v{t0}, 6, v0")
    a(f"v_and_b32 v{vL}, 63, v0")
    a(f"s_and_b32 s{sT0}, s2, 1")
    a(f"v_readfirstlane_b32 s{sW}, v{t0}")
    a(f"s_lshl_b32 s{sT0}, s{sT0}, 3")
    a(f"s_lshr_b32 s{sT1}, s2, 3")
    a(f"s_and_b32 s{sRB}, s{sT1}, 7")
    a(f"s_add_u32 s{sRB}, s{sRB}, s{sT0}")
    a(f"s_lshr_b32 s{sT0}, s2, 1")
    a(f"s_and_b32 s{sT0}, s{sT0}, 3")
    a(f"s_lshl_b32 s{sT2}, s{sT0}, 2")
    a(f"s_lshr_b32 s{sT3}, s2, 6")
    a(f"s_add_u32 s{sCG}, s{sT2}, s{sT3}")
    a(f"s_lshl_b32 s{sT0}, s{sT0}, 3")
    a(f"s_and_b32 s{sT1}, s{sT1}, 7")
    a(f"s_add_u32 s{sRB2}, s{sT0}, s{sT1}")
    a(f"s_and_b32 s{sT0}, s2, 1")
    a(f"s_lshl_b32 s{sT0}, s{sT0}, 2")
    a(f"s_add_u32 s{sCB}, s{sT0}, s{sT3}")
    a(f"s_lshr_b32 s{sRH}, s{sW}, 1")
    a(f"s_and_b32 s{sCH}, s{sW}, 1")
    a(f"v_lshrrev_b32 v{t0}, 3, v{vL}")
    a(f"v_and_b32 v{t1}, 2, v{t0}")
    a(f"s_lshl_b32 s{sT0}, s{sCH}, 2")
    a(f"v_or_b32 v{t1}, s{sT0}, v{t1}")
    a(f"v_and_b32 v{t2}, 7, v{vL}")
    a(f"v_xor_b32 v{t1}, v{t1}, v{t2}")
    a(f"s_lshl_b32 s{sT0}, s{sRB}, 7")
    a(f"s_lshl_b32 s{sT1}, s{sW}, 5")
    a(f"s_add_u32 s{sT0}, s{sT0}, s{sT1}")
    a(f"v_add_u32 v{t0}, s{sT0}, v{t0}")
    a(f"v_mul_u32_u24 v{t0}, 1280, v{t0}")
    a(f"v_lshl_add_u32 v{vDX}, v{t1}, 4, v{t0}")
    for i in range(1,4):
        a(f"v_add_u32 v{vDX+i}, {9216*i}, v{vDX}")
    a(f"s_lshl_b32 s{sOX}, s{sW}, 12")
    a(f"s_mul_i32 s{sOG}, s{sW}, 3072")
    a(f"s_add_u32 s{sOU}, s{sOG}, {RU}")
    a(f"s_add_u32 s{sOG}, s{sOG}, {RG}")
    for r in (sKX, sKG, sKU, sKB): a(f"s_mov_b32 s{r}, 0")
    a("s_waitcnt lgkmcnt(0)")
    a(f"s_or_b32 s{sT0}, s2, s{sW}")
    a(f"s_cmp_lg_u32 s{sT0}, 0")
    a(f"s_cbranch_scc1 L_no_nonce")
    a(f"s_or_b32 s{sT0}, s{sEX}, 1")
    a(f"v_mov_b32 v{t0}, s{sT0}")
    a(f"v_mov_b32 v{t1}, 0")
    a(f"s_mov_b64 exec, 1")
    a(f"global_store_dword v{t1}, v{t0}, s[{P_DBG}:{P_DBG+1}]{SC}")
    a(f"s_mov_b64 exec, -1")
    a.label("L_no_nonce")
    if "dbgt" in FLAGS: a(f"s_mov_b32 s101, s{sEX}")
    srd(a, SX, P_X, 2621440)
    def dma(vo, S, so, off):
        o = f" offset:{off}" if off else ""
        return f"buffer_load_dwordx4 v{vo}, s[{S}:{S+3}], s{so} offen{o} lds"
    def dgrp(base_expr, items):
        g = [[f"s_add_u32 m0, {base_expr}", "s_nop 0", items[0]]]
        g += [[x] for x in items[1:]]
        return g
    def stage_x(b):  return dgrp(f"s{sOX}, {b}", [dma(vDX+i, SX, sKX, 1024*i) for i in range(4)])
    def stage_g(b):  return dgrp(f"s{sOG}, {b}", [dma(vDW+i, SG, sKG, 1024*i) for i in range(3)])
    def stage_u(b):  return dgrp(f"s{sOU}, {b}", [dma(vDW+i, SU, sKU, 1024*i) for i in range(3)])
    def stage_b(b):  return dgrp(f"s{sOB}, {b}", [dma(vDB, SB0, sKB, 0), dma(vDB+1, SB1, sKB, 1024)]) + dgrp(f"s{sOB2}, {b}", [dma(vDB+2, SB2, sKB, 0)])
    wW = [f"s_mul_i32 s{sT0}, s{sW}, 192", f"s_mul_i32 s{sT1}, s{sCG}, 192"]
    for i in range(3):
        wW += [f"v_add_u32 v{t0}, s{sT0}, v{vL}"]
        if i: wW += [f"v_add_u32 v{t0}, {64*i}, v{t0}"]
        wW += [f"v_mul_u32_u24 v{t1}, 43691, v{t0}", f"v_lshrrev_b32 v{t1}, 19, v{t1}", f"v_mul_u32_u24 v{t2}, 12, v{t1}",
               f"v_sub_u32 v{t2}, v{t0}, v{t2}", f"v_lshrrev_b32 v{t3}, 2, v{t1}", f"v_and_b32 v{t3}, 2, v{t3}",
               f"v_xor_b32 v{t2}, v{t2}, v{t3}", f"v_mul_u32_u24 v{t1}, 3072, v{t1}", f"v_lshl_add_u32 v{t1}, v{t2}, 4, v{t1}",
               f"v_add_u32 v{vDW+i}, s{sT1}, v{t1}"]
        if i: wW += [f"v_subrev_u32 v{vDW+i}, {1024*i}, v{vDW+i}"]
    wW += srd(None, SG, P_WG, 1966080) + srd(None, SU, P_WU, 1966080)
    weave(a, wW, stage_x(0), start=0)
    wB = [f"s_mul_i32 s{sT3}, s{sCG}, 40", f"s_mul_i32 s{sT2}, s{sW}, 3",
          [f"s_cmp_eq_u32 s{sW}, 3", f"s_cselect_b32 s{sT2}, 8, s{sT2}"],
          f"s_add_u32 s{sD}, s{sT2}, 2",
          [f"s_cmp_ge_u32 s{sW}, 2", f"s_cselect_b32 s{sT0}, 1, 0"],
          f"s_sub_u32 s{sD}, s{sD}, s{sT0}",
          f"s_lshl_b32 s{sOB}, s{sT2}, 10", f"s_add_u32 s{sOB}, s{sOB}, {RB}",
          f"s_lshl_b32 s{sOB2}, s{sD}, 10", f"s_add_u32 s{sOB2}, s{sOB2}, {RB}",
          f"v_lshrrev_b32 v{t3}, 4, v{vL}", f"v_lshlrev_b32 v{t3}, 1, v{t3}", f"v_and_b32 v{t4}, 7, v{vL}"]
    for i in range(3):
        wB += [f"s_mov_b32 s{sT0}, s{sT2}" if i == 0 else (f"s_add_u32 s{sT0}, s{sT2}, 1" if i == 1 else f"s_mov_b32 s{sT0}, s{sD}")]
        wB += [[f"s_cmp_ge_u32 s{sT0}, 5", f"s_cselect_b32 s{sT1}, 1, 0", f"s_cselect_b32 s{sC3}, 5, 0"],
               f"s_sub_u32 s{sT0}, s{sT0}, s{sC3}", f"s_lshl_b32 s{sT0}, s{sT0}, 3", f"s_add_u32 s{sT0}, s{sT0}, s{sT3}",
               f"v_lshrrev_b32 v{t0}, 3, v{vL}", f"v_add_u32 v{t0}, s{sT0}, v{t0}", f"v_mul_u32_u24 v{t0}, 1280, v{t0}",
               f"v_add_u32 v{t1}, s{sT1}, v{t3}", f"v_xor_b32 v{t1}, v{t1}, v{t4}", f"v_lshl_add_u32 v{t0}, v{t1}, 4, v{t0}",
               f"v_add_u32 v{vDB+i}, {4096 - (1024*i if i < 2 else 0)}, v{t0}"]
    for i, S in enumerate([SB0, SB1, SB2]):
        wB += [[f"s_cmp_ge_u32 s{sW}, {2 if i < 2 else 1}", f"s_cselect_b32 s{S}, s{P_BIM}, s{P_BRE}", f"s_cselect_b32 s{S+1}, s{P_BIM+1}, s{P_BRE+1}"],
               [f"s_sub_u32 s{S}, s{S}, 4096", f"s_subb_u32 s{S+1}, s{S+1}, 0"],
               f"s_mov_b32 s{S+2}, {819200+4096}", f"s_mov_b32 s{S+3}, 0x00020000"]
    weave(a, wB, stage_g(0) + stage_u(0), start=0)
    c1, c2 = TP, TP+1
    wC = [f"v_and_b32 v{t0}, 15, v{vL}", f"v_lshrrev_b32 v{t0}, 1, v{t0}", f"s_mul_i32 s{sT0}, s{sCG}, 40",
          f"s_lshl_b32 s{sT1}, s{sCH}, 4", f"s_add_u32 s{sT1}, s{sT1}, s{sT0}", f"v_add_u32 v{c1}, s{sT1}, v{t0}",
          f"v_lshlrev_b32 v{c1}, 1, v{c1}", f"s_add_u32 s{sT0}, s{sT0}, 32", f"v_add_u32 v{c2}, s{sT0}, v{t0}",
          f"v_lshlrev_b32 v{c2}, 1, v{c2}"]
    wC += [f"s_mul_i32 s{sT0}, s2, 52429", f"s_lshr_b32 s{sT0}, s{sT0}, 18", f"s_mul_i32 s{sT1}, s{sT0}, 5", f"s_sub_u32 s{sT1}, s2, s{sT1}",
           f"v_lshrrev_b32 v{t0}, 2, v{vL}", f"s_lshl_b32 s{sT2}, s{sT0}, 5", f"v_add_u32 v{t0}, s{sT2}, v{t0}",
           f"v_mul_u32_u24 v{t0}, 1280, v{t0}", f"v_and_b32 v{t1}, 3, v{vL}", f"v_lshl_add_u32 v{t0}, v{t1}, 4, v{t0}",
           f"s_lshl_b32 s{sT2}, s{sT1}, 8", f"v_add_u32 v{t0}, s{sT2}, v{t0}", f"s_lshl_b32 s{sT2}, s{sW}, 6",
           f"v_add_u32 v{vPWs}, s{sT2}, v{t0}", f"v_add_u32 v{vPWs+1}, {16*1280-1024}, v{vPWs}"]
    for k in range(2):
        wC += [f"s_lshl_b32 s{sT2}, s{sT1}, 3", f"s_lshl_b32 s{sT3}, s{sW}, 1", f"s_add_u32 s{sT2}, s{sT2}, s{sT3}"]
        if k: wC += [f"s_add_u32 s{sT2}, s{sT2}, 1"]
        wC += [f"s_mul_i32 s{sT3}, s{sT2}, 52429", f"s_lshr_b32 s{sT3}, s{sT3}, 18", f"s_mul_i32 s{sD}, s{sT3}, 5",
               f"s_sub_u32 s{sT2}, s{sT2}, s{sD}", f"s_mul_i32 s{sT3}, s{sT3}, 88", f"s_add_u32 s{sT3}, s{sT3}, s{sT0}",
               f"s_add_u32 s{sT3}, s{sT3}, 40", f"s_mul_i32 s{sT3}, s{sT3}, 5", f"s_add_u32 s{sT3}, s{sT3}, s{sT2}",
               f"s_lshl_b32 s{sT3}, s{sT3}, 10", f"s_add_u32 s{sT3}, s{sT3}, {WS_W2}",
               f"v_lshlrev_b32 v{vPWd+k}, 4, v{vL}", f"v_add_u32 v{vPWd+k}, s{sT3}, v{vPWd+k}"]
    wC += [f"s_lshl_b32 s{sT0}, s2, 3", f"s_lshl_b32 s{sT1}, s{sW}, 1", f"s_add_u32 s{sT0}, s{sT0}, s{sT1}",
           f"s_mul_i32 s{sT1}, s{sT0}, 52429", f"s_lshr_b32 s{sT1}, s{sT1}, 21", f"s_mul_i32 s{sT2}, s{sT1}, 40",
           f"s_sub_u32 s{sT0}, s{sT0}, s{sT2}",
           [f"s_cmp_ge_u32 s{sT0}, 20", f"s_cselect_b32 s{sC3}, 1, 0", f"s_cselect_b32 s{sT2}, 20, 0"],
           f"s_sub_u32 s{sT2}, s{sT0}, s{sT2}",
           f"v_and_b32 v{t0}, 15, v{vL}", f"s_lshl_b32 s{sT3}, s{sT1}, 4", f"v_add_u32 v{t0}, s{sT3}, v{t0}",
           f"v_mul_u32_u24 v{t0}, 1280, v{t0}", f"v_lshrrev_b32 v{t1}, 4, v{vL}", f"v_lshl_add_u32 v{t0}, v{t1}, 4, v{t0}",
           f"s_lshl_b32 s{sT2}, s{sT2}, 6", f"v_add_u32 v{vPCs}, s{sT2}, v{t0}",
           f"s_mul_i32 s{sT3}, s{sT1}, 52429", f"s_lshr_b32 s{sT3}, s{sT3}, 18", f"s_mul_i32 s{sD}, s{sT3}, 5",
           f"s_sub_u32 s{sT1}, s{sT1}, s{sD}", f"s_mul_i32 s{sT3}, s{sT3}, 88", f"s_add_u32 s{sT3}, s{sT3}, s{sT0}",
           f"s_mul_i32 s{sT3}, s{sT3}, 5", f"s_add_u32 s{sT3}, s{sT3}, s{sT1}", f"s_lshl_b32 s{sT3}, s{sT3}, 10",
           f"s_add_u32 s{sT3}, s{sT3}, {WS_W2}", f"v_lshlrev_b32 v{vPCd}, 4, v{vL}", f"v_add_u32 v{vPCd}, s{sT3}, v{vPCd}",
           f"v_add_u32 v{vPCd+1}, {5*1024}, v{vPCd}",
           f"s_lshl_b32 s{sT0}, s{sW}, 11", f"s_add_u32 s95, s{sT0}, {MISC}"]
    weave(a, wC, stage_b(0), start=0)
    stp(a, "S0 issued")
    sm = []
    for k, P in enumerate((P_LRE, P_LIM, P_LDT)):
        sm += [f"global_load_ushort v{CL+3*k}, v{c1}, s[{P}:{P+1}]", f"global_load_ushort v{CL+3*k+1}, v{c1}, s[{P}:{P+1}] offset:16",
               f"global_load_ushort v{CL+3*k+2}, v{c2}, s[{P}:{P+1}]"]
    sm += [srd(None, SM, P_WD, 1966080) + [f"s_cmp_lt_u32 s2, 240", f"s_cselect_b32 s{SM+2}, s{SM+2}, 0", "s_mov_b32 m0, s95", "s_nop 0",
           f"buffer_load_dwordx4 v{vPWs}, s[{SM}:{SM+3}], 0 offen lds"],
           [f"buffer_load_dwordx4 v{vPWs+1}, s[{SM}:{SM+3}], 0 offen offset:1024 lds"],
           [f"s_cmp_eq_u32 s{sC3}, 1", f"s_cselect_b32 s{SM}, s{P_CIM}, s{P_CRE}", f"s_cselect_b32 s{SM+1}, s{P_CIM+1}, s{P_CRE+1}",
            f"s_mov_b32 s{SM+2}, 819200", f"s_cmp_lt_u32 s2, 200", f"s_cselect_b32 s{SM+2}, s{SM+2}, 0",
            f"buffer_load_dwordx4 v[{PK}:{PK+3}], v{vPCs}, s[{SM}:{SM+3}], 0 offen"],
           [f"buffer_load_dwordx4 v[{PK+4}:{PK+7}], v{vPCs}, s[{SM}:{SM+3}], 0 offen offset:64"]]
    m, q = t0, t1
    wL = [f"v_and_b32 v{m}, 15, v{vL}", f"v_lshrrev_b32 v{q}, 4, v{vL}",
          f"v_lshrrev_b32 v{t2}, 2, v{m}", f"v_lshlrev_b32 v{t2}, 4, v{t2}", f"v_and_b32 v{t3}, 3, v{m}", f"v_add_u32 v{t2}, v{t2}, v{t3}",
          f"s_lshl_b32 s{sT0}, s{sRH}, 6", f"v_add_u32 v{t2}, s{sT0}, v{t2}", f"v_lshlrev_b32 v{t2}, 7, v{t2}",
          f"v_and_b32 v{t3}, 2, v{m}", f"v_lshrrev_b32 v{t4}, 3, v{m}", f"v_lshl_or_b32 v{t3}, v{t4}, 2, v{t3}",
          f"v_xor_b32 v{t3}, v{t3}, v{q}", f"v_lshl_add_u32 v{vX0}, v{t3}, 4, v{t2}", f"v_xor_b32 v{t3}, 4, v{t3}",
          f"v_lshl_add_u32 v{vX1}, v{t3}, 4, v{t2}",
          f"v_lshrrev_b32 v{t2}, 2, v{m}", f"v_lshl_add_u32 v{t2}, v{q}, 3, v{t2}", f"v_mul_u32_u24 v{t2}, 192, v{t2}",
          f"v_and_b32 v{t3}, 3, v{m}", f"v_lshl_add_u32 v{t2}, v{t3}, 3, v{t2}", f"v_and_b32 v{t3}, 1, v{q}",
          f"v_lshl_add_u32 v{vWa}, v{t3}, 5, v{t2}", f"v_xor_b32 v{t3}, 1, v{t3}", f"v_lshl_add_u32 v{vWb}, v{t3}, 5, v{t2}",
          [f"s_cmp_eq_u32 s{sCH}, 1", f"s_cselect_b64 vcc, -1, 0", f"v_cndmask_b32 v{vWc}, v{vWa}, v{vWb}, vcc"],
          f"v_add_u32 v{vWc}, 64, v{vWc}", f"s_lshl_b32 s{sT0}, s{sCH}, 7", f"v_add_u32 v{vWa}, s{sT0}, v{vWa}", f"v_add_u32 v{vWb}, s{sT0}, v{vWb}",
          f"v_and_b32 v{t2}, 1, v{m}", f"v_lshrrev_b32 v{t3}, 2, v{m}", f"v_lshl_add_u32 v{t3}, v{t3}, 1, v{t2}", f"v_xor_b32 v{t3}, v{t3}, v{q}",
          f"v_mul_u32_u24 v{t2}, 40, v{t2}", f"v_lshrrev_b32 v{t4}, 1, v{m}", f"v_add_u32 v{t2}, v{t2}, v{t4}", f"v_lshlrev_b32 v{t2}, 7, v{t2}",
          f"s_lshl_b32 s{sT0}, s{sCH}, 11", f"v_add_u32 v{t2}, s{sT0}, v{t2}", f"v_lshl_add_u32 v{vB0}, v{t3}, 4, v{t2}",
          f"v_xor_b32 v{t3}, 4, v{t3}", f"v_lshl_add_u32 v{vB1}, v{t3}, 4, v{t2}",
          f"s_lshl_b32 s{sT0}, s{sRH}, 2", f"v_add_u32 v{vSig}, s{sT0}, v{q}",
          f"v_and_b32 v{t2}, 1, v{vL}", f"v_cvt_f32_u32 v{t2}, v{t2}", f"v_fma_f32 v{vSgn}, v{t2}, 2.0, -1.0",
          f"v_lshrrev_b32 v{t2}, 2, v{m}", f"v_lshl_add_u32 v{t2}, v{q}, 2, v{t2}", f"v_lshlrev_b32 v{t2}, 6, v{t2}",
          f"v_and_b32 v{t3}, 3, v{m}", f"v_lshl_add_u32 v{t2}, v{t3}, 3, v{t2}", f"v_add_u32 v{vPtr}, s95, v{t2}",
          f"v_lshlrev_b32 v{vC}, 2, v{m}", f"s_lshl_b32 s{sT0}, s{sCH}, 7", f"v_add_u32 v{vAs}, s{sT0}, v{vC}",
          f"v_add_u32 v{vCm}, {MISC}, v{vC}", f"v_add_u32 v{vAe}, {MISC}, v{vAs}", f"v_lshl_add_u32 v{vAe}, v{vSig}, 8, v{vAe}",
          f"v_lshlrev_b32 v{vAe4}, 1, v{vSig}", f"v_add_u32 v{vAe4}, s{sCH}, v{vAe4}", f"v_lshl_add_u32 v{vAe4}, v{vAe4}, 6, v{vCm}",
          f"s_mul_i32 s{sT0}, s{sW}, 320", f"s_add_u32 s{sT0}, s{sT0}, {MISC}", f"v_add_u32 v{vRw}, s{sT0}, v{vAs}",
          f"v_lshlrev_b32 v{vWp}, 4, v{vL}", f"s_mul_i32 s{sT0}, s{sRB2}, {4*88*1024}", f"v_add_u32 v{vH}, s{sT0}, v{vWp}"]
    wL += [f"v_add_u32 v{vH+i}, {i*88*1024}, v{vH}" for i in range(1,4)]
    weave(a, wL, sm, start=0)
    stp(a, "small issued")
    a(f"s_mov_b32 s{sKX}, 128"); a(f"s_mov_b32 s{sKG}, 196608"); a(f"s_mov_b32 s{sKU}, 196608"); a(f"s_mov_b32 s{sKB}, 128")
    wQ = []
    wQ += [f"s_mul_i32 s{sT0}, s{sCG}, {16*640}", f"s_add_u32 s{sT0}, s{sT0}, {WS_S}",
           f"v_mul_u32_u24 v{pa[0]}, 640, v{vSig}", f"v_lshl_add_u32 v{pa[0]}, v{vAs}, 1, v{pa[0]}", f"v_add_u32 v{pa[0]}, s{sT0}, v{pa[0]}",
           f"v_add_u32 v{pa[1]}, {8*640}, v{pa[0]}", f"v_lshlrev_b32 v{t0}, 1, v{vSig}", f"v_add_u32 v{t0}, s{sCH}, v{t0}",
           f"v_mul_u32_u24 v{pa[2]}, 640, v{t0}", f"v_lshl_add_u32 v{pa[2]}, v{vC}, 1, v{pa[2]}", f"v_add_u32 v{pa[2]}, s{sT0}, v{pa[2]}",
           f"v_add_u32 v{pa[2]}, {64*8}, v{pa[2]}", f"v_mov_b32 v{t4}, 0x7f000000", f"v_add_u32 v{t1}, 8, v{vSig}"]
    for (p_, src) in ((pa[0], vSig), (pa[1], t1), (pa[2], t0)):
        wQ += [[f"v_cmp_le_u32 vcc, s{sRB}, v{src}", "s_nop 1", f"v_cndmask_b32 v{p_}, v{p_}, v{t4}, vcc"]]
    S1 = stage_x(BUF) + stage_g(BUF) + stage_u(BUF) + stage_b(BUF)
    Z2 = 76
    wQ += [f"v_mov_b32 v{Z2+k}, 0" for k in range(4)] + ["s_nop 1"]
    wQ += [f"v_mfma_f32_32x32x16_bf16 v[{ACC+16*k}:{ACC+16*k+15}], v[{Z2}:{Z2+3}], v[{Z2}:{Z2+3}], 0" for k in range(8)]
    wQ += [f"v_mfma_f32_16x16x32_bf16 v[{ACC+128}:{ACC+131}], v[{Z2}:{Z2+3}], v[{Z2}:{Z2+3}], 0",
           f"v_mfma_f32_16x16x32_bf16 v[{ACC+132}:{ACC+135}], v[{Z2}:{Z2+3}], v[{Z2}:{Z2+3}], 0"]
    weave(a, wQ, S1, start=0)
    a(f"s_mov_b32 s{sKX}, {2*128}"); a(f"s_mov_b32 s{sKG}, {2*196608}")
    a(f"s_mov_b32 s{sKU}, {2*196608}"); a(f"s_mov_b32 s{sKB}, {2*128}")
    a(f"s_mov_b32 s{sDB}, {2*BUF}")
    a(f"s_mov_b32 s{sCur}, 0"); a(f"s_mov_b32 s{sD}, {BUF}"); a(f"s_mov_b32 s{sC3}, 0")
    a(f"s_mov_b32 s{sStage}, 0")
    a(f"s_mov_b32 s{sBlk}, {(1<<1)|(1<<5):#x}")
    stp(a, "S1 issued")
    a("s_waitcnt vmcnt(13)")
    a("s_barrier")
    stp(a, "S0 landed")
    def cpow_s(dr, di, A, B, n, tm, sgn):
        o = []
        if n is None:
            o += [f"v_exp_f32 v{tm}, v{A}", f"v_rndne_f32 v{dr}, v{B}", f"v_sub_f32 v{tm+1}, v{B}, v{dr}"]
        else:
            o += [f"v_mul_f32 v{tm}, {n}, v{A}", f"v_mul_f32 v{tm+1}, {n}, v{B}", f"v_exp_f32 v{tm}, v{tm}",
                  f"v_rndne_f32 v{dr}, v{tm+1}", f"v_sub_f32 v{tm+1}, v{tm+1}, v{dr}"]
        o += [f"v_cos_f32 v{dr}, v{tm+1}", f"v_sin_f32 v{di}, v{tm+1}"]
        if sgn is not None:
            o += [f"v_mul_f32 v{dr}, v{tm}, v{dr}", f"v_mul_f32 v{tm}, v{sgn}, v{tm}", f"v_mul_f32 v{di}, v{tm}, v{di}"]
        else:
            o += [f"v_mul_f32 v{dr}, v{tm}, v{dr}", f"v_mul_f32 v{di}, v{tm}, v{di}"]
        return o
    def make_Wk():
        Wk = []
        for k in range(2):
            Wk += [f"ds_read_b64_tr_b16 v[{PK+8+4*k}:{PK+9+4*k}], v{vPtr} offset:{32*k}", f"ds_read_b64_tr_b16 v[{PK+10+4*k}:{PK+11+4*k}], v{vPtr} offset:{32*k+1024}"]
        Wk += [srd(None, SM, P_WS, WS_W2 + W2_SIZE) + [f"s_cmp_lt_u32 s2, 200", f"s_cselect_b32 s{SM+2}, s{SM+2}, 0",
                f"buffer_store_dwordx4 v[{PK}:{PK+3}], v{vPCd}, s[{SM}:{SM+3}], 0 offen{SC}",
                f"buffer_store_dwordx4 v[{PK+4}:{PK+7}], v{vPCd+1}, s[{SM}:{SM+3}], 0 offen{SC}"]]
        vN = 71
        Wk += [f"v_cvt_f32_u32 v{vN}, v{vSig}", f"v_mov_b32 v{vN+1}, 0x42e00000", f"s_mov_b32 s{sT0}, 0xc1800000",
               f"v_fma_f32 v{vN}, v{vN}, s{sT0}, v{vN+1}", f"s_lshl_b32 s{sT0}, s{sCH}, 3", f"s_sub_u32 s{sT0}, 8, s{sT0}",
               f"v_cvt_f32_u32 v{vN+2}, s{sT0}", f"v_add_f32 v{vN+2}, v{vN+2}, v{vN}"]
        Wk += [["s_waitcnt lgkmcnt(0)", f"s_mov_b32 s{SM+2}, {WS_W2 + W2_SIZE}", f"s_cmp_lt_u32 s2, 240", f"s_cselect_b32 s{SM+2}, s{SM+2}, 0",
                f"buffer_store_dwordx4 v[{PK+8}:{PK+11}], v{vPWd}, s[{SM}:{SM+3}], 0 offen{SC}",
                f"buffer_store_dwordx4 v[{PK+12}:{PK+15}], v{vPWd+1}, s[{SM}:{SM+3}], 0 offen{SC}"]]
        Z = 76
        Wk += [f"v_lshlrev_b32 v{t0}, 5, v0", f"v_add_u32 v{t0}, {MISC}, v{t0}", f"ds_write_b128 v{t0}, v[{Z}:{Z+3}]", f"ds_write_b128 v{t0}, v[{Z}:{Z+3}] offset:16"]
        streams = []
        for T in range(3):
            tm = 80+2*T; dt = 86+T
            s_ = [f"v_lshlrev_b32 v{vLRE[T]}, 16, v{CL+T}", f"v_lshlrev_b32 v{vLIM[T]}, 16, v{CL+3+T}", f"v_lshlrev_b32 v{dt}, 16, v{CL+6+T}",
                  f"v_mul_f32 v{dt}, {LOG2E:#x}, v{dt}", f"v_exp_f32 v{dt}, v{dt}",
                  f"v_cvt_pk_bf16_f32 v{dt}, v{dt}, v{dt}", f"v_lshlrev_b32 v{dt}, 16, v{dt}",
                  f"v_mul_f32 v{vA[T]}, v{dt}, v{vLRE[T]}", f"v_mul_f32 v{vBx[T]}, v{dt}, v{vLIM[T]}",
                  f"v_mul_f32 v{vA[T]}, {LOG2E:#x}, v{vA[T]}", f"v_mul_f32 v{vBx[T]}, {INV2PI:#x}, v{vBx[T]}"]
            s_ += cpow_s(vLr[T], vLi[T], vA[T], vBx[T], None, tm, vSgn)
            s_ += cpow_s(vWSr[T], vWSi[T], vA[T], vBx[T], f"v{vN if T < 2 else vN+2}", tm, vSgn)
            streams.append(s_)
        Wk += [[x, y, z] for x, y, z in zip(*streams)]
        Wk += [[f"v_mov_b32 v{t0}, 0", f"global_load_dword v{vNon}, v{t0}, s[{P_DBG}:{P_DBG+1}]{SC}"]]
        return Wk

    def dma_first(sdb):
        g = [f"s_add_u32 m0, s{sdb}, s{sOX}"] + [dma(vDX+i, SX, sKX, 1024*i) for i in range(4)]
        g += [f"s_add_u32 m0, s{sdb}, s{sOG}"] + [dma(vDW+i, SG, sKG, 1024*i) for i in range(3)]
        g += [f"s_add_u32 s{sKX}, s{sKX}, 128", f"s_add_u32 s{sKG}, s{sKG}, 196608"]
        return g
    def dma_second(sdb):
        g = [f"s_add_u32 m0, s{sdb}, s{sOU}"] + [dma(vDW+i, SU, sKU, 1024*i) for i in range(3)]
        g += [f"s_add_u32 m0, s{sdb}, s{sOB}", dma(vDB, SB0, sKB, 0), dma(vDB+1, SB1, sKB, 1024)]
        g += [f"s_add_u32 m0, s{sdb}, s{sOB2}", dma(vDB+2, SB2, sKB, 0)]
        g += [f"s_add_u32 s{sKU}, s{sKU}, 196608", f"s_add_u32 s{sKB}, s{sKB}, 128"]
        return g
    def reads(ch, s, setb):
        vX = vX0 if s == 0 else vX1
        vB = vB0 if s == 0 else vB1
        X = [f"ds_read_b128 a[{setb+4*i}:{setb+4*i+3}], v{vX} offset:{RX+i*512}" for i in range(4)]
        def tr(n, region, k):
            vW = (vWa, vWb, vWc)[k]
            b = setb + 16 + 4*n
            o = region + 6144*s
            return [f"ds_read_b64_tr_b16 a[{b}:{b+1}], v{vW} offset:{o}", f"ds_read_b64_tr_b16 a[{b+2}:{b+3}], v{vW} offset:{o+768}"]
        def sb(n, off):
            b = setb + 16 + 4*n
            return [f"ds_read_b128 a[{b}:{b+3}], v{vB} offset:{RB+off}"]
        W = []
        for k in range(3):
            W += tr(2*k, RG, k); W += tr(2*k+1, RU, k)
        W += sb(6, 0) + sb(7, 1024) + sb(8, 4096 - 2048*ch)
        return X[:1] + W[:2] + X[1:] + W[2:]
    def mfmas(ch, setb):
        out = []
        for n in range(6):
            for i in range(4):
                d = acc(n, i)
                out.append(f"v_mfma_f32_16x16x32_bf16 v[{d}:{d+3}], a[{setb+16+4*n}:{setb+16+4*n+3}], a[{setb+4*i}:{setb+4*i+3}], v[{d}:{d+3}]")
        for n in (6, 7):
            for i in range(4):
                d = acc(n, i)
                out.append(f"v_mfma_f32_16x16x32_bf16 v[{d}:{d+3}], a[{setb+4*i}:{setb+4*i+3}], a[{setb+16+4*n}:{setb+16+4*n+3}], v[{d}:{d+3}]")
        for k in range(2):
            i = 2*ch + k
            d = S4 + 4*k
            out.append(f"v_mfma_f32_16x16x32_bf16 v[{d}:{d+3}], a[{setb+4*i}:{setb+4*i+3}], a[{setb+16+32}:{setb+16+35}], v[{d}:{d+3}]")
        return out
    def substep(ch, setb, rd, dmas, late, seq=None):
        main = mfmas(ch, setb)
        gaps = [[] for _ in range(34)]
        for i, r in enumerate(rd): gaps[i].append(r)
        loads = [x for x in dmas if "buffer_load" in x]
        nl = len(loads)
        last = 0
        if nl:
            pos = [1 + int(i*30/nl) for i in range(nl)]
            li = 0; pend = []
            for x in dmas:
                if "buffer_load" in x:
                    p = pos[li]; pp = p - 1
                    for y in reversed(pend):
                        while len(gaps[pp]) >= 2: pp -= 1
                        assert pp >= 0
                        gaps[pp].append(y)
                    pend = []
                    while len(gaps[p]) >= 2: p += 1
                    gaps[p].append(x); last = p
                    li += 1
                else: pend.append(x)
            p = last + 1
            for y in pend:
                while len(gaps[p]) >= 2: p += 1
                gaps[p].append(y)
        g = 0
        for (e, ins) in late:
            g = max(g, e)
            while len(gaps[g]) + len(ins) > 2:
                g += 1
                assert g < 34, "late overflow"
            gaps[g].extend(ins)
        if seq is not None:
            g = 0
            while seq and g < 34:
                if len(gaps[g]) + len(seq[0]) <= 2:
                    gaps[g].extend(seq.pop(0))
                g += 1
        out = []
        for i in range(34):
            out.append(main[i]); out.extend(gaps[i])
        return out
    def gate_seq():
        gw = [GLD, GLD+1, GLD+2, GLD+3, GLD+4]
        xr = [[GLD+6, GLD+7, GLD+8, GLD+9, GLD+5], [GLD+10, GLD+11, GLD+12, GLD+13, GLD+14]]
        ga = [73, 74]; u0, u1, u2, u3 = 75, 76, 77, 78
        q_ = [[f"v_mov_b32 v{ga[0]}, 0", f"v_mov_b32 v{ga[1]}, 0"]]
        for i in range(5):
            q_.append([f"v_lshlrev_b32 v{u0}, 16, v{gw[i]}", f"v_and_b32 v{u1}, 0xffff0000, v{gw[i]}"])
            for r in range(2):
                x_ = xr[r][i]
                q_ += [[f"v_lshlrev_b32 v{u2}, 16, v{x_}", f"v_and_b32 v{u3}, 0xffff0000, v{x_}"],
                       [f"v_mul_f32 v{u2}, v{u2}, v{u0}", f"v_mul_f32 v{u3}, v{u3}, v{u1}"],
                       [f"v_cvt_pk_bf16_f32 v{u2}, v{u2}, v{u3}"],
                       [f"v_and_b32 v{u3}, 0xffff0000, v{u2}", f"v_lshlrev_b32 v{u2}, 16, v{u2}"],
                       [f"v_add_f32 v{ga[r]}, v{ga[r]}, v{u2}", f"v_add_f32 v{ga[r]}, v{ga[r]}, v{u3}"]]
        for sh, rm in (("row_shr:1","0xf"),("row_shr:2","0xf"),("row_shr:4","0xf"),("row_shr:8","0xf"),("row_bcast:15","0xa"),("row_bcast:31","0xc")):
            bc = " bound_ctrl:0" if sh.startswith("row_shr") else ""
            q_.append([f"v_add_f32_dpp v{ga[r]}, v{ga[r]}, v{ga[r]} {sh} row_mask:{rm} bank_mask:0xf{bc}" for r in range(2)])
        q_ += [[f"v_readlane_b32 s{sT1}, v{ga[0]}, 63", f"v_readlane_b32 s{sT2}, v{ga[1]}, 63"],
               [f"v_cmp_eq_u32 vcc, 0, v{vL}"],
               [f"v_mov_b32 v{u3}, s{sT1}", f"v_mov_b32 v{u2}, s{sT2}"],
               [f"v_cndmask_b32 v{u2}, v{u2}, v{u3}, vcc"], [f"v_cvt_pk_bf16_f32 v{u2}, v{u2}, v{u2}"],
               [f"v_lshlrev_b32 v{u2}, 16, v{u2}", f"v_mul_f32 v{u2}, 0xbfb8aa3b, v{u2}"],
               [f"v_exp_f32 v{u2}, v{u2}"], [f"v_add_f32 v{u2}, 1.0, v{u2}"], [f"v_rcp_f32 v{u2}, v{u2}"],
               [f"v_cvt_pk_bf16_f32 v{u2}, v{u2}, v{u2}"], [f"v_lshlrev_b32 v{vGv}, 16, v{u2}", f"s_lshl_b32 s{sT1}, s94, 2"],
               [f"s_add_u32 s{sT1}, s{sT1}, {WS_G}"], [f"v_lshl_add_u32 v{vGst}, v{vL}, 2, s{sT1}"]]
        return q_
    def wbase(g, j):
        if g < 7: return 104 + 20*g + 4*j
        if g < 11: return 20*(g-7) + 4*j
        return 80 + 4*j if j < 2 else 244 + 4*(j-2)
    SW2, SH = SX, SG
    sKW, sKW4, sKH = sKX, sKG, sKU
    def wload(g, j):
        b = wbase(g, j)
        if j < 4:
            o = f" offset:{1024*j}" if j else ""
            return f"buffer_load_dwordx4 a[{b}:{b+3}], v{vWp}, s[{SW2}:{SW2+3}], s{sKW} offen{o}{SCL}"
        return f"buffer_load_dwordx4 a[{b}:{b+3}], v{vWp}, s[{SW2}:{SW2+3}], s{sKW4} offen{SCL}"
    def wstep(g, inc=5120):
        return [wload(g, j) for j in range(5)] + [f"s_add_u32 s{sKW}, s{sKW}, {inc}", f"s_add_u32 s{sKW4}, s{sKW4}, {inc}"]

    A_, B_ = 0, 52
    a(f"s_cmp_eq_u32 s{sCH}, 1")
    a(f"s_cbranch_scc1 L_pre1")
    rot0 = lambda: [(24, [f"s_mov_b32 s{sF}, s{sCur}"]), (24, [f"s_add_u32 s{sCur}, s{sCur}, s{sD}"]),
                  (24, [f"s_add_u32 s{sC3}, s{sC3}, 1"]),
                  (24, [f"s_cmp_eq_u32 s{sC3}, 3", f"s_cselect_b32 s{sC3}, 0, s{sC3}"]),
                  (24, [f"s_cmp_eq_u32 s{sC3}, 2", f"s_cselect_b32 s{sD}, {3*BUF}, 0"]),
                  (24, [f"s_sub_u32 s{sD}, {BUF}, s{sD}"])]
    n0 = stp.n
    for ch in (0, 1):
        stp.n = n0
        a.label(f"L_pre{ch}")
        for r in reads(ch, 0, A_): a(r)
        a(f"v_add_u32 v{vX0}, {BUF}, v{vX0}")
        a(f"v_add_u32 v{vB0}, {BUF}, v{vB0}")
        d1 = dma_first(sDB)
        grp = []; cur_ = []
        for x in d1:
            cur_.append(x)
            if "m0" in x.split(",")[0]: cur_.append("s_nop 0")
            if "buffer_load" in x: grp.append(cur_); cur_ = []
        grp[-1] += cur_
        weave(a, make_Wk(), grp, start=1)
        a("s_waitcnt lgkmcnt(0)")
        stp(a, "prologue")
        a(".p2align 3")
        a.label(f"L_loop{ch}")
        late0 = [(19, [f"v_add_u32 v{r}, s{sD}, v{r}"]) for r in (vWa, vWb, vWc, vX1, vB1)] + rot0()
        for x in substep(ch, A_, reads(ch, 1, B_), dma_second(sDB), late0): a(x)
        a(f"s_waitcnt vmcnt(13) lgkmcnt(0)")
        a("s_barrier")
        if LSTAMP: a("s_memtime s[38:39]")
        late1 = [(19, [f"v_add_u32 v{r}, s{sD}, v{r}"]) for r in (vX0, vB0)]
        late1 += [(20, [f"s_mov_b32 s{sDB}, s{sF}"])]
        late1 += [(32, [f"s_bitcmp1_b32 s{sBlk}, s{sStage}", f"s_cbranch_scc1 L_blk{ch}"])]
        body = substep(ch, B_, reads(ch, 0, A_), dma_first(sF), late1)
        for x in body:
            a(x)
            if x.startswith("s_cbranch_scc1 L_blk"): a.label(f"L_blkr{ch}")
        a(f"s_add_u32 s{sStage}, s{sStage}, 1")
        a(f"s_cmp_lt_u32 s{sStage}, 7")
        a("s_waitcnt lgkmcnt(0)")
        if LSTAMP:
            a(f"v_cmp_eq_u32 vcc, s{sStage}, v{vL}"); a(f"v_mov_b32 v79, s38"); a("s_nop 0"); a(f"v_cndmask_b32 v80, v80, v79, vcc")
        a(f"s_cbranch_scc1 L_loop{ch}")
        stp(a, "loop")
        lt = [(19, [f"v_add_u32 v{r}, {BUF}, v{r}"]) for r in (vWa, vWb, vWc, vX1, vB1)]
        lt += [(24, [x]) for x in srd(None, SW2, P_WS, W2_SIZE, add=WS_W2)[:0]]
        for x in substep(ch, A_, reads(ch, 1, B_), dma_second(sDB), lt): a(x)
        a(f"s_waitcnt vmcnt(13) lgkmcnt(0)")
        a("s_barrier")
        spin_init(a)
        a.label(f"L_pf{ch}")
        a(f"v_cmp_ne_u32 vcc, s{sNonce}, v{vPF}")
        a(f"v_cmp_ne_u32 s[{sEX}:{sEX+1}], s{sNonce}, v{vPF+1}")
        a(f"s_or_b64 vcc, vcc, s[{sEX}:{sEX+1}]")
        a(f"v_cmp_ne_u32 s[{sEX}:{sEX+1}], s{sNonce}, v{vPF+2}")
        a(f"s_or_b64 vcc, vcc, s[{sEX}:{sEX+1}]")
        a(f"v_cmp_ne_u32 s[{sEX}:{sEX+1}], s{sNonce}, v{vPF+3}")
        a(f"s_or_b64 vcc, vcc, s[{sEX}:{sEX+1}]")
        a(f"s_cmp_eq_u64 vcc, 0")
        a(f"s_cbranch_scc1 L_pfok{ch}")
        spin_guard(a, f"L_pfok{ch}")
        a(f"v_lshlrev_b32 v{t0}, 4, v{vL}")
        a(f"v_add_u32 v{t0}, {WS_PF}, v{t0}")
        a(f"global_load_dwordx4 v[{vPF}:{vPF+3}], v{t0}, s[{P_WS}:{P_WS+1}]{SC}")
        a("s_waitcnt vmcnt(0)")
        a(f"s_branch L_pf{ch}")
        a.label(f"L_pfok{ch}")
        srd(a, SW2, P_WS, W2_SIZE, add=WS_W2)
        a(f"s_mul_i32 s{sKW}, s{sCB}, 88")
        a(f"s_mul_i32 s{sT0}, s{sW}, 12")
        a(f"s_add_u32 s{sKW}, s{sKW}, s{sT0}")
        a(f"s_add_u32 s{sKW}, s{sKW}, 40")
        a(f"s_mul_i32 s{sKW}, s{sKW}, 5120")
        a(f"s_add_u32 s{sKW4}, s{sKW}, 4096")
        allw = []
        for g in range(7): allw += wstep(g)
        def take(n):
            out = []; c = 0
            while allw and (c < n or "buffer_load" not in allw[0]):
                x = allw.pop(0); out.append(x)
                if "buffer_load" in x: c += 1
            return out
        lt = [(19, [f"v_add_u32 v{r}, {(-2*BUF) & 0xffffffff:#x}, v{r}"]) for r in (vX0, vB0)]
        gq = gate_seq()
        for x in substep(ch, B_, reads(ch, 0, A_), take(8), lt, gq): a(x)
        a("s_waitcnt lgkmcnt(0)")
        lt = [(19, [f"v_add_u32 v{r}, {(-2*BUF) & 0xffffffff:#x}, v{r}"]) for r in (vWa, vWb, vWc, vX1, vB1)]
        for x in substep(ch, A_, reads(ch, 1, B_), take(8), lt, gq): a(x)
        a(f"s_waitcnt vmcnt(16) lgkmcnt(0)")
        a("s_barrier")
        for x in substep(ch, B_, reads(ch, 0, A_), take(8), [], gq): a(x)
        a("s_waitcnt lgkmcnt(0)")
        for x in substep(ch, A_, reads(ch, 1, B_), take(8), [], gq): a(x)
        a("s_waitcnt lgkmcnt(0)")
        for x in substep(ch, B_, [], take(3), [], gq): a(x)
        assert not allw and not gq, (len(allw), len(gq))
        a("s_mov_b64 exec, 3")
        a(f"global_store_dword v{vGst}, v{vGv}, s[{P_WS}:{P_WS+1}]{SC}")
        a("s_mov_b64 exec, -1")
        a(f"s_branch L_epi")
        a.label(f"L_blk{ch}")
        a(f"s_cmp_eq_u32 s{sStage}, 1")
        a(f"s_cbranch_scc1 L_b0_{ch}")
        a(f"v_lshlrev_b32 v{t0}, 4, v{vL}")
        a(f"v_add_u32 v{t0}, {WS_PF}, v{t0}")
        a(f"global_load_dwordx4 v[{vPF}:{vPF+3}], v{t0}, s[{P_WS}:{P_WS+1}]{SC}")
        a(f"s_lshl_b32 s{sT1}, s{sRB}, 7")
        a(f"s_lshl_b32 s{sT2}, s{sRH}, 6")
        a(f"s_add_u32 s{sT1}, s{sT1}, s{sT2}")
        a(f"s_lshl_b32 s{sT2}, s{sCG}, 2")
        a(f"s_add_u32 s{sT1}, s{sT1}, s{sT2}")
        a(f"s_lshl_b32 s{sT2}, s{sCH}, 1")
        a(f"s_add_u32 s94, s{sT1}, s{sT2}")
        a(f"s_mul_i32 s{sT1}, s94, 1280")
        a(f"v_lshlrev_b32 v{t0}, 2, v{vL}")
        a(f"v_add_u32 v{t1}, s{sT1}, v{vWp}")
        a(f"v_add_u32 v{t2}, s{sT1}, v{t0}")
        a(f"global_load_dwordx4 v[{GLD}:{GLD+3}], v{vWp}, s[{P_GW}:{P_GW+1}]")
        a(f"global_load_dword v{GLD+4}, v{t0}, s[{P_GW}:{P_GW+1}] offset:1024")
        a(f"global_load_dwordx4 v[{GLD+6}:{GLD+9}], v{t1}, s[{P_X}:{P_X+1}]")
        a(f"global_load_dword v{GLD+5}, v{t2}, s[{P_X}:{P_X+1}] offset:1024")
        a(f"global_load_dwordx4 v[{GLD+10}:{GLD+13}], v{t1}, s[{P_X}:{P_X+1}] offset:1280")
        a(f"global_load_dword v{GLD+14}, v{t2}, s[{P_X}:{P_X+1}] offset:2304")
        a(f"s_branch L_blkr{ch}")
        a.label(f"L_b0_{ch}")
        spin_init(a)
        a.label(f"L_np{ch}")
        a(f"v_readfirstlane_b32 s{sNonce}, v{vNon}")
        a(f"s_cmp_lg_u32 s{sNonce}, 0")
        a(f"s_cbranch_scc1 L_nok{ch}")
        spin_guard(a, f"L_nok{ch}")
        a(f"v_mov_b32 v{t0}, 0")
        a(f"global_load_dword v{vNon}, v{t0}, s[{P_DBG}:{P_DBG+1}]{SC}")
        a("s_waitcnt vmcnt(0)")
        a(f"s_branch L_np{ch}")
        a.label(f"L_nok{ch}")
        a(f"s_cmp_lg_u32 s{sW}, 0")
        a(f"s_cbranch_scc1 L_blkr{ch}")
        a(f"s_lshl_b32 s{sT1}, s2, 2")
        a(f"s_add_u32 s{sT1}, s{sT1}, {WS_PF}")
        a(f"v_mov_b32 v{t0}, s{sT1}")
        a(f"v_mov_b32 v{t1}, s{sNonce}")
        a(f"s_mov_b64 exec, 1")
        a(f"global_store_dword v{t0}, v{t1}, s[{P_WS}:{P_WS+1}]{SC}")
        a(f"s_mov_b64 exec, -1")
        a(f"s_branch L_blkr{ch}")

    a.label("L_epi")
    stp(a, "tail")
    if LSTAMP:
        a(f"s_lshl_b32 s{sT0}, s2, 2")
        a(f"s_add_u32 s{sT0}, s{sT0}, s{sW}")
        a(f"s_lshl_b32 s{sT0}, s{sT0}, 8")
        a(f"s_add_u32 s{sT0}, s{sT0}, {WS_STAMP + 0x40000}")
        a(f"v_lshl_add_u32 v79, v{vL}, 2, s{sT0}")
        a(f"global_store_dword v79, v80, s[{P_WS}:{P_WS+1}]")
    XCH = BUF
    vHo, vHo2 = 81, 82
    a(f"s_lshl_b32 s{sT0}, s{sRB}, 1")
    a(f"s_add_u32 s{sT0}, s{sT0}, s{sRH}")
    a(f"s_mul_i32 s{sT0}, s{sT0}, {4*88}")
    a(f"s_mul_i32 s{sT1}, s{sCG}, 3")
    a(f"s_add_u32 s{sT0}, s{sT0}, s{sT1}")
    a(f"s_add_u32 s{sT0}, s{sT0}, 40")
    a(f"s_lshl_b32 s{sT1}, s{sCH}, 1")
    a(f"s_add_u32 s{sT1}, s{sT1}, s{sT0}")
    a(f"s_lshl_b32 s{sT1}, s{sT1}, 10")
    a(f"s_add_u32 s{sT0}, s{sT0}, 1")
    a(f"s_mul_i32 s{sT3}, s{sCH}, {2*88}")
    a(f"s_add_u32 s{sT0}, s{sT0}, s{sT3}")
    a(f"s_lshl_b32 s{sT0}, s{sT0}, 10")
    a(f"v_add_u32 v{vHo}, s{sT1}, v{vWp}")
    a(f"v_add_u32 v{vHo2}, s{sT0}, v{vWp}")
    for i in range(4):
        G0, U0, G1, U1 = [acc(n, i) for n in range(4)]
        for (G, Uu) in ((G0, U0), (G1, U1)):
            a(f"v_pk_mul_f32 v[{G}:{G+1}], v[{G}:{G+1}], v[{Uu}:{Uu+1}]")
            a(f"v_pk_mul_f32 v[{G+2}:{G+3}], v[{G+2}:{G+3}], v[{Uu+2}:{Uu+3}]")
        a(f"v_cvt_pk_bf16_f32 v{U0}, v{G0}, v{G0+1}")
        a(f"v_cvt_pk_bf16_f32 v{U0+1}, v{G0+2}, v{G0+3}")
        a(f"v_cvt_pk_bf16_f32 v{U0+2}, v{G1}, v{G1+1}")
        a(f"v_cvt_pk_bf16_f32 v{U0+3}, v{G1+2}, v{G1+3}")
        a(f"v_add_u32 v{G0}, {i*88*1024}, v{vHo}")
        a(f"global_store_dwordx4 v{G0}, v[{U0}:{U0+3}], s[{P_WS}:{P_WS+1}]{SC}")
    for i in range(4):
        G2, U2 = acc(4, i), acc(5, i)
        a(f"v_pk_mul_f32 v[{G2}:{G2+1}], v[{G2}:{G2+1}], v[{U2}:{U2+1}]")
        a(f"v_pk_mul_f32 v[{G2+2}:{G2+3}], v[{G2+2}:{G2+3}], v[{U2+2}:{U2+3}]")
    for i in range(4):
        G2, U2 = acc(4, i), acc(5, i)
        a(f"v_cvt_pk_bf16_f32 v{U2}, v{G2}, v{G2+1}")
        a(f"v_cvt_pk_bf16_f32 v{U2+1}, v{G2+2}, v{G2+3}")
    a(f"s_lshl_b32 s{sT1}, s{sW}, 10")
    a(f"v_lshlrev_b32 v{t1}, 3, v{vL}")
    a(f"v_add_u32 v{t2}, s{sT1}, v{t1}")
    a(f"s_cmp_eq_u32 s{sCH}, 1")
    a(f"s_cbranch_scc1 L_xw1")
    a(f"ds_write_b64 v{t2}, v[{acc(5,2)}:{acc(5,2)+1}] offset:{XCH}")
    a(f"ds_write_b64 v{t2}, v[{acc(5,3)}:{acc(5,3)+1}] offset:{XCH+512}")
    a(f"s_branch L_xw2")
    a.label("L_xw1")
    a(f"ds_write_b64 v{t2}, v[{acc(5,0)}:{acc(5,0)+1}] offset:{XCH}")
    a(f"ds_write_b64 v{t2}, v[{acc(5,1)}:{acc(5,1)+1}] offset:{XCH+512}")
    a.label("L_xw2")
    stp(a, "glu1")
    U = [SA, SBt, S4]; NS = [16, 16, 8]
    eA = [56, 57, 58]; eB = [59, 60, 61]
    cur = [U[T] for T in range(3)]
    for k in range(1, 16):
        Ts = [T for T in range(3) if k < NS[T]]
        dst = eA if (k & 1) else eB
        for T in Ts: a(f"v_fma_f32 v{dst[T]}, v{vLr[T]}, v{cur[T]}, v{U[T]+k}")
        for T in Ts:
            a(f"v_fmac_f32_dpp v{dst[T]}, v{cur[T]}, v{vLi[T]} {DPPSW}")
            cur[T] = dst[T]
    ew = [62, 63, 64]; ex = [65, 66, 67]
    a(f"s_mul_i32 s{sT0}, s{sW}, 320")
    a(f"s_add_u32 s{sT0}, s{sT0}, {MISC}")
    for T in range(3): a(f"v_mul_f32 v{ew[T]}, v{vWSr[T]}, v{cur[T]}")
    for T in range(3): a(f"v_fmac_f32_dpp v{ew[T]}, v{cur[T]}, v{vWSi[T]} {DPPSW}")
    a(f"v_add_u32 v{t0}, s{sT0}, v{vC}")
    a(f"ds_write_b32 v{vAe}, v{cur[0]} offset:{EF0}")
    a(f"ds_write_b32 v{vAe}, v{cur[1]} offset:{EF0+64}")
    a(f"ds_write_b32 v{vAe4}, v{cur[2]} offset:{E40}")
    def qreduce(vals, tmps):
        for v, t in zip(vals, tmps): a(f"v_mov_b32 v{t}, v{v}")
        a("s_nop 0")
        for v, t in zip(vals, tmps): a(f"v_permlane16_swap_b32 v{v}, v{t}")
        a("s_nop 0")
        for v, t in zip(vals, tmps): a(f"v_add_f32 v{v}, v{v}, v{t}")
        for v, t in zip(vals, tmps): a(f"v_mov_b32 v{t}, v{v}")
        a("s_nop 0")
        for v, t in zip(vals, tmps): a(f"v_permlane32_swap_b32 v{v}, v{t}")
        a("s_nop 0")
        for v, t in zip(vals, tmps): a(f"v_add_f32 v{v}, v{v}, v{t}")
    qreduce(ew, ex)
    a(f"ds_write_b32 v{vRw}, v{ew[0]} offset:{SWB}")
    a(f"ds_write_b32 v{vRw}, v{ew[1]} offset:{SWB+64}")
    a(f"ds_write_b32 v{t0}, v{ew[2]} offset:{SWB+256}")
    a("s_waitcnt lgkmcnt(0)")
    a("s_barrier")
    stp(a, "passA")
    a(f"s_xor_b32 s{sT1}, s{sW}, 1")
    a(f"s_lshl_b32 s{sT1}, s{sT1}, 10")
    a(f"v_lshlrev_b32 v{t1}, 3, v{vL}")
    a(f"v_add_u32 v{t2}, s{sT1}, v{t1}")
    a(f"v_add_u32 v{t4}, {88*1024}, v{vHo2}")
    a(f"s_cmp_eq_u32 s{sCH}, 1")
    a(f"s_cbranch_scc1 L_xr1")
    for k in range(2):
        a(f"ds_read_b64 v[{acc(5,k)+2}:{acc(5,k)+3}], v{t2} offset:{XCH+512*k}")
    a("s_waitcnt lgkmcnt(0)")
    a(f"global_store_dwordx4 v{vHo2}, v[{acc(5,0)}:{acc(5,0)+3}], s[{P_WS}:{P_WS+1}]{SC}")
    a(f"global_store_dwordx4 v{t4}, v[{acc(5,1)}:{acc(5,1)+3}], s[{P_WS}:{P_WS+1}]{SC}")
    a(f"s_branch L_xr2")
    a.label("L_xr1")
    for k in range(2):
        a(f"ds_read_b64 v[{acc(4,2+k)}:{acc(4,2+k)+1}], v{t2} offset:{XCH+512*k}")
        a(f"v_mov_b32 v{acc(4,2+k)+2}, v{acc(5,2+k)}")
        a(f"v_mov_b32 v{acc(4,2+k)+3}, v{acc(5,2+k)+1}")
    a("s_waitcnt lgkmcnt(0)")
    a(f"global_store_dwordx4 v{vHo2}, v[{acc(4,2)}:{acc(4,2)+3}], s[{P_WS}:{P_WS+1}]{SC}")
    a(f"global_store_dwordx4 v{t4}, v[{acc(4,3)}:{acc(4,3)+3}], s[{P_WS}:{P_WS+1}]{SC}")
    a.label("L_xr2")
    a(f"s_cmp_lg_u32 s{sW}, 0")
    a(f"s_cbranch_scc1 L_nopub")
    PB = 68
    a(f"v_lshlrev_b32 v{t0}, 3, v{vL}")
    a(f"v_add_u32 v{t0}, {MISC}, v{t0}")
    for w in range(4): a(f"ds_read_b64 v[{PB+2*w}:{PB+2*w+1}], v{t0} offset:{SWB+320*w}")
    a(f"s_lshl_b32 s{sT0}, s{sCG}, 4")
    a(f"s_add_u32 s{sT0}, s{sT0}, s{sRB}")
    a(f"s_mul_i32 s{sT0}, s{sT0}, 640")
    a(f"s_add_u32 s{sT0}, s{sT0}, {WS_S}")
    a(f"v_lshlrev_b32 v{t0}, 4, v{vL}")
    a(f"v_add_u32 v{t0}, s{sT0}, v{t0}")
    a(f"v_mov_b32 v{PB+9}, s{sNonce}")
    a(f"v_mov_b32 v{PB+11}, s{sNonce}")
    a(f"v_cmp_gt_u32 vcc, 40, v{vL}")
    a("s_waitcnt lgkmcnt(0)")
    a(f"v_pk_add_f32 v[{PB}:{PB+1}], v[{PB}:{PB+1}], v[{PB+2}:{PB+3}]")
    a(f"v_pk_add_f32 v[{PB+4}:{PB+5}], v[{PB+4}:{PB+5}], v[{PB+6}:{PB+7}]")
    a(f"v_pk_add_f32 v[{PB}:{PB+1}], v[{PB}:{PB+1}], v[{PB+4}:{PB+5}]")
    a(f"s_and_saveexec_b64 s[{sEX}:{sEX+1}], vcc")
    a(f"v_mov_b32 v{PB+8}, v{PB}")
    a(f"v_mov_b32 v{PB+10}, v{PB+1}")
    a(f"global_store_dwordx4 v{t0}, v[{PB+8}:{PB+11}], s[{P_WS}:{P_WS+1}]{SC}")
    a(f"s_mov_b64 exec, s[{sEX}:{sEX+1}]")
    a.label("L_nopub")
    stp(a, "pub")
    pre = []
    for g in range(7, 12):
        ws_ = wstep(g)
        pre += [[x] for x in ws_[:4]] + [[ws_[4], ws_[5], ws_[6]]]
    X = ACC
    vMr = [X, X+1, X+2]; vMi = [X+3, X+4, X+5]
    vC2r = [X+6, X+7, X+8]; vC2i = [X+9, X+10, X+11]
    vHr = [X+12, X+13, X+14]; vHi = [X+15, X+16, X+17]
    vW0r = [X+18, X+19, X+20]; vW0i = [X+21, X+22, X+23]
    vW1r = [X+24, X+25]; vW1i = [X+26, X+27]
    vLi2 = [X+28, X+29, X+30]
    nOff, nW0, nW1, nOff4, nW4 = X+32, X+33, X+34, X+35, X+36
    vm0, vm1, vm4 = X+37, X+38, X+39
    W = []
    W += [f"v_cvt_f32_u32 v{nOff}, v{vSig}", f"v_mul_f32 v{nOff}, 0x41800000, v{nOff}", f"s_lshl_b32 s{sT0}, s{sCH}, 3",
          f"v_cvt_f32_u32 v{nOff4}, s{sT0}", f"v_add_f32 v{nOff4}, v{nOff4}, v{nOff}",
          f"s_sub_u32 s{sT0}, s{sRB}, 1", f"v_sub_u32 v{t0}, s{sT0}, v{vSig}", f"v_subrev_u32 v{t1}, 8, v{t0}",
          f"v_sub_u32 v{t2}, v{t0}, v{vSig}", f"v_subrev_u32 v{t2}, s{sCH}, v{t2}"]
    for (n_, mreg, src) in ((nW0, vm0, t0), (nW1, vm1, t1), (nW4, vm4, t2)):
        W += [[f"v_cmp_le_i32 vcc, 0, v{src}", f"v_max_i32 v{n_}, 0, v{src}", f"v_cvt_f32_i32 v{n_}, v{n_}",
               f"v_cndmask_b32 v{mreg}, 0, 1.0, vcc"], f"v_mul_f32 v{n_}, 0x43000000, v{n_}"]
    W += [f"v_mov_b32 v{X+40}, 0x41800000", f"v_mov_b32 v{X+41}, 0x41000000"]
    streams = []
    for T in range(3):
        tm = X+44+6*T
        pr, pi, cr, ci = tm+2, tm+3, tm+4, tm+5
        s_ = cpow_s(vMr[T], vMi[T], vA[T], vBx[T], f"v{X+40 if T < 2 else X+41}", tm, vSgn)
        s_ += [f"v_mul_f32 v{pi}, v{vSgn}, v{vLi[T]}", f"v_add_f32 v{pr}, -1.0, v{vLr[T]}",
               f"v_mul_f32 v{tm}, v{vLRE[T]}, v{vLRE[T]}", f"v_fmac_f32 v{tm}, v{vLIM[T]}, v{vLIM[T]}", f"v_rcp_f32 v{tm}, v{tm}",
               f"v_mul_f32 v{cr}, v{pr}, v{vLRE[T]}", f"v_fmac_f32 v{cr}, v{pi}, v{vLIM[T]}",
               f"v_mul_f32 v{ci}, v{pi}, v{vLRE[T]}", f"v_fma_f32 v{ci}, -v{pr}, v{vLIM[T]}, v{ci}",
               f"v_add_f32 v{tm}, v{tm}, v{tm}", f"v_mul_f32 v{cr}, v{tm}, v{cr}", f"v_mul_f32 v{ci}, v{tm}, v{ci}",
               f"v_mul_f32_e64 v{vC2r[T]}, -v{vSgn}, v{cr}", f"v_sub_f32 v{vC2i[T]}, 0, v{ci}", f"v_sub_f32 v{vLi2[T]}, 0, v{vLi[T]}"]
        s_ += cpow_s(pr, pi, vA[T], vBx[T], f"v{nOff if T < 2 else nOff4}", tm, None)
        s_ += [f"v_mul_f32 v{vHr[T]}, v{cr}, v{pr}", f"v_fma_f32 v{vHr[T]}, -v{ci}, v{pi}, v{vHr[T]}",
               f"v_mul_f32 v{vHi[T]}, v{cr}, v{pi}", f"v_fmac_f32 v{vHi[T]}, v{ci}, v{pr}",
               f"v_mul_f32_e64 v{vHr[T]}, -v{vSgn}, v{vHr[T]}", f"v_sub_f32 v{vHi[T]}, 0, v{vHi[T]}"]
        s_ += cpow_s(vW0r[T], vW0i[T], vA[T], vBx[T], f"v{nW0 if T < 2 else nW4}", tm, vSgn)
        mk = vm0 if T < 2 else vm4
        s_ += [f"v_mul_f32 v{vW0r[T]}, v{mk}, v{vW0r[T]}", f"v_mul_f32 v{vW0i[T]}, v{mk}, v{vW0i[T]}"]
        if T < 2:
            s_ += cpow_s(vW1r[T], vW1i[T], vA[T], vBx[T], f"v{nW1}", tm, vSgn)
            s_ += [f"v_mul_f32 v{vW1r[T]}, v{vm1}, v{vW1r[T]}", f"v_mul_f32 v{vW1i[T]}, v{vm1}, v{vW1i[T]}"]
        streams.append(s_)
    W += rr(*streams)
    for x in W:
        if isinstance(x, str): a(x)
        else:
            for y in x: a(y)
    stp(a, "consts2")
    a("s_waitcnt vmcnt(0)")
    vFo = 18
    a(f"s_lshl_b32 s{sT0}, s{sRB}, 1")
    a(f"s_add_u32 s{sT0}, s{sT0}, s{sRH}")
    a(f"s_lshl_b32 s{sT0}, s{sT0}, 4")
    a(f"s_add_u32 s{sT0}, s{sT0}, s{sCG}")
    a(f"s_lshl_b32 s{sT0}, s{sT0}, 1")
    a(f"s_add_u32 s{sT0}, s{sT0}, s{sCH}")
    a(f"s_lshl_b32 s{sT0}, s{sT0}, 2")
    a(f"s_add_u32 s{sT0}, s{sT0}, {WS_FB}")
    a(f"v_mov_b32 v{vFo}, s{sT0}")
    a(f"v_mov_b32 v{t0}, s{sNonce}")
    a(f"s_mov_b64 exec, 1")
    a(f"global_store_dword v{vFo}, v{t0}, s[{P_WS}:{P_WS+1}]{SC}")
    a(f"s_mov_b64 exec, -1")
    stp(a, "flagB")


    PE = X+64
    W = [f"v_subrev_u32 v{t0}, 256, v{vAe}"]
    for T in range(2):
        for k in range(7): W.append(f"ds_read_b32 v{PE+7*T+k}, v{t0} offset:{EF0 + 64*T - 256*k}")
    W.append(f"v_subrev_u32 v{t1}, 64, v{vAe4}")
    for k in range(15): W.append(f"ds_read_b32 v{PE+14+k}, v{t1} offset:{E40 - 64*k}")
    tu = [56, 57, 58]
    for k in range(16):
        Ts = [T for T in range(3) if k < NS[T]]
        for T in Ts: W.append(f"v_mul_f32 v{tu[T]}, v{vC2r[T]}, v{U[T]+k}")
        for T in Ts: W.append(f"v_fmac_f32_dpp v{tu[T]}, v{U[T]+k}, v{vC2i[T]} {DPPSW}")
        for T in Ts: W.append(f"v_mov_b32 v{U[T]+k}, v{tu[T]}")
    W.append("s_waitcnt lgkmcnt(0)")
    Pc = [PE+6, PE+13, PE+14+14]
    Pt = [[59, 60], [61, 62], [63, 64]]
    nch = [7, 7, 15]; base = [PE, PE+7, PE+14]
    for stepk in range(1, 15):
        Ts = [T for T in range(3) if stepk < nch[T]]
        dst = {T: Pt[T][stepk & 1] for T in Ts}
        grp = []
        for T in Ts: grp.append(f"v_fma_f32 v{dst[T]}, v{vMr[T]}, v{Pc[T]}, v{base[T] + nch[T]-1-stepk}")
        if len(Ts) == 1: grp.append("s_nop 0")
        for T in Ts:
            grp.append(f"v_fmac_f32_dpp v{dst[T]}, v{Pc[T]}, v{vMi[T]} {DPPSW}")
            Pc[T] = dst[T]
        if len(Ts) == 1: grp.append("s_nop 0")
        W += grp
    W.append("s_nop 1")
    for T in range(3): W.append(f"v_mul_f32 v{Ps[T]}, v{vC2r[T]}, v{Pc[T]}")
    for T in range(3): W.append(f"v_fmac_f32_dpp v{Ps[T]}, v{Pc[T]}, v{vC2i[T]} {DPPSW}")
    W += [f"v_mov_b32 v7, v{vAs}", f"v_mov_b32 v8, v{vCm}",
          f"v_and_b32 v{t0}, 15, v{vL}", f"v_lshrrev_b32 v{t1}, 2, v{t0}", f"v_lshlrev_b32 v{t1}, 1, v{t1}", f"v_add_u32 v{t1}, s{sCH}, v{t1}",
          f"v_mul_u32_u24 v{t1}, {HTS}, v{t1}", f"v_and_b32 v{t2}, 3, v{t0}", f"v_lshlrev_b32 v{t2}, 2, v{t2}", f"v_lshrrev_b32 v{t3}, 4, v{vL}",
          f"v_add_u32 v{t2}, v{t2}, v{t3}", f"s_lshl_b32 s{sT0}, s{sRH}, 4", f"v_add_u32 v{t2}, s{sT0}, v{t2}",
          f"v_lshl_add_u32 v{RA}, v{t2}, 3, v{t1}",
          f"s_lshl_b32 s{sT0}, s{sRB}, 1", f"s_add_u32 s{sT0}, s{sT0}, s{sRH}", f"s_lshl_b32 s{sT0}, s{sT0}, 2",
          f"v_add_u32 v{t3}, s{sT0}, v{t3}", f"v_mul_u32_u24 v{t3}, 88, v{t3}", f"s_mul_i32 s{sT0}, s{sCH}, 20",
          f"v_add_u32 v{t3}, s{sT0}, v{t3}", f"v_lshlrev_b32 v{t3}, 10, v{t3}", f"v_lshl_add_u32 v{GA}, v{t0}, 4, v{t3}"]
    NPF = 16
    weave(a, W, pre[:NPF], start=0)
    stp(a, "prefix")
    Hp = [65, 66, 67]; hx = [56, 57, 58]; bad = 68
    vFl = 24
    a(f"s_lshl_b32 s{sT0}, s{sRB2}, 7")
    a(f"s_lshl_b32 s{sT1}, s{sW}, 5")
    a(f"s_add_u32 s{sT0}, s{sT0}, s{sT1}")
    a(f"v_and_b32 v{vFl}, 7, v{vL}")
    a(f"v_lshlrev_b32 v{vFl}, 2, v{vFl}")
    a(f"v_add_u32 v{vFl}, s{sT0}, v{vFl}")
    a(f"v_add_u32 v{vFl}, {WS_FB}, v{vFl}")
    srd(a, SH, P_WS, WS_G)
    srd(a, SM, P_WS, WS_S + 256*640)
    R = X+64
    FBV = X+74
    def poll_loads():
        a(f"buffer_load_dwordx2 v[{R}:{R+1}], v{pa[0]}, s[{SM}:{SM+3}], 0 offen{SC}")
        a(f"buffer_load_dwordx2 v[{R+2}:{R+3}], v{pa[0]}, s[{SM}:{SM+3}], 0 offen offset:128{SC}")
        a(f"buffer_load_dwordx2 v[{R+4}:{R+5}], v{pa[1]}, s[{SM}:{SM+3}], 0 offen{SC}")
        a(f"buffer_load_dwordx2 v[{R+6}:{R+7}], v{pa[1]}, s[{SM}:{SM+3}], 0 offen offset:128{SC}")
        a(f"buffer_load_dwordx2 v[{R+8}:{R+9}], v{pa[2]}, s[{SM}:{SM+3}], 0 offen{SC}")
        a(f"global_load_dword v{FBV}, v{vFl}, s[{P_WS}:{P_WS+1}]{SC}")
    poll_loads()
    NW0 = 5
    for it in pre[NPF:]:
        for x in it: a(x)
    a(f"s_waitcnt vmcnt({len(pre)-NPF})")
    spin_init(a)
    a(f"s_branch L_pollc")
    a.label("L_poll")
    spin_guard(a, "L_pollx")
    poll_loads()
    a("s_waitcnt vmcnt(0)")
    a.label("L_pollc")
    a(f"v_mov_b32 v{bad}, 0")
    for (ri, mreg) in ((R+1, vm0), (R+3, vm0), (R+5, vm1), (R+7, vm1), (R+9, vm4)):
        a(f"v_cmp_ne_u32 vcc, s{sNonce}, v{ri}")
        a("s_nop 1")
        a(f"v_cndmask_b32 v{t0}, 0, v{mreg}, vcc")
        a(f"v_or_b32 v{bad}, v{bad}, v{t0}")
    a(f"v_cmp_ne_u32 vcc, 0, v{bad}")
    a("s_nop 4")
    a("s_cbranch_vccnz L_poll")
    a.label("L_pollx")
    for (T, ri) in ((0, R), (1, R+2), (2, R+8)): a(f"v_mul_f32 v{Hp[T]}, v{vW0r[T]}, v{ri}")
    for (T, ri) in ((0, R), (1, R+2), (2, R+8)): a(f"v_fmac_f32_dpp v{Hp[T]}, v{ri}, v{vW0i[T]} {DPPSW}")
    for (T, ri) in ((0, R+4), (1, R+6)): a(f"v_fmac_f32 v{Hp[T]}, v{vW1r[T]}, v{ri}")
    for (T, ri) in ((0, R+4), (1, R+6)): a(f"v_fmac_f32_dpp v{Hp[T]}, v{ri}, v{vW1i[T]} {DPPSW}")
    qreduce(Hp, hx)
    a(f"s_mul_i32 s{sT0}, s{sW}, 320")
    a(f"s_add_u32 s{sT0}, s{sT0}, {MISC}")
    a(f"v_add_u32 v{t0}, s{sT0}, v{vC}")
    a(f"ds_write_b32 v{vRw}, v{Hp[0]} offset:{RWB}")
    a(f"ds_write_b32 v{vRw}, v{Hp[1]} offset:{RWB+64}")
    a(f"ds_write_b32 v{t0}, v{Hp[2]} offset:{RWB+256}")
    stp(a, "poll")
    spin_init(a)
    a.label("L_fbpoll")
    a(f"v_cmp_ne_u32 vcc, s{sNonce}, v{FBV}")
    a("s_nop 4")
    a("s_cbranch_vccz L_fbx")
    spin_guard(a, "L_fbx")
    a(f"global_load_dword v{FBV}, v{vFl}, s[{P_WS}:{P_WS+1}]{SC}")
    a("s_waitcnt vmcnt(0)")
    a("s_branch L_fbpoll")
    a.label("L_fbx")
    stp(a, "flagB seen")
    slots = [52, 68, 84, "a88", 100]
    def hreg(slot, i):
        sl = slots[slot]
        if isinstance(sl, str): return f"a[{88+4*i}:{91+4*i}]"
        return f"v[{sl+4*i}:{sl+4*i+3}]"
    def hloads(g):
        return [f"buffer_load_dwordx4 {hreg(g % 5, i)}, v{vH+i}, s[{SH}:{SH+3}], s{sKH} offen{SCL}" for i in range(4)]
    a(f"s_mul_i32 s{sKH}, s{sW}, 12")
    a(f"s_add_u32 s{sKH}, s{sKH}, 40")
    a(f"s_lshl_b32 s{sKH}, s{sKH}, 10")
    a("s_waitcnt lgkmcnt(0)")
    early = []
    for g in range(5):
        hl = hloads(g)
        early += [[x] for x in hl[:3]] + [[hl[3], f"s_add_u32 s{sKH}, s{sKH}, 1024"]]
    sOff = [73, 74, 75, 76, 77]
    for it in range(5):
        a(f"s_mul_i32 s{sT0}, s{sCG}, 5")
        a(f"s_add_u32 s{sT0}, s{sT0}, {it}")
        a(f"s_lshr_b32 s{sT1}, s{sT0}, 2")
        a(f"s_lshl_b32 s{sT1}, s{sT1}, 10")
        a(f"s_and_b32 s{sT0}, s{sT0}, 3")
        a(f"s_lshl_b32 s{sT0}, s{sT0}, 8")
        a(f"s_add_u32 s{sOff[it]}, s{sT0}, s{sT1}")
    for it in early[:4]:
        for x in it: a(x)
    early = early[4:]
    a("s_barrier")
    Hw = [X+48, X+49, X+50]
    a(f"s_mul_i32 s{sT0}, s{sCH}, 320")
    a(f"s_add_u32 s{sT0}, s{sT0}, {MISC}")
    a(f"v_add_u32 v{t0}, s{sT0}, v{vAs2}")
    hr = [X+40, X+41, X+42, X+43, X+44, X+45, X+46, X+47]
    a(f"ds_read_b32 v{hr[0]}, v{t0} offset:{RWB}")
    a(f"ds_read_b32 v{hr[1]}, v{t0} offset:{RWB+640}")
    a(f"ds_read_b32 v{hr[2]}, v{t0} offset:{RWB+64}")
    a(f"ds_read_b32 v{hr[3]}, v{t0} offset:{RWB+704}")
    for w in range(4): a(f"ds_read_b32 v{hr[4+w]}, v{vCm2} offset:{RWB+256+320*w}")
    a("s_waitcnt lgkmcnt(0)")
    W = [f"v_add_f32 v{Hw[0]}, v{hr[0]}, v{hr[1]}", f"v_add_f32 v{Hw[1]}, v{hr[2]}, v{hr[3]}", f"v_add_f32 v{hr[4]}, v{hr[4]}, v{hr[5]}",
         f"v_add_f32 v{hr[6]}, v{hr[6]}, v{hr[7]}", f"v_add_f32 v{Hw[2]}, v{hr[4]}, v{hr[6]}"]
    for T in range(3): W.append(f"v_fmac_f32 v{Ps[T]}, v{vHr[T]}, v{Hw[T]}")
    W.append("s_nop 0")
    for T in range(3): W.append(f"v_fmac_f32_dpp v{Ps[T]}, v{Hw[T]}, v{vHi[T]} {DPPSW}")
    cur = list(Ps)
    W.append("s_nop 0")
    for k in range(16):
        Ts = [T for T in range(3) if k < NS[T]]
        for T in Ts: W.append(f"v_fmac_f32 v{U[T]+k}, v{vLr[T]}, v{cur[T]}")
        for T in Ts:
            W.append(f"v_fmac_f32_dpp v{U[T]+k}, v{cur[T]}, v{vLi2[T]} {DPPSW}")
            cur[T] = U[T]+k
    for T in range(3):
        for k in range(NS[T]//2):
            W.append(f"v_cvt_pk_bf16_f32 v{X + 16*T + k}, v{U[T]+2*k}, v{U[T]+2*k+1}")
    W += [f"v_and_b32 v{t0}, 15, v{vL}", f"s_lshl_b32 s{sT0}, s{sCH}, 5", f"v_add_u32 v{t1}, s{sT0}, v{t0}",
          f"v_mul_u32_u24 v{t1}, {HTS}, v{t1}", f"v_lshl_add_u32 v{t1}, v{vSig}, 5, v{t1}",
          f"v_add_u32 v{t0}, 64, v{t0}", f"v_mul_u32_u24 v{t0}, {HTS}, v{t0}", f"v_lshl_add_u32 v{t0}, v{vSig}, 5, v{t0}",
          f"s_lshl_b32 s{sT0}, s{sCH}, 4", f"v_add_u32 v{t0}, s{sT0}, v{t0}"]
    weave(a, W, early, start=6)
    stp(a, "passB")
    a(f"ds_write_b128 v{t1}, v[{X}:{X+3}]")
    a(f"ds_write_b128 v{t1}, v[{X+4}:{X+7}] offset:16")
    a(f"ds_write_b128 v{t1}, v[{X+16}:{X+19}] offset:{16*HTS}")
    a(f"ds_write_b128 v{t1}, v[{X+20}:{X+23}] offset:{16*HTS+16}")
    a(f"ds_write_b128 v{t0}, v[{X+32}:{X+35}]")
    a("s_waitcnt lgkmcnt(0)")
    a("s_barrier")
    DT = X+64
    for it in range(5):
        a(f"ds_read_b64_tr_b16 v[{DT+4*it}:{DT+4*it+1}], v{RA} offset:{it*16*HTS}")
        a(f"ds_read_b64_tr_b16 v[{DT+4*it+2}:{DT+4*it+3}], v{RA} offset:{it*16*HTS+8*HTS}")
    for it in range(5):
        a(f"s_waitcnt lgkmcnt({2*(4-it)})")
        a(f"buffer_store_dwordx4 v[{DT+4*it}:{DT+4*it+3}], v{GA}, s[{SH}:{SH+3}], s{sOff[it]} offen{SC}")
    stp(a, "hA stored")
    accB = lambda j, i: 120 + (j*4+i)*4
    def accA(j, i):
        t = j*4+i
        return 200 + 4*t if t < 14 else 26 + 4*(t-14)
    def wreg(g, j): b = wbase(g, j); return f"a[{b}:{b+3}]"
    fifo = [("h", g) for g in range(5) for _ in range(4)] + [("st", 0)]*5
    def issue(x, tag):
        a(x); fifo.append(tag)
    def wait_for(pred):
        idx = [i for i, tg in enumerate(fifo) if pred(tg)]
        if not idx: return
        n = len(fifo) - 1 - max(idx)
        assert n <= 63, n
        a(f"s_waitcnt vmcnt({n})")
        del fifo[:max(idx)+1]
    sKS, sKS4 = 85, 86
    a(f"s_mul_i32 s{sKS}, s{sCB}, 88")
    a(f"s_mul_i32 s{sT0}, s{sW}, 5")
    a(f"s_add_u32 s{sKS}, s{sKS}, s{sT0}")
    a(f"s_mul_i32 s{sKS}, s{sKS}, 5120")
    a(f"s_add_u32 s{sKS4}, s{sKS}, 4096")
    wq = []
    for g in range(7+NW0, 12):
        st_ = wstep(g)
        for j in range(5): wq.append((("wg", g), 0, st_[j], st_[5:] if j == 4 else []))
    for sidx in range(10):
        for j in range(5):
            x = wload(sidx, j).replace(f"s{sKW} offen", f"s{sKS} offen").replace(f"s{sKW4} offen", f"s{sKS4} offen")
            inc = (20-4)*5120 if sidx == 4 else 5120
            wq.append((("w", sidx), sidx, x, [f"s_add_u32 s{sKS}, s{sKS}, {inc}", f"s_add_u32 s{sKS4}, s{sKS4}, {inc}"] if j == 4 else []))
    RATE = 3
    LA, OA = 2, 7
    vG = [12, 14, 16, 22]
    vLW = 25
    XR, GR, DR = 84, 94, 100
    RS = 336; RED = 64*RS
    fill = []
    for i in range(5):
        w1, w2, w3 = t0, t1, t3
        fill += [f"v_add_u32 v{w1}, {256*i}, v0", f"v_mul_u32_u24 v{w2}, 3277, v{w1}", f"v_lshrrev_b32 v{w2}, 16, v{w2}",
                 f"v_mul_u32_u24 v{w3}, 20, v{w2}", f"v_sub_u32 v{w3}, v{w1}, v{w3}", f"v_mul_u32_u24 v{LA+i}, {RS}, v{w2}",
                 f"v_lshl_add_u32 v{LA+i}, v{w3}, 4, v{LA+i}", f"s_lshl_b32 s{sT0}, s{sRB2}, 6", f"v_add_u32 v{w2}, s{sT0}, v{w2}",
                 f"v_mul_u32_u24 v{w2}, 640, v{w2}", f"s_mul_i32 s{sT1}, s{sCB}, 80", f"v_lshl_add_u32 v{w3}, v{w3}, 2, s{sT1}",
                 f"v_add_u32 v{w2}, v{w2}, v{w3}", f"v_lshlrev_b32 v{OA+i}, 2, v{w2}"]
    fill += [f"v_and_b32 v{t0}, 15, v{vL}", f"v_lshrrev_b32 v{t1}, 2, v{t0}", f"v_lshlrev_b32 v{t1}, 4, v{t1}", f"v_and_b32 v{t0}, 3, v{t0}",
             f"v_add_u32 v{t0}, v{t0}, v{t1}", f"s_lshl_b32 s{sT0}, s{sRB2}, 6", f"v_add_u32 v{t1}, s{sT0}, v{t0}",
             f"v_lshlrev_b32 v{t1}, 2, v{t1}", f"v_add_u32 v50, {WS_G}, v{t1}",
             f"v_mul_u32_u24 v{t0}, {RS}, v{t0}", f"v_lshrrev_b32 v{t3}, 4, v{vL}", f"v_lshl_add_u32 v{t0}, v{t3}, 4, v{t0}",
             f"s_mul_i32 s{sT0}, s{sW}, {RED}", f"v_add_u32 v{vLW}, s{sT0}, v{t0}"]
    for g in range(22):
        glu = g < 12
        slot = g % 5
        wg = g if glu else g-12
        wait_for(lambda tg: tg == ("h", g) or (not glu and tg == ("w", g-12)) or (glu and tg == ("wg", g)))
        if "kstamp" in FLAGS:
            if g > 0:
                a("s_waitcnt lgkmcnt(0)"); a(f"v_writelane_b32 v23, s38, {g-1}")
            a("s_memtime s[38:39]")
        if g == 3:
            wait_for(lambda tg: tg[0] == "st")
            a(f"v_add_u32 v{t0}, {WS_FA-WS_FB}, v{vFo}")
            a(f"v_mov_b32 v{t1}, s{sNonce}")
            a(f"s_mov_b64 exec, 1")
            issue(f"global_store_dword v{t0}, v{t1}, s[{P_WS}:{P_WS+1}]{SC}", ("fa", 0))
            a(f"s_mov_b64 exec, -1")
        if g == 5:
            a(f"v_add_u32 v{vFl}, {WS_FA-WS_FB}, v{vFl}")
            issue(f"global_load_dword v{t2}, v{vFl}, s[{P_WS}:{P_WS+1}]{SC}", ("fp", 0))
        if g == 7:
            wait_for(lambda tg: tg[0] == "fp")
            spin_init(a)
            a.label("L_fachk")
            a(f"v_cmp_ne_u32 vcc, s{sNonce}, v{t2}")
            a("s_nop 4")
            a("s_cbranch_vccz L_faok")
            spin_guard(a, "L_faok")
            a(f"global_load_dword v{t2}, v{vFl}, s[{P_WS}:{P_WS+1}]{SC}")
            a("s_waitcnt vmcnt(0)")
            a("s_branch L_fachk")
            a.label("L_faok")
        if g == 15:
            a("s_barrier")
            for i in range(4): issue(f"global_load_dword v{vG[i]}, v50, s[{P_WS}:{P_WS+1}] offset:{16*i}{SC}", ("g", 0))
        mf = []
        for j in range(5):
            for i in range(4):
                d = accB(j, i) if glu else accA(j, i)
                c = "0" if g in (0, 12) else f"v[{d}:{d+3}]"
                mf.append(f"v_mfma_f32_16x16x32_bf16 v[{d}:{d+3}], {wreg(wg, j)}, {hreg(slot, i)}, {c}")
        nw = 0
        for idx, x in enumerate(mf):
            a(x)
            if idx % 4 == 1 and nw < RATE and wq and wq[0][1] < g:
                tg, e_, ins, post = wq.pop(0); issue(ins, tg); nw += 1
                for y in post: a(y)
            elif g >= 8 and fill and idx % 4 != 1: a(fill.pop(0))
        while nw < RATE and wq and wq[0][1] <= g:
            tg, e_, ins, post = wq.pop(0); issue(ins, tg); nw += 1
            for y in post: a(y)
        gn = g + 5
        if gn < 22:
            if gn == 12: a(f"s_mul_i32 s{sKH}, s{sW}, {5*1024}")
            elif gn == 17: a(f"s_add_u32 s{sKH}, s{sKH}, {15*1024}")
            for x in hloads(gn): issue(x, ("h", gn))
            a(f"s_add_u32 s{sKH}, s{sKH}, 1024")
        if g == 17:
            for i in range(5):
                a(f"v_lshrrev_b32 v{t0}, 1, v{OA+i}")
                issue(f"global_load_dwordx2 v[{XR+2*i}:{XR+2*i+1}], v{t0}, s[{P_X}:{P_X+1}]", ("f", 0))
            for i in range(5):
                a(f"v_mul_u32_u24 v{t1}, 49933, v{LA+i}")
                a(f"v_lshrrev_b32 v{t1}, 24, v{t1}")
                a(f"s_lshl_b32 s{sT0}, s{sRB2}, 6")
                a(f"v_add_u32 v{t1}, s{sT0}, v{t1}")
                a(f"v_lshlrev_b32 v{t1}, 2, v{t1}")
                a(f"v_add_u32 v{t1}, {WS_G}, v{t1}")
                issue(f"global_load_dword v{GR+i}, v{t1}, s[{P_WS}:{P_WS+1}]{SC}", ("f", 0))
        if g == 19:
            for i in range(5):
                a(f"v_mul_u32_u24 v{t1}, 49933, v{LA+i}")
                a(f"v_lshrrev_b32 v{t1}, 24, v{t1}")
                a(f"v_mul_u32_u24 v{t1}, {RS}, v{t1}")
                a(f"v_sub_u32 v{t1}, v{LA+i}, v{t1}")
                a(f"v_lshrrev_b32 v{t1}, 1, v{t1}")
                a(f"s_mul_i32 s{sT1}, s{sCB}, 160")
                a(f"v_add_u32 v{t1}, s{sT1}, v{t1}")
                issue(f"global_load_dwordx2 v[{DR+2*i}:{DR+2*i+1}], v{t1}, s[{P_DSK}:{P_DSK+1}]", ("f", 0))
    assert not fill and not wq, (len(fill), len(wq))
    if "kstamp" in FLAGS:
        a("s_waitcnt lgkmcnt(0)"); a(f"v_writelane_b32 v23, s38, 21")
        a("s_memtime s[38:39]"); a("s_waitcnt lgkmcnt(0)"); a(f"v_writelane_b32 v23, s38, 22")
        a(f"s_lshl_b32 s{sT0}, s2, 2"); a(f"s_add_u32 s{sT0}, s{sT0}, s{sW}"); a(f"s_lshl_b32 s{sT0}, s{sT0}, 8")
        a(f"s_add_u32 s{sT0}, s{sT0}, {WS_STAMP + 0x80000}")
        a(f"v_lshl_add_u32 v{t0}, v{vL}, 2, s{sT0}")
        a(f"global_store_dword v{t0}, v23, s[{P_WS}:{P_WS+1}]")
    stp(a, "K2 loop")
    wait_for(lambda tg: tg[0] == "g")
    for j in range(5):
        for i in range(4):
            A_r, B_r = accA(j, i), accB(j, i)
            for h in (0, 2):
                a(f"v_pk_add_f32 v[{A_r+h}:{A_r+h+1}], v[{A_r+h}:{A_r+h+1}], v[{B_r+h}:{B_r+h+1}] neg_lo:[0,1] neg_hi:[0,1]")
            for h in (0, 2):
                a(f"v_pk_fma_f32 v[{B_r+h}:{B_r+h+1}], v[{vG[i]}:{vG[i]+1}], v[{A_r+h}:{A_r+h+1}], v[{B_r+h}:{B_r+h+1}] op_sel_hi:[0,1,1]")
            a(f"ds_write_b128 v{vLW}, v[{B_r}:{B_r+3}] offset:{i*4*RS + 64*j}")
    a("s_waitcnt lgkmcnt(0)")
    a("s_barrier")
    stp(a, "red written")
    for i in range(5):
        b = 120 + 16*i
        for w in range(4):
            a(f"ds_read_b128 v[{b+4*w}:{b+4*w+3}], v{LA+i} offset:{w*RED}")
    a("s_waitcnt vmcnt(0)")
    for i in range(5):
        b = 120 + 16*i
        a(f"s_waitcnt lgkmcnt({min(15,4*(4-i))})")
        a(f"v_pk_add_f32 v[{b}:{b+1}], v[{b}:{b+1}], v[{b+4}:{b+5}]")
        a(f"v_pk_add_f32 v[{b+2}:{b+3}], v[{b+2}:{b+3}], v[{b+6}:{b+7}]")
        a(f"v_pk_add_f32 v[{b+8}:{b+9}], v[{b+8}:{b+9}], v[{b+12}:{b+13}]")
        a(f"v_pk_add_f32 v[{b+10}:{b+11}], v[{b+10}:{b+11}], v[{b+14}:{b+15}]")
        a(f"v_pk_add_f32 v[{b}:{b+1}], v[{b}:{b+1}], v[{b+8}:{b+9}]")
        a(f"v_pk_add_f32 v[{b+2}:{b+3}], v[{b+2}:{b+3}], v[{b+10}:{b+11}]")
        x0, d0_ = XR+2*i, DR+2*i
        for h in range(2):
            a(f"v_lshlrev_b32 v{t1}, 16, v{x0+h}")
            a(f"v_and_b32 v{t2}, 0xffff0000, v{x0+h}")
            a(f"v_lshlrev_b32 v{t3}, 16, v{d0_+h}")
            a(f"v_and_b32 v{t4}, 0xffff0000, v{d0_+h}")
            a(f"v_mul_f32 v{t1}, v{t1}, v{t3}")
            a(f"v_mul_f32 v{t2}, v{t2}, v{t4}")
            a(f"v_fmac_f32 v{b+2*h}, v{GR+i}, v{t1}")
            a(f"v_fmac_f32 v{b+2*h+1}, v{GR+i}, v{t2}")
        a(f"global_store_dwordx4 v{OA+i}, v[{b}:{b+3}], s[{P_OUT}:{P_OUT+1}]")
    stp(a, "out stored")
    if LSTAMP:
        pass
    if "dbgt" in FLAGS:
        a("s_waitcnt vmcnt(0)")
        a("s_memrealtime s[40:41]"); a("s_memtime s[42:43]")
        a("s_waitcnt lgkmcnt(0)")
        a(f"s_cmp_lg_u32 s{sW}, 0")
        a("s_cbranch_scc1 L_end")
        a("s_not_b32 s44, s101")
        a("v_mov_b32 v2, 0"); a("v_mov_b32 v3, s44"); a("v_mov_b32 v4, s40")
        a("s_mov_b64 exec, 1")
        a(f"global_atomic_umax v2, v3, s[{P_DBG}:{P_DBG+1}] offset:16 sc1")
        a(f"global_atomic_umax v2, v4, s[{P_DBG}:{P_DBG+1}] offset:20 sc1")
        a("s_cmp_lg_u32 s2, 0")
        a("s_cbranch_scc1 L_end")
        a("s_sub_u32 s42, s42, s96"); a("s_sub_u32 s40, s40, s101")
        a("v_mov_b32 v3, s42"); a("v_mov_b32 v4, s40")
        a(f"global_store_dword v2, v3, s[{P_DBG}:{P_DBG+1}] offset:24")
        a(f"global_store_dword v2, v4, s[{P_DBG}:{P_DBG+1}] offset:28")
    stp.dump(a, sW, sT0, P_WS, WS_STAMP)
    a.label("L_end")
    a("s_endpgm")
    a.label("L_codeend")
    return a.text()

HEADER = open("gated_mix__ssm_conv_s5__glu_gated_bilinear__prompt.s.ref").read().split("; Override launch")[0]
def main():
    out = HEADER
    out += "; Override launch geometry by editing the next line. Harness parses it; keep it on one line.\n"
    out += "; @launch grid=(256,1,1) block=(256,1,1) lds=163840\n"
    out += '.amdgcn_target "amdgcn-amd-amdhsa--gfx950"\n.text\n'
    out += f".globl {KNAME}\n.p2align 8\n.type {KNAME},@function\n" + gen()
    out += f""".section .rodata,"a"
.p2align 6
.amdhsa_kernel {KNAME}
  .amdhsa_next_free_vgpr 512
  .amdhsa_next_free_sgpr 102
  .amdhsa_accum_offset 256
  .amdhsa_group_segment_fixed_size 0
  .amdhsa_kernarg_size 136
  .amdhsa_user_sgpr_count 2
  .amdhsa_user_sgpr_kernarg_segment_ptr 1
  .amdhsa_system_sgpr_workgroup_id_x 1
  .amdhsa_float_denorm_mode_32 3
.end_amdhsa_kernel
"""
    path = [x for x in sys.argv[1:] if not x.startswith("--")][0]
    open(path, "w").write(out)
    json.dump([[d[i] for i in sorted(d)] for d in NAMES], open(path + ".names", "w"))
main()
```

```python
import sys, json
from asmlib import *

FLAGS = set(x[2:] for x in sys.argv[1:] if x.startswith("--"))
STAMP = "stamp" in FLAGS
NAMES = []
KNAME = "gated_mix__ssm_conv_s5__glu_gated_bilinear__prompt_kernel"

WS_H   = 0
WS_G   = 0xB00000
WS_S   = 0xB10000
WS_FB  = 0xB40000
WS_FA  = 0xB42000
WS_PF  = 0xB44000
WS_W2  = 0xC00000
W2_SIZE = 8*88*5*1024
WS_STAMP = 0x1000000
LOG2E = 0x3fb8aa3b
INV2PI = 0x3e22f983
SC = "" if "nosc" in FLAGS else " sc1"
SCL = "" if ("nosc" in FLAGS or "noscl" in FLAGS) else " sc1"
LSTAMP = "lstamp" in FLAGS

def srd(a, d, base, size, add=0):
    o = []
    if add == 0:
        o += [f"s_mov_b32 s{d}, s{base}", f"s_mov_b32 s{d+1}, s{base+1}"]
    elif add > 0:
        o += [f"s_add_u32 s{d}, s{base}, {add}", f"s_addc_u32 s{d+1}, s{base+1}, 0"]
    else:
        o += [f"s_sub_u32 s{d}, s{base}, {-add}", f"s_subb_u32 s{d+1}, s{base+1}, 0"]
    o += [f"s_mov_b32 s{d+2}, {size}", f"s_mov_b32 s{d+3}, 0x00020000"]
    if a is None: return o
    for x in o: a(x)

class Stamper:
    def __init__(self, store):
        self.store = store; self.n = 0; self.tmp = [98, 100]; self.names = {}
        NAMES.append(self.names)
    def __call__(self, a, name=""):
        if not STAMP: return
        if self.n > 0:
            a(f"s_mov_b32 s{self.store[self.n-1]}, s{self.tmp[(self.n-1)&1]}")
        assert self.n < len(self.store), "too many stamps"
        a(f"s_memtime s[{self.tmp[self.n&1]}:{self.tmp[self.n&1]+1}]")
        self.names[self.n] = name
        self.n += 1
    def dump(self, a, sW, sT0, P_WS, base):
        if not STAMP: return
        a("s_waitcnt vmcnt(0) lgkmcnt(0)")
        self(a, "end")
        a("s_waitcnt lgkmcnt(0)")
        a(f"s_mov_b32 s{self.store[self.n-1]}, s{self.tmp[(self.n-1)&1]}")
        a(f"s_lshl_b32 s{sT0}, s2, 2")
        a(f"s_add_u32 s{sT0}, s{sT0}, s{sW}")
        a(f"s_lshl_b32 s{sT0}, s{sT0}, 7")
        a(f"s_add_u32 s{sT0}, s{sT0}, {base}")
        a(f"v_mov_b32 v2, s{sT0}")
        if "dbgstamp" in FLAGS:
            keep = [i for i in range(1, self.n) if self.names[i] not in ("small issued", "glu1", "pub", "flagB", "flagB seen", "out stored")][:15]
            a("s_cmp_lg_u32 s2, 101")
            a("s_cbranch_scc1 L_end")
            a(f"s_cmp_lg_u32 s{sW}, 0")
            a("s_cbranch_scc1 L_end")
            a("v_mov_b32 v2, 0")
            for k, i in enumerate(keep):
                a(f"s_sub_u32 s40, s{self.store[i]}, s{self.store[0]}")
                a("v_mov_b32 v3, s40")
                a(f"global_store_dword v2, v3, s[34:35] offset:{4*(k+1)}")
            print("debug stamps:", [self.names[i] for i in keep])
            return
        for i in range(self.n):
            a(f"v_mov_b32 v3, s{self.store[i]}")
            a(f"global_store_dword v2, v3, s[{P_WS}:{P_WS+1}] offset:{4*i}")

def rr(*streams):
    out = []
    n = max(len(s) for s in streams)
    for i in range(n):
        for s in streams:
            if i < len(s): out.append(s[i])
    return out

def weave(a, work, mem, start=0, every=None):
    n = len(work); m = len(mem)
    if m == 0: pos = []
    elif every is None: pos = [start + int((n - start) * i / m) for i in range(m)]
    else: pos = [start + every*i for i in range(m)]
    mi = 0
    def emit(it):
        if isinstance(it, str): a(it)
        else:
            for x in it: a(x)
    for i, w in enumerate(work):
        while mi < m and pos[mi] <= i:
            emit(mem[mi]); mi += 1
        emit(w)
    while mi < m:
        emit(mem[mi]); mi += 1

SPIN_MAX = 100000
def spin_init(a): a("s_mov_b32 s95, 0")
def spin_guard(a, out_label):
    a("s_add_u32 s95, s95, 1")
    a(f"s_cmp_gt_u32 s95, {SPIN_MAX}")
    a(f"s_cbranch_scc1 {out_label}")

DPPSW = "quad_perm:[1,0,3,2] row_mask:0xf bank_mask:0xf"
P_X, P_LRE, P_LIM, P_BRE, P_BIM, P_CRE, P_CIM, P_LDT = 4,6,8,10,12,14,16,18
P_DSK, P_BX, P_WG, P_WU = 20,22,24,26
P_WD, P_GW, P_OUT, P_DBG = 28,30,32,34
P_WS = 36

def gen():
    a = Asm()
    stp = Stamper([96,97,22,23,6,7,8,9,18,19,10,11,12,13,24,25,26,27,95,94,73,74,75,76,77,80,81,82,83])
    SX, SG, SU, SB0, SB1, SB2, SM = 40,44,48,52,56,60,64
    sEX = 38
    sW, sRH, sCH, sRB, sCG = 68,69,70,71,72
    sDB, sCur, sD, sC3, sStage = 73,74,75,76,77
    sKX, sKG, sKU, sKB = 78,79,80,81
    sOX, sOG, sOU, sOB, sOB2 = 82,83,84,85,86
    sT0, sT1, sT2 = 87,88,89
    sF = 87
    sBlk, sRB2, sCB = 90, 91, 92
    sT3 = 93
    sNonce = 3
    vL = 1
    vDX, vDW, vDB = 2, 6, 9
    vX0, vX1, vWa, vWb, vWc, vB0, vB1 = 12,13,14,15,16,17,18
    t0, t1, t2, t3, t4 = 19,20,21,22,23
    vA  = [24,25,26]; vBx = [27,28,29]; vLRE = [30,31,32]; vLIM = [33,34,35]
    vLr = [36,37,38]; vLi = [39,40,41]; vWSr = [42,43,44]; vWSi = [45,46,47]
    vSgn, vNon, vSig, vWp = 48, 49, 50, 51
    vPF = 52
    SCR = 52
    vC, vAe, vAe4, vRw = 90, 91, 92, 93
    pa = [94, 95, 96]
    GLD = 56
    vGst, vGv = 71, 72
    RA, GA = 2, 3
    Ps = [4, 5, 6]
    vAs, vCm = 97, 98
    vAs2, vCm2 = 7, 8
    vH = 116
    ACC = 120
    BUF = 51200
    RX, RG, RU, RB = 0, 16384, 28672, 40960
    MISC = 3*BUF
    SWB, EF, E4, RWB = 0, 1280, 5120, 7104
    EF0 = EF + 7*256; E40 = E4 + 15*64
    HTS = 272
    def acc(n, i): return ACC + n*16 + 4*i
    SA, SBt, S4 = ACC+96, ACC+112, ACC+128
    CL = 52
    PK = 100
    vPWs, vPCs, vPWd, vPCd, vPtr = 61, 63, 64, 66, 68
    TP = 69

    a.label(KNAME)
    a(f"s_cmp_ge_u32 s2, 256")
    a(f"s_cbranch_scc1 L_end")
    if "nocodepf" not in FLAGS:
        a("s_getpc_b64 s[40:41]")
        a.label("L_pc")
        a("v_lshlrev_b32 v2, 2, v0")
        a("s_lshr_b32 s42, s2, 3")
        a("s_lshl_b32 s42, s42, 10")
        a("v_add_u32 v2, s42, v2")
        a("v_min_u32 v2, L_codeend-L_pc-4, v2")
        a("v_mov_b32 v3, s41")
        a("v_add_co_u32 v2, vcc, s40, v2")
        a("v_addc_co_u32 v3, vcc, 0, v3, vcc")
        a("global_load_dword v99, v[2:3], off")
    a(f"s_load_dwordx16 s[4:19], s[0:1], 0")
    a(f"s_load_dwordx8 s[20:27], s[0:1], 64")
    a(f"s_load_dwordx8 s[28:35], s[0:1], 96")
    a(f"s_load_dwordx2 s[36:37], s[0:1], 128")
    a(f"s_memrealtime s[{sEX}:{sEX+1}]")
    if "dbgt" in FLAGS: a("s_memtime s[96:97]")
    stp(a, "s0")
    a(f"v_lshrrev_b32 v{t0}, 6, v0")
    a(f"v_and_b32 v{vL}, 63, v0")
    a(f"s_and_b32 s{sT0}, s2, 1")
    a(f"v_readfirstlane_b32 s{sW}, v{t0}")
    a(f"s_lshl_b32 s{sT0}, s{sT0}, 3")
    a(f"s_lshr_b32 s{sT1}, s2, 3")
    a(f"s_and_b32 s{sRB}, s{sT1}, 7")
    a(f"s_add_u32 s{sRB}, s{sRB}, s{sT0}")
    a(f"s_lshr_b32 s{sT0}, s2, 1")
    a(f"s_and_b32 s{sT0}, s{sT0}, 3")
    a(f"s_lshl_b32 s{sT2}, s{sT0}, 2")
    a(f"s_lshr_b32 s{sT3}, s2, 6")
    a(f"s_add_u32 s{sCG}, s{sT2}, s{sT3}")
    a(f"s_lshl_b32 s{sT0}, s{sT0}, 3")
    a(f"s_and_b32 s{sT1}, s{sT1}, 7")
    a(f"s_add_u32 s{sRB2}, s{sT0}, s{sT1}")
    a(f"s_and_b32 s{sT0}, s2, 1")
    a(f"s_lshl_b32 s{sT0}, s{sT0}, 2")
    a(f"s_add_u32 s{sCB}, s{sT0}, s{sT3}")
    a(f"s_lshr_b32 s{sRH}, s{sW}, 1")
    a(f"s_and_b32 s{sCH}, s{sW}, 1")
    a(f"v_lshrrev_b32 v{t0}, 3, v{vL}")
    a(f"v_and_b32 v{t1}, 2, v{t0}")
    a(f"s_lshl_b32 s{sT0}, s{sCH}, 2")
    a(f"v_or_b32 v{t1}, s{sT0}, v{t1}")
    a(f"v_and_b32 v{t2}, 7, v{vL}")
    a(f"v_xor_b32 v{t1}, v{t1}, v{t2}")
    a(f"s_lshl_b32 s{sT0}, s{sRB}, 7")
    a(f"s_lshl_b32 s{sT1}, s{sW}, 5")
    a(f"s_add_u32 s{sT0}, s{sT0}, s{sT1}")
    a(f"v_add_u32 v{t0}, s{sT0}, v{t0}")
    a(f"v_mul_u32_u24 v{t0}, 1280, v{t0}")
    a(f"v_lshl_add_u32 v{vDX}, v{t1}, 4, v{t0}")
    for i in range(1,4):
        a(f"v_add_u32 v{vDX+i}, {9216*i}, v{vDX}")
    a(f"s_lshl_b32 s{sOX}, s{sW}, 12")
    a(f"s_mul_i32 s{sOG}, s{sW}, 3072")
    a(f"s_add_u32 s{sOU}, s{sOG}, {RU}")
    a(f"s_add_u32 s{sOG}, s{sOG}, {RG}")
    for r in (sKX, sKG, sKU, sKB): a(f"s_mov_b32 s{r}, 0")
    a("s_waitcnt lgkmcnt(0)")
    a(f"s_or_b32 s{sT0}, s2, s{sW}")
    a(f"s_cmp_lg_u32 s{sT0}, 0")
    a(f"s_cbranch_scc1 L_no_nonce")
    a(f"s_or_b32 s{sT0}, s{sEX}, 1")
    a(f"v_mov_b32 v{t0}, s{sT0}")
    a(f"v_mov_b32 v{t1}, 0")
    a(f"s_mov_b64 exec, 1")
    a(f"global_store_dword v{t1}, v{t0}, s[{P_DBG}:{P_DBG+1}]{SC}")
    a(f"s_mov_b64 exec, -1")
    a.label("L_no_nonce")
    if "dbgt" in FLAGS: a(f"s_mov_b32 s101, s{sEX}")
    srd(a, SX, P_X, 2621440)
    def dma(vo, S, so, off):
        o = f" offset:{off}" if off else ""
        return f"buffer_load_dwordx4 v{vo}, s[{S}:{S+3}], s{so} offen{o} lds"
    def dgrp(base_expr, items):
        g = [[f"s_add_u32 m0, {base_expr}", "s_nop 0", items[0]]]
        g += [[x] for x in items[1:]]
        return g
    def stage_x(b):  return dgrp(f"s{sOX}, {b}", [dma(vDX+i, SX, sKX, 1024*i) for i in range(4)])
    def stage_g(b):  return dgrp(f"s{sOG}, {b}", [dma(vDW+i, SG, sKG, 1024*i) for i in range(3)])
    def stage_u(b):  return dgrp(f"s{sOU}, {b}", [dma(vDW+i, SU, sKU, 1024*i) for i in range(3)])
    def stage_b(b):  return dgrp(f"s{sOB}, {b}", [dma(vDB, SB0, sKB, 0), dma(vDB+1, SB1, sKB, 1024)]) + dgrp(f"s{sOB2}, {b}", [dma(vDB+2, SB2, sKB, 0)])
    wW = [f"s_mul_i32 s{sT0}, s{sW}, 192", f"s_mul_i32 s{sT1}, s{sCG}, 192"]
    for i in range(3):
        wW += [f"v_add_u32 v{t0}, s{sT0}, v{vL}"]
        if i: wW += [f"v_add_u32 v{t0}, {64*i}, v{t0}"]
        wW += [f"v_mul_u32_u24 v{t1}, 43691, v{t0}", f"v_lshrrev_b32 v{t1}, 19, v{t1}", f"v_mul_u32_u24 v{t2}, 12, v{t1}",
               f"v_sub_u32 v{t2}, v{t0}, v{t2}", f"v_lshrrev_b32 v{t3}, 2, v{t1}", f"v_and_b32 v{t3}, 2, v{t3}",
               f"v_xor_b32 v{t2}, v{t2}, v{t3}", f"v_mul_u32_u24 v{t1}, 3072, v{t1}", f"v_lshl_add_u32 v{t1}, v{t2}, 4, v{t1}",
               f"v_add_u32 v{vDW+i}, s{sT1}, v{t1}"]
        if i: wW += [f"v_subrev_u32 v{vDW+i}, {1024*i}, v{vDW+i}"]
    wW += srd(None, SG, P_WG, 1966080) + srd(None, SU, P_WU, 1966080)
    weave(a, wW, stage_x(0), start=0)
    wB = [f"s_mul_i32 s{sT3}, s{sCG}, 40", f"s_mul_i32 s{sT2}, s{sW}, 3",
          [f"s_cmp_eq_u32 s{sW}, 3", f"s_cselect_b32 s{sT2}, 8, s{sT2}"],
          f"s_add_u32 s{sD}, s{sT2}, 2",
          [f"s_cmp_ge_u32 s{sW}, 2", f"s_cselect_b32 s{sT0}, 1, 0"],
          f"s_sub_u32 s{sD}, s{sD}, s{sT0}",
          f"s_lshl_b32 s{sOB}, s{sT2}, 10", f"s_add_u32 s{sOB}, s{sOB}, {RB}",
          f"s_lshl_b32 s{sOB2}, s{sD}, 10", f"s_add_u32 s{sOB2}, s{sOB2}, {RB}",
          f"v_lshrrev_b32 v{t3}, 4, v{vL}", f"v_lshlrev_b32 v{t3}, 1, v{t3}", f"v_and_b32 v{t4}, 7, v{vL}"]
    for i in range(3):
        wB += [f"s_mov_b32 s{sT0}, s{sT2}" if i == 0 else (f"s_add_u32 s{sT0}, s{sT2}, 1" if i == 1 else f"s_mov_b32 s{sT0}, s{sD}")]
        wB += [[f"s_cmp_ge_u32 s{sT0}, 5", f"s_cselect_b32 s{sT1}, 1, 0", f"s_cselect_b32 s{sC3}, 5, 0"],
               f"s_sub_u32 s{sT0}, s{sT0}, s{sC3}", f"s_lshl_b32 s{sT0}, s{sT0}, 3", f"s_add_u32 s{sT0}, s{sT0}, s{sT3}",
               f"v_lshrrev_b32 v{t0}, 3, v{vL}", f"v_add_u32 v{t0}, s{sT0}, v{t0}", f"v_mul_u32_u24 v{t0}, 1280, v{t0}",
               f"v_add_u32 v{t1}, s{sT1}, v{t3}", f"v_xor_b32 v{t1}, v{t1}, v{t4}", f"v_lshl_add_u32 v{t0}, v{t1}, 4, v{t0}",
               f"v_add_u32 v{vDB+i}, {4096 - (1024*i if i < 2 else 0)}, v{t0}"]
    for i, S in enumerate([SB0, SB1, SB2]):
        wB += [[f"s_cmp_ge_u32 s{sW}, {2 if i < 2 else 1}", f"s_cselect_b32 s{S}, s{P_BIM}, s{P_BRE}", f"s_cselect_b32 s{S+1}, s{P_BIM+1}, s{P_BRE+1}"],
               [f"s_sub_u32 s{S}, s{S}, 4096", f"s_subb_u32 s{S+1}, s{S+1}, 0"],
               f"s_mov_b32 s{S+2}, {819200+4096}", f"s_mov_b32 s{S+3}, 0x00020000"]
    weave(a, wB, stage_g(0) + stage_u(0), start=0)
    c1, c2 = TP, TP+1
    wC = [f"v_and_b32 v{t0}, 15, v{vL}", f"v_lshrrev_b32 v{t0}, 1, v{t0}", f"s_mul_i32 s{sT0}, s{sCG}, 40",
          f"s_lshl_b32 s{sT1}, s{sCH}, 4", f"s_add_u32 s{sT1}, s{sT1}, s{sT0}", f"v_add_u32 v{c1}, s{sT1}, v{t0}",
          f"v_lshlrev_b32 v{c1}, 1, v{c1}", f"s_add_u32 s{sT0}, s{sT0}, 32", f"v_add_u32 v{c2}, s{sT0}, v{t0}",
          f"v_lshlrev_b32 v{c2}, 1, v{c2}"]
    wC += [f"s_mul_i32 s{sT0}, s2, 52429", f"s_lshr_b32 s{sT0}, s{sT0}, 18", f"s_mul_i32 s{sT1}, s{sT0}, 5", f"s_sub_u32 s{sT1}, s2, s{sT1}",
           f"v_lshrrev_b32 v{t0}, 2, v{vL}", f"s_lshl_b32 s{sT2}, s{sT0}, 5", f"v_add_u32 v{t0}, s{sT2}, v{t0}",
           f"v_mul_u32_u24 v{t0}, 1280, v{t0}", f"v_and_b32 v{t1}, 3, v{vL}", f"v_lshl_add_u32 v{t0}, v{t1}, 4, v{t0}",
           f"s_lshl_b32 s{sT2}, s{sT1}, 8", f"v_add_u32 v{t0}, s{sT2}, v{t0}", f"s_lshl_b32 s{sT2}, s{sW}, 6",
           f"v_add_u32 v{vPWs}, s{sT2}, v{t0}", f"v_add_u32 v{vPWs+1}, {16*1280-1024}, v{vPWs}"]
    for k in range(2):
        wC += [f"s_lshl_b32 s{sT2}, s{sT1}, 3", f"s_lshl_b32 s{sT3}, s{sW}, 1", f"s_add_u32 s{sT2}, s{sT2}, s{sT3}"]
        if k: wC += [f"s_add_u32 s{sT2}, s{sT2}, 1"]
        wC += [f"s_mul_i32 s{sT3}, s{sT2}, 52429", f"s_lshr_b32 s{sT3}, s{sT3}, 18", f"s_mul_i32 s{sD}, s{sT3}, 5",
               f"s_sub_u32 s{sT2}, s{sT2}, s{sD}", f"s_mul_i32 s{sT3}, s{sT3}, 88", f"s_add_u32 s{sT3}, s{sT3}, s{sT0}",
               f"s_add_u32 s{sT3}, s{sT3}, 40", f"s_mul_i32 s{sT3}, s{sT3}, 5", f"s_add_u32 s{sT3}, s{sT3}, s{sT2}",
               f"s_lshl_b32 s{sT3}, s{sT3}, 10", f"s_add_u32 s{sT3}, s{sT3}, {WS_W2}",
               f"v_lshlrev_b32 v{vPWd+k}, 4, v{vL}", f"v_add_u32 v{vPWd+k}, s{sT3}, v{vPWd+k}"]
    wC += [f"s_lshl_b32 s{sT0}, s2, 3", f"s_lshl_b32 s{sT1}, s{sW}, 1", f"s_add_u32 s{sT0}, s{sT0}, s{sT1}",
           f"s_mul_i32 s{sT1}, s{sT0}, 52429", f"s_lshr_b32 s{sT1}, s{sT1}, 21", f"s_mul_i32 s{sT2}, s{sT1}, 40",
           f"s_sub_u32 s{sT0}, s{sT0}, s{sT2}",
           [f"s_cmp_ge_u32 s{sT0}, 20", f"s_cselect_b32 s{sC3}, 1, 0", f"s_cselect_b32 s{sT2}, 20, 0"],
           f"s_sub_u32 s{sT2}, s{sT0}, s{sT2}",
           f"v_and_b32 v{t0}, 15, v{vL}", f"s_lshl_b32 s{sT3}, s{sT1}, 4", f"v_add_u32 v{t0}, s{sT3}, v{t0}",
           f"v_mul_u32_u24 v{t0}, 1280, v{t0}", f"v_lshrrev_b32 v{t1}, 4, v{vL}", f"v_lshl_add_u32 v{t0}, v{t1}, 4, v{t0}",
           f"s_lshl_b32 s{sT2}, s{sT2}, 6", f"v_add_u32 v{vPCs}, s{sT2}, v{t0}",
           f"s_mul_i32 s{sT3}, s{sT1}, 52429", f"s_lshr_b32 s{sT3}, s{sT3}, 18", f"s_mul_i32 s{sD}, s{sT3}, 5",
           f"s_sub_u32 s{sT1}, s{sT1}, s{sD}", f"s_mul_i32 s{sT3}, s{sT3}, 88", f"s_add_u32 s{sT3}, s{sT3}, s{sT0}",
           f"s_mul_i32 s{sT3}, s{sT3}, 5", f"s_add_u32 s{sT3}, s{sT3}, s{sT1}", f"s_lshl_b32 s{sT3}, s{sT3}, 10",
           f"s_add_u32 s{sT3}, s{sT3}, {WS_W2}", f"v_lshlrev_b32 v{vPCd}, 4, v{vL}", f"v_add_u32 v{vPCd}, s{sT3}, v{vPCd}",
           f"v_add_u32 v{vPCd+1}, {5*1024}, v{vPCd}",
           f"s_lshl_b32 s{sT0}, s{sW}, 11", f"s_add_u32 s95, s{sT0}, {MISC}"]
    weave(a, wC, stage_b(0), start=0)
    stp(a, "S0 issued")
    sm = []
    for k, P in enumerate((P_LRE, P_LIM, P_LDT)):
        sm += [f"global_load_ushort v{CL+3*k}, v{c1}, s[{P}:{P+1}]", f"global_load_ushort v{CL+3*k+1}, v{c1}, s[{P}:{P+1}] offset:16",
               f"global_load_ushort v{CL+3*k+2}, v{c2}, s[{P}:{P+1}]"]
    sm += [srd(None, SM, P_WD, 1966080) + [f"s_cmp_lt_u32 s2, 240", f"s_cselect_b32 s{SM+2}, s{SM+2}, 0", "s_mov_b32 m0, s95", "s_nop 0",
           f"buffer_load_dwordx4 v{vPWs}, s[{SM}:{SM+3}], 0 offen lds"],
           [f"buffer_load_dwordx4 v{vPWs+1}, s[{SM}:{SM+3}], 0 offen offset:1024 lds"],
           [f"s_cmp_eq_u32 s{sC3}, 1", f"s_cselect_b32 s{SM}, s{P_CIM}, s{P_CRE}", f"s_cselect_b32 s{SM+1}, s{P_CIM+1}, s{P_CRE+1}",
            f"s_mov_b32 s{SM+2}, 819200", f"s_cmp_lt_u32 s2, 200", f"s_cselect_b32 s{SM+2}, s{SM+2}, 0",
            f"buffer_load_dwordx4 v[{PK}:{PK+3}], v{vPCs}, s[{SM}:{SM+3}], 0 offen"],
           [f"buffer_load_dwordx4 v[{PK+4}:{PK+7}], v{vPCs}, s[{SM}:{SM+3}], 0 offen offset:64"]]
    m, q = t0, t1
    wL = [f"v_and_b32 v{m}, 15, v{vL}", f"v_lshrrev_b32 v{q}, 4, v{vL}",
          f"v_lshrrev_b32 v{t2}, 2, v{m}", f"v_lshlrev_b32 v{t2}, 4, v{t2}", f"v_and_b32 v{t3}, 3, v{m}", f"v_add_u32 v{t2}, v{t2}, v{t3}",
          f"s_lshl_b32 s{sT0}, s{sRH}, 6", f"v_add_u32 v{t2}, s{sT0}, v{t2}", f"v_lshlrev_b32 v{t2}, 7, v{t2}",
          f"v_and_b32 v{t3}, 2, v{m}", f"v_lshrrev_b32 v{t4}, 3, v{m}", f"v_lshl_or_b32 v{t3}, v{t4}, 2, v{t3}",
          f"v_xor_b32 v{t3}, v{t3}, v{q}", f"v_lshl_add_u32 v{vX0}, v{t3}, 4, v{t2}", f"v_xor_b32 v{t3}, 4, v{t3}",
          f"v_lshl_add_u32 v{vX1}, v{t3}, 4, v{t2}",
          f"v_lshrrev_b32 v{t2}, 2, v{m}", f"v_lshl_add_u32 v{t2}, v{q}, 3, v{t2}", f"v_mul_u32_u24 v{t2}, 192, v{t2}",
          f"v_and_b32 v{t3}, 3, v{m}", f"v_lshl_add_u32 v{t2}, v{t3}, 3, v{t2}", f"v_and_b32 v{t3}, 1, v{q}",
          f"v_lshl_add_u32 v{vWa}, v{t3}, 5, v{t2}", f"v_xor_b32 v{t3}, 1, v{t3}", f"v_lshl_add_u32 v{vWb}, v{t3}, 5, v{t2}",
          [f"s_cmp_eq_u32 s{sCH}, 1", f"s_cselect_b64 vcc, -1, 0", f"v_cndmask_b32 v{vWc}, v{vWa}, v{vWb}, vcc"],
          f"v_add_u32 v{vWc}, 64, v{vWc}", f"s_lshl_b32 s{sT0}, s{sCH}, 7", f"v_add_u32 v{vWa}, s{sT0}, v{vWa}", f"v_add_u32 v{vWb}, s{sT0}, v{vWb}",
          f"v_and_b32 v{t2}, 1, v{m}", f"v_lshrrev_b32 v{t3}, 2, v{m}", f"v_lshl_add_u32 v{t3}, v{t3}, 1, v{t2}", f"v_xor_b32 v{t3}, v{t3}, v{q}",
          f"v_mul_u32_u24 v{t2}, 40, v{t2}", f"v_lshrrev_b32 v{t4}, 1, v{m}", f"v_add_u32 v{t2}, v{t2}, v{t4}", f"v_lshlrev_b32 v{t2}, 7, v{t2}",
          f"s_lshl_b32 s{sT0}, s{sCH}, 11", f"v_add_u32 v{t2}, s{sT0}, v{t2}", f"v_lshl_add_u32 v{vB0}, v{t3}, 4, v{t2}",
          f"v_xor_b32 v{t3}, 4, v{t3}", f"v_lshl_add_u32 v{vB1}, v{t3}, 4, v{t2}",
          f"s_lshl_b32 s{sT0}, s{sRH}, 2", f"v_add_u32 v{vSig}, s{sT0}, v{q}",
          f"v_and_b32 v{t2}, 1, v{vL}", f"v_cvt_f32_u32 v{t2}, v{t2}", f"v_fma_f32 v{vSgn}, v{t2}, 2.0, -1.0",
          f"v_lshrrev_b32 v{t2}, 2, v{m}", f"v_lshl_add_u32 v{t2}, v{q}, 2, v{t2}", f"v_lshlrev_b32 v{t2}, 6, v{t2}",
          f"v_and_b32 v{t3}, 3, v{m}", f"v_lshl_add_u32 v{t2}, v{t3}, 3, v{t2}", f"v_add_u32 v{vPtr}, s95, v{t2}",
          f"v_lshlrev_b32 v{vC}, 2, v{m}", f"s_lshl_b32 s{sT0}, s{sCH}, 7", f"v_add_u32 v{vAs}, s{sT0}, v{vC}",
          f"v_add_u32 v{vCm}, {MISC}, v{vC}", f"v_add_u32 v{vAe}, {MISC}, v{vAs}", f"v_lshl_add_u32 v{vAe}, v{vSig}, 8, v{vAe}",
          f"v_lshlrev_b32 v{vAe4}, 1, v{vSig}", f"v_add_u32 v{vAe4}, s{sCH}, v{vAe4}", f"v_lshl_add_u32 v{vAe4}, v{vAe4}, 6, v{vCm}",
          f"s_mul_i32 s{sT0}, s{sW}, 320", f"s_add_u32 s{sT0}, s{sT0}, {MISC}", f"v_add_u32 v{vRw}, s{sT0}, v{vAs}",
          f"v_lshlrev_b32 v{vWp}, 4, v{vL}", f"s_mul_i32 s{sT0}, s{sRB2}, {4*88*1024}", f"v_add_u32 v{vH}, s{sT0}, v{vWp}"]
    wL += [f"v_add_u32 v{vH+i}, {i*88*1024}, v{vH}" for i in range(1,4)]
    weave(a, wL, sm, start=0)
    stp(a, "small issued")
    a(f"s_mov_b32 s{sKX}, 128"); a(f"s_mov_b32 s{sKG}, 196608"); a(f"s_mov_b32 s{sKU}, 196608"); a(f"s_mov_b32 s{sKB}, 128")
    wQ = []
    wQ += [f"s_mul_i32 s{sT0}, s{sCG}, {16*640}", f"s_add_u32 s{sT0}, s{sT0}, {WS_S}",
           f"v_mul_u32_u24 v{pa[0]}, 640, v{vSig}", f"v_lshl_add_u32 v{pa[0]}, v{vAs}, 1, v{pa[0]}", f"v_add_u32 v{pa[0]}, s{sT0}, v{pa[0]}",
           f"v_add_u32 v{pa[1]}, {8*640}, v{pa[0]}", f"v_lshlrev_b32 v{t0}, 1, v{vSig}", f"v_add_u32 v{t0}, s{sCH}, v{t0}",
           f"v_mul_u32_u24 v{pa[2]}, 640, v{t0}", f"v_lshl_add_u32 v{pa[2]}, v{vC}, 1, v{pa[2]}", f"v_add_u32 v{pa[2]}, s{sT0}, v{pa[2]}",
           f"v_add_u32 v{pa[2]}, {64*8}, v{pa[2]}", f"v_mov_b32 v{t4}, 0x7f000000", f"v_add_u32 v{t1}, 8, v{vSig}"]
    for (p_, src) in ((pa[0], vSig), (pa[1], t1), (pa[2], t0)):
        wQ += [[f"v_cmp_le_u32 vcc, s{sRB}, v{src}", "s_nop 1", f"v_cndmask_b32 v{p_}, v{p_}, v{t4}, vcc"]]
    S1 = stage_x(BUF) + stage_g(BUF) + stage_u(BUF) + stage_b(BUF)
    Z2 = 76
    wQ += [f"v_mov_b32 v{Z2+k}, 0" for k in range(4)] + ["s_nop 1"]
    wQ += [f"v_mfma_f32_32x32x16_bf16 v[{ACC+16*k}:{ACC+16*k+15}], v[{Z2}:{Z2+3}], v[{Z2}:{Z2+3}], 0" for k in range(8)]
    wQ += [f"v_mfma_f32_16x16x32_bf16 v[{ACC+128}:{ACC+131}], v[{Z2}:{Z2+3}], v[{Z2}:{Z2+3}], 0",
           f"v_mfma_f32_16x16x32_bf16 v[{ACC+132}:{ACC+135}], v[{Z2}:{Z2+3}], v[{Z2}:{Z2+3}], 0"]
    weave(a, wQ, S1, start=0)
    a(f"s_mov_b32 s{sKX}, {2*128}"); a(f"s_mov_b32 s{sKG}, {2*196608}")
    a(f"s_mov_b32 s{sKU}, {2*196608}"); a(f"s_mov_b32 s{sKB}, {2*128}")
    a(f"s_mov_b32 s{sDB}, {2*BUF}")
    a(f"s_mov_b32 s{sCur}, 0"); a(f"s_mov_b32 s{sD}, {BUF}"); a(f"s_mov_b32 s{sC3}, 0")
    a(f"s_mov_b32 s{sStage}, 0")
    a(f"s_mov_b32 s{sBlk}, {(1<<1)|(1<<5):#x}")
    stp(a, "S1 issued")
    a("s_waitcnt vmcnt(13)")
    a("s_barrier")
    stp(a, "S0 landed")
    def cpow_s(dr, di, A, B, n, tm, sgn):
        o = []
        if n is None:
            o += [f"v_exp_f32 v{tm}, v{A}", f"v_rndne_f32 v{dr}, v{B}", f"v_sub_f32 v{tm+1}, v{B}, v{dr}"]
        else:
            o += [f"v_mul_f32 v{tm}, {n}, v{A}", f"v_mul_f32 v{tm+1}, {n}, v{B}", f"v_exp_f32 v{tm}, v{tm}",
                  f"v_rndne_f32 v{dr}, v{tm+1}", f"v_sub_f32 v{tm+1}, v{tm+1}, v{dr}"]
        o += [f"v_cos_f32 v{dr}, v{tm+1}", f"v_sin_f32 v{di}, v{tm+1}"]
        if sgn is not None:
            o += [f"v_mul_f32 v{dr}, v{tm}, v{dr}", f"v_mul_f32 v{tm}, v{sgn}, v{tm}", f"v_mul_f32 v{di}, v{tm}, v{di}"]
        else:
            o += [f"v_mul_f32 v{dr}, v{tm}, v{dr}", f"v_mul_f32 v{di}, v{tm}, v{di}"]
        return o
    def make_Wk():
        Wk = []
        for k in range(2):
            Wk += [f"ds_read_b64_tr_b16 v[{PK+8+4*k}:{PK+9+4*k}], v{vPtr} offset:{32*k}", f"ds_read_b64_tr_b16 v[{PK+10+4*k}:{PK+11+4*k}], v{vPtr} offset:{32*k+1024}"]
        Wk += [srd(None, SM, P_WS, WS_W2 + W2_SIZE) + [f"s_cmp_lt_u32 s2, 200", f"s_cselect_b32 s{SM+2}, s{SM+2}, 0",
                f"buffer_store_dwordx4 v[{PK}:{PK+3}], v{vPCd}, s[{SM}:{SM+3}], 0 offen{SC}",
                f"buffer_store_dwordx4 v[{PK+4}:{PK+7}], v{vPCd+1}, s[{SM}:{SM+3}], 0 offen{SC}"]]
        vN = 71
        Wk += [f"v_cvt_f32_u32 v{vN}, v{vSig}", f"v_mov_b32 v{vN+1}, 0x42e00000", f"s_mov_b32 s{sT0}, 0xc1800000",
               f"v_fma_f32 v{vN}, v{vN}, s{sT0}, v{vN+1}", f"s_lshl_b32 s{sT0}, s{sCH}, 3", f"s_sub_u32 s{sT0}, 8, s{sT0}",
               f"v_cvt_f32_u32 v{vN+2}, s{sT0}", f"v_add_f32 v{vN+2}, v{vN+2}, v{vN}"]
        Wk += [["s_waitcnt lgkmcnt(0)", f"s_mov_b32 s{SM+2}, {WS_W2 + W2_SIZE}", f"s_cmp_lt_u32 s2, 240", f"s_cselect_b32 s{SM+2}, s{SM+2}, 0",
                f"buffer_store_dwordx4 v[{PK+8}:{PK+11}], v{vPWd}, s[{SM}:{SM+3}], 0 offen{SC}",
                f"buffer_store_dwordx4 v[{PK+12}:{PK+15}], v{vPWd+1}, s[{SM}:{SM+3}], 0 offen{SC}"]]
        Z = 76
        Wk += [f"v_lshlrev_b32 v{t0}, 5, v0", f"v_add_u32 v{t0}, {MISC}, v{t0}", f"ds_write_b128 v{t0}, v[{Z}:{Z+3}]", f"ds_write_b128 v{t0}, v[{Z}:{Z+3}] offset:16"]
        streams = []
        for T in range(3):
            tm = 80+2*T; dt = 86+T
            s_ = [f"v_lshlrev_b32 v{vLRE[T]}, 16, v{CL+T}", f"v_lshlrev_b32 v{vLIM[T]}, 16, v{CL+3+T}", f"v_lshlrev_b32 v{dt}, 16, v{CL+6+T}",
                  f"v_mul_f32 v{dt}, {LOG2E:#x}, v{dt}", f"v_exp_f32 v{dt}, v{dt}",
                  f"v_cvt_pk_bf16_f32 v{dt}, v{dt}, v{dt}", f"v_lshlrev_b32 v{dt}, 16, v{dt}",
                  f"v_mul_f32 v{vA[T]}, v{dt}, v{vLRE[T]}", f"v_mul_f32 v{vBx[T]}, v{dt}, v{vLIM[T]}",
                  f"v_mul_f32 v{vA[T]}, {LOG2E:#x}, v{vA[T]}", f"v_mul_f32 v{vBx[T]}, {INV2PI:#x}, v{vBx[T]}"]
            s_ += cpow_s(vLr[T], vLi[T], vA[T], vBx[T], None, tm, vSgn)
            s_ += cpow_s(vWSr[T], vWSi[T], vA[T], vBx[T], f"v{vN if T < 2 else vN+2}", tm, vSgn)
            streams.append(s_)
        Wk += [[x, y, z] for x, y, z in zip(*streams)]
        Wk += [[f"v_mov_b32 v{t0}, 0", f"global_load_dword v{vNon}, v{t0}, s[{P_DBG}:{P_DBG+1}]{SC}"]]
        return Wk

    def dma_first(sdb):
        g = [f"s_add_u32 m0, s{sdb}, s{sOX}"] + [dma(vDX+i, SX, sKX, 1024*i) for i in range(4)]
        g += [f"s_add_u32 m0, s{sdb}, s{sOG}"] + [dma(vDW+i, SG, sKG, 1024*i) for i in range(3)]
        g += [f"s_add_u32 s{sKX}, s{sKX}, 128", f"s_add_u32 s{sKG}, s{sKG}, 196608"]
        return g
    def dma_second(sdb):
        g = [f"s_add_u32 m0, s{sdb}, s{sOU}"] + [dma(vDW+i, SU, sKU, 1024*i) for i in range(3)]
        g += [f"s_add_u32 m0, s{sdb}, s{sOB}", dma(vDB, SB0, sKB, 0), dma(vDB+1, SB1, sKB, 1024)]
        g += [f"s_add_u32 m0, s{sdb}, s{sOB2}", dma(vDB+2, SB2, sKB, 0)]
        g += [f"s_add_u32 s{sKU}, s{sKU}, 196608", f"s_add_u32 s{sKB}, s{sKB}, 128"]
        return g
    def reads(ch, s, setb):
        vX = vX0 if s == 0 else vX1
        vB = vB0 if s == 0 else vB1
        X = [f"ds_read_b128 a[{setb+4*i}:{setb+4*i+3}], v{vX} offset:{RX+i*512}" for i in range(4)]
        def tr(n, region, k):
            vW = (vWa, vWb, vWc)[k]
            b = setb + 16 + 4*n
            o = region + 6144*s
            return [f"ds_read_b64_tr_b16 a[{b}:{b+1}], v{vW} offset:{o}", f"ds_read_b64_tr_b16 a[{b+2}:{b+3}], v{vW} offset:{o+768}"]
        def sb(n, off):
            b = setb + 16 + 4*n
            return [f"ds_read_b128 a[{b}:{b+3}], v{vB} offset:{RB+off}"]
        W = []
        for k in range(3):
            W += tr(2*k, RG, k); W += tr(2*k+1, RU, k)
        W += sb(6, 0) + sb(7, 1024) + sb(8, 4096 - 2048*ch)
        return X[:1] + W[:2] + X[1:] + W[2:]
    def mfmas(ch, setb):
        out = []
        for n in range(6):
            for i in range(4):
                d = acc(n, i)
                out.append(f"v_mfma_f32_16x16x32_bf16 v[{d}:{d+3}], a[{setb+16+4*n}:{setb+16+4*n+3}], a[{setb+4*i}:{setb+4*i+3}], v[{d}:{d+3}]")
        for n in (6, 7):
            for i in range(4):
                d = acc(n, i)
                out.append(f"v_mfma_f32_16x16x32_bf16 v[{d}:{d+3}], a[{setb+4*i}:{setb+4*i+3}], a[{setb+16+4*n}:{setb+16+4*n+3}], v[{d}:{d+3}]")
        for k in range(2):
            i = 2*ch + k
            d = S4 + 4*k
            out.append(f"v_mfma_f32_16x16x32_bf16 v[{d}:{d+3}], a[{setb+4*i}:{setb+4*i+3}], a[{setb+16+32}:{setb+16+35}], v[{d}:{d+3}]")
        return out
    def substep(ch, setb, rd, dmas, late, seq=None):
        main = mfmas(ch, setb)
        gaps = [[] for _ in range(34)]
        for i, r in enumerate(rd): gaps[i].append(r)
        loads = [x for x in dmas if "buffer_load" in x]
        nl = len(loads)
        last = 0
        if nl:
            pos = [1 + int(i*30/nl) for i in range(nl)]
            li = 0; pend = []
            for x in dmas:
                if "buffer_load" in x:
                    p = pos[li]; pp = p - 1
                    for y in reversed(pend):
                        while len(gaps[pp]) >= 2: pp -= 1
                        assert pp >= 0
                        gaps[pp].append(y)
                    pend = []
                    while len(gaps[p]) >= 2: p += 1
                    gaps[p].append(x); last = p
                    li += 1
                else: pend.append(x)
            p = last + 1
            for y in pend:
                while len(gaps[p]) >= 2: p += 1
                gaps[p].append(y)
        g = 0
        for (e, ins) in late:
            g = max(g, e)
            while len(gaps[g]) + len(ins) > 2:
                g += 1
                assert g < 34, "late overflow"
            gaps[g].extend(ins)
        if seq is not None:
            g = 0
            while seq and g < 34:
                if len(gaps[g]) + len(seq[0]) <= 2:
                    gaps[g].extend(seq.pop(0))
                g += 1
        out = []
        for i in range(34):
            out.append(main[i]); out.extend(gaps[i])
        return out
    def gate_seq():
        gw = [GLD, GLD+1, GLD+2, GLD+3, GLD+4]
        xr = [[GLD+6, GLD+7, GLD+8, GLD+9, GLD+5], [GLD+10, GLD+11, GLD+12, GLD+13, GLD+14]]
        ga = [73, 74]; u0, u1, u2, u3 = 75, 76, 77, 78
        q_ = [[f"v_mov_b32 v{ga[0]}, 0", f"v_mov_b32 v{ga[1]}, 0"]]
        for i in range(5):
            q_.append([f"v_lshlrev_b32 v{u0}, 16, v{gw[i]}", f"v_and_b32 v{u1}, 0xffff0000, v{gw[i]}"])
            for r in range(2):
                x_ = xr[r][i]
                q_ += [[f"v_lshlrev_b32 v{u2}, 16, v{x_}", f"v_and_b32 v{u3}, 0xffff0000, v{x_}"],
                       [f"v_mul_f32 v{u2}, v{u2}, v{u0}", f"v_mul_f32 v{u3}, v{u3}, v{u1}"],
                       [f"v_cvt_pk_bf16_f32 v{u2}, v{u2}, v{u3}"],
                       [f"v_and_b32 v{u3}, 0xffff0000, v{u2}", f"v_lshlrev_b32 v{u2}, 16, v{u2}"],
                       [f"v_add_f32 v{ga[r]}, v{ga[r]}, v{u2}", f"v_add_f32 v{ga[r]}, v{ga[r]}, v{u3}"]]
        for sh, rm in (("row_shr:1","0xf"),("row_shr:2","0xf"),("row_shr:4","0xf"),("row_shr:8","0xf"),("row_bcast:15","0xa"),("row_bcast:31","0xc")):
            bc = " bound_ctrl:0" if sh.startswith("row_shr") else ""
            q_.append([f"v_add_f32_dpp v{ga[r]}, v{ga[r]}, v{ga[r]} {sh} row_mask:{rm} bank_mask:0xf{bc}" for r in range(2)])
        q_ += [[f"v_readlane_b32 s{sT1}, v{ga[0]}, 63", f"v_readlane_b32 s{sT2}, v{ga[1]}, 63"],
               [f"v_cmp_eq_u32 vcc, 0, v{vL}"],
               [f"v_mov_b32 v{u3}, s{sT1}", f"v_mov_b32 v{u2}, s{sT2}"],
               [f"v_cndmask_b32 v{u2}, v{u2}, v{u3}, vcc"], [f"v_cvt_pk_bf16_f32 v{u2}, v{u2}, v{u2}"],
               [f"v_lshlrev_b32 v{u2}, 16, v{u2}", f"v_mul_f32 v{u2}, 0xbfb8aa3b, v{u2}"],
               [f"v_exp_f32 v{u2}, v{u2}"], [f"v_add_f32 v{u2}, 1.0, v{u2}"], [f"v_rcp_f32 v{u2}, v{u2}"],
               [f"v_cvt_pk_bf16_f32 v{u2}, v{u2}, v{u2}"], [f"v_lshlrev_b32 v{vGv}, 16, v{u2}", f"s_lshl_b32 s{sT1}, s94, 2"],
               [f"s_add_u32 s{sT1}, s{sT1}, {WS_G}"], [f"v_lshl_add_u32 v{vGst}, v{vL}, 2, s{sT1}"]]
        return q_
    def wbase(g, j):
        if g < 7: return 104 + 20*g + 4*j
        if g < 11: return 20*(g-7) + 4*j
        return 80 + 4*j if j < 2 else 244 + 4*(j-2)
    SW2, SH = SX, SG
    sKW, sKW4, sKH = sKX, sKG, sKU
    def wload(g, j):
        b = wbase(g, j)
        if j < 4:
            o = f" offset:{1024*j}" if j else ""
            return f"buffer_load_dwordx4 a[{b}:{b+3}], v{vWp}, s[{SW2}:{SW2+3}], s{sKW} offen{o}{SCL}"
        return f"buffer_load_dwordx4 a[{b}:{b+3}], v{vWp}, s[{SW2}:{SW2+3}], s{sKW4} offen{SCL}"
    def wstep(g, inc=5120):
        return [wload(g, j) for j in range(5)] + [f"s_add_u32 s{sKW}, s{sKW}, {inc}", f"s_add_u32 s{sKW4}, s{sKW4}, {inc}"]

    A_, B_ = 0, 52
    a(f"s_cmp_eq_u32 s{sCH}, 1")
    a(f"s_cbranch_scc1 L_pre1")
    rot0 = lambda: [(24, [f"s_mov_b32 s{sF}, s{sCur}"]), (24, [f"s_add_u32 s{sCur}, s{sCur}, s{sD}"]),
                  (24, [f"s_add_u32 s{sC3}, s{sC3}, 1"]),
                  (24, [f"s_cmp_eq_u32 s{sC3}, 3", f"s_cselect_b32 s{sC3}, 0, s{sC3}"]),
                  (24, [f"s_cmp_eq_u32 s{sC3}, 2", f"s_cselect_b32 s{sD}, {3*BUF}, 0"]),
                  (24, [f"s_sub_u32 s{sD}, {BUF}, s{sD}"])]
    n0 = stp.n
    for ch in (0, 1):
        stp.n = n0
        a.label(f"L_pre{ch}")
        for r in reads(ch, 0, A_): a(r)
        a(f"v_add_u32 v{vX0}, {BUF}, v{vX0}")
        a(f"v_add_u32 v{vB0}, {BUF}, v{vB0}")
        d1 = dma_first(sDB)
        grp = []; cur_ = []
        for x in d1:
            cur_.append(x)
            if "m0" in x.split(",")[0]: cur_.append("s_nop 0")
            if "buffer_load" in x: grp.append(cur_); cur_ = []
        grp[-1] += cur_
        weave(a, make_Wk(), grp, start=1)
        a("s_waitcnt lgkmcnt(0)")
        stp(a, "prologue")
        a(".p2align 3")
        a.label(f"L_loop{ch}")
        late0 = [(19, [f"v_add_u32 v{r}, s{sD}, v{r}"]) for r in (vWa, vWb, vWc, vX1, vB1)] + rot0()
        for x in substep(ch, A_, reads(ch, 1, B_), dma_second(sDB), late0): a(x)
        a(f"s_waitcnt vmcnt(13) lgkmcnt(0)")
        a("s_barrier")
        if LSTAMP: a("s_memtime s[38:39]")
        late1 = [(19, [f"v_add_u32 v{r}, s{sD}, v{r}"]) for r in (vX0, vB0)]
        late1 += [(20, [f"s_mov_b32 s{sDB}, s{sF}"])]
        late1 += [(32, [f"s_bitcmp1_b32 s{sBlk}, s{sStage}", f"s_cbranch_scc1 L_blk{ch}"])]
        body = substep(ch, B_, reads(ch, 0, A_), dma_first(sF), late1)
        for x in body:
            a(x)
            if x.startswith("s_cbranch_scc1 L_blk"): a.label(f"L_blkr{ch}")
        a(f"s_add_u32 s{sStage}, s{sStage}, 1")
        a(f"s_cmp_lt_u32 s{sStage}, 7")
        a("s_waitcnt lgkmcnt(0)")
        if LSTAMP:
            a(f"v_cmp_eq_u32 vcc, s{sStage}, v{vL}"); a(f"v_mov_b32 v79, s38"); a("s_nop 0"); a(f"v_cndmask_b32 v80, v80, v79, vcc")
        a(f"s_cbranch_scc1 L_loop{ch}")
        stp(a, "loop")
        lt = [(19, [f"v_add_u32 v{r}, {BUF}, v{r}"]) for r in (vWa, vWb, vWc, vX1, vB1)]
        lt += [(24, [x]) for x in srd(None, SW2, P_WS, W2_SIZE, add=WS_W2)[:0]]
        for x in substep(ch, A_, reads(ch, 1, B_), dma_second(sDB), lt): a(x)
        a(f"s_waitcnt vmcnt(13) lgkmcnt(0)")
        a("s_barrier")
        spin_init(a)
        a.label(f"L_pf{ch}")
        a(f"v_cmp_ne_u32 vcc, s{sNonce}, v{vPF}")
        a(f"v_cmp_ne_u32 s[{sEX}:{sEX+1}], s{sNonce}, v{vPF+1}")
        a(f"s_or_b64 vcc, vcc, s[{sEX}:{sEX+1}]")
        a(f"v_cmp_ne_u32 s[{sEX}:{sEX+1}], s{sNonce}, v{vPF+2}")
        a(f"s_or_b64 vcc, vcc, s[{sEX}:{sEX+1}]")
        a(f"v_cmp_ne_u32 s[{sEX}:{sEX+1}], s{sNonce}, v{vPF+3}")
        a(f"s_or_b64 vcc, vcc, s[{sEX}:{sEX+1}]")
        a(f"s_cmp_eq_u64 vcc, 0")
        a(f"s_cbranch_scc1 L_pfok{ch}")
        spin_guard(a, f"L_pfok{ch}")
        a(f"v_lshlrev_b32 v{t0}, 4, v{vL}")
        a(f"v_add_u32 v{t0}, {WS_PF}, v{t0}")
        a(f"global_load_dwordx4 v[{vPF}:{vPF+3}], v{t0}, s[{P_WS}:{P_WS+1}]{SC}")
        a("s_waitcnt vmcnt(0)")
        a(f"s_branch L_pf{ch}")
        a.label(f"L_pfok{ch}")
        srd(a, SW2, P_WS, W2_SIZE, add=WS_W2)
        a(f"s_mul_i32 s{sKW}, s{sCB}, 88")
        a(f"s_mul_i32 s{sT0}, s{sW}, 12")
        a(f"s_add_u32 s{sKW}, s{sKW}, s{sT0}")
        a(f"s_add_u32 s{sKW}, s{sKW}, 40")
        a(f"s_mul_i32 s{sKW}, s{sKW}, 5120")
        a(f"s_add_u32 s{sKW4}, s{sKW}, 4096")
        allw = []
        for g in range(7): allw += wstep(g)
        def take(n):
            out = []; c = 0
            while allw and (c < n or "buffer_load" not in allw[0]):
                x = allw.pop(0); out.append(x)
                if "buffer_load" in x: c += 1
            return out
        lt = [(19, [f"v_add_u32 v{r}, {(-2*BUF) & 0xffffffff:#x}, v{r}"]) for r in (vX0, vB0)]
        gq = gate_seq()
        for x in substep(ch, B_, reads(ch, 0, A_), take(8), lt, gq): a(x)
        a("s_waitcnt lgkmcnt(0)")
        lt = [(19, [f"v_add_u32 v{r}, {(-2*BUF) & 0xffffffff:#x}, v{r}"]) for r in (vWa, vWb, vWc, vX1, vB1)]
        for x in substep(ch, A_, reads(ch, 1, B_), take(8), lt, gq): a(x)
        a(f"s_waitcnt vmcnt(16) lgkmcnt(0)")
        a("s_barrier")
        for x in substep(ch, B_, reads(ch, 0, A_), take(8), [], gq): a(x)
        a("s_waitcnt lgkmcnt(0)")
        for x in substep(ch, A_, reads(ch, 1, B_), take(8), [], gq): a(x)
        a("s_waitcnt lgkmcnt(0)")
        for x in substep(ch, B_, [], take(3), [], gq): a(x)
        assert not allw and not gq, (len(allw), len(gq))
        a("s_mov_b64 exec, 3")
        a(f"global_store_dword v{vGst}, v{vGv}, s[{P_WS}:{P_WS+1}]{SC}")
        a("s_mov_b64 exec, -1")
        a(f"s_branch L_epi")
        a.label(f"L_blk{ch}")
        a(f"s_cmp_eq_u32 s{sStage}, 1")
        a(f"s_cbranch_scc1 L_b0_{ch}")
        a(f"v_lshlrev_b32 v{t0}, 4, v{vL}")
        a(f"v_add_u32 v{t0}, {WS_PF}, v{t0}")
        a(f"global_load_dwordx4 v[{vPF}:{vPF+3}], v{t0}, s[{P_WS}:{P_WS+1}]{SC}")
        a(f"s_lshl_b32 s{sT1}, s{sRB}, 7")
        a(f"s_lshl_b32 s{sT2}, s{sRH}, 6")
        a(f"s_add_u32 s{sT1}, s{sT1}, s{sT2}")
        a(f"s_lshl_b32 s{sT2}, s{sCG}, 2")
        a(f"s_add_u32 s{sT1}, s{sT1}, s{sT2}")
        a(f"s_lshl_b32 s{sT2}, s{sCH}, 1")
        a(f"s_add_u32 s94, s{sT1}, s{sT2}")
        a(f"s_mul_i32 s{sT1}, s94, 1280")
        a(f"v_lshlrev_b32 v{t0}, 2, v{vL}")
        a(f"v_add_u32 v{t1}, s{sT1}, v{vWp}")
        a(f"v_add_u32 v{t2}, s{sT1}, v{t0}")
        a(f"global_load_dwordx4 v[{GLD}:{GLD+3}], v{vWp}, s[{P_GW}:{P_GW+1}]")
        a(f"global_load_dword v{GLD+4}, v{t0}, s[{P_GW}:{P_GW+1}] offset:1024")
        a(f"global_load_dwordx4 v[{GLD+6}:{GLD+9}], v{t1}, s[{P_X}:{P_X+1}]")
        a(f"global_load_dword v{GLD+5}, v{t2}, s[{P_X}:{P_X+1}] offset:1024")
        a(f"global_load_dwordx4 v[{GLD+10}:{GLD+13}], v{t1}, s[{P_X}:{P_X+1}] offset:1280")
        a(f"global_load_dword v{GLD+14}, v{t2}, s[{P_X}:{P_X+1}] offset:2304")
        a(f"s_branch L_blkr{ch}")
        a.label(f"L_b0_{ch}")
        spin_init(a)
        a.label(f"L_np{ch}")
        a(f"v_readfirstlane_b32 s{sNonce}, v{vNon}")
        a(f"s_cmp_lg_u32 s{sNonce}, 0")
        a(f"s_cbranch_scc1 L_nok{ch}")
        spin_guard(a, f"L_nok{ch}")
        a(f"v_mov_b32 v{t0}, 0")
        a(f"global_load_dword v{vNon}, v{t0}, s[{P_DBG}:{P_DBG+1}]{SC}")
        a("s_waitcnt vmcnt(0)")
        a(f"s_branch L_np{ch}")
        a.label(f"L_nok{ch}")
        a(f"s_cmp_lg_u32 s{sW}, 0")
        a(f"s_cbranch_scc1 L_blkr{ch}")
        a(f"s_lshl_b32 s{sT1}, s2, 2")
        a(f"s_add_u32 s{sT1}, s{sT1}, {WS_PF}")
        a(f"v_mov_b32 v{t0}, s{sT1}")
        a(f"v_mov_b32 v{t1}, s{sNonce}")
        a(f"s_mov_b64 exec, 1")
        a(f"global_store_dword v{t0}, v{t1}, s[{P_WS}:{P_WS+1}]{SC}")
        a(f"s_mov_b64 exec, -1")
        a(f"s_branch L_blkr{ch}")

    a.label("L_epi")
    stp(a, "tail")
    if LSTAMP:
        a(f"s_lshl_b32 s{sT0}, s2, 2")
        a(f"s_add_u32 s{sT0}, s{sT0}, s{sW}")
        a(f"s_lshl_b32 s{sT0}, s{sT0}, 8")
        a(f"s_add_u32 s{sT0}, s{sT0}, {WS_STAMP + 0x40000}")
        a(f"v_lshl_add_u32 v79, v{vL}, 2, s{sT0}")
        a(f"global_store_dword v79, v80, s[{P_WS}:{P_WS+1}]")
    XCH = BUF
    vHo, vHo2 = 81, 82
    a(f"s_lshl_b32 s{sT0}, s{sRB}, 1")
    a(f"s_add_u32 s{sT0}, s{sT0}, s{sRH}")
    a(f"s_mul_i32 s{sT0}, s{sT0}, {4*88}")
    a(f"s_mul_i32 s{sT1}, s{sCG}, 3")
    a(f"s_add_u32 s{sT0}, s{sT0}, s{sT1}")
    a(f"s_add_u32 s{sT0}, s{sT0}, 40")
    a(f"s_lshl_b32 s{sT1}, s{sCH}, 1")
    a(f"s_add_u32 s{sT1}, s{sT1}, s{sT0}")
    a(f"s_lshl_b32 s{sT1}, s{sT1}, 10")
    a(f"s_add_u32 s{sT0}, s{sT0}, 1")
    a(f"s_mul_i32 s{sT3}, s{sCH}, {2*88}")
    a(f"s_add_u32 s{sT0}, s{sT0}, s{sT3}")
    a(f"s_lshl_b32 s{sT0}, s{sT0}, 10")
    a(f"v_add_u32 v{vHo}, s{sT1}, v{vWp}")
    a(f"v_add_u32 v{vHo2}, s{sT0}, v{vWp}")
    for i in range(4):
        G0, U0, G1, U1 = [acc(n, i) for n in range(4)]
        for (G, Uu) in ((G0, U0), (G1, U1)):
            a(f"v_pk_mul_f32 v[{G}:{G+1}], v[{G}:{G+1}], v[{Uu}:{Uu+1}]")
            a(f"v_pk_mul_f32 v[{G+2}:{G+3}], v[{G+2}:{G+3}], v[{Uu+2}:{Uu+3}]")
        a(f"v_cvt_pk_bf16_f32 v{U0}, v{G0}, v{G0+1}")
        a(f"v_cvt_pk_bf16_f32 v{U0+1}, v{G0+2}, v{G0+3}")
        a(f"v_cvt_pk_bf16_f32 v{U0+2}, v{G1}, v{G1+1}")
        a(f"v_cvt_pk_bf16_f32 v{U0+3}, v{G1+2}, v{G1+3}")
        a(f"v_add_u32 v{G0}, {i*88*1024}, v{vHo}")
        a(f"global_store_dwordx4 v{G0}, v[{U0}:{U0+3}], s[{P_WS}:{P_WS+1}]{SC}")
    for i in range(4):
        G2, U2 = acc(4, i), acc(5, i)
        a(f"v_pk_mul_f32 v[{G2}:{G2+1}], v[{G2}:{G2+1}], v[{U2}:{U2+1}]")
        a(f"v_pk_mul_f32 v[{G2+2}:{G2+3}], v[{G2+2}:{G2+3}], v[{U2+2}:{U2+3}]")
    for i in range(4):
        G2, U2 = acc(4, i), acc(5, i)
        a(f"v_cvt_pk_bf16_f32 v{U2}, v{G2}, v{G2+1}")
        a(f"v_cvt_pk_bf16_f32 v{U2+1}, v{G2+2}, v{G2+3}")
    a(f"s_lshl_b32 s{sT1}, s{sW}, 10")
    a(f"v_lshlrev_b32 v{t1}, 3, v{vL}")
    a(f"v_add_u32 v{t2}, s{sT1}, v{t1}")
    a(f"s_cmp_eq_u32 s{sCH}, 1")
    a(f"s_cbranch_scc1 L_xw1")
    a(f"ds_write_b64 v{t2}, v[{acc(5,2)}:{acc(5,2)+1}] offset:{XCH}")
    a(f"ds_write_b64 v{t2}, v[{acc(5,3)}:{acc(5,3)+1}] offset:{XCH+512}")
    a(f"s_branch L_xw2")
    a.label("L_xw1")
    a(f"ds_write_b64 v{t2}, v[{acc(5,0)}:{acc(5,0)+1}] offset:{XCH}")
    a(f"ds_write_b64 v{t2}, v[{acc(5,1)}:{acc(5,1)+1}] offset:{XCH+512}")
    a.label("L_xw2")
    stp(a, "glu1")
    U = [SA, SBt, S4]; NS = [16, 16, 8]
    eA = [56, 57, 58]; eB = [59, 60, 61]
    cur = [U[T] for T in range(3)]
    for k in range(1, 16):
        Ts = [T for T in range(3) if k < NS[T]]
        dst = eA if (k & 1) else eB
        for T in Ts: a(f"v_fma_f32 v{dst[T]}, v{vLr[T]}, v{cur[T]}, v{U[T]+k}")
        for T in Ts:
            a(f"v_fmac_f32_dpp v{dst[T]}, v{cur[T]}, v{vLi[T]} {DPPSW}")
            cur[T] = dst[T]
    ew = [62, 63, 64]; ex = [65, 66, 67]
    a(f"s_mul_i32 s{sT0}, s{sW}, 320")
    a(f"s_add_u32 s{sT0}, s{sT0}, {MISC}")
    for T in range(3): a(f"v_mul_f32 v{ew[T]}, v{vWSr[T]}, v{cur[T]}")
    for T in range(3): a(f"v_fmac_f32_dpp v{ew[T]}, v{cur[T]}, v{vWSi[T]} {DPPSW}")
    a(f"v_add_u32 v{t0}, s{sT0}, v{vC}")
    a(f"ds_write_b32 v{vAe}, v{cur[0]} offset:{EF0}")
    a(f"ds_write_b32 v{vAe}, v{cur[1]} offset:{EF0+64}")
    a(f"ds_write_b32 v{vAe4}, v{cur[2]} offset:{E40}")
    def qreduce(vals, tmps):
        for v, t in zip(vals, tmps): a(f"v_mov_b32 v{t}, v{v}")
        a("s_nop 0")
        for v, t in zip(vals, tmps): a(f"v_permlane16_swap_b32 v{v}, v{t}")
        a("s_nop 0")
        for v, t in zip(vals, tmps): a(f"v_add_f32 v{v}, v{v}, v{t}")
        for v, t in zip(vals, tmps): a(f"v_mov_b32 v{t}, v{v}")
        a("s_nop 0")
        for v, t in zip(vals, tmps): a(f"v_permlane32_swap_b32 v{v}, v{t}")
        a("s_nop 0")
        for v, t in zip(vals, tmps): a(f"v_add_f32 v{v}, v{v}, v{t}")
    qreduce(ew, ex)
    a(f"ds_write_b32 v{vRw}, v{ew[0]} offset:{SWB}")
    a(f"ds_write_b32 v{vRw}, v{ew[1]} offset:{SWB+64}")
    a(f"ds_write_b32 v{t0}, v{ew[2]} offset:{SWB+256}")
    a("s_waitcnt lgkmcnt(0)")
    a("s_barrier")
    stp(a, "passA")
    a(f"s_xor_b32 s{sT1}, s{sW}, 1")
    a(f"s_lshl_b32 s{sT1}, s{sT1}, 10")
    a(f"v_lshlrev_b32 v{t1}, 3, v{vL}")
    a(f"v_add_u32 v{t2}, s{sT1}, v{t1}")
    a(f"v_add_u32 v{t4}, {88*1024}, v{vHo2}")
    a(f"s_cmp_eq_u32 s{sCH}, 1")
    a(f"s_cbranch_scc1 L_xr1")
    for k in range(2):
        a(f"ds_read_b64 v[{acc(5,k)+2}:{acc(5,k)+3}], v{t2} offset:{XCH+512*k}")
    a("s_waitcnt lgkmcnt(0)")
    a(f"global_store_dwordx4 v{vHo2}, v[{acc(5,0)}:{acc(5,0)+3}], s[{P_WS}:{P_WS+1}]{SC}")
    a(f"global_store_dwordx4 v{t4}, v[{acc(5,1)}:{acc(5,1)+3}], s[{P_WS}:{P_WS+1}]{SC}")
    a(f"s_branch L_xr2")
    a.label("L_xr1")
    for k in range(2):
        a(f"ds_read_b64 v[{acc(4,2+k)}:{acc(4,2+k)+1}], v{t2} offset:{XCH+512*k}")
        a(f"v_mov_b32 v{acc(4,2+k)+2}, v{acc(5,2+k)}")
        a(f"v_mov_b32 v{acc(4,2+k)+3}, v{acc(5,2+k)+1}")
    a("s_waitcnt lgkmcnt(0)")
    a(f"global_store_dwordx4 v{vHo2}, v[{acc(4,2)}:{acc(4,2)+3}], s[{P_WS}:{P_WS+1}]{SC}")
    a(f"global_store_dwordx4 v{t4}, v[{acc(4,3)}:{acc(4,3)+3}], s[{P_WS}:{P_WS+1}]{SC}")
    a.label("L_xr2")
    a(f"s_cmp_lg_u32 s{sW}, 0")
    a(f"s_cbranch_scc1 L_nopub")
    PB = 68
    a(f"v_lshlrev_b32 v{t0}, 3, v{vL}")
    a(f"v_add_u32 v{t0}, {MISC}, v{t0}")
    for w in range(4): a(f"ds_read_b64 v[{PB+2*w}:{PB+2*w+1}], v{t0} offset:{SWB+320*w}")
    a(f"s_lshl_b32 s{sT0}, s{sCG}, 4")
    a(f"s_add_u32 s{sT0}, s{sT0}, s{sRB}")
    a(f"s_mul_i32 s{sT0}, s{sT0}, 640")
    a(f"s_add_u32 s{sT0}, s{sT0}, {WS_S}")
    a(f"v_lshlrev_b32 v{t0}, 4, v{vL}")
    a(f"v_add_u32 v{t0}, s{sT0}, v{t0}")
    a(f"v_mov_b32 v{PB+9}, s{sNonce}")
    a(f"v_mov_b32 v{PB+11}, s{sNonce}")
    a(f"v_cmp_gt_u32 vcc, 40, v{vL}")
    a("s_waitcnt lgkmcnt(0)")
    a(f"v_pk_add_f32 v[{PB}:{PB+1}], v[{PB}:{PB+1}], v[{PB+2}:{PB+3}]")
    a(f"v_pk_add_f32 v[{PB+4}:{PB+5}], v[{PB+4}:{PB+5}], v[{PB+6}:{PB+7}]")
    a(f"v_pk_add_f32 v[{PB}:{PB+1}], v[{PB}:{PB+1}], v[{PB+4}:{PB+5}]")
    a(f"s_and_saveexec_b64 s[{sEX}:{sEX+1}], vcc")
    a(f"v_mov_b32 v{PB+8}, v{PB}")
    a(f"v_mov_b32 v{PB+10}, v{PB+1}")
    a(f"global_store_dwordx4 v{t0}, v[{PB+8}:{PB+11}], s[{P_WS}:{P_WS+1}]{SC}")
    a(f"s_mov_b64 exec, s[{sEX}:{sEX+1}]")
    a.label("L_nopub")
    stp(a, "pub")
    pre = []
    for g in range(7, 12):
        ws_ = wstep(g)
        pre += [[x] for x in ws_[:4]] + [[ws_[4], ws_[5], ws_[6]]]
    X = ACC
    vMr = [X, X+1, X+2]; vMi = [X+3, X+4, X+5]
    vC2r = [X+6, X+7, X+8]; vC2i = [X+9, X+10, X+11]
    vHr = [X+12, X+13, X+14]; vHi = [X+15, X+16, X+17]
    vW0r = [X+18, X+19, X+20]; vW0i = [X+21, X+22, X+23]
    vW1r = [X+24, X+25]; vW1i = [X+26, X+27]
    vLi2 = [X+28, X+29, X+30]
    nOff, nW0, nW1, nOff4, nW4 = X+32, X+33, X+34, X+35, X+36
    vm0, vm1, vm4 = X+37, X+38, X+39
    W = []
    W += [f"v_cvt_f32_u32 v{nOff}, v{vSig}", f"v_mul_f32 v{nOff}, 0x41800000, v{nOff}", f"s_lshl_b32 s{sT0}, s{sCH}, 3",
          f"v_cvt_f32_u32 v{nOff4}, s{sT0}", f"v_add_f32 v{nOff4}, v{nOff4}, v{nOff}",
          f"s_sub_u32 s{sT0}, s{sRB}, 1", f"v_sub_u32 v{t0}, s{sT0}, v{vSig}", f"v_subrev_u32 v{t1}, 8, v{t0}",
          f"v_sub_u32 v{t2}, v{t0}, v{vSig}", f"v_subrev_u32 v{t2}, s{sCH}, v{t2}"]
    for (n_, mreg, src) in ((nW0, vm0, t0), (nW1, vm1, t1), (nW4, vm4, t2)):
        W += [[f"v_cmp_le_i32 vcc, 0, v{src}", f"v_max_i32 v{n_}, 0, v{src}", f"v_cvt_f32_i32 v{n_}, v{n_}",
               f"v_cndmask_b32 v{mreg}, 0, 1.0, vcc"], f"v_mul_f32 v{n_}, 0x43000000, v{n_}"]
    W += [f"v_mov_b32 v{X+40}, 0x41800000", f"v_mov_b32 v{X+41}, 0x41000000"]
    streams = []
    for T in range(3):
        tm = X+44+6*T
        pr, pi, cr, ci = tm+2, tm+3, tm+4, tm+5
        s_ = cpow_s(vMr[T], vMi[T], vA[T], vBx[T], f"v{X+40 if T < 2 else X+41}", tm, vSgn)
        s_ += [f"v_mul_f32 v{pi}, v{vSgn}, v{vLi[T]}", f"v_add_f32 v{pr}, -1.0, v{vLr[T]}",
               f"v_mul_f32 v{tm}, v{vLRE[T]}, v{vLRE[T]}", f"v_fmac_f32 v{tm}, v{vLIM[T]}, v{vLIM[T]}", f"v_rcp_f32 v{tm}, v{tm}",
               f"v_mul_f32 v{cr}, v{pr}, v{vLRE[T]}", f"v_fmac_f32 v{cr}, v{pi}, v{vLIM[T]}",
               f"v_mul_f32 v{ci}, v{pi}, v{vLRE[T]}", f"v_fma_f32 v{ci}, -v{pr}, v{vLIM[T]}, v{ci}",
               f"v_add_f32 v{tm}, v{tm}, v{tm}", f"v_mul_f32 v{cr}, v{tm}, v{cr}", f"v_mul_f32 v{ci}, v{tm}, v{ci}",
               f"v_mul_f32_e64 v{vC2r[T]}, -v{vSgn}, v{cr}", f"v_sub_f32 v{vC2i[T]}, 0, v{ci}", f"v_sub_f32 v{vLi2[T]}, 0, v{vLi[T]}"]
        s_ += cpow_s(pr, pi, vA[T], vBx[T], f"v{nOff if T < 2 else nOff4}", tm, None)
        s_ += [f"v_mul_f32 v{vHr[T]}, v{cr}, v{pr}", f"v_fma_f32 v{vHr[T]}, -v{ci}, v{pi}, v{vHr[T]}",
               f"v_mul_f32 v{vHi[T]}, v{cr}, v{pi}", f"v_fmac_f32 v{vHi[T]}, v{ci}, v{pr}",
               f"v_mul_f32_e64 v{vHr[T]}, -v{vSgn}, v{vHr[T]}", f"v_sub_f32 v{vHi[T]}, 0, v{vHi[T]}"]
        s_ += cpow_s(vW0r[T], vW0i[T], vA[T], vBx[T], f"v{nW0 if T < 2 else nW4}", tm, vSgn)
        mk = vm0 if T < 2 else vm4
        s_ += [f"v_mul_f32 v{vW0r[T]}, v{mk}, v{vW0r[T]}", f"v_mul_f32 v{vW0i[T]}, v{mk}, v{vW0i[T]}"]
        if T < 2:
            s_ += cpow_s(vW1r[T], vW1i[T], vA[T], vBx[T], f"v{nW1}", tm, vSgn)
            s_ += [f"v_mul_f32 v{vW1r[T]}, v{vm1}, v{vW1r[T]}", f"v_mul_f32 v{vW1i[T]}, v{vm1}, v{vW1i[T]}"]
        streams.append(s_)
    W += rr(*streams)
    for x in W:
        if isinstance(x, str): a(x)
        else:
            for y in x: a(y)
    stp(a, "consts2")
    a("s_waitcnt vmcnt(0)")
    vFo = 18
    a(f"s_lshl_b32 s{sT0}, s{sRB}, 1")
    a(f"s_add_u32 s{sT0}, s{sT0}, s{sRH}")
    a(f"s_lshl_b32 s{sT0}, s{sT0}, 4")
    a(f"s_add_u32 s{sT0}, s{sT0}, s{sCG}")
    a(f"s_lshl_b32 s{sT0}, s{sT0}, 1")
    a(f"s_add_u32 s{sT0}, s{sT0}, s{sCH}")
    a(f"s_lshl_b32 s{sT0}, s{sT0}, 2")
    a(f"s_add_u32 s{sT0}, s{sT0}, {WS_FB}")
    a(f"v_mov_b32 v{vFo}, s{sT0}")
    a(f"v_mov_b32 v{t0}, s{sNonce}")
    a(f"s_mov_b64 exec, 1")
    a(f"global_store_dword v{vFo}, v{t0}, s[{P_WS}:{P_WS+1}]{SC}")
    a(f"s_mov_b64 exec, -1")
    stp(a, "flagB")


    PE = X+64
    W = [f"v_subrev_u32 v{t0}, 256, v{vAe}"]
    for T in range(2):
        for k in range(7): W.append(f"ds_read_b32 v{PE+7*T+k}, v{t0} offset:{EF0 + 64*T - 256*k}")
    W.append(f"v_subrev_u32 v{t1}, 64, v{vAe4}")
    for k in range(15): W.append(f"ds_read_b32 v{PE+14+k}, v{t1} offset:{E40 - 64*k}")
    tu = [56, 57, 58]
    for k in range(16):
        Ts = [T for T in range(3) if k < NS[T]]
        for T in Ts: W.append(f"v_mul_f32 v{tu[T]}, v{vC2r[T]}, v{U[T]+k}")
        for T in Ts: W.append(f"v_fmac_f32_dpp v{tu[T]}, v{U[T]+k}, v{vC2i[T]} {DPPSW}")
        for T in Ts: W.append(f"v_mov_b32 v{U[T]+k}, v{tu[T]}")
    W.append("s_waitcnt lgkmcnt(0)")
    Pc = [PE+6, PE+13, PE+14+14]
    Pt = [[59, 60], [61, 62], [63, 64]]
    nch = [7, 7, 15]; base = [PE, PE+7, PE+14]
    for stepk in range(1, 15):
        Ts = [T for T in range(3) if stepk < nch[T]]
        dst = {T: Pt[T][stepk & 1] for T in Ts}
        grp = []
        for T in Ts: grp.append(f"v_fma_f32 v{dst[T]}, v{vMr[T]}, v{Pc[T]}, v{base[T] + nch[T]-1-stepk}")
        if len(Ts) == 1: grp.append("s_nop 0")
        for T in Ts:
            grp.append(f"v_fmac_f32_dpp v{dst[T]}, v{Pc[T]}, v{vMi[T]} {DPPSW}")
            Pc[T] = dst[T]
        if len(Ts) == 1: grp.append("s_nop 0")
        W += grp
    W.append("s_nop 1")
    for T in range(3): W.append(f"v_mul_f32 v{Ps[T]}, v{vC2r[T]}, v{Pc[T]}")
    for T in range(3): W.append(f"v_fmac_f32_dpp v{Ps[T]}, v{Pc[T]}, v{vC2i[T]} {DPPSW}")
    W += [f"v_mov_b32 v7, v{vAs}", f"v_mov_b32 v8, v{vCm}",
          f"v_and_b32 v{t0}, 15, v{vL}", f"v_lshrrev_b32 v{t1}, 2, v{t0}", f"v_lshlrev_b32 v{t1}, 1, v{t1}", f"v_add_u32 v{t1}, s{sCH}, v{t1}",
          f"v_mul_u32_u24 v{t1}, {HTS}, v{t1}", f"v_and_b32 v{t2}, 3, v{t0}", f"v_lshlrev_b32 v{t2}, 2, v{t2}", f"v_lshrrev_b32 v{t3}, 4, v{vL}",
          f"v_add_u32 v{t2}, v{t2}, v{t3}", f"s_lshl_b32 s{sT0}, s{sRH}, 4", f"v_add_u32 v{t2}, s{sT0}, v{t2}",
          f"v_lshl_add_u32 v{RA}, v{t2}, 3, v{t1}",
          f"s_lshl_b32 s{sT0}, s{sRB}, 1", f"s_add_u32 s{sT0}, s{sT0}, s{sRH}", f"s_lshl_b32 s{sT0}, s{sT0}, 2",
          f"v_add_u32 v{t3}, s{sT0}, v{t3}", f"v_mul_u32_u24 v{t3}, 88, v{t3}", f"s_mul_i32 s{sT0}, s{sCH}, 20",
          f"v_add_u32 v{t3}, s{sT0}, v{t3}", f"v_lshlrev_b32 v{t3}, 10, v{t3}", f"v_lshl_add_u32 v{GA}, v{t0}, 4, v{t3}"]
    NPF = 16
    weave(a, W, pre[:NPF], start=0)
    stp(a, "prefix")
    Hp = [65, 66, 67]; hx = [56, 57, 58]; bad = 68
    vFl = 24
    a(f"s_lshl_b32 s{sT0}, s{sRB2}, 7")
    a(f"s_lshl_b32 s{sT1}, s{sW}, 5")
    a(f"s_add_u32 s{sT0}, s{sT0}, s{sT1}")
    a(f"v_and_b32 v{vFl}, 7, v{vL}")
    a(f"v_lshlrev_b32 v{vFl}, 2, v{vFl}")
    a(f"v_add_u32 v{vFl}, s{sT0}, v{vFl}")
    a(f"v_add_u32 v{vFl}, {WS_FB}, v{vFl}")
    srd(a, SH, P_WS, WS_G)
    srd(a, SM, P_WS, WS_S + 256*640)
    R = X+64
    FBV = X+74
    def poll_loads():
        a(f"buffer_load_dwordx2 v[{R}:{R+1}], v{pa[0]}, s[{SM}:{SM+3}], 0 offen{SC}")
        a(f"buffer_load_dwordx2 v[{R+2}:{R+3}], v{pa[0]}, s[{SM}:{SM+3}], 0 offen offset:128{SC}")
        a(f"buffer_load_dwordx2 v[{R+4}:{R+5}], v{pa[1]}, s[{SM}:{SM+3}], 0 offen{SC}")
        a(f"buffer_load_dwordx2 v[{R+6}:{R+7}], v{pa[1]}, s[{SM}:{SM+3}], 0 offen offset:128{SC}")
        a(f"buffer_load_dwordx2 v[{R+8}:{R+9}], v{pa[2]}, s[{SM}:{SM+3}], 0 offen{SC}")
        a(f"global_load_dword v{FBV}, v{vFl}, s[{P_WS}:{P_WS+1}]{SC}")
    poll_loads()
    NW0 = 5
    for it in pre[NPF:]:
        for x in it: a(x)
    a(f"s_waitcnt vmcnt({len(pre)-NPF})")
    spin_init(a)
    a(f"s_branch L_pollc")
    a.label("L_poll")
    spin_guard(a, "L_pollx")
    poll_loads()
    a("s_waitcnt vmcnt(0)")
    a.label("L_pollc")
    a(f"v_mov_b32 v{bad}, 0")
    for (ri, mreg) in ((R+1, vm0), (R+3, vm0), (R+5, vm1), (R+7, vm1), (R+9, vm4)):
        a(f"v_cmp_ne_u32 vcc, s{sNonce}, v{ri}")
        a("s_nop 1")
        a(f"v_cndmask_b32 v{t0}, 0, v{mreg}, vcc")
        a(f"v_or_b32 v{bad}, v{bad}, v{t0}")
    a(f"v_cmp_ne_u32 vcc, 0, v{bad}")
    a("s_nop 4")
    a("s_cbranch_vccnz L_poll")
    a.label("L_pollx")
    for (T, ri) in ((0, R), (1, R+2), (2, R+8)): a(f"v_mul_f32 v{Hp[T]}, v{vW0r[T]}, v{ri}")
    for (T, ri) in ((0, R), (1, R+2), (2, R+8)): a(f"v_fmac_f32_dpp v{Hp[T]}, v{ri}, v{vW0i[T]} {DPPSW}")
    for (T, ri) in ((0, R+4), (1, R+6)): a(f"v_fmac_f32 v{Hp[T]}, v{vW1r[T]}, v{ri}")
    for (T, ri) in ((0, R+4), (1, R+6)): a(f"v_fmac_f32_dpp v{Hp[T]}, v{ri}, v{vW1i[T]} {DPPSW}")
    qreduce(Hp, hx)
    a(f"s_mul_i32 s{sT0}, s{sW}, 320")
    a(f"s_add_u32 s{sT0}, s{sT0}, {MISC}")
    a(f"v_add_u32 v{t0}, s{sT0}, v{vC}")
    a(f"ds_write_b32 v{vRw}, v{Hp[0]} offset:{RWB}")
    a(f"ds_write_b32 v{vRw}, v{Hp[1]} offset:{RWB+64}")
    a(f"ds_write_b32 v{t0}, v{Hp[2]} offset:{RWB+256}")
    stp(a, "poll")
    spin_init(a)
    a.label("L_fbpoll")
    a(f"v_cmp_ne_u32 vcc, s{sNonce}, v{FBV}")
    a("s_nop 4")
    a("s_cbranch_vccz L_fbx")
    spin_guard(a, "L_fbx")
    a(f"global_load_dword v{FBV}, v{vFl}, s[{P_WS}:{P_WS+1}]{SC}")
    a("s_waitcnt vmcnt(0)")
    a("s_branch L_fbpoll")
    a.label("L_fbx")
    stp(a, "flagB seen")
    slots = [52, 68, 84, "a88", 100]
    def hreg(slot, i):
        sl = slots[slot]
        if isinstance(sl, str): return f"a[{88+4*i}:{91+4*i}]"
        return f"v[{sl+4*i}:{sl+4*i+3}]"
    def hloads(g):
        return [f"buffer_load_dwordx4 {hreg(g % 5, i)}, v{vH+i}, s[{SH}:{SH+3}], s{sKH} offen{SCL}" for i in range(4)]
    a(f"s_mul_i32 s{sKH}, s{sW}, 12")
    a(f"s_add_u32 s{sKH}, s{sKH}, 40")
    a(f"s_lshl_b32 s{sKH}, s{sKH}, 10")
    a("s_waitcnt lgkmcnt(0)")
    early = []
    for g in range(5):
        hl = hloads(g)
        early += [[x] for x in hl[:3]] + [[hl[3], f"s_add_u32 s{sKH}, s{sKH}, 1024"]]
    sOff = [73, 74, 75, 76, 77]
    for it in range(5):
        a(f"s_mul_i32 s{sT0}, s{sCG}, 5")
        a(f"s_add_u32 s{sT0}, s{sT0}, {it}")
        a(f"s_lshr_b32 s{sT1}, s{sT0}, 2")
        a(f"s_lshl_b32 s{sT1}, s{sT1}, 10")
        a(f"s_and_b32 s{sT0}, s{sT0}, 3")
        a(f"s_lshl_b32 s{sT0}, s{sT0}, 8")
        a(f"s_add_u32 s{sOff[it]}, s{sT0}, s{sT1}")
    for it in early[:4]:
        for x in it: a(x)
    early = early[4:]
    a("s_barrier")
    Hw = [X+48, X+49, X+50]
    a(f"s_mul_i32 s{sT0}, s{sCH}, 320")
    a(f"s_add_u32 s{sT0}, s{sT0}, {MISC}")
    a(f"v_add_u32 v{t0}, s{sT0}, v{vAs2}")
    hr = [X+40, X+41, X+42, X+43, X+44, X+45, X+46, X+47]
    a(f"ds_read_b32 v{hr[0]}, v{t0} offset:{RWB}")
    a(f"ds_read_b32 v{hr[1]}, v{t0} offset:{RWB+640}")
    a(f"ds_read_b32 v{hr[2]}, v{t0} offset:{RWB+64}")
    a(f"ds_read_b32 v{hr[3]}, v{t0} offset:{RWB+704}")
    for w in range(4): a(f"ds_read_b32 v{hr[4+w]}, v{vCm2} offset:{RWB+256+320*w}")
    a("s_waitcnt lgkmcnt(0)")
    W = [f"v_add_f32 v{Hw[0]}, v{hr[0]}, v{hr[1]}", f"v_add_f32 v{Hw[1]}, v{hr[2]}, v{hr[3]}", f"v_add_f32 v{hr[4]}, v{hr[4]}, v{hr[5]}",
         f"v_add_f32 v{hr[6]}, v{hr[6]}, v{hr[7]}", f"v_add_f32 v{Hw[2]}, v{hr[4]}, v{hr[6]}"]
    for T in range(3): W.append(f"v_fmac_f32 v{Ps[T]}, v{vHr[T]}, v{Hw[T]}")
    W.append("s_nop 0")
    for T in range(3): W.append(f"v_fmac_f32_dpp v{Ps[T]}, v{Hw[T]}, v{vHi[T]} {DPPSW}")
    cur = list(Ps)
    W.append("s_nop 0")
    for k in range(16):
        Ts = [T for T in range(3) if k < NS[T]]
        for T in Ts: W.append(f"v_fmac_f32 v{U[T]+k}, v{vLr[T]}, v{cur[T]}")
        for T in Ts:
            W.append(f"v_fmac_f32_dpp v{U[T]+k}, v{cur[T]}, v{vLi2[T]} {DPPSW}")
            cur[T] = U[T]+k
    for T in range(3):
        for k in range(NS[T]//2):
            W.append(f"v_cvt_pk_bf16_f32 v{X + 16*T + k}, v{U[T]+2*k}, v{U[T]+2*k+1}")
    W += [f"v_and_b32 v{t0}, 15, v{vL}", f"s_lshl_b32 s{sT0}, s{sCH}, 5", f"v_add_u32 v{t1}, s{sT0}, v{t0}",
          f"v_mul_u32_u24 v{t1}, {HTS}, v{t1}", f"v_lshl_add_u32 v{t1}, v{vSig}, 5, v{t1}",
          f"v_add_u32 v{t0}, 64, v{t0}", f"v_mul_u32_u24 v{t0}, {HTS}, v{t0}", f"v_lshl_add_u32 v{t0}, v{vSig}, 5, v{t0}",
          f"s_lshl_b32 s{sT0}, s{sCH}, 4", f"v_add_u32 v{t0}, s{sT0}, v{t0}"]
    weave(a, W, early, start=6)
    stp(a, "passB")
    a(f"ds_write_b128 v{t1}, v[{X}:{X+3}]")
    a(f"ds_write_b128 v{t1}, v[{X+4}:{X+7}] offset:16")
    a(f"ds_write_b128 v{t1}, v[{X+16}:{X+19}] offset:{16*HTS}")
    a(f"ds_write_b128 v{t1}, v[{X+20}:{X+23}] offset:{16*HTS+16}")
    a(f"ds_write_b128 v{t0}, v[{X+32}:{X+35}]")
    a("s_waitcnt lgkmcnt(0)")
    a("s_barrier")
    DT = X+64
    for it in range(5):
        a(f"ds_read_b64_tr_b16 v[{DT+4*it}:{DT+4*it+1}], v{RA} offset:{it*16*HTS}")
        a(f"ds_read_b64_tr_b16 v[{DT+4*it+2}:{DT+4*it+3}], v{RA} offset:{it*16*HTS+8*HTS}")
    for it in range(5):
        a(f"s_waitcnt lgkmcnt({2*(4-it)})")
        a(f"buffer_store_dwordx4 v[{DT+4*it}:{DT+4*it+3}], v{GA}, s[{SH}:{SH+3}], s{sOff[it]} offen{SC}")
    stp(a, "hA stored")
    accB = lambda j, i: 120 + (j*4+i)*4
    def accA(j, i):
        t = j*4+i
        return 200 + 4*t if t < 14 else 26 + 4*(t-14)
    def wreg(g, j): b = wbase(g, j); return f"a[{b}:{b+3}]"
    fifo = [("h", g) for g in range(5) for _ in range(4)] + [("st", 0)]*5
    def issue(x, tag):
        a(x); fifo.append(tag)
    def wait_for(pred):
        idx = [i for i, tg in enumerate(fifo) if pred(tg)]
        if not idx: return
        n = len(fifo) - 1 - max(idx)
        assert n <= 63, n
        a(f"s_waitcnt vmcnt({n})")
        del fifo[:max(idx)+1]
    sKS, sKS4 = 85, 86
    a(f"s_mul_i32 s{sKS}, s{sCB}, 88")
    a(f"s_mul_i32 s{sT0}, s{sW}, 5")
    a(f"s_add_u32 s{sKS}, s{sKS}, s{sT0}")
    a(f"s_mul_i32 s{sKS}, s{sKS}, 5120")
    a(f"s_add_u32 s{sKS4}, s{sKS}, 4096")
    wq = []
    for g in range(7+NW0, 12):
        st_ = wstep(g)
        for j in range(5): wq.append((("wg", g), 0, st_[j], st_[5:] if j == 4 else []))
    for sidx in range(10):
        for j in range(5):
            x = wload(sidx, j).replace(f"s{sKW} offen", f"s{sKS} offen").replace(f"s{sKW4} offen", f"s{sKS4} offen")
            inc = (20-4)*5120 if sidx == 4 else 5120
            wq.append((("w", sidx), sidx, x, [f"s_add_u32 s{sKS}, s{sKS}, {inc}", f"s_add_u32 s{sKS4}, s{sKS4}, {inc}"] if j == 4 else []))
    RATE = 3
    LA, OA = 2, 7
    vG = [12, 14, 16, 22]
    vLW = 25
    XR, GR, DR = 84, 94, 100
    RS = 336; RED = 64*RS
    fill = []
    for i in range(5):
        w1, w2, w3 = t0, t1, t3
        fill += [f"v_add_u32 v{w1}, {256*i}, v0", f"v_mul_u32_u24 v{w2}, 3277, v{w1}", f"v_lshrrev_b32 v{w2}, 16, v{w2}",
                 f"v_mul_u32_u24 v{w3}, 20, v{w2}", f"v_sub_u32 v{w3}, v{w1}, v{w3}", f"v_mul_u32_u24 v{LA+i}, {RS}, v{w2}",
                 f"v_lshl_add_u32 v{LA+i}, v{w3}, 4, v{LA+i}", f"s_lshl_b32 s{sT0}, s{sRB2}, 6", f"v_add_u32 v{w2}, s{sT0}, v{w2}",
                 f"v_mul_u32_u24 v{w2}, 640, v{w2}", f"s_mul_i32 s{sT1}, s{sCB}, 80", f"v_lshl_add_u32 v{w3}, v{w3}, 2, s{sT1}",
                 f"v_add_u32 v{w2}, v{w2}, v{w3}", f"v_lshlrev_b32 v{OA+i}, 2, v{w2}"]
    fill += [f"v_and_b32 v{t0}, 15, v{vL}", f"v_lshrrev_b32 v{t1}, 2, v{t0}", f"v_lshlrev_b32 v{t1}, 4, v{t1}", f"v_and_b32 v{t0}, 3, v{t0}",
             f"v_add_u32 v{t0}, v{t0}, v{t1}", f"s_lshl_b32 s{sT0}, s{sRB2}, 6", f"v_add_u32 v{t1}, s{sT0}, v{t0}",
             f"v_lshlrev_b32 v{t1}, 2, v{t1}", f"v_add_u32 v50, {WS_G}, v{t1}",
             f"v_mul_u32_u24 v{t0}, {RS}, v{t0}", f"v_lshrrev_b32 v{t3}, 4, v{vL}", f"v_lshl_add_u32 v{t0}, v{t3}, 4, v{t0}",
             f"s_mul_i32 s{sT0}, s{sW}, {RED}", f"v_add_u32 v{vLW}, s{sT0}, v{t0}"]
    for g in range(22):
        glu = g < 12
        slot = g % 5
        wg = g if glu else g-12
        wait_for(lambda tg: tg == ("h", g) or (not glu and tg == ("w", g-12)) or (glu and tg == ("wg", g)))
        if "kstamp" in FLAGS:
            if g > 0:
                a("s_waitcnt lgkmcnt(0)"); a(f"v_writelane_b32 v23, s38, {g-1}")
            a("s_memtime s[38:39]")
        if g == 3:
            wait_for(lambda tg: tg[0] == "st")
            a(f"v_add_u32 v{t0}, {WS_FA-WS_FB}, v{vFo}")
            a(f"v_mov_b32 v{t1}, s{sNonce}")
            a(f"s_mov_b64 exec, 1")
            issue(f"global_store_dword v{t0}, v{t1}, s[{P_WS}:{P_WS+1}]{SC}", ("fa", 0))
            a(f"s_mov_b64 exec, -1")
        if g == 5:
            a(f"v_add_u32 v{vFl}, {WS_FA-WS_FB}, v{vFl}")
            issue(f"global_load_dword v{t2}, v{vFl}, s[{P_WS}:{P_WS+1}]{SC}", ("fp", 0))
        if g == 7:
            wait_for(lambda tg: tg[0] == "fp")
            spin_init(a)
            a.label("L_fachk")
            a(f"v_cmp_ne_u32 vcc, s{sNonce}, v{t2}")
            a("s_nop 4")
            a("s_cbranch_vccz L_faok")
            spin_guard(a, "L_faok")
            a(f"global_load_dword v{t2}, v{vFl}, s[{P_WS}:{P_WS+1}]{SC}")
            a("s_waitcnt vmcnt(0)")
            a("s_branch L_fachk")
            a.label("L_faok")
        if g == 15:
            a("s_barrier")
            for i in range(4): issue(f"global_load_dword v{vG[i]}, v50, s[{P_WS}:{P_WS+1}] offset:{16*i}{SC}", ("g", 0))
        mf = []
        for j in range(5):
            for i in range(4):
                d = accB(j, i) if glu else accA(j, i)
                c = "0" if g in (0, 12) else f"v[{d}:{d+3}]"
                mf.append(f"v_mfma_f32_16x16x32_bf16 v[{d}:{d+3}], {wreg(wg, j)}, {hreg(slot, i)}, {c}")
        nw = 0
        for idx, x in enumerate(mf):
            a(x)
            if idx % 4 == 1 and nw < RATE and wq and wq[0][1] < g:
                tg, e_, ins, post = wq.pop(0); issue(ins, tg); nw += 1
                for y in post: a(y)
            elif g >= 8 and fill and idx % 4 != 1: a(fill.pop(0))
        while nw < RATE and wq and wq[0][1] <= g:
            tg, e_, ins, post = wq.pop(0); issue(ins, tg); nw += 1
            for y in post: a(y)
        gn = g + 5
        if gn < 22:
            if gn == 12: a(f"s_mul_i32 s{sKH}, s{sW}, {5*1024}")
            elif gn == 17: a(f"s_add_u32 s{sKH}, s{sKH}, {15*1024}")
            for x in hloads(gn): issue(x, ("h", gn))
            a(f"s_add_u32 s{sKH}, s{sKH}, 1024")
        if g == 17:
            for i in range(5):
                a(f"v_lshrrev_b32 v{t0}, 1, v{OA+i}")
                issue(f"global_load_dwordx2 v[{XR+2*i}:{XR+2*i+1}], v{t0}, s[{P_X}:{P_X+1}]", ("f", 0))
            for i in range(5):
                a(f"v_mul_u32_u24 v{t1}, 49933, v{LA+i}")
                a(f"v_lshrrev_b32 v{t1}, 24, v{t1}")
                a(f"s_lshl_b32 s{sT0}, s{sRB2}, 6")
                a(f"v_add_u32 v{t1}, s{sT0}, v{t1}")
                a(f"v_lshlrev_b32 v{t1}, 2, v{t1}")
                a(f"v_add_u32 v{t1}, {WS_G}, v{t1}")
                issue(f"global_load_dword v{GR+i}, v{t1}, s[{P_WS}:{P_WS+1}]{SC}", ("f", 0))
        if g == 19:
            for i in range(5):
                a(f"v_mul_u32_u24 v{t1}, 49933, v{LA+i}")
                a(f"v_lshrrev_b32 v{t1}, 24, v{t1}")
                a(f"v_mul_u32_u24 v{t1}, {RS}, v{t1}")
                a(f"v_sub_u32 v{t1}, v{LA+i}, v{t1}")
                a(f"v_lshrrev_b32 v{t1}, 1, v{t1}")
                a(f"s_mul_i32 s{sT1}, s{sCB}, 160")
                a(f"v_add_u32 v{t1}, s{sT1}, v{t1}")
                issue(f"global_load_dwordx2 v[{DR+2*i}:{DR+2*i+1}], v{t1}, s[{P_DSK}:{P_DSK+1}]", ("f", 0))
    assert not fill and not wq, (len(fill), len(wq))
    if "kstamp" in FLAGS:
        a("s_waitcnt lgkmcnt(0)"); a(f"v_writelane_b32 v23, s38, 21")
        a("s_memtime s[38:39]"); a("s_waitcnt lgkmcnt(0)"); a(f"v_writelane_b32 v23, s38, 22")
        a(f"s_lshl_b32 s{sT0}, s2, 2"); a(f"s_add_u32 s{sT0}, s{sT0}, s{sW}"); a(f"s_lshl_b32 s{sT0}, s{sT0}, 8")
        a(f"s_add_u32 s{sT0}, s{sT0}, {WS_STAMP + 0x80000}")
        a(f"v_lshl_add_u32 v{t0}, v{vL}, 2, s{sT0}")
        a(f"global_store_dword v{t0}, v23, s[{P_WS}:{P_WS+1}]")
    stp(a, "K2 loop")
    wait_for(lambda tg: tg[0] == "g")
    for j in range(5):
        for i in range(4):
            A_r, B_r = accA(j, i), accB(j, i)
            for h in (0, 2):
                a(f"v_pk_add_f32 v[{A_r+h}:{A_r+h+1}], v[{A_r+h}:{A_r+h+1}], v[{B_r+h}:{B_r+h+1}] neg_lo:[0,1] neg_hi:[0,1]")
            for h in (0, 2):
                a(f"v_pk_fma_f32 v[{B_r+h}:{B_r+h+1}], v[{vG[i]}:{vG[i]+1}], v[{A_r+h}:{A_r+h+1}], v[{B_r+h}:{B_r+h+1}] op_sel_hi:[0,1,1]")
            a(f"ds_write_b128 v{vLW}, v[{B_r}:{B_r+3}] offset:{i*4*RS + 64*j}")
    a("s_waitcnt lgkmcnt(0)")
    a("s_barrier")
    stp(a, "red written")
    for i in range(5):
        b = 120 + 16*i
        for w in range(4):
            a(f"ds_read_b128 v[{b+4*w}:{b+4*w+3}], v{LA+i} offset:{w*RED}")
    a("s_waitcnt vmcnt(0)")
    for i in range(5):
        b = 120 + 16*i
        a(f"s_waitcnt lgkmcnt({min(15,4*(4-i))})")
        a(f"v_pk_add_f32 v[{b}:{b+1}], v[{b}:{b+1}], v[{b+4}:{b+5}]")
        a(f"v_pk_add_f32 v[{b+2}:{b+3}], v[{b+2}:{b+3}], v[{b+6}:{b+7}]")
        a(f"v_pk_add_f32 v[{b+8}:{b+9}], v[{b+8}:{b+9}], v[{b+12}:{b+13}]")
        a(f"v_pk_add_f32 v[{b+10}:{b+11}], v[{b+10}:{b+11}], v[{b+14}:{b+15}]")
        a(f"v_pk_add_f32 v[{b}:{b+1}], v[{b}:{b+1}], v[{b+8}:{b+9}]")
        a(f"v_pk_add_f32 v[{b+2}:{b+3}], v[{b+2}:{b+3}], v[{b+10}:{b+11}]")
        x0, d0_ = XR+2*i, DR+2*i
        for h in range(2):
            a(f"v_lshlrev_b32 v{t1}, 16, v{x0+h}")
            a(f"v_and_b32 v{t2}, 0xffff0000, v{x0+h}")
            a(f"v_lshlrev_b32 v{t3}, 16, v{d0_+h}")
            a(f"v_and_b32 v{t4}, 0xffff0000, v{d0_+h}")
            a(f"v_mul_f32 v{t1}, v{t1}, v{t3}")
            a(f"v_mul_f32 v{t2}, v{t2}, v{t4}")
            a(f"v_fmac_f32 v{b+2*h}, v{GR+i}, v{t1}")
            a(f"v_fmac_f32 v{b+2*h+1}, v{GR+i}, v{t2}")
        a(f"global_store_dwordx4 v{OA+i}, v[{b}:{b+3}], s[{P_OUT}:{P_OUT+1}]")
    stp(a, "out stored")
    if LSTAMP:
        pass
    if "dbgt" in FLAGS:
        a("s_waitcnt vmcnt(0)")
        a("s_memrealtime s[40:41]"); a("s_memtime s[42:43]")
        a("s_waitcnt lgkmcnt(0)")
        a(f"s_cmp_lg_u32 s{sW}, 0")
        a("s_cbranch_scc1 L_end")
        a("s_not_b32 s44, s101")
        a("v_mov_b32 v2, 0"); a("v_mov_b32 v3, s44"); a("v_mov_b32 v4, s40")
        a("s_mov_b64 exec, 1")
        a(f"global_atomic_umax v2, v3, s[{P_DBG}:{P_DBG+1}] offset:16 sc1")
        a(f"global_atomic_umax v2, v4, s[{P_DBG}:{P_DBG+1}] offset:20 sc1")
        a("s_cmp_lg_u32 s2, 0")
        a("s_cbranch_scc1 L_end")
        a("s_sub_u32 s42, s42, s96"); a("s_sub_u32 s40, s40, s101")
        a("v_mov_b32 v3, s42"); a("v_mov_b32 v4, s40")
        a(f"global_store_dword v2, v3, s[{P_DBG}:{P_DBG+1}] offset:24")
        a(f"global_store_dword v2, v4, s[{P_DBG}:{P_DBG+1}] offset:28")
    stp.dump(a, sW, sT0, P_WS, WS_STAMP)
    a.label("L_end")
    a("s_endpgm")
    a.label("L_codeend")
    return a.text()

HEADER = open("gated_mix__ssm_conv_s5__glu_gated_bilinear__prompt.s.ref").read().split("; Override launch")[0]
def main():
    out = HEADER
    out += "; Override launch geometry by editing the next line. Harness parses it; keep it on one line.\n"
    out += "; @launch grid=(256,1,1) block=(256,1,1) lds=163840\n"
    out += '.amdgcn_target "amdgcn-amd-amdhsa--gfx950"\n.text\n'
    out += f".globl {KNAME}\n.p2align 8\n.type {KNAME},@function\n" + gen()
    out += f""".section .rodata,"a"
.p2align 6
.amdhsa_kernel {KNAME}
  .amdhsa_next_free_vgpr 512
  .amdhsa_next_free_sgpr 102
  .amdhsa_accum_offset 256
  .amdhsa_group_segment_fixed_size 0
  .amdhsa_kernarg_size 136
  .amdhsa_user_sgpr_count 2
  .amdhsa_user_sgpr_kernarg_segment_ptr 1
  .amdhsa_system_sgpr_workgroup_id_x 1
  .amdhsa_float_denorm_mode_32 3
.end_amdhsa_kernel
"""
    path = [x for x in sys.argv[1:] if not x.startswith("--")][0]
    open(path, "w").write(out)
    json.dump([[d[i] for i in sorted(d)] for d in NAMES], open(path + ".names", "w"))
main()
```

```python
import sys, json
from asmlib import *

FLAGS = set(x[2:] for x in sys.argv[1:] if x.startswith("--"))
STAMP = "stamp" in FLAGS
NAMES = []
KNAME = "gated_mix__ssm_conv_s5__glu_gated_bilinear__prompt_kernel"

WS_H   = 0
WS_G   = 0xB00000
WS_S   = 0xB10000
WS_FB  = 0xB40000
WS_FA  = 0xB42000
WS_PF  = 0xB44000
WS_W2  = 0xC00000
W2_SIZE = 8*88*5*1024
WS_STAMP = 0x1000000
LOG2E = 0x3fb8aa3b
INV2PI = 0x3e22f983
SC = "" if "nosc" in FLAGS else " sc1"
SCL = "" if ("nosc" in FLAGS or "noscl" in FLAGS) else " sc1"
LSTAMP = "lstamp" in FLAGS

def srd(a, d, base, size, add=0):
    o = []
    if add == 0:
        o += [f"s_mov_b32 s{d}, s{base}", f"s_mov_b32 s{d+1}, s{base+1}"]
    elif add > 0:
        o += [f"s_add_u32 s{d}, s{base}, {add}", f"s_addc_u32 s{d+1}, s{base+1}, 0"]
    else:
        o += [f"s_sub_u32 s{d}, s{base}, {-add}", f"s_subb_u32 s{d+1}, s{base+1}, 0"]
    o += [f"s_mov_b32 s{d+2}, {size}", f"s_mov_b32 s{d+3}, 0x00020000"]
    if a is None: return o
    for x in o: a(x)

class Stamper:
    def __init__(self, store):
        self.store = store; self.n = 0; self.tmp = [98, 100]; self.names = {}
        NAMES.append(self.names)
    def __call__(self, a, name=""):
        if not STAMP: return
        if self.n > 0:
            a(f"s_mov_b32 s{self.store[self.n-1]}, s{self.tmp[(self.n-1)&1]}")
        assert self.n < len(self.store), "too many stamps"
        a(f"s_memtime s[{self.tmp[self.n&1]}:{self.tmp[self.n&1]+1}]")
        self.names[self.n] = name
        self.n += 1
    def dump(self, a, sW, sT0, P_WS, base):
        if not STAMP: return
        a("s_waitcnt vmcnt(0) lgkmcnt(0)")
        self(a, "end")
        a("s_waitcnt lgkmcnt(0)")
        a(f"s_mov_b32 s{self.store[self.n-1]}, s{self.tmp[(self.n-1)&1]}")
        a(f"s_lshl_b32 s{sT0}, s2, 2")
        a(f"s_add_u32 s{sT0}, s{sT0}, s{sW}")
        a(f"s_lshl_b32 s{sT0}, s{sT0}, 7")
        a(f"s_add_u32 s{sT0}, s{sT0}, {base}")
        a(f"v_mov_b32 v2, s{sT0}")
        if "dbgstamp" in FLAGS:
            keep = [i for i in range(1, self.n) if self.names[i] not in ("small issued", "glu1", "pub", "flagB", "flagB seen", "out stored")][:15]
            a("s_cmp_lg_u32 s2, 101")
            a("s_cbranch_scc1 L_end")
            a(f"s_cmp_lg_u32 s{sW}, 0")
            a("s_cbranch_scc1 L_end")
            a("v_mov_b32 v2, 0")
            for k, i in enumerate(keep):
                a(f"s_sub_u32 s40, s{self.store[i]}, s{self.store[0]}")
                a("v_mov_b32 v3, s40")
                a(f"global_store_dword v2, v3, s[34:35] offset:{4*(k+1)}")
            print("debug stamps:", [self.names[i] for i in keep])
            return
        for i in range(self.n):
            a(f"v_mov_b32 v3, s{self.store[i]}")
            a(f"global_store_dword v2, v3, s[{P_WS}:{P_WS+1}] offset:{4*i}")

def rr(*streams):
    out = []
    n = max(len(s) for s in streams)
    for i in range(n):
        for s in streams:
            if i < len(s): out.append(s[i])
    return out

def weave(a, work, mem, start=0, every=None):
    n = len(work); m = len(mem)
    if m == 0: pos = []
    elif every is None: pos = [start + int((n - start) * i / m) for i in range(m)]
    else: pos = [start + every*i for i in range(m)]
    mi = 0
    def emit(it):
        if isinstance(it, str): a(it)
        else:
            for x in it: a(x)
    for i, w in enumerate(work):
        while mi < m and pos[mi] <= i:
            emit(mem[mi]); mi += 1
        emit(w)
    while mi < m:
        emit(mem[mi]); mi += 1

SPIN_MAX = 100000
def spin_init(a): a("s_mov_b32 s95, 0")
def spin_guard(a, out_label):
    a("s_add_u32 s95, s95, 1")
    a(f"s_cmp_gt_u32 s95, {SPIN_MAX}")
    a(f"s_cbranch_scc1 {out_label}")

DPPSW = "quad_perm:[1,0,3,2] row_mask:0xf bank_mask:0xf"
P_X, P_LRE, P_LIM, P_BRE, P_BIM, P_CRE, P_CIM, P_LDT = 4,6,8,10,12,14,16,18
P_DSK, P_BX, P_WG, P_WU = 20,22,24,26
P_WD, P_GW, P_OUT, P_DBG = 28,30,32,34
P_WS = 36

def gen():
    a = Asm()
    stp = Stamper([96,97,22,23,6,7,8,9,18,19,10,11,12,13,24,25,26,27,95,94,73,74,75,76,77,80,81,82,83])
    SX, SG, SU, SB0, SB1, SB2, SM = 40,44,48,52,56,60,64
    sEX = 38
    sW, sRH, sCH, sRB, sCG = 68,69,70,71,72
    sDB, sCur, sD, sC3, sStage = 73,74,75,76,77
    sKX, sKG, sKU, sKB = 78,79,80,81
    sOX, sOG, sOU, sOB, sOB2 = 82,83,84,85,86
    sT0, sT1, sT2 = 87,88,89
    sF = 87
    sBlk, sRB2, sCB = 90, 91, 92
    sT3 = 93
    sNonce = 3
    vL = 1
    vDX, vDW, vDB = 2, 6, 9
    vX0, vX1, vWa, vWb, vWc, vB0, vB1 = 12,13,14,15,16,17,18
    t0, t1, t2, t3, t4 = 19,20,21,22,23
    vA  = [24,25,26]; vBx = [27,28,29]; vLRE = [30,31,32]; vLIM = [33,34,35]
    vLr = [36,37,38]; vLi = [39,40,41]; vWSr = [42,43,44]; vWSi = [45,46,47]
    vSgn, vNon, vSig, vWp = 48, 49, 50, 51
    vPF = 52
    SCR = 52
    vC, vAe, vAe4, vRw = 90, 91, 92, 93
    pa = [94, 95, 96]
    GLD = 56
    vGst, vGv = 71, 72
    RA, GA = 2, 3
    Ps = [4, 5, 6]
    vAs, vCm = 97, 98
    vAs2, vCm2 = 7, 8
    vH = 116
    ACC = 120
    BUF = 51200
    RX, RG, RU, RB = 0, 16384, 28672, 40960
    MISC = 3*BUF
    SWB, EF, E4, RWB = 0, 1280, 5120, 7104
    EF0 = EF + 7*256; E40 = E4 + 15*64
    HTS = 272
    def acc(n, i): return ACC + n*16 + 4*i
    SA, SBt, S4 = ACC+96, ACC+112, ACC+128
    CL = 52
    PK = 100
    vPWs, vPCs, vPWd, vPCd, vPtr = 61, 63, 64, 66, 68
    TP = 69

    a.label(KNAME)
    a(f"s_cmp_ge_u32 s2, 256")
    a(f"s_cbranch_scc1 L_end")
    if "nocodepf" not in FLAGS:
        a("s_getpc_b64 s[40:41]")
        a.label("L_pc")
        a("v_lshlrev_b32 v2, 2, v0")
        a("s_lshr_b32 s42, s2, 3")
        a("s_lshl_b32 s42, s42, 10")
        a("v_add_u32 v2, s42, v2")
        a("v_min_u32 v2, L_codeend-L_pc-4, v2")
        a("v_mov_b32 v3, s41")
        a("v_add_co_u32 v2, vcc, s40, v2")
        a("v_addc_co_u32 v3, vcc, 0, v3, vcc")
        a("global_load_dword v99, v[2:3], off")
    a(f"s_load_dwordx16 s[4:19], s[0:1], 0")
    a(f"s_load_dwordx8 s[20:27], s[0:1], 64")
    a(f"s_load_dwordx8 s[28:35], s[0:1], 96")
    a(f"s_load_dwordx2 s[36:37], s[0:1], 128")
    a(f"s_memrealtime s[{sEX}:{sEX+1}]")
    if "dbgt" in FLAGS: a("s_memtime s[96:97]")
    stp(a, "s0")
    a(f"v_lshrrev_b32 v{t0}, 6, v0")
    a(f"v_and_b32 v{vL}, 63, v0")
    a(f"s_and_b32 s{sT0}, s2, 1")
    a(f"v_readfirstlane_b32 s{sW}, v{t0}")
    a(f"s_lshl_b32 s{sT0}, s{sT0}, 3")
    a(f"s_lshr_b32 s{sT1}, s2, 3")
    a(f"s_and_b32 s{sRB}, s{sT1}, 7")
    a(f"s_add_u32 s{sRB}, s{sRB}, s{sT0}")
    a(f"s_lshr_b32 s{sT0}, s2, 1")
    a(f"s_and_b32 s{sT0}, s{sT0}, 3")
    a(f"s_lshl_b32 s{sT2}, s{sT0}, 2")
    a(f"s_lshr_b32 s{sT3}, s2, 6")
    a(f"s_add_u32 s{sCG}, s{sT2}, s{sT3}")
    a(f"s_lshl_b32 s{sT0}, s{sT0}, 3")
    a(f"s_and_b32 s{sT1}, s{sT1}, 7")
    a(f"s_add_u32 s{sRB2}, s{sT0}, s{sT1}")
    a(f"s_and_b32 s{sT0}, s2, 1")
    a(f"s_lshl_b32 s{sT0}, s{sT0}, 2")
    a(f"s_add_u32 s{sCB}, s{sT0}, s{sT3}")
    a(f"s_lshr_b32 s{sRH}, s{sW}, 1")
    a(f"s_and_b32 s{sCH}, s{sW}, 1")
    a(f"v_lshrrev_b32 v{t0}, 3, v{vL}")
    a(f"v_and_b32 v{t1}, 2, v{t0}")
    a(f"s_lshl_b32 s{sT0}, s{sCH}, 2")
    a(f"v_or_b32 v{t1}, s{sT0}, v{t1}")
    a(f"v_and_b32 v{t2}, 7, v{vL}")
    a(f"v_xor_b32 v{t1}, v{t1}, v{t2}")
    a(f"s_lshl_b32 s{sT0}, s{sRB}, 7")
    a(f"s_lshl_b32 s{sT1}, s{sW}, 5")
    a(f"s_add_u32 s{sT0}, s{sT0}, s{sT1}")
    a(f"v_add_u32 v{t0}, s{sT0}, v{t0}")
    a(f"v_mul_u32_u24 v{t0}, 1280, v{t0}")
    a(f"v_lshl_add_u32 v{vDX}, v{t1}, 4, v{t0}")
    for i in range(1,4):
        a(f"v_add_u32 v{vDX+i}, {9216*i}, v{vDX}")
    a(f"s_lshl_b32 s{sOX}, s{sW}, 12")
    a(f"s_mul_i32 s{sOG}, s{sW}, 3072")
    a(f"s_add_u32 s{sOU}, s{sOG}, {RU}")
    a(f"s_add_u32 s{sOG}, s{sOG}, {RG}")
    for r in (sKX, sKG, sKU, sKB): a(f"s_mov_b32 s{r}, 0")
    a("s_waitcnt lgkmcnt(0)")
    a(f"s_or_b32 s{sT0}, s2, s{sW}")
    a(f"s_cmp_lg_u32 s{sT0}, 0")
    a(f"s_cbranch_scc1 L_no_nonce")
    a(f"s_or_b32 s{sT0}, s{sEX}, 1")
    a(f"v_mov_b32 v{t0}, s{sT0}")
    a(f"v_mov_b32 v{t1}, 0")
    a(f"s_mov_b64 exec, 1")
    a(f"global_store_dword v{t1}, v{t0}, s[{P_DBG}:{P_DBG+1}]{SC}")
    a(f"s_mov_b64 exec, -1")
    a.label("L_no_nonce")
    if "dbgt" in FLAGS: a(f"s_mov_b32 s101, s{sEX}")
    if "notouch" not in FLAGS:
        a("s_mov_b64 exec, 1")
        a("v_mov_b32 v98, 0")
        for P in (P_WG, P_WU, P_BRE, P_BIM, P_LRE, P_LIM, P_LDT, P_WD, P_CRE, P_CIM, P_GW, P_DSK):
            a(f"global_load_dword v99, v98, s[{P}:{P+1}]")
        a(f"s_mul_i32 s{sT0}, s{sRB}, {8*88*1024}")
        a(f"v_mov_b32 v97, s{sT0}")
        a(f"global_load_dword v99, v97, s[{P_WS}:{P_WS+1}]")
        a(f"s_mul_i32 s{sT0}, s{sRB2}, {4*88*1024}")
        a(f"v_mov_b32 v96, s{sT0}")
        a(f"global_load_dword v99, v96, s[{P_WS}:{P_WS+1}]")
        for k, off in enumerate((WS_G, WS_W2, WS_W2 + 0x200000)):
            a(f"v_mov_b32 v{95-k}, {off}")
            a(f"global_load_dword v99, v{95-k}, s[{P_WS}:{P_WS+1}]")
        a(f"s_mul_i32 s{sT0}, s{sRB2}, {64*640*4}")
        a(f"v_mov_b32 v92, s{sT0}")
        a(f"global_load_dword v99, v92, s[{P_OUT}:{P_OUT+1}]")
        a("s_mov_b64 exec, -1")
    srd(a, SX, P_X, 2621440)
    def dma(vo, S, so, off):
        o = f" offset:{off}" if off else ""
        return f"buffer_load_dwordx4 v{vo}, s[{S}:{S+3}], s{so} offen{o} lds"
    def dgrp(base_expr, items):
        g = [[f"s_add_u32 m0, {base_expr}", "s_nop 0", items[0]]]
        g += [[x] for x in items[1:]]
        return g
    def stage_x(b):  return dgrp(f"s{sOX}, {b}", [dma(vDX+i, SX, sKX, 1024*i) for i in range(4)])
    def stage_g(b):  return dgrp(f"s{sOG}, {b}", [dma(vDW+i, SG, sKG, 1024*i) for i in range(3)])
    def stage_u(b):  return dgrp(f"s{sOU}, {b}", [dma(vDW+i, SU, sKU, 1024*i) for i in range(3)])
    def stage_b(b):  return dgrp(f"s{sOB}, {b}", [dma(vDB, SB0, sKB, 0), dma(vDB+1, SB1, sKB, 1024)]) + dgrp(f"s{sOB2}, {b}", [dma(vDB+2, SB2, sKB, 0)])
    wW = [f"s_mul_i32 s{sT0}, s{sW}, 192", f"s_mul_i32 s{sT1}, s{sCG}, 192"]
    for i in range(3):
        wW += [f"v_add_u32 v{t0}, s{sT0}, v{vL}"]
        if i: wW += [f"v_add_u32 v{t0}, {64*i}, v{t0}"]
        wW += [f"v_mul_u32_u24 v{t1}, 43691, v{t0}", f"v_lshrrev_b32 v{t1}, 19, v{t1}", f"v_mul_u32_u24 v{t2}, 12, v{t1}",
               f"v_sub_u32 v{t2}, v{t0}, v{t2}", f"v_lshrrev_b32 v{t3}, 2, v{t1}", f"v_and_b32 v{t3}, 2, v{t3}",
               f"v_xor_b32 v{t2}, v{t2}, v{t3}", f"v_mul_u32_u24 v{t1}, 3072, v{t1}", f"v_lshl_add_u32 v{t1}, v{t2}, 4, v{t1}",
               f"v_add_u32 v{vDW+i}, s{sT1}, v{t1}"]
        if i: wW += [f"v_subrev_u32 v{vDW+i}, {1024*i}, v{vDW+i}"]
    wW += srd(None, SG, P_WG, 1966080) + srd(None, SU, P_WU, 1966080)
    weave(a, wW, stage_x(0), start=0)
    wB = [f"s_mul_i32 s{sT3}, s{sCG}, 40", f"s_mul_i32 s{sT2}, s{sW}, 3",
          [f"s_cmp_eq_u32 s{sW}, 3", f"s_cselect_b32 s{sT2}, 8, s{sT2}"],
          f"s_add_u32 s{sD}, s{sT2}, 2",
          [f"s_cmp_ge_u32 s{sW}, 2", f"s_cselect_b32 s{sT0}, 1, 0"],
          f"s_sub_u32 s{sD}, s{sD}, s{sT0}",
          f"s_lshl_b32 s{sOB}, s{sT2}, 10", f"s_add_u32 s{sOB}, s{sOB}, {RB}",
          f"s_lshl_b32 s{sOB2}, s{sD}, 10", f"s_add_u32 s{sOB2}, s{sOB2}, {RB}",
          f"v_lshrrev_b32 v{t3}, 4, v{vL}", f"v_lshlrev_b32 v{t3}, 1, v{t3}", f"v_and_b32 v{t4}, 7, v{vL}"]
    for i in range(3):
        wB += [f"s_mov_b32 s{sT0}, s{sT2}" if i == 0 else (f"s_add_u32 s{sT0}, s{sT2}, 1" if i == 1 else f"s_mov_b32 s{sT0}, s{sD}")]
        wB += [[f"s_cmp_ge_u32 s{sT0}, 5", f"s_cselect_b32 s{sT1}, 1, 0", f"s_cselect_b32 s{sC3}, 5, 0"],
               f"s_sub_u32 s{sT0}, s{sT0}, s{sC3}", f"s_lshl_b32 s{sT0}, s{sT0}, 3", f"s_add_u32 s{sT0}, s{sT0}, s{sT3}",
               f"v_lshrrev_b32 v{t0}, 3, v{vL}", f"v_add_u32 v{t0}, s{sT0}, v{t0}", f"v_mul_u32_u24 v{t0}, 1280, v{t0}",
               f"v_add_u32 v{t1}, s{sT1}, v{t3}", f"v_xor_b32 v{t1}, v{t1}, v{t4}", f"v_lshl_add_u32 v{t0}, v{t1}, 4, v{t0}",
               f"v_add_u32 v{vDB+i}, {4096 - (1024*i if i < 2 else 0)}, v{t0}"]
    for i, S in enumerate([SB0, SB1, SB2]):
        wB += [[f"s_cmp_ge_u32 s{sW}, {2 if i < 2 else 1}", f"s_cselect_b32 s{S}, s{P_BIM}, s{P_BRE}", f"s_cselect_b32 s{S+1}, s{P_BIM+1}, s{P_BRE+1}"],
               [f"s_sub_u32 s{S}, s{S}, 4096", f"s_subb_u32 s{S+1}, s{S+1}, 0"],
               f"s_mov_b32 s{S+2}, {819200+4096}", f"s_mov_b32 s{S+3}, 0x00020000"]
    weave(a, wB, stage_g(0) + stage_u(0), start=0)
    c1, c2 = TP, TP+1
    wC = [f"v_and_b32 v{t0}, 15, v{vL}", f"v_lshrrev_b32 v{t0}, 1, v{t0}", f"s_mul_i32 s{sT0}, s{sCG}, 40",
          f"s_lshl_b32 s{sT1}, s{sCH}, 4", f"s_add_u32 s{sT1}, s{sT1}, s{sT0}", f"v_add_u32 v{c1}, s{sT1}, v{t0}",
          f"v_lshlrev_b32 v{c1}, 1, v{c1}", f"s_add_u32 s{sT0}, s{sT0}, 32", f"v_add_u32 v{c2}, s{sT0}, v{t0}",
          f"v_lshlrev_b32 v{c2}, 1, v{c2}"]
    wC += [f"s_mul_i32 s{sT0}, s2, 52429", f"s_lshr_b32 s{sT0}, s{sT0}, 18", f"s_mul_i32 s{sT1}, s{sT0}, 5", f"s_sub_u32 s{sT1}, s2, s{sT1}",
           f"v_lshrrev_b32 v{t0}, 2, v{vL}", f"s_lshl_b32 s{sT2}, s{sT0}, 5", f"v_add_u32 v{t0}, s{sT2}, v{t0}",
           f"v_mul_u32_u24 v{t0}, 1280, v{t0}", f"v_and_b32 v{t1}, 3, v{vL}", f"v_lshl_add_u32 v{t0}, v{t1}, 4, v{t0}",
           f"s_lshl_b32 s{sT2}, s{sT1}, 8", f"v_add_u32 v{t0}, s{sT2}, v{t0}", f"s_lshl_b32 s{sT2}, s{sW}, 6",
           f"v_add_u32 v{vPWs}, s{sT2}, v{t0}", f"v_add_u32 v{vPWs+1}, {16*1280-1024}, v{vPWs}"]
    for k in range(2):
        wC += [f"s_lshl_b32 s{sT2}, s{sT1}, 3", f"s_lshl_b32 s{sT3}, s{sW}, 1", f"s_add_u32 s{sT2}, s{sT2}, s{sT3}"]
        if k: wC += [f"s_add_u32 s{sT2}, s{sT2}, 1"]
        wC += [f"s_mul_i32 s{sT3}, s{sT2}, 52429", f"s_lshr_b32 s{sT3}, s{sT3}, 18", f"s_mul_i32 s{sD}, s{sT3}, 5",
               f"s_sub_u32 s{sT2}, s{sT2}, s{sD}", f"s_mul_i32 s{sT3}, s{sT3}, 88", f"s_add_u32 s{sT3}, s{sT3}, s{sT0}",
               f"s_add_u32 s{sT3}, s{sT3}, 40", f"s_mul_i32 s{sT3}, s{sT3}, 5", f"s_add_u32 s{sT3}, s{sT3}, s{sT2}",
               f"s_lshl_b32 s{sT3}, s{sT3}, 10", f"s_add_u32 s{sT3}, s{sT3}, {WS_W2}",
               f"v_lshlrev_b32 v{vPWd+k}, 4, v{vL}", f"v_add_u32 v{vPWd+k}, s{sT3}, v{vPWd+k}"]
    wC += [f"s_lshl_b32 s{sT0}, s2, 3", f"s_lshl_b32 s{sT1}, s{sW}, 1", f"s_add_u32 s{sT0}, s{sT0}, s{sT1}",
           f"s_mul_i32 s{sT1}, s{sT0}, 52429", f"s_lshr_b32 s{sT1}, s{sT1}, 21", f"s_mul_i32 s{sT2}, s{sT1}, 40",
           f"s_sub_u32 s{sT0}, s{sT0}, s{sT2}",
           [f"s_cmp_ge_u32 s{sT0}, 20", f"s_cselect_b32 s{sC3}, 1, 0", f"s_cselect_b32 s{sT2}, 20, 0"],
           f"s_sub_u32 s{sT2}, s{sT0}, s{sT2}",
           f"v_and_b32 v{t0}, 15, v{vL}", f"s_lshl_b32 s{sT3}, s{sT1}, 4", f"v_add_u32 v{t0}, s{sT3}, v{t0}",
           f"v_mul_u32_u24 v{t0}, 1280, v{t0}", f"v_lshrrev_b32 v{t1}, 4, v{vL}", f"v_lshl_add_u32 v{t0}, v{t1}, 4, v{t0}",
           f"s_lshl_b32 s{sT2}, s{sT2}, 6", f"v_add_u32 v{vPCs}, s{sT2}, v{t0}",
           f"s_mul_i32 s{sT3}, s{sT1}, 52429", f"s_lshr_b32 s{sT3}, s{sT3}, 18", f"s_mul_i32 s{sD}, s{sT3}, 5",
           f"s_sub_u32 s{sT1}, s{sT1}, s{sD}", f"s_mul_i32 s{sT3}, s{sT3}, 88", f"s_add_u32 s{sT3}, s{sT3}, s{sT0}",
           f"s_mul_i32 s{sT3}, s{sT3}, 5", f"s_add_u32 s{sT3}, s{sT3}, s{sT1}", f"s_lshl_b32 s{sT3}, s{sT3}, 10",
           f"s_add_u32 s{sT3}, s{sT3}, {WS_W2}", f"v_lshlrev_b32 v{vPCd}, 4, v{vL}", f"v_add_u32 v{vPCd}, s{sT3}, v{vPCd}",
           f"v_add_u32 v{vPCd+1}, {5*1024}, v{vPCd}",
           f"s_lshl_b32 s{sT0}, s{sW}, 11", f"s_add_u32 s95, s{sT0}, {MISC}"]
    weave(a, wC, stage_b(0), start=0)
    stp(a, "S0 issued")
    sm = []
    for k, P in enumerate((P_LRE, P_LIM, P_LDT)):
        sm += [f"global_load_ushort v{CL+3*k}, v{c1}, s[{P}:{P+1}]", f"global_load_ushort v{CL+3*k+1}, v{c1}, s[{P}:{P+1}] offset:16",
               f"global_load_ushort v{CL+3*k+2}, v{c2}, s[{P}:{P+1}]"]
    sm += [srd(None, SM, P_WD, 1966080) + [f"s_cmp_lt_u32 s2, 240", f"s_cselect_b32 s{SM+2}, s{SM+2}, 0", "s_mov_b32 m0, s95", "s_nop 0",
           f"buffer_load_dwordx4 v{vPWs}, s[{SM}:{SM+3}], 0 offen lds"],
           [f"buffer_load_dwordx4 v{vPWs+1}, s[{SM}:{SM+3}], 0 offen offset:1024 lds"],
           [f"s_cmp_eq_u32 s{sC3}, 1", f"s_cselect_b32 s{SM}, s{P_CIM}, s{P_CRE}", f"s_cselect_b32 s{SM+1}, s{P_CIM+1}, s{P_CRE+1}",
            f"s_mov_b32 s{SM+2}, 819200", f"s_cmp_lt_u32 s2, 200", f"s_cselect_b32 s{SM+2}, s{SM+2}, 0",
            f"buffer_load_dwordx4 v[{PK}:{PK+3}], v{vPCs}, s[{SM}:{SM+3}], 0 offen"],
           [f"buffer_load_dwordx4 v[{PK+4}:{PK+7}], v{vPCs}, s[{SM}:{SM+3}], 0 offen offset:64"]]
    m, q = t0, t1
    wL = [f"v_and_b32 v{m}, 15, v{vL}", f"v_lshrrev_b32 v{q}, 4, v{vL}",
          f"v_lshrrev_b32 v{t2}, 2, v{m}", f"v_lshlrev_b32 v{t2}, 4, v{t2}", f"v_and_b32 v{t3}, 3, v{m}", f"v_add_u32 v{t2}, v{t2}, v{t3}",
          f"s_lshl_b32 s{sT0}, s{sRH}, 6", f"v_add_u32 v{t2}, s{sT0}, v{t2}", f"v_lshlrev_b32 v{t2}, 7, v{t2}",
          f"v_and_b32 v{t3}, 2, v{m}", f"v_lshrrev_b32 v{t4}, 3, v{m}", f"v_lshl_or_b32 v{t3}, v{t4}, 2, v{t3}",
          f"v_xor_b32 v{t3}, v{t3}, v{q}", f"v_lshl_add_u32 v{vX0}, v{t3}, 4, v{t2}", f"v_xor_b32 v{t3}, 4, v{t3}",
          f"v_lshl_add_u32 v{vX1}, v{t3}, 4, v{t2}",
          f"v_lshrrev_b32 v{t2}, 2, v{m}", f"v_lshl_add_u32 v{t2}, v{q}, 3, v{t2}", f"v_mul_u32_u24 v{t2}, 192, v{t2}",
          f"v_and_b32 v{t3}, 3, v{m}", f"v_lshl_add_u32 v{t2}, v{t3}, 3, v{t2}", f"v_and_b32 v{t3}, 1, v{q}",
          f"v_lshl_add_u32 v{vWa}, v{t3}, 5, v{t2}", f"v_xor_b32 v{t3}, 1, v{t3}", f"v_lshl_add_u32 v{vWb}, v{t3}, 5, v{t2}",
          [f"s_cmp_eq_u32 s{sCH}, 1", f"s_cselect_b64 vcc, -1, 0", f"v_cndmask_b32 v{vWc}, v{vWa}, v{vWb}, vcc"],
          f"v_add_u32 v{vWc}, 64, v{vWc}", f"s_lshl_b32 s{sT0}, s{sCH}, 7", f"v_add_u32 v{vWa}, s{sT0}, v{vWa}", f"v_add_u32 v{vWb}, s{sT0}, v{vWb}",
          f"v_and_b32 v{t2}, 1, v{m}", f"v_lshrrev_b32 v{t3}, 2, v{m}", f"v_lshl_add_u32 v{t3}, v{t3}, 1, v{t2}", f"v_xor_b32 v{t3}, v{t3}, v{q}",
          f"v_mul_u32_u24 v{t2}, 40, v{t2}", f"v_lshrrev_b32 v{t4}, 1, v{m}", f"v_add_u32 v{t2}, v{t2}, v{t4}", f"v_lshlrev_b32 v{t2}, 7, v{t2}",
          f"s_lshl_b32 s{sT0}, s{sCH}, 11", f"v_add_u32 v{t2}, s{sT0}, v{t2}", f"v_lshl_add_u32 v{vB0}, v{t3}, 4, v{t2}",
          f"v_xor_b32 v{t3}, 4, v{t3}", f"v_lshl_add_u32 v{vB1}, v{t3}, 4, v{t2}",
          f"s_lshl_b32 s{sT0}, s{sRH}, 2", f"v_add_u32 v{vSig}, s{sT0}, v{q}",
          f"v_and_b32 v{t2}, 1, v{vL}", f"v_cvt_f32_u32 v{t2}, v{t2}", f"v_fma_f32 v{vSgn}, v{t2}, 2.0, -1.0",
          f"v_lshrrev_b32 v{t2}, 2, v{m}", f"v_lshl_add_u32 v{t2}, v{q}, 2, v{t2}", f"v_lshlrev_b32 v{t2}, 6, v{t2}",
          f"v_and_b32 v{t3}, 3, v{m}", f"v_lshl_add_u32 v{t2}, v{t3}, 3, v{t2}", f"v_add_u32 v{vPtr}, s95, v{t2}",
          f"v_lshlrev_b32 v{vC}, 2, v{m}", f"s_lshl_b32 s{sT0}, s{sCH}, 7", f"v_add_u32 v{vAs}, s{sT0}, v{vC}",
          f"v_add_u32 v{vCm}, {MISC}, v{vC}", f"v_add_u32 v{vAe}, {MISC}, v{vAs}", f"v_lshl_add_u32 v{vAe}, v{vSig}, 8, v{vAe}",
          f"v_lshlrev_b32 v{vAe4}, 1, v{vSig}", f"v_add_u32 v{vAe4}, s{sCH}, v{vAe4}", f"v_lshl_add_u32 v{vAe4}, v{vAe4}, 6, v{vCm}",
          f"s_mul_i32 s{sT0}, s{sW}, 320", f"s_add_u32 s{sT0}, s{sT0}, {MISC}", f"v_add_u32 v{vRw}, s{sT0}, v{vAs}",
          f"v_lshlrev_b32 v{vWp}, 4, v{vL}", f"s_mul_i32 s{sT0}, s{sRB2}, {4*88*1024}", f"v_add_u32 v{vH}, s{sT0}, v{vWp}"]
    wL += [f"v_add_u32 v{vH+i}, {i*88*1024}, v{vH}" for i in range(1,4)]
    weave(a, wL, sm, start=0)
    stp(a, "small issued")
    a(f"s_mov_b32 s{sKX}, 128"); a(f"s_mov_b32 s{sKG}, 196608"); a(f"s_mov_b32 s{sKU}, 196608"); a(f"s_mov_b32 s{sKB}, 128")
    wQ = []
    wQ += [f"s_mul_i32 s{sT0}, s{sCG}, {16*640}", f"s_add_u32 s{sT0}, s{sT0}, {WS_S}",
           f"v_mul_u32_u24 v{pa[0]}, 640, v{vSig}", f"v_lshl_add_u32 v{pa[0]}, v{vAs}, 1, v{pa[0]}", f"v_add_u32 v{pa[0]}, s{sT0}, v{pa[0]}",
           f"v_add_u32 v{pa[1]}, {8*640}, v{pa[0]}", f"v_lshlrev_b32 v{t0}, 1, v{vSig}", f"v_add_u32 v{t0}, s{sCH}, v{t0}",
           f"v_mul_u32_u24 v{pa[2]}, 640, v{t0}", f"v_lshl_add_u32 v{pa[2]}, v{vC}, 1, v{pa[2]}", f"v_add_u32 v{pa[2]}, s{sT0}, v{pa[2]}",
           f"v_add_u32 v{pa[2]}, {64*8}, v{pa[2]}", f"v_mov_b32 v{t4}, 0x7f000000", f"v_add_u32 v{t1}, 8, v{vSig}"]
    for (p_, src) in ((pa[0], vSig), (pa[1], t1), (pa[2], t0)):
        wQ += [[f"v_cmp_le_u32 vcc, s{sRB}, v{src}", "s_nop 1", f"v_cndmask_b32 v{p_}, v{p_}, v{t4}, vcc"]]
    S1 = stage_x(BUF) + stage_g(BUF) + stage_u(BUF) + stage_b(BUF)
    Z2 = 76
    wQ += [f"v_mov_b32 v{Z2+k}, 0" for k in range(4)] + ["s_nop 1"]
    wQ += [f"v_mfma_f32_32x32x16_bf16 v[{ACC+16*k}:{ACC+16*k+15}], v[{Z2}:{Z2+3}], v[{Z2}:{Z2+3}], 0" for k in range(8)]
    wQ += [f"v_mfma_f32_16x16x32_bf16 v[{ACC+128}:{ACC+131}], v[{Z2}:{Z2+3}], v[{Z2}:{Z2+3}], 0",
           f"v_mfma_f32_16x16x32_bf16 v[{ACC+132}:{ACC+135}], v[{Z2}:{Z2+3}], v[{Z2}:{Z2+3}], 0"]
    weave(a, wQ, S1, start=0)
    a(f"s_mov_b32 s{sKX}, {2*128}"); a(f"s_mov_b32 s{sKG}, {2*196608}")
    a(f"s_mov_b32 s{sKU}, {2*196608}"); a(f"s_mov_b32 s{sKB}, {2*128}")
    a(f"s_mov_b32 s{sDB}, {2*BUF}")
    a(f"s_mov_b32 s{sCur}, 0"); a(f"s_mov_b32 s{sD}, {BUF}"); a(f"s_mov_b32 s{sC3}, 0")
    a(f"s_mov_b32 s{sStage}, 0")
    a(f"s_mov_b32 s{sBlk}, {(1<<1)|(1<<5):#x}")
    stp(a, "S1 issued")
    a("s_waitcnt vmcnt(13)")
    a("s_barrier")
    stp(a, "S0 landed")
    def cpow_s(dr, di, A, B, n, tm, sgn):
        o = []
        if n is None:
            o += [f"v_exp_f32 v{tm}, v{A}", f"v_rndne_f32 v{dr}, v{B}", f"v_sub_f32 v{tm+1}, v{B}, v{dr}"]
        else:
            o += [f"v_mul_f32 v{tm}, {n}, v{A}", f"v_mul_f32 v{tm+1}, {n}, v{B}", f"v_exp_f32 v{tm}, v{tm}",
                  f"v_rndne_f32 v{dr}, v{tm+1}", f"v_sub_f32 v{tm+1}, v{tm+1}, v{dr}"]
        o += [f"v_cos_f32 v{dr}, v{tm+1}", f"v_sin_f32 v{di}, v{tm+1}"]
        if sgn is not None:
            o += [f"v_mul_f32 v{dr}, v{tm}, v{dr}", f"v_mul_f32 v{tm}, v{sgn}, v{tm}", f"v_mul_f32 v{di}, v{tm}, v{di}"]
        else:
            o += [f"v_mul_f32 v{dr}, v{tm}, v{dr}", f"v_mul_f32 v{di}, v{tm}, v{di}"]
        return o
    def make_Wk():
        Wk = []
        for k in range(2):
            Wk += [f"ds_read_b64_tr_b16 v[{PK+8+4*k}:{PK+9+4*k}], v{vPtr} offset:{32*k}", f"ds_read_b64_tr_b16 v[{PK+10+4*k}:{PK+11+4*k}], v{vPtr} offset:{32*k+1024}"]
        Wk += [srd(None, SM, P_WS, WS_W2 + W2_SIZE) + [f"s_cmp_lt_u32 s2, 200", f"s_cselect_b32 s{SM+2}, s{SM+2}, 0",
                f"buffer_store_dwordx4 v[{PK}:{PK+3}], v{vPCd}, s[{SM}:{SM+3}], 0 offen{SC}",
                f"buffer_store_dwordx4 v[{PK+4}:{PK+7}], v{vPCd+1}, s[{SM}:{SM+3}], 0 offen{SC}"]]
        vN = 71
        Wk += [f"v_cvt_f32_u32 v{vN}, v{vSig}", f"v_mov_b32 v{vN+1}, 0x42e00000", f"s_mov_b32 s{sT0}, 0xc1800000",
               f"v_fma_f32 v{vN}, v{vN}, s{sT0}, v{vN+1}", f"s_lshl_b32 s{sT0}, s{sCH}, 3", f"s_sub_u32 s{sT0}, 8, s{sT0}",
               f"v_cvt_f32_u32 v{vN+2}, s{sT0}", f"v_add_f32 v{vN+2}, v{vN+2}, v{vN}"]
        Wk += [["s_waitcnt lgkmcnt(0)", f"s_mov_b32 s{SM+2}, {WS_W2 + W2_SIZE}", f"s_cmp_lt_u32 s2, 240", f"s_cselect_b32 s{SM+2}, s{SM+2}, 0",
                f"buffer_store_dwordx4 v[{PK+8}:{PK+11}], v{vPWd}, s[{SM}:{SM+3}], 0 offen{SC}",
                f"buffer_store_dwordx4 v[{PK+12}:{PK+15}], v{vPWd+1}, s[{SM}:{SM+3}], 0 offen{SC}"]]
        Z = 76
        Wk += [f"v_lshlrev_b32 v{t0}, 5, v0", f"v_add_u32 v{t0}, {MISC}, v{t0}", f"ds_write_b128 v{t0}, v[{Z}:{Z+3}]", f"ds_write_b128 v{t0}, v[{Z}:{Z+3}] offset:16"]
        streams = []
        for T in range(3):
            tm = 80+2*T; dt = 86+T
            s_ = [f"v_lshlrev_b32 v{vLRE[T]}, 16, v{CL+T}", f"v_lshlrev_b32 v{vLIM[T]}, 16, v{CL+3+T}", f"v_lshlrev_b32 v{dt}, 16, v{CL+6+T}",
                  f"v_mul_f32 v{dt}, {LOG2E:#x}, v{dt}", f"v_exp_f32 v{dt}, v{dt}",
                  f"v_cvt_pk_bf16_f32 v{dt}, v{dt}, v{dt}", f"v_lshlrev_b32 v{dt}, 16, v{dt}",
                  f"v_mul_f32 v{vA[T]}, v{dt}, v{vLRE[T]}", f"v_mul_f32 v{vBx[T]}, v{dt}, v{vLIM[T]}",
                  f"v_mul_f32 v{vA[T]}, {LOG2E:#x}, v{vA[T]}", f"v_mul_f32 v{vBx[T]}, {INV2PI:#x}, v{vBx[T]}"]
            s_ += cpow_s(vLr[T], vLi[T], vA[T], vBx[T], None, tm, vSgn)
            s_ += cpow_s(vWSr[T], vWSi[T], vA[T], vBx[T], f"v{vN if T < 2 else vN+2}", tm, vSgn)
            streams.append(s_)
        Wk += [[x, y, z] for x, y, z in zip(*streams)]
        Wk += [[f"v_mov_b32 v{t0}, 0", f"global_load_dword v{vNon}, v{t0}, s[{P_DBG}:{P_DBG+1}]{SC}"]]
        return Wk

    def dma_first(sdb):
        g = [f"s_add_u32 m0, s{sdb}, s{sOX}"] + [dma(vDX+i, SX, sKX, 1024*i) for i in range(4)]
        g += [f"s_add_u32 m0, s{sdb}, s{sOG}"] + [dma(vDW+i, SG, sKG, 1024*i) for i in range(3)]
        g += [f"s_add_u32 s{sKX}, s{sKX}, 128", f"s_add_u32 s{sKG}, s{sKG}, 196608"]
        return g
    def dma_second(sdb):
        g = [f"s_add_u32 m0, s{sdb}, s{sOU}"] + [dma(vDW+i, SU, sKU, 1024*i) for i in range(3)]
        g += [f"s_add_u32 m0, s{sdb}, s{sOB}", dma(vDB, SB0, sKB, 0), dma(vDB+1, SB1, sKB, 1024)]
        g += [f"s_add_u32 m0, s{sdb}, s{sOB2}", dma(vDB+2, SB2, sKB, 0)]
        g += [f"s_add_u32 s{sKU}, s{sKU}, 196608", f"s_add_u32 s{sKB}, s{sKB}, 128"]
        return g
    def reads(ch, s, setb):
        vX = vX0 if s == 0 else vX1
        vB = vB0 if s == 0 else vB1
        X = [f"ds_read_b128 a[{setb+4*i}:{setb+4*i+3}], v{vX} offset:{RX+i*512}" for i in range(4)]
        def tr(n, region, k):
            vW = (vWa, vWb, vWc)[k]
            b = setb + 16 + 4*n
            o = region + 6144*s
            return [f"ds_read_b64_tr_b16 a[{b}:{b+1}], v{vW} offset:{o}", f"ds_read_b64_tr_b16 a[{b+2}:{b+3}], v{vW} offset:{o+768}"]
        def sb(n, off):
            b = setb + 16 + 4*n
            return [f"ds_read_b128 a[{b}:{b+3}], v{vB} offset:{RB+off}"]
        W = []
        for k in range(3):
            W += tr(2*k, RG, k); W += tr(2*k+1, RU, k)
        W += sb(6, 0) + sb(7, 1024) + sb(8, 4096 - 2048*ch)
        return X[:1] + W[:2] + X[1:] + W[2:]
    def mfmas(ch, setb):
        out = []
        for n in range(6):
            for i in range(4):
                d = acc(n, i)
                out.append(f"v_mfma_f32_16x16x32_bf16 v[{d}:{d+3}], a[{setb+16+4*n}:{setb+16+4*n+3}], a[{setb+4*i}:{setb+4*i+3}], v[{d}:{d+3}]")
        for n in (6, 7):
            for i in range(4):
                d = acc(n, i)
                out.append(f"v_mfma_f32_16x16x32_bf16 v[{d}:{d+3}], a[{setb+4*i}:{setb+4*i+3}], a[{setb+16+4*n}:{setb+16+4*n+3}], v[{d}:{d+3}]")
        for k in range(2):
            i = 2*ch + k
            d = S4 + 4*k
            out.append(f"v_mfma_f32_16x16x32_bf16 v[{d}:{d+3}], a[{setb+4*i}:{setb+4*i+3}], a[{setb+16+32}:{setb+16+35}], v[{d}:{d+3}]")
        return out
    def substep(ch, setb, rd, dmas, late, seq=None):
        main = mfmas(ch, setb)
        gaps = [[] for _ in range(34)]
        for i, r in enumerate(rd): gaps[i].append(r)
        loads = [x for x in dmas if "buffer_load" in x]
        nl = len(loads)
        last = 0
        if nl:
            pos = [1 + int(i*30/nl) for i in range(nl)]
            li = 0; pend = []
            for x in dmas:
                if "buffer_load" in x:
                    p = pos[li]; pp = p - 1
                    for y in reversed(pend):
                        while len(gaps[pp]) >= 2: pp -= 1
                        assert pp >= 0
                        gaps[pp].append(y)
                    pend = []
                    while len(gaps[p]) >= 2: p += 1
                    gaps[p].append(x); last = p
                    li += 1
                else: pend.append(x)
            p = last + 1
            for y in pend:
                while len(gaps[p]) >= 2: p += 1
                gaps[p].append(y)
        g = 0
        for (e, ins) in late:
            g = max(g, e)
            while len(gaps[g]) + len(ins) > 2:
                g += 1
                assert g < 34, "late overflow"
            gaps[g].extend(ins)
        if seq is not None:
            g = 0
            while seq and g < 34:
                if len(gaps[g]) + len(seq[0]) <= 2:
                    gaps[g].extend(seq.pop(0))
                g += 1
        out = []
        for i in range(34):
            out.append(main[i]); out.extend(gaps[i])
        return out
    def gate_seq():
        gw = [GLD, GLD+1, GLD+2, GLD+3, GLD+4]
        xr = [[GLD+6, GLD+7, GLD+8, GLD+9, GLD+5], [GLD+10, GLD+11, GLD+12, GLD+13, GLD+14]]
        ga = [73, 74]; u0, u1, u2, u3 = 75, 76, 77, 78
        q_ = [[f"v_mov_b32 v{ga[0]}, 0", f"v_mov_b32 v{ga[1]}, 0"]]
        for i in range(5):
            q_.append([f"v_lshlrev_b32 v{u0}, 16, v{gw[i]}", f"v_and_b32 v{u1}, 0xffff0000, v{gw[i]}"])
            for r in range(2):
                x_ = xr[r][i]
                q_ += [[f"v_lshlrev_b32 v{u2}, 16, v{x_}", f"v_and_b32 v{u3}, 0xffff0000, v{x_}"],
                       [f"v_mul_f32 v{u2}, v{u2}, v{u0}", f"v_mul_f32 v{u3}, v{u3}, v{u1}"],
                       [f"v_cvt_pk_bf16_f32 v{u2}, v{u2}, v{u3}"],
                       [f"v_and_b32 v{u3}, 0xffff0000, v{u2}", f"v_lshlrev_b32 v{u2}, 16, v{u2}"],
                       [f"v_add_f32 v{ga[r]}, v{ga[r]}, v{u2}", f"v_add_f32 v{ga[r]}, v{ga[r]}, v{u3}"]]
        for sh, rm in (("row_shr:1","0xf"),("row_shr:2","0xf"),("row_shr:4","0xf"),("row_shr:8","0xf"),("row_bcast:15","0xa"),("row_bcast:31","0xc")):
            bc = " bound_ctrl:0" if sh.startswith("row_shr") else ""
            q_.append([f"v_add_f32_dpp v{ga[r]}, v{ga[r]}, v{ga[r]} {sh} row_mask:{rm} bank_mask:0xf{bc}" for r in range(2)])
        q_ += [[f"v_readlane_b32 s{sT1}, v{ga[0]}, 63", f"v_readlane_b32 s{sT2}, v{ga[1]}, 63"],
               [f"v_cmp_eq_u32 vcc, 0, v{vL}"],
               [f"v_mov_b32 v{u3}, s{sT1}", f"v_mov_b32 v{u2}, s{sT2}"],
               [f"v_cndmask_b32 v{u2}, v{u2}, v{u3}, vcc"], [f"v_cvt_pk_bf16_f32 v{u2}, v{u2}, v{u2}"],
               [f"v_lshlrev_b32 v{u2}, 16, v{u2}", f"v_mul_f32 v{u2}, 0xbfb8aa3b, v{u2}"],
               [f"v_exp_f32 v{u2}, v{u2}"], [f"v_add_f32 v{u2}, 1.0, v{u2}"], [f"v_rcp_f32 v{u2}, v{u2}"],
               [f"v_cvt_pk_bf16_f32 v{u2}, v{u2}, v{u2}"], [f"v_lshlrev_b32 v{vGv}, 16, v{u2}", f"s_lshl_b32 s{sT1}, s94, 2"],
               [f"s_add_u32 s{sT1}, s{sT1}, {WS_G}"], [f"v_lshl_add_u32 v{vGst}, v{vL}, 2, s{sT1}"]]
        return q_
    def wbase(g, j):
        if g < 7: return 104 + 20*g + 4*j
        if g < 11: return 20*(g-7) + 4*j
        return 80 + 4*j if j < 2 else 244 + 4*(j-2)
    SW2, SH = SX, SG
    sKW, sKW4, sKH = sKX, sKG, sKU
    def wload(g, j):
        b = wbase(g, j)
        if j < 4:
            o = f" offset:{1024*j}" if j else ""
            return f"buffer_load_dwordx4 a[{b}:{b+3}], v{vWp}, s[{SW2}:{SW2+3}], s{sKW} offen{o}{SCL}"
        return f"buffer_load_dwordx4 a[{b}:{b+3}], v{vWp}, s[{SW2}:{SW2+3}], s{sKW4} offen{SCL}"
    def wstep(g, inc=5120):
        return [wload(g, j) for j in range(5)] + [f"s_add_u32 s{sKW}, s{sKW}, {inc}", f"s_add_u32 s{sKW4}, s{sKW4}, {inc}"]

    A_, B_ = 0, 52
    a(f"s_cmp_eq_u32 s{sCH}, 1")
    a(f"s_cbranch_scc1 L_pre1")
    rot0 = lambda: [(24, [f"s_mov_b32 s{sF}, s{sCur}"]), (24, [f"s_add_u32 s{sCur}, s{sCur}, s{sD}"]),
                  (24, [f"s_add_u32 s{sC3}, s{sC3}, 1"]),
                  (24, [f"s_cmp_eq_u32 s{sC3}, 3", f"s_cselect_b32 s{sC3}, 0, s{sC3}"]),
                  (24, [f"s_cmp_eq_u32 s{sC3}, 2", f"s_cselect_b32 s{sD}, {3*BUF}, 0"]),
                  (24, [f"s_sub_u32 s{sD}, {BUF}, s{sD}"])]
    n0 = stp.n
    for ch in (0, 1):
        stp.n = n0
        a.label(f"L_pre{ch}")
        for r in reads(ch, 0, A_): a(r)
        a(f"v_add_u32 v{vX0}, {BUF}, v{vX0}")
        a(f"v_add_u32 v{vB0}, {BUF}, v{vB0}")
        d1 = dma_first(sDB)
        grp = []; cur_ = []
        for x in d1:
            cur_.append(x)
            if "m0" in x.split(",")[0]: cur_.append("s_nop 0")
            if "buffer_load" in x: grp.append(cur_); cur_ = []
        grp[-1] += cur_
        weave(a, make_Wk(), grp, start=1)
        a("s_waitcnt lgkmcnt(0)")
        stp(a, "prologue")
        a(".p2align 3")
        a.label(f"L_loop{ch}")
        late0 = [(19, [f"v_add_u32 v{r}, s{sD}, v{r}"]) for r in (vWa, vWb, vWc, vX1, vB1)] + rot0()
        for x in substep(ch, A_, reads(ch, 1, B_), dma_second(sDB), late0): a(x)
        a(f"s_waitcnt vmcnt(13) lgkmcnt(0)")
        a("s_barrier")
        if LSTAMP: a("s_memtime s[38:39]")
        late1 = [(19, [f"v_add_u32 v{r}, s{sD}, v{r}"]) for r in (vX0, vB0)]
        late1 += [(20, [f"s_mov_b32 s{sDB}, s{sF}"])]
        late1 += [(32, [f"s_bitcmp1_b32 s{sBlk}, s{sStage}", f"s_cbranch_scc1 L_blk{ch}"])]
        body = substep(ch, B_, reads(ch, 0, A_), dma_first(sF), late1)
        for x in body:
            a(x)
            if x.startswith("s_cbranch_scc1 L_blk"): a.label(f"L_blkr{ch}")
        a(f"s_add_u32 s{sStage}, s{sStage}, 1")
        a(f"s_cmp_lt_u32 s{sStage}, 7")
        a("s_waitcnt lgkmcnt(0)")
        if LSTAMP:
            a(f"v_cmp_eq_u32 vcc, s{sStage}, v{vL}"); a(f"v_mov_b32 v79, s38"); a("s_nop 0"); a(f"v_cndmask_b32 v80, v80, v79, vcc")
        a(f"s_cbranch_scc1 L_loop{ch}")
        stp(a, "loop")
        lt = [(19, [f"v_add_u32 v{r}, {BUF}, v{r}"]) for r in (vWa, vWb, vWc, vX1, vB1)]
        lt += [(24, [x]) for x in srd(None, SW2, P_WS, W2_SIZE, add=WS_W2)[:0]]
        for x in substep(ch, A_, reads(ch, 1, B_), dma_second(sDB), lt): a(x)
        a(f"s_waitcnt vmcnt(13) lgkmcnt(0)")
        a("s_barrier")
        spin_init(a)
        a.label(f"L_pf{ch}")
        a(f"v_cmp_ne_u32 vcc, s{sNonce}, v{vPF}")
        a(f"v_cmp_ne_u32 s[{sEX}:{sEX+1}], s{sNonce}, v{vPF+1}")
        a(f"s_or_b64 vcc, vcc, s[{sEX}:{sEX+1}]")
        a(f"v_cmp_ne_u32 s[{sEX}:{sEX+1}], s{sNonce}, v{vPF+2}")
        a(f"s_or_b64 vcc, vcc, s[{sEX}:{sEX+1}]")
        a(f"v_cmp_ne_u32 s[{sEX}:{sEX+1}], s{sNonce}, v{vPF+3}")
        a(f"s_or_b64 vcc, vcc, s[{sEX}:{sEX+1}]")
        a(f"s_cmp_eq_u64 vcc, 0")
        a(f"s_cbranch_scc1 L_pfok{ch}")
        spin_guard(a, f"L_pfok{ch}")
        a(f"v_lshlrev_b32 v{t0}, 4, v{vL}")
        a(f"v_add_u32 v{t0}, {WS_PF}, v{t0}")
        a(f"global_load_dwordx4 v[{vPF}:{vPF+3}], v{t0}, s[{P_WS}:{P_WS+1}]{SC}")
        a("s_waitcnt vmcnt(0)")
        a(f"s_branch L_pf{ch}")
        a.label(f"L_pfok{ch}")
        srd(a, SW2, P_WS, W2_SIZE, add=WS_W2)
        a(f"s_mul_i32 s{sKW}, s{sCB}, 88")
        a(f"s_mul_i32 s{sT0}, s{sW}, 12")
        a(f"s_add_u32 s{sKW}, s{sKW}, s{sT0}")
        a(f"s_add_u32 s{sKW}, s{sKW}, 40")
        a(f"s_mul_i32 s{sKW}, s{sKW}, 5120")
        a(f"s_add_u32 s{sKW4}, s{sKW}, 4096")
        allw = []
        for g in range(7): allw += wstep(g)
        def take(n):
            out = []; c = 0
            while allw and (c < n or "buffer_load" not in allw[0]):
                x = allw.pop(0); out.append(x)
                if "buffer_load" in x: c += 1
            return out
        lt = [(19, [f"v_add_u32 v{r}, {(-2*BUF) & 0xffffffff:#x}, v{r}"]) for r in (vX0, vB0)]
        gq = gate_seq()
        for x in substep(ch, B_, reads(ch, 0, A_), take(8), lt, gq): a(x)
        a("s_waitcnt lgkmcnt(0)")
        lt = [(19, [f"v_add_u32 v{r}, {(-2*BUF) & 0xffffffff:#x}, v{r}"]) for r in (vWa, vWb, vWc, vX1, vB1)]
        for x in substep(ch, A_, reads(ch, 1, B_), take(8), lt, gq): a(x)
        a(f"s_waitcnt vmcnt(16) lgkmcnt(0)")
        a("s_barrier")
        for x in substep(ch, B_, reads(ch, 0, A_), take(8), [], gq): a(x)
        a("s_waitcnt lgkmcnt(0)")
        for x in substep(ch, A_, reads(ch, 1, B_), take(8), [], gq): a(x)
        a("s_waitcnt lgkmcnt(0)")
        for x in substep(ch, B_, [], take(3), [], gq): a(x)
        assert not allw and not gq, (len(allw), len(gq))
        a("s_mov_b64 exec, 3")
        a(f"global_store_dword v{vGst}, v{vGv}, s[{P_WS}:{P_WS+1}]{SC}")
        a("s_mov_b64 exec, -1")
        a(f"s_branch L_epi")
        a.label(f"L_blk{ch}")
        a(f"s_cmp_eq_u32 s{sStage}, 1")
        a(f"s_cbranch_scc1 L_b0_{ch}")
        a(f"v_lshlrev_b32 v{t0}, 4, v{vL}")
        a(f"v_add_u32 v{t0}, {WS_PF}, v{t0}")
        a(f"global_load_dwordx4 v[{vPF}:{vPF+3}], v{t0}, s[{P_WS}:{P_WS+1}]{SC}")
        a(f"s_lshl_b32 s{sT1}, s{sRB}, 7")
        a(f"s_lshl_b32 s{sT2}, s{sRH}, 6")
        a(f"s_add_u32 s{sT1}, s{sT1}, s{sT2}")
        a(f"s_lshl_b32 s{sT2}, s{sCG}, 2")
        a(f"s_add_u32 s{sT1}, s{sT1}, s{sT2}")
        a(f"s_lshl_b32 s{sT2}, s{sCH}, 1")
        a(f"s_add_u32 s94, s{sT1}, s{sT2}")
        a(f"s_mul_i32 s{sT1}, s94, 1280")
        a(f"v_lshlrev_b32 v{t0}, 2, v{vL}")
        a(f"v_add_u32 v{t1}, s{sT1}, v{vWp}")
        a(f"v_add_u32 v{t2}, s{sT1}, v{t0}")
        a(f"global_load_dwordx4 v[{GLD}:{GLD+3}], v{vWp}, s[{P_GW}:{P_GW+1}]")
        a(f"global_load_dword v{GLD+4}, v{t0}, s[{P_GW}:{P_GW+1}] offset:1024")
        a(f"global_load_dwordx4 v[{GLD+6}:{GLD+9}], v{t1}, s[{P_X}:{P_X+1}]")
        a(f"global_load_dword v{GLD+5}, v{t2}, s[{P_X}:{P_X+1}] offset:1024")
        a(f"global_load_dwordx4 v[{GLD+10}:{GLD+13}], v{t1}, s[{P_X}:{P_X+1}] offset:1280")
        a(f"global_load_dword v{GLD+14}, v{t2}, s[{P_X}:{P_X+1}] offset:2304")
        a(f"s_branch L_blkr{ch}")
        a.label(f"L_b0_{ch}")
        spin_init(a)
        a.label(f"L_np{ch}")
        a(f"v_readfirstlane_b32 s{sNonce}, v{vNon}")
        a(f"s_cmp_lg_u32 s{sNonce}, 0")
        a(f"s_cbranch_scc1 L_nok{ch}")
        spin_guard(a, f"L_nok{ch}")
        a(f"v_mov_b32 v{t0}, 0")
        a(f"global_load_dword v{vNon}, v{t0}, s[{P_DBG}:{P_DBG+1}]{SC}")
        a("s_waitcnt vmcnt(0)")
        a(f"s_branch L_np{ch}")
        a.label(f"L_nok{ch}")
        a(f"s_cmp_lg_u32 s{sW}, 0")
        a(f"s_cbranch_scc1 L_blkr{ch}")
        a(f"s_lshl_b32 s{sT1}, s2, 2")
        a(f"s_add_u32 s{sT1}, s{sT1}, {WS_PF}")
        a(f"v_mov_b32 v{t0}, s{sT1}")
        a(f"v_mov_b32 v{t1}, s{sNonce}")
        a(f"s_mov_b64 exec, 1")
        a(f"global_store_dword v{t0}, v{t1}, s[{P_WS}:{P_WS+1}]{SC}")
        a(f"s_mov_b64 exec, -1")
        a(f"s_branch L_blkr{ch}")

    a.label("L_epi")
    stp(a, "tail")
    if LSTAMP:
        a(f"s_lshl_b32 s{sT0}, s2, 2")
        a(f"s_add_u32 s{sT0}, s{sT0}, s{sW}")
        a(f"s_lshl_b32 s{sT0}, s{sT0}, 8")
        a(f"s_add_u32 s{sT0}, s{sT0}, {WS_STAMP + 0x40000}")
        a(f"v_lshl_add_u32 v79, v{vL}, 2, s{sT0}")
        a(f"global_store_dword v79, v80, s[{P_WS}:{P_WS+1}]")
    XCH = BUF
    vHo, vHo2 = 81, 82
    a(f"s_lshl_b32 s{sT0}, s{sRB}, 1")
    a(f"s_add_u32 s{sT0}, s{sT0}, s{sRH}")
    a(f"s_mul_i32 s{sT0}, s{sT0}, {4*88}")
    a(f"s_mul_i32 s{sT1}, s{sCG}, 3")
    a(f"s_add_u32 s{sT0}, s{sT0}, s{sT1}")
    a(f"s_add_u32 s{sT0}, s{sT0}, 40")
    a(f"s_lshl_b32 s{sT1}, s{sCH}, 1")
    a(f"s_add_u32 s{sT1}, s{sT1}, s{sT0}")
    a(f"s_lshl_b32 s{sT1}, s{sT1}, 10")
    a(f"s_add_u32 s{sT0}, s{sT0}, 1")
    a(f"s_mul_i32 s{sT3}, s{sCH}, {2*88}")
    a(f"s_add_u32 s{sT0}, s{sT0}, s{sT3}")
    a(f"s_lshl_b32 s{sT0}, s{sT0}, 10")
    a(f"v_add_u32 v{vHo}, s{sT1}, v{vWp}")
    a(f"v_add_u32 v{vHo2}, s{sT0}, v{vWp}")
    for i in range(4):
        G0, U0, G1, U1 = [acc(n, i) for n in range(4)]
        for (G, Uu) in ((G0, U0), (G1, U1)):
            a(f"v_pk_mul_f32 v[{G}:{G+1}], v[{G}:{G+1}], v[{Uu}:{Uu+1}]")
            a(f"v_pk_mul_f32 v[{G+2}:{G+3}], v[{G+2}:{G+3}], v[{Uu+2}:{Uu+3}]")
        a(f"v_cvt_pk_bf16_f32 v{U0}, v{G0}, v{G0+1}")
        a(f"v_cvt_pk_bf16_f32 v{U0+1}, v{G0+2}, v{G0+3}")
        a(f"v_cvt_pk_bf16_f32 v{U0+2}, v{G1}, v{G1+1}")
        a(f"v_cvt_pk_bf16_f32 v{U0+3}, v{G1+2}, v{G1+3}")
        a(f"v_add_u32 v{G0}, {i*88*1024}, v{vHo}")
        a(f"global_store_dwordx4 v{G0}, v[{U0}:{U0+3}], s[{P_WS}:{P_WS+1}]{SC}")
    for i in range(4):
        G2, U2 = acc(4, i), acc(5, i)
        a(f"v_pk_mul_f32 v[{G2}:{G2+1}], v[{G2}:{G2+1}], v[{U2}:{U2+1}]")
        a(f"v_pk_mul_f32 v[{G2+2}:{G2+3}], v[{G2+2}:{G2+3}], v[{U2+2}:{U2+3}]")
    for i in range(4):
        G2, U2 = acc(4, i), acc(5, i)
        a(f"v_cvt_pk_bf16_f32 v{U2}, v{G2}, v{G2+1}")
        a(f"v_cvt_pk_bf16_f32 v{U2+1}, v{G2+2}, v{G2+3}")
    a(f"s_lshl_b32 s{sT1}, s{sW}, 10")
    a(f"v_lshlrev_b32 v{t1}, 3, v{vL}")
    a(f"v_add_u32 v{t2}, s{sT1}, v{t1}")
    a(f"s_cmp_eq_u32 s{sCH}, 1")
    a(f"s_cbranch_scc1 L_xw1")
    a(f"ds_write_b64 v{t2}, v[{acc(5,2)}:{acc(5,2)+1}] offset:{XCH}")
    a(f"ds_write_b64 v{t2}, v[{acc(5,3)}:{acc(5,3)+1}] offset:{XCH+512}")
    a(f"s_branch L_xw2")
    a.label("L_xw1")
    a(f"ds_write_b64 v{t2}, v[{acc(5,0)}:{acc(5,0)+1}] offset:{XCH}")
    a(f"ds_write_b64 v{t2}, v[{acc(5,1)}:{acc(5,1)+1}] offset:{XCH+512}")
    a.label("L_xw2")
    stp(a, "glu1")
    U = [SA, SBt, S4]; NS = [16, 16, 8]
    eA = [56, 57, 58]; eB = [59, 60, 61]
    cur = [U[T] for T in range(3)]
    for k in range(1, 16):
        Ts = [T for T in range(3) if k < NS[T]]
        dst = eA if (k & 1) else eB
        for T in Ts: a(f"v_fma_f32 v{dst[T]}, v{vLr[T]}, v{cur[T]}, v{U[T]+k}")
        for T in Ts:
            a(f"v_fmac_f32_dpp v{dst[T]}, v{cur[T]}, v{vLi[T]} {DPPSW}")
            cur[T] = dst[T]
    ew = [62, 63, 64]; ex = [65, 66, 67]
    a(f"s_mul_i32 s{sT0}, s{sW}, 320")
    a(f"s_add_u32 s{sT0}, s{sT0}, {MISC}")
    for T in range(3): a(f"v_mul_f32 v{ew[T]}, v{vWSr[T]}, v{cur[T]}")
    for T in range(3): a(f"v_fmac_f32_dpp v{ew[T]}, v{cur[T]}, v{vWSi[T]} {DPPSW}")
    a(f"v_add_u32 v{t0}, s{sT0}, v{vC}")
    a(f"ds_write_b32 v{vAe}, v{cur[0]} offset:{EF0}")
    a(f"ds_write_b32 v{vAe}, v{cur[1]} offset:{EF0+64}")
    a(f"ds_write_b32 v{vAe4}, v{cur[2]} offset:{E40}")
    def qreduce(vals, tmps):
        for v, t in zip(vals, tmps): a(f"v_mov_b32 v{t}, v{v}")
        a("s_nop 0")
        for v, t in zip(vals, tmps): a(f"v_permlane16_swap_b32 v{v}, v{t}")
        a("s_nop 0")
        for v, t in zip(vals, tmps): a(f"v_add_f32 v{v}, v{v}, v{t}")
        for v, t in zip(vals, tmps): a(f"v_mov_b32 v{t}, v{v}")
        a("s_nop 0")
        for v, t in zip(vals, tmps): a(f"v_permlane32_swap_b32 v{v}, v{t}")
        a("s_nop 0")
        for v, t in zip(vals, tmps): a(f"v_add_f32 v{v}, v{v}, v{t}")
    qreduce(ew, ex)
    a(f"ds_write_b32 v{vRw}, v{ew[0]} offset:{SWB}")
    a(f"ds_write_b32 v{vRw}, v{ew[1]} offset:{SWB+64}")
    a(f"ds_write_b32 v{t0}, v{ew[2]} offset:{SWB+256}")
    a("s_waitcnt lgkmcnt(0)")
    a("s_barrier")
    stp(a, "passA")
    a(f"s_xor_b32 s{sT1}, s{sW}, 1")
    a(f"s_lshl_b32 s{sT1}, s{sT1}, 10")
    a(f"v_lshlrev_b32 v{t1}, 3, v{vL}")
    a(f"v_add_u32 v{t2}, s{sT1}, v{t1}")
    a(f"v_add_u32 v{t4}, {88*1024}, v{vHo2}")
    a(f"s_cmp_eq_u32 s{sCH}, 1")
    a(f"s_cbranch_scc1 L_xr1")
    for k in range(2):
        a(f"ds_read_b64 v[{acc(5,k)+2}:{acc(5,k)+3}], v{t2} offset:{XCH+512*k}")
    a("s_waitcnt lgkmcnt(0)")
    a(f"global_store_dwordx4 v{vHo2}, v[{acc(5,0)}:{acc(5,0)+3}], s[{P_WS}:{P_WS+1}]{SC}")
    a(f"global_store_dwordx4 v{t4}, v[{acc(5,1)}:{acc(5,1)+3}], s[{P_WS}:{P_WS+1}]{SC}")
    a(f"s_branch L_xr2")
    a.label("L_xr1")
    for k in range(2):
        a(f"ds_read_b64 v[{acc(4,2+k)}:{acc(4,2+k)+1}], v{t2} offset:{XCH+512*k}")
        a(f"v_mov_b32 v{acc(4,2+k)+2}, v{acc(5,2+k)}")
        a(f"v_mov_b32 v{acc(4,2+k)+3}, v{acc(5,2+k)+1}")
    a("s_waitcnt lgkmcnt(0)")
    a(f"global_store_dwordx4 v{vHo2}, v[{acc(4,2)}:{acc(4,2)+3}], s[{P_WS}:{P_WS+1}]{SC}")
    a(f"global_store_dwordx4 v{t4}, v[{acc(4,3)}:{acc(4,3)+3}], s[{P_WS}:{P_WS+1}]{SC}")
    a.label("L_xr2")
    a(f"s_cmp_lg_u32 s{sW}, 0")
    a(f"s_cbranch_scc1 L_nopub")
    PB = 68
    a(f"v_lshlrev_b32 v{t0}, 3, v{vL}")
    a(f"v_add_u32 v{t0}, {MISC}, v{t0}")
    for w in range(4): a(f"ds_read_b64 v[{PB+2*w}:{PB+2*w+1}], v{t0} offset:{SWB+320*w}")
    a(f"s_lshl_b32 s{sT0}, s{sCG}, 4")
    a(f"s_add_u32 s{sT0}, s{sT0}, s{sRB}")
    a(f"s_mul_i32 s{sT0}, s{sT0}, 640")
    a(f"s_add_u32 s{sT0}, s{sT0}, {WS_S}")
    a(f"v_lshlrev_b32 v{t0}, 4, v{vL}")
    a(f"v_add_u32 v{t0}, s{sT0}, v{t0}")
    a(f"v_mov_b32 v{PB+9}, s{sNonce}")
    a(f"v_mov_b32 v{PB+11}, s{sNonce}")
    a(f"v_cmp_gt_u32 vcc, 40, v{vL}")
    a("s_waitcnt lgkmcnt(0)")
    a(f"v_pk_add_f32 v[{PB}:{PB+1}], v[{PB}:{PB+1}], v[{PB+2}:{PB+3}]")
    a(f"v_pk_add_f32 v[{PB+4}:{PB+5}], v[{PB+4}:{PB+5}], v[{PB+6}:{PB+7}]")
    a(f"v_pk_add_f32 v[{PB}:{PB+1}], v[{PB}:{PB+1}], v[{PB+4}:{PB+5}]")
    a(f"s_and_saveexec_b64 s[{sEX}:{sEX+1}], vcc")
    a(f"v_mov_b32 v{PB+8}, v{PB}")
    a(f"v_mov_b32 v{PB+10}, v{PB+1}")
    a(f"global_store_dwordx4 v{t0}, v[{PB+8}:{PB+11}], s[{P_WS}:{P_WS+1}]{SC}")
    a(f"s_mov_b64 exec, s[{sEX}:{sEX+1}]")
    a.label("L_nopub")
    stp(a, "pub")
    pre = []
    for g in range(7, 12):
        ws_ = wstep(g)
        pre += [[x] for x in ws_[:4]] + [[ws_[4], ws_[5], ws_[6]]]
    X = ACC
    vMr = [X, X+1, X+2]; vMi = [X+3, X+4, X+5]
    vC2r = [X+6, X+7, X+8]; vC2i = [X+9, X+10, X+11]
    vHr = [X+12, X+13, X+14]; vHi = [X+15, X+16, X+17]
    vW0r = [X+18, X+19, X+20]; vW0i = [X+21, X+22, X+23]
    vW1r = [X+24, X+25]; vW1i = [X+26, X+27]
    vLi2 = [X+28, X+29, X+30]
    nOff, nW0, nW1, nOff4, nW4 = X+32, X+33, X+34, X+35, X+36
    vm0, vm1, vm4 = X+37, X+38, X+39
    W = []
    W += [f"v_cvt_f32_u32 v{nOff}, v{vSig}", f"v_mul_f32 v{nOff}, 0x41800000, v{nOff}", f"s_lshl_b32 s{sT0}, s{sCH}, 3",
          f"v_cvt_f32_u32 v{nOff4}, s{sT0}", f"v_add_f32 v{nOff4}, v{nOff4}, v{nOff}",
          f"s_sub_u32 s{sT0}, s{sRB}, 1", f"v_sub_u32 v{t0}, s{sT0}, v{vSig}", f"v_subrev_u32 v{t1}, 8, v{t0}",
          f"v_sub_u32 v{t2}, v{t0}, v{vSig}", f"v_subrev_u32 v{t2}, s{sCH}, v{t2}"]
    for (n_, mreg, src) in ((nW0, vm0, t0), (nW1, vm1, t1), (nW4, vm4, t2)):
        W += [[f"v_cmp_le_i32 vcc, 0, v{src}", f"v_max_i32 v{n_}, 0, v{src}", f"v_cvt_f32_i32 v{n_}, v{n_}",
               f"v_cndmask_b32 v{mreg}, 0, 1.0, vcc"], f"v_mul_f32 v{n_}, 0x43000000, v{n_}"]
    W += [f"v_mov_b32 v{X+40}, 0x41800000", f"v_mov_b32 v{X+41}, 0x41000000"]
    streams = []
    for T in range(3):
        tm = X+44+6*T
        pr, pi, cr, ci = tm+2, tm+3, tm+4, tm+5
        s_ = cpow_s(vMr[T], vMi[T], vA[T], vBx[T], f"v{X+40 if T < 2 else X+41}", tm, vSgn)
        s_ += [f"v_mul_f32 v{pi}, v{vSgn}, v{vLi[T]}", f"v_add_f32 v{pr}, -1.0, v{vLr[T]}",
               f"v_mul_f32 v{tm}, v{vLRE[T]}, v{vLRE[T]}", f"v_fmac_f32 v{tm}, v{vLIM[T]}, v{vLIM[T]}", f"v_rcp_f32 v{tm}, v{tm}",
               f"v_mul_f32 v{cr}, v{pr}, v{vLRE[T]}", f"v_fmac_f32 v{cr}, v{pi}, v{vLIM[T]}",
               f"v_mul_f32 v{ci}, v{pi}, v{vLRE[T]}", f"v_fma_f32 v{ci}, -v{pr}, v{vLIM[T]}, v{ci}",
               f"v_add_f32 v{tm}, v{tm}, v{tm}", f"v_mul_f32 v{cr}, v{tm}, v{cr}", f"v_mul_f32 v{ci}, v{tm}, v{ci}",
               f"v_mul_f32_e64 v{vC2r[T]}, -v{vSgn}, v{cr}", f"v_sub_f32 v{vC2i[T]}, 0, v{ci}", f"v_sub_f32 v{vLi2[T]}, 0, v{vLi[T]}"]
        s_ += cpow_s(pr, pi, vA[T], vBx[T], f"v{nOff if T < 2 else nOff4}", tm, None)
        s_ += [f"v_mul_f32 v{vHr[T]}, v{cr}, v{pr}", f"v_fma_f32 v{vHr[T]}, -v{ci}, v{pi}, v{vHr[T]}",
               f"v_mul_f32 v{vHi[T]}, v{cr}, v{pi}", f"v_fmac_f32 v{vHi[T]}, v{ci}, v{pr}",
               f"v_mul_f32_e64 v{vHr[T]}, -v{vSgn}, v{vHr[T]}", f"v_sub_f32 v{vHi[T]}, 0, v{vHi[T]}"]
        s_ += cpow_s(vW0r[T], vW0i[T], vA[T], vBx[T], f"v{nW0 if T < 2 else nW4}", tm, vSgn)
        mk = vm0 if T < 2 else vm4
        s_ += [f"v_mul_f32 v{vW0r[T]}, v{mk}, v{vW0r[T]}", f"v_mul_f32 v{vW0i[T]}, v{mk}, v{vW0i[T]}"]
        if T < 2:
            s_ += cpow_s(vW1r[T], vW1i[T], vA[T], vBx[T], f"v{nW1}", tm, vSgn)
            s_ += [f"v_mul_f32 v{vW1r[T]}, v{vm1}, v{vW1r[T]}", f"v_mul_f32 v{vW1i[T]}, v{vm1}, v{vW1i[T]}"]
        streams.append(s_)
    W += rr(*streams)
    for x in W:
        if isinstance(x, str): a(x)
        else:
            for y in x: a(y)
    stp(a, "consts2")
    a("s_waitcnt vmcnt(0)")
    vFo = 18
    a(f"s_lshl_b32 s{sT0}, s{sRB}, 1")
    a(f"s_add_u32 s{sT0}, s{sT0}, s{sRH}")
    a(f"s_lshl_b32 s{sT0}, s{sT0}, 4")
    a(f"s_add_u32 s{sT0}, s{sT0}, s{sCG}")
    a(f"s_lshl_b32 s{sT0}, s{sT0}, 1")
    a(f"s_add_u32 s{sT0}, s{sT0}, s{sCH}")
    a(f"s_lshl_b32 s{sT0}, s{sT0}, 2")
    a(f"s_add_u32 s{sT0}, s{sT0}, {WS_FB}")
    a(f"v_mov_b32 v{vFo}, s{sT0}")
    a(f"v_mov_b32 v{t0}, s{sNonce}")
    a(f"s_mov_b64 exec, 1")
    a(f"global_store_dword v{vFo}, v{t0}, s[{P_WS}:{P_WS+1}]{SC}")
    a(f"s_mov_b64 exec, -1")
    stp(a, "flagB")


    PE = X+64
    W = [f"v_subrev_u32 v{t0}, 256, v{vAe}"]
    for T in range(2):
        for k in range(7): W.append(f"ds_read_b32 v{PE+7*T+k}, v{t0} offset:{EF0 + 64*T - 256*k}")
    W.append(f"v_subrev_u32 v{t1}, 64, v{vAe4}")
    for k in range(15): W.append(f"ds_read_b32 v{PE+14+k}, v{t1} offset:{E40 - 64*k}")
    tu = [56, 57, 58]
    for k in range(16):
        Ts = [T for T in range(3) if k < NS[T]]
        for T in Ts: W.append(f"v_mul_f32 v{tu[T]}, v{vC2r[T]}, v{U[T]+k}")
        for T in Ts: W.append(f"v_fmac_f32_dpp v{tu[T]}, v{U[T]+k}, v{vC2i[T]} {DPPSW}")
        for T in Ts: W.append(f"v_mov_b32 v{U[T]+k}, v{tu[T]}")
    W.append("s_waitcnt lgkmcnt(0)")
    Pc = [PE+6, PE+13, PE+14+14]
    Pt = [[59, 60], [61, 62], [63, 64]]
    nch = [7, 7, 15]; base = [PE, PE+7, PE+14]
    for stepk in range(1, 15):
        Ts = [T for T in range(3) if stepk < nch[T]]
        dst = {T: Pt[T][stepk & 1] for T in Ts}
        grp = []
        for T in Ts: grp.append(f"v_fma_f32 v{dst[T]}, v{vMr[T]}, v{Pc[T]}, v{base[T] + nch[T]-1-stepk}")
        if len(Ts) == 1: grp.append("s_nop 0")
        for T in Ts:
            grp.append(f"v_fmac_f32_dpp v{dst[T]}, v{Pc[T]}, v{vMi[T]} {DPPSW}")
            Pc[T] = dst[T]
        if len(Ts) == 1: grp.append("s_nop 0")
        W += grp
    W.append("s_nop 1")
    for T in range(3): W.append(f"v_mul_f32 v{Ps[T]}, v{vC2r[T]}, v{Pc[T]}")
    for T in range(3): W.append(f"v_fmac_f32_dpp v{Ps[T]}, v{Pc[T]}, v{vC2i[T]} {DPPSW}")
    W += [f"v_mov_b32 v7, v{vAs}", f"v_mov_b32 v8, v{vCm}",
          f"v_and_b32 v{t0}, 15, v{vL}", f"v_lshrrev_b32 v{t1}, 2, v{t0}", f"v_lshlrev_b32 v{t1}, 1, v{t1}", f"v_add_u32 v{t1}, s{sCH}, v{t1}",
          f"v_mul_u32_u24 v{t1}, {HTS}, v{t1}", f"v_and_b32 v{t2}, 3, v{t0}", f"v_lshlrev_b32 v{t2}, 2, v{t2}", f"v_lshrrev_b32 v{t3}, 4, v{vL}",
          f"v_add_u32 v{t2}, v{t2}, v{t3}", f"s_lshl_b32 s{sT0}, s{sRH}, 4", f"v_add_u32 v{t2}, s{sT0}, v{t2}",
          f"v_lshl_add_u32 v{RA}, v{t2}, 3, v{t1}",
          f"s_lshl_b32 s{sT0}, s{sRB}, 1", f"s_add_u32 s{sT0}, s{sT0}, s{sRH}", f"s_lshl_b32 s{sT0}, s{sT0}, 2",
          f"v_add_u32 v{t3}, s{sT0}, v{t3}", f"v_mul_u32_u24 v{t3}, 88, v{t3}", f"s_mul_i32 s{sT0}, s{sCH}, 20",
          f"v_add_u32 v{t3}, s{sT0}, v{t3}", f"v_lshlrev_b32 v{t3}, 10, v{t3}", f"v_lshl_add_u32 v{GA}, v{t0}, 4, v{t3}"]
    NPF = 16
    weave(a, W, pre[:NPF], start=0)
    stp(a, "prefix")
    Hp = [65, 66, 67]; hx = [56, 57, 58]; bad = 68
    vFl = 24
    a(f"s_lshl_b32 s{sT0}, s{sRB2}, 7")
    a(f"s_lshl_b32 s{sT1}, s{sW}, 5")
    a(f"s_add_u32 s{sT0}, s{sT0}, s{sT1}")
    a(f"v_and_b32 v{vFl}, 7, v{vL}")
    a(f"v_lshlrev_b32 v{vFl}, 2, v{vFl}")
    a(f"v_add_u32 v{vFl}, s{sT0}, v{vFl}")
    a(f"v_add_u32 v{vFl}, {WS_FB}, v{vFl}")
    srd(a, SH, P_WS, WS_G)
    srd(a, SM, P_WS, WS_S + 256*640)
    R = X+64
    FBV = X+74
    def poll_loads():
        a(f"buffer_load_dwordx2 v[{R}:{R+1}], v{pa[0]}, s[{SM}:{SM+3}], 0 offen{SC}")
        a(f"buffer_load_dwordx2 v[{R+2}:{R+3}], v{pa[0]}, s[{SM}:{SM+3}], 0 offen offset:128{SC}")
        a(f"buffer_load_dwordx2 v[{R+4}:{R+5}], v{pa[1]}, s[{SM}:{SM+3}], 0 offen{SC}")
        a(f"buffer_load_dwordx2 v[{R+6}:{R+7}], v{pa[1]}, s[{SM}:{SM+3}], 0 offen offset:128{SC}")
        a(f"buffer_load_dwordx2 v[{R+8}:{R+9}], v{pa[2]}, s[{SM}:{SM+3}], 0 offen{SC}")
        a(f"global_load_dword v{FBV}, v{vFl}, s[{P_WS}:{P_WS+1}]{SC}")
    poll_loads()
    NW0 = 5
    for it in pre[NPF:]:
        for x in it: a(x)
    a(f"s_waitcnt vmcnt({len(pre)-NPF})")
    spin_init(a)
    a(f"s_branch L_pollc")
    a.label("L_poll")
    spin_guard(a, "L_pollx")
    poll_loads()
    a("s_waitcnt vmcnt(0)")
    a.label("L_pollc")
    a(f"v_mov_b32 v{bad}, 0")
    for (ri, mreg) in ((R+1, vm0), (R+3, vm0), (R+5, vm1), (R+7, vm1), (R+9, vm4)):
        a(f"v_cmp_ne_u32 vcc, s{sNonce}, v{ri}")
        a("s_nop 1")
        a(f"v_cndmask_b32 v{t0}, 0, v{mreg}, vcc")
        a(f"v_or_b32 v{bad}, v{bad}, v{t0}")
    a(f"v_cmp_ne_u32 vcc, 0, v{bad}")
    a("s_nop 4")
    a("s_cbranch_vccnz L_poll")
    a.label("L_pollx")
    for (T, ri) in ((0, R), (1, R+2), (2, R+8)): a(f"v_mul_f32 v{Hp[T]}, v{vW0r[T]}, v{ri}")
    for (T, ri) in ((0, R), (1, R+2), (2, R+8)): a(f"v_fmac_f32_dpp v{Hp[T]}, v{ri}, v{vW0i[T]} {DPPSW}")
    for (T, ri) in ((0, R+4), (1, R+6)): a(f"v_fmac_f32 v{Hp[T]}, v{vW1r[T]}, v{ri}")
    for (T, ri) in ((0, R+4), (1, R+6)): a(f"v_fmac_f32_dpp v{Hp[T]}, v{ri}, v{vW1i[T]} {DPPSW}")
    qreduce(Hp, hx)
    a(f"s_mul_i32 s{sT0}, s{sW}, 320")
    a(f"s_add_u32 s{sT0}, s{sT0}, {MISC}")
    a(f"v_add_u32 v{t0}, s{sT0}, v{vC}")
    a(f"ds_write_b32 v{vRw}, v{Hp[0]} offset:{RWB}")
    a(f"ds_write_b32 v{vRw}, v{Hp[1]} offset:{RWB+64}")
    a(f"ds_write_b32 v{t0}, v{Hp[2]} offset:{RWB+256}")
    stp(a, "poll")
    spin_init(a)
    a.label("L_fbpoll")
    a(f"v_cmp_ne_u32 vcc, s{sNonce}, v{FBV}")
    a("s_nop 4")
    a("s_cbranch_vccz L_fbx")
    spin_guard(a, "L_fbx")
    a(f"global_load_dword v{FBV}, v{vFl}, s[{P_WS}:{P_WS+1}]{SC}")
    a("s_waitcnt vmcnt(0)")
    a("s_branch L_fbpoll")
    a.label("L_fbx")
    stp(a, "flagB seen")
    slots = [52, 68, 84, "a88", 100]
    def hreg(slot, i):
        sl = slots[slot]
        if isinstance(sl, str): return f"a[{88+4*i}:{91+4*i}]"
        return f"v[{sl+4*i}:{sl+4*i+3}]"
    def hloads(g):
        return [f"buffer_load_dwordx4 {hreg(g % 5, i)}, v{vH+i}, s[{SH}:{SH+3}], s{sKH} offen{SCL}" for i in range(4)]
    a(f"s_mul_i32 s{sKH}, s{sW}, 12")
    a(f"s_add_u32 s{sKH}, s{sKH}, 40")
    a(f"s_lshl_b32 s{sKH}, s{sKH}, 10")
    a("s_waitcnt lgkmcnt(0)")
    early = []
    for g in range(5):
        hl = hloads(g)
        early += [[x] for x in hl[:3]] + [[hl[3], f"s_add_u32 s{sKH}, s{sKH}, 1024"]]
    sOff = [73, 74, 75, 76, 77]
    for it in range(5):
        a(f"s_mul_i32 s{sT0}, s{sCG}, 5")
        a(f"s_add_u32 s{sT0}, s{sT0}, {it}")
        a(f"s_lshr_b32 s{sT1}, s{sT0}, 2")
        a(f"s_lshl_b32 s{sT1}, s{sT1}, 10")
        a(f"s_and_b32 s{sT0}, s{sT0}, 3")
        a(f"s_lshl_b32 s{sT0}, s{sT0}, 8")
        a(f"s_add_u32 s{sOff[it]}, s{sT0}, s{sT1}")
    for it in early[:4]:
        for x in it: a(x)
    early = early[4:]
    a("s_barrier")
    Hw = [X+48, X+49, X+50]
    a(f"s_mul_i32 s{sT0}, s{sCH}, 320")
    a(f"s_add_u32 s{sT0}, s{sT0}, {MISC}")
    a(f"v_add_u32 v{t0}, s{sT0}, v{vAs2}")
    hr = [X+40, X+41, X+42, X+43, X+44, X+45, X+46, X+47]
    a(f"ds_read_b32 v{hr[0]}, v{t0} offset:{RWB}")
    a(f"ds_read_b32 v{hr[1]}, v{t0} offset:{RWB+640}")
    a(f"ds_read_b32 v{hr[2]}, v{t0} offset:{RWB+64}")
    a(f"ds_read_b32 v{hr[3]}, v{t0} offset:{RWB+704}")
    for w in range(4): a(f"ds_read_b32 v{hr[4+w]}, v{vCm2} offset:{RWB+256+320*w}")
    a("s_waitcnt lgkmcnt(0)")
    W = [f"v_add_f32 v{Hw[0]}, v{hr[0]}, v{hr[1]}", f"v_add_f32 v{Hw[1]}, v{hr[2]}, v{hr[3]}", f"v_add_f32 v{hr[4]}, v{hr[4]}, v{hr[5]}",
         f"v_add_f32 v{hr[6]}, v{hr[6]}, v{hr[7]}", f"v_add_f32 v{Hw[2]}, v{hr[4]}, v{hr[6]}"]
    for T in range(3): W.append(f"v_fmac_f32 v{Ps[T]}, v{vHr[T]}, v{Hw[T]}")
    W.append("s_nop 0")
    for T in range(3): W.append(f"v_fmac_f32_dpp v{Ps[T]}, v{Hw[T]}, v{vHi[T]} {DPPSW}")
    cur = list(Ps)
    W.append("s_nop 0")
    for k in range(16):
        Ts = [T for T in range(3) if k < NS[T]]
        for T in Ts: W.append(f"v_fmac_f32 v{U[T]+k}, v{vLr[T]}, v{cur[T]}")
        for T in Ts:
            W.append(f"v_fmac_f32_dpp v{U[T]+k}, v{cur[T]}, v{vLi2[T]} {DPPSW}")
            cur[T] = U[T]+k
    for T in range(3):
        for k in range(NS[T]//2):
            W.append(f"v_cvt_pk_bf16_f32 v{X + 16*T + k}, v{U[T]+2*k}, v{U[T]+2*k+1}")
    W += [f"v_and_b32 v{t0}, 15, v{vL}", f"s_lshl_b32 s{sT0}, s{sCH}, 5", f"v_add_u32 v{t1}, s{sT0}, v{t0}",
          f"v_mul_u32_u24 v{t1}, {HTS}, v{t1}", f"v_lshl_add_u32 v{t1}, v{vSig}, 5, v{t1}",
          f"v_add_u32 v{t0}, 64, v{t0}", f"v_mul_u32_u24 v{t0}, {HTS}, v{t0}", f"v_lshl_add_u32 v{t0}, v{vSig}, 5, v{t0}",
          f"s_lshl_b32 s{sT0}, s{sCH}, 4", f"v_add_u32 v{t0}, s{sT0}, v{t0}"]
    weave(a, W, early, start=6)
    stp(a, "passB")
    a(f"ds_write_b128 v{t1}, v[{X}:{X+3}]")
    a(f"ds_write_b128 v{t1}, v[{X+4}:{X+7}] offset:16")
    a(f"ds_write_b128 v{t1}, v[{X+16}:{X+19}] offset:{16*HTS}")
    a(f"ds_write_b128 v{t1}, v[{X+20}:{X+23}] offset:{16*HTS+16}")
    a(f"ds_write_b128 v{t0}, v[{X+32}:{X+35}]")
    a("s_waitcnt lgkmcnt(0)")
    a("s_barrier")
    DT = X+64
    for it in range(5):
        a(f"ds_read_b64_tr_b16 v[{DT+4*it}:{DT+4*it+1}], v{RA} offset:{it*16*HTS}")
        a(f"ds_read_b64_tr_b16 v[{DT+4*it+2}:{DT+4*it+3}], v{RA} offset:{it*16*HTS+8*HTS}")
    for it in range(5):
        a(f"s_waitcnt lgkmcnt({2*(4-it)})")
        a(f"buffer_store_dwordx4 v[{DT+4*it}:{DT+4*it+3}], v{GA}, s[{SH}:{SH+3}], s{sOff[it]} offen{SC}")
    stp(a, "hA stored")
    accB = lambda j, i: 120 + (j*4+i)*4
    def accA(j, i):
        t = j*4+i
        return 200 + 4*t if t < 14 else 26 + 4*(t-14)
    def wreg(g, j): b = wbase(g, j); return f"a[{b}:{b+3}]"
    fifo = [("h", g) for g in range(5) for _ in range(4)] + [("st", 0)]*5
    def issue(x, tag):
        a(x); fifo.append(tag)
    def wait_for(pred):
        idx = [i for i, tg in enumerate(fifo) if pred(tg)]
        if not idx: return
        n = len(fifo) - 1 - max(idx)
        assert n <= 63, n
        a(f"s_waitcnt vmcnt({n})")
        del fifo[:max(idx)+1]
    sKS, sKS4 = 85, 86
    a(f"s_mul_i32 s{sKS}, s{sCB}, 88")
    a(f"s_mul_i32 s{sT0}, s{sW}, 5")
    a(f"s_add_u32 s{sKS}, s{sKS}, s{sT0}")
    a(f"s_mul_i32 s{sKS}, s{sKS}, 5120")
    a(f"s_add_u32 s{sKS4}, s{sKS}, 4096")
    wq = []
    for g in range(7+NW0, 12):
        st_ = wstep(g)
        for j in range(5): wq.append((("wg", g), 0, st_[j], st_[5:] if j == 4 else []))
    for sidx in range(10):
        for j in range(5):
            x = wload(sidx, j).replace(f"s{sKW} offen", f"s{sKS} offen").replace(f"s{sKW4} offen", f"s{sKS4} offen")
            inc = (20-4)*5120 if sidx == 4 else 5120
            wq.append((("w", sidx), sidx, x, [f"s_add_u32 s{sKS}, s{sKS}, {inc}", f"s_add_u32 s{sKS4}, s{sKS4}, {inc}"] if j == 4 else []))
    RATE = 3
    LA, OA = 2, 7
    vG = [12, 14, 16, 22]
    vLW = 25
    XR, GR, DR = 84, 94, 100
    RS = 336; RED = 64*RS
    fill = []
    for i in range(5):
        w1, w2, w3 = t0, t1, t3
        fill += [f"v_add_u32 v{w1}, {256*i}, v0", f"v_mul_u32_u24 v{w2}, 3277, v{w1}", f"v_lshrrev_b32 v{w2}, 16, v{w2}",
                 f"v_mul_u32_u24 v{w3}, 20, v{w2}", f"v_sub_u32 v{w3}, v{w1}, v{w3}", f"v_mul_u32_u24 v{LA+i}, {RS}, v{w2}",
                 f"v_lshl_add_u32 v{LA+i}, v{w3}, 4, v{LA+i}", f"s_lshl_b32 s{sT0}, s{sRB2}, 6", f"v_add_u32 v{w2}, s{sT0}, v{w2}",
                 f"v_mul_u32_u24 v{w2}, 640, v{w2}", f"s_mul_i32 s{sT1}, s{sCB}, 80", f"v_lshl_add_u32 v{w3}, v{w3}, 2, s{sT1}",
                 f"v_add_u32 v{w2}, v{w2}, v{w3}", f"v_lshlrev_b32 v{OA+i}, 2, v{w2}"]
    fill += [f"v_and_b32 v{t0}, 15, v{vL}", f"v_lshrrev_b32 v{t1}, 2, v{t0}", f"v_lshlrev_b32 v{t1}, 4, v{t1}", f"v_and_b32 v{t0}, 3, v{t0}",
             f"v_add_u32 v{t0}, v{t0}, v{t1}", f"s_lshl_b32 s{sT0}, s{sRB2}, 6", f"v_add_u32 v{t1}, s{sT0}, v{t0}",
             f"v_lshlrev_b32 v{t1}, 2, v{t1}", f"v_add_u32 v50, {WS_G}, v{t1}",
             f"v_mul_u32_u24 v{t0}, {RS}, v{t0}", f"v_lshrrev_b32 v{t3}, 4, v{vL}", f"v_lshl_add_u32 v{t0}, v{t3}, 4, v{t0}",
             f"s_mul_i32 s{sT0}, s{sW}, {RED}", f"v_add_u32 v{vLW}, s{sT0}, v{t0}"]
    for g in range(22):
        glu = g < 12
        slot = g % 5
        wg = g if glu else g-12
        wait_for(lambda tg: tg == ("h", g) or (not glu and tg == ("w", g-12)) or (glu and tg == ("wg", g)))
        if "kstamp" in FLAGS:
            if g > 0:
                a("s_waitcnt lgkmcnt(0)"); a(f"v_writelane_b32 v23, s38, {g-1}")
            a("s_memtime s[38:39]")
        if g == 3:
            wait_for(lambda tg: tg[0] == "st")
            a(f"v_add_u32 v{t0}, {WS_FA-WS_FB}, v{vFo}")
            a(f"v_mov_b32 v{t1}, s{sNonce}")
            a(f"s_mov_b64 exec, 1")
            issue(f"global_store_dword v{t0}, v{t1}, s[{P_WS}:{P_WS+1}]{SC}", ("fa", 0))
            a(f"s_mov_b64 exec, -1")
        if g == 5:
            a(f"v_add_u32 v{vFl}, {WS_FA-WS_FB}, v{vFl}")
            issue(f"global_load_dword v{t2}, v{vFl}, s[{P_WS}:{P_WS+1}]{SC}", ("fp", 0))
        if g == 7:
            wait_for(lambda tg: tg[0] == "fp")
            spin_init(a)
            a.label("L_fachk")
            a(f"v_cmp_ne_u32 vcc, s{sNonce}, v{t2}")
            a("s_nop 4")
            a("s_cbranch_vccz L_faok")
            spin_guard(a, "L_faok")
            a(f"global_load_dword v{t2}, v{vFl}, s[{P_WS}:{P_WS+1}]{SC}")
            a("s_waitcnt vmcnt(0)")
            a("s_branch L_fachk")
            a.label("L_faok")
        if g == 15:
            a("s_barrier")
            for i in range(4): issue(f"global_load_dword v{vG[i]}, v50, s[{P_WS}:{P_WS+1}] offset:{16*i}{SC}", ("g", 0))
        mf = []
        for j in range(5):
            for i in range(4):
                d = accB(j, i) if glu else accA(j, i)
                c = "0" if g in (0, 12) else f"v[{d}:{d+3}]"
                mf.append(f"v_mfma_f32_16x16x32_bf16 v[{d}:{d+3}], {wreg(wg, j)}, {hreg(slot, i)}, {c}")
        nw = 0
        for idx, x in enumerate(mf):
            a(x)
            if idx % 4 == 1 and nw < RATE and wq and wq[0][1] < g:
                tg, e_, ins, post = wq.pop(0); issue(ins, tg); nw += 1
                for y in post: a(y)
            elif g >= 8 and fill and idx % 4 != 1: a(fill.pop(0))
        while nw < RATE and wq and wq[0][1] <= g:
            tg, e_, ins, post = wq.pop(0); issue(ins, tg); nw += 1
            for y in post: a(y)
        gn = g + 5
        if gn < 22:
            if gn == 12: a(f"s_mul_i32 s{sKH}, s{sW}, {5*1024}")
            elif gn == 17: a(f"s_add_u32 s{sKH}, s{sKH}, {15*1024}")
            for x in hloads(gn): issue(x, ("h", gn))
            a(f"s_add_u32 s{sKH}, s{sKH}, 1024")
        if g == 17:
            for i in range(5):
                a(f"v_lshrrev_b32 v{t0}, 1, v{OA+i}")
                issue(f"global_load_dwordx2 v[{XR+2*i}:{XR+2*i+1}], v{t0}, s[{P_X}:{P_X+1}]", ("f", 0))
            for i in range(5):
                a(f"v_mul_u32_u24 v{t1}, 49933, v{LA+i}")
                a(f"v_lshrrev_b32 v{t1}, 24, v{t1}")
                a(f"s_lshl_b32 s{sT0}, s{sRB2}, 6")
                a(f"v_add_u32 v{t1}, s{sT0}, v{t1}")
                a(f"v_lshlrev_b32 v{t1}, 2, v{t1}")
                a(f"v_add_u32 v{t1}, {WS_G}, v{t1}")
                issue(f"global_load_dword v{GR+i}, v{t1}, s[{P_WS}:{P_WS+1}]{SC}", ("f", 0))
        if g == 19:
            for i in range(5):
                a(f"v_mul_u32_u24 v{t1}, 49933, v{LA+i}")
                a(f"v_lshrrev_b32 v{t1}, 24, v{t1}")
                a(f"v_mul_u32_u24 v{t1}, {RS}, v{t1}")
                a(f"v_sub_u32 v{t1}, v{LA+i}, v{t1}")
                a(f"v_lshrrev_b32 v{t1}, 1, v{t1}")
                a(f"s_mul_i32 s{sT1}, s{sCB}, 160")
                a(f"v_add_u32 v{t1}, s{sT1}, v{t1}")
                issue(f"global_load_dwordx2 v[{DR+2*i}:{DR+2*i+1}], v{t1}, s[{P_DSK}:{P_DSK+1}]", ("f", 0))
    assert not fill and not wq, (len(fill), len(wq))
    if "kstamp" in FLAGS:
        a("s_waitcnt lgkmcnt(0)"); a(f"v_writelane_b32 v23, s38, 21")
        a("s_memtime s[38:39]"); a("s_waitcnt lgkmcnt(0)"); a(f"v_writelane_b32 v23, s38, 22")
        a(f"s_lshl_b32 s{sT0}, s2, 2"); a(f"s_add_u32 s{sT0}, s{sT0}, s{sW}"); a(f"s_lshl_b32 s{sT0}, s{sT0}, 8")
        a(f"s_add_u32 s{sT0}, s{sT0}, {WS_STAMP + 0x80000}")
        a(f"v_lshl_add_u32 v{t0}, v{vL}, 2, s{sT0}")
        a(f"global_store_dword v{t0}, v23, s[{P_WS}:{P_WS+1}]")
    stp(a, "K2 loop")
    wait_for(lambda tg: tg[0] == "g")
    for j in range(5):
        for i in range(4):
            A_r, B_r = accA(j, i), accB(j, i)
            for h in (0, 2):
                a(f"v_pk_add_f32 v[{A_r+h}:{A_r+h+1}], v[{A_r+h}:{A_r+h+1}], v[{B_r+h}:{B_r+h+1}] neg_lo:[0,1] neg_hi:[0,1]")
            for h in (0, 2):
                a(f"v_pk_fma_f32 v[{B_r+h}:{B_r+h+1}], v[{vG[i]}:{vG[i]+1}], v[{A_r+h}:{A_r+h+1}], v[{B_r+h}:{B_r+h+1}] op_sel_hi:[0,1,1]")
            a(f"ds_write_b128 v{vLW}, v[{B_r}:{B_r+3}] offset:{i*4*RS + 64*j}")
    a("s_waitcnt lgkmcnt(0)")
    a("s_barrier")
    stp(a, "red written")
    for i in range(5):
        b = 120 + 16*i
        for w in range(4):
            a(f"ds_read_b128 v[{b+4*w}:{b+4*w+3}], v{LA+i} offset:{w*RED}")
    a("s_waitcnt vmcnt(0)")
    for i in range(5):
        b = 120 + 16*i
        a(f"s_waitcnt lgkmcnt({min(15,4*(4-i))})")
        a(f"v_pk_add_f32 v[{b}:{b+1}], v[{b}:{b+1}], v[{b+4}:{b+5}]")
        a(f"v_pk_add_f32 v[{b+2}:{b+3}], v[{b+2}:{b+3}], v[{b+6}:{b+7}]")
        a(f"v_pk_add_f32 v[{b+8}:{b+9}], v[{b+8}:{b+9}], v[{b+12}:{b+13}]")
        a(f"v_pk_add_f32 v[{b+10}:{b+11}], v[{b+10}:{b+11}], v[{b+14}:{b+15}]")
        a(f"v_pk_add_f32 v[{b}:{b+1}], v[{b}:{b+1}], v[{b+8}:{b+9}]")
        a(f"v_pk_add_f32 v[{b+2}:{b+3}], v[{b+2}:{b+3}], v[{b+10}:{b+11}]")
        x0, d0_ = XR+2*i, DR+2*i
        for h in range(2):
            a(f"v_lshlrev_b32 v{t1}, 16, v{x0+h}")
            a(f"v_and_b32 v{t2}, 0xffff0000, v{x0+h}")
            a(f"v_lshlrev_b32 v{t3}, 16, v{d0_+h}")
            a(f"v_and_b32 v{t4}, 0xffff0000, v{d0_+h}")
            a(f"v_mul_f32 v{t1}, v{t1}, v{t3}")
            a(f"v_mul_f32 v{t2}, v{t2}, v{t4}")
            a(f"v_fmac_f32 v{b+2*h}, v{GR+i}, v{t1}")
            a(f"v_fmac_f32 v{b+2*h+1}, v{GR+i}, v{t2}")
        a(f"global_store_dwordx4 v{OA+i}, v[{b}:{b+3}], s[{P_OUT}:{P_OUT+1}]")
    stp(a, "out stored")
    if LSTAMP:
        pass
    if "dbgt" in FLAGS:
        a("s_waitcnt vmcnt(0)")
        a("s_memrealtime s[40:41]"); a("s_memtime s[42:43]")
        a("s_waitcnt lgkmcnt(0)")
        a(f"s_cmp_lg_u32 s{sW}, 0")
        a("s_cbranch_scc1 L_end")
        a("s_not_b32 s44, s101")
        a("v_mov_b32 v2, 0"); a("v_mov_b32 v3, s44"); a("v_mov_b32 v4, s40")
        a("s_mov_b64 exec, 1")
        a(f"global_atomic_umax v2, v3, s[{P_DBG}:{P_DBG+1}] offset:16 sc1")
        a(f"global_atomic_umax v2, v4, s[{P_DBG}:{P_DBG+1}] offset:20 sc1")
        a("s_cmp_lg_u32 s2, 0")
        a("s_cbranch_scc1 L_end")
        a("s_sub_u32 s42, s42, s96"); a("s_sub_u32 s40, s40, s101")
        a("v_mov_b32 v3, s42"); a("v_mov_b32 v4, s40")
        a(f"global_store_dword v2, v3, s[{P_DBG}:{P_DBG+1}] offset:24")
        a(f"global_store_dword v2, v4, s[{P_DBG}:{P_DBG+1}] offset:28")
    stp.dump(a, sW, sT0, P_WS, WS_STAMP)
    a.label("L_end")
    a("s_endpgm")
    a.label("L_codeend")
    return a.text()

HEADER = open("gated_mix__ssm_conv_s5__glu_gated_bilinear__prompt.s.ref").read().split("; Override launch")[0]
def main():
    out = HEADER
    out += "; Override launch geometry by editing the next line. Harness parses it; keep it on one line.\n"
    out += "; @launch grid=(256,1,1) block=(256,1,1) lds=163840\n"
    out += '.amdgcn_target "amdgcn-amd-amdhsa--gfx950"\n.text\n'
    out += f".globl {KNAME}\n.p2align 8\n.type {KNAME},@function\n" + gen()
    out += f""".section .rodata,"a"
.p2align 6
.amdhsa_kernel {KNAME}
  .amdhsa_next_free_vgpr 512
  .amdhsa_next_free_sgpr 102
  .amdhsa_accum_offset 256
  .amdhsa_group_segment_fixed_size 0
  .amdhsa_kernarg_size 136
  .amdhsa_user_sgpr_count 2
  .amdhsa_user_sgpr_kernarg_segment_ptr 1
  .amdhsa_system_sgpr_workgroup_id_x 1
  .amdhsa_float_denorm_mode_32 3
.end_amdhsa_kernel
"""
    path = [x for x in sys.argv[1:] if not x.startswith("--")][0]
    open(path, "w").write(out)
    json.dump([[d[i] for i in sorted(d)] for d in NAMES], open(path + ".names", "w"))
main()
```

```python
import sys, json
from asmlib import *

FLAGS = set(x[2:] for x in sys.argv[1:] if x.startswith("--"))
STAMP = "stamp" in FLAGS
NAMES = []
KNAME = "gated_mix__ssm_conv_s5__glu_gated_bilinear__prompt_kernel"

WS_H   = 0
WS_G   = 0xB00000
WS_S   = 0xB10000
WS_FB  = 0xB40000
WS_FA  = 0xB42000
WS_PF  = 0xB44000
WS_W2  = 0xC00000
W2_SIZE = 8*88*5*1024
WS_STAMP = 0x1000000
LOG2E = 0x3fb8aa3b
INV2PI = 0x3e22f983
SC = "" if "nosc" in FLAGS else " sc1"
SCL = "" if ("nosc" in FLAGS or "noscl" in FLAGS) else " sc1"
LSTAMP = "lstamp" in FLAGS

def srd(a, d, base, size, add=0):
    o = []
    if add == 0:
        o += [f"s_mov_b32 s{d}, s{base}", f"s_mov_b32 s{d+1}, s{base+1}"]
    elif add > 0:
        o += [f"s_add_u32 s{d}, s{base}, {add}", f"s_addc_u32 s{d+1}, s{base+1}, 0"]
    else:
        o += [f"s_sub_u32 s{d}, s{base}, {-add}", f"s_subb_u32 s{d+1}, s{base+1}, 0"]
    o += [f"s_mov_b32 s{d+2}, {size}", f"s_mov_b32 s{d+3}, 0x00020000"]
    if a is None: return o
    for x in o: a(x)

class Stamper:
    def __init__(self, store):
        self.store = store; self.n = 0; self.tmp = [98, 100]; self.names = {}
        NAMES.append(self.names)
    def __call__(self, a, name=""):
        if not STAMP: return
        if self.n > 0:
            a(f"s_mov_b32 s{self.store[self.n-1]}, s{self.tmp[(self.n-1)&1]}")
        assert self.n < len(self.store), "too many stamps"
        a(f"s_memtime s[{self.tmp[self.n&1]}:{self.tmp[self.n&1]+1}]")
        self.names[self.n] = name
        self.n += 1
    def dump(self, a, sW, sT0, P_WS, base):
        if not STAMP: return
        a("s_waitcnt vmcnt(0) lgkmcnt(0)")
        self(a, "end")
        a("s_waitcnt lgkmcnt(0)")
        a(f"s_mov_b32 s{self.store[self.n-1]}, s{self.tmp[(self.n-1)&1]}")
        a(f"s_lshl_b32 s{sT0}, s2, 2")
        a(f"s_add_u32 s{sT0}, s{sT0}, s{sW}")
        a(f"s_lshl_b32 s{sT0}, s{sT0}, 7")
        a(f"s_add_u32 s{sT0}, s{sT0}, {base}")
        a(f"v_mov_b32 v2, s{sT0}")
        if "dbgstamp" in FLAGS:
            keep = [i for i in range(1, self.n) if self.names[i] not in ("small issued", "glu1", "pub", "flagB", "flagB seen", "out stored")][:15]
            a("s_cmp_lg_u32 s2, 101")
            a("s_cbranch_scc1 L_end")
            a(f"s_cmp_lg_u32 s{sW}, 0")
            a("s_cbranch_scc1 L_end")
            a("v_mov_b32 v2, 0")
            for k, i in enumerate(keep):
                a(f"s_sub_u32 s40, s{self.store[i]}, s{self.store[0]}")
                a("v_mov_b32 v3, s40")
                a(f"global_store_dword v2, v3, s[34:35] offset:{4*(k+1)}")
            print("debug stamps:", [self.names[i] for i in keep])
            return
        for i in range(self.n):
            a(f"v_mov_b32 v3, s{self.store[i]}")
            a(f"global_store_dword v2, v3, s[{P_WS}:{P_WS+1}] offset:{4*i}")

def rr(*streams):
    out = []
    n = max(len(s) for s in streams)
    for i in range(n):
        for s in streams:
            if i < len(s): out.append(s[i])
    return out

def weave(a, work, mem, start=0, every=None):
    n = len(work); m = len(mem)
    if m == 0: pos = []
    elif every is None: pos = [start + int((n - start) * i / m) for i in range(m)]
    else: pos = [start + every*i for i in range(m)]
    mi = 0
    def emit(it):
        if isinstance(it, str): a(it)
        else:
            for x in it: a(x)
    for i, w in enumerate(work):
        while mi < m and pos[mi] <= i:
            emit(mem[mi]); mi += 1
        emit(w)
    while mi < m:
        emit(mem[mi]); mi += 1

SPIN_MAX = 100000
def spin_init(a): a("s_mov_b32 s95, 0")
def spin_guard(a, out_label):
    a("s_add_u32 s95, s95, 1")
    a(f"s_cmp_gt_u32 s95, {SPIN_MAX}")
    a(f"s_cbranch_scc1 {out_label}")

DPPSW = "quad_perm:[1,0,3,2] row_mask:0xf bank_mask:0xf"
P_X, P_LRE, P_LIM, P_BRE, P_BIM, P_CRE, P_CIM, P_LDT = 4,6,8,10,12,14,16,18
P_DSK, P_BX, P_WG, P_WU = 20,22,24,26
P_WD, P_GW, P_OUT, P_DBG = 28,30,32,34
P_WS = 36

def gen():
    a = Asm()
    stp = Stamper([96,97,22,23,6,7,8,9,18,19,10,11,12,13,24,25,26,27,95,94,73,74,75,76,77,80,81,82,83])
    SX, SG, SU, SB0, SB1, SB2, SM = 40,44,48,52,56,60,64
    sEX = 38
    sW, sRH, sCH, sRB, sCG = 68,69,70,71,72
    sDB, sCur, sD, sC3, sStage = 73,74,75,76,77
    sKX, sKG, sKU, sKB = 78,79,80,81
    sOX, sOG, sOU, sOB, sOB2 = 82,83,84,85,86
    sT0, sT1, sT2 = 87,88,89
    sF = 87
    sBlk, sRB2, sCB = 90, 91, 92
    sT3 = 93
    sNonce = 3
    vL = 1
    vDX, vDW, vDB = 2, 6, 9
    vX0, vX1, vWa, vWb, vWc, vB0, vB1 = 12,13,14,15,16,17,18
    t0, t1, t2, t3, t4 = 19,20,21,22,23
    vA  = [24,25,26]; vBx = [27,28,29]; vLRE = [30,31,32]; vLIM = [33,34,35]
    vLr = [36,37,38]; vLi = [39,40,41]; vWSr = [42,43,44]; vWSi = [45,46,47]
    vSgn, vNon, vSig, vWp = 48, 49, 50, 51
    vPF = 52
    SCR = 52
    vC, vAe, vAe4, vRw = 90, 91, 92, 93
    pa = [94, 95, 96]
    GLD = 56
    vGst, vGv = 71, 72
    RA, GA = 2, 3
    Ps = [4, 5, 6]
    vAs, vCm = 97, 98
    vAs2, vCm2 = 7, 8
    vH = 116
    ACC = 120
    BUF = 51200
    RX, RG, RU, RB = 0, 16384, 28672, 40960
    MISC = 3*BUF
    SWB, EF, E4, RWB = 0, 1280, 5120, 7104
    EF0 = EF + 7*256; E40 = E4 + 15*64
    HTS = 272
    def acc(n, i): return ACC + n*16 + 4*i
    SA, SBt, S4 = ACC+96, ACC+112, ACC+128
    CL = 52
    PK = 100
    vPWs, vPCs, vPWd, vPCd, vPtr = 61, 63, 64, 66, 68
    TP = 69

    a.label(KNAME)
    a(f"s_cmp_ge_u32 s2, 256")
    a(f"s_cbranch_scc1 L_end")
    if "nocodepf" not in FLAGS:
        a("s_getpc_b64 s[40:41]")
        a.label("L_pc")
        a("v_lshlrev_b32 v2, 2, v0")
        a("s_lshr_b32 s42, s2, 3")
        a("s_lshl_b32 s42, s42, 10")
        a("v_add_u32 v2, s42, v2")
        a("v_min_u32 v2, L_codeend-L_pc-4, v2")
        a("v_mov_b32 v3, s41")
        a("v_add_co_u32 v2, vcc, s40, v2")
        a("v_addc_co_u32 v3, vcc, 0, v3, vcc")
        a("global_load_dword v99, v[2:3], off")
    a(f"s_load_dwordx16 s[4:19], s[0:1], 0")
    a(f"s_load_dwordx8 s[20:27], s[0:1], 64")
    a(f"s_load_dwordx8 s[28:35], s[0:1], 96")
    a(f"s_load_dwordx2 s[36:37], s[0:1], 128")
    a(f"s_memrealtime s[{sEX}:{sEX+1}]")
    if "dbgt" in FLAGS: a("s_memtime s[96:97]")
    stp(a, "s0")
    a(f"v_lshrrev_b32 v{t0}, 6, v0")
    a(f"v_and_b32 v{vL}, 63, v0")
    a(f"s_and_b32 s{sT0}, s2, 1")
    a(f"v_readfirstlane_b32 s{sW}, v{t0}")
    a(f"s_lshl_b32 s{sT0}, s{sT0}, 3")
    a(f"s_lshr_b32 s{sT1}, s2, 3")
    a(f"s_and_b32 s{sRB}, s{sT1}, 7")
    a(f"s_add_u32 s{sRB}, s{sRB}, s{sT0}")
    a(f"s_lshr_b32 s{sT0}, s2, 1")
    a(f"s_and_b32 s{sT0}, s{sT0}, 3")
    a(f"s_lshl_b32 s{sT2}, s{sT0}, 2")
    a(f"s_lshr_b32 s{sT3}, s2, 6")
    a(f"s_add_u32 s{sCG}, s{sT2}, s{sT3}")
    a(f"s_lshl_b32 s{sT0}, s{sT0}, 3")
    a(f"s_and_b32 s{sT1}, s{sT1}, 7")
    a(f"s_add_u32 s{sRB2}, s{sT0}, s{sT1}")
    a(f"s_and_b32 s{sT0}, s2, 1")
    a(f"s_lshl_b32 s{sT0}, s{sT0}, 2")
    a(f"s_add_u32 s{sCB}, s{sT0}, s{sT3}")
    a(f"s_lshr_b32 s{sRH}, s{sW}, 1")
    a(f"s_and_b32 s{sCH}, s{sW}, 1")
    a(f"v_lshrrev_b32 v{t0}, 3, v{vL}")
    a(f"v_and_b32 v{t1}, 2, v{t0}")
    a(f"s_lshl_b32 s{sT0}, s{sCH}, 2")
    a(f"v_or_b32 v{t1}, s{sT0}, v{t1}")
    a(f"v_and_b32 v{t2}, 7, v{vL}")
    a(f"v_xor_b32 v{t1}, v{t1}, v{t2}")
    a(f"s_lshl_b32 s{sT0}, s{sRB}, 7")
    a(f"s_lshl_b32 s{sT1}, s{sW}, 5")
    a(f"s_add_u32 s{sT0}, s{sT0}, s{sT1}")
    a(f"v_add_u32 v{t0}, s{sT0}, v{t0}")
    a(f"v_mul_u32_u24 v{t0}, 1280, v{t0}")
    a(f"v_lshl_add_u32 v{vDX}, v{t1}, 4, v{t0}")
    for i in range(1,4):
        a(f"v_add_u32 v{vDX+i}, {9216*i}, v{vDX}")
    a(f"s_lshl_b32 s{sOX}, s{sW}, 12")
    a(f"s_mul_i32 s{sOG}, s{sW}, 3072")
    a(f"s_add_u32 s{sOU}, s{sOG}, {RU}")
    a(f"s_add_u32 s{sOG}, s{sOG}, {RG}")
    if "norot" in FLAGS:
        a(f"s_mov_b32 s{sKX}, 0")
    elif "rot8" in FLAGS:
        a(f"s_and_b32 s{sT0}, s{sRB}, 7")
        a(f"s_mul_i32 s{sT1}, s{sT0}, 11")
        a(f"s_lshr_b32 s{sT1}, s{sT1}, 3")
        a(f"s_and_b32 s{sT0}, s{sCG}, 3")
        a(f"s_mul_i32 s{sT0}, s{sT0}, 11")
        a(f"s_lshr_b32 s{sT0}, s{sT0}, 2")
        a(f"s_add_u32 s{sT0}, s{sT0}, s{sT1}")
        a(f"s_cmp_ge_u32 s{sT0}, 10")
        a(f"s_cselect_b32 s{sT1}, 10, 0")
        a(f"s_sub_u32 s{sT0}, s{sT0}, s{sT1}")
        a(f"s_lshl_b32 s{sKX}, s{sT0}, 7")
    else:
        a(f"s_and_b32 s{sT0}, s{sRB}, 7")
        a(f"s_and_b32 s{sT1}, s{sCG}, 3")
        a(f"s_add_u32 s{sT0}, s{sT0}, s{sT1}")
        a(f"s_cmp_ge_u32 s{sT0}, 5")
        a(f"s_cselect_b32 s{sT1}, 5, 0")
        a(f"s_sub_u32 s{sT0}, s{sT0}, s{sT1}")
        a(f"s_cmp_ge_u32 s{sT0}, 5")
        a(f"s_cselect_b32 s{sT1}, 5, 0")
        a(f"s_sub_u32 s{sT0}, s{sT0}, s{sT1}")
        a(f"s_lshl_b32 s{sKX}, s{sT0}, 8")
    a(f"s_mul_i32 s{sKG}, s{sKX}, 1536")
    a(f"s_mov_b32 s{sKU}, s{sKG}")
    a(f"s_mov_b32 s{sKB}, s{sKX}")
    def advk(kx, kw):
        return [[f"s_add_u32 s{kx}, s{kx}, 128"], [f"s_cmp_eq_u32 s{kx}, 1280", f"s_cselect_b32 s{kx}, 0, s{kx}"], [f"s_mul_i32 s{kw}, s{kx}, 1536"]]
    a("s_waitcnt lgkmcnt(0)")
    a(f"s_or_b32 s{sT0}, s2, s{sW}")
    a(f"s_cmp_lg_u32 s{sT0}, 0")
    a(f"s_cbranch_scc1 L_no_nonce")
    a(f"s_or_b32 s{sT0}, s{sEX}, 1")
    a(f"v_mov_b32 v{t0}, s{sT0}")
    a(f"v_mov_b32 v{t1}, 0")
    a(f"s_mov_b64 exec, 1")
    a(f"global_store_dword v{t1}, v{t0}, s[{P_DBG}:{P_DBG+1}]{SC}")
    a(f"s_mov_b64 exec, -1")
    a.label("L_no_nonce")
    if "dbgt" in FLAGS: a(f"s_mov_b32 s101, s{sEX}")
    srd(a, SX, P_X, 2621440)
    def dma(vo, S, so, off):
        o = f" offset:{off}" if off else ""
        return f"buffer_load_dwordx4 v{vo}, s[{S}:{S+3}], s{so} offen{o} lds"
    def dgrp(base_expr, items):
        g = [[f"s_add_u32 m0, {base_expr}", "s_nop 0", items[0]]]
        g += [[x] for x in items[1:]]
        return g
    def stage_x(b):  return dgrp(f"s{sOX}, {b}", [dma(vDX+i, SX, sKX, 1024*i) for i in range(4)])
    def stage_g(b):  return dgrp(f"s{sOG}, {b}", [dma(vDW+i, SG, sKG, 1024*i) for i in range(3)])
    def stage_u(b):  return dgrp(f"s{sOU}, {b}", [dma(vDW+i, SU, sKU, 1024*i) for i in range(3)])
    def stage_b(b):  return dgrp(f"s{sOB}, {b}", [dma(vDB, SB0, sKB, 0), dma(vDB+1, SB1, sKB, 1024)]) + dgrp(f"s{sOB2}, {b}", [dma(vDB+2, SB2, sKB, 0)])
    wW = [f"s_mul_i32 s{sT0}, s{sW}, 192", f"s_mul_i32 s{sT1}, s{sCG}, 192"]
    for i in range(3):
        wW += [f"v_add_u32 v{t0}, s{sT0}, v{vL}"]
        if i: wW += [f"v_add_u32 v{t0}, {64*i}, v{t0}"]
        wW += [f"v_mul_u32_u24 v{t1}, 43691, v{t0}", f"v_lshrrev_b32 v{t1}, 19, v{t1}", f"v_mul_u32_u24 v{t2}, 12, v{t1}",
               f"v_sub_u32 v{t2}, v{t0}, v{t2}", f"v_lshrrev_b32 v{t3}, 2, v{t1}", f"v_and_b32 v{t3}, 2, v{t3}",
               f"v_xor_b32 v{t2}, v{t2}, v{t3}", f"v_mul_u32_u24 v{t1}, 3072, v{t1}", f"v_lshl_add_u32 v{t1}, v{t2}, 4, v{t1}",
               f"v_add_u32 v{vDW+i}, s{sT1}, v{t1}"]
        if i: wW += [f"v_subrev_u32 v{vDW+i}, {1024*i}, v{vDW+i}"]
    wW += srd(None, SG, P_WG, 1966080) + srd(None, SU, P_WU, 1966080)
    weave(a, wW, stage_x(0), start=0)
    wB = [f"s_mul_i32 s{sT3}, s{sCG}, 40", f"s_mul_i32 s{sT2}, s{sW}, 3",
          [f"s_cmp_eq_u32 s{sW}, 3", f"s_cselect_b32 s{sT2}, 8, s{sT2}"],
          f"s_add_u32 s{sD}, s{sT2}, 2",
          [f"s_cmp_ge_u32 s{sW}, 2", f"s_cselect_b32 s{sT0}, 1, 0"],
          f"s_sub_u32 s{sD}, s{sD}, s{sT0}",
          f"s_lshl_b32 s{sOB}, s{sT2}, 10", f"s_add_u32 s{sOB}, s{sOB}, {RB}",
          f"s_lshl_b32 s{sOB2}, s{sD}, 10", f"s_add_u32 s{sOB2}, s{sOB2}, {RB}",
          f"v_lshrrev_b32 v{t3}, 4, v{vL}", f"v_lshlrev_b32 v{t3}, 1, v{t3}", f"v_and_b32 v{t4}, 7, v{vL}"]
    for i in range(3):
        wB += [f"s_mov_b32 s{sT0}, s{sT2}" if i == 0 else (f"s_add_u32 s{sT0}, s{sT2}, 1" if i == 1 else f"s_mov_b32 s{sT0}, s{sD}")]
        wB += [[f"s_cmp_ge_u32 s{sT0}, 5", f"s_cselect_b32 s{sT1}, 1, 0", f"s_cselect_b32 s{sC3}, 5, 0"],
               f"s_sub_u32 s{sT0}, s{sT0}, s{sC3}", f"s_lshl_b32 s{sT0}, s{sT0}, 3", f"s_add_u32 s{sT0}, s{sT0}, s{sT3}",
               f"v_lshrrev_b32 v{t0}, 3, v{vL}", f"v_add_u32 v{t0}, s{sT0}, v{t0}", f"v_mul_u32_u24 v{t0}, 1280, v{t0}",
               f"v_add_u32 v{t1}, s{sT1}, v{t3}", f"v_xor_b32 v{t1}, v{t1}, v{t4}", f"v_lshl_add_u32 v{t0}, v{t1}, 4, v{t0}",
               f"v_add_u32 v{vDB+i}, {4096 - (1024*i if i < 2 else 0)}, v{t0}"]
    for i, S in enumerate([SB0, SB1, SB2]):
        wB += [[f"s_cmp_ge_u32 s{sW}, {2 if i < 2 else 1}", f"s_cselect_b32 s{S}, s{P_BIM}, s{P_BRE}", f"s_cselect_b32 s{S+1}, s{P_BIM+1}, s{P_BRE+1}"],
               [f"s_sub_u32 s{S}, s{S}, 4096", f"s_subb_u32 s{S+1}, s{S+1}, 0"],
               f"s_mov_b32 s{S+2}, {819200+4096}", f"s_mov_b32 s{S+3}, 0x00020000"]
    weave(a, wB, stage_g(0) + stage_u(0), start=0)
    c1, c2 = TP, TP+1
    wC = [f"v_and_b32 v{t0}, 15, v{vL}", f"v_lshrrev_b32 v{t0}, 1, v{t0}", f"s_mul_i32 s{sT0}, s{sCG}, 40",
          f"s_lshl_b32 s{sT1}, s{sCH}, 4", f"s_add_u32 s{sT1}, s{sT1}, s{sT0}", f"v_add_u32 v{c1}, s{sT1}, v{t0}",
          f"v_lshlrev_b32 v{c1}, 1, v{c1}", f"s_add_u32 s{sT0}, s{sT0}, 32", f"v_add_u32 v{c2}, s{sT0}, v{t0}",
          f"v_lshlrev_b32 v{c2}, 1, v{c2}"]
    wC += [f"s_mul_i32 s{sT0}, s2, 52429", f"s_lshr_b32 s{sT0}, s{sT0}, 18", f"s_mul_i32 s{sT1}, s{sT0}, 5", f"s_sub_u32 s{sT1}, s2, s{sT1}",
           f"v_lshrrev_b32 v{t0}, 2, v{vL}", f"s_lshl_b32 s{sT2}, s{sT0}, 5", f"v_add_u32 v{t0}, s{sT2}, v{t0}",
           f"v_mul_u32_u24 v{t0}, 1280, v{t0}", f"v_and_b32 v{t1}, 3, v{vL}", f"v_lshl_add_u32 v{t0}, v{t1}, 4, v{t0}",
           f"s_lshl_b32 s{sT2}, s{sT1}, 8", f"v_add_u32 v{t0}, s{sT2}, v{t0}", f"s_lshl_b32 s{sT2}, s{sW}, 6",
           f"v_add_u32 v{vPWs}, s{sT2}, v{t0}", f"v_add_u32 v{vPWs+1}, {16*1280-1024}, v{vPWs}"]
    for k in range(2):
        wC += [f"s_lshl_b32 s{sT2}, s{sT1}, 3", f"s_lshl_b32 s{sT3}, s{sW}, 1", f"s_add_u32 s{sT2}, s{sT2}, s{sT3}"]
        if k: wC += [f"s_add_u32 s{sT2}, s{sT2}, 1"]
        wC += [f"s_mul_i32 s{sT3}, s{sT2}, 52429", f"s_lshr_b32 s{sT3}, s{sT3}, 18", f"s_mul_i32 s{sD}, s{sT3}, 5",
               f"s_sub_u32 s{sT2}, s{sT2}, s{sD}", f"s_mul_i32 s{sT3}, s{sT3}, 88", f"s_add_u32 s{sT3}, s{sT3}, s{sT0}",
               f"s_add_u32 s{sT3}, s{sT3}, 40", f"s_mul_i32 s{sT3}, s{sT3}, 5", f"s_add_u32 s{sT3}, s{sT3}, s{sT2}",
               f"s_lshl_b32 s{sT3}, s{sT3}, 10", f"s_add_u32 s{sT3}, s{sT3}, {WS_W2}",
               f"v_lshlrev_b32 v{vPWd+k}, 4, v{vL}", f"v_add_u32 v{vPWd+k}, s{sT3}, v{vPWd+k}"]
    wC += [f"s_lshl_b32 s{sT0}, s2, 3", f"s_lshl_b32 s{sT1}, s{sW}, 1", f"s_add_u32 s{sT0}, s{sT0}, s{sT1}",
           f"s_mul_i32 s{sT1}, s{sT0}, 52429", f"s_lshr_b32 s{sT1}, s{sT1}, 21", f"s_mul_i32 s{sT2}, s{sT1}, 40",
           f"s_sub_u32 s{sT0}, s{sT0}, s{sT2}",
           [f"s_cmp_ge_u32 s{sT0}, 20", f"s_cselect_b32 s{sC3}, 1, 0", f"s_cselect_b32 s{sT2}, 20, 0"],
           f"s_sub_u32 s{sT2}, s{sT0}, s{sT2}",
           f"v_and_b32 v{t0}, 15, v{vL}", f"s_lshl_b32 s{sT3}, s{sT1}, 4", f"v_add_u32 v{t0}, s{sT3}, v{t0}",
           f"v_mul_u32_u24 v{t0}, 1280, v{t0}", f"v_lshrrev_b32 v{t1}, 4, v{vL}", f"v_lshl_add_u32 v{t0}, v{t1}, 4, v{t0}",
           f"s_lshl_b32 s{sT2}, s{sT2}, 6", f"v_add_u32 v{vPCs}, s{sT2}, v{t0}",
           f"s_mul_i32 s{sT3}, s{sT1}, 52429", f"s_lshr_b32 s{sT3}, s{sT3}, 18", f"s_mul_i32 s{sD}, s{sT3}, 5",
           f"s_sub_u32 s{sT1}, s{sT1}, s{sD}", f"s_mul_i32 s{sT3}, s{sT3}, 88", f"s_add_u32 s{sT3}, s{sT3}, s{sT0}",
           f"s_mul_i32 s{sT3}, s{sT3}, 5", f"s_add_u32 s{sT3}, s{sT3}, s{sT1}", f"s_lshl_b32 s{sT3}, s{sT3}, 10",
           f"s_add_u32 s{sT3}, s{sT3}, {WS_W2}", f"v_lshlrev_b32 v{vPCd}, 4, v{vL}", f"v_add_u32 v{vPCd}, s{sT3}, v{vPCd}",
           f"v_add_u32 v{vPCd+1}, {5*1024}, v{vPCd}",
           f"s_lshl_b32 s{sT0}, s{sW}, 11", f"s_add_u32 s95, s{sT0}, {MISC}"]
    weave(a, wC, stage_b(0), start=0)
    stp(a, "S0 issued")
    sm = []
    for k, P in enumerate((P_LRE, P_LIM, P_LDT)):
        sm += [f"global_load_ushort v{CL+3*k}, v{c1}, s[{P}:{P+1}]", f"global_load_ushort v{CL+3*k+1}, v{c1}, s[{P}:{P+1}] offset:16",
               f"global_load_ushort v{CL+3*k+2}, v{c2}, s[{P}:{P+1}]"]
    sm += [srd(None, SM, P_WD, 1966080) + [f"s_cmp_lt_u32 s2, 240", f"s_cselect_b32 s{SM+2}, s{SM+2}, 0", "s_mov_b32 m0, s95", "s_nop 0",
           f"buffer_load_dwordx4 v{vPWs}, s[{SM}:{SM+3}], 0 offen lds"],
           [f"buffer_load_dwordx4 v{vPWs+1}, s[{SM}:{SM+3}], 0 offen offset:1024 lds"],
           [f"s_cmp_eq_u32 s{sC3}, 1", f"s_cselect_b32 s{SM}, s{P_CIM}, s{P_CRE}", f"s_cselect_b32 s{SM+1}, s{P_CIM+1}, s{P_CRE+1}",
            f"s_mov_b32 s{SM+2}, 819200", f"s_cmp_lt_u32 s2, 200", f"s_cselect_b32 s{SM+2}, s{SM+2}, 0",
            f"buffer_load_dwordx4 v[{PK}:{PK+3}], v{vPCs}, s[{SM}:{SM+3}], 0 offen"],
           [f"buffer_load_dwordx4 v[{PK+4}:{PK+7}], v{vPCs}, s[{SM}:{SM+3}], 0 offen offset:64"]]
    m, q = t0, t1
    wL = [f"v_and_b32 v{m}, 15, v{vL}", f"v_lshrrev_b32 v{q}, 4, v{vL}",
          f"v_lshrrev_b32 v{t2}, 2, v{m}", f"v_lshlrev_b32 v{t2}, 4, v{t2}", f"v_and_b32 v{t3}, 3, v{m}", f"v_add_u32 v{t2}, v{t2}, v{t3}",
          f"s_lshl_b32 s{sT0}, s{sRH}, 6", f"v_add_u32 v{t2}, s{sT0}, v{t2}", f"v_lshlrev_b32 v{t2}, 7, v{t2}",
          f"v_and_b32 v{t3}, 2, v{m}", f"v_lshrrev_b32 v{t4}, 3, v{m}", f"v_lshl_or_b32 v{t3}, v{t4}, 2, v{t3}",
          f"v_xor_b32 v{t3}, v{t3}, v{q}", f"v_lshl_add_u32 v{vX0}, v{t3}, 4, v{t2}", f"v_xor_b32 v{t3}, 4, v{t3}",
          f"v_lshl_add_u32 v{vX1}, v{t3}, 4, v{t2}",
          f"v_lshrrev_b32 v{t2}, 2, v{m}", f"v_lshl_add_u32 v{t2}, v{q}, 3, v{t2}", f"v_mul_u32_u24 v{t2}, 192, v{t2}",
          f"v_and_b32 v{t3}, 3, v{m}", f"v_lshl_add_u32 v{t2}, v{t3}, 3, v{t2}", f"v_and_b32 v{t3}, 1, v{q}",
          f"v_lshl_add_u32 v{vWa}, v{t3}, 5, v{t2}", f"v_xor_b32 v{t3}, 1, v{t3}", f"v_lshl_add_u32 v{vWb}, v{t3}, 5, v{t2}",
          [f"s_cmp_eq_u32 s{sCH}, 1", f"s_cselect_b64 vcc, -1, 0", f"v_cndmask_b32 v{vWc}, v{vWa}, v{vWb}, vcc"],
          f"v_add_u32 v{vWc}, 64, v{vWc}", f"s_lshl_b32 s{sT0}, s{sCH}, 7", f"v_add_u32 v{vWa}, s{sT0}, v{vWa}", f"v_add_u32 v{vWb}, s{sT0}, v{vWb}",
          f"v_and_b32 v{t2}, 1, v{m}", f"v_lshrrev_b32 v{t3}, 2, v{m}", f"v_lshl_add_u32 v{t3}, v{t3}, 1, v{t2}", f"v_xor_b32 v{t3}, v{t3}, v{q}",
          f"v_mul_u32_u24 v{t2}, 40, v{t2}", f"v_lshrrev_b32 v{t4}, 1, v{m}", f"v_add_u32 v{t2}, v{t2}, v{t4}", f"v_lshlrev_b32 v{t2}, 7, v{t2}",
          f"s_lshl_b32 s{sT0}, s{sCH}, 11", f"v_add_u32 v{t2}, s{sT0}, v{t2}", f"v_lshl_add_u32 v{vB0}, v{t3}, 4, v{t2}",
          f"v_xor_b32 v{t3}, 4, v{t3}", f"v_lshl_add_u32 v{vB1}, v{t3}, 4, v{t2}",
          f"s_lshl_b32 s{sT0}, s{sRH}, 2", f"v_add_u32 v{vSig}, s{sT0}, v{q}",
          f"v_and_b32 v{t2}, 1, v{vL}", f"v_cvt_f32_u32 v{t2}, v{t2}", f"v_fma_f32 v{vSgn}, v{t2}, 2.0, -1.0",
          f"v_lshrrev_b32 v{t2}, 2, v{m}", f"v_lshl_add_u32 v{t2}, v{q}, 2, v{t2}", f"v_lshlrev_b32 v{t2}, 6, v{t2}",
          f"v_and_b32 v{t3}, 3, v{m}", f"v_lshl_add_u32 v{t2}, v{t3}, 3, v{t2}", f"v_add_u32 v{vPtr}, s95, v{t2}",
          f"v_lshlrev_b32 v{vC}, 2, v{m}", f"s_lshl_b32 s{sT0}, s{sCH}, 7", f"v_add_u32 v{vAs}, s{sT0}, v{vC}",
          f"v_add_u32 v{vCm}, {MISC}, v{vC}", f"v_add_u32 v{vAe}, {MISC}, v{vAs}", f"v_lshl_add_u32 v{vAe}, v{vSig}, 8, v{vAe}",
          f"v_lshlrev_b32 v{vAe4}, 1, v{vSig}", f"v_add_u32 v{vAe4}, s{sCH}, v{vAe4}", f"v_lshl_add_u32 v{vAe4}, v{vAe4}, 6, v{vCm}",
          f"s_mul_i32 s{sT0}, s{sW}, 320", f"s_add_u32 s{sT0}, s{sT0}, {MISC}", f"v_add_u32 v{vRw}, s{sT0}, v{vAs}",
          f"v_lshlrev_b32 v{vWp}, 4, v{vL}", f"s_mul_i32 s{sT0}, s{sRB2}, {4*88*1024}", f"v_add_u32 v{vH}, s{sT0}, v{vWp}"]
    wL += [f"v_add_u32 v{vH+i}, {i*88*1024}, v{vH}" for i in range(1,4)]
    weave(a, wL, sm, start=0)
    stp(a, "small issued")
    for g_ in advk(sKX, sKG) + advk(sKB, sKU):
        for x in g_: a(x)
    wQ = []
    wQ += [f"s_mul_i32 s{sT0}, s{sCG}, {16*640}", f"s_add_u32 s{sT0}, s{sT0}, {WS_S}",
           f"v_mul_u32_u24 v{pa[0]}, 640, v{vSig}", f"v_lshl_add_u32 v{pa[0]}, v{vAs}, 1, v{pa[0]}", f"v_add_u32 v{pa[0]}, s{sT0}, v{pa[0]}",
           f"v_add_u32 v{pa[1]}, {8*640}, v{pa[0]}", f"v_lshlrev_b32 v{t0}, 1, v{vSig}", f"v_add_u32 v{t0}, s{sCH}, v{t0}",
           f"v_mul_u32_u24 v{pa[2]}, 640, v{t0}", f"v_lshl_add_u32 v{pa[2]}, v{vC}, 1, v{pa[2]}", f"v_add_u32 v{pa[2]}, s{sT0}, v{pa[2]}",
           f"v_add_u32 v{pa[2]}, {64*8}, v{pa[2]}", f"v_mov_b32 v{t4}, 0x7f000000", f"v_add_u32 v{t1}, 8, v{vSig}"]
    for (p_, src) in ((pa[0], vSig), (pa[1], t1), (pa[2], t0)):
        wQ += [[f"v_cmp_le_u32 vcc, s{sRB}, v{src}", "s_nop 1", f"v_cndmask_b32 v{p_}, v{p_}, v{t4}, vcc"]]
    S1 = stage_x(BUF) + stage_g(BUF) + stage_u(BUF) + stage_b(BUF)
    Z2 = 76
    wQ += [f"v_mov_b32 v{Z2+k}, 0" for k in range(4)] + ["s_nop 1"]
    wQ += [f"v_mfma_f32_32x32x16_bf16 v[{ACC+16*k}:{ACC+16*k+15}], v[{Z2}:{Z2+3}], v[{Z2}:{Z2+3}], 0" for k in range(8)]
    wQ += [f"v_mfma_f32_16x16x32_bf16 v[{ACC+128}:{ACC+131}], v[{Z2}:{Z2+3}], v[{Z2}:{Z2+3}], 0",
           f"v_mfma_f32_16x16x32_bf16 v[{ACC+132}:{ACC+135}], v[{Z2}:{Z2+3}], v[{Z2}:{Z2+3}], 0"]
    weave(a, wQ, S1, start=0)
    for g_ in advk(sKX, sKG) + advk(sKB, sKU):
        for x in g_: a(x)
    a(f"s_mov_b32 s{sDB}, {2*BUF}")
    a(f"s_mov_b32 s{sCur}, 0"); a(f"s_mov_b32 s{sD}, {BUF}"); a(f"s_mov_b32 s{sC3}, 0")
    a(f"s_mov_b32 s{sStage}, 0")
    a(f"s_mov_b32 s{sBlk}, {(1<<1)|(1<<5):#x}")
    stp(a, "S1 issued")
    a("s_waitcnt vmcnt(13)")
    a("s_barrier")
    stp(a, "S0 landed")
    def cpow_s(dr, di, A, B, n, tm, sgn):
        o = []
        if n is None:
            o += [f"v_exp_f32 v{tm}, v{A}", f"v_rndne_f32 v{dr}, v{B}", f"v_sub_f32 v{tm+1}, v{B}, v{dr}"]
        else:
            o += [f"v_mul_f32 v{tm}, {n}, v{A}", f"v_mul_f32 v{tm+1}, {n}, v{B}", f"v_exp_f32 v{tm}, v{tm}",
                  f"v_rndne_f32 v{dr}, v{tm+1}", f"v_sub_f32 v{tm+1}, v{tm+1}, v{dr}"]
        o += [f"v_cos_f32 v{dr}, v{tm+1}", f"v_sin_f32 v{di}, v{tm+1}"]
        if sgn is not None:
            o += [f"v_mul_f32 v{dr}, v{tm}, v{dr}", f"v_mul_f32 v{tm}, v{sgn}, v{tm}", f"v_mul_f32 v{di}, v{tm}, v{di}"]
        else:
            o += [f"v_mul_f32 v{dr}, v{tm}, v{dr}", f"v_mul_f32 v{di}, v{tm}, v{di}"]
        return o
    def make_Wk():
        Wk = []
        for k in range(2):
            Wk += [f"ds_read_b64_tr_b16 v[{PK+8+4*k}:{PK+9+4*k}], v{vPtr} offset:{32*k}", f"ds_read_b64_tr_b16 v[{PK+10+4*k}:{PK+11+4*k}], v{vPtr} offset:{32*k+1024}"]
        Wk += [srd(None, SM, P_WS, WS_W2 + W2_SIZE) + [f"s_cmp_lt_u32 s2, 200", f"s_cselect_b32 s{SM+2}, s{SM+2}, 0",
                f"buffer_store_dwordx4 v[{PK}:{PK+3}], v{vPCd}, s[{SM}:{SM+3}], 0 offen{SC}",
                f"buffer_store_dwordx4 v[{PK+4}:{PK+7}], v{vPCd+1}, s[{SM}:{SM+3}], 0 offen{SC}"]]
        vN = 71
        Wk += [f"v_cvt_f32_u32 v{vN}, v{vSig}", f"v_mov_b32 v{vN+1}, 0x42e00000", f"s_mov_b32 s{sT0}, 0xc1800000",
               f"v_fma_f32 v{vN}, v{vN}, s{sT0}, v{vN+1}", f"s_lshl_b32 s{sT0}, s{sCH}, 3", f"s_sub_u32 s{sT0}, 8, s{sT0}",
               f"v_cvt_f32_u32 v{vN+2}, s{sT0}", f"v_add_f32 v{vN+2}, v{vN+2}, v{vN}"]
        Wk += [["s_waitcnt lgkmcnt(0)", f"s_mov_b32 s{SM+2}, {WS_W2 + W2_SIZE}", f"s_cmp_lt_u32 s2, 240", f"s_cselect_b32 s{SM+2}, s{SM+2}, 0",
                f"buffer_store_dwordx4 v[{PK+8}:{PK+11}], v{vPWd}, s[{SM}:{SM+3}], 0 offen{SC}",
                f"buffer_store_dwordx4 v[{PK+12}:{PK+15}], v{vPWd+1}, s[{SM}:{SM+3}], 0 offen{SC}"]]
        Z = 76
        Wk += [f"v_lshlrev_b32 v{t0}, 5, v0", f"v_add_u32 v{t0}, {MISC}, v{t0}", f"ds_write_b128 v{t0}, v[{Z}:{Z+3}]", f"ds_write_b128 v{t0}, v[{Z}:{Z+3}] offset:16"]
        streams = []
        for T in range(3):
            tm = 80+2*T; dt = 86+T
            s_ = [f"v_lshlrev_b32 v{vLRE[T]}, 16, v{CL+T}", f"v_lshlrev_b32 v{vLIM[T]}, 16, v{CL+3+T}", f"v_lshlrev_b32 v{dt}, 16, v{CL+6+T}",
                  f"v_mul_f32 v{dt}, {LOG2E:#x}, v{dt}", f"v_exp_f32 v{dt}, v{dt}",
                  f"v_cvt_pk_bf16_f32 v{dt}, v{dt}, v{dt}", f"v_lshlrev_b32 v{dt}, 16, v{dt}",
                  f"v_mul_f32 v{vA[T]}, v{dt}, v{vLRE[T]}", f"v_mul_f32 v{vBx[T]}, v{dt}, v{vLIM[T]}",
                  f"v_mul_f32 v{vA[T]}, {LOG2E:#x}, v{vA[T]}", f"v_mul_f32 v{vBx[T]}, {INV2PI:#x}, v{vBx[T]}"]
            s_ += cpow_s(vLr[T], vLi[T], vA[T], vBx[T], None, tm, vSgn)
            s_ += cpow_s(vWSr[T], vWSi[T], vA[T], vBx[T], f"v{vN if T < 2 else vN+2}", tm, vSgn)
            streams.append(s_)
        Wk += [[x, y, z] for x, y, z in zip(*streams)]
        Wk += [[f"v_mov_b32 v{t0}, 0", f"global_load_dword v{vNon}, v{t0}, s[{P_DBG}:{P_DBG+1}]{SC}"]]
        return Wk

    def dma_first(sdb):
        g = [f"s_add_u32 m0, s{sdb}, s{sOX}"] + [dma(vDX+i, SX, sKX, 1024*i) for i in range(4)]
        g += [f"s_add_u32 m0, s{sdb}, s{sOG}"] + [dma(vDW+i, SG, sKG, 1024*i) for i in range(3)]
        return g
    def dma_second(sdb):
        g = [f"s_add_u32 m0, s{sdb}, s{sOU}"] + [dma(vDW+i, SU, sKU, 1024*i) for i in range(3)]
        g += [f"s_add_u32 m0, s{sdb}, s{sOB}", dma(vDB, SB0, sKB, 0), dma(vDB+1, SB1, sKB, 1024)]
        g += [f"s_add_u32 m0, s{sdb}, s{sOB2}", dma(vDB+2, SB2, sKB, 0)]
        return g
    def reads(ch, s, setb):
        vX = vX0 if s == 0 else vX1
        vB = vB0 if s == 0 else vB1
        X = [f"ds_read_b128 a[{setb+4*i}:{setb+4*i+3}], v{vX} offset:{RX+i*512}" for i in range(4)]
        def tr(n, region, k):
            vW = (vWa, vWb, vWc)[k]
            b = setb + 16 + 4*n
            o = region + 6144*s
            return [f"ds_read_b64_tr_b16 a[{b}:{b+1}], v{vW} offset:{o}", f"ds_read_b64_tr_b16 a[{b+2}:{b+3}], v{vW} offset:{o+768}"]
        def sb(n, off):
            b = setb + 16 + 4*n
            return [f"ds_read_b128 a[{b}:{b+3}], v{vB} offset:{RB+off}"]
        W = []
        for k in range(3):
            W += tr(2*k, RG, k); W += tr(2*k+1, RU, k)
        W += sb(6, 0) + sb(7, 1024) + sb(8, 4096 - 2048*ch)
        return X[:1] + W[:2] + X[1:] + W[2:]
    def mfmas(ch, setb):
        out = []
        for n in range(6):
            for i in range(4):
                d = acc(n, i)
                out.append(f"v_mfma_f32_16x16x32_bf16 v[{d}:{d+3}], a[{setb+16+4*n}:{setb+16+4*n+3}], a[{setb+4*i}:{setb+4*i+3}], v[{d}:{d+3}]")
        for n in (6, 7):
            for i in range(4):
                d = acc(n, i)
                out.append(f"v_mfma_f32_16x16x32_bf16 v[{d}:{d+3}], a[{setb+4*i}:{setb+4*i+3}], a[{setb+16+4*n}:{setb+16+4*n+3}], v[{d}:{d+3}]")
        for k in range(2):
            i = 2*ch + k
            d = S4 + 4*k
            out.append(f"v_mfma_f32_16x16x32_bf16 v[{d}:{d+3}], a[{setb+4*i}:{setb+4*i+3}], a[{setb+16+32}:{setb+16+35}], v[{d}:{d+3}]")
        return out
    def substep(ch, setb, rd, dmas, late, seq=None):
        main = mfmas(ch, setb)
        gaps = [[] for _ in range(34)]
        for i, r in enumerate(rd): gaps[i].append(r)
        loads = [x for x in dmas if "buffer_load" in x]
        nl = len(loads)
        last = 0
        if nl:
            pos = [1 + int(i*30/nl) for i in range(nl)]
            li = 0; pend = []
            for x in dmas:
                if "buffer_load" in x:
                    p = pos[li]; pp = p - 1
                    for y in reversed(pend):
                        while len(gaps[pp]) >= 2: pp -= 1
                        assert pp >= 0
                        gaps[pp].append(y)
                    pend = []
                    while len(gaps[p]) >= 2: p += 1
                    gaps[p].append(x); last = p
                    li += 1
                else: pend.append(x)
            p = last + 1
            for y in pend:
                while len(gaps[p]) >= 2: p += 1
                gaps[p].append(y)
        g = 0
        for (e, ins) in late:
            g = max(g, e)
            while len(gaps[g]) + len(ins) > 2:
                g += 1
                assert g < 34, "late overflow"
            gaps[g].extend(ins)
        if seq is not None:
            g = 0
            while seq and g < 34:
                if len(gaps[g]) + len(seq[0]) <= 2:
                    gaps[g].extend(seq.pop(0))
                g += 1
        out = []
        for i in range(34):
            out.append(main[i]); out.extend(gaps[i])
        return out
    def gate_seq():
        gw = [GLD, GLD+1, GLD+2, GLD+3, GLD+4]
        xr = [[GLD+6, GLD+7, GLD+8, GLD+9, GLD+5], [GLD+10, GLD+11, GLD+12, GLD+13, GLD+14]]
        ga = [73, 74]; u0, u1, u2, u3 = 75, 76, 77, 78
        q_ = [[f"v_mov_b32 v{ga[0]}, 0", f"v_mov_b32 v{ga[1]}, 0"]]
        for i in range(5):
            q_.append([f"v_lshlrev_b32 v{u0}, 16, v{gw[i]}", f"v_and_b32 v{u1}, 0xffff0000, v{gw[i]}"])
            for r in range(2):
                x_ = xr[r][i]
                q_ += [[f"v_lshlrev_b32 v{u2}, 16, v{x_}", f"v_and_b32 v{u3}, 0xffff0000, v{x_}"],
                       [f"v_mul_f32 v{u2}, v{u2}, v{u0}", f"v_mul_f32 v{u3}, v{u3}, v{u1}"],
                       [f"v_cvt_pk_bf16_f32 v{u2}, v{u2}, v{u3}"],
                       [f"v_and_b32 v{u3}, 0xffff0000, v{u2}", f"v_lshlrev_b32 v{u2}, 16, v{u2}"],
                       [f"v_add_f32 v{ga[r]}, v{ga[r]}, v{u2}", f"v_add_f32 v{ga[r]}, v{ga[r]}, v{u3}"]]
        for sh, rm in (("row_shr:1","0xf"),("row_shr:2","0xf"),("row_shr:4","0xf"),("row_shr:8","0xf"),("row_bcast:15","0xa"),("row_bcast:31","0xc")):
            bc = " bound_ctrl:0" if sh.startswith("row_shr") else ""
            q_.append([f"v_add_f32_dpp v{ga[r]}, v{ga[r]}, v{ga[r]} {sh} row_mask:{rm} bank_mask:0xf{bc}" for r in range(2)])
        q_ += [[f"v_readlane_b32 s{sT1}, v{ga[0]}, 63", f"v_readlane_b32 s{sT2}, v{ga[1]}, 63"],
               [f"v_cmp_eq_u32 vcc, 0, v{vL}"],
               [f"v_mov_b32 v{u3}, s{sT1}", f"v_mov_b32 v{u2}, s{sT2}"],
               [f"v_cndmask_b32 v{u2}, v{u2}, v{u3}, vcc"], [f"v_cvt_pk_bf16_f32 v{u2}, v{u2}, v{u2}"],
               [f"v_lshlrev_b32 v{u2}, 16, v{u2}", f"v_mul_f32 v{u2}, 0xbfb8aa3b, v{u2}"],
               [f"v_exp_f32 v{u2}, v{u2}"], [f"v_add_f32 v{u2}, 1.0, v{u2}"], [f"v_rcp_f32 v{u2}, v{u2}"],
               [f"v_cvt_pk_bf16_f32 v{u2}, v{u2}, v{u2}"], [f"v_lshlrev_b32 v{vGv}, 16, v{u2}", f"s_lshl_b32 s{sT1}, s94, 2"],
               [f"s_add_u32 s{sT1}, s{sT1}, {WS_G}"], [f"v_lshl_add_u32 v{vGst}, v{vL}, 2, s{sT1}"]]
        return q_
    def wbase(g, j):
        if g < 7: return 104 + 20*g + 4*j
        if g < 11: return 20*(g-7) + 4*j
        return 80 + 4*j if j < 2 else 244 + 4*(j-2)
    SW2, SH = SX, SG
    sKW, sKW4, sKH = sKX, sKG, sKU
    def wload(g, j):
        b = wbase(g, j)
        if j < 4:
            o = f" offset:{1024*j}" if j else ""
            return f"buffer_load_dwordx4 a[{b}:{b+3}], v{vWp}, s[{SW2}:{SW2+3}], s{sKW} offen{o}{SCL}"
        return f"buffer_load_dwordx4 a[{b}:{b+3}], v{vWp}, s[{SW2}:{SW2+3}], s{sKW4} offen{SCL}"
    def wstep(g, inc=5120):
        return [wload(g, j) for j in range(5)] + [f"s_add_u32 s{sKW}, s{sKW}, {inc}", f"s_add_u32 s{sKW4}, s{sKW4}, {inc}"]

    A_, B_ = 0, 52
    a(f"s_cmp_eq_u32 s{sCH}, 1")
    a(f"s_cbranch_scc1 L_pre1")
    rot0 = lambda: [(24, [f"s_mov_b32 s{sF}, s{sCur}"]), (24, [f"s_add_u32 s{sCur}, s{sCur}, s{sD}"]),
                  (24, [f"s_add_u32 s{sC3}, s{sC3}, 1"]),
                  (24, [f"s_cmp_eq_u32 s{sC3}, 3", f"s_cselect_b32 s{sC3}, 0, s{sC3}"]),
                  (24, [f"s_cmp_eq_u32 s{sC3}, 2", f"s_cselect_b32 s{sD}, {3*BUF}, 0"]),
                  (24, [f"s_sub_u32 s{sD}, {BUF}, s{sD}"])]
    n0 = stp.n
    for ch in (0, 1):
        stp.n = n0
        a.label(f"L_pre{ch}")
        for r in reads(ch, 0, A_): a(r)
        a(f"v_add_u32 v{vX0}, {BUF}, v{vX0}")
        a(f"v_add_u32 v{vB0}, {BUF}, v{vB0}")
        d1 = dma_first(sDB)
        grp = []; cur_ = []
        for x in d1:
            cur_.append(x)
            if "m0" in x.split(",")[0]: cur_.append("s_nop 0")
            if "buffer_load" in x: grp.append(cur_); cur_ = []
        grp[-1] += cur_
        weave(a, make_Wk(), grp, start=1)
        a("s_waitcnt lgkmcnt(0)")
        stp(a, "prologue")
        a(".p2align 3")
        a.label(f"L_loop{ch}")
        late0 = [(2, g_) for g_ in advk(sKX, sKG)] + [(19, [f"v_add_u32 v{r}, s{sD}, v{r}"]) for r in (vWa, vWb, vWc, vX1, vB1)] + rot0()
        for x in substep(ch, A_, reads(ch, 1, B_), dma_second(sDB), late0): a(x)
        a(f"s_waitcnt vmcnt(13) lgkmcnt(0)")
        a("s_barrier")
        if LSTAMP: a("s_memtime s[38:39]")
        late1 = [(2, g_) for g_ in advk(sKB, sKU)] + [(19, [f"v_add_u32 v{r}, s{sD}, v{r}"]) for r in (vX0, vB0)]
        late1 += [(20, [f"s_mov_b32 s{sDB}, s{sF}"])]
        late1 += [(32, [f"s_bitcmp1_b32 s{sBlk}, s{sStage}", f"s_cbranch_scc1 L_blk{ch}"])]
        body = substep(ch, B_, reads(ch, 0, A_), dma_first(sF), late1)
        for x in body:
            a(x)
            if x.startswith("s_cbranch_scc1 L_blk"): a.label(f"L_blkr{ch}")
        a(f"s_add_u32 s{sStage}, s{sStage}, 1")
        a(f"s_cmp_lt_u32 s{sStage}, 7")
        a("s_waitcnt lgkmcnt(0)")
        if LSTAMP:
            a(f"v_cmp_eq_u32 vcc, s{sStage}, v{vL}"); a(f"v_mov_b32 v79, s38"); a("s_nop 0"); a(f"v_cndmask_b32 v80, v80, v79, vcc")
        a(f"s_cbranch_scc1 L_loop{ch}")
        stp(a, "loop")
        lt = [(19, [f"v_add_u32 v{r}, {BUF}, v{r}"]) for r in (vWa, vWb, vWc, vX1, vB1)]
        lt += [(24, [x]) for x in srd(None, SW2, P_WS, W2_SIZE, add=WS_W2)[:0]]
        for x in substep(ch, A_, reads(ch, 1, B_), dma_second(sDB), lt): a(x)
        a(f"s_waitcnt vmcnt(13) lgkmcnt(0)")
        a("s_barrier")
        spin_init(a)
        a.label(f"L_pf{ch}")
        a(f"v_cmp_ne_u32 vcc, s{sNonce}, v{vPF}")
        a(f"v_cmp_ne_u32 s[{sEX}:{sEX+1}], s{sNonce}, v{vPF+1}")
        a(f"s_or_b64 vcc, vcc, s[{sEX}:{sEX+1}]")
        a(f"v_cmp_ne_u32 s[{sEX}:{sEX+1}], s{sNonce}, v{vPF+2}")
        a(f"s_or_b64 vcc, vcc, s[{sEX}:{sEX+1}]")
        a(f"v_cmp_ne_u32 s[{sEX}:{sEX+1}], s{sNonce}, v{vPF+3}")
        a(f"s_or_b64 vcc, vcc, s[{sEX}:{sEX+1}]")
        a(f"s_cmp_eq_u64 vcc, 0")
        a(f"s_cbranch_scc1 L_pfok{ch}")
        spin_guard(a, f"L_pfok{ch}")
        a(f"v_lshlrev_b32 v{t0}, 4, v{vL}")
        a(f"v_add_u32 v{t0}, {WS_PF}, v{t0}")
        a(f"global_load_dwordx4 v[{vPF}:{vPF+3}], v{t0}, s[{P_WS}:{P_WS+1}]{SC}")
        a("s_waitcnt vmcnt(0)")
        a(f"s_branch L_pf{ch}")
        a.label(f"L_pfok{ch}")
        srd(a, SW2, P_WS, W2_SIZE, add=WS_W2)
        a(f"s_mul_i32 s{sKW}, s{sCB}, 88")
        a(f"s_mul_i32 s{sT0}, s{sW}, 12")
        a(f"s_add_u32 s{sKW}, s{sKW}, s{sT0}")
        a(f"s_add_u32 s{sKW}, s{sKW}, 40")
        a(f"s_mul_i32 s{sKW}, s{sKW}, 5120")
        a(f"s_add_u32 s{sKW4}, s{sKW}, 4096")
        allw = []
        for g in range(7): allw += wstep(g)
        def take(n):
            out = []; c = 0
            while allw and (c < n or "buffer_load" not in allw[0]):
                x = allw.pop(0); out.append(x)
                if "buffer_load" in x: c += 1
            return out
        lt = [(19, [f"v_add_u32 v{r}, {(-2*BUF) & 0xffffffff:#x}, v{r}"]) for r in (vX0, vB0)]
        gq = gate_seq()
        for x in substep(ch, B_, reads(ch, 0, A_), take(8), lt, gq): a(x)
        a("s_waitcnt lgkmcnt(0)")
        lt = [(19, [f"v_add_u32 v{r}, {(-2*BUF) & 0xffffffff:#x}, v{r}"]) for r in (vWa, vWb, vWc, vX1, vB1)]
        for x in substep(ch, A_, reads(ch, 1, B_), take(8), lt, gq): a(x)
        a(f"s_waitcnt vmcnt(16) lgkmcnt(0)")
        a("s_barrier")
        for x in substep(ch, B_, reads(ch, 0, A_), take(8), [], gq): a(x)
        a("s_waitcnt lgkmcnt(0)")
        for x in substep(ch, A_, reads(ch, 1, B_), take(8), [], gq): a(x)
        a("s_waitcnt lgkmcnt(0)")
        for x in substep(ch, B_, [], take(3), [], gq): a(x)
        assert not allw and not gq, (len(allw), len(gq))
        a("s_mov_b64 exec, 3")
        a(f"global_store_dword v{vGst}, v{vGv}, s[{P_WS}:{P_WS+1}]{SC}")
        a("s_mov_b64 exec, -1")
        a(f"s_branch L_epi")
        a.label(f"L_blk{ch}")
        a(f"s_cmp_eq_u32 s{sStage}, 1")
        a(f"s_cbranch_scc1 L_b0_{ch}")
        a(f"v_lshlrev_b32 v{t0}, 4, v{vL}")
        a(f"v_add_u32 v{t0}, {WS_PF}, v{t0}")
        a(f"global_load_dwordx4 v[{vPF}:{vPF+3}], v{t0}, s[{P_WS}:{P_WS+1}]{SC}")
        a(f"s_lshl_b32 s{sT1}, s{sRB}, 7")
        a(f"s_lshl_b32 s{sT2}, s{sRH}, 6")
        a(f"s_add_u32 s{sT1}, s{sT1}, s{sT2}")
        a(f"s_lshl_b32 s{sT2}, s{sCG}, 2")
        a(f"s_add_u32 s{sT1}, s{sT1}, s{sT2}")
        a(f"s_lshl_b32 s{sT2}, s{sCH}, 1")
        a(f"s_add_u32 s94, s{sT1}, s{sT2}")
        a(f"s_mul_i32 s{sT1}, s94, 1280")
        a(f"v_lshlrev_b32 v{t0}, 2, v{vL}")
        a(f"v_add_u32 v{t1}, s{sT1}, v{vWp}")
        a(f"v_add_u32 v{t2}, s{sT1}, v{t0}")
        a(f"global_load_dwordx4 v[{GLD}:{GLD+3}], v{vWp}, s[{P_GW}:{P_GW+1}]")
        a(f"global_load_dword v{GLD+4}, v{t0}, s[{P_GW}:{P_GW+1}] offset:1024")
        a(f"global_load_dwordx4 v[{GLD+6}:{GLD+9}], v{t1}, s[{P_X}:{P_X+1}]")
        a(f"global_load_dword v{GLD+5}, v{t2}, s[{P_X}:{P_X+1}] offset:1024")
        a(f"global_load_dwordx4 v[{GLD+10}:{GLD+13}], v{t1}, s[{P_X}:{P_X+1}] offset:1280")
        a(f"global_load_dword v{GLD+14}, v{t2}, s[{P_X}:{P_X+1}] offset:2304")
        a(f"s_branch L_blkr{ch}")
        a.label(f"L_b0_{ch}")
        spin_init(a)
        a.label(f"L_np{ch}")
        a(f"v_readfirstlane_b32 s{sNonce}, v{vNon}")
        a(f"s_cmp_lg_u32 s{sNonce}, 0")
        a(f"s_cbranch_scc1 L_nok{ch}")
        spin_guard(a, f"L_nok{ch}")
        a(f"v_mov_b32 v{t0}, 0")
        a(f"global_load_dword v{vNon}, v{t0}, s[{P_DBG}:{P_DBG+1}]{SC}")
        a("s_waitcnt vmcnt(0)")
        a(f"s_branch L_np{ch}")
        a.label(f"L_nok{ch}")
        a(f"s_cmp_lg_u32 s{sW}, 0")
        a(f"s_cbranch_scc1 L_blkr{ch}")
        a(f"s_lshl_b32 s{sT1}, s2, 2")
        a(f"s_add_u32 s{sT1}, s{sT1}, {WS_PF}")
        a(f"v_mov_b32 v{t0}, s{sT1}")
        a(f"v_mov_b32 v{t1}, s{sNonce}")
        a(f"s_mov_b64 exec, 1")
        a(f"global_store_dword v{t0}, v{t1}, s[{P_WS}:{P_WS+1}]{SC}")
        a(f"s_mov_b64 exec, -1")
        a(f"s_branch L_blkr{ch}")

    a.label("L_epi")
    stp(a, "tail")
    if LSTAMP:
        a(f"s_lshl_b32 s{sT0}, s2, 2")
        a(f"s_add_u32 s{sT0}, s{sT0}, s{sW}")
        a(f"s_lshl_b32 s{sT0}, s{sT0}, 8")
        a(f"s_add_u32 s{sT0}, s{sT0}, {WS_STAMP + 0x40000}")
        a(f"v_lshl_add_u32 v79, v{vL}, 2, s{sT0}")
        a(f"global_store_dword v79, v80, s[{P_WS}:{P_WS+1}]")
    XCH = BUF
    vHo, vHo2 = 81, 82
    a(f"s_lshl_b32 s{sT0}, s{sRB}, 1")
    a(f"s_add_u32 s{sT0}, s{sT0}, s{sRH}")
    a(f"s_mul_i32 s{sT0}, s{sT0}, {4*88}")
    a(f"s_mul_i32 s{sT1}, s{sCG}, 3")
    a(f"s_add_u32 s{sT0}, s{sT0}, s{sT1}")
    a(f"s_add_u32 s{sT0}, s{sT0}, 40")
    a(f"s_lshl_b32 s{sT1}, s{sCH}, 1")
    a(f"s_add_u32 s{sT1}, s{sT1}, s{sT0}")
    a(f"s_lshl_b32 s{sT1}, s{sT1}, 10")
    a(f"s_add_u32 s{sT0}, s{sT0}, 1")
    a(f"s_mul_i32 s{sT3}, s{sCH}, {2*88}")
    a(f"s_add_u32 s{sT0}, s{sT0}, s{sT3}")
    a(f"s_lshl_b32 s{sT0}, s{sT0}, 10")
    a(f"v_add_u32 v{vHo}, s{sT1}, v{vWp}")
    a(f"v_add_u32 v{vHo2}, s{sT0}, v{vWp}")
    for i in range(4):
        G0, U0, G1, U1 = [acc(n, i) for n in range(4)]
        for (G, Uu) in ((G0, U0), (G1, U1)):
            a(f"v_pk_mul_f32 v[{G}:{G+1}], v[{G}:{G+1}], v[{Uu}:{Uu+1}]")
            a(f"v_pk_mul_f32 v[{G+2}:{G+3}], v[{G+2}:{G+3}], v[{Uu+2}:{Uu+3}]")
        a(f"v_cvt_pk_bf16_f32 v{U0}, v{G0}, v{G0+1}")
        a(f"v_cvt_pk_bf16_f32 v{U0+1}, v{G0+2}, v{G0+3}")
        a(f"v_cvt_pk_bf16_f32 v{U0+2}, v{G1}, v{G1+1}")
        a(f"v_cvt_pk_bf16_f32 v{U0+3}, v{G1+2}, v{G1+3}")
        a(f"v_add_u32 v{G0}, {i*88*1024}, v{vHo}")
        a(f"global_store_dwordx4 v{G0}, v[{U0}:{U0+3}], s[{P_WS}:{P_WS+1}]{SC}")
    for i in range(4):
        G2, U2 = acc(4, i), acc(5, i)
        a(f"v_pk_mul_f32 v[{G2}:{G2+1}], v[{G2}:{G2+1}], v[{U2}:{U2+1}]")
        a(f"v_pk_mul_f32 v[{G2+2}:{G2+3}], v[{G2+2}:{G2+3}], v[{U2+2}:{U2+3}]")
    for i in range(4):
        G2, U2 = acc(4, i), acc(5, i)
        a(f"v_cvt_pk_bf16_f32 v{U2}, v{G2}, v{G2+1}")
        a(f"v_cvt_pk_bf16_f32 v{U2+1}, v{G2+2}, v{G2+3}")
    a(f"s_lshl_b32 s{sT1}, s{sW}, 10")
    a(f"v_lshlrev_b32 v{t1}, 3, v{vL}")
    a(f"v_add_u32 v{t2}, s{sT1}, v{t1}")
    a(f"s_cmp_eq_u32 s{sCH}, 1")
    a(f"s_cbranch_scc1 L_xw1")
    a(f"ds_write_b64 v{t2}, v[{acc(5,2)}:{acc(5,2)+1}] offset:{XCH}")
    a(f"ds_write_b64 v{t2}, v[{acc(5,3)}:{acc(5,3)+1}] offset:{XCH+512}")
    a(f"s_branch L_xw2")
    a.label("L_xw1")
    a(f"ds_write_b64 v{t2}, v[{acc(5,0)}:{acc(5,0)+1}] offset:{XCH}")
    a(f"ds_write_b64 v{t2}, v[{acc(5,1)}:{acc(5,1)+1}] offset:{XCH+512}")
    a.label("L_xw2")
    stp(a, "glu1")
    U = [SA, SBt, S4]; NS = [16, 16, 8]
    eA = [56, 57, 58]; eB = [59, 60, 61]
    cur = [U[T] for T in range(3)]
    for k in range(1, 16):
        Ts = [T for T in range(3) if k < NS[T]]
        dst = eA if (k & 1) else eB
        for T in Ts: a(f"v_fma_f32 v{dst[T]}, v{vLr[T]}, v{cur[T]}, v{U[T]+k}")
        for T in Ts:
            a(f"v_fmac_f32_dpp v{dst[T]}, v{cur[T]}, v{vLi[T]} {DPPSW}")
            cur[T] = dst[T]
    ew = [62, 63, 64]; ex = [65, 66, 67]
    a(f"s_mul_i32 s{sT0}, s{sW}, 320")
    a(f"s_add_u32 s{sT0}, s{sT0}, {MISC}")
    for T in range(3): a(f"v_mul_f32 v{ew[T]}, v{vWSr[T]}, v{cur[T]}")
    for T in range(3): a(f"v_fmac_f32_dpp v{ew[T]}, v{cur[T]}, v{vWSi[T]} {DPPSW}")
    a(f"v_add_u32 v{t0}, s{sT0}, v{vC}")
    a(f"ds_write_b32 v{vAe}, v{cur[0]} offset:{EF0}")
    a(f"ds_write_b32 v{vAe}, v{cur[1]} offset:{EF0+64}")
    a(f"ds_write_b32 v{vAe4}, v{cur[2]} offset:{E40}")
    def qreduce(vals, tmps):
        for v, t in zip(vals, tmps): a(f"v_mov_b32 v{t}, v{v}")
        a("s_nop 0")
        for v, t in zip(vals, tmps): a(f"v_permlane16_swap_b32 v{v}, v{t}")
        a("s_nop 0")
        for v, t in zip(vals, tmps): a(f"v_add_f32 v{v}, v{v}, v{t}")
        for v, t in zip(vals, tmps): a(f"v_mov_b32 v{t}, v{v}")
        a("s_nop 0")
        for v, t in zip(vals, tmps): a(f"v_permlane32_swap_b32 v{v}, v{t}")
        a("s_nop 0")
        for v, t in zip(vals, tmps): a(f"v_add_f32 v{v}, v{v}, v{t}")
    qreduce(ew, ex)
    a(f"ds_write_b32 v{vRw}, v{ew[0]} offset:{SWB}")
    a(f"ds_write_b32 v{vRw}, v{ew[1]} offset:{SWB+64}")
    a(f"ds_write_b32 v{t0}, v{ew[2]} offset:{SWB+256}")
    a("s_waitcnt lgkmcnt(0)")
    a("s_barrier")
    stp(a, "passA")
    a(f"s_xor_b32 s{sT1}, s{sW}, 1")
    a(f"s_lshl_b32 s{sT1}, s{sT1}, 10")
    a(f"v_lshlrev_b32 v{t1}, 3, v{vL}")
    a(f"v_add_u32 v{t2}, s{sT1}, v{t1}")
    a(f"v_add_u32 v{t4}, {88*1024}, v{vHo2}")
    a(f"s_cmp_eq_u32 s{sCH}, 1")
    a(f"s_cbranch_scc1 L_xr1")
    for k in range(2):
        a(f"ds_read_b64 v[{acc(5,k)+2}:{acc(5,k)+3}], v{t2} offset:{XCH+512*k}")
    a("s_waitcnt lgkmcnt(0)")
    a(f"global_store_dwordx4 v{vHo2}, v[{acc(5,0)}:{acc(5,0)+3}], s[{P_WS}:{P_WS+1}]{SC}")
    a(f"global_store_dwordx4 v{t4}, v[{acc(5,1)}:{acc(5,1)+3}], s[{P_WS}:{P_WS+1}]{SC}")
    a(f"s_branch L_xr2")
    a.label("L_xr1")
    for k in range(2):
        a(f"ds_read_b64 v[{acc(4,2+k)}:{acc(4,2+k)+1}], v{t2} offset:{XCH+512*k}")
        a(f"v_mov_b32 v{acc(4,2+k)+2}, v{acc(5,2+k)}")
        a(f"v_mov_b32 v{acc(4,2+k)+3}, v{acc(5,2+k)+1}")
    a("s_waitcnt lgkmcnt(0)")
    a(f"global_store_dwordx4 v{vHo2}, v[{acc(4,2)}:{acc(4,2)+3}], s[{P_WS}:{P_WS+1}]{SC}")
    a(f"global_store_dwordx4 v{t4}, v[{acc(4,3)}:{acc(4,3)+3}], s[{P_WS}:{P_WS+1}]{SC}")
    a.label("L_xr2")
    a(f"s_cmp_lg_u32 s{sW}, 0")
    a(f"s_cbranch_scc1 L_nopub")
    PB = 68
    a(f"v_lshlrev_b32 v{t0}, 3, v{vL}")
    a(f"v_add_u32 v{t0}, {MISC}, v{t0}")
    for w in range(4): a(f"ds_read_b64 v[{PB+2*w}:{PB+2*w+1}], v{t0} offset:{SWB+320*w}")
    a(f"s_lshl_b32 s{sT0}, s{sCG}, 4")
    a(f"s_add_u32 s{sT0}, s{sT0}, s{sRB}")
    a(f"s_mul_i32 s{sT0}, s{sT0}, 640")
    a(f"s_add_u32 s{sT0}, s{sT0}, {WS_S}")
    a(f"v_lshlrev_b32 v{t0}, 4, v{vL}")
    a(f"v_add_u32 v{t0}, s{sT0}, v{t0}")
    a(f"v_mov_b32 v{PB+9}, s{sNonce}")
    a(f"v_mov_b32 v{PB+11}, s{sNonce}")
    a(f"v_cmp_gt_u32 vcc, 40, v{vL}")
    a("s_waitcnt lgkmcnt(0)")
    a(f"v_pk_add_f32 v[{PB}:{PB+1}], v[{PB}:{PB+1}], v[{PB+2}:{PB+3}]")
    a(f"v_pk_add_f32 v[{PB+4}:{PB+5}], v[{PB+4}:{PB+5}], v[{PB+6}:{PB+7}]")
    a(f"v_pk_add_f32 v[{PB}:{PB+1}], v[{PB}:{PB+1}], v[{PB+4}:{PB+5}]")
    a(f"s_and_saveexec_b64 s[{sEX}:{sEX+1}], vcc")
    a(f"v_mov_b32 v{PB+8}, v{PB}")
    a(f"v_mov_b32 v{PB+10}, v{PB+1}")
    a(f"global_store_dwordx4 v{t0}, v[{PB+8}:{PB+11}], s[{P_WS}:{P_WS+1}]{SC}")
    a(f"s_mov_b64 exec, s[{sEX}:{sEX+1}]")
    a.label("L_nopub")
    stp(a, "pub")
    pre = []
    for g in range(7, 12):
        ws_ = wstep(g)
        pre += [[x] for x in ws_[:4]] + [[ws_[4], ws_[5], ws_[6]]]
    X = ACC
    vMr = [X, X+1, X+2]; vMi = [X+3, X+4, X+5]
    vC2r = [X+6, X+7, X+8]; vC2i = [X+9, X+10, X+11]
    vHr = [X+12, X+13, X+14]; vHi = [X+15, X+16, X+17]
    vW0r = [X+18, X+19, X+20]; vW0i = [X+21, X+22, X+23]
    vW1r = [X+24, X+25]; vW1i = [X+26, X+27]
    vLi2 = [X+28, X+29, X+30]
    nOff, nW0, nW1, nOff4, nW4 = X+32, X+33, X+34, X+35, X+36
    vm0, vm1, vm4 = X+37, X+38, X+39
    W = []
    W += [f"v_cvt_f32_u32 v{nOff}, v{vSig}", f"v_mul_f32 v{nOff}, 0x41800000, v{nOff}", f"s_lshl_b32 s{sT0}, s{sCH}, 3",
          f"v_cvt_f32_u32 v{nOff4}, s{sT0}", f"v_add_f32 v{nOff4}, v{nOff4}, v{nOff}",
          f"s_sub_u32 s{sT0}, s{sRB}, 1", f"v_sub_u32 v{t0}, s{sT0}, v{vSig}", f"v_subrev_u32 v{t1}, 8, v{t0}",
          f"v_sub_u32 v{t2}, v{t0}, v{vSig}", f"v_subrev_u32 v{t2}, s{sCH}, v{t2}"]
    for (n_, mreg, src) in ((nW0, vm0, t0), (nW1, vm1, t1), (nW4, vm4, t2)):
        W += [[f"v_cmp_le_i32 vcc, 0, v{src}", f"v_max_i32 v{n_}, 0, v{src}", f"v_cvt_f32_i32 v{n_}, v{n_}",
               f"v_cndmask_b32 v{mreg}, 0, 1.0, vcc"], f"v_mul_f32 v{n_}, 0x43000000, v{n_}"]
    W += [f"v_mov_b32 v{X+40}, 0x41800000", f"v_mov_b32 v{X+41}, 0x41000000"]
    streams = []
    for T in range(3):
        tm = X+44+6*T
        pr, pi, cr, ci = tm+2, tm+3, tm+4, tm+5
        s_ = cpow_s(vMr[T], vMi[T], vA[T], vBx[T], f"v{X+40 if T < 2 else X+41}", tm, vSgn)
        s_ += [f"v_mul_f32 v{pi}, v{vSgn}, v{vLi[T]}", f"v_add_f32 v{pr}, -1.0, v{vLr[T]}",
               f"v_mul_f32 v{tm}, v{vLRE[T]}, v{vLRE[T]}", f"v_fmac_f32 v{tm}, v{vLIM[T]}, v{vLIM[T]}", f"v_rcp_f32 v{tm}, v{tm}",
               f"v_mul_f32 v{cr}, v{pr}, v{vLRE[T]}", f"v_fmac_f32 v{cr}, v{pi}, v{vLIM[T]}",
               f"v_mul_f32 v{ci}, v{pi}, v{vLRE[T]}", f"v_fma_f32 v{ci}, -v{pr}, v{vLIM[T]}, v{ci}",
               f"v_add_f32 v{tm}, v{tm}, v{tm}", f"v_mul_f32 v{cr}, v{tm}, v{cr}", f"v_mul_f32 v{ci}, v{tm}, v{ci}",
               f"v_mul_f32_e64 v{vC2r[T]}, -v{vSgn}, v{cr}", f"v_sub_f32 v{vC2i[T]}, 0, v{ci}", f"v_sub_f32 v{vLi2[T]}, 0, v{vLi[T]}"]
        s_ += cpow_s(pr, pi, vA[T], vBx[T], f"v{nOff if T < 2 else nOff4}", tm, None)
        s_ += [f"v_mul_f32 v{vHr[T]}, v{cr}, v{pr}", f"v_fma_f32 v{vHr[T]}, -v{ci}, v{pi}, v{vHr[T]}",
               f"v_mul_f32 v{vHi[T]}, v{cr}, v{pi}", f"v_fmac_f32 v{vHi[T]}, v{ci}, v{pr}",
               f"v_mul_f32_e64 v{vHr[T]}, -v{vSgn}, v{vHr[T]}", f"v_sub_f32 v{vHi[T]}, 0, v{vHi[T]}"]
        s_ += cpow_s(vW0r[T], vW0i[T], vA[T], vBx[T], f"v{nW0 if T < 2 else nW4}", tm, vSgn)
        mk = vm0 if T < 2 else vm4
        s_ += [f"v_mul_f32 v{vW0r[T]}, v{mk}, v{vW0r[T]}", f"v_mul_f32 v{vW0i[T]}, v{mk}, v{vW0i[T]}"]
        if T < 2:
            s_ += cpow_s(vW1r[T], vW1i[T], vA[T], vBx[T], f"v{nW1}", tm, vSgn)
            s_ += [f"v_mul_f32 v{vW1r[T]}, v{vm1}, v{vW1r[T]}", f"v_mul_f32 v{vW1i[T]}, v{vm1}, v{vW1i[T]}"]
        streams.append(s_)
    W += rr(*streams)
    for x in W:
        if isinstance(x, str): a(x)
        else:
            for y in x: a(y)
    stp(a, "consts2")
    a("s_waitcnt vmcnt(0)")
    vFo = 18
    a(f"s_lshl_b32 s{sT0}, s{sRB}, 1")
    a(f"s_add_u32 s{sT0}, s{sT0}, s{sRH}")
    a(f"s_lshl_b32 s{sT0}, s{sT0}, 4")
    a(f"s_add_u32 s{sT0}, s{sT0}, s{sCG}")
    a(f"s_lshl_b32 s{sT0}, s{sT0}, 1")
    a(f"s_add_u32 s{sT0}, s{sT0}, s{sCH}")
    a(f"s_lshl_b32 s{sT0}, s{sT0}, 2")
    a(f"s_add_u32 s{sT0}, s{sT0}, {WS_FB}")
    a(f"v_mov_b32 v{vFo}, s{sT0}")
    a(f"v_mov_b32 v{t0}, s{sNonce}")
    a(f"s_mov_b64 exec, 1")
    a(f"global_store_dword v{vFo}, v{t0}, s[{P_WS}:{P_WS+1}]{SC}")
    a(f"s_mov_b64 exec, -1")
    stp(a, "flagB")


    PE = X+64
    W = [f"v_subrev_u32 v{t0}, 256, v{vAe}"]
    for T in range(2):
        for k in range(7): W.append(f"ds_read_b32 v{PE+7*T+k}, v{t0} offset:{EF0 + 64*T - 256*k}")
    W.append(f"v_subrev_u32 v{t1}, 64, v{vAe4}")
    for k in range(15): W.append(f"ds_read_b32 v{PE+14+k}, v{t1} offset:{E40 - 64*k}")
    tu = [56, 57, 58]
    for k in range(16):
        Ts = [T for T in range(3) if k < NS[T]]
        for T in Ts: W.append(f"v_mul_f32 v{tu[T]}, v{vC2r[T]}, v{U[T]+k}")
        for T in Ts: W.append(f"v_fmac_f32_dpp v{tu[T]}, v{U[T]+k}, v{vC2i[T]} {DPPSW}")
        for T in Ts: W.append(f"v_mov_b32 v{U[T]+k}, v{tu[T]}")
    W.append("s_waitcnt lgkmcnt(0)")
    Pc = [PE+6, PE+13, PE+14+14]
    Pt = [[59, 60], [61, 62], [63, 64]]
    nch = [7, 7, 15]; base = [PE, PE+7, PE+14]
    for stepk in range(1, 15):
        Ts = [T for T in range(3) if stepk < nch[T]]
        dst = {T: Pt[T][stepk & 1] for T in Ts}
        grp = []
        for T in Ts: grp.append(f"v_fma_f32 v{dst[T]}, v{vMr[T]}, v{Pc[T]}, v{base[T] + nch[T]-1-stepk}")
        if len(Ts) == 1: grp.append("s_nop 0")
        for T in Ts:
            grp.append(f"v_fmac_f32_dpp v{dst[T]}, v{Pc[T]}, v{vMi[T]} {DPPSW}")
            Pc[T] = dst[T]
        if len(Ts) == 1: grp.append("s_nop 0")
        W += grp
    W.append("s_nop 1")
    for T in range(3): W.append(f"v_mul_f32 v{Ps[T]}, v{vC2r[T]}, v{Pc[T]}")
    for T in range(3): W.append(f"v_fmac_f32_dpp v{Ps[T]}, v{Pc[T]}, v{vC2i[T]} {DPPSW}")
    W += [f"v_mov_b32 v7, v{vAs}", f"v_mov_b32 v8, v{vCm}",
          f"v_and_b32 v{t0}, 15, v{vL}", f"v_lshrrev_b32 v{t1}, 2, v{t0}", f"v_lshlrev_b32 v{t1}, 1, v{t1}", f"v_add_u32 v{t1}, s{sCH}, v{t1}",
          f"v_mul_u32_u24 v{t1}, {HTS}, v{t1}", f"v_and_b32 v{t2}, 3, v{t0}", f"v_lshlrev_b32 v{t2}, 2, v{t2}", f"v_lshrrev_b32 v{t3}, 4, v{vL}",
          f"v_add_u32 v{t2}, v{t2}, v{t3}", f"s_lshl_b32 s{sT0}, s{sRH}, 4", f"v_add_u32 v{t2}, s{sT0}, v{t2}",
          f"v_lshl_add_u32 v{RA}, v{t2}, 3, v{t1}",
          f"s_lshl_b32 s{sT0}, s{sRB}, 1", f"s_add_u32 s{sT0}, s{sT0}, s{sRH}", f"s_lshl_b32 s{sT0}, s{sT0}, 2",
          f"v_add_u32 v{t3}, s{sT0}, v{t3}", f"v_mul_u32_u24 v{t3}, 88, v{t3}", f"s_mul_i32 s{sT0}, s{sCH}, 20",
          f"v_add_u32 v{t3}, s{sT0}, v{t3}", f"v_lshlrev_b32 v{t3}, 10, v{t3}", f"v_lshl_add_u32 v{GA}, v{t0}, 4, v{t3}"]
    NPF = 16
    weave(a, W, pre[:NPF], start=0)
    stp(a, "prefix")
    Hp = [65, 66, 67]; hx = [56, 57, 58]; bad = 68
    vFl = 24
    a(f"s_lshl_b32 s{sT0}, s{sRB2}, 7")
    a(f"s_lshl_b32 s{sT1}, s{sW}, 5")
    a(f"s_add_u32 s{sT0}, s{sT0}, s{sT1}")
    a(f"v_and_b32 v{vFl}, 7, v{vL}")
    a(f"v_lshlrev_b32 v{vFl}, 2, v{vFl}")
    a(f"v_add_u32 v{vFl}, s{sT0}, v{vFl}")
    a(f"v_add_u32 v{vFl}, {WS_FB}, v{vFl}")
    srd(a, SH, P_WS, WS_G)
    srd(a, SM, P_WS, WS_S + 256*640)
    R = X+64
    FBV = X+74
    def poll_loads():
        a(f"buffer_load_dwordx2 v[{R}:{R+1}], v{pa[0]}, s[{SM}:{SM+3}], 0 offen{SC}")
        a(f"buffer_load_dwordx2 v[{R+2}:{R+3}], v{pa[0]}, s[{SM}:{SM+3}], 0 offen offset:128{SC}")
        a(f"buffer_load_dwordx2 v[{R+4}:{R+5}], v{pa[1]}, s[{SM}:{SM+3}], 0 offen{SC}")
        a(f"buffer_load_dwordx2 v[{R+6}:{R+7}], v{pa[1]}, s[{SM}:{SM+3}], 0 offen offset:128{SC}")
        a(f"buffer_load_dwordx2 v[{R+8}:{R+9}], v{pa[2]}, s[{SM}:{SM+3}], 0 offen{SC}")
        a(f"global_load_dword v{FBV}, v{vFl}, s[{P_WS}:{P_WS+1}]{SC}")
    poll_loads()
    NW0 = 5
    for it in pre[NPF:]:
        for x in it: a(x)
    a(f"s_waitcnt vmcnt({len(pre)-NPF})")
    spin_init(a)
    a(f"s_branch L_pollc")
    a.label("L_poll")
    spin_guard(a, "L_pollx")
    poll_loads()
    a("s_waitcnt vmcnt(0)")
    a.label("L_pollc")
    a(f"v_mov_b32 v{bad}, 0")
    for (ri, mreg) in ((R+1, vm0), (R+3, vm0), (R+5, vm1), (R+7, vm1), (R+9, vm4)):
        a(f"v_cmp_ne_u32 vcc, s{sNonce}, v{ri}")
        a("s_nop 1")
        a(f"v_cndmask_b32 v{t0}, 0, v{mreg}, vcc")
        a(f"v_or_b32 v{bad}, v{bad}, v{t0}")
    a(f"v_cmp_ne_u32 vcc, 0, v{bad}")
    a("s_nop 4")
    a("s_cbranch_vccnz L_poll")
    a.label("L_pollx")
    for (T, ri) in ((0, R), (1, R+2), (2, R+8)): a(f"v_mul_f32 v{Hp[T]}, v{vW0r[T]}, v{ri}")
    for (T, ri) in ((0, R), (1, R+2), (2, R+8)): a(f"v_fmac_f32_dpp v{Hp[T]}, v{ri}, v{vW0i[T]} {DPPSW}")
    for (T, ri) in ((0, R+4), (1, R+6)): a(f"v_fmac_f32 v{Hp[T]}, v{vW1r[T]}, v{ri}")
    for (T, ri) in ((0, R+4), (1, R+6)): a(f"v_fmac_f32_dpp v{Hp[T]}, v{ri}, v{vW1i[T]} {DPPSW}")
    qreduce(Hp, hx)
    a(f"s_mul_i32 s{sT0}, s{sW}, 320")
    a(f"s_add_u32 s{sT0}, s{sT0}, {MISC}")
    a(f"v_add_u32 v{t0}, s{sT0}, v{vC}")
    a(f"ds_write_b32 v{vRw}, v{Hp[0]} offset:{RWB}")
    a(f"ds_write_b32 v{vRw}, v{Hp[1]} offset:{RWB+64}")
    a(f"ds_write_b32 v{t0}, v{Hp[2]} offset:{RWB+256}")
    stp(a, "poll")
    spin_init(a)
    a.label("L_fbpoll")
    a(f"v_cmp_ne_u32 vcc, s{sNonce}, v{FBV}")
    a("s_nop 4")
    a("s_cbranch_vccz L_fbx")
    spin_guard(a, "L_fbx")
    a(f"global_load_dword v{FBV}, v{vFl}, s[{P_WS}:{P_WS+1}]{SC}")
    a("s_waitcnt vmcnt(0)")
    a("s_branch L_fbpoll")
    a.label("L_fbx")
    stp(a, "flagB seen")
    slots = [52, 68, 84, "a88", 100]
    def hreg(slot, i):
        sl = slots[slot]
        if isinstance(sl, str): return f"a[{88+4*i}:{91+4*i}]"
        return f"v[{sl+4*i}:{sl+4*i+3}]"
    def hloads(g):
        return [f"buffer_load_dwordx4 {hreg(g % 5, i)}, v{vH+i}, s[{SH}:{SH+3}], s{sKH} offen{SCL}" for i in range(4)]
    a(f"s_mul_i32 s{sKH}, s{sW}, 12")
    a(f"s_add_u32 s{sKH}, s{sKH}, 40")
    a(f"s_lshl_b32 s{sKH}, s{sKH}, 10")
    a("s_waitcnt lgkmcnt(0)")
    early = []
    for g in range(5):
        hl = hloads(g)
        early += [[x] for x in hl[:3]] + [[hl[3], f"s_add_u32 s{sKH}, s{sKH}, 1024"]]
    sOff = [73, 74, 75, 76, 77]
    for it in range(5):
        a(f"s_mul_i32 s{sT0}, s{sCG}, 5")
        a(f"s_add_u32 s{sT0}, s{sT0}, {it}")
        a(f"s_lshr_b32 s{sT1}, s{sT0}, 2")
        a(f"s_lshl_b32 s{sT1}, s{sT1}, 10")
        a(f"s_and_b32 s{sT0}, s{sT0}, 3")
        a(f"s_lshl_b32 s{sT0}, s{sT0}, 8")
        a(f"s_add_u32 s{sOff[it]}, s{sT0}, s{sT1}")
    for it in early[:4]:
        for x in it: a(x)
    early = early[4:]
    a("s_barrier")
    Hw = [X+48, X+49, X+50]
    a(f"s_mul_i32 s{sT0}, s{sCH}, 320")
    a(f"s_add_u32 s{sT0}, s{sT0}, {MISC}")
    a(f"v_add_u32 v{t0}, s{sT0}, v{vAs2}")
    hr = [X+40, X+41, X+42, X+43, X+44, X+45, X+46, X+47]
    a(f"ds_read_b32 v{hr[0]}, v{t0} offset:{RWB}")
    a(f"ds_read_b32 v{hr[1]}, v{t0} offset:{RWB+640}")
    a(f"ds_read_b32 v{hr[2]}, v{t0} offset:{RWB+64}")
    a(f"ds_read_b32 v{hr[3]}, v{t0} offset:{RWB+704}")
    for w in range(4): a(f"ds_read_b32 v{hr[4+w]}, v{vCm2} offset:{RWB+256+320*w}")
    a("s_waitcnt lgkmcnt(0)")
    W = [f"v_add_f32 v{Hw[0]}, v{hr[0]}, v{hr[1]}", f"v_add_f32 v{Hw[1]}, v{hr[2]}, v{hr[3]}", f"v_add_f32 v{hr[4]}, v{hr[4]}, v{hr[5]}",
         f"v_add_f32 v{hr[6]}, v{hr[6]}, v{hr[7]}", f"v_add_f32 v{Hw[2]}, v{hr[4]}, v{hr[6]}"]
    for T in range(3): W.append(f"v_fmac_f32 v{Ps[T]}, v{vHr[T]}, v{Hw[T]}")
    W.append("s_nop 0")
    for T in range(3): W.append(f"v_fmac_f32_dpp v{Ps[T]}, v{Hw[T]}, v{vHi[T]} {DPPSW}")
    cur = list(Ps)
    W.append("s_nop 0")
    for k in range(16):
        Ts = [T for T in range(3) if k < NS[T]]
        for T in Ts: W.append(f"v_fmac_f32 v{U[T]+k}, v{vLr[T]}, v{cur[T]}")
        for T in Ts:
            W.append(f"v_fmac_f32_dpp v{U[T]+k}, v{cur[T]}, v{vLi2[T]} {DPPSW}")
            cur[T] = U[T]+k
    for T in range(3):
        for k in range(NS[T]//2):
            W.append(f"v_cvt_pk_bf16_f32 v{X + 16*T + k}, v{U[T]+2*k}, v{U[T]+2*k+1}")
    W += [f"v_and_b32 v{t0}, 15, v{vL}", f"s_lshl_b32 s{sT0}, s{sCH}, 5", f"v_add_u32 v{t1}, s{sT0}, v{t0}",
          f"v_mul_u32_u24 v{t1}, {HTS}, v{t1}", f"v_lshl_add_u32 v{t1}, v{vSig}, 5, v{t1}",
          f"v_add_u32 v{t0}, 64, v{t0}", f"v_mul_u32_u24 v{t0}, {HTS}, v{t0}", f"v_lshl_add_u32 v{t0}, v{vSig}, 5, v{t0}",
          f"s_lshl_b32 s{sT0}, s{sCH}, 4", f"v_add_u32 v{t0}, s{sT0}, v{t0}"]
    weave(a, W, early, start=6)
    stp(a, "passB")
    a(f"ds_write_b128 v{t1}, v[{X}:{X+3}]")
    a(f"ds_write_b128 v{t1}, v[{X+4}:{X+7}] offset:16")
    a(f"ds_write_b128 v{t1}, v[{X+16}:{X+19}] offset:{16*HTS}")
    a(f"ds_write_b128 v{t1}, v[{X+20}:{X+23}] offset:{16*HTS+16}")
    a(f"ds_write_b128 v{t0}, v[{X+32}:{X+35}]")
    a("s_waitcnt lgkmcnt(0)")
    a("s_barrier")
    DT = X+64
    for it in range(5):
        a(f"ds_read_b64_tr_b16 v[{DT+4*it}:{DT+4*it+1}], v{RA} offset:{it*16*HTS}")
        a(f"ds_read_b64_tr_b16 v[{DT+4*it+2}:{DT+4*it+3}], v{RA} offset:{it*16*HTS+8*HTS}")
    for it in range(5):
        a(f"s_waitcnt lgkmcnt({2*(4-it)})")
        a(f"buffer_store_dwordx4 v[{DT+4*it}:{DT+4*it+3}], v{GA}, s[{SH}:{SH+3}], s{sOff[it]} offen{SC}")
    stp(a, "hA stored")
    accB = lambda j, i: 120 + (j*4+i)*4
    def accA(j, i):
        t = j*4+i
        return 200 + 4*t if t < 14 else 26 + 4*(t-14)
    def wreg(g, j): b = wbase(g, j); return f"a[{b}:{b+3}]"
    fifo = [("h", g) for g in range(5) for _ in range(4)] + [("st", 0)]*5
    def issue(x, tag):
        a(x); fifo.append(tag)
    def wait_for(pred):
        idx = [i for i, tg in enumerate(fifo) if pred(tg)]
        if not idx: return
        n = len(fifo) - 1 - max(idx)
        assert n <= 63, n
        a(f"s_waitcnt vmcnt({n})")
        del fifo[:max(idx)+1]
    sKS, sKS4 = 85, 86
    a(f"s_mul_i32 s{sKS}, s{sCB}, 88")
    a(f"s_mul_i32 s{sT0}, s{sW}, 5")
    a(f"s_add_u32 s{sKS}, s{sKS}, s{sT0}")
    a(f"s_mul_i32 s{sKS}, s{sKS}, 5120")
    a(f"s_add_u32 s{sKS4}, s{sKS}, 4096")
    wq = []
    for g in range(7+NW0, 12):
        st_ = wstep(g)
        for j in range(5): wq.append((("wg", g), 0, st_[j], st_[5:] if j == 4 else []))
    for sidx in range(10):
        for j in range(5):
            x = wload(sidx, j).replace(f"s{sKW} offen", f"s{sKS} offen").replace(f"s{sKW4} offen", f"s{sKS4} offen")
            inc = (20-4)*5120 if sidx == 4 else 5120
            wq.append((("w", sidx), sidx, x, [f"s_add_u32 s{sKS}, s{sKS}, {inc}", f"s_add_u32 s{sKS4}, s{sKS4}, {inc}"] if j == 4 else []))
    RATE = 3
    LA, OA = 2, 7
    vG = [12, 14, 16, 22]
    vLW = 25
    XR, GR, DR = 84, 94, 100
    RS = 336; RED = 64*RS
    fill = []
    for i in range(5):
        w1, w2, w3 = t0, t1, t3
        fill += [f"v_add_u32 v{w1}, {256*i}, v0", f"v_mul_u32_u24 v{w2}, 3277, v{w1}", f"v_lshrrev_b32 v{w2}, 16, v{w2}",
                 f"v_mul_u32_u24 v{w3}, 20, v{w2}", f"v_sub_u32 v{w3}, v{w1}, v{w3}", f"v_mul_u32_u24 v{LA+i}, {RS}, v{w2}",
                 f"v_lshl_add_u32 v{LA+i}, v{w3}, 4, v{LA+i}", f"s_lshl_b32 s{sT0}, s{sRB2}, 6", f"v_add_u32 v{w2}, s{sT0}, v{w2}",
                 f"v_mul_u32_u24 v{w2}, 640, v{w2}", f"s_mul_i32 s{sT1}, s{sCB}, 80", f"v_lshl_add_u32 v{w3}, v{w3}, 2, s{sT1}",
                 f"v_add_u32 v{w2}, v{w2}, v{w3}", f"v_lshlrev_b32 v{OA+i}, 2, v{w2}"]
    fill += [f"v_and_b32 v{t0}, 15, v{vL}", f"v_lshrrev_b32 v{t1}, 2, v{t0}", f"v_lshlrev_b32 v{t1}, 4, v{t1}", f"v_and_b32 v{t0}, 3, v{t0}",
             f"v_add_u32 v{t0}, v{t0}, v{t1}", f"s_lshl_b32 s{sT0}, s{sRB2}, 6", f"v_add_u32 v{t1}, s{sT0}, v{t0}",
             f"v_lshlrev_b32 v{t1}, 2, v{t1}", f"v_add_u32 v50, {WS_G}, v{t1}",
             f"v_mul_u32_u24 v{t0}, {RS}, v{t0}", f"v_lshrrev_b32 v{t3}, 4, v{vL}", f"v_lshl_add_u32 v{t0}, v{t3}, 4, v{t0}",
             f"s_mul_i32 s{sT0}, s{sW}, {RED}", f"v_add_u32 v{vLW}, s{sT0}, v{t0}"]
    for g in range(22):
        glu = g < 12
        slot = g % 5
        wg = g if glu else g-12
        wait_for(lambda tg: tg == ("h", g) or (not glu and tg == ("w", g-12)) or (glu and tg == ("wg", g)))
        if "kstamp" in FLAGS:
            if g > 0:
                a("s_waitcnt lgkmcnt(0)"); a(f"v_writelane_b32 v23, s38, {g-1}")
            a("s_memtime s[38:39]")
        if g == 3:
            wait_for(lambda tg: tg[0] == "st")
            a(f"v_add_u32 v{t0}, {WS_FA-WS_FB}, v{vFo}")
            a(f"v_mov_b32 v{t1}, s{sNonce}")
            a(f"s_mov_b64 exec, 1")
            issue(f"global_store_dword v{t0}, v{t1}, s[{P_WS}:{P_WS+1}]{SC}", ("fa", 0))
            a(f"s_mov_b64 exec, -1")
        if g == 5:
            a(f"v_add_u32 v{vFl}, {WS_FA-WS_FB}, v{vFl}")
            issue(f"global_load_dword v{t2}, v{vFl}, s[{P_WS}:{P_WS+1}]{SC}", ("fp", 0))
        if g == 7:
            wait_for(lambda tg: tg[0] == "fp")
            spin_init(a)
            a.label("L_fachk")
            a(f"v_cmp_ne_u32 vcc, s{sNonce}, v{t2}")
            a("s_nop 4")
            a("s_cbranch_vccz L_faok")
            spin_guard(a, "L_faok")
            a(f"global_load_dword v{t2}, v{vFl}, s[{P_WS}:{P_WS+1}]{SC}")
            a("s_waitcnt vmcnt(0)")
            a("s_branch L_fachk")
            a.label("L_faok")
        if g == 15:
            a("s_barrier")
            for i in range(4): issue(f"global_load_dword v{vG[i]}, v50, s[{P_WS}:{P_WS+1}] offset:{16*i}{SC}", ("g", 0))
        mf = []
        for j in range(5):
            for i in range(4):
                d = accB(j, i) if glu else accA(j, i)
                c = "0" if g in (0, 12) else f"v[{d}:{d+3}]"
                mf.append(f"v_mfma_f32_16x16x32_bf16 v[{d}:{d+3}], {wreg(wg, j)}, {hreg(slot, i)}, {c}")
        nw = 0
        for idx, x in enumerate(mf):
            a(x)
            if idx % 4 == 1 and nw < RATE and wq and wq[0][1] < g:
                tg, e_, ins, post = wq.pop(0); issue(ins, tg); nw += 1
                for y in post: a(y)
            elif g >= 8 and fill and idx % 4 != 1: a(fill.pop(0))
        while nw < RATE and wq and wq[0][1] <= g:
            tg, e_, ins, post = wq.pop(0); issue(ins, tg); nw += 1
            for y in post: a(y)
        gn = g + 5
        if gn < 22:
            if gn == 12: a(f"s_mul_i32 s{sKH}, s{sW}, {5*1024}")
            elif gn == 17: a(f"s_add_u32 s{sKH}, s{sKH}, {15*1024}")
            for x in hloads(gn): issue(x, ("h", gn))
            a(f"s_add_u32 s{sKH}, s{sKH}, 1024")
        if g == 17:
            for i in range(5):
                a(f"v_lshrrev_b32 v{t0}, 1, v{OA+i}")
                issue(f"global_load_dwordx2 v[{XR+2*i}:{XR+2*i+1}], v{t0}, s[{P_X}:{P_X+1}]", ("f", 0))
            for i in range(5):
                a(f"v_mul_u32_u24 v{t1}, 49933, v{LA+i}")
                a(f"v_lshrrev_b32 v{t1}, 24, v{t1}")
                a(f"s_lshl_b32 s{sT0}, s{sRB2}, 6")
                a(f"v_add_u32 v{t1}, s{sT0}, v{t1}")
                a(f"v_lshlrev_b32 v{t1}, 2, v{t1}")
                a(f"v_add_u32 v{t1}, {WS_G}, v{t1}")
                issue(f"global_load_dword v{GR+i}, v{t1}, s[{P_WS}:{P_WS+1}]{SC}", ("f", 0))
        if g == 19:
            for i in range(5):
                a(f"v_mul_u32_u24 v{t1}, 49933, v{LA+i}")
                a(f"v_lshrrev_b32 v{t1}, 24, v{t1}")
                a(f"v_mul_u32_u24 v{t1}, {RS}, v{t1}")
                a(f"v_sub_u32 v{t1}, v{LA+i}, v{t1}")
                a(f"v_lshrrev_b32 v{t1}, 1, v{t1}")
                a(f"s_mul_i32 s{sT1}, s{sCB}, 160")
                a(f"v_add_u32 v{t1}, s{sT1}, v{t1}")
                issue(f"global_load_dwordx2 v[{DR+2*i}:{DR+2*i+1}], v{t1}, s[{P_DSK}:{P_DSK+1}]", ("f", 0))
    assert not fill and not wq, (len(fill), len(wq))
    if "kstamp" in FLAGS:
        a("s_waitcnt lgkmcnt(0)"); a(f"v_writelane_b32 v23, s38, 21")
        a("s_memtime s[38:39]"); a("s_waitcnt lgkmcnt(0)"); a(f"v_writelane_b32 v23, s38, 22")
        a(f"s_lshl_b32 s{sT0}, s2, 2"); a(f"s_add_u32 s{sT0}, s{sT0}, s{sW}"); a(f"s_lshl_b32 s{sT0}, s{sT0}, 8")
        a(f"s_add_u32 s{sT0}, s{sT0}, {WS_STAMP + 0x80000}")
        a(f"v_lshl_add_u32 v{t0}, v{vL}, 2, s{sT0}")
        a(f"global_store_dword v{t0}, v23, s[{P_WS}:{P_WS+1}]")
    stp(a, "K2 loop")
    wait_for(lambda tg: tg[0] == "g")
    for j in range(5):
        for i in range(4):
            A_r, B_r = accA(j, i), accB(j, i)
            for h in (0, 2):
                a(f"v_pk_add_f32 v[{A_r+h}:{A_r+h+1}], v[{A_r+h}:{A_r+h+1}], v[{B_r+h}:{B_r+h+1}] neg_lo:[0,1] neg_hi:[0,1]")
            for h in (0, 2):
                a(f"v_pk_fma_f32 v[{B_r+h}:{B_r+h+1}], v[{vG[i]}:{vG[i]+1}], v[{A_r+h}:{A_r+h+1}], v[{B_r+h}:{B_r+h+1}] op_sel_hi:[0,1,1]")
            a(f"ds_write_b128 v{vLW}, v[{B_r}:{B_r+3}] offset:{i*4*RS + 64*j}")
    a("s_waitcnt lgkmcnt(0)")
    a("s_barrier")
    stp(a, "red written")
    for i in range(5):
        b = 120 + 16*i
        for w in range(4):
            a(f"ds_read_b128 v[{b+4*w}:{b+4*w+3}], v{LA+i} offset:{w*RED}")
    a("s_waitcnt vmcnt(0)")
    for i in range(5):
        b = 120 + 16*i
        a(f"s_waitcnt lgkmcnt({min(15,4*(4-i))})")
        a(f"v_pk_add_f32 v[{b}:{b+1}], v[{b}:{b+1}], v[{b+4}:{b+5}]")
        a(f"v_pk_add_f32 v[{b+2}:{b+3}], v[{b+2}:{b+3}], v[{b+6}:{b+7}]")
        a(f"v_pk_add_f32 v[{b+8}:{b+9}], v[{b+8}:{b+9}], v[{b+12}:{b+13}]")
        a(f"v_pk_add_f32 v[{b+10}:{b+11}], v[{b+10}:{b+11}], v[{b+14}:{b+15}]")
        a(f"v_pk_add_f32 v[{b}:{b+1}], v[{b}:{b+1}], v[{b+8}:{b+9}]")
        a(f"v_pk_add_f32 v[{b+2}:{b+3}], v[{b+2}:{b+3}], v[{b+10}:{b+11}]")
        x0, d0_ = XR+2*i, DR+2*i
        for h in range(2):
            a(f"v_lshlrev_b32 v{t1}, 16, v{x0+h}")
            a(f"v_and_b32 v{t2}, 0xffff0000, v{x0+h}")
            a(f"v_lshlrev_b32 v{t3}, 16, v{d0_+h}")
            a(f"v_and_b32 v{t4}, 0xffff0000, v{d0_+h}")
            a(f"v_mul_f32 v{t1}, v{t1}, v{t3}")
            a(f"v_mul_f32 v{t2}, v{t2}, v{t4}")
            a(f"v_fmac_f32 v{b+2*h}, v{GR+i}, v{t1}")
            a(f"v_fmac_f32 v{b+2*h+1}, v{GR+i}, v{t2}")
        a(f"global_store_dwordx4 v{OA+i}, v[{b}:{b+3}], s[{P_OUT}:{P_OUT+1}]")
    stp(a, "out stored")
    if LSTAMP:
        pass
    if "dbgt" in FLAGS:
        a("s_waitcnt vmcnt(0)")
        a("s_memrealtime s[40:41]"); a("s_memtime s[42:43]")
        a("s_waitcnt lgkmcnt(0)")
        a(f"s_cmp_lg_u32 s{sW}, 0")
        a("s_cbranch_scc1 L_end")
        a("s_not_b32 s44, s101")
        a("v_mov_b32 v2, 0"); a("v_mov_b32 v3, s44"); a("v_mov_b32 v4, s40")
        a("s_mov_b64 exec, 1")
        a(f"global_atomic_umax v2, v3, s[{P_DBG}:{P_DBG+1}] offset:16 sc1")
        a(f"global_atomic_umax v2, v4, s[{P_DBG}:{P_DBG+1}] offset:20 sc1")
        a("s_cmp_lg_u32 s2, 0")
        a("s_cbranch_scc1 L_end")
        a("s_sub_u32 s42, s42, s96"); a("s_sub_u32 s40, s40, s101")
        a("v_mov_b32 v3, s42"); a("v_mov_b32 v4, s40")
        a(f"global_store_dword v2, v3, s[{P_DBG}:{P_DBG+1}] offset:24")
        a(f"global_store_dword v2, v4, s[{P_DBG}:{P_DBG+1}] offset:28")
    stp.dump(a, sW, sT0, P_WS, WS_STAMP)
    a.label("L_end")
    a("s_endpgm")
    a.label("L_codeend")
    return a.text()

HEADER = open("gated_mix__ssm_conv_s5__glu_gated_bilinear__prompt.s.ref").read().split("; Override launch")[0]
def main():
    out = HEADER
    out += "; Override launch geometry by editing the next line. Harness parses it; keep it on one line.\n"
    out += "; @launch grid=(256,1,1) block=(256,1,1) lds=163840\n"
    out += '.amdgcn_target "amdgcn-amd-amdhsa--gfx950"\n.text\n'
    out += f".globl {KNAME}\n.p2align 8\n.type {KNAME},@function\n" + gen()
    out += f""".section .rodata,"a"
.p2align 6
.amdhsa_kernel {KNAME}
  .amdhsa_next_free_vgpr 512
  .amdhsa_next_free_sgpr 102
  .amdhsa_accum_offset 256
  .amdhsa_group_segment_fixed_size 0
  .amdhsa_kernarg_size 136
  .amdhsa_user_sgpr_count 2
  .amdhsa_user_sgpr_kernarg_segment_ptr 1
  .amdhsa_system_sgpr_workgroup_id_x 1
  .amdhsa_float_denorm_mode_32 3
.end_amdhsa_kernel
"""
    path = [x for x in sys.argv[1:] if not x.startswith("--")][0]
    open(path, "w").write(out)
    json.dump([[d[i] for i in sorted(d)] for d in NAMES], open(path + ".names", "w"))
main()
```

```python
import sys, json
from asmlib import *

FLAGS = set(x[2:] for x in sys.argv[1:] if x.startswith("--"))
STAMP = "stamp" in FLAGS
NAMES = []
KNAME = "gated_mix__ssm_conv_s5__glu_gated_bilinear__prompt_kernel"

WS_H   = 0
WS_G   = 0xB00000
WS_S   = 0xB10000
WS_FB  = 0xB40000
WS_FA  = 0xB42000
WS_PF  = 0xB44000
WS_W2  = 0xC00000
W2_SIZE = 8*88*5*1024
WS_STAMP = 0x1000000
LOG2E = 0x3fb8aa3b
INV2PI = 0x3e22f983
SC = "" if "nosc" in FLAGS else " sc1"
SCL = "" if ("nosc" in FLAGS or "noscl" in FLAGS) else " sc1"
LSTAMP = "lstamp" in FLAGS

def srd(a, d, base, size, add=0):
    o = []
    if add == 0:
        o += [f"s_mov_b32 s{d}, s{base}", f"s_mov_b32 s{d+1}, s{base+1}"]
    elif add > 0:
        o += [f"s_add_u32 s{d}, s{base}, {add}", f"s_addc_u32 s{d+1}, s{base+1}, 0"]
    else:
        o += [f"s_sub_u32 s{d}, s{base}, {-add}", f"s_subb_u32 s{d+1}, s{base+1}, 0"]
    o += [f"s_mov_b32 s{d+2}, {size}", f"s_mov_b32 s{d+3}, 0x00020000"]
    if a is None: return o
    for x in o: a(x)

class Stamper:
    def __init__(self, store):
        self.store = store; self.n = 0; self.tmp = [98, 100]; self.names = {}
        NAMES.append(self.names)
    def __call__(self, a, name=""):
        if not STAMP: return
        if self.n > 0:
            a(f"s_mov_b32 s{self.store[self.n-1]}, s{self.tmp[(self.n-1)&1]}")
        assert self.n < len(self.store), "too many stamps"
        a(f"s_memtime s[{self.tmp[self.n&1]}:{self.tmp[self.n&1]+1}]")
        self.names[self.n] = name
        self.n += 1
    def dump(self, a, sW, sT0, P_WS, base):
        if not STAMP: return
        a("s_waitcnt vmcnt(0) lgkmcnt(0)")
        self(a, "end")
        a("s_waitcnt lgkmcnt(0)")
        a(f"s_mov_b32 s{self.store[self.n-1]}, s{self.tmp[(self.n-1)&1]}")
        a(f"s_lshl_b32 s{sT0}, s2, 2")
        a(f"s_add_u32 s{sT0}, s{sT0}, s{sW}")
        a(f"s_lshl_b32 s{sT0}, s{sT0}, 7")
        a(f"s_add_u32 s{sT0}, s{sT0}, {base}")
        a(f"v_mov_b32 v2, s{sT0}")
        if "dbgstamp" in FLAGS:
            keep = [i for i in range(1, self.n) if self.names[i] not in ("small issued", "glu1", "pub", "flagB", "flagB seen", "out stored")][:15]
            a("s_cmp_lg_u32 s2, 101")
            a("s_cbranch_scc1 L_end")
            a(f"s_cmp_lg_u32 s{sW}, 0")
            a("s_cbranch_scc1 L_end")
            a("v_mov_b32 v2, 0")
            for k, i in enumerate(keep):
                a(f"s_sub_u32 s40, s{self.store[i]}, s{self.store[0]}")
                a("v_mov_b32 v3, s40")
                a(f"global_store_dword v2, v3, s[34:35] offset:{4*(k+1)}")
            print("debug stamps:", [self.names[i] for i in keep])
            return
        for i in range(self.n):
            a(f"v_mov_b32 v3, s{self.store[i]}")
            a(f"global_store_dword v2, v3, s[{P_WS}:{P_WS+1}] offset:{4*i}")

def rr(*streams):
    out = []
    n = max(len(s) for s in streams)
    for i in range(n):
        for s in streams:
            if i < len(s): out.append(s[i])
    return out

def weave(a, work, mem, start=0, every=None):
    n = len(work); m = len(mem)
    if m == 0: pos = []
    elif every is None: pos = [start + int((n - start) * i / m) for i in range(m)]
    else: pos = [start + every*i for i in range(m)]
    mi = 0
    def emit(it):
        if isinstance(it, str): a(it)
        else:
            for x in it: a(x)
    for i, w in enumerate(work):
        while mi < m and pos[mi] <= i:
            emit(mem[mi]); mi += 1
        emit(w)
    while mi < m:
        emit(mem[mi]); mi += 1

SPIN_MAX = 100000
def spin_init(a): a("s_mov_b32 s95, 0")
def spin_guard(a, out_label):
    a("s_add_u32 s95, s95, 1")
    a(f"s_cmp_gt_u32 s95, {SPIN_MAX}")
    a(f"s_cbranch_scc1 {out_label}")

DPPSW = "quad_perm:[1,0,3,2] row_mask:0xf bank_mask:0xf"
P_X, P_LRE, P_LIM, P_BRE, P_BIM, P_CRE, P_CIM, P_LDT = 4,6,8,10,12,14,16,18
P_DSK, P_BX, P_WG, P_WU = 20,22,24,26
P_WD, P_GW, P_OUT, P_DBG = 28,30,32,34
P_WS = 36

def gen():
    a = Asm()
    stp = Stamper([96,97,22,23,6,7,8,9,18,19,10,11,12,13,24,25,26,27,82,83,84,40,41,42,43,73,74])
    SX, SG, SU, SB0, SB1, SB2, SM = 40,44,48,52,56,60,64
    sEX = 38
    sW, sRH, sCH, sRB, sCG = 68,69,70,71,72
    sDB, sCur, sD, sC3, sStage = 73,74,75,76,77
    sKX, sKG, sKU, sKB = 78,79,80,81
    sOX, sOG, sOU, sOB, sOB2 = 82,83,84,85,86
    sT0, sT1, sT2 = 87,88,89
    sF = 87
    sBlk, sRB2, sCB = 90, 91, 92
    sT3 = 93
    sNonce = 3
    vL = 1
    vDX, vDW, vDB = 2, 6, 9
    vX0, vX1, vWa, vWb, vWc, vB0, vB1 = 12,13,14,15,16,17,18
    t0, t1, t2, t3, t4 = 19,20,21,22,23
    vA  = [24,25,26]; vBx = [27,28,29]; vLRE = [30,31,32]; vLIM = [33,34,35]
    vLr = [36,37,38]; vLi = [39,40,41]; vWSr = [42,43,44]; vWSi = [45,46,47]
    vSgn, vNon, vSig, vWp = 48, 49, 50, 51
    vPF = 52
    SCR = 52
    vC, vAe, vAe4, vRw = 90, 91, 92, 93
    pa = [94, 95, 96]
    GLD = 56
    vGst, vGv = 71, 72
    RA, GA = 2, 3
    Ps = [4, 5, 6]
    vAs, vCm = 97, 98
    vAs2, vCm2 = 7, 8
    vH = 116
    ACC = 120
    BUF = 51200
    RX, RG, RU, RB = 0, 16384, 28672, 40960
    MISC = 3*BUF
    SWB, EF, E4, RWB = 0, 1280, 5120, 7104
    EF0 = EF + 7*256; E40 = E4 + 15*64
    HTS = 272
    def acc(n, i): return ACC + n*16 + 4*i
    SA, SBt, S4 = ACC+96, ACC+112, ACC+128
    CL = 52
    PK = 100
    vPWs, vPCs, vPWd, vPCd, vPtr = 61, 63, 64, 66, 68
    TP = 69

    a.label(KNAME)
    a(f"s_cmp_ge_u32 s2, 256")
    a(f"s_cbranch_scc1 L_end")
    if "nocodepf" not in FLAGS:
        a("s_getpc_b64 s[40:41]")
        a.label("L_pc")
        a("v_lshlrev_b32 v2, 2, v0")
        a("s_lshr_b32 s42, s2, 3")
        a("s_lshl_b32 s42, s42, 10")
        a("v_add_u32 v2, s42, v2")
        a("v_min_u32 v2, L_codeend-L_pc-4, v2")
        a("v_mov_b32 v3, s41")
        a("v_add_co_u32 v2, vcc, s40, v2")
        a("v_addc_co_u32 v3, vcc, 0, v3, vcc")
        a("global_load_dword v99, v[2:3], off")
    a(f"s_load_dwordx16 s[4:19], s[0:1], 0")
    a(f"s_load_dwordx8 s[20:27], s[0:1], 64")
    a(f"s_load_dwordx8 s[28:35], s[0:1], 96")
    a(f"s_load_dwordx2 s[36:37], s[0:1], 128")
    a(f"s_memrealtime s[{sEX}:{sEX+1}]")
    if "dbgt" in FLAGS: a("s_memtime s[96:97]")
    stp(a, "s0")
    a(f"v_lshrrev_b32 v{t0}, 6, v0")
    a(f"v_and_b32 v{vL}, 63, v0")
    a(f"s_and_b32 s{sT0}, s2, 1")
    a(f"v_readfirstlane_b32 s{sW}, v{t0}")
    a(f"s_lshl_b32 s{sT0}, s{sT0}, 3")
    a(f"s_lshr_b32 s{sT1}, s2, 3")
    a(f"s_and_b32 s{sRB}, s{sT1}, 7")
    a(f"s_add_u32 s{sRB}, s{sRB}, s{sT0}")
    a(f"s_lshr_b32 s{sT0}, s2, 1")
    a(f"s_and_b32 s{sT0}, s{sT0}, 3")
    a(f"s_lshl_b32 s{sT2}, s{sT0}, 2")
    a(f"s_lshr_b32 s{sT3}, s2, 6")
    a(f"s_add_u32 s{sCG}, s{sT2}, s{sT3}")
    a(f"s_lshl_b32 s{sT0}, s{sT0}, 3")
    a(f"s_and_b32 s{sT1}, s{sT1}, 7")
    a(f"s_add_u32 s{sRB2}, s{sT0}, s{sT1}")
    a(f"s_and_b32 s{sT0}, s2, 1")
    a(f"s_lshl_b32 s{sT0}, s{sT0}, 2")
    a(f"s_add_u32 s{sCB}, s{sT0}, s{sT3}")
    a(f"s_lshr_b32 s{sRH}, s{sW}, 1")
    a(f"s_and_b32 s{sCH}, s{sW}, 1")
    a(f"v_lshrrev_b32 v{t0}, 3, v{vL}")
    a(f"v_and_b32 v{t1}, 2, v{t0}")
    a(f"s_lshl_b32 s{sT0}, s{sCH}, 2")
    a(f"v_or_b32 v{t1}, s{sT0}, v{t1}")
    a(f"v_and_b32 v{t2}, 7, v{vL}")
    a(f"v_xor_b32 v{t1}, v{t1}, v{t2}")
    a(f"s_lshl_b32 s{sT0}, s{sRB}, 7")
    a(f"s_lshl_b32 s{sT1}, s{sW}, 5")
    a(f"s_add_u32 s{sT0}, s{sT0}, s{sT1}")
    a(f"v_add_u32 v{t0}, s{sT0}, v{t0}")
    a(f"v_mul_u32_u24 v{t0}, 1280, v{t0}")
    a(f"v_lshl_add_u32 v{vDX}, v{t1}, 4, v{t0}")
    for i in range(1,4):
        a(f"v_add_u32 v{vDX+i}, {9216*i}, v{vDX}")
    a(f"s_lshl_b32 s{sOX}, s{sW}, 12")
    a(f"s_mul_i32 s{sOG}, s{sW}, 3072")
    a(f"s_add_u32 s{sOU}, s{sOG}, {RU}")
    a(f"s_add_u32 s{sOG}, s{sOG}, {RG}")
    if "norot" in FLAGS:
        a(f"s_mov_b32 s{sKX}, 0")
    elif "rot8" in FLAGS:
        a(f"s_and_b32 s{sT0}, s{sRB}, 7")
        a(f"s_mul_i32 s{sT1}, s{sT0}, 11")
        a(f"s_lshr_b32 s{sT1}, s{sT1}, 3")
        a(f"s_and_b32 s{sT0}, s{sCG}, 3")
        a(f"s_mul_i32 s{sT0}, s{sT0}, 11")
        a(f"s_lshr_b32 s{sT0}, s{sT0}, 2")
        a(f"s_add_u32 s{sT0}, s{sT0}, s{sT1}")
        a(f"s_cmp_ge_u32 s{sT0}, 10")
        a(f"s_cselect_b32 s{sT1}, 10, 0")
        a(f"s_sub_u32 s{sT0}, s{sT0}, s{sT1}")
        a(f"s_lshl_b32 s{sKX}, s{sT0}, 7")
    else:
        a(f"s_and_b32 s{sT0}, s{sRB}, 7")
        a(f"s_and_b32 s{sT1}, s{sCG}, 3")
        a(f"s_add_u32 s{sT0}, s{sT0}, s{sT1}")
        a(f"s_cmp_ge_u32 s{sT0}, 5")
        a(f"s_cselect_b32 s{sT1}, 5, 0")
        a(f"s_sub_u32 s{sT0}, s{sT0}, s{sT1}")
        a(f"s_cmp_ge_u32 s{sT0}, 5")
        a(f"s_cselect_b32 s{sT1}, 5, 0")
        a(f"s_sub_u32 s{sT0}, s{sT0}, s{sT1}")
        a(f"s_lshl_b32 s{sKX}, s{sT0}, 8")
    a(f"s_mul_i32 s{sKG}, s{sKX}, 1536")
    a(f"s_mov_b32 s{sKU}, s{sKG}")
    a(f"s_mov_b32 s{sKB}, s{sKX}")
    def advk(kx, kw):
        return [[f"s_add_u32 s{kx}, s{kx}, 128"], [f"s_cmp_eq_u32 s{kx}, 1280", f"s_cselect_b32 s{kx}, 0, s{kx}"], [f"s_mul_i32 s{kw}, s{kx}, 1536"]]
    a("s_waitcnt lgkmcnt(0)")
    a(f"s_or_b32 s{sT0}, s2, s{sW}")
    a(f"s_cmp_lg_u32 s{sT0}, 0")
    a(f"s_cbranch_scc1 L_no_nonce")
    a(f"s_or_b32 s{sT0}, s{sEX}, 1")
    a(f"v_mov_b32 v{t0}, s{sT0}")
    a(f"v_mov_b32 v{t1}, 0")
    a(f"s_mov_b64 exec, 1")
    a(f"global_store_dword v{t1}, v{t0}, s[{P_DBG}:{P_DBG+1}]{SC}")
    a(f"s_mov_b64 exec, -1")
    a.label("L_no_nonce")
    if "dbgt" in FLAGS: a(f"s_mov_b32 s101, s{sEX}")
    srd(a, SX, P_X, 2621440)
    def dma(vo, S, so, off):
        o = f" offset:{off}" if off else ""
        return f"buffer_load_dwordx4 v{vo}, s[{S}:{S+3}], s{so} offen{o} lds"
    def dgrp(base_expr, items):
        g = [[f"s_add_u32 m0, {base_expr}", "s_nop 0", items[0]]]
        g += [[x] for x in items[1:]]
        return g
    def stage_x(b):  return dgrp(f"s{sOX}, {b}", [dma(vDX+i, SX, sKX, 1024*i) for i in range(4)])
    def stage_g(b):  return dgrp(f"s{sOG}, {b}", [dma(vDW+i, SG, sKG, 1024*i) for i in range(3)])
    def stage_u(b):  return dgrp(f"s{sOU}, {b}", [dma(vDW+i, SU, sKU, 1024*i) for i in range(3)])
    def stage_b(b):  return dgrp(f"s{sOB}, {b}", [dma(vDB, SB0, sKB, 0), dma(vDB+1, SB1, sKB, 1024)]) + dgrp(f"s{sOB2}, {b}", [dma(vDB+2, SB2, sKB, 0)])
    wW = [f"s_mul_i32 s{sT0}, s{sW}, 192", f"s_mul_i32 s{sT1}, s{sCG}, 192"]
    for i in range(3):
        wW += [f"v_add_u32 v{t0}, s{sT0}, v{vL}"]
        if i: wW += [f"v_add_u32 v{t0}, {64*i}, v{t0}"]
        wW += [f"v_mul_u32_u24 v{t1}, 43691, v{t0}", f"v_lshrrev_b32 v{t1}, 19, v{t1}", f"v_mul_u32_u24 v{t2}, 12, v{t1}",
               f"v_sub_u32 v{t2}, v{t0}, v{t2}", f"v_lshrrev_b32 v{t3}, 2, v{t1}", f"v_and_b32 v{t3}, 2, v{t3}",
               f"v_xor_b32 v{t2}, v{t2}, v{t3}", f"v_mul_u32_u24 v{t1}, 3072, v{t1}", f"v_lshl_add_u32 v{t1}, v{t2}, 4, v{t1}",
               f"v_add_u32 v{vDW+i}, s{sT1}, v{t1}"]
        if i: wW += [f"v_subrev_u32 v{vDW+i}, {1024*i}, v{vDW+i}"]
    wW += srd(None, SG, P_WG, 1966080) + srd(None, SU, P_WU, 1966080)
    weave(a, wW, stage_x(0), start=0)
    wB = [f"s_mul_i32 s{sT3}, s{sCG}, 40", f"s_mul_i32 s{sT2}, s{sW}, 3",
          [f"s_cmp_eq_u32 s{sW}, 3", f"s_cselect_b32 s{sT2}, 8, s{sT2}"],
          f"s_add_u32 s{sD}, s{sT2}, 2",
          [f"s_cmp_ge_u32 s{sW}, 2", f"s_cselect_b32 s{sT0}, 1, 0"],
          f"s_sub_u32 s{sD}, s{sD}, s{sT0}",
          f"s_lshl_b32 s{sOB}, s{sT2}, 10", f"s_add_u32 s{sOB}, s{sOB}, {RB}",
          f"s_lshl_b32 s{sOB2}, s{sD}, 10", f"s_add_u32 s{sOB2}, s{sOB2}, {RB}",
          f"v_lshrrev_b32 v{t3}, 4, v{vL}", f"v_lshlrev_b32 v{t3}, 1, v{t3}", f"v_and_b32 v{t4}, 7, v{vL}"]
    for i in range(3):
        wB += [f"s_mov_b32 s{sT0}, s{sT2}" if i == 0 else (f"s_add_u32 s{sT0}, s{sT2}, 1" if i == 1 else f"s_mov_b32 s{sT0}, s{sD}")]
        wB += [[f"s_cmp_ge_u32 s{sT0}, 5", f"s_cselect_b32 s{sT1}, 1, 0", f"s_cselect_b32 s{sC3}, 5, 0"],
               f"s_sub_u32 s{sT0}, s{sT0}, s{sC3}", f"s_lshl_b32 s{sT0}, s{sT0}, 3", f"s_add_u32 s{sT0}, s{sT0}, s{sT3}",
               f"v_lshrrev_b32 v{t0}, 3, v{vL}", f"v_add_u32 v{t0}, s{sT0}, v{t0}", f"v_mul_u32_u24 v{t0}, 1280, v{t0}",
               f"v_add_u32 v{t1}, s{sT1}, v{t3}", f"v_xor_b32 v{t1}, v{t1}, v{t4}", f"v_lshl_add_u32 v{t0}, v{t1}, 4, v{t0}",
               f"v_add_u32 v{vDB+i}, {4096 - (1024*i if i < 2 else 0)}, v{t0}"]
    for i, S in enumerate([SB0, SB1, SB2]):
        wB += [[f"s_cmp_ge_u32 s{sW}, {2 if i < 2 else 1}", f"s_cselect_b32 s{S}, s{P_BIM}, s{P_BRE}", f"s_cselect_b32 s{S+1}, s{P_BIM+1}, s{P_BRE+1}"],
               [f"s_sub_u32 s{S}, s{S}, 4096", f"s_subb_u32 s{S+1}, s{S+1}, 0"],
               f"s_mov_b32 s{S+2}, {819200+4096}", f"s_mov_b32 s{S+3}, 0x00020000"]
    weave(a, wB, stage_g(0) + stage_u(0), start=0)
    c1, c2 = TP, TP+1
    wC = [f"v_and_b32 v{t0}, 15, v{vL}", f"v_lshrrev_b32 v{t0}, 1, v{t0}", f"s_mul_i32 s{sT0}, s{sCG}, 40",
          f"s_lshl_b32 s{sT1}, s{sCH}, 4", f"s_add_u32 s{sT1}, s{sT1}, s{sT0}", f"v_add_u32 v{c1}, s{sT1}, v{t0}",
          f"v_lshlrev_b32 v{c1}, 1, v{c1}", f"s_add_u32 s{sT0}, s{sT0}, 32", f"v_add_u32 v{c2}, s{sT0}, v{t0}",
          f"v_lshlrev_b32 v{c2}, 1, v{c2}"]
    wC += [f"s_mul_i32 s{sT0}, s2, 52429", f"s_lshr_b32 s{sT0}, s{sT0}, 18", f"s_mul_i32 s{sT1}, s{sT0}, 5", f"s_sub_u32 s{sT1}, s2, s{sT1}",
           f"v_lshrrev_b32 v{t0}, 2, v{vL}", f"s_lshl_b32 s{sT2}, s{sT0}, 5", f"v_add_u32 v{t0}, s{sT2}, v{t0}",
           f"v_mul_u32_u24 v{t0}, 1280, v{t0}", f"v_and_b32 v{t1}, 3, v{vL}", f"v_lshl_add_u32 v{t0}, v{t1}, 4, v{t0}",
           f"s_lshl_b32 s{sT2}, s{sT1}, 8", f"v_add_u32 v{t0}, s{sT2}, v{t0}", f"s_lshl_b32 s{sT2}, s{sW}, 6",
           f"v_add_u32 v{vPWs}, s{sT2}, v{t0}", f"v_add_u32 v{vPWs+1}, {16*1280-1024}, v{vPWs}"]
    for k in range(2):
        wC += [f"s_lshl_b32 s{sT2}, s{sT1}, 3", f"s_lshl_b32 s{sT3}, s{sW}, 1", f"s_add_u32 s{sT2}, s{sT2}, s{sT3}"]
        if k: wC += [f"s_add_u32 s{sT2}, s{sT2}, 1"]
        wC += [f"s_mul_i32 s{sT3}, s{sT2}, 52429", f"s_lshr_b32 s{sT3}, s{sT3}, 18", f"s_mul_i32 s{sD}, s{sT3}, 5",
               f"s_sub_u32 s{sT2}, s{sT2}, s{sD}", f"s_mul_i32 s{sT3}, s{sT3}, 88", f"s_add_u32 s{sT3}, s{sT3}, s{sT0}",
               f"s_add_u32 s{sT3}, s{sT3}, 40", f"s_mul_i32 s{sT3}, s{sT3}, 5", f"s_add_u32 s{sT3}, s{sT3}, s{sT2}",
               f"s_lshl_b32 s{sT3}, s{sT3}, 10", f"s_add_u32 s{sT3}, s{sT3}, {WS_W2}",
               f"v_lshlrev_b32 v{vPWd+k}, 4, v{vL}", f"v_add_u32 v{vPWd+k}, s{sT3}, v{vPWd+k}"]
    wC += [f"s_lshl_b32 s{sT0}, s2, 3", f"s_lshl_b32 s{sT1}, s{sW}, 1", f"s_add_u32 s{sT0}, s{sT0}, s{sT1}",
           f"s_mul_i32 s{sT1}, s{sT0}, 52429", f"s_lshr_b32 s{sT1}, s{sT1}, 21", f"s_mul_i32 s{sT2}, s{sT1}, 40",
           f"s_sub_u32 s{sT0}, s{sT0}, s{sT2}",
           [f"s_cmp_ge_u32 s{sT0}, 20", f"s_cselect_b32 s{sC3}, 1, 0", f"s_cselect_b32 s{sT2}, 20, 0"],
           f"s_sub_u32 s{sT2}, s{sT0}, s{sT2}",
           f"v_and_b32 v{t0}, 15, v{vL}", f"s_lshl_b32 s{sT3}, s{sT1}, 4", f"v_add_u32 v{t0}, s{sT3}, v{t0}",
           f"v_mul_u32_u24 v{t0}, 1280, v{t0}", f"v_lshrrev_b32 v{t1}, 4, v{vL}", f"v_lshl_add_u32 v{t0}, v{t1}, 4, v{t0}",
           f"s_lshl_b32 s{sT2}, s{sT2}, 6", f"v_add_u32 v{vPCs}, s{sT2}, v{t0}",
           f"s_mul_i32 s{sT3}, s{sT1}, 52429", f"s_lshr_b32 s{sT3}, s{sT3}, 18", f"s_mul_i32 s{sD}, s{sT3}, 5",
           f"s_sub_u32 s{sT1}, s{sT1}, s{sD}", f"s_mul_i32 s{sT3}, s{sT3}, 88", f"s_add_u32 s{sT3}, s{sT3}, s{sT0}",
           f"s_mul_i32 s{sT3}, s{sT3}, 5", f"s_add_u32 s{sT3}, s{sT3}, s{sT1}", f"s_lshl_b32 s{sT3}, s{sT3}, 10",
           f"s_add_u32 s{sT3}, s{sT3}, {WS_W2}", f"v_lshlrev_b32 v{vPCd}, 4, v{vL}", f"v_add_u32 v{vPCd}, s{sT3}, v{vPCd}",
           f"v_add_u32 v{vPCd+1}, {5*1024}, v{vPCd}",
           f"s_lshl_b32 s{sT0}, s{sW}, 11", f"s_add_u32 s95, s{sT0}, {MISC}"]
    weave(a, wC, stage_b(0), start=0)
    stp(a, "S0 issued")
    sm = []
    for k, P in enumerate((P_LRE, P_LIM, P_LDT)):
        sm += [f"global_load_ushort v{CL+3*k}, v{c1}, s[{P}:{P+1}]", f"global_load_ushort v{CL+3*k+1}, v{c1}, s[{P}:{P+1}] offset:16",
               f"global_load_ushort v{CL+3*k+2}, v{c2}, s[{P}:{P+1}]"]
    pkl = []
    pkl += [srd(None, SM, P_WD, 1966080) + [f"s_cmp_lt_u32 s2, 240", f"s_cselect_b32 s{SM+2}, s{SM+2}, 0", "s_mov_b32 m0, s95", "s_nop 0",
           f"buffer_load_dwordx4 v{vPWs}, s[{SM}:{SM+3}], 0 offen lds"],
           [f"buffer_load_dwordx4 v{vPWs+1}, s[{SM}:{SM+3}], 0 offen offset:1024 lds"],
           [f"s_cmp_eq_u32 s{sC3}, 1", f"s_cselect_b32 s{SM}, s{P_CIM}, s{P_CRE}", f"s_cselect_b32 s{SM+1}, s{P_CIM+1}, s{P_CRE+1}",
            f"s_mov_b32 s{SM+2}, 819200", f"s_cmp_lt_u32 s2, 200", f"s_cselect_b32 s{SM+2}, s{SM+2}, 0",
            f"buffer_load_dwordx4 v[{PK}:{PK+3}], v{vPCs}, s[{SM}:{SM+3}], 0 offen"],
           [f"buffer_load_dwordx4 v[{PK+4}:{PK+7}], v{vPCs}, s[{SM}:{SM+3}], 0 offen offset:64"]]
    m, q = t0, t1
    wL = [f"v_and_b32 v{m}, 15, v{vL}", f"v_lshrrev_b32 v{q}, 4, v{vL}",
          f"v_lshrrev_b32 v{t2}, 2, v{m}", f"v_lshlrev_b32 v{t2}, 4, v{t2}", f"v_and_b32 v{t3}, 3, v{m}", f"v_add_u32 v{t2}, v{t2}, v{t3}",
          f"s_lshl_b32 s{sT0}, s{sRH}, 6", f"v_add_u32 v{t2}, s{sT0}, v{t2}", f"v_lshlrev_b32 v{t2}, 7, v{t2}",
          f"v_and_b32 v{t3}, 2, v{m}", f"v_lshrrev_b32 v{t4}, 3, v{m}", f"v_lshl_or_b32 v{t3}, v{t4}, 2, v{t3}",
          f"v_xor_b32 v{t3}, v{t3}, v{q}", f"v_lshl_add_u32 v{vX0}, v{t3}, 4, v{t2}", f"v_xor_b32 v{t3}, 4, v{t3}",
          f"v_lshl_add_u32 v{vX1}, v{t3}, 4, v{t2}",
          f"v_lshrrev_b32 v{t2}, 2, v{m}", f"v_lshl_add_u32 v{t2}, v{q}, 3, v{t2}", f"v_mul_u32_u24 v{t2}, 192, v{t2}",
          f"v_and_b32 v{t3}, 3, v{m}", f"v_lshl_add_u32 v{t2}, v{t3}, 3, v{t2}", f"v_and_b32 v{t3}, 1, v{q}",
          f"v_lshl_add_u32 v{vWa}, v{t3}, 5, v{t2}", f"v_xor_b32 v{t3}, 1, v{t3}", f"v_lshl_add_u32 v{vWb}, v{t3}, 5, v{t2}",
          [f"s_cmp_eq_u32 s{sCH}, 1", f"s_cselect_b64 vcc, -1, 0", f"v_cndmask_b32 v{vWc}, v{vWa}, v{vWb}, vcc"],
          f"v_add_u32 v{vWc}, 64, v{vWc}", f"s_lshl_b32 s{sT0}, s{sCH}, 7", f"v_add_u32 v{vWa}, s{sT0}, v{vWa}", f"v_add_u32 v{vWb}, s{sT0}, v{vWb}",
          f"v_and_b32 v{t2}, 1, v{m}", f"v_lshrrev_b32 v{t3}, 2, v{m}", f"v_lshl_add_u32 v{t3}, v{t3}, 1, v{t2}", f"v_xor_b32 v{t3}, v{t3}, v{q}",
          f"v_mul_u32_u24 v{t2}, 40, v{t2}", f"v_lshrrev_b32 v{t4}, 1, v{m}", f"v_add_u32 v{t2}, v{t2}, v{t4}", f"v_lshlrev_b32 v{t2}, 7, v{t2}",
          f"s_lshl_b32 s{sT0}, s{sCH}, 11", f"v_add_u32 v{t2}, s{sT0}, v{t2}", f"v_lshl_add_u32 v{vB0}, v{t3}, 4, v{t2}",
          f"v_xor_b32 v{t3}, 4, v{t3}", f"v_lshl_add_u32 v{vB1}, v{t3}, 4, v{t2}",
          f"s_lshl_b32 s{sT0}, s{sRH}, 2", f"v_add_u32 v{vSig}, s{sT0}, v{q}",
          f"v_and_b32 v{t2}, 1, v{vL}", f"v_cvt_f32_u32 v{t2}, v{t2}", f"v_fma_f32 v{vSgn}, v{t2}, 2.0, -1.0",
          f"v_lshrrev_b32 v{t2}, 2, v{m}", f"v_lshl_add_u32 v{t2}, v{q}, 2, v{t2}", f"v_lshlrev_b32 v{t2}, 6, v{t2}",
          f"v_and_b32 v{t3}, 3, v{m}", f"v_lshl_add_u32 v{t2}, v{t3}, 3, v{t2}", f"v_add_u32 v{vPtr}, s95, v{t2}",
          f"v_lshlrev_b32 v{vC}, 2, v{m}", f"s_lshl_b32 s{sT0}, s{sCH}, 7", f"v_add_u32 v{vAs}, s{sT0}, v{vC}",
          f"v_add_u32 v{vCm}, {MISC}, v{vC}", f"v_add_u32 v{vAe}, {MISC}, v{vAs}", f"v_lshl_add_u32 v{vAe}, v{vSig}, 8, v{vAe}",
          f"v_lshlrev_b32 v{vAe4}, 1, v{vSig}", f"v_add_u32 v{vAe4}, s{sCH}, v{vAe4}", f"v_lshl_add_u32 v{vAe4}, v{vAe4}, 6, v{vCm}",
          f"s_mul_i32 s{sT0}, s{sW}, 320", f"s_add_u32 s{sT0}, s{sT0}, {MISC}", f"v_add_u32 v{vRw}, s{sT0}, v{vAs}",
          f"v_lshlrev_b32 v{vWp}, 4, v{vL}", f"s_mul_i32 s{sT0}, s{sRB2}, {4*88*1024}", f"v_add_u32 v{vH}, s{sT0}, v{vWp}"]
    wL += [f"v_add_u32 v{vH+i}, {i*88*1024}, v{vH}" for i in range(1,4)]
    weave(a, wL, sm, start=0)
    stp(a, "small issued")
    for g_ in advk(sKX, sKG) + advk(sKB, sKU):
        for x in g_: a(x)
    wQ = []
    wQ += [f"s_mul_i32 s{sT0}, s{sCG}, {16*640}", f"s_add_u32 s{sT0}, s{sT0}, {WS_S}",
           f"v_mul_u32_u24 v{pa[0]}, 640, v{vSig}", f"v_lshl_add_u32 v{pa[0]}, v{vAs}, 1, v{pa[0]}", f"v_add_u32 v{pa[0]}, s{sT0}, v{pa[0]}",
           f"v_add_u32 v{pa[1]}, {8*640}, v{pa[0]}", f"v_lshlrev_b32 v{t0}, 1, v{vSig}", f"v_add_u32 v{t0}, s{sCH}, v{t0}",
           f"v_mul_u32_u24 v{pa[2]}, 640, v{t0}", f"v_lshl_add_u32 v{pa[2]}, v{vC}, 1, v{pa[2]}", f"v_add_u32 v{pa[2]}, s{sT0}, v{pa[2]}",
           f"v_add_u32 v{pa[2]}, {64*8}, v{pa[2]}", f"v_mov_b32 v{t4}, 0x7f000000", f"v_add_u32 v{t1}, 8, v{vSig}"]
    for (p_, src) in ((pa[0], vSig), (pa[1], t1), (pa[2], t0)):
        wQ += [[f"v_cmp_le_u32 vcc, s{sRB}, v{src}", "s_nop 1", f"v_cndmask_b32 v{p_}, v{p_}, v{t4}, vcc"]]
    S1 = stage_x(BUF) + stage_g(BUF) + stage_u(BUF) + stage_b(BUF)
    Z2 = 76
    wQ += [f"v_mov_b32 v{Z2+k}, 0" for k in range(4)] + ["s_nop 1"]
    wQ += [f"v_mfma_f32_32x32x16_bf16 v[{ACC+16*k}:{ACC+16*k+15}], v[{Z2}:{Z2+3}], v[{Z2}:{Z2+3}], 0" for k in range(8)]
    wQ += [f"v_mfma_f32_16x16x32_bf16 v[{ACC+128}:{ACC+131}], v[{Z2}:{Z2+3}], v[{Z2}:{Z2+3}], 0",
           f"v_mfma_f32_16x16x32_bf16 v[{ACC+132}:{ACC+135}], v[{Z2}:{Z2+3}], v[{Z2}:{Z2+3}], 0"]
    weave(a, wQ, S1 + pkl, start=0)
    for g_ in advk(sKX, sKG) + advk(sKB, sKU):
        for x in g_: a(x)
    a(f"s_mov_b32 s{sDB}, {2*BUF}")
    a(f"s_mov_b32 s{sCur}, 0"); a(f"s_mov_b32 s{sD}, {BUF}"); a(f"s_mov_b32 s{sC3}, 0")
    a(f"s_mov_b32 s{sStage}, 0")
    a(f"s_mov_b32 s{sBlk}, {(1<<1)|(1<<5):#x}")
    stp(a, "S1 issued")
    a("s_waitcnt vmcnt(17)")
    a("s_barrier")
    stp(a, "S0 landed")
    def cpow_s(dr, di, A, B, n, tm, sgn):
        o = []
        if n is None:
            o += [f"v_exp_f32 v{tm}, v{A}", f"v_rndne_f32 v{dr}, v{B}", f"v_sub_f32 v{tm+1}, v{B}, v{dr}"]
        else:
            o += [f"v_mul_f32 v{tm}, {n}, v{A}", f"v_mul_f32 v{tm+1}, {n}, v{B}", f"v_exp_f32 v{tm}, v{tm}",
                  f"v_rndne_f32 v{dr}, v{tm+1}", f"v_sub_f32 v{tm+1}, v{tm+1}, v{dr}"]
        o += [f"v_cos_f32 v{dr}, v{tm+1}", f"v_sin_f32 v{di}, v{tm+1}"]
        if sgn is not None:
            o += [f"v_mul_f32 v{dr}, v{tm}, v{dr}", f"v_mul_f32 v{tm}, v{sgn}, v{tm}", f"v_mul_f32 v{di}, v{tm}, v{di}"]
        else:
            o += [f"v_mul_f32 v{dr}, v{tm}, v{dr}", f"v_mul_f32 v{di}, v{tm}, v{di}"]
        return o
    def make_Wk():
        Wk = []
        vN = 71
        Wk += [f"v_cvt_f32_u32 v{vN}, v{vSig}", f"v_mov_b32 v{vN+1}, 0x42e00000", f"s_mov_b32 s{sT0}, 0xc1800000",
               f"v_fma_f32 v{vN}, v{vN}, s{sT0}, v{vN+1}", f"s_lshl_b32 s{sT0}, s{sCH}, 3", f"s_sub_u32 s{sT0}, 8, s{sT0}",
               f"v_cvt_f32_u32 v{vN+2}, s{sT0}", f"v_add_f32 v{vN+2}, v{vN+2}, v{vN}"]
        streams = []
        for T in range(3):
            tm = 80+2*T; dt = 86+T
            s_ = [f"v_lshlrev_b32 v{vLRE[T]}, 16, v{CL+T}", f"v_lshlrev_b32 v{vLIM[T]}, 16, v{CL+3+T}", f"v_lshlrev_b32 v{dt}, 16, v{CL+6+T}",
                  f"v_mul_f32 v{dt}, {LOG2E:#x}, v{dt}", f"v_exp_f32 v{dt}, v{dt}",
                  f"v_cvt_pk_bf16_f32 v{dt}, v{dt}, v{dt}", f"v_lshlrev_b32 v{dt}, 16, v{dt}",
                  f"v_mul_f32 v{vA[T]}, v{dt}, v{vLRE[T]}", f"v_mul_f32 v{vBx[T]}, v{dt}, v{vLIM[T]}",
                  f"v_mul_f32 v{vA[T]}, {LOG2E:#x}, v{vA[T]}", f"v_mul_f32 v{vBx[T]}, {INV2PI:#x}, v{vBx[T]}"]
            s_ += cpow_s(vLr[T], vLi[T], vA[T], vBx[T], None, tm, vSgn)
            s_ += cpow_s(vWSr[T], vWSi[T], vA[T], vBx[T], f"v{vN if T < 2 else vN+2}", tm, vSgn)
            streams.append(s_)
        Wk += [[x, y, z] for x, y, z in zip(*streams)]
        return Wk
    def pack_process():
        a("s_waitcnt vmcnt(7)")
        for k in range(2):
            a(f"ds_read_b64_tr_b16 v[{PK+8+4*k}:{PK+9+4*k}], v{vPtr} offset:{32*k}")
            a(f"ds_read_b64_tr_b16 v[{PK+10+4*k}:{PK+11+4*k}], v{vPtr} offset:{32*k+1024}")
        srd(a, SM, P_WS, WS_W2 + W2_SIZE)
        a(f"s_cmp_lt_u32 s2, 200"); a(f"s_cselect_b32 s{SM+2}, s{SM+2}, 0")
        a(f"buffer_store_dwordx4 v[{PK}:{PK+3}], v{vPCd}, s[{SM}:{SM+3}], 0 offen{SC}")
        a(f"buffer_store_dwordx4 v[{PK+4}:{PK+7}], v{vPCd+1}, s[{SM}:{SM+3}], 0 offen{SC}")
        a(f"v_lshlrev_b32 v{t0}, 5, v0"); a(f"v_add_u32 v{t0}, {MISC}, v{t0}")
        a("s_waitcnt lgkmcnt(0)")
        a(f"s_mov_b32 s{SM+2}, {WS_W2 + W2_SIZE}"); a(f"s_cmp_lt_u32 s2, 240"); a(f"s_cselect_b32 s{SM+2}, s{SM+2}, 0")
        a(f"buffer_store_dwordx4 v[{PK+8}:{PK+11}], v{vPWd}, s[{SM}:{SM+3}], 0 offen{SC}")
        a(f"buffer_store_dwordx4 v[{PK+12}:{PK+15}], v{vPWd+1}, s[{SM}:{SM+3}], 0 offen{SC}")
        Z = 76
        a(f"ds_write_b128 v{t0}, v[{Z}:{Z+3}]"); a(f"ds_write_b128 v{t0}, v[{Z}:{Z+3}] offset:16")
        a(f"v_mov_b32 v{t1}, 0")
        a(f"global_load_dword v{vNon}, v{t1}, s[{P_DBG}:{P_DBG+1}]{SC}")

    def dma_first(sdb):
        g = [f"s_add_u32 m0, s{sdb}, s{sOX}"] + [dma(vDX+i, SX, sKX, 1024*i) for i in range(4)]
        g += [f"s_add_u32 m0, s{sdb}, s{sOG}"] + [dma(vDW+i, SG, sKG, 1024*i) for i in range(3)]
        return g
    def dma_second(sdb):
        g = [f"s_add_u32 m0, s{sdb}, s{sOU}"] + [dma(vDW+i, SU, sKU, 1024*i) for i in range(3)]
        g += [f"s_add_u32 m0, s{sdb}, s{sOB}", dma(vDB, SB0, sKB, 0), dma(vDB+1, SB1, sKB, 1024)]
        g += [f"s_add_u32 m0, s{sdb}, s{sOB2}", dma(vDB+2, SB2, sKB, 0)]
        return g
    def reads(ch, s, setb):
        vX = vX0 if s == 0 else vX1
        vB = vB0 if s == 0 else vB1
        X = [f"ds_read_b128 a[{setb+4*i}:{setb+4*i+3}], v{vX} offset:{RX+i*512}" for i in range(4)]
        def tr(n, region, k):
            vW = (vWa, vWb, vWc)[k]
            b = setb + 16 + 4*n
            o = region + 6144*s
            return [f"ds_read_b64_tr_b16 a[{b}:{b+1}], v{vW} offset:{o}", f"ds_read_b64_tr_b16 a[{b+2}:{b+3}], v{vW} offset:{o+768}"]
        def sb(n, off):
            b = setb + 16 + 4*n
            return [f"ds_read_b128 a[{b}:{b+3}], v{vB} offset:{RB+off}"]
        W = []
        for k in range(3):
            W += tr(2*k, RG, k); W += tr(2*k+1, RU, k)
        W += sb(6, 0) + sb(7, 1024) + sb(8, 4096 - 2048*ch)
        return X[:1] + W[:2] + X[1:] + W[2:]
    def mfmas(ch, setb):
        out = []
        for n in range(6):
            for i in range(4):
                d = acc(n, i)
                out.append(f"v_mfma_f32_16x16x32_bf16 v[{d}:{d+3}], a[{setb+16+4*n}:{setb+16+4*n+3}], a[{setb+4*i}:{setb+4*i+3}], v[{d}:{d+3}]")
        for n in (6, 7):
            for i in range(4):
                d = acc(n, i)
                out.append(f"v_mfma_f32_16x16x32_bf16 v[{d}:{d+3}], a[{setb+4*i}:{setb+4*i+3}], a[{setb+16+4*n}:{setb+16+4*n+3}], v[{d}:{d+3}]")
        for k in range(2):
            i = 2*ch + k
            d = S4 + 4*k
            out.append(f"v_mfma_f32_16x16x32_bf16 v[{d}:{d+3}], a[{setb+4*i}:{setb+4*i+3}], a[{setb+16+32}:{setb+16+35}], v[{d}:{d+3}]")
        return out
    def substep(ch, setb, rd, dmas, late, seq=None):
        main = mfmas(ch, setb)
        gaps = [[] for _ in range(34)]
        for i, r in enumerate(rd): gaps[i].append(r)
        loads = [x for x in dmas if "buffer_load" in x]
        nl = len(loads)
        last = 0
        if nl:
            pos = [1 + int(i*30/nl) for i in range(nl)]
            li = 0; pend = []
            for x in dmas:
                if "buffer_load" in x:
                    p = pos[li]; pp = p - 1
                    for y in reversed(pend):
                        while len(gaps[pp]) >= 2: pp -= 1
                        assert pp >= 0
                        gaps[pp].append(y)
                    pend = []
                    while len(gaps[p]) >= 2: p += 1
                    gaps[p].append(x); last = p
                    li += 1
                else: pend.append(x)
            p = last + 1
            for y in pend:
                while len(gaps[p]) >= 2: p += 1
                gaps[p].append(y)
        g = 0
        for (e, ins) in late:
            g = max(g, e)
            while len(gaps[g]) + len(ins) > 2:
                g += 1
                assert g < 34, "late overflow"
            gaps[g].extend(ins)
        if seq is not None:
            g = 0
            while seq and g < 34:
                if len(gaps[g]) + len(seq[0]) <= 2:
                    gaps[g].extend(seq.pop(0))
                g += 1
        out = []
        for i in range(34):
            out.append(main[i]); out.extend(gaps[i])
        return out
    def gate_seq():
        gw = [GLD, GLD+1, GLD+2, GLD+3, GLD+4]
        xr = [[GLD+6, GLD+7, GLD+8, GLD+9, GLD+5], [GLD+10, GLD+11, GLD+12, GLD+13, GLD+14]]
        ga = [73, 74]; u0, u1, u2, u3 = 75, 76, 77, 78
        q_ = [[f"v_mov_b32 v{ga[0]}, 0", f"v_mov_b32 v{ga[1]}, 0"]]
        for i in range(5):
            q_.append([f"v_lshlrev_b32 v{u0}, 16, v{gw[i]}", f"v_and_b32 v{u1}, 0xffff0000, v{gw[i]}"])
            for r in range(2):
                x_ = xr[r][i]
                q_ += [[f"v_lshlrev_b32 v{u2}, 16, v{x_}", f"v_and_b32 v{u3}, 0xffff0000, v{x_}"],
                       [f"v_mul_f32 v{u2}, v{u2}, v{u0}", f"v_mul_f32 v{u3}, v{u3}, v{u1}"],
                       [f"v_cvt_pk_bf16_f32 v{u2}, v{u2}, v{u3}"],
                       [f"v_and_b32 v{u3}, 0xffff0000, v{u2}", f"v_lshlrev_b32 v{u2}, 16, v{u2}"],
                       [f"v_add_f32 v{ga[r]}, v{ga[r]}, v{u2}", f"v_add_f32 v{ga[r]}, v{ga[r]}, v{u3}"]]
        for sh, rm in (("row_shr:1","0xf"),("row_shr:2","0xf"),("row_shr:4","0xf"),("row_shr:8","0xf"),("row_bcast:15","0xa"),("row_bcast:31","0xc")):
            bc = " bound_ctrl:0" if sh.startswith("row_shr") else ""
            q_.append([f"v_add_f32_dpp v{ga[r]}, v{ga[r]}, v{ga[r]} {sh} row_mask:{rm} bank_mask:0xf{bc}" for r in range(2)])
        q_ += [[f"v_readlane_b32 s{sT1}, v{ga[0]}, 63", f"v_readlane_b32 s{sT2}, v{ga[1]}, 63"],
               [f"v_cmp_eq_u32 vcc, 0, v{vL}"],
               [f"v_mov_b32 v{u3}, s{sT1}", f"v_mov_b32 v{u2}, s{sT2}"],
               [f"v_cndmask_b32 v{u2}, v{u2}, v{u3}, vcc"], [f"v_cvt_pk_bf16_f32 v{u2}, v{u2}, v{u2}"],
               [f"v_lshlrev_b32 v{u2}, 16, v{u2}", f"v_mul_f32 v{u2}, 0xbfb8aa3b, v{u2}"],
               [f"v_exp_f32 v{u2}, v{u2}"], [f"v_add_f32 v{u2}, 1.0, v{u2}"], [f"v_rcp_f32 v{u2}, v{u2}"],
               [f"v_cvt_pk_bf16_f32 v{u2}, v{u2}, v{u2}"], [f"v_lshlrev_b32 v{vGv}, 16, v{u2}", f"s_lshl_b32 s{sT1}, s94, 2"],
               [f"s_add_u32 s{sT1}, s{sT1}, {WS_G}"], [f"v_lshl_add_u32 v{vGst}, v{vL}, 2, s{sT1}"]]
        return q_
    def wbase(g, j):
        if g < 7: return 104 + 20*g + 4*j
        if g < 11: return 20*(g-7) + 4*j
        return 80 + 4*j if j < 2 else 244 + 4*(j-2)
    SW2, SH = SX, SG
    sKW, sKW4, sKH = sKX, sKG, sKU
    def wload(g, j):
        b = wbase(g, j)
        if j < 4:
            o = f" offset:{1024*j}" if j else ""
            return f"buffer_load_dwordx4 a[{b}:{b+3}], v{vWp}, s[{SW2}:{SW2+3}], s{sKW} offen{o}{SCL}"
        return f"buffer_load_dwordx4 a[{b}:{b+3}], v{vWp}, s[{SW2}:{SW2+3}], s{sKW4} offen{SCL}"
    def wstep(g, inc=5120):
        return [wload(g, j) for j in range(5)] + [f"s_add_u32 s{sKW}, s{sKW}, {inc}", f"s_add_u32 s{sKW4}, s{sKW4}, {inc}"]

    A_, B_ = 0, 52
    a(f"s_cmp_eq_u32 s{sCH}, 1")
    a(f"s_cbranch_scc1 L_pre1")
    rot0 = lambda: [(24, [f"s_mov_b32 s{sF}, s{sCur}"]), (24, [f"s_add_u32 s{sCur}, s{sCur}, s{sD}"]),
                  (24, [f"s_add_u32 s{sC3}, s{sC3}, 1"]),
                  (24, [f"s_cmp_eq_u32 s{sC3}, 3", f"s_cselect_b32 s{sC3}, 0, s{sC3}"]),
                  (24, [f"s_cmp_eq_u32 s{sC3}, 2", f"s_cselect_b32 s{sD}, {3*BUF}, 0"]),
                  (24, [f"s_sub_u32 s{sD}, {BUF}, s{sD}"])]
    n0 = stp.n
    for ch in (0, 1):
        stp.n = n0
        a.label(f"L_pre{ch}")
        for r in reads(ch, 0, A_): a(r)
        a(f"v_add_u32 v{vX0}, {BUF}, v{vX0}")
        a(f"v_add_u32 v{vB0}, {BUF}, v{vB0}")
        d1 = dma_first(sDB)
        grp = []; cur_ = []
        for x in d1:
            cur_.append(x)
            if "m0" in x.split(",")[0]: cur_.append("s_nop 0")
            if "buffer_load" in x: grp.append(cur_); cur_ = []
        grp[-1] += cur_
        weave(a, make_Wk(), grp, start=1)
        pack_process()
        a("s_waitcnt lgkmcnt(0)")
        stp(a, "prologue")
        a(".p2align 3")
        a.label(f"L_loop{ch}")
        late0 = [(2, g_) for g_ in advk(sKX, sKG)] + [(19, [f"v_add_u32 v{r}, s{sD}, v{r}"]) for r in (vWa, vWb, vWc, vX1, vB1)] + rot0()
        for x in substep(ch, A_, reads(ch, 1, B_), dma_second(sDB), late0): a(x)
        a(f"s_waitcnt vmcnt(13) lgkmcnt(0)")
        a("s_barrier")
        if LSTAMP: a("s_memtime s[38:39]")
        late1 = [(2, g_) for g_ in advk(sKB, sKU)] + [(19, [f"v_add_u32 v{r}, s{sD}, v{r}"]) for r in (vX0, vB0)]
        late1 += [(20, [f"s_mov_b32 s{sDB}, s{sF}"])]
        late1 += [(32, [f"s_bitcmp1_b32 s{sBlk}, s{sStage}", f"s_cbranch_scc1 L_blk{ch}"])]
        body = substep(ch, B_, reads(ch, 0, A_), dma_first(sF), late1)
        for x in body:
            a(x)
            if x.startswith("s_cbranch_scc1 L_blk"): a.label(f"L_blkr{ch}")
        a(f"s_add_u32 s{sStage}, s{sStage}, 1")
        a(f"s_cmp_lt_u32 s{sStage}, 7")
        a("s_waitcnt lgkmcnt(0)")
        if LSTAMP:
            a(f"v_cmp_eq_u32 vcc, s{sStage}, v{vL}"); a(f"v_mov_b32 v79, s38"); a("s_nop 0"); a(f"v_cndmask_b32 v80, v80, v79, vcc")
        a(f"s_cbranch_scc1 L_loop{ch}")
        stp(a, "loop")
        lt = [(19, [f"v_add_u32 v{r}, {BUF}, v{r}"]) for r in (vWa, vWb, vWc, vX1, vB1)]
        lt += [(24, [x]) for x in srd(None, SW2, P_WS, W2_SIZE, add=WS_W2)[:0]]
        for x in substep(ch, A_, reads(ch, 1, B_), dma_second(sDB), lt): a(x)
        a(f"s_waitcnt vmcnt(13) lgkmcnt(0)")
        a("s_barrier")
        spin_init(a)
        a.label(f"L_pf{ch}")
        a(f"v_cmp_ne_u32 vcc, s{sNonce}, v{vPF}")
        a(f"v_cmp_ne_u32 s[{sEX}:{sEX+1}], s{sNonce}, v{vPF+1}")
        a(f"s_or_b64 vcc, vcc, s[{sEX}:{sEX+1}]")
        a(f"v_cmp_ne_u32 s[{sEX}:{sEX+1}], s{sNonce}, v{vPF+2}")
        a(f"s_or_b64 vcc, vcc, s[{sEX}:{sEX+1}]")
        a(f"v_cmp_ne_u32 s[{sEX}:{sEX+1}], s{sNonce}, v{vPF+3}")
        a(f"s_or_b64 vcc, vcc, s[{sEX}:{sEX+1}]")
        a(f"s_cmp_eq_u64 vcc, 0")
        a(f"s_cbranch_scc1 L_pfok{ch}")
        spin_guard(a, f"L_pfok{ch}")
        a(f"v_lshlrev_b32 v{t0}, 4, v{vL}")
        a(f"v_add_u32 v{t0}, {WS_PF}, v{t0}")
        a(f"global_load_dwordx4 v[{vPF}:{vPF+3}], v{t0}, s[{P_WS}:{P_WS+1}]{SC}")
        a("s_waitcnt vmcnt(0)")
        a(f"s_branch L_pf{ch}")
        a.label(f"L_pfok{ch}")
        srd(a, SW2, P_WS, W2_SIZE, add=WS_W2)
        a(f"s_mul_i32 s{sKW}, s{sCB}, 88")
        a(f"s_mul_i32 s{sT0}, s{sW}, 12")
        a(f"s_add_u32 s{sKW}, s{sKW}, s{sT0}")
        a(f"s_add_u32 s{sKW}, s{sKW}, 40")
        a(f"s_mul_i32 s{sKW}, s{sKW}, 5120")
        a(f"s_add_u32 s{sKW4}, s{sKW}, 4096")
        allw = []
        for g in range(7): allw += wstep(g)
        def take(n):
            out = []; c = 0
            while allw and (c < n or "buffer_load" not in allw[0]):
                x = allw.pop(0); out.append(x)
                if "buffer_load" in x: c += 1
            return out
        lt = [(19, [f"v_add_u32 v{r}, {(-2*BUF) & 0xffffffff:#x}, v{r}"]) for r in (vX0, vB0)]
        gq = gate_seq()
        for x in substep(ch, B_, reads(ch, 0, A_), take(8), lt, gq): a(x)
        a("s_waitcnt lgkmcnt(0)")
        lt = [(19, [f"v_add_u32 v{r}, {(-2*BUF) & 0xffffffff:#x}, v{r}"]) for r in (vWa, vWb, vWc, vX1, vB1)]
        for x in substep(ch, A_, reads(ch, 1, B_), take(8), lt, gq): a(x)
        a(f"s_waitcnt vmcnt(16) lgkmcnt(0)")
        a("s_barrier")
        for x in substep(ch, B_, reads(ch, 0, A_), take(8), [], gq): a(x)
        a("s_waitcnt lgkmcnt(0)")
        for x in substep(ch, A_, reads(ch, 1, B_), take(8), [], gq): a(x)
        a("s_waitcnt lgkmcnt(0)")
        for x in substep(ch, B_, [], take(3), [], gq): a(x)
        assert not allw and not gq, (len(allw), len(gq))
        a("s_mov_b64 exec, 3")
        a(f"global_store_dword v{vGst}, v{vGv}, s[{P_WS}:{P_WS+1}]{SC}")
        a("s_mov_b64 exec, -1")
        a(f"s_branch L_epi")
        a.label(f"L_blk{ch}")
        a(f"s_cmp_eq_u32 s{sStage}, 1")
        a(f"s_cbranch_scc1 L_b0_{ch}")
        a(f"v_lshlrev_b32 v{t0}, 4, v{vL}")
        a(f"v_add_u32 v{t0}, {WS_PF}, v{t0}")
        a(f"global_load_dwordx4 v[{vPF}:{vPF+3}], v{t0}, s[{P_WS}:{P_WS+1}]{SC}")
        a(f"s_lshl_b32 s{sT1}, s{sRB}, 7")
        a(f"s_lshl_b32 s{sT2}, s{sRH}, 6")
        a(f"s_add_u32 s{sT1}, s{sT1}, s{sT2}")
        a(f"s_lshl_b32 s{sT2}, s{sCG}, 2")
        a(f"s_add_u32 s{sT1}, s{sT1}, s{sT2}")
        a(f"s_lshl_b32 s{sT2}, s{sCH}, 1")
        a(f"s_add_u32 s94, s{sT1}, s{sT2}")
        a(f"s_mul_i32 s{sT1}, s94, 1280")
        a(f"v_lshlrev_b32 v{t0}, 2, v{vL}")
        a(f"v_add_u32 v{t1}, s{sT1}, v{vWp}")
        a(f"v_add_u32 v{t2}, s{sT1}, v{t0}")
        a(f"global_load_dwordx4 v[{GLD}:{GLD+3}], v{vWp}, s[{P_GW}:{P_GW+1}]")
        a(f"global_load_dword v{GLD+4}, v{t0}, s[{P_GW}:{P_GW+1}] offset:1024")
        a(f"global_load_dwordx4 v[{GLD+6}:{GLD+9}], v{t1}, s[{P_X}:{P_X+1}]")
        a(f"global_load_dword v{GLD+5}, v{t2}, s[{P_X}:{P_X+1}] offset:1024")
        a(f"global_load_dwordx4 v[{GLD+10}:{GLD+13}], v{t1}, s[{P_X}:{P_X+1}] offset:1280")
        a(f"global_load_dword v{GLD+14}, v{t2}, s[{P_X}:{P_X+1}] offset:2304")
        a(f"s_branch L_blkr{ch}")
        a.label(f"L_b0_{ch}")
        spin_init(a)
        a.label(f"L_np{ch}")
        a(f"v_readfirstlane_b32 s{sNonce}, v{vNon}")
        a(f"s_cmp_lg_u32 s{sNonce}, 0")
        a(f"s_cbranch_scc1 L_nok{ch}")
        spin_guard(a, f"L_nok{ch}")
        a(f"v_mov_b32 v{t0}, 0")
        a(f"global_load_dword v{vNon}, v{t0}, s[{P_DBG}:{P_DBG+1}]{SC}")
        a("s_waitcnt vmcnt(0)")
        a(f"s_branch L_np{ch}")
        a.label(f"L_nok{ch}")
        a(f"s_cmp_lg_u32 s{sW}, 0")
        a(f"s_cbranch_scc1 L_blkr{ch}")
        a(f"s_lshl_b32 s{sT1}, s2, 2")
        a(f"s_add_u32 s{sT1}, s{sT1}, {WS_PF}")
        a(f"v_mov_b32 v{t0}, s{sT1}")
        a(f"v_mov_b32 v{t1}, s{sNonce}")
        a(f"s_mov_b64 exec, 1")
        a(f"global_store_dword v{t0}, v{t1}, s[{P_WS}:{P_WS+1}]{SC}")
        a(f"s_mov_b64 exec, -1")
        a(f"s_branch L_blkr{ch}")

    a.label("L_epi")
    stp(a, "tail")
    if LSTAMP:
        a(f"s_lshl_b32 s{sT0}, s2, 2")
        a(f"s_add_u32 s{sT0}, s{sT0}, s{sW}")
        a(f"s_lshl_b32 s{sT0}, s{sT0}, 8")
        a(f"s_add_u32 s{sT0}, s{sT0}, {WS_STAMP + 0x40000}")
        a(f"v_lshl_add_u32 v79, v{vL}, 2, s{sT0}")
        a(f"global_store_dword v79, v80, s[{P_WS}:{P_WS+1}]")
    XCH = BUF
    vHo, vHo2 = 81, 82
    a(f"s_lshl_b32 s{sT0}, s{sRB}, 1")
    a(f"s_add_u32 s{sT0}, s{sT0}, s{sRH}")
    a(f"s_mul_i32 s{sT0}, s{sT0}, {4*88}")
    a(f"s_mul_i32 s{sT1}, s{sCG}, 3")
    a(f"s_add_u32 s{sT0}, s{sT0}, s{sT1}")
    a(f"s_add_u32 s{sT0}, s{sT0}, 40")
    a(f"s_lshl_b32 s{sT1}, s{sCH}, 1")
    a(f"s_add_u32 s{sT1}, s{sT1}, s{sT0}")
    a(f"s_lshl_b32 s{sT1}, s{sT1}, 10")
    a(f"s_add_u32 s{sT0}, s{sT0}, 1")
    a(f"s_mul_i32 s{sT3}, s{sCH}, {2*88}")
    a(f"s_add_u32 s{sT0}, s{sT0}, s{sT3}")
    a(f"s_lshl_b32 s{sT0}, s{sT0}, 10")
    a(f"v_add_u32 v{vHo}, s{sT1}, v{vWp}")
    a(f"v_add_u32 v{vHo2}, s{sT0}, v{vWp}")
    for i in range(4):
        G0, U0, G1, U1 = [acc(n, i) for n in range(4)]
        for (G, Uu) in ((G0, U0), (G1, U1)):
            a(f"v_pk_mul_f32 v[{G}:{G+1}], v[{G}:{G+1}], v[{Uu}:{Uu+1}]")
            a(f"v_pk_mul_f32 v[{G+2}:{G+3}], v[{G+2}:{G+3}], v[{Uu+2}:{Uu+3}]")
        a(f"v_cvt_pk_bf16_f32 v{U0}, v{G0}, v{G0+1}")
        a(f"v_cvt_pk_bf16_f32 v{U0+1}, v{G0+2}, v{G0+3}")
        a(f"v_cvt_pk_bf16_f32 v{U0+2}, v{G1}, v{G1+1}")
        a(f"v_cvt_pk_bf16_f32 v{U0+3}, v{G1+2}, v{G1+3}")
        a(f"v_add_u32 v{G0}, {i*88*1024}, v{vHo}")
        a(f"global_store_dwordx4 v{G0}, v[{U0}:{U0+3}], s[{P_WS}:{P_WS+1}]{SC}")
    for i in range(4):
        G2, U2 = acc(4, i), acc(5, i)
        a(f"v_pk_mul_f32 v[{G2}:{G2+1}], v[{G2}:{G2+1}], v[{U2}:{U2+1}]")
        a(f"v_pk_mul_f32 v[{G2+2}:{G2+3}], v[{G2+2}:{G2+3}], v[{U2+2}:{U2+3}]")
    for i in range(4):
        G2, U2 = acc(4, i), acc(5, i)
        a(f"v_cvt_pk_bf16_f32 v{U2}, v{G2}, v{G2+1}")
        a(f"v_cvt_pk_bf16_f32 v{U2+1}, v{G2+2}, v{G2+3}")
    a(f"s_lshl_b32 s{sT1}, s{sW}, 10")
    a(f"v_lshlrev_b32 v{t1}, 3, v{vL}")
    a(f"v_add_u32 v{t2}, s{sT1}, v{t1}")
    a(f"s_cmp_eq_u32 s{sCH}, 1")
    a(f"s_cbranch_scc1 L_xw1")
    a(f"ds_write_b64 v{t2}, v[{acc(5,2)}:{acc(5,2)+1}] offset:{XCH}")
    a(f"ds_write_b64 v{t2}, v[{acc(5,3)}:{acc(5,3)+1}] offset:{XCH+512}")
    a(f"s_branch L_xw2")
    a.label("L_xw1")
    a(f"ds_write_b64 v{t2}, v[{acc(5,0)}:{acc(5,0)+1}] offset:{XCH}")
    a(f"ds_write_b64 v{t2}, v[{acc(5,1)}:{acc(5,1)+1}] offset:{XCH+512}")
    a.label("L_xw2")
    stp(a, "glu1")
    U = [SA, SBt, S4]; NS = [16, 16, 8]
    eA = [56, 57, 58]; eB = [59, 60, 61]
    cur = [U[T] for T in range(3)]
    for k in range(1, 16):
        Ts = [T for T in range(3) if k < NS[T]]
        dst = eA if (k & 1) else eB
        for T in Ts: a(f"v_fma_f32 v{dst[T]}, v{vLr[T]}, v{cur[T]}, v{U[T]+k}")
        for T in Ts:
            a(f"v_fmac_f32_dpp v{dst[T]}, v{cur[T]}, v{vLi[T]} {DPPSW}")
            cur[T] = dst[T]
    ew = [62, 63, 64]; ex = [65, 66, 67]
    a(f"s_mul_i32 s{sT0}, s{sW}, 320")
    a(f"s_add_u32 s{sT0}, s{sT0}, {MISC}")
    for T in range(3): a(f"v_mul_f32 v{ew[T]}, v{vWSr[T]}, v{cur[T]}")
    for T in range(3): a(f"v_fmac_f32_dpp v{ew[T]}, v{cur[T]}, v{vWSi[T]} {DPPSW}")
    a(f"v_add_u32 v{t0}, s{sT0}, v{vC}")
    a(f"ds_write_b32 v{vAe}, v{cur[0]} offset:{EF0}")
    a(f"ds_write_b32 v{vAe}, v{cur[1]} offset:{EF0+64}")
    a(f"ds_write_b32 v{vAe4}, v{cur[2]} offset:{E40}")
    def qreduce(vals, tmps):
        for v, t in zip(vals, tmps): a(f"v_mov_b32 v{t}, v{v}")
        a("s_nop 0")
        for v, t in zip(vals, tmps): a(f"v_permlane16_swap_b32 v{v}, v{t}")
        a("s_nop 0")
        for v, t in zip(vals, tmps): a(f"v_add_f32 v{v}, v{v}, v{t}")
        for v, t in zip(vals, tmps): a(f"v_mov_b32 v{t}, v{v}")
        a("s_nop 0")
        for v, t in zip(vals, tmps): a(f"v_permlane32_swap_b32 v{v}, v{t}")
        a("s_nop 0")
        for v, t in zip(vals, tmps): a(f"v_add_f32 v{v}, v{v}, v{t}")
    qreduce(ew, ex)
    a(f"ds_write_b32 v{vRw}, v{ew[0]} offset:{SWB}")
    a(f"ds_write_b32 v{vRw}, v{ew[1]} offset:{SWB+64}")
    a(f"ds_write_b32 v{t0}, v{ew[2]} offset:{SWB+256}")
    a("s_waitcnt lgkmcnt(0)")
    a("s_barrier")
    stp(a, "passA")
    a(f"s_xor_b32 s{sT1}, s{sW}, 1")
    a(f"s_lshl_b32 s{sT1}, s{sT1}, 10")
    a(f"v_lshlrev_b32 v{t1}, 3, v{vL}")
    a(f"v_add_u32 v{t2}, s{sT1}, v{t1}")
    a(f"v_add_u32 v{t4}, {88*1024}, v{vHo2}")
    a(f"s_cmp_eq_u32 s{sCH}, 1")
    a(f"s_cbranch_scc1 L_xr1")
    for k in range(2):
        a(f"ds_read_b64 v[{acc(5,k)+2}:{acc(5,k)+3}], v{t2} offset:{XCH+512*k}")
    a("s_waitcnt lgkmcnt(0)")
    a(f"global_store_dwordx4 v{vHo2}, v[{acc(5,0)}:{acc(5,0)+3}], s[{P_WS}:{P_WS+1}]{SC}")
    a(f"global_store_dwordx4 v{t4}, v[{acc(5,1)}:{acc(5,1)+3}], s[{P_WS}:{P_WS+1}]{SC}")
    a(f"s_branch L_xr2")
    a.label("L_xr1")
    for k in range(2):
        a(f"ds_read_b64 v[{acc(4,2+k)}:{acc(4,2+k)+1}], v{t2} offset:{XCH+512*k}")
        a(f"v_mov_b32 v{acc(4,2+k)+2}, v{acc(5,2+k)}")
        a(f"v_mov_b32 v{acc(4,2+k)+3}, v{acc(5,2+k)+1}")
    a("s_waitcnt lgkmcnt(0)")
    a(f"global_store_dwordx4 v{vHo2}, v[{acc(4,2)}:{acc(4,2)+3}], s[{P_WS}:{P_WS+1}]{SC}")
    a(f"global_store_dwordx4 v{t4}, v[{acc(4,3)}:{acc(4,3)+3}], s[{P_WS}:{P_WS+1}]{SC}")
    a.label("L_xr2")
    a(f"s_cmp_lg_u32 s{sW}, 0")
    a(f"s_cbranch_scc1 L_nopub")
    PB = 68
    a(f"v_lshlrev_b32 v{t0}, 3, v{vL}")
    a(f"v_add_u32 v{t0}, {MISC}, v{t0}")
    for w in range(4): a(f"ds_read_b64 v[{PB+2*w}:{PB+2*w+1}], v{t0} offset:{SWB+320*w}")
    a(f"s_lshl_b32 s{sT0}, s{sCG}, 4")
    a(f"s_add_u32 s{sT0}, s{sT0}, s{sRB}")
    a(f"s_mul_i32 s{sT0}, s{sT0}, 640")
    a(f"s_add_u32 s{sT0}, s{sT0}, {WS_S}")
    a(f"v_lshlrev_b32 v{t0}, 4, v{vL}")
    a(f"v_add_u32 v{t0}, s{sT0}, v{t0}")
    a(f"v_mov_b32 v{PB+9}, s{sNonce}")
    a(f"v_mov_b32 v{PB+11}, s{sNonce}")
    a(f"v_cmp_gt_u32 vcc, 40, v{vL}")
    a("s_waitcnt lgkmcnt(0)")
    a(f"v_pk_add_f32 v[{PB}:{PB+1}], v[{PB}:{PB+1}], v[{PB+2}:{PB+3}]")
    a(f"v_pk_add_f32 v[{PB+4}:{PB+5}], v[{PB+4}:{PB+5}], v[{PB+6}:{PB+7}]")
    a(f"v_pk_add_f32 v[{PB}:{PB+1}], v[{PB}:{PB+1}], v[{PB+4}:{PB+5}]")
    a(f"s_and_saveexec_b64 s[{sEX}:{sEX+1}], vcc")
    a(f"v_mov_b32 v{PB+8}, v{PB}")
    a(f"v_mov_b32 v{PB+10}, v{PB+1}")
    a(f"global_store_dwordx4 v{t0}, v[{PB+8}:{PB+11}], s[{P_WS}:{P_WS+1}]{SC}")
    a(f"s_mov_b64 exec, s[{sEX}:{sEX+1}]")
    a.label("L_nopub")
    stp(a, "pub")
    pre = []
    for g in range(7, 12):
        ws_ = wstep(g)
        pre += [[x] for x in ws_[:4]] + [[ws_[4], ws_[5], ws_[6]]]
    X = ACC
    vMr = [X, X+1, X+2]; vMi = [X+3, X+4, X+5]
    vC2r = [X+6, X+7, X+8]; vC2i = [X+9, X+10, X+11]
    vHr = [X+12, X+13, X+14]; vHi = [X+15, X+16, X+17]
    vW0r = [X+18, X+19, X+20]; vW0i = [X+21, X+22, X+23]
    vW1r = [X+24, X+25]; vW1i = [X+26, X+27]
    vLi2 = [X+28, X+29, X+30]
    nOff, nW0, nW1, nOff4, nW4 = X+32, X+33, X+34, X+35, X+36
    vm0, vm1, vm4 = X+37, X+38, X+39
    W = []
    W += [f"v_cvt_f32_u32 v{nOff}, v{vSig}", f"v_mul_f32 v{nOff}, 0x41800000, v{nOff}", f"s_lshl_b32 s{sT0}, s{sCH}, 3",
          f"v_cvt_f32_u32 v{nOff4}, s{sT0}", f"v_add_f32 v{nOff4}, v{nOff4}, v{nOff}",
          f"s_sub_u32 s{sT0}, s{sRB}, 1", f"v_sub_u32 v{t0}, s{sT0}, v{vSig}", f"v_subrev_u32 v{t1}, 8, v{t0}",
          f"v_sub_u32 v{t2}, v{t0}, v{vSig}", f"v_subrev_u32 v{t2}, s{sCH}, v{t2}"]
    for (n_, mreg, src) in ((nW0, vm0, t0), (nW1, vm1, t1), (nW4, vm4, t2)):
        W += [[f"v_cmp_le_i32 vcc, 0, v{src}", f"v_max_i32 v{n_}, 0, v{src}", f"v_cvt_f32_i32 v{n_}, v{n_}",
               f"v_cndmask_b32 v{mreg}, 0, 1.0, vcc"], f"v_mul_f32 v{n_}, 0x43000000, v{n_}"]
    W += [f"v_mov_b32 v{X+40}, 0x41800000", f"v_mov_b32 v{X+41}, 0x41000000"]
    streams = []
    for T in range(3):
        tm = X+44+6*T
        pr, pi, cr, ci = tm+2, tm+3, tm+4, tm+5
        s_ = cpow_s(vMr[T], vMi[T], vA[T], vBx[T], f"v{X+40 if T < 2 else X+41}", tm, vSgn)
        s_ += [f"v_mul_f32 v{pi}, v{vSgn}, v{vLi[T]}", f"v_add_f32 v{pr}, -1.0, v{vLr[T]}",
               f"v_mul_f32 v{tm}, v{vLRE[T]}, v{vLRE[T]}", f"v_fmac_f32 v{tm}, v{vLIM[T]}, v{vLIM[T]}", f"v_rcp_f32 v{tm}, v{tm}",
               f"v_mul_f32 v{cr}, v{pr}, v{vLRE[T]}", f"v_fmac_f32 v{cr}, v{pi}, v{vLIM[T]}",
               f"v_mul_f32 v{ci}, v{pi}, v{vLRE[T]}", f"v_fma_f32 v{ci}, -v{pr}, v{vLIM[T]}, v{ci}",
               f"v_add_f32 v{tm}, v{tm}, v{tm}", f"v_mul_f32 v{cr}, v{tm}, v{cr}", f"v_mul_f32 v{ci}, v{tm}, v{ci}",
               f"v_mul_f32_e64 v{vC2r[T]}, -v{vSgn}, v{cr}", f"v_sub_f32 v{vC2i[T]}, 0, v{ci}", f"v_sub_f32 v{vLi2[T]}, 0, v{vLi[T]}"]
        s_ += cpow_s(pr, pi, vA[T], vBx[T], f"v{nOff if T < 2 else nOff4}", tm, None)
        s_ += [f"v_mul_f32 v{vHr[T]}, v{cr}, v{pr}", f"v_fma_f32 v{vHr[T]}, -v{ci}, v{pi}, v{vHr[T]}",
               f"v_mul_f32 v{vHi[T]}, v{cr}, v{pi}", f"v_fmac_f32 v{vHi[T]}, v{ci}, v{pr}",
               f"v_mul_f32_e64 v{vHr[T]}, -v{vSgn}, v{vHr[T]}", f"v_sub_f32 v{vHi[T]}, 0, v{vHi[T]}"]
        s_ += cpow_s(vW0r[T], vW0i[T], vA[T], vBx[T], f"v{nW0 if T < 2 else nW4}", tm, vSgn)
        mk = vm0 if T < 2 else vm4
        s_ += [f"v_mul_f32 v{vW0r[T]}, v{mk}, v{vW0r[T]}", f"v_mul_f32 v{vW0i[T]}, v{mk}, v{vW0i[T]}"]
        if T < 2:
            s_ += cpow_s(vW1r[T], vW1i[T], vA[T], vBx[T], f"v{nW1}", tm, vSgn)
            s_ += [f"v_mul_f32 v{vW1r[T]}, v{vm1}, v{vW1r[T]}", f"v_mul_f32 v{vW1i[T]}, v{vm1}, v{vW1i[T]}"]
        streams.append(s_)
    W += rr(*streams)
    for x in W:
        if isinstance(x, str): a(x)
        else:
            for y in x: a(y)
    stp(a, "consts2")
    a("s_waitcnt vmcnt(0)")
    vFo = 18
    a(f"s_lshl_b32 s{sT0}, s{sRB}, 1")
    a(f"s_add_u32 s{sT0}, s{sT0}, s{sRH}")
    a(f"s_lshl_b32 s{sT0}, s{sT0}, 4")
    a(f"s_add_u32 s{sT0}, s{sT0}, s{sCG}")
    a(f"s_lshl_b32 s{sT0}, s{sT0}, 1")
    a(f"s_add_u32 s{sT0}, s{sT0}, s{sCH}")
    a(f"s_lshl_b32 s{sT0}, s{sT0}, 2")
    a(f"s_add_u32 s{sT0}, s{sT0}, {WS_FB}")
    a(f"v_mov_b32 v{vFo}, s{sT0}")
    a(f"v_mov_b32 v{t0}, s{sNonce}")
    a(f"s_mov_b64 exec, 1")
    a(f"global_store_dword v{vFo}, v{t0}, s[{P_WS}:{P_WS+1}]{SC}")
    a(f"s_mov_b64 exec, -1")
    stp(a, "flagB")


    Hp = [65, 66, 67]; hx = [56, 57, 58]; bad = 68
    vFl = 24
    a(f"s_lshl_b32 s{sT0}, s{sRB2}, 7")
    a(f"s_lshl_b32 s{sT1}, s{sW}, 5")
    a(f"s_add_u32 s{sT0}, s{sT0}, s{sT1}")
    a(f"v_and_b32 v{vFl}, 7, v{vL}")
    a(f"v_lshlrev_b32 v{vFl}, 2, v{vFl}")
    a(f"v_add_u32 v{vFl}, s{sT0}, v{vFl}")
    a(f"v_add_u32 v{vFl}, {WS_FB}, v{vFl}")
    srd(a, SH, P_WS, WS_G)
    srd(a, SM, P_WS, WS_S + 256*640)
    R = 70
    FBV = 80
    def poll_loads():
        a(f"buffer_load_dwordx2 v[{R}:{R+1}], v{pa[0]}, s[{SM}:{SM+3}], 0 offen{SC}")
        a(f"buffer_load_dwordx2 v[{R+2}:{R+3}], v{pa[0]}, s[{SM}:{SM+3}], 0 offen offset:128{SC}")
        a(f"buffer_load_dwordx2 v[{R+4}:{R+5}], v{pa[1]}, s[{SM}:{SM+3}], 0 offen{SC}")
        a(f"buffer_load_dwordx2 v[{R+6}:{R+7}], v{pa[1]}, s[{SM}:{SM+3}], 0 offen offset:128{SC}")
        a(f"buffer_load_dwordx2 v[{R+8}:{R+9}], v{pa[2]}, s[{SM}:{SM+3}], 0 offen{SC}")
    poll_loads()
    PE = X+64
    W = [f"v_subrev_u32 v{t0}, 256, v{vAe}"]
    for T in range(2):
        for k in range(7): W.append(f"ds_read_b32 v{PE+7*T+k}, v{t0} offset:{EF0 + 64*T - 256*k}")
    W.append(f"v_subrev_u32 v{t1}, 64, v{vAe4}")
    for k in range(15): W.append(f"ds_read_b32 v{PE+14+k}, v{t1} offset:{E40 - 64*k}")
    tu = [56, 57, 58]
    for k in range(16):
        Ts = [T for T in range(3) if k < NS[T]]
        for T in Ts: W.append(f"v_mul_f32 v{tu[T]}, v{vC2r[T]}, v{U[T]+k}")
        for T in Ts: W.append(f"v_fmac_f32_dpp v{tu[T]}, v{U[T]+k}, v{vC2i[T]} {DPPSW}")
        for T in Ts: W.append(f"v_mov_b32 v{U[T]+k}, v{tu[T]}")
    W.append("s_waitcnt lgkmcnt(0)")
    Pc = [PE+6, PE+13, PE+14+14]
    Pt = [[59, 60], [61, 62], [63, 64]]
    nch = [7, 7, 15]; base = [PE, PE+7, PE+14]
    for stepk in range(1, 15):
        Ts = [T for T in range(3) if stepk < nch[T]]
        dst = {T: Pt[T][stepk & 1] for T in Ts}
        grp = []
        for T in Ts: grp.append(f"v_fma_f32 v{dst[T]}, v{vMr[T]}, v{Pc[T]}, v{base[T] + nch[T]-1-stepk}")
        if len(Ts) == 1: grp.append("s_nop 0")
        for T in Ts:
            grp.append(f"v_fmac_f32_dpp v{dst[T]}, v{Pc[T]}, v{vMi[T]} {DPPSW}")
            Pc[T] = dst[T]
        if len(Ts) == 1: grp.append("s_nop 0")
        W += grp
    W.append("s_nop 1")
    for T in range(3): W.append(f"v_mul_f32 v{Ps[T]}, v{vC2r[T]}, v{Pc[T]}")
    for T in range(3): W.append(f"v_fmac_f32_dpp v{Ps[T]}, v{Pc[T]}, v{vC2i[T]} {DPPSW}")
    W += [f"v_mov_b32 v7, v{vAs}", f"v_mov_b32 v8, v{vCm}",
          f"v_and_b32 v{t0}, 15, v{vL}", f"v_lshrrev_b32 v{t1}, 2, v{t0}", f"v_lshlrev_b32 v{t1}, 1, v{t1}", f"v_add_u32 v{t1}, s{sCH}, v{t1}",
          f"v_mul_u32_u24 v{t1}, {HTS}, v{t1}", f"v_and_b32 v{t2}, 3, v{t0}", f"v_lshlrev_b32 v{t2}, 2, v{t2}", f"v_lshrrev_b32 v{t3}, 4, v{vL}",
          f"v_add_u32 v{t2}, v{t2}, v{t3}", f"s_lshl_b32 s{sT0}, s{sRH}, 4", f"v_add_u32 v{t2}, s{sT0}, v{t2}",
          f"v_lshl_add_u32 v{RA}, v{t2}, 3, v{t1}",
          f"s_lshl_b32 s{sT0}, s{sRB}, 1", f"s_add_u32 s{sT0}, s{sT0}, s{sRH}", f"s_lshl_b32 s{sT0}, s{sT0}, 2",
          f"v_add_u32 v{t3}, s{sT0}, v{t3}", f"v_mul_u32_u24 v{t3}, 88, v{t3}", f"s_mul_i32 s{sT0}, s{sCH}, 20",
          f"v_add_u32 v{t3}, s{sT0}, v{t3}", f"v_lshlrev_b32 v{t3}, 10, v{t3}", f"v_lshl_add_u32 v{GA}, v{t0}, 4, v{t3}"]
    NPF = 20
    FBPOS = 13
    items = pre[:FBPOS] + [[f"global_load_dword v{FBV}, v{vFl}, s[{P_WS}:{P_WS+1}]{SC}"]] + pre[FBPOS:NPF]
    weave(a, W, items, start=0)
    stp(a, "prefix")
    a(f"s_waitcnt vmcnt({NPF-FBPOS})")
    spin_init(a)
    a(f"s_branch L_pollc")
    a.label("L_poll")
    spin_guard(a, "L_pollx")
    poll_loads()
    a("s_waitcnt vmcnt(0)")
    a.label("L_pollc")
    a(f"v_mov_b32 v{bad}, 0")
    for (ri, mreg) in ((R+1, vm0), (R+3, vm0), (R+5, vm1), (R+7, vm1), (R+9, vm4)):
        a(f"v_cmp_ne_u32 vcc, s{sNonce}, v{ri}")
        a("s_nop 1")
        a(f"v_cndmask_b32 v{t0}, 0, v{mreg}, vcc")
        a(f"v_or_b32 v{bad}, v{bad}, v{t0}")
    a(f"v_cmp_ne_u32 vcc, 0, v{bad}")
    a("s_nop 4")
    a("s_cbranch_vccnz L_poll")
    a.label("L_pollx")
    for (T, ri) in ((0, R), (1, R+2), (2, R+8)): a(f"v_mul_f32 v{Hp[T]}, v{vW0r[T]}, v{ri}")
    for (T, ri) in ((0, R), (1, R+2), (2, R+8)): a(f"v_fmac_f32_dpp v{Hp[T]}, v{ri}, v{vW0i[T]} {DPPSW}")
    for (T, ri) in ((0, R+4), (1, R+6)): a(f"v_fmac_f32 v{Hp[T]}, v{vW1r[T]}, v{ri}")
    for (T, ri) in ((0, R+4), (1, R+6)): a(f"v_fmac_f32_dpp v{Hp[T]}, v{ri}, v{vW1i[T]} {DPPSW}")
    qreduce(Hp, hx)
    a(f"s_mul_i32 s{sT0}, s{sW}, 320")
    a(f"s_add_u32 s{sT0}, s{sT0}, {MISC}")
    a(f"v_add_u32 v{t0}, s{sT0}, v{vC}")
    a(f"ds_write_b32 v{vRw}, v{Hp[0]} offset:{RWB}")
    a(f"ds_write_b32 v{vRw}, v{Hp[1]} offset:{RWB+64}")
    a(f"ds_write_b32 v{t0}, v{Hp[2]} offset:{RWB+256}")
    stp(a, "poll")
    spin_init(a)
    a.label("L_fbpoll")
    a(f"v_cmp_ne_u32 vcc, s{sNonce}, v{FBV}")
    a("s_nop 4")
    a("s_cbranch_vccz L_fbx")
    spin_guard(a, "L_fbx")
    a(f"global_load_dword v{FBV}, v{vFl}, s[{P_WS}:{P_WS+1}]{SC}")
    a("s_waitcnt vmcnt(0)")
    a("s_branch L_fbpoll")
    a.label("L_fbx")
    stp(a, "flagB seen")
    slots = [52, 68, 84, "a88", 100]
    def hreg(slot, i):
        sl = slots[slot]
        if isinstance(sl, str): return f"a[{88+4*i}:{91+4*i}]"
        return f"v[{sl+4*i}:{sl+4*i+3}]"
    def hloads(g):
        return [f"buffer_load_dwordx4 {hreg(g % 5, i)}, v{vH+i}, s[{SH}:{SH+3}], s{sKH} offen{SCL}" for i in range(4)]
    a(f"s_mul_i32 s{sKH}, s{sW}, 12")
    a(f"s_add_u32 s{sKH}, s{sKH}, 40")
    a(f"s_lshl_b32 s{sKH}, s{sKH}, 10")
    a("s_waitcnt lgkmcnt(0)")
    early = []
    for g in range(5):
        hl = hloads(g)
        early += [[x] for x in hl[:3]] + [[hl[3], f"s_add_u32 s{sKH}, s{sKH}, 1024"]]
    sOff = [73, 74, 75, 76, 77]
    for it in range(5):
        a(f"s_mul_i32 s{sT0}, s{sCG}, 5")
        a(f"s_add_u32 s{sT0}, s{sT0}, {it}")
        a(f"s_lshr_b32 s{sT1}, s{sT0}, 2")
        a(f"s_lshl_b32 s{sT1}, s{sT1}, 10")
        a(f"s_and_b32 s{sT0}, s{sT0}, 3")
        a(f"s_lshl_b32 s{sT0}, s{sT0}, 8")
        a(f"s_add_u32 s{sOff[it]}, s{sT0}, s{sT1}")
    for it in early[:4]:
        for x in it: a(x)
    early = early[4:]
    a("s_barrier")
    Hw = [X+48, X+49, X+50]
    a(f"s_mul_i32 s{sT0}, s{sCH}, 320")
    a(f"s_add_u32 s{sT0}, s{sT0}, {MISC}")
    a(f"v_add_u32 v{t0}, s{sT0}, v{vAs2}")
    hr = [X+40, X+41, X+42, X+43, X+44, X+45, X+46, X+47]
    a(f"ds_read_b32 v{hr[0]}, v{t0} offset:{RWB}")
    a(f"ds_read_b32 v{hr[1]}, v{t0} offset:{RWB+640}")
    a(f"ds_read_b32 v{hr[2]}, v{t0} offset:{RWB+64}")
    a(f"ds_read_b32 v{hr[3]}, v{t0} offset:{RWB+704}")
    for w in range(4): a(f"ds_read_b32 v{hr[4+w]}, v{vCm2} offset:{RWB+256+320*w}")
    a("s_waitcnt lgkmcnt(0)")
    W = [f"v_add_f32 v{Hw[0]}, v{hr[0]}, v{hr[1]}", f"v_add_f32 v{Hw[1]}, v{hr[2]}, v{hr[3]}", f"v_add_f32 v{hr[4]}, v{hr[4]}, v{hr[5]}",
         f"v_add_f32 v{hr[6]}, v{hr[6]}, v{hr[7]}", f"v_add_f32 v{Hw[2]}, v{hr[4]}, v{hr[6]}"]
    for T in range(3): W.append(f"v_fmac_f32 v{Ps[T]}, v{vHr[T]}, v{Hw[T]}")
    W.append("s_nop 0")
    for T in range(3): W.append(f"v_fmac_f32_dpp v{Ps[T]}, v{Hw[T]}, v{vHi[T]} {DPPSW}")
    cur = list(Ps)
    W.append("s_nop 0")
    for k in range(16):
        Ts = [T for T in range(3) if k < NS[T]]
        for T in Ts: W.append(f"v_fmac_f32 v{U[T]+k}, v{vLr[T]}, v{cur[T]}")
        for T in Ts:
            W.append(f"v_fmac_f32_dpp v{U[T]+k}, v{cur[T]}, v{vLi2[T]} {DPPSW}")
            cur[T] = U[T]+k
    for T in range(3):
        for k in range(NS[T]//2):
            W.append(f"v_cvt_pk_bf16_f32 v{X + 16*T + k}, v{U[T]+2*k}, v{U[T]+2*k+1}")
    W += [f"v_and_b32 v{t0}, 15, v{vL}", f"s_lshl_b32 s{sT0}, s{sCH}, 5", f"v_add_u32 v{t1}, s{sT0}, v{t0}",
          f"v_mul_u32_u24 v{t1}, {HTS}, v{t1}", f"v_lshl_add_u32 v{t1}, v{vSig}, 5, v{t1}",
          f"v_add_u32 v{t0}, 64, v{t0}", f"v_mul_u32_u24 v{t0}, {HTS}, v{t0}", f"v_lshl_add_u32 v{t0}, v{vSig}, 5, v{t0}",
          f"s_lshl_b32 s{sT0}, s{sCH}, 4", f"v_add_u32 v{t0}, s{sT0}, v{t0}"]
    weave(a, W, early, start=6)
    stp(a, "passB")
    a(f"ds_write_b128 v{t1}, v[{X}:{X+3}]")
    a(f"ds_write_b128 v{t1}, v[{X+4}:{X+7}] offset:16")
    a(f"ds_write_b128 v{t1}, v[{X+16}:{X+19}] offset:{16*HTS}")
    a(f"ds_write_b128 v{t1}, v[{X+20}:{X+23}] offset:{16*HTS+16}")
    a(f"ds_write_b128 v{t0}, v[{X+32}:{X+35}]")
    a("s_waitcnt lgkmcnt(0)")
    a("s_barrier")
    DT = 200
    for it in range(5):
        a(f"ds_read_b64_tr_b16 v[{DT+4*it}:{DT+4*it+1}], v{RA} offset:{it*16*HTS}")
        a(f"ds_read_b64_tr_b16 v[{DT+4*it+2}:{DT+4*it+3}], v{RA} offset:{it*16*HTS+8*HTS}")
    PACE = "pace" in FLAGS
    def hA_store(it): return f"buffer_store_dwordx4 v[{DT+4*it}:{DT+4*it+3}], v{GA}, s[{SH}:{SH+3}], s{sOff[it]} offen{SC}"
    stp(a, "hA stored")
    accB = lambda j, i: 120 + (j*4+i)*4
    def accA(j, i):
        t = j*4+i
        return 200 + 4*t if t < 14 else 26 + 4*(t-14)
    def wreg(g, j): b = wbase(g, j); return f"a[{b}:{b+3}]"
    fifo = [("h", g) for g in range(5) for _ in range(4)]
    if not PACE:
        for it in range(5):
            a(f"s_waitcnt lgkmcnt({2*(4-it)})")
            a(hA_store(it)); fifo.append(("st", it))
    def issue(x, tag):
        a(x); fifo.append(tag)
    def wait_for(pred):
        idx = [i for i, tg in enumerate(fifo) if pred(tg)]
        if not idx: return
        n = len(fifo) - 1 - max(idx)
        assert n <= 63, n
        a(f"s_waitcnt vmcnt({n})")
        del fifo[:max(idx)+1]
    sKS, sKS4 = 85, 86
    a(f"s_mul_i32 s{sKS}, s{sCB}, 88")
    a(f"s_mul_i32 s{sT0}, s{sW}, 5")
    a(f"s_add_u32 s{sKS}, s{sKS}, s{sT0}")
    a(f"s_mul_i32 s{sKS}, s{sKS}, 5120")
    a(f"s_add_u32 s{sKS4}, s{sKS}, 4096")
    wq = []
    assert NPF % 5 == 0
    for g in range(7 + NPF//5, 12):
        st_ = wstep(g)
        for j in range(5): wq.append((("wg", g), 0, st_[j], st_[5:] if j == 4 else []))
    for sidx in range(10):
        for j in range(5):
            x = wload(sidx, j).replace(f"s{sKW} offen", f"s{sKS} offen").replace(f"s{sKW4} offen", f"s{sKS4} offen")
            inc = (20-4)*5120 if sidx == 4 else 5120
            wq.append((("w", sidx), sidx, x, [f"s_add_u32 s{sKS}, s{sKS}, {inc}", f"s_add_u32 s{sKS4}, s{sKS4}, {inc}"] if j == 4 else []))
    RATE = 3
    LA, OA = 2, 7
    vG = [12, 14, 16, 22]
    vLW = 25
    XR, GR, DR = 84, 94, 100
    RS = 336; RED = 64*RS
    fill = []
    for i in range(5):
        w1, w2, w3 = t0, t1, t3
        fill += [f"v_add_u32 v{w1}, {256*i}, v0", f"v_mul_u32_u24 v{w2}, 3277, v{w1}", f"v_lshrrev_b32 v{w2}, 16, v{w2}",
                 f"v_mul_u32_u24 v{w3}, 20, v{w2}", f"v_sub_u32 v{w3}, v{w1}, v{w3}", f"v_mul_u32_u24 v{LA+i}, {RS}, v{w2}",
                 f"v_lshl_add_u32 v{LA+i}, v{w3}, 4, v{LA+i}", f"s_lshl_b32 s{sT0}, s{sRB2}, 6", f"v_add_u32 v{w2}, s{sT0}, v{w2}",
                 f"v_mul_u32_u24 v{w2}, 640, v{w2}", f"s_mul_i32 s{sT1}, s{sCB}, 80", f"v_lshl_add_u32 v{w3}, v{w3}, 2, s{sT1}",
                 f"v_add_u32 v{w2}, v{w2}, v{w3}", f"v_lshlrev_b32 v{OA+i}, 2, v{w2}"]
    fill += [f"v_and_b32 v{t0}, 15, v{vL}", f"v_lshrrev_b32 v{t1}, 2, v{t0}", f"v_lshlrev_b32 v{t1}, 4, v{t1}", f"v_and_b32 v{t0}, 3, v{t0}",
             f"v_add_u32 v{t0}, v{t0}, v{t1}", f"s_lshl_b32 s{sT0}, s{sRB2}, 6", f"v_add_u32 v{t1}, s{sT0}, v{t0}",
             f"v_lshlrev_b32 v{t1}, 2, v{t1}", f"v_add_u32 v50, {WS_G}, v{t1}",
             f"v_mul_u32_u24 v{t0}, {RS}, v{t0}", f"v_lshrrev_b32 v{t3}, 4, v{vL}", f"v_lshl_add_u32 v{t0}, v{t3}, 4, v{t0}",
             f"s_mul_i32 s{sT0}, s{sW}, {RED}", f"v_add_u32 v{vLW}, s{sT0}, v{t0}"]
    stp(a, "K2 setup")
    fill2 = []
    for i in range(5):
        fill2 += [f"v_lshrrev_b32 v{t0}, 1, v{OA+i}", (f"global_load_dwordx2 v[{XR+2*i}:{XR+2*i+1}], v{t0}, s[{P_X}:{P_X+1}]", ("f", 0))]
    fill2 += [f"s_lshl_b32 s{sT0}, s{sRB2}, 6", f"s_mul_i32 s{sT1}, s{sCB}, 160"]
    for i in range(5):
        fill2 += [f"v_mul_u32_u24 v{t1}, 49933, v{LA+i}", f"v_lshrrev_b32 v{t1}, 24, v{t1}", f"v_add_u32 v{t0}, s{sT0}, v{t1}",
                  f"v_lshlrev_b32 v{t0}, 2, v{t0}", f"v_add_u32 v{t0}, {WS_G}, v{t0}",
                  (f"global_load_dword v{GR+i}, v{t0}, s[{P_WS}:{P_WS+1}]{SC}", ("f", 0)),
                  f"v_mul_u32_u24 v{t1}, {RS}, v{t1}", f"v_sub_u32 v{t1}, v{LA+i}, v{t1}", f"v_lshrrev_b32 v{t1}, 1, v{t1}",
                  f"v_add_u32 v{t1}, s{sT1}, v{t1}", (f"global_load_dwordx2 v[{DR+2*i}:{DR+2*i+1}], v{t1}, s[{P_DSK}:{P_DSK+1}]", ("f", 0))]
    for g in range(22):
        glu = g < 12
        slot = g % 5
        wg = g if glu else g-12
        wait_for(lambda tg: tg == ("h", g) or (not glu and tg == ("w", g-12)) or (glu and tg == ("wg", g)))
        if g == 0: stp(a, "h0 landed")
        if "kstamp" in FLAGS:
            if g > 0:
                a("s_waitcnt lgkmcnt(0)"); a(f"v_writelane_b32 v23, s38, {g-1}")
            a("s_memtime s[38:39]")
        if g == 0 and PACE:
            a("s_waitcnt lgkmcnt(0)")
        if g == (6 if PACE else 3):
            wait_for(lambda tg: tg[0] == "st")
            a(f"v_add_u32 v{t0}, {WS_FA-WS_FB}, v{vFo}")
            a(f"v_mov_b32 v{t1}, s{sNonce}")
            a(f"s_mov_b64 exec, 1")
            issue(f"global_store_dword v{t0}, v{t1}, s[{P_WS}:{P_WS+1}]{SC}", ("fa", 0))
            a(f"s_mov_b64 exec, -1")
        if g == (7 if PACE else 6):
            a(f"v_add_u32 v{vFl}, {WS_FA-WS_FB}, v{vFl}")
            issue(f"global_load_dword v{t2}, v{vFl}, s[{P_WS}:{P_WS+1}]{SC}", ("fp", 0))
        if g == 15:
            a("s_barrier")
            for i in range(4): issue(f"global_load_dword v{vG[i]}, v50, s[{P_WS}:{P_WS+1}] offset:{16*i}{SC}", ("g", 0))
        mf = []
        for j in range(5):
            for i in range(4):
                d = accB(j, i) if glu else accA(j, i)
                c = "0" if g in (0, 12) else f"v[{d}:{d+3}]"
                mf.append(f"v_mfma_f32_16x16x32_bf16 v[{d}:{d+3}], {wreg(wg, j)}, {hreg(slot, i)}, {c}")
        nw = 0
        for idx, x in enumerate(mf):
            a(x)
            if idx % 4 == 1 and nw < RATE and wq and wq[0][1] < g:
                tg, e_, ins, post = wq.pop(0); issue(ins, tg); nw += 1
                for y in post: a(y)
            elif g >= 8 and fill and idx % 4 != 1: a(fill.pop(0))
            elif g >= 20 and fill2:
                for _ in range(2):
                    if fill2:
                        it_ = fill2.pop(0)
                        if isinstance(it_, str): a(it_)
                        else: issue(it_[0], it_[1])
        while nw < RATE and wq and wq[0][1] <= g:
            tg, e_, ins, post = wq.pop(0); issue(ins, tg); nw += 1
            for y in post: a(y)
        if g < 5 and PACE: issue(hA_store(g), ("st", g))
        for gn in range(22):
            la = 5 if gn < 12 else ((4 if gn < 17 else 3) if "la5" not in FLAGS else 5)
            if gn >= 5 and gn - la == g:
                if gn == 12:
                    wait_for(lambda tg: tg[0] == "fp")
                    spin_init(a)
                    a.label("L_fachk")
                    a(f"v_cmp_ne_u32 vcc, s{sNonce}, v{t2}")
                    a("s_nop 4")
                    a("s_cbranch_vccz L_faok")
                    spin_guard(a, "L_faok")
                    a(f"global_load_dword v{t2}, v{vFl}, s[{P_WS}:{P_WS+1}]{SC}")
                    a("s_waitcnt vmcnt(0)")
                    a("s_branch L_fachk")
                    a.label("L_faok")
                    a(f"s_mul_i32 s{sKH}, s{sW}, {5*1024}")
                elif gn == 17: a(f"s_add_u32 s{sKH}, s{sKH}, {15*1024}")
                for x in hloads(gn): issue(x, ("h", gn))
                a(f"s_add_u32 s{sKH}, s{sKH}, 1024")
    assert not fill and not wq and not fill2, (len(fill), len(wq), len(fill2))
    if "kstamp" in FLAGS:
        a("s_waitcnt lgkmcnt(0)"); a(f"v_writelane_b32 v23, s38, 21")
        a("s_memtime s[38:39]"); a("s_waitcnt lgkmcnt(0)"); a(f"v_writelane_b32 v23, s38, 22")
        a(f"s_lshl_b32 s{sT0}, s2, 2"); a(f"s_add_u32 s{sT0}, s{sT0}, s{sW}"); a(f"s_lshl_b32 s{sT0}, s{sT0}, 8")
        a(f"s_add_u32 s{sT0}, s{sT0}, {WS_STAMP + 0x80000}")
        a(f"v_lshl_add_u32 v{t0}, v{vL}, 2, s{sT0}")
        a(f"global_store_dword v{t0}, v23, s[{P_WS}:{P_WS+1}]")
    stp(a, "K2 loop")
    wait_for(lambda tg: tg[0] == "g")
    for j in range(5):
        for i in range(4):
            A_r, B_r = accA(j, i), accB(j, i)
            for h in (0, 2):
                a(f"v_pk_add_f32 v[{A_r+h}:{A_r+h+1}], v[{A_r+h}:{A_r+h+1}], v[{B_r+h}:{B_r+h+1}] neg_lo:[0,1] neg_hi:[0,1]")
            for h in (0, 2):
                a(f"v_pk_fma_f32 v[{B_r+h}:{B_r+h+1}], v[{vG[i]}:{vG[i]+1}], v[{A_r+h}:{A_r+h+1}], v[{B_r+h}:{B_r+h+1}] op_sel_hi:[0,1,1]")
            a(f"ds_write_b128 v{vLW}, v[{B_r}:{B_r+3}] offset:{i*4*RS + 64*j}")
    a("s_waitcnt lgkmcnt(0)")
    a("s_barrier")
    stp(a, "red written")
    for i in range(5):
        b = 120 + 16*i
        for w in range(4):
            a(f"ds_read_b128 v[{b+4*w}:{b+4*w+3}], v{LA+i} offset:{w*RED}")
    a("s_waitcnt vmcnt(0)")
    for i in range(5):
        b = 120 + 16*i
        a(f"s_waitcnt lgkmcnt({min(15,4*(4-i))})")
        a(f"v_pk_add_f32 v[{b}:{b+1}], v[{b}:{b+1}], v[{b+4}:{b+5}]")
        a(f"v_pk_add_f32 v[{b+2}:{b+3}], v[{b+2}:{b+3}], v[{b+6}:{b+7}]")
        a(f"v_pk_add_f32 v[{b+8}:{b+9}], v[{b+8}:{b+9}], v[{b+12}:{b+13}]")
        a(f"v_pk_add_f32 v[{b+10}:{b+11}], v[{b+10}:{b+11}], v[{b+14}:{b+15}]")
        a(f"v_pk_add_f32 v[{b}:{b+1}], v[{b}:{b+1}], v[{b+8}:{b+9}]")
        a(f"v_pk_add_f32 v[{b+2}:{b+3}], v[{b+2}:{b+3}], v[{b+10}:{b+11}]")
        x0, d0_ = XR+2*i, DR+2*i
        for h in range(2):
            a(f"v_lshlrev_b32 v{t1}, 16, v{x0+h}")
            a(f"v_and_b32 v{t2}, 0xffff0000, v{x0+h}")
            a(f"v_lshlrev_b32 v{t3}, 16, v{d0_+h}")
            a(f"v_and_b32 v{t4}, 0xffff0000, v{d0_+h}")
            a(f"v_mul_f32 v{t1}, v{t1}, v{t3}")
            a(f"v_mul_f32 v{t2}, v{t2}, v{t4}")
            a(f"v_fmac_f32 v{b+2*h}, v{GR+i}, v{t1}")
            a(f"v_fmac_f32 v{b+2*h+1}, v{GR+i}, v{t2}")
        a(f"global_store_dwordx4 v{OA+i}, v[{b}:{b+3}], s[{P_OUT}:{P_OUT+1}]")
    stp(a, "out stored")
    if LSTAMP:
        pass
    if "dbgt" in FLAGS:
        a("s_waitcnt vmcnt(0)")
        a("s_memrealtime s[40:41]"); a("s_memtime s[42:43]")
        a("s_waitcnt lgkmcnt(0)")
        a(f"s_cmp_lg_u32 s{sW}, 0")
        a("s_cbranch_scc1 L_end")
        a("s_not_b32 s44, s101")
        a("v_mov_b32 v2, 0"); a("v_mov_b32 v3, s44"); a("v_mov_b32 v4, s40")
        a("s_mov_b64 exec, 1")
        a(f"global_atomic_umax v2, v3, s[{P_DBG}:{P_DBG+1}] offset:16 sc1")
        a(f"global_atomic_umax v2, v4, s[{P_DBG}:{P_DBG+1}] offset:20 sc1")
        a("s_cmp_lg_u32 s2, 0")
        a("s_cbranch_scc1 L_end")
        a("s_sub_u32 s42, s42, s96"); a("s_sub_u32 s40, s40, s101")
        a("v_mov_b32 v3, s42"); a("v_mov_b32 v4, s40")
        a(f"global_store_dword v2, v3, s[{P_DBG}:{P_DBG+1}] offset:24")
        a(f"global_store_dword v2, v4, s[{P_DBG}:{P_DBG+1}] offset:28")
    stp.dump(a, sW, sT0, P_WS, WS_STAMP)
    a.label("L_end")
    a("s_endpgm")
    a.label("L_codeend")
    return a.text()

HEADER = open("gated_mix__ssm_conv_s5__glu_gated_bilinear__prompt.s.ref").read().split("; Override launch")[0]
def main():
    out = HEADER
    out += "; Override launch geometry by editing the next line. Harness parses it; keep it on one line.\n"
    out += "; @launch grid=(256,1,1) block=(256,1,1) lds=163840\n"
    out += '.amdgcn_target "amdgcn-amd-amdhsa--gfx950"\n.text\n'
    out += f".globl {KNAME}\n.p2align 8\n.type {KNAME},@function\n" + gen()
    out += f""".section .rodata,"a"
.p2align 6
.amdhsa_kernel {KNAME}
  .amdhsa_next_free_vgpr 512
  .amdhsa_next_free_sgpr 102
  .amdhsa_accum_offset 256
  .amdhsa_group_segment_fixed_size 0
  .amdhsa_kernarg_size 136
  .amdhsa_user_sgpr_count 2
  .amdhsa_user_sgpr_kernarg_segment_ptr 1
  .amdhsa_system_sgpr_workgroup_id_x 1
  .amdhsa_float_denorm_mode_32 3
.end_amdhsa_kernel
"""
    path = [x for x in sys.argv[1:] if not x.startswith("--")][0]
    open(path, "w").write(out)
    json.dump([[d[i] for i in sorted(d)] for d in NAMES], open(path + ".names", "w"))
main()
```

```python
import sys, json
from asmlib import *

FLAGS = set(x[2:] for x in sys.argv[1:] if x.startswith("--"))
OPT = dict(x.split("=") for x in FLAGS if "=" in x)
STAMP = "stamp" in FLAGS
NAMES = []
KNAME = "gated_mix__ssm_conv_s5__glu_gated_bilinear__prompt_kernel"

WS_H   = 0
WS_G   = 0xB00000
WS_S   = 0xB10000
WS_FB  = 0xB40000
WS_FA  = 0xB42000
WS_PF  = 0xB44000
WS_W2  = 0xC00000
W2_SIZE = 8*88*5*1024
WS_STAMP = 0x1000000
LOG2E = 0x3fb8aa3b
INV2PI = 0x3e22f983
SC = "" if "nosc" in FLAGS else " sc1"
SCL = "" if ("nosc" in FLAGS or "noscl" in FLAGS) else " sc1"
LSTAMP = "lstamp" in FLAGS

def srd(a, d, base, size, add=0):
    o = []
    if add == 0:
        o += [f"s_mov_b32 s{d}, s{base}", f"s_mov_b32 s{d+1}, s{base+1}"]
    elif add > 0:
        o += [f"s_add_u32 s{d}, s{base}, {add}", f"s_addc_u32 s{d+1}, s{base+1}, 0"]
    else:
        o += [f"s_sub_u32 s{d}, s{base}, {-add}", f"s_subb_u32 s{d+1}, s{base+1}, 0"]
    o += [f"s_mov_b32 s{d+2}, {size}", f"s_mov_b32 s{d+3}, 0x00020000"]
    if a is None: return o
    for x in o: a(x)

class Stamper:
    def __init__(self, store):
        self.store = store; self.n = 0; self.tmp = [98, 100]; self.names = {}
        NAMES.append(self.names)
    def __call__(self, a, name=""):
        if not STAMP: return
        if self.n > 0:
            a(f"s_mov_b32 s{self.store[self.n-1]}, s{self.tmp[(self.n-1)&1]}")
        assert self.n < len(self.store), "too many stamps"
        a(f"s_memtime s[{self.tmp[self.n&1]}:{self.tmp[self.n&1]+1}]")
        self.names[self.n] = name
        self.n += 1
    def dump(self, a, sW, sT0, P_WS, base):
        if not STAMP: return
        a("s_waitcnt vmcnt(0) lgkmcnt(0)")
        self(a, "end")
        a("s_waitcnt lgkmcnt(0)")
        a(f"s_mov_b32 s{self.store[self.n-1]}, s{self.tmp[(self.n-1)&1]}")
        a(f"s_lshl_b32 s{sT0}, s2, 2")
        a(f"s_add_u32 s{sT0}, s{sT0}, s{sW}")
        a(f"s_lshl_b32 s{sT0}, s{sT0}, 7")
        a(f"s_add_u32 s{sT0}, s{sT0}, {base}")
        a(f"v_mov_b32 v2, s{sT0}")
        if "dbgstamp" in FLAGS:
            keep = [i for i in range(1, self.n) if self.names[i] not in ("small issued", "glu1", "pub", "flagB", "flagB seen", "out stored")][:15]
            a("s_cmp_lg_u32 s2, 101")
            a("s_cbranch_scc1 L_end")
            a(f"s_cmp_lg_u32 s{sW}, 0")
            a("s_cbranch_scc1 L_end")
            a("v_mov_b32 v2, 0")
            for k, i in enumerate(keep):
                a(f"s_sub_u32 s40, s{self.store[i]}, s{self.store[0]}")
                a("v_mov_b32 v3, s40")
                a(f"global_store_dword v2, v3, s[34:35] offset:{4*(k+1)}")
            print("debug stamps:", [self.names[i] for i in keep])
            return
        for i in range(self.n):
            a(f"v_mov_b32 v3, s{self.store[i]}")
            a(f"global_store_dword v2, v3, s[{P_WS}:{P_WS+1}] offset:{4*i}")

def rr(*streams):
    out = []
    n = max(len(s) for s in streams)
    for i in range(n):
        for s in streams:
            if i < len(s): out.append(s[i])
    return out

def weave(a, work, mem, start=0, every=None):
    n = len(work); m = len(mem)
    if m == 0: pos = []
    elif every is None: pos = [start + int((n - start) * i / m) for i in range(m)]
    else: pos = [start + every*i for i in range(m)]
    mi = 0
    def emit(it):
        if isinstance(it, str): a(it)
        else:
            for x in it: a(x)
    for i, w in enumerate(work):
        while mi < m and pos[mi] <= i:
            emit(mem[mi]); mi += 1
        emit(w)
    while mi < m:
        emit(mem[mi]); mi += 1

SPIN_MAX = 100000
def spin_init(a): a("s_mov_b32 s95, 0")
def spin_guard(a, out_label):
    a("s_add_u32 s95, s95, 1")
    a(f"s_cmp_gt_u32 s95, {SPIN_MAX}")
    a(f"s_cbranch_scc1 {out_label}")

DPPSW = "quad_perm:[1,0,3,2] row_mask:0xf bank_mask:0xf"
P_X, P_LRE, P_LIM, P_BRE, P_BIM, P_CRE, P_CIM, P_LDT = 4,6,8,10,12,14,16,18
P_DSK, P_BX, P_WG, P_WU = 20,22,24,26
P_WD, P_GW, P_OUT, P_DBG = 28,30,32,34
P_WS = 36

def gen():
    a = Asm()
    stp = Stamper([96,97,22,23,6,7,8,9,18,19,10,11,12,13,24,25,26,27,82,83,84,40,41,42,43,73,74])
    SX, SG, SU, SB0, SB1, SB2, SM = 40,44,48,52,56,60,64
    sEX = 38
    sW, sRH, sCH, sRB, sCG = 68,69,70,71,72
    sDB, sCur, sD, sC3, sStage = 73,74,75,76,77
    sKX, sKG, sKU, sKB = 78,79,80,81
    sOX, sOG, sOU, sOB, sOB2 = 82,83,84,85,86
    sT0, sT1, sT2 = 87,88,89
    sF = 87
    sBlk, sRB2, sCB = 90, 91, 92
    sT3 = 93
    sNonce = 3
    vL = 1
    vDX, vDW, vDB = 2, 6, 9
    vX0, vX1, vWa, vWb, vWc, vB0, vB1 = 12,13,14,15,16,17,18
    t0, t1, t2, t3, t4 = 19,20,21,22,23
    vA  = [24,25,26]; vBx = [27,28,29]; vLRE = [30,31,32]; vLIM = [33,34,35]
    vLr = [36,37,38]; vLi = [39,40,41]; vWSr = [42,43,44]; vWSi = [45,46,47]
    vSgn, vNon, vSig, vWp = 48, 49, 50, 51
    vPF = 52
    SCR = 52
    vC, vAe, vAe4, vRw = 90, 91, 92, 93
    pa = [94, 95, 96]
    GLD = 56
    vGst, vGv = 71, 72
    RA, GA = 2, 3
    Ps = [4, 5, 6]
    vAs, vCm = 97, 98
    vAs2, vCm2 = 7, 8
    vH = 116
    ACC = 120
    BUF = 51200
    RX, RG, RU, RB = 0, 16384, 28672, 40960
    MISC = 3*BUF
    SWB, EF, E4, RWB = 0, 1280, 5120, 7104
    EF0 = EF + 7*256; E40 = E4 + 15*64
    HTS = 272
    def acc(n, i): return ACC + n*16 + 4*i
    SA, SBt, S4 = ACC+96, ACC+112, ACC+128
    CL = 52
    PK = 100
    vPWs, vPCs, vPWd, vPCd, vPtr = 61, 63, 64, 66, 68
    TP = 69

    a.label(KNAME)
    a(f"s_cmp_ge_u32 s2, 256")
    a(f"s_cbranch_scc1 L_end")
    if "nocodepf" not in FLAGS:
        a("s_getpc_b64 s[40:41]")
        a.label("L_pc")
        a("v_lshlrev_b32 v2, 2, v0")
        a("s_lshr_b32 s42, s2, 3")
        a("s_lshl_b32 s42, s42, 10")
        a("v_add_u32 v2, s42, v2")
        a("v_min_u32 v2, L_codeend-L_pc-4, v2")
        a("v_mov_b32 v3, s41")
        a("v_add_co_u32 v2, vcc, s40, v2")
        a("v_addc_co_u32 v3, vcc, 0, v3, vcc")
        a("global_load_dword v99, v[2:3], off")
    a(f"s_load_dwordx16 s[4:19], s[0:1], 0")
    a(f"s_load_dwordx8 s[20:27], s[0:1], 64")
    a(f"s_load_dwordx8 s[28:35], s[0:1], 96")
    a(f"s_load_dwordx2 s[36:37], s[0:1], 128")
    a(f"s_memrealtime s[{sEX}:{sEX+1}]")
    if "dbgt" in FLAGS: a("s_memtime s[96:97]")
    stp(a, "s0")
    a(f"v_lshrrev_b32 v{t0}, 6, v0")
    a(f"v_and_b32 v{vL}, 63, v0")
    a(f"s_and_b32 s{sT0}, s2, 1")
    a(f"v_readfirstlane_b32 s{sW}, v{t0}")
    a(f"s_lshl_b32 s{sT0}, s{sT0}, 3")
    a(f"s_lshr_b32 s{sT1}, s2, 3")
    a(f"s_and_b32 s{sRB}, s{sT1}, 7")
    a(f"s_add_u32 s{sRB}, s{sRB}, s{sT0}")
    a(f"s_lshr_b32 s{sT0}, s2, 1")
    a(f"s_and_b32 s{sT0}, s{sT0}, 3")
    a(f"s_lshl_b32 s{sT2}, s{sT0}, 2")
    a(f"s_lshr_b32 s{sT3}, s2, 6")
    a(f"s_add_u32 s{sCG}, s{sT2}, s{sT3}")
    a(f"s_lshl_b32 s{sT0}, s{sT0}, 3")
    a(f"s_and_b32 s{sT1}, s{sT1}, 7")
    a(f"s_add_u32 s{sRB2}, s{sT0}, s{sT1}")
    a(f"s_and_b32 s{sT0}, s2, 1")
    a(f"s_lshl_b32 s{sT0}, s{sT0}, 2")
    a(f"s_add_u32 s{sCB}, s{sT0}, s{sT3}")
    a(f"s_lshr_b32 s{sRH}, s{sW}, 1")
    a(f"s_and_b32 s{sCH}, s{sW}, 1")
    a(f"v_lshrrev_b32 v{t0}, 3, v{vL}")
    a(f"v_and_b32 v{t1}, 2, v{t0}")
    a(f"s_lshl_b32 s{sT0}, s{sCH}, 2")
    a(f"v_or_b32 v{t1}, s{sT0}, v{t1}")
    a(f"v_and_b32 v{t2}, 7, v{vL}")
    a(f"v_xor_b32 v{t1}, v{t1}, v{t2}")
    a(f"s_lshl_b32 s{sT0}, s{sRB}, 7")
    a(f"s_lshl_b32 s{sT1}, s{sW}, 5")
    a(f"s_add_u32 s{sT0}, s{sT0}, s{sT1}")
    a(f"v_add_u32 v{t0}, s{sT0}, v{t0}")
    a(f"v_mul_u32_u24 v{t0}, 1280, v{t0}")
    a(f"v_lshl_add_u32 v{vDX}, v{t1}, 4, v{t0}")
    for i in range(1,4):
        a(f"v_add_u32 v{vDX+i}, {9216*i}, v{vDX}")
    a(f"s_lshl_b32 s{sOX}, s{sW}, 12")
    a(f"s_mul_i32 s{sOG}, s{sW}, 3072")
    a(f"s_add_u32 s{sOU}, s{sOG}, {RU}")
    a(f"s_add_u32 s{sOG}, s{sOG}, {RG}")
    if "norot" in FLAGS:
        a(f"s_mov_b32 s{sKX}, 0")
    elif "rot8" in FLAGS:
        a(f"s_and_b32 s{sT0}, s{sRB}, 7")
        a(f"s_mul_i32 s{sT1}, s{sT0}, 11")
        a(f"s_lshr_b32 s{sT1}, s{sT1}, 3")
        a(f"s_and_b32 s{sT0}, s{sCG}, 3")
        a(f"s_mul_i32 s{sT0}, s{sT0}, 11")
        a(f"s_lshr_b32 s{sT0}, s{sT0}, 2")
        a(f"s_add_u32 s{sT0}, s{sT0}, s{sT1}")
        a(f"s_cmp_ge_u32 s{sT0}, 10")
        a(f"s_cselect_b32 s{sT1}, 10, 0")
        a(f"s_sub_u32 s{sT0}, s{sT0}, s{sT1}")
        a(f"s_lshl_b32 s{sKX}, s{sT0}, 7")
    else:
        a(f"s_and_b32 s{sT0}, s{sRB}, 7")
        a(f"s_and_b32 s{sT1}, s{sCG}, 3")
        a(f"s_add_u32 s{sT0}, s{sT0}, s{sT1}")
        a(f"s_cmp_ge_u32 s{sT0}, 5")
        a(f"s_cselect_b32 s{sT1}, 5, 0")
        a(f"s_sub_u32 s{sT0}, s{sT0}, s{sT1}")
        a(f"s_cmp_ge_u32 s{sT0}, 5")
        a(f"s_cselect_b32 s{sT1}, 5, 0")
        a(f"s_sub_u32 s{sT0}, s{sT0}, s{sT1}")
        a(f"s_lshl_b32 s{sKX}, s{sT0}, 8")
    a(f"s_mul_i32 s{sKG}, s{sKX}, 1536")
    a(f"s_mov_b32 s{sKU}, s{sKG}")
    a(f"s_mov_b32 s{sKB}, s{sKX}")
    def advk(kx, kw):
        return [[f"s_add_u32 s{kx}, s{kx}, 128"], [f"s_cmp_eq_u32 s{kx}, 1280", f"s_cselect_b32 s{kx}, 0, s{kx}"], [f"s_mul_i32 s{kw}, s{kx}, 1536"]]
    a("s_waitcnt lgkmcnt(0)")
    a(f"s_or_b32 s{sT0}, s2, s{sW}")
    a(f"s_cmp_lg_u32 s{sT0}, 0")
    a(f"s_cbranch_scc1 L_no_nonce")
    a(f"s_or_b32 s{sT0}, s{sEX}, 1")
    a(f"v_mov_b32 v{t0}, s{sT0}")
    a(f"v_mov_b32 v{t1}, 0")
    a(f"s_mov_b64 exec, 1")
    a(f"global_store_dword v{t1}, v{t0}, s[{P_DBG}:{P_DBG+1}]{SC}")
    a(f"s_mov_b64 exec, -1")
    a.label("L_no_nonce")
    if "dbgt" in FLAGS: a(f"s_mov_b32 s101, s{sEX}")
    srd(a, SX, P_X, 2621440)
    def dma(vo, S, so, off):
        o = f" offset:{off}" if off else ""
        return f"buffer_load_dwordx4 v{vo}, s[{S}:{S+3}], s{so} offen{o} lds"
    def dgrp(base_expr, items):
        g = [[f"s_add_u32 m0, {base_expr}", "s_nop 0", items[0]]]
        g += [[x] for x in items[1:]]
        return g
    def stage_x(b):  return dgrp(f"s{sOX}, {b}", [dma(vDX+i, SX, sKX, 1024*i) for i in range(4)])
    def stage_g(b):  return dgrp(f"s{sOG}, {b}", [dma(vDW+i, SG, sKG, 1024*i) for i in range(3)])
    def stage_u(b):  return dgrp(f"s{sOU}, {b}", [dma(vDW+i, SU, sKU, 1024*i) for i in range(3)])
    def stage_b(b):  return dgrp(f"s{sOB}, {b}", [dma(vDB, SB0, sKB, 0), dma(vDB+1, SB1, sKB, 1024)]) + dgrp(f"s{sOB2}, {b}", [dma(vDB+2, SB2, sKB, 0)])
    wW = [f"s_mul_i32 s{sT0}, s{sW}, 192", f"s_mul_i32 s{sT1}, s{sCG}, 192"]
    for i in range(3):
        wW += [f"v_add_u32 v{t0}, s{sT0}, v{vL}"]
        if i: wW += [f"v_add_u32 v{t0}, {64*i}, v{t0}"]
        wW += [f"v_mul_u32_u24 v{t1}, 43691, v{t0}", f"v_lshrrev_b32 v{t1}, 19, v{t1}", f"v_mul_u32_u24 v{t2}, 12, v{t1}",
               f"v_sub_u32 v{t2}, v{t0}, v{t2}", f"v_lshrrev_b32 v{t3}, 2, v{t1}", f"v_and_b32 v{t3}, 2, v{t3}",
               f"v_xor_b32 v{t2}, v{t2}, v{t3}", f"v_mul_u32_u24 v{t1}, 3072, v{t1}", f"v_lshl_add_u32 v{t1}, v{t2}, 4, v{t1}",
               f"v_add_u32 v{vDW+i}, s{sT1}, v{t1}"]
        if i: wW += [f"v_subrev_u32 v{vDW+i}, {1024*i}, v{vDW+i}"]
    wW += srd(None, SG, P_WG, 1966080) + srd(None, SU, P_WU, 1966080)
    weave(a, wW, stage_x(0), start=0)
    wB = [f"s_mul_i32 s{sT3}, s{sCG}, 40", f"s_mul_i32 s{sT2}, s{sW}, 3",
          [f"s_cmp_eq_u32 s{sW}, 3", f"s_cselect_b32 s{sT2}, 8, s{sT2}"],
          f"s_add_u32 s{sD}, s{sT2}, 2",
          [f"s_cmp_ge_u32 s{sW}, 2", f"s_cselect_b32 s{sT0}, 1, 0"],
          f"s_sub_u32 s{sD}, s{sD}, s{sT0}",
          f"s_lshl_b32 s{sOB}, s{sT2}, 10", f"s_add_u32 s{sOB}, s{sOB}, {RB}",
          f"s_lshl_b32 s{sOB2}, s{sD}, 10", f"s_add_u32 s{sOB2}, s{sOB2}, {RB}",
          f"v_lshrrev_b32 v{t3}, 4, v{vL}", f"v_lshlrev_b32 v{t3}, 1, v{t3}", f"v_and_b32 v{t4}, 7, v{vL}"]
    for i in range(3):
        wB += [f"s_mov_b32 s{sT0}, s{sT2}" if i == 0 else (f"s_add_u32 s{sT0}, s{sT2}, 1" if i == 1 else f"s_mov_b32 s{sT0}, s{sD}")]
        wB += [[f"s_cmp_ge_u32 s{sT0}, 5", f"s_cselect_b32 s{sT1}, 1, 0", f"s_cselect_b32 s{sC3}, 5, 0"],
               f"s_sub_u32 s{sT0}, s{sT0}, s{sC3}", f"s_lshl_b32 s{sT0}, s{sT0}, 3", f"s_add_u32 s{sT0}, s{sT0}, s{sT3}",
               f"v_lshrrev_b32 v{t0}, 3, v{vL}", f"v_add_u32 v{t0}, s{sT0}, v{t0}", f"v_mul_u32_u24 v{t0}, 1280, v{t0}",
               f"v_add_u32 v{t1}, s{sT1}, v{t3}", f"v_xor_b32 v{t1}, v{t1}, v{t4}", f"v_lshl_add_u32 v{t0}, v{t1}, 4, v{t0}",
               f"v_add_u32 v{vDB+i}, {4096 - (1024*i if i < 2 else 0)}, v{t0}"]
    for i, S in enumerate([SB0, SB1, SB2]):
        wB += [[f"s_cmp_ge_u32 s{sW}, {2 if i < 2 else 1}", f"s_cselect_b32 s{S}, s{P_BIM}, s{P_BRE}", f"s_cselect_b32 s{S+1}, s{P_BIM+1}, s{P_BRE+1}"],
               [f"s_sub_u32 s{S}, s{S}, 4096", f"s_subb_u32 s{S+1}, s{S+1}, 0"],
               f"s_mov_b32 s{S+2}, {819200+4096}", f"s_mov_b32 s{S+3}, 0x00020000"]
    weave(a, wB, stage_g(0) + stage_u(0), start=0)
    c1, c2 = TP, TP+1
    wC = [f"v_and_b32 v{t0}, 15, v{vL}", f"v_lshrrev_b32 v{t0}, 1, v{t0}", f"s_mul_i32 s{sT0}, s{sCG}, 40",
          f"s_lshl_b32 s{sT1}, s{sCH}, 4", f"s_add_u32 s{sT1}, s{sT1}, s{sT0}", f"v_add_u32 v{c1}, s{sT1}, v{t0}",
          f"v_lshlrev_b32 v{c1}, 1, v{c1}", f"s_add_u32 s{sT0}, s{sT0}, 32", f"v_add_u32 v{c2}, s{sT0}, v{t0}",
          f"v_lshlrev_b32 v{c2}, 1, v{c2}"]
    wC += [f"s_mul_i32 s{sT0}, s2, 52429", f"s_lshr_b32 s{sT0}, s{sT0}, 18", f"s_mul_i32 s{sT1}, s{sT0}, 5", f"s_sub_u32 s{sT1}, s2, s{sT1}",
           f"v_lshrrev_b32 v{t0}, 2, v{vL}", f"s_lshl_b32 s{sT2}, s{sT0}, 5", f"v_add_u32 v{t0}, s{sT2}, v{t0}",
           f"v_mul_u32_u24 v{t0}, 1280, v{t0}", f"v_and_b32 v{t1}, 3, v{vL}", f"v_lshl_add_u32 v{t0}, v{t1}, 4, v{t0}",
           f"s_lshl_b32 s{sT2}, s{sT1}, 8", f"v_add_u32 v{t0}, s{sT2}, v{t0}", f"s_lshl_b32 s{sT2}, s{sW}, 6",
           f"v_add_u32 v{vPWs}, s{sT2}, v{t0}", f"v_add_u32 v{vPWs+1}, {16*1280-1024}, v{vPWs}"]
    for k in range(2):
        wC += [f"s_lshl_b32 s{sT2}, s{sT1}, 3", f"s_lshl_b32 s{sT3}, s{sW}, 1", f"s_add_u32 s{sT2}, s{sT2}, s{sT3}"]
        if k: wC += [f"s_add_u32 s{sT2}, s{sT2}, 1"]
        wC += [f"s_mul_i32 s{sT3}, s{sT2}, 52429", f"s_lshr_b32 s{sT3}, s{sT3}, 18", f"s_mul_i32 s{sD}, s{sT3}, 5",
               f"s_sub_u32 s{sT2}, s{sT2}, s{sD}", f"s_mul_i32 s{sT3}, s{sT3}, 88", f"s_add_u32 s{sT3}, s{sT3}, s{sT0}",
               f"s_add_u32 s{sT3}, s{sT3}, 40", f"s_mul_i32 s{sT3}, s{sT3}, 5", f"s_add_u32 s{sT3}, s{sT3}, s{sT2}",
               f"s_lshl_b32 s{sT3}, s{sT3}, 10", f"s_add_u32 s{sT3}, s{sT3}, {WS_W2}",
               f"v_lshlrev_b32 v{vPWd+k}, 4, v{vL}", f"v_add_u32 v{vPWd+k}, s{sT3}, v{vPWd+k}"]
    wC += [f"s_lshl_b32 s{sT0}, s2, 3", f"s_lshl_b32 s{sT1}, s{sW}, 1", f"s_add_u32 s{sT0}, s{sT0}, s{sT1}",
           f"s_mul_i32 s{sT1}, s{sT0}, 52429", f"s_lshr_b32 s{sT1}, s{sT1}, 21", f"s_mul_i32 s{sT2}, s{sT1}, 40",
           f"s_sub_u32 s{sT0}, s{sT0}, s{sT2}",
           [f"s_cmp_ge_u32 s{sT0}, 20", f"s_cselect_b32 s{sC3}, 1, 0", f"s_cselect_b32 s{sT2}, 20, 0"],
           f"s_sub_u32 s{sT2}, s{sT0}, s{sT2}",
           f"v_and_b32 v{t0}, 15, v{vL}", f"s_lshl_b32 s{sT3}, s{sT1}, 4", f"v_add_u32 v{t0}, s{sT3}, v{t0}",
           f"v_mul_u32_u24 v{t0}, 1280, v{t0}", f"v_lshrrev_b32 v{t1}, 4, v{vL}", f"v_lshl_add_u32 v{t0}, v{t1}, 4, v{t0}",
           f"s_lshl_b32 s{sT2}, s{sT2}, 6", f"v_add_u32 v{vPCs}, s{sT2}, v{t0}",
           f"s_mul_i32 s{sT3}, s{sT1}, 52429", f"s_lshr_b32 s{sT3}, s{sT3}, 18", f"s_mul_i32 s{sD}, s{sT3}, 5",
           f"s_sub_u32 s{sT1}, s{sT1}, s{sD}", f"s_mul_i32 s{sT3}, s{sT3}, 88", f"s_add_u32 s{sT3}, s{sT3}, s{sT0}",
           f"s_mul_i32 s{sT3}, s{sT3}, 5", f"s_add_u32 s{sT3}, s{sT3}, s{sT1}", f"s_lshl_b32 s{sT3}, s{sT3}, 10",
           f"s_add_u32 s{sT3}, s{sT3}, {WS_W2}", f"v_lshlrev_b32 v{vPCd}, 4, v{vL}", f"v_add_u32 v{vPCd}, s{sT3}, v{vPCd}",
           f"v_add_u32 v{vPCd+1}, {5*1024}, v{vPCd}",
           f"s_lshl_b32 s{sT0}, s{sW}, 11", f"s_add_u32 s95, s{sT0}, {MISC}"]
    weave(a, wC, stage_b(0), start=0)
    stp(a, "S0 issued")
    sm = []
    for k, P in enumerate((P_LRE, P_LIM, P_LDT)):
        sm += [f"global_load_ushort v{CL+3*k}, v{c1}, s[{P}:{P+1}]", f"global_load_ushort v{CL+3*k+1}, v{c1}, s[{P}:{P+1}] offset:16",
               f"global_load_ushort v{CL+3*k+2}, v{c2}, s[{P}:{P+1}]"]
    pkl = []
    pkl += [srd(None, SM, P_WD, 1966080) + [f"s_cmp_lt_u32 s2, 240", f"s_cselect_b32 s{SM+2}, s{SM+2}, 0", "s_mov_b32 m0, s95", "s_nop 0",
           f"buffer_load_dwordx4 v{vPWs}, s[{SM}:{SM+3}], 0 offen lds"],
           [f"buffer_load_dwordx4 v{vPWs+1}, s[{SM}:{SM+3}], 0 offen offset:1024 lds"],
           [f"s_cmp_eq_u32 s{sC3}, 1", f"s_cselect_b32 s{SM}, s{P_CIM}, s{P_CRE}", f"s_cselect_b32 s{SM+1}, s{P_CIM+1}, s{P_CRE+1}",
            f"s_mov_b32 s{SM+2}, 819200", f"s_cmp_lt_u32 s2, 200", f"s_cselect_b32 s{SM+2}, s{SM+2}, 0",
            f"buffer_load_dwordx4 v[{PK}:{PK+3}], v{vPCs}, s[{SM}:{SM+3}], 0 offen"],
           [f"buffer_load_dwordx4 v[{PK+4}:{PK+7}], v{vPCs}, s[{SM}:{SM+3}], 0 offen offset:64"]]
    m, q = t0, t1
    wL = [f"v_and_b32 v{m}, 15, v{vL}", f"v_lshrrev_b32 v{q}, 4, v{vL}",
          f"v_lshrrev_b32 v{t2}, 2, v{m}", f"v_lshlrev_b32 v{t2}, 4, v{t2}", f"v_and_b32 v{t3}, 3, v{m}", f"v_add_u32 v{t2}, v{t2}, v{t3}",
          f"s_lshl_b32 s{sT0}, s{sRH}, 6", f"v_add_u32 v{t2}, s{sT0}, v{t2}", f"v_lshlrev_b32 v{t2}, 7, v{t2}",
          f"v_and_b32 v{t3}, 2, v{m}", f"v_lshrrev_b32 v{t4}, 3, v{m}", f"v_lshl_or_b32 v{t3}, v{t4}, 2, v{t3}",
          f"v_xor_b32 v{t3}, v{t3}, v{q}", f"v_lshl_add_u32 v{vX0}, v{t3}, 4, v{t2}", f"v_xor_b32 v{t3}, 4, v{t3}",
          f"v_lshl_add_u32 v{vX1}, v{t3}, 4, v{t2}",
          f"v_lshrrev_b32 v{t2}, 2, v{m}", f"v_lshl_add_u32 v{t2}, v{q}, 3, v{t2}", f"v_mul_u32_u24 v{t2}, 192, v{t2}",
          f"v_and_b32 v{t3}, 3, v{m}", f"v_lshl_add_u32 v{t2}, v{t3}, 3, v{t2}", f"v_and_b32 v{t3}, 1, v{q}",
          f"v_lshl_add_u32 v{vWa}, v{t3}, 5, v{t2}", f"v_xor_b32 v{t3}, 1, v{t3}", f"v_lshl_add_u32 v{vWb}, v{t3}, 5, v{t2}",
          [f"s_cmp_eq_u32 s{sCH}, 1", f"s_cselect_b64 vcc, -1, 0", f"v_cndmask_b32 v{vWc}, v{vWa}, v{vWb}, vcc"],
          f"v_add_u32 v{vWc}, 64, v{vWc}", f"s_lshl_b32 s{sT0}, s{sCH}, 7", f"v_add_u32 v{vWa}, s{sT0}, v{vWa}", f"v_add_u32 v{vWb}, s{sT0}, v{vWb}",
          f"v_and_b32 v{t2}, 1, v{m}", f"v_lshrrev_b32 v{t3}, 2, v{m}", f"v_lshl_add_u32 v{t3}, v{t3}, 1, v{t2}", f"v_xor_b32 v{t3}, v{t3}, v{q}",
          f"v_mul_u32_u24 v{t2}, 40, v{t2}", f"v_lshrrev_b32 v{t4}, 1, v{m}", f"v_add_u32 v{t2}, v{t2}, v{t4}", f"v_lshlrev_b32 v{t2}, 7, v{t2}",
          f"s_lshl_b32 s{sT0}, s{sCH}, 11", f"v_add_u32 v{t2}, s{sT0}, v{t2}", f"v_lshl_add_u32 v{vB0}, v{t3}, 4, v{t2}",
          f"v_xor_b32 v{t3}, 4, v{t3}", f"v_lshl_add_u32 v{vB1}, v{t3}, 4, v{t2}",
          f"s_lshl_b32 s{sT0}, s{sRH}, 2", f"v_add_u32 v{vSig}, s{sT0}, v{q}",
          f"v_and_b32 v{t2}, 1, v{vL}", f"v_cvt_f32_u32 v{t2}, v{t2}", f"v_fma_f32 v{vSgn}, v{t2}, 2.0, -1.0",
          f"v_lshrrev_b32 v{t2}, 2, v{m}", f"v_lshl_add_u32 v{t2}, v{q}, 2, v{t2}", f"v_lshlrev_b32 v{t2}, 6, v{t2}",
          f"v_and_b32 v{t3}, 3, v{m}", f"v_lshl_add_u32 v{t2}, v{t3}, 3, v{t2}", f"v_add_u32 v{vPtr}, s95, v{t2}",
          f"v_lshlrev_b32 v{vC}, 2, v{m}", f"s_lshl_b32 s{sT0}, s{sCH}, 7", f"v_add_u32 v{vAs}, s{sT0}, v{vC}",
          f"v_add_u32 v{vCm}, {MISC}, v{vC}", f"v_add_u32 v{vAe}, {MISC}, v{vAs}", f"v_lshl_add_u32 v{vAe}, v{vSig}, 8, v{vAe}",
          f"v_lshlrev_b32 v{vAe4}, 1, v{vSig}", f"v_add_u32 v{vAe4}, s{sCH}, v{vAe4}", f"v_lshl_add_u32 v{vAe4}, v{vAe4}, 6, v{vCm}",
          f"s_mul_i32 s{sT0}, s{sW}, 320", f"s_add_u32 s{sT0}, s{sT0}, {MISC}", f"v_add_u32 v{vRw}, s{sT0}, v{vAs}",
          f"v_lshlrev_b32 v{vWp}, 4, v{vL}", f"s_mul_i32 s{sT0}, s{sRB2}, {4*88*1024}", f"v_add_u32 v{vH}, s{sT0}, v{vWp}"]
    wL += [f"v_add_u32 v{vH+i}, {i*88*1024}, v{vH}" for i in range(1,4)]
    weave(a, wL, sm, start=0)
    stp(a, "small issued")
    for g_ in advk(sKX, sKG) + advk(sKB, sKU):
        for x in g_: a(x)
    wQ = []
    wQ += [f"s_mul_i32 s{sT0}, s{sCG}, {16*640}", f"s_add_u32 s{sT0}, s{sT0}, {WS_S}",
           f"v_mul_u32_u24 v{pa[0]}, 640, v{vSig}", f"v_lshl_add_u32 v{pa[0]}, v{vAs}, 1, v{pa[0]}", f"v_add_u32 v{pa[0]}, s{sT0}, v{pa[0]}",
           f"v_add_u32 v{pa[1]}, {8*640}, v{pa[0]}", f"v_lshlrev_b32 v{t0}, 1, v{vSig}", f"v_add_u32 v{t0}, s{sCH}, v{t0}",
           f"v_mul_u32_u24 v{pa[2]}, 640, v{t0}", f"v_lshl_add_u32 v{pa[2]}, v{vC}, 1, v{pa[2]}", f"v_add_u32 v{pa[2]}, s{sT0}, v{pa[2]}",
           f"v_add_u32 v{pa[2]}, {64*8}, v{pa[2]}", f"v_mov_b32 v{t4}, 0x7f000000", f"v_add_u32 v{t1}, 8, v{vSig}"]
    for (p_, src) in ((pa[0], vSig), (pa[1], t1), (pa[2], t0)):
        wQ += [[f"v_cmp_le_u32 vcc, s{sRB}, v{src}", "s_nop 1", f"v_cndmask_b32 v{p_}, v{p_}, v{t4}, vcc"]]
    S1 = stage_x(BUF) + stage_g(BUF) + stage_u(BUF) + stage_b(BUF)
    Z2 = 76
    wQ += [f"v_mov_b32 v{Z2+k}, 0" for k in range(4)] + ["s_nop 1"]
    wQ += [f"v_mfma_f32_32x32x16_bf16 v[{ACC+16*k}:{ACC+16*k+15}], v[{Z2}:{Z2+3}], v[{Z2}:{Z2+3}], 0" for k in range(8)]
    wQ += [f"v_mfma_f32_16x16x32_bf16 v[{ACC+128}:{ACC+131}], v[{Z2}:{Z2+3}], v[{Z2}:{Z2+3}], 0",
           f"v_mfma_f32_16x16x32_bf16 v[{ACC+132}:{ACC+135}], v[{Z2}:{Z2+3}], v[{Z2}:{Z2+3}], 0"]
    weave(a, wQ, S1 + pkl, start=0)
    for g_ in advk(sKX, sKG) + advk(sKB, sKU):
        for x in g_: a(x)
    a(f"s_mov_b32 s{sDB}, {2*BUF}")
    a(f"s_mov_b32 s{sCur}, 0"); a(f"s_mov_b32 s{sD}, {BUF}"); a(f"s_mov_b32 s{sC3}, 0")
    a(f"s_mov_b32 s{sStage}, 0")
    a(f"s_mov_b32 s{sBlk}, {(1<<1)|(1<<5):#x}")
    stp(a, "S1 issued")
    a("s_waitcnt vmcnt(17)")
    a("s_barrier")
    stp(a, "S0 landed")
    def cpow_s(dr, di, A, B, n, tm, sgn):
        o = []
        if n is None:
            o += [f"v_exp_f32 v{tm}, v{A}", f"v_rndne_f32 v{dr}, v{B}", f"v_sub_f32 v{tm+1}, v{B}, v{dr}"]
        else:
            o += [f"v_mul_f32 v{tm}, {n}, v{A}", f"v_mul_f32 v{tm+1}, {n}, v{B}", f"v_exp_f32 v{tm}, v{tm}",
                  f"v_rndne_f32 v{dr}, v{tm+1}", f"v_sub_f32 v{tm+1}, v{tm+1}, v{dr}"]
        o += [f"v_cos_f32 v{dr}, v{tm+1}", f"v_sin_f32 v{di}, v{tm+1}"]
        if sgn is not None:
            o += [f"v_mul_f32 v{dr}, v{tm}, v{dr}", f"v_mul_f32 v{tm}, v{sgn}, v{tm}", f"v_mul_f32 v{di}, v{tm}, v{di}"]
        else:
            o += [f"v_mul_f32 v{dr}, v{tm}, v{dr}", f"v_mul_f32 v{di}, v{tm}, v{di}"]
        return o
    def make_Wk():
        Wk = []
        vN = 71
        Wk += [f"v_cvt_f32_u32 v{vN}, v{vSig}", f"v_mov_b32 v{vN+1}, 0x42e00000", f"s_mov_b32 s{sT0}, 0xc1800000",
               f"v_fma_f32 v{vN}, v{vN}, s{sT0}, v{vN+1}", f"s_lshl_b32 s{sT0}, s{sCH}, 3", f"s_sub_u32 s{sT0}, 8, s{sT0}",
               f"v_cvt_f32_u32 v{vN+2}, s{sT0}", f"v_add_f32 v{vN+2}, v{vN+2}, v{vN}"]
        streams = []
        for T in range(3):
            tm = 80+2*T; dt = 86+T
            s_ = [f"v_lshlrev_b32 v{vLRE[T]}, 16, v{CL+T}", f"v_lshlrev_b32 v{vLIM[T]}, 16, v{CL+3+T}", f"v_lshlrev_b32 v{dt}, 16, v{CL+6+T}",
                  f"v_mul_f32 v{dt}, {LOG2E:#x}, v{dt}", f"v_exp_f32 v{dt}, v{dt}",
                  f"v_cvt_pk_bf16_f32 v{dt}, v{dt}, v{dt}", f"v_lshlrev_b32 v{dt}, 16, v{dt}",
                  f"v_mul_f32 v{vA[T]}, v{dt}, v{vLRE[T]}", f"v_mul_f32 v{vBx[T]}, v{dt}, v{vLIM[T]}",
                  f"v_mul_f32 v{vA[T]}, {LOG2E:#x}, v{vA[T]}", f"v_mul_f32 v{vBx[T]}, {INV2PI:#x}, v{vBx[T]}"]
            s_ += cpow_s(vLr[T], vLi[T], vA[T], vBx[T], None, tm, vSgn)
            s_ += cpow_s(vWSr[T], vWSi[T], vA[T], vBx[T], f"v{vN if T < 2 else vN+2}", tm, vSgn)
            streams.append(s_)
        Wk += [[x, y, z] for x, y, z in zip(*streams)]
        return Wk
    def pack_process():
        a("s_waitcnt vmcnt(7)")
        for k in range(2):
            a(f"ds_read_b64_tr_b16 v[{PK+8+4*k}:{PK+9+4*k}], v{vPtr} offset:{32*k}")
            a(f"ds_read_b64_tr_b16 v[{PK+10+4*k}:{PK+11+4*k}], v{vPtr} offset:{32*k+1024}")
        srd(a, SM, P_WS, WS_W2 + W2_SIZE)
        a(f"s_cmp_lt_u32 s2, 200"); a(f"s_cselect_b32 s{SM+2}, s{SM+2}, 0")
        a(f"buffer_store_dwordx4 v[{PK}:{PK+3}], v{vPCd}, s[{SM}:{SM+3}], 0 offen{SC}")
        a(f"buffer_store_dwordx4 v[{PK+4}:{PK+7}], v{vPCd+1}, s[{SM}:{SM+3}], 0 offen{SC}")
        a(f"v_lshlrev_b32 v{t0}, 5, v0"); a(f"v_add_u32 v{t0}, {MISC}, v{t0}")
        a("s_waitcnt lgkmcnt(0)")
        a(f"s_mov_b32 s{SM+2}, {WS_W2 + W2_SIZE}"); a(f"s_cmp_lt_u32 s2, 240"); a(f"s_cselect_b32 s{SM+2}, s{SM+2}, 0")
        a(f"buffer_store_dwordx4 v[{PK+8}:{PK+11}], v{vPWd}, s[{SM}:{SM+3}], 0 offen{SC}")
        a(f"buffer_store_dwordx4 v[{PK+12}:{PK+15}], v{vPWd+1}, s[{SM}:{SM+3}], 0 offen{SC}")
        Z = 76
        a(f"ds_write_b128 v{t0}, v[{Z}:{Z+3}]"); a(f"ds_write_b128 v{t0}, v[{Z}:{Z+3}] offset:16")
        a(f"v_mov_b32 v{t1}, 0")
        a(f"global_load_dword v{vNon}, v{t1}, s[{P_DBG}:{P_DBG+1}]{SC}")

    def dma_first(sdb):
        g = [f"s_add_u32 m0, s{sdb}, s{sOX}"] + [dma(vDX+i, SX, sKX, 1024*i) for i in range(4)]
        g += [f"s_add_u32 m0, s{sdb}, s{sOG}"] + [dma(vDW+i, SG, sKG, 1024*i) for i in range(3)]
        return g
    def dma_second(sdb):
        g = [f"s_add_u32 m0, s{sdb}, s{sOU}"] + [dma(vDW+i, SU, sKU, 1024*i) for i in range(3)]
        g += [f"s_add_u32 m0, s{sdb}, s{sOB}", dma(vDB, SB0, sKB, 0), dma(vDB+1, SB1, sKB, 1024)]
        g += [f"s_add_u32 m0, s{sdb}, s{sOB2}", dma(vDB+2, SB2, sKB, 0)]
        return g
    def reads(ch, s, setb):
        vX = vX0 if s == 0 else vX1
        vB = vB0 if s == 0 else vB1
        X = [f"ds_read_b128 a[{setb+4*i}:{setb+4*i+3}], v{vX} offset:{RX+i*512}" for i in range(4)]
        def tr(n, region, k):
            vW = (vWa, vWb, vWc)[k]
            b = setb + 16 + 4*n
            o = region + 6144*s
            return [f"ds_read_b64_tr_b16 a[{b}:{b+1}], v{vW} offset:{o}", f"ds_read_b64_tr_b16 a[{b+2}:{b+3}], v{vW} offset:{o+768}"]
        def sb(n, off):
            b = setb + 16 + 4*n
            return [f"ds_read_b128 a[{b}:{b+3}], v{vB} offset:{RB+off}"]
        W = []
        for k in range(3):
            W += tr(2*k, RG, k); W += tr(2*k+1, RU, k)
        W += sb(6, 0) + sb(7, 1024) + sb(8, 4096 - 2048*ch)
        return X[:1] + W[:2] + X[1:] + W[2:]
    def mfmas(ch, setb):
        out = []
        for n in range(6):
            for i in range(4):
                d = acc(n, i)
                out.append(f"v_mfma_f32_16x16x32_bf16 v[{d}:{d+3}], a[{setb+16+4*n}:{setb+16+4*n+3}], a[{setb+4*i}:{setb+4*i+3}], v[{d}:{d+3}]")
        for n in (6, 7):
            for i in range(4):
                d = acc(n, i)
                out.append(f"v_mfma_f32_16x16x32_bf16 v[{d}:{d+3}], a[{setb+4*i}:{setb+4*i+3}], a[{setb+16+4*n}:{setb+16+4*n+3}], v[{d}:{d+3}]")
        for k in range(2):
            i = 2*ch + k
            d = S4 + 4*k
            out.append(f"v_mfma_f32_16x16x32_bf16 v[{d}:{d+3}], a[{setb+4*i}:{setb+4*i+3}], a[{setb+16+32}:{setb+16+35}], v[{d}:{d+3}]")
        return out
    def substep(ch, setb, rd, dmas, late, seq=None):
        main = mfmas(ch, setb)
        gaps = [[] for _ in range(34)]
        for i, r in enumerate(rd): gaps[i].append(r)
        loads = [x for x in dmas if "buffer_load" in x]
        nl = len(loads)
        last = 0
        if nl:
            pos = [1 + int(i*30/nl) for i in range(nl)]
            li = 0; pend = []
            for x in dmas:
                if "buffer_load" in x:
                    p = pos[li]; pp = p - 1
                    for y in reversed(pend):
                        while len(gaps[pp]) >= 2: pp -= 1
                        assert pp >= 0
                        gaps[pp].append(y)
                    pend = []
                    while len(gaps[p]) >= 2: p += 1
                    gaps[p].append(x); last = p
                    li += 1
                else: pend.append(x)
            p = last + 1
            for y in pend:
                while len(gaps[p]) >= 2: p += 1
                gaps[p].append(y)
        g = 0
        for (e, ins) in late:
            g = max(g, e)
            while len(gaps[g]) + len(ins) > 2:
                g += 1
                assert g < 34, "late overflow"
            gaps[g].extend(ins)
        if seq is not None:
            g = 0
            while seq and g < 34:
                if len(gaps[g]) + len(seq[0]) <= 2:
                    gaps[g].extend(seq.pop(0))
                g += 1
        out = []
        for i in range(34):
            out.append(main[i]); out.extend(gaps[i])
        return out
    def gate_seq():
        gw = [GLD, GLD+1, GLD+2, GLD+3, GLD+4]
        xr = [[GLD+6, GLD+7, GLD+8, GLD+9, GLD+5], [GLD+10, GLD+11, GLD+12, GLD+13, GLD+14]]
        ga = [73, 74]; u0, u1, u2, u3 = 75, 76, 77, 78
        q_ = [[f"v_mov_b32 v{ga[0]}, 0", f"v_mov_b32 v{ga[1]}, 0"]]
        for i in range(5):
            q_.append([f"v_lshlrev_b32 v{u0}, 16, v{gw[i]}", f"v_and_b32 v{u1}, 0xffff0000, v{gw[i]}"])
            for r in range(2):
                x_ = xr[r][i]
                q_ += [[f"v_lshlrev_b32 v{u2}, 16, v{x_}", f"v_and_b32 v{u3}, 0xffff0000, v{x_}"],
                       [f"v_mul_f32 v{u2}, v{u2}, v{u0}", f"v_mul_f32 v{u3}, v{u3}, v{u1}"],
                       [f"v_cvt_pk_bf16_f32 v{u2}, v{u2}, v{u3}"],
                       [f"v_and_b32 v{u3}, 0xffff0000, v{u2}", f"v_lshlrev_b32 v{u2}, 16, v{u2}"],
                       [f"v_add_f32 v{ga[r]}, v{ga[r]}, v{u2}", f"v_add_f32 v{ga[r]}, v{ga[r]}, v{u3}"]]
        for sh, rm in (("row_shr:1","0xf"),("row_shr:2","0xf"),("row_shr:4","0xf"),("row_shr:8","0xf"),("row_bcast:15","0xa"),("row_bcast:31","0xc")):
            bc = " bound_ctrl:0" if sh.startswith("row_shr") else ""
            q_.append([f"v_add_f32_dpp v{ga[r]}, v{ga[r]}, v{ga[r]} {sh} row_mask:{rm} bank_mask:0xf{bc}" for r in range(2)])
        q_ += [[f"v_readlane_b32 s{sT1}, v{ga[0]}, 63", f"v_readlane_b32 s{sT2}, v{ga[1]}, 63"],
               [f"v_cmp_eq_u32 vcc, 0, v{vL}"],
               [f"v_mov_b32 v{u3}, s{sT1}", f"v_mov_b32 v{u2}, s{sT2}"],
               [f"v_cndmask_b32 v{u2}, v{u2}, v{u3}, vcc"], [f"v_cvt_pk_bf16_f32 v{u2}, v{u2}, v{u2}"],
               [f"v_lshlrev_b32 v{u2}, 16, v{u2}", f"v_mul_f32 v{u2}, 0xbfb8aa3b, v{u2}"],
               [f"v_exp_f32 v{u2}, v{u2}"], [f"v_add_f32 v{u2}, 1.0, v{u2}"], [f"v_rcp_f32 v{u2}, v{u2}"],
               [f"v_cvt_pk_bf16_f32 v{u2}, v{u2}, v{u2}"], [f"v_lshlrev_b32 v{vGv}, 16, v{u2}", f"s_lshl_b32 s{sT1}, s94, 2"],
               [f"s_add_u32 s{sT1}, s{sT1}, {WS_G}"], [f"v_lshl_add_u32 v{vGst}, v{vL}, 2, s{sT1}"]]
        return q_
    def wbase(g, j):
        if g < 7: return 104 + 20*g + 4*j
        if g < 11: return 20*(g-7) + 4*j
        return 80 + 4*j if j < 2 else 244 + 4*(j-2)
    SW2, SH = SX, SG
    sKW, sKW4, sKH = sKX, sKG, sKU
    def wload(g, j):
        b = wbase(g, j)
        if j < 4:
            o = f" offset:{1024*j}" if j else ""
            return f"buffer_load_dwordx4 a[{b}:{b+3}], v{vWp}, s[{SW2}:{SW2+3}], s{sKW} offen{o}{SCL}"
        return f"buffer_load_dwordx4 a[{b}:{b+3}], v{vWp}, s[{SW2}:{SW2+3}], s{sKW4} offen{SCL}"
    def wstep(g, inc=5120):
        return [wload(g, j) for j in range(5)] + [f"s_add_u32 s{sKW}, s{sKW}, {inc}", f"s_add_u32 s{sKW4}, s{sKW4}, {inc}"]

    A_, B_ = 0, 52
    a(f"s_cmp_eq_u32 s{sCH}, 1")
    a(f"s_cbranch_scc1 L_pre1")
    rot0 = lambda: [(24, [f"s_mov_b32 s{sF}, s{sCur}"]), (24, [f"s_add_u32 s{sCur}, s{sCur}, s{sD}"]),
                  (24, [f"s_add_u32 s{sC3}, s{sC3}, 1"]),
                  (24, [f"s_cmp_eq_u32 s{sC3}, 3", f"s_cselect_b32 s{sC3}, 0, s{sC3}"]),
                  (24, [f"s_cmp_eq_u32 s{sC3}, 2", f"s_cselect_b32 s{sD}, {3*BUF}, 0"]),
                  (24, [f"s_sub_u32 s{sD}, {BUF}, s{sD}"])]
    n0 = stp.n
    for ch in (0, 1):
        stp.n = n0
        a.label(f"L_pre{ch}")
        for r in reads(ch, 0, A_): a(r)
        a(f"v_add_u32 v{vX0}, {BUF}, v{vX0}")
        a(f"v_add_u32 v{vB0}, {BUF}, v{vB0}")
        d1 = dma_first(sDB)
        grp = []; cur_ = []
        for x in d1:
            cur_.append(x)
            if "m0" in x.split(",")[0]: cur_.append("s_nop 0")
            if "buffer_load" in x: grp.append(cur_); cur_ = []
        grp[-1] += cur_
        weave(a, make_Wk(), grp, start=1)
        pack_process()
        a("s_waitcnt lgkmcnt(0)")
        stp(a, "prologue")
        a(".p2align 3")
        if "mis" in FLAGS: a("s_nop 0")
        a.label(f"L_loop{ch}")
        late0 = [(2, g_) for g_ in advk(sKX, sKG)] + [(19, [f"v_add_u32 v{r}, s{sD}, v{r}"]) for r in (vWa, vWb, vWc, vX1, vB1)] + rot0()
        for x in substep(ch, A_, reads(ch, 1, B_), dma_second(sDB), late0): a(x)
        a(f"s_waitcnt vmcnt(13) lgkmcnt(0)")
        a("s_barrier")
        if LSTAMP: a("s_memtime s[38:39]")
        late1 = [(2, g_) for g_ in advk(sKB, sKU)] + [(19, [f"v_add_u32 v{r}, s{sD}, v{r}"]) for r in (vX0, vB0)]
        late1 += [(20, [f"s_mov_b32 s{sDB}, s{sF}"])]
        late1 += [(32, [f"s_bitcmp1_b32 s{sBlk}, s{sStage}", f"s_cbranch_scc1 L_blk{ch}"])]
        body = substep(ch, B_, reads(ch, 0, A_), dma_first(sF), late1)
        for x in body:
            a(x)
            if x.startswith("s_cbranch_scc1 L_blk"): a.label(f"L_blkr{ch}")
        a(f"s_add_u32 s{sStage}, s{sStage}, 1")
        a(f"s_cmp_lt_u32 s{sStage}, 7")
        a("s_waitcnt lgkmcnt(0)")
        if LSTAMP:
            a(f"v_cmp_eq_u32 vcc, s{sStage}, v{vL}"); a(f"v_mov_b32 v79, s38"); a("s_nop 0"); a(f"v_cndmask_b32 v80, v80, v79, vcc")
        a(f"s_cbranch_scc1 L_loop{ch}")
        stp(a, "loop")
        lt = [(19, [f"v_add_u32 v{r}, {BUF}, v{r}"]) for r in (vWa, vWb, vWc, vX1, vB1)]
        lt += [(24, [x]) for x in srd(None, SW2, P_WS, W2_SIZE, add=WS_W2)[:0]]
        for x in substep(ch, A_, reads(ch, 1, B_), dma_second(sDB), lt): a(x)
        a(f"s_waitcnt vmcnt(13) lgkmcnt(0)")
        a("s_barrier")
        spin_init(a)
        a.label(f"L_pf{ch}")
        a(f"v_cmp_ne_u32 vcc, s{sNonce}, v{vPF}")
        a(f"v_cmp_ne_u32 s[{sEX}:{sEX+1}], s{sNonce}, v{vPF+1}")
        a(f"s_or_b64 vcc, vcc, s[{sEX}:{sEX+1}]")
        a(f"v_cmp_ne_u32 s[{sEX}:{sEX+1}], s{sNonce}, v{vPF+2}")
        a(f"s_or_b64 vcc, vcc, s[{sEX}:{sEX+1}]")
        a(f"v_cmp_ne_u32 s[{sEX}:{sEX+1}], s{sNonce}, v{vPF+3}")
        a(f"s_or_b64 vcc, vcc, s[{sEX}:{sEX+1}]")
        a(f"s_cmp_eq_u64 vcc, 0")
        a(f"s_cbranch_scc1 L_pfok{ch}")
        spin_guard(a, f"L_pfok{ch}")
        a(f"v_lshlrev_b32 v{t0}, 4, v{vL}")
        a(f"v_add_u32 v{t0}, {WS_PF}, v{t0}")
        a(f"global_load_dwordx4 v[{vPF}:{vPF+3}], v{t0}, s[{P_WS}:{P_WS+1}]{SC}")
        a("s_waitcnt vmcnt(0)")
        a(f"s_branch L_pf{ch}")
        a.label(f"L_pfok{ch}")
        srd(a, SW2, P_WS, W2_SIZE, add=WS_W2)
        a(f"s_mul_i32 s{sKW}, s{sCB}, 88")
        a(f"s_mul_i32 s{sT0}, s{sW}, 12")
        a(f"s_add_u32 s{sKW}, s{sKW}, s{sT0}")
        a(f"s_add_u32 s{sKW}, s{sKW}, 40")
        a(f"s_mul_i32 s{sKW}, s{sKW}, 5120")
        a(f"s_add_u32 s{sKW4}, s{sKW}, 4096")
        allw = []
        for g in range(7): allw += wstep(g)
        def take(n):
            out = []; c = 0
            while allw and (c < n or "buffer_load" not in allw[0]):
                x = allw.pop(0); out.append(x)
                if "buffer_load" in x: c += 1
            return out
        lt = [(19, [f"v_add_u32 v{r}, {(-2*BUF) & 0xffffffff:#x}, v{r}"]) for r in (vX0, vB0)]
        gq = gate_seq()
        for x in substep(ch, B_, reads(ch, 0, A_), take(8), lt, gq): a(x)
        a("s_waitcnt lgkmcnt(0)")
        lt = [(19, [f"v_add_u32 v{r}, {(-2*BUF) & 0xffffffff:#x}, v{r}"]) for r in (vWa, vWb, vWc, vX1, vB1)]
        for x in substep(ch, A_, reads(ch, 1, B_), take(8), lt, gq): a(x)
        a(f"s_waitcnt vmcnt(16) lgkmcnt(0)")
        a("s_barrier")
        for x in substep(ch, B_, reads(ch, 0, A_), take(8), [], gq): a(x)
        a("s_waitcnt lgkmcnt(0)")
        for x in substep(ch, A_, reads(ch, 1, B_), take(8), [], gq): a(x)
        a("s_waitcnt lgkmcnt(0)")
        for x in substep(ch, B_, [], take(3), [], gq): a(x)
        assert not allw and not gq, (len(allw), len(gq))
        a("s_mov_b64 exec, 3")
        a(f"global_store_dword v{vGst}, v{vGv}, s[{P_WS}:{P_WS+1}]{SC}")
        a("s_mov_b64 exec, -1")
        a(f"s_branch L_epi")
        a.label(f"L_blk{ch}")
        a(f"s_cmp_eq_u32 s{sStage}, 1")
        a(f"s_cbranch_scc1 L_b0_{ch}")
        a(f"v_lshlrev_b32 v{t0}, 4, v{vL}")
        a(f"v_add_u32 v{t0}, {WS_PF}, v{t0}")
        a(f"global_load_dwordx4 v[{vPF}:{vPF+3}], v{t0}, s[{P_WS}:{P_WS+1}]{SC}")
        a(f"s_lshl_b32 s{sT1}, s{sRB}, 7")
        a(f"s_lshl_b32 s{sT2}, s{sRH}, 6")
        a(f"s_add_u32 s{sT1}, s{sT1}, s{sT2}")
        a(f"s_lshl_b32 s{sT2}, s{sCG}, 2")
        a(f"s_add_u32 s{sT1}, s{sT1}, s{sT2}")
        a(f"s_lshl_b32 s{sT2}, s{sCH}, 1")
        a(f"s_add_u32 s94, s{sT1}, s{sT2}")
        a(f"s_mul_i32 s{sT1}, s94, 1280")
        a(f"v_lshlrev_b32 v{t0}, 2, v{vL}")
        a(f"v_add_u32 v{t1}, s{sT1}, v{vWp}")
        a(f"v_add_u32 v{t2}, s{sT1}, v{t0}")
        a(f"global_load_dwordx4 v[{GLD}:{GLD+3}], v{vWp}, s[{P_GW}:{P_GW+1}]")
        a(f"global_load_dword v{GLD+4}, v{t0}, s[{P_GW}:{P_GW+1}] offset:1024")
        a(f"global_load_dwordx4 v[{GLD+6}:{GLD+9}], v{t1}, s[{P_X}:{P_X+1}]")
        a(f"global_load_dword v{GLD+5}, v{t2}, s[{P_X}:{P_X+1}] offset:1024")
        a(f"global_load_dwordx4 v[{GLD+10}:{GLD+13}], v{t1}, s[{P_X}:{P_X+1}] offset:1280")
        a(f"global_load_dword v{GLD+14}, v{t2}, s[{P_X}:{P_X+1}] offset:2304")
        a(f"s_branch L_blkr{ch}")
        a.label(f"L_b0_{ch}")
        spin_init(a)
        a.label(f"L_np{ch}")
        a(f"v_readfirstlane_b32 s{sNonce}, v{vNon}")
        a(f"s_cmp_lg_u32 s{sNonce}, 0")
        a(f"s_cbranch_scc1 L_nok{ch}")
        spin_guard(a, f"L_nok{ch}")
        a(f"v_mov_b32 v{t0}, 0")
        a(f"global_load_dword v{vNon}, v{t0}, s[{P_DBG}:{P_DBG+1}]{SC}")
        a("s_waitcnt vmcnt(0)")
        a(f"s_branch L_np{ch}")
        a.label(f"L_nok{ch}")
        a(f"s_cmp_lg_u32 s{sW}, 0")
        a(f"s_cbranch_scc1 L_blkr{ch}")
        a(f"s_lshl_b32 s{sT1}, s2, 2")
        a(f"s_add_u32 s{sT1}, s{sT1}, {WS_PF}")
        a(f"v_mov_b32 v{t0}, s{sT1}")
        a(f"v_mov_b32 v{t1}, s{sNonce}")
        a(f"s_mov_b64 exec, 1")
        a(f"global_store_dword v{t0}, v{t1}, s[{P_WS}:{P_WS+1}]{SC}")
        a(f"s_mov_b64 exec, -1")
        a(f"s_branch L_blkr{ch}")

    a.label("L_epi")
    stp(a, "tail")
    if LSTAMP:
        a(f"s_lshl_b32 s{sT0}, s2, 2")
        a(f"s_add_u32 s{sT0}, s{sT0}, s{sW}")
        a(f"s_lshl_b32 s{sT0}, s{sT0}, 8")
        a(f"s_add_u32 s{sT0}, s{sT0}, {WS_STAMP + 0x40000}")
        a(f"v_lshl_add_u32 v79, v{vL}, 2, s{sT0}")
        a(f"global_store_dword v79, v80, s[{P_WS}:{P_WS+1}]")
    XCH = BUF
    vHo, vHo2 = 81, 82
    a(f"s_lshl_b32 s{sT0}, s{sRB}, 1")
    a(f"s_add_u32 s{sT0}, s{sT0}, s{sRH}")
    a(f"s_mul_i32 s{sT0}, s{sT0}, {4*88}")
    a(f"s_mul_i32 s{sT1}, s{sCG}, 3")
    a(f"s_add_u32 s{sT0}, s{sT0}, s{sT1}")
    a(f"s_add_u32 s{sT0}, s{sT0}, 40")
    a(f"s_lshl_b32 s{sT1}, s{sCH}, 1")
    a(f"s_add_u32 s{sT1}, s{sT1}, s{sT0}")
    a(f"s_lshl_b32 s{sT1}, s{sT1}, 10")
    a(f"s_add_u32 s{sT0}, s{sT0}, 1")
    a(f"s_mul_i32 s{sT3}, s{sCH}, {2*88}")
    a(f"s_add_u32 s{sT0}, s{sT0}, s{sT3}")
    a(f"s_lshl_b32 s{sT0}, s{sT0}, 10")
    a(f"v_add_u32 v{vHo}, s{sT1}, v{vWp}")
    a(f"v_add_u32 v{vHo2}, s{sT0}, v{vWp}")
    for i in range(4):
        G0, U0, G1, U1 = [acc(n, i) for n in range(4)]
        for (G, Uu) in ((G0, U0), (G1, U1)):
            a(f"v_pk_mul_f32 v[{G}:{G+1}], v[{G}:{G+1}], v[{Uu}:{Uu+1}]")
            a(f"v_pk_mul_f32 v[{G+2}:{G+3}], v[{G+2}:{G+3}], v[{Uu+2}:{Uu+3}]")
        a(f"v_cvt_pk_bf16_f32 v{U0}, v{G0}, v{G0+1}")
        a(f"v_cvt_pk_bf16_f32 v{U0+1}, v{G0+2}, v{G0+3}")
        a(f"v_cvt_pk_bf16_f32 v{U0+2}, v{G1}, v{G1+1}")
        a(f"v_cvt_pk_bf16_f32 v{U0+3}, v{G1+2}, v{G1+3}")
        a(f"v_add_u32 v{G0}, {i*88*1024}, v{vHo}")
        a(f"global_store_dwordx4 v{G0}, v[{U0}:{U0+3}], s[{P_WS}:{P_WS+1}]{SC}")
    for i in range(4):
        G2, U2 = acc(4, i), acc(5, i)
        a(f"v_pk_mul_f32 v[{G2}:{G2+1}], v[{G2}:{G2+1}], v[{U2}:{U2+1}]")
        a(f"v_pk_mul_f32 v[{G2+2}:{G2+3}], v[{G2+2}:{G2+3}], v[{U2+2}:{U2+3}]")
    for i in range(4):
        G2, U2 = acc(4, i), acc(5, i)
        a(f"v_cvt_pk_bf16_f32 v{U2}, v{G2}, v{G2+1}")
        a(f"v_cvt_pk_bf16_f32 v{U2+1}, v{G2+2}, v{G2+3}")
    a(f"s_lshl_b32 s{sT1}, s{sW}, 10")
    a(f"v_lshlrev_b32 v{t1}, 3, v{vL}")
    a(f"v_add_u32 v{t2}, s{sT1}, v{t1}")
    a(f"s_cmp_eq_u32 s{sCH}, 1")
    a(f"s_cbranch_scc1 L_xw1")
    a(f"ds_write_b64 v{t2}, v[{acc(5,2)}:{acc(5,2)+1}] offset:{XCH}")
    a(f"ds_write_b64 v{t2}, v[{acc(5,3)}:{acc(5,3)+1}] offset:{XCH+512}")
    a(f"s_branch L_xw2")
    a.label("L_xw1")
    a(f"ds_write_b64 v{t2}, v[{acc(5,0)}:{acc(5,0)+1}] offset:{XCH}")
    a(f"ds_write_b64 v{t2}, v[{acc(5,1)}:{acc(5,1)+1}] offset:{XCH+512}")
    a.label("L_xw2")
    stp(a, "glu1")
    U = [SA, SBt, S4]; NS = [16, 16, 8]
    eA = [56, 57, 58]; eB = [59, 60, 61]
    cur = [U[T] for T in range(3)]
    for k in range(1, 16):
        Ts = [T for T in range(3) if k < NS[T]]
        dst = eA if (k & 1) else eB
        for T in Ts: a(f"v_fma_f32 v{dst[T]}, v{vLr[T]}, v{cur[T]}, v{U[T]+k}")
        for T in Ts:
            a(f"v_fmac_f32_dpp v{dst[T]}, v{cur[T]}, v{vLi[T]} {DPPSW}")
            cur[T] = dst[T]
    ew = [62, 63, 64]; ex = [65, 66, 67]
    a(f"s_mul_i32 s{sT0}, s{sW}, 320")
    a(f"s_add_u32 s{sT0}, s{sT0}, {MISC}")
    for T in range(3): a(f"v_mul_f32 v{ew[T]}, v{vWSr[T]}, v{cur[T]}")
    for T in range(3): a(f"v_fmac_f32_dpp v{ew[T]}, v{cur[T]}, v{vWSi[T]} {DPPSW}")
    a(f"v_add_u32 v{t0}, s{sT0}, v{vC}")
    a(f"ds_write_b32 v{vAe}, v{cur[0]} offset:{EF0}")
    a(f"ds_write_b32 v{vAe}, v{cur[1]} offset:{EF0+64}")
    a(f"ds_write_b32 v{vAe4}, v{cur[2]} offset:{E40}")
    def qreduce(vals, tmps):
        for v, t in zip(vals, tmps): a(f"v_mov_b32 v{t}, v{v}")
        a("s_nop 0")
        for v, t in zip(vals, tmps): a(f"v_permlane16_swap_b32 v{v}, v{t}")
        a("s_nop 0")
        for v, t in zip(vals, tmps): a(f"v_add_f32 v{v}, v{v}, v{t}")
        for v, t in zip(vals, tmps): a(f"v_mov_b32 v{t}, v{v}")
        a("s_nop 0")
        for v, t in zip(vals, tmps): a(f"v_permlane32_swap_b32 v{v}, v{t}")
        a("s_nop 0")
        for v, t in zip(vals, tmps): a(f"v_add_f32 v{v}, v{v}, v{t}")
    qreduce(ew, ex)
    a(f"ds_write_b32 v{vRw}, v{ew[0]} offset:{SWB}")
    a(f"ds_write_b32 v{vRw}, v{ew[1]} offset:{SWB+64}")
    a(f"ds_write_b32 v{t0}, v{ew[2]} offset:{SWB+256}")
    a("s_waitcnt lgkmcnt(0)")
    a("s_barrier")
    stp(a, "passA")
    a(f"s_xor_b32 s{sT1}, s{sW}, 1")
    a(f"s_lshl_b32 s{sT1}, s{sT1}, 10")
    a(f"v_lshlrev_b32 v{t1}, 3, v{vL}")
    a(f"v_add_u32 v{t2}, s{sT1}, v{t1}")
    a(f"v_add_u32 v{t4}, {88*1024}, v{vHo2}")
    a(f"s_cmp_eq_u32 s{sCH}, 1")
    a(f"s_cbranch_scc1 L_xr1")
    for k in range(2):
        a(f"ds_read_b64 v[{acc(5,k)+2}:{acc(5,k)+3}], v{t2} offset:{XCH+512*k}")
    a("s_waitcnt lgkmcnt(0)")
    a(f"global_store_dwordx4 v{vHo2}, v[{acc(5,0)}:{acc(5,0)+3}], s[{P_WS}:{P_WS+1}]{SC}")
    a(f"global_store_dwordx4 v{t4}, v[{acc(5,1)}:{acc(5,1)+3}], s[{P_WS}:{P_WS+1}]{SC}")
    a(f"s_branch L_xr2")
    a.label("L_xr1")
    for k in range(2):
        a(f"ds_read_b64 v[{acc(4,2+k)}:{acc(4,2+k)+1}], v{t2} offset:{XCH+512*k}")
        a(f"v_mov_b32 v{acc(4,2+k)+2}, v{acc(5,2+k)}")
        a(f"v_mov_b32 v{acc(4,2+k)+3}, v{acc(5,2+k)+1}")
    a("s_waitcnt lgkmcnt(0)")
    a(f"global_store_dwordx4 v{vHo2}, v[{acc(4,2)}:{acc(4,2)+3}], s[{P_WS}:{P_WS+1}]{SC}")
    a(f"global_store_dwordx4 v{t4}, v[{acc(4,3)}:{acc(4,3)+3}], s[{P_WS}:{P_WS+1}]{SC}")
    a.label("L_xr2")
    a(f"s_cmp_lg_u32 s{sW}, 0")
    a(f"s_cbranch_scc1 L_nopub")
    PB = 68
    a(f"v_lshlrev_b32 v{t0}, 3, v{vL}")
    a(f"v_add_u32 v{t0}, {MISC}, v{t0}")
    for w in range(4): a(f"ds_read_b64 v[{PB+2*w}:{PB+2*w+1}], v{t0} offset:{SWB+320*w}")
    a(f"s_lshl_b32 s{sT0}, s{sCG}, 4")
    a(f"s_add_u32 s{sT0}, s{sT0}, s{sRB}")
    a(f"s_mul_i32 s{sT0}, s{sT0}, 640")
    a(f"s_add_u32 s{sT0}, s{sT0}, {WS_S}")
    a(f"v_lshlrev_b32 v{t0}, 4, v{vL}")
    a(f"v_add_u32 v{t0}, s{sT0}, v{t0}")
    a(f"v_mov_b32 v{PB+9}, s{sNonce}")
    a(f"v_mov_b32 v{PB+11}, s{sNonce}")
    a(f"v_cmp_gt_u32 vcc, 40, v{vL}")
    a("s_waitcnt lgkmcnt(0)")
    a(f"v_pk_add_f32 v[{PB}:{PB+1}], v[{PB}:{PB+1}], v[{PB+2}:{PB+3}]")
    a(f"v_pk_add_f32 v[{PB+4}:{PB+5}], v[{PB+4}:{PB+5}], v[{PB+6}:{PB+7}]")
    a(f"v_pk_add_f32 v[{PB}:{PB+1}], v[{PB}:{PB+1}], v[{PB+4}:{PB+5}]")
    a(f"s_and_saveexec_b64 s[{sEX}:{sEX+1}], vcc")
    a(f"v_mov_b32 v{PB+8}, v{PB}")
    a(f"v_mov_b32 v{PB+10}, v{PB+1}")
    a(f"global_store_dwordx4 v{t0}, v[{PB+8}:{PB+11}], s[{P_WS}:{P_WS+1}]{SC}")
    a(f"s_mov_b64 exec, s[{sEX}:{sEX+1}]")
    a.label("L_nopub")
    stp(a, "pub")
    pre = []
    for g in range(7, 12):
        ws_ = wstep(g)
        pre += [[x] for x in ws_[:4]] + [[ws_[4], ws_[5], ws_[6]]]
    X = ACC
    vMr = [X, X+1, X+2]; vMi = [X+3, X+4, X+5]
    vC2r = [X+6, X+7, X+8]; vC2i = [X+9, X+10, X+11]
    vHr = [X+12, X+13, X+14]; vHi = [X+15, X+16, X+17]
    vW0r = [X+18, X+19, X+20]; vW0i = [X+21, X+22, X+23]
    vW1r = [X+24, X+25]; vW1i = [X+26, X+27]
    vLi2 = [X+28, X+29, X+30]
    nOff, nW0, nW1, nOff4, nW4 = X+32, X+33, X+34, X+35, X+36
    vm0, vm1, vm4 = X+37, X+38, X+39
    W = []
    W += [f"v_cvt_f32_u32 v{nOff}, v{vSig}", f"v_mul_f32 v{nOff}, 0x41800000, v{nOff}", f"s_lshl_b32 s{sT0}, s{sCH}, 3",
          f"v_cvt_f32_u32 v{nOff4}, s{sT0}", f"v_add_f32 v{nOff4}, v{nOff4}, v{nOff}",
          f"s_sub_u32 s{sT0}, s{sRB}, 1", f"v_sub_u32 v{t0}, s{sT0}, v{vSig}", f"v_subrev_u32 v{t1}, 8, v{t0}",
          f"v_sub_u32 v{t2}, v{t0}, v{vSig}", f"v_subrev_u32 v{t2}, s{sCH}, v{t2}"]
    for (n_, mreg, src) in ((nW0, vm0, t0), (nW1, vm1, t1), (nW4, vm4, t2)):
        W += [[f"v_cmp_le_i32 vcc, 0, v{src}", f"v_max_i32 v{n_}, 0, v{src}", f"v_cvt_f32_i32 v{n_}, v{n_}",
               f"v_cndmask_b32 v{mreg}, 0, 1.0, vcc"], f"v_mul_f32 v{n_}, 0x43000000, v{n_}"]
    W += [f"v_mov_b32 v{X+40}, 0x41800000", f"v_mov_b32 v{X+41}, 0x41000000"]
    streams = []
    for T in range(3):
        tm = X+44+6*T
        pr, pi, cr, ci = tm+2, tm+3, tm+4, tm+5
        s_ = cpow_s(vMr[T], vMi[T], vA[T], vBx[T], f"v{X+40 if T < 2 else X+41}", tm, vSgn)
        s_ += [f"v_mul_f32 v{pi}, v{vSgn}, v{vLi[T]}", f"v_add_f32 v{pr}, -1.0, v{vLr[T]}",
               f"v_mul_f32 v{tm}, v{vLRE[T]}, v{vLRE[T]}", f"v_fmac_f32 v{tm}, v{vLIM[T]}, v{vLIM[T]}", f"v_rcp_f32 v{tm}, v{tm}",
               f"v_mul_f32 v{cr}, v{pr}, v{vLRE[T]}", f"v_fmac_f32 v{cr}, v{pi}, v{vLIM[T]}",
               f"v_mul_f32 v{ci}, v{pi}, v{vLRE[T]}", f"v_fma_f32 v{ci}, -v{pr}, v{vLIM[T]}, v{ci}",
               f"v_add_f32 v{tm}, v{tm}, v{tm}", f"v_mul_f32 v{cr}, v{tm}, v{cr}", f"v_mul_f32 v{ci}, v{tm}, v{ci}",
               f"v_mul_f32_e64 v{vC2r[T]}, -v{vSgn}, v{cr}", f"v_sub_f32 v{vC2i[T]}, 0, v{ci}", f"v_sub_f32 v{vLi2[T]}, 0, v{vLi[T]}"]
        s_ += cpow_s(pr, pi, vA[T], vBx[T], f"v{nOff if T < 2 else nOff4}", tm, None)
        s_ += [f"v_mul_f32 v{vHr[T]}, v{cr}, v{pr}", f"v_fma_f32 v{vHr[T]}, -v{ci}, v{pi}, v{vHr[T]}",
               f"v_mul_f32 v{vHi[T]}, v{cr}, v{pi}", f"v_fmac_f32 v{vHi[T]}, v{ci}, v{pr}",
               f"v_mul_f32_e64 v{vHr[T]}, -v{vSgn}, v{vHr[T]}", f"v_sub_f32 v{vHi[T]}, 0, v{vHi[T]}"]
        s_ += cpow_s(vW0r[T], vW0i[T], vA[T], vBx[T], f"v{nW0 if T < 2 else nW4}", tm, vSgn)
        mk = vm0 if T < 2 else vm4
        s_ += [f"v_mul_f32 v{vW0r[T]}, v{mk}, v{vW0r[T]}", f"v_mul_f32 v{vW0i[T]}, v{mk}, v{vW0i[T]}"]
        if T < 2:
            s_ += cpow_s(vW1r[T], vW1i[T], vA[T], vBx[T], f"v{nW1}", tm, vSgn)
            s_ += [f"v_mul_f32 v{vW1r[T]}, v{vm1}, v{vW1r[T]}", f"v_mul_f32 v{vW1i[T]}, v{vm1}, v{vW1i[T]}"]
        streams.append(s_)
    W += rr(*streams)
    for x in W:
        if isinstance(x, str): a(x)
        else:
            for y in x: a(y)
    stp(a, "consts2")
    a("s_waitcnt vmcnt(0)")
    vFo = 18
    a(f"s_lshl_b32 s{sT0}, s{sRB}, 1")
    a(f"s_add_u32 s{sT0}, s{sT0}, s{sRH}")
    a(f"s_lshl_b32 s{sT0}, s{sT0}, 4")
    a(f"s_add_u32 s{sT0}, s{sT0}, s{sCG}")
    a(f"s_lshl_b32 s{sT0}, s{sT0}, 1")
    a(f"s_add_u32 s{sT0}, s{sT0}, s{sCH}")
    a(f"s_lshl_b32 s{sT0}, s{sT0}, 2")
    a(f"s_add_u32 s{sT0}, s{sT0}, {WS_FB}")
    a(f"v_mov_b32 v{vFo}, s{sT0}")
    a(f"v_mov_b32 v{t0}, s{sNonce}")
    a(f"s_mov_b64 exec, 1")
    a(f"global_store_dword v{vFo}, v{t0}, s[{P_WS}:{P_WS+1}]{SC}")
    a(f"s_mov_b64 exec, -1")
    stp(a, "flagB")


    Hp = [65, 66, 67]; hx = [56, 57, 58]; bad = 68
    vFl = 24
    a(f"s_lshl_b32 s{sT0}, s{sRB2}, 7")
    a(f"s_lshl_b32 s{sT1}, s{sW}, 5")
    a(f"s_add_u32 s{sT0}, s{sT0}, s{sT1}")
    a(f"v_and_b32 v{vFl}, 7, v{vL}")
    a(f"v_lshlrev_b32 v{vFl}, 2, v{vFl}")
    a(f"v_add_u32 v{vFl}, s{sT0}, v{vFl}")
    a(f"v_add_u32 v{vFl}, {WS_FB}, v{vFl}")
    srd(a, SH, P_WS, WS_G)
    srd(a, SM, P_WS, WS_S + 256*640)
    R = 70
    FBV = 80
    def poll_loads():
        a(f"buffer_load_dwordx2 v[{R}:{R+1}], v{pa[0]}, s[{SM}:{SM+3}], 0 offen{SC}")
        a(f"buffer_load_dwordx2 v[{R+2}:{R+3}], v{pa[0]}, s[{SM}:{SM+3}], 0 offen offset:128{SC}")
        a(f"buffer_load_dwordx2 v[{R+4}:{R+5}], v{pa[1]}, s[{SM}:{SM+3}], 0 offen{SC}")
        a(f"buffer_load_dwordx2 v[{R+6}:{R+7}], v{pa[1]}, s[{SM}:{SM+3}], 0 offen offset:128{SC}")
        a(f"buffer_load_dwordx2 v[{R+8}:{R+9}], v{pa[2]}, s[{SM}:{SM+3}], 0 offen{SC}")
    poll_loads()
    PE = X+64
    W = [f"v_subrev_u32 v{t0}, 256, v{vAe}"]
    for T in range(2):
        for k in range(7): W.append(f"ds_read_b32 v{PE+7*T+k}, v{t0} offset:{EF0 + 64*T - 256*k}")
    W.append(f"v_subrev_u32 v{t1}, 64, v{vAe4}")
    for k in range(15): W.append(f"ds_read_b32 v{PE+14+k}, v{t1} offset:{E40 - 64*k}")
    tu = [56, 57, 58]
    for k in range(16):
        Ts = [T for T in range(3) if k < NS[T]]
        for T in Ts: W.append(f"v_mul_f32 v{tu[T]}, v{vC2r[T]}, v{U[T]+k}")
        for T in Ts: W.append(f"v_fmac_f32_dpp v{tu[T]}, v{U[T]+k}, v{vC2i[T]} {DPPSW}")
        for T in Ts: W.append(f"v_mov_b32 v{U[T]+k}, v{tu[T]}")
    W.append("s_waitcnt lgkmcnt(0)")
    Pc = [PE+6, PE+13, PE+14+14]
    Pt = [[59, 60], [61, 62], [63, 64]]
    nch = [7, 7, 15]; base = [PE, PE+7, PE+14]
    for stepk in range(1, 15):
        Ts = [T for T in range(3) if stepk < nch[T]]
        dst = {T: Pt[T][stepk & 1] for T in Ts}
        grp = []
        for T in Ts: grp.append(f"v_fma_f32 v{dst[T]}, v{vMr[T]}, v{Pc[T]}, v{base[T] + nch[T]-1-stepk}")
        if len(Ts) == 1: grp.append("s_nop 0")
        for T in Ts:
            grp.append(f"v_fmac_f32_dpp v{dst[T]}, v{Pc[T]}, v{vMi[T]} {DPPSW}")
            Pc[T] = dst[T]
        if len(Ts) == 1: grp.append("s_nop 0")
        W += grp
    W.append("s_nop 1")
    for T in range(3): W.append(f"v_mul_f32 v{Ps[T]}, v{vC2r[T]}, v{Pc[T]}")
    for T in range(3): W.append(f"v_fmac_f32_dpp v{Ps[T]}, v{Pc[T]}, v{vC2i[T]} {DPPSW}")
    W += [f"v_mov_b32 v7, v{vAs}", f"v_mov_b32 v8, v{vCm}",
          f"v_and_b32 v{t0}, 15, v{vL}", f"v_lshrrev_b32 v{t1}, 2, v{t0}", f"v_lshlrev_b32 v{t1}, 1, v{t1}", f"v_add_u32 v{t1}, s{sCH}, v{t1}",
          f"v_mul_u32_u24 v{t1}, {HTS}, v{t1}", f"v_and_b32 v{t2}, 3, v{t0}", f"v_lshlrev_b32 v{t2}, 2, v{t2}", f"v_lshrrev_b32 v{t3}, 4, v{vL}",
          f"v_add_u32 v{t2}, v{t2}, v{t3}", f"s_lshl_b32 s{sT0}, s{sRH}, 4", f"v_add_u32 v{t2}, s{sT0}, v{t2}",
          f"v_lshl_add_u32 v{RA}, v{t2}, 3, v{t1}",
          f"s_lshl_b32 s{sT0}, s{sRB}, 1", f"s_add_u32 s{sT0}, s{sT0}, s{sRH}", f"s_lshl_b32 s{sT0}, s{sT0}, 2",
          f"v_add_u32 v{t3}, s{sT0}, v{t3}", f"v_mul_u32_u24 v{t3}, 88, v{t3}", f"s_mul_i32 s{sT0}, s{sCH}, 20",
          f"v_add_u32 v{t3}, s{sT0}, v{t3}", f"v_lshlrev_b32 v{t3}, 10, v{t3}", f"v_lshl_add_u32 v{GA}, v{t0}, 4, v{t3}"]
    NPF = int(OPT.get('npf', 25))
    FBPOS = int(OPT.get('fbpos', 20))
    items = pre[:FBPOS] + [[f"global_load_dword v{FBV}, v{vFl}, s[{P_WS}:{P_WS+1}]{SC}"]] + pre[FBPOS:NPF]
    weave(a, W, items, start=0)
    stp(a, "prefix")
    a(f"s_waitcnt vmcnt({NPF-FBPOS})")
    spin_init(a)
    a(f"s_branch L_pollc")
    a.label("L_poll")
    spin_guard(a, "L_pollx")
    poll_loads()
    a("s_waitcnt vmcnt(0)")
    a.label("L_pollc")
    a(f"v_mov_b32 v{bad}, 0")
    for (ri, mreg) in ((R+1, vm0), (R+3, vm0), (R+5, vm1), (R+7, vm1), (R+9, vm4)):
        a(f"v_cmp_ne_u32 vcc, s{sNonce}, v{ri}")
        a("s_nop 1")
        a(f"v_cndmask_b32 v{t0}, 0, v{mreg}, vcc")
        a(f"v_or_b32 v{bad}, v{bad}, v{t0}")
    a(f"v_cmp_ne_u32 vcc, 0, v{bad}")
    a("s_nop 4")
    a("s_cbranch_vccnz L_poll")
    a.label("L_pollx")
    for (T, ri) in ((0, R), (1, R+2), (2, R+8)): a(f"v_mul_f32 v{Hp[T]}, v{vW0r[T]}, v{ri}")
    for (T, ri) in ((0, R), (1, R+2), (2, R+8)): a(f"v_fmac_f32_dpp v{Hp[T]}, v{ri}, v{vW0i[T]} {DPPSW}")
    for (T, ri) in ((0, R+4), (1, R+6)): a(f"v_fmac_f32 v{Hp[T]}, v{vW1r[T]}, v{ri}")
    for (T, ri) in ((0, R+4), (1, R+6)): a(f"v_fmac_f32_dpp v{Hp[T]}, v{ri}, v{vW1i[T]} {DPPSW}")
    qreduce(Hp, hx)
    a(f"s_mul_i32 s{sT0}, s{sW}, 320")
    a(f"s_add_u32 s{sT0}, s{sT0}, {MISC}")
    a(f"v_add_u32 v{t0}, s{sT0}, v{vC}")
    a(f"ds_write_b32 v{vRw}, v{Hp[0]} offset:{RWB}")
    a(f"ds_write_b32 v{vRw}, v{Hp[1]} offset:{RWB+64}")
    a(f"ds_write_b32 v{t0}, v{Hp[2]} offset:{RWB+256}")
    stp(a, "poll")
    spin_init(a)
    a.label("L_fbpoll")
    a(f"v_cmp_ne_u32 vcc, s{sNonce}, v{FBV}")
    a("s_nop 4")
    a("s_cbranch_vccz L_fbx")
    spin_guard(a, "L_fbx")
    a(f"global_load_dword v{FBV}, v{vFl}, s[{P_WS}:{P_WS+1}]{SC}")
    a("s_waitcnt vmcnt(0)")
    a("s_branch L_fbpoll")
    a.label("L_fbx")
    stp(a, "flagB seen")
    slots = [52, 68, 84, "a88", 100]
    def hreg(slot, i):
        sl = slots[slot]
        if isinstance(sl, str): return f"a[{88+4*i}:{91+4*i}]"
        return f"v[{sl+4*i}:{sl+4*i+3}]"
    def hloads(g):
        return [f"buffer_load_dwordx4 {hreg(g % 5, i)}, v{vH+i}, s[{SH}:{SH+3}], s{sKH} offen{SCL}" for i in range(4)]
    a(f"s_mul_i32 s{sKH}, s{sW}, 12")
    a(f"s_add_u32 s{sKH}, s{sKH}, 40")
    a(f"s_lshl_b32 s{sKH}, s{sKH}, 10")
    a("s_waitcnt lgkmcnt(0)")
    early = []
    for g in range(5):
        hl = hloads(g)
        early += [[x] for x in hl[:3]] + [[hl[3], f"s_add_u32 s{sKH}, s{sKH}, 1024"]]
    sOff = [73, 74, 75, 76, 77]
    for it in range(5):
        a(f"s_mul_i32 s{sT0}, s{sCG}, 5")
        a(f"s_add_u32 s{sT0}, s{sT0}, {it}")
        a(f"s_lshr_b32 s{sT1}, s{sT0}, 2")
        a(f"s_lshl_b32 s{sT1}, s{sT1}, 10")
        a(f"s_and_b32 s{sT0}, s{sT0}, 3")
        a(f"s_lshl_b32 s{sT0}, s{sT0}, 8")
        a(f"s_add_u32 s{sOff[it]}, s{sT0}, s{sT1}")
    for it in early[:4]:
        for x in it: a(x)
    early = early[4:]
    a("s_barrier")
    Hw = [X+48, X+49, X+50]
    a(f"s_mul_i32 s{sT0}, s{sCH}, 320")
    a(f"s_add_u32 s{sT0}, s{sT0}, {MISC}")
    a(f"v_add_u32 v{t0}, s{sT0}, v{vAs2}")
    hr = [X+40, X+41, X+42, X+43, X+44, X+45, X+46, X+47]
    a(f"ds_read_b32 v{hr[0]}, v{t0} offset:{RWB}")
    a(f"ds_read_b32 v{hr[1]}, v{t0} offset:{RWB+640}")
    a(f"ds_read_b32 v{hr[2]}, v{t0} offset:{RWB+64}")
    a(f"ds_read_b32 v{hr[3]}, v{t0} offset:{RWB+704}")
    for w in range(4): a(f"ds_read_b32 v{hr[4+w]}, v{vCm2} offset:{RWB+256+320*w}")
    a("s_waitcnt lgkmcnt(0)")
    W = [f"v_add_f32 v{Hw[0]}, v{hr[0]}, v{hr[1]}", f"v_add_f32 v{Hw[1]}, v{hr[2]}, v{hr[3]}", f"v_add_f32 v{hr[4]}, v{hr[4]}, v{hr[5]}",
         f"v_add_f32 v{hr[6]}, v{hr[6]}, v{hr[7]}", f"v_add_f32 v{Hw[2]}, v{hr[4]}, v{hr[6]}"]
    for T in range(3): W.append(f"v_fmac_f32 v{Ps[T]}, v{vHr[T]}, v{Hw[T]}")
    W.append("s_nop 0")
    for T in range(3): W.append(f"v_fmac_f32_dpp v{Ps[T]}, v{Hw[T]}, v{vHi[T]} {DPPSW}")
    cur = list(Ps)
    W.append("s_nop 0")
    for k in range(16):
        Ts = [T for T in range(3) if k < NS[T]]
        for T in Ts: W.append(f"v_fmac_f32 v{U[T]+k}, v{vLr[T]}, v{cur[T]}")
        for T in Ts:
            W.append(f"v_fmac_f32_dpp v{U[T]+k}, v{cur[T]}, v{vLi2[T]} {DPPSW}")
            cur[T] = U[T]+k
    for T in range(3):
        for k in range(NS[T]//2):
            W.append(f"v_cvt_pk_bf16_f32 v{X + 16*T + k}, v{U[T]+2*k}, v{U[T]+2*k+1}")
    W += [f"v_and_b32 v{t0}, 15, v{vL}", f"s_lshl_b32 s{sT0}, s{sCH}, 5", f"v_add_u32 v{t1}, s{sT0}, v{t0}",
          f"v_mul_u32_u24 v{t1}, {HTS}, v{t1}", f"v_lshl_add_u32 v{t1}, v{vSig}, 5, v{t1}",
          f"v_add_u32 v{t0}, 64, v{t0}", f"v_mul_u32_u24 v{t0}, {HTS}, v{t0}", f"v_lshl_add_u32 v{t0}, v{vSig}, 5, v{t0}",
          f"s_lshl_b32 s{sT0}, s{sCH}, 4", f"v_add_u32 v{t0}, s{sT0}, v{t0}"]
    weave(a, W, early, start=6)
    stp(a, "passB")
    a(f"ds_write_b128 v{t1}, v[{X}:{X+3}]")
    a(f"ds_write_b128 v{t1}, v[{X+4}:{X+7}] offset:16")
    a(f"ds_write_b128 v{t1}, v[{X+16}:{X+19}] offset:{16*HTS}")
    a(f"ds_write_b128 v{t1}, v[{X+20}:{X+23}] offset:{16*HTS+16}")
    a(f"ds_write_b128 v{t0}, v[{X+32}:{X+35}]")
    a("s_waitcnt lgkmcnt(0)")
    a("s_barrier")
    DT = 200
    for it in range(5):
        a(f"ds_read_b64_tr_b16 v[{DT+4*it}:{DT+4*it+1}], v{RA} offset:{it*16*HTS}")
        a(f"ds_read_b64_tr_b16 v[{DT+4*it+2}:{DT+4*it+3}], v{RA} offset:{it*16*HTS+8*HTS}")
    PACE = "pace" in FLAGS
    def hA_store(it): return f"buffer_store_dwordx4 v[{DT+4*it}:{DT+4*it+3}], v{GA}, s[{SH}:{SH+3}], s{sOff[it]} offen{SC}"
    stp(a, "hA stored")
    accB = lambda j, i: 120 + (j*4+i)*4
    def accA(j, i):
        t = j*4+i
        return 200 + 4*t if t < 14 else 26 + 4*(t-14)
    def wreg(g, j): b = wbase(g, j); return f"a[{b}:{b+3}]"
    fifo = [("h", g) for g in range(5) for _ in range(4)]
    if not PACE:
        for it in range(5):
            a(f"s_waitcnt lgkmcnt({2*(4-it)})")
            a(hA_store(it)); fifo.append(("st", it))
    def issue(x, tag):
        a(x); fifo.append(tag)
    def wait_for(pred):
        idx = [i for i, tg in enumerate(fifo) if pred(tg)]
        if not idx: return
        n = len(fifo) - 1 - max(idx)
        assert n <= 63, n
        a(f"s_waitcnt vmcnt({n})")
        del fifo[:max(idx)+1]
    sKS, sKS4 = 85, 86
    a(f"s_mul_i32 s{sKS}, s{sCB}, 88")
    a(f"s_mul_i32 s{sT0}, s{sW}, 5")
    a(f"s_add_u32 s{sKS}, s{sKS}, s{sT0}")
    a(f"s_mul_i32 s{sKS}, s{sKS}, 5120")
    a(f"s_add_u32 s{sKS4}, s{sKS}, 4096")
    wq = []
    assert NPF % 5 == 0
    for g in range(7 + NPF//5, 12):
        st_ = wstep(g)
        for j in range(5): wq.append((("wg", g), 0, st_[j], st_[5:] if j == 4 else []))
    for sidx in range(10):
        for j in range(5):
            x = wload(sidx, j).replace(f"s{sKW} offen", f"s{sKS} offen").replace(f"s{sKW4} offen", f"s{sKS4} offen")
            inc = (20-4)*5120 if sidx == 4 else 5120
            wq.append((("w", sidx), sidx, x, [f"s_add_u32 s{sKS}, s{sKS}, {inc}", f"s_add_u32 s{sKS4}, s{sKS4}, {inc}"] if j == 4 else []))
    RATE = int(OPT.get('rate', 3))
    LA, OA = 2, 7
    vG = [12, 14, 16, 22]
    vLW = 25
    XR, GR, DR = 84, 94, 100
    RS = 336; RED = 64*RS
    fill = []
    for i in range(5):
        w1, w2, w3 = t0, t1, t3
        fill += [f"v_add_u32 v{w1}, {256*i}, v0", f"v_mul_u32_u24 v{w2}, 3277, v{w1}", f"v_lshrrev_b32 v{w2}, 16, v{w2}",
                 f"v_mul_u32_u24 v{w3}, 20, v{w2}", f"v_sub_u32 v{w3}, v{w1}, v{w3}", f"v_mul_u32_u24 v{LA+i}, {RS}, v{w2}",
                 f"v_lshl_add_u32 v{LA+i}, v{w3}, 4, v{LA+i}", f"s_lshl_b32 s{sT0}, s{sRB2}, 6", f"v_add_u32 v{w2}, s{sT0}, v{w2}",
                 f"v_mul_u32_u24 v{w2}, 640, v{w2}", f"s_mul_i32 s{sT1}, s{sCB}, 80", f"v_lshl_add_u32 v{w3}, v{w3}, 2, s{sT1}",
                 f"v_add_u32 v{w2}, v{w2}, v{w3}", f"v_lshlrev_b32 v{OA+i}, 2, v{w2}"]
    fill += [f"v_and_b32 v{t0}, 15, v{vL}", f"v_lshrrev_b32 v{t1}, 2, v{t0}", f"v_lshlrev_b32 v{t1}, 4, v{t1}", f"v_and_b32 v{t0}, 3, v{t0}",
             f"v_add_u32 v{t0}, v{t0}, v{t1}", f"s_lshl_b32 s{sT0}, s{sRB2}, 6", f"v_add_u32 v{t1}, s{sT0}, v{t0}",
             f"v_lshlrev_b32 v{t1}, 2, v{t1}", f"v_add_u32 v50, {WS_G}, v{t1}",
             f"v_mul_u32_u24 v{t0}, {RS}, v{t0}", f"v_lshrrev_b32 v{t3}, 4, v{vL}", f"v_lshl_add_u32 v{t0}, v{t3}, 4, v{t0}",
             f"s_mul_i32 s{sT0}, s{sW}, {RED}", f"v_add_u32 v{vLW}, s{sT0}, v{t0}"]
    stp(a, "K2 setup")
    fill2 = []
    for i in range(5):
        fill2 += [f"v_lshrrev_b32 v{t0}, 1, v{OA+i}", (f"global_load_dwordx2 v[{XR+2*i}:{XR+2*i+1}], v{t0}, s[{P_X}:{P_X+1}]", ("f", 0))]
    fill2 += [f"s_lshl_b32 s{sT0}, s{sRB2}, 6", f"s_mul_i32 s{sT1}, s{sCB}, 160"]
    for i in range(5):
        fill2 += [f"v_mul_u32_u24 v{t1}, 49933, v{LA+i}", f"v_lshrrev_b32 v{t1}, 24, v{t1}", f"v_add_u32 v{t0}, s{sT0}, v{t1}",
                  f"v_lshlrev_b32 v{t0}, 2, v{t0}", f"v_add_u32 v{t0}, {WS_G}, v{t0}",
                  (f"global_load_dword v{GR+i}, v{t0}, s[{P_WS}:{P_WS+1}]{SC}", ("f", 0)),
                  f"v_mul_u32_u24 v{t1}, {RS}, v{t1}", f"v_sub_u32 v{t1}, v{LA+i}, v{t1}", f"v_lshrrev_b32 v{t1}, 1, v{t1}",
                  f"v_add_u32 v{t1}, s{sT1}, v{t1}", (f"global_load_dwordx2 v[{DR+2*i}:{DR+2*i+1}], v{t1}, s[{P_DSK}:{P_DSK+1}]", ("f", 0))]
    for g in range(22):
        glu = g < 12
        slot = g % 5
        wg = g if glu else g-12
        wait_for(lambda tg: tg == ("h", g) or (not glu and tg == ("w", g-12)) or (glu and tg == ("wg", g)))
        if g == 0: stp(a, "h0 landed")
        if "kstamp" in FLAGS:
            if g > 0:
                a("s_waitcnt lgkmcnt(0)"); a(f"v_writelane_b32 v23, s38, {g-1}")
            a("s_memtime s[38:39]")
        if g == 0 and PACE:
            a("s_waitcnt lgkmcnt(0)")
        if g == (6 if PACE else 3):
            wait_for(lambda tg: tg[0] == "st")
            a(f"v_add_u32 v{t0}, {WS_FA-WS_FB}, v{vFo}")
            a(f"v_mov_b32 v{t1}, s{sNonce}")
            a(f"s_mov_b64 exec, 1")
            issue(f"global_store_dword v{t0}, v{t1}, s[{P_WS}:{P_WS+1}]{SC}", ("fa", 0))
            a(f"s_mov_b64 exec, -1")
        if g == (7 if PACE else 6):
            a(f"v_add_u32 v{vFl}, {WS_FA-WS_FB}, v{vFl}")
            issue(f"global_load_dword v{t2}, v{vFl}, s[{P_WS}:{P_WS+1}]{SC}", ("fp", 0))
        if g == 15:
            a("s_barrier")
            for i in range(4): issue(f"global_load_dword v{vG[i]}, v50, s[{P_WS}:{P_WS+1}] offset:{16*i}{SC}", ("g", 0))
        mf = []
        for j in range(5):
            for i in range(4):
                d = accB(j, i) if glu else accA(j, i)
                c = "0" if g in (0, 12) else f"v[{d}:{d+3}]"
                mf.append(f"v_mfma_f32_16x16x32_bf16 v[{d}:{d+3}], {wreg(wg, j)}, {hreg(slot, i)}, {c}")
        nw = 0
        for idx, x in enumerate(mf):
            a(x)
            if idx % 4 == 1 and nw < RATE and wq and wq[0][1] < g:
                tg, e_, ins, post = wq.pop(0); issue(ins, tg); nw += 1
                for y in post: a(y)
            elif g >= 8 and fill and idx % 4 != 1: a(fill.pop(0))
            elif g >= 20 and fill2:
                for _ in range(2):
                    if fill2:
                        it_ = fill2.pop(0)
                        if isinstance(it_, str): a(it_)
                        else: issue(it_[0], it_[1])
        while nw < RATE and wq and wq[0][1] <= g:
            tg, e_, ins, post = wq.pop(0); issue(ins, tg); nw += 1
            for y in post: a(y)
        if g < 5 and PACE: issue(hA_store(g), ("st", g))
        for gn in range(22):
            la = 5 if gn < 12 else ((4 if gn < 17 else 3) if "la5" not in FLAGS else 5)
            if gn >= 5 and gn - la == g:
                if gn == 12:
                    wait_for(lambda tg: tg[0] == "fp")
                    spin_init(a)
                    a.label("L_fachk")
                    a(f"v_cmp_ne_u32 vcc, s{sNonce}, v{t2}")
                    a("s_nop 4")
                    a("s_cbranch_vccz L_faok")
                    spin_guard(a, "L_faok")
                    a(f"global_load_dword v{t2}, v{vFl}, s[{P_WS}:{P_WS+1}]{SC}")
                    a("s_waitcnt vmcnt(0)")
                    a("s_branch L_fachk")
                    a.label("L_faok")
                    a(f"s_mul_i32 s{sKH}, s{sW}, {5*1024}")
                elif gn == 17: a(f"s_add_u32 s{sKH}, s{sKH}, {15*1024}")
                for x in hloads(gn): issue(x, ("h", gn))
                a(f"s_add_u32 s{sKH}, s{sKH}, 1024")
    assert not fill and not wq and not fill2, (len(fill), len(wq), len(fill2))
    if "kstamp" in FLAGS:
        a("s_waitcnt lgkmcnt(0)"); a(f"v_writelane_b32 v23, s38, 21")
        a("s_memtime s[38:39]"); a("s_waitcnt lgkmcnt(0)"); a(f"v_writelane_b32 v23, s38, 22")
        a(f"s_lshl_b32 s{sT0}, s2, 2"); a(f"s_add_u32 s{sT0}, s{sT0}, s{sW}"); a(f"s_lshl_b32 s{sT0}, s{sT0}, 8")
        a(f"s_add_u32 s{sT0}, s{sT0}, {WS_STAMP + 0x80000}")
        a(f"v_lshl_add_u32 v{t0}, v{vL}, 2, s{sT0}")
        a(f"global_store_dword v{t0}, v23, s[{P_WS}:{P_WS+1}]")
    stp(a, "K2 loop")
    wait_for(lambda tg: tg[0] == "g")
    for j in range(5):
        for i in range(4):
            A_r, B_r = accA(j, i), accB(j, i)
            for h in (0, 2):
                a(f"v_pk_add_f32 v[{A_r+h}:{A_r+h+1}], v[{A_r+h}:{A_r+h+1}], v[{B_r+h}:{B_r+h+1}] neg_lo:[0,1] neg_hi:[0,1]")
            for h in (0, 2):
                a(f"v_pk_fma_f32 v[{B_r+h}:{B_r+h+1}], v[{vG[i]}:{vG[i]+1}], v[{A_r+h}:{A_r+h+1}], v[{B_r+h}:{B_r+h+1}] op_sel_hi:[0,1,1]")
            a(f"ds_write_b128 v{vLW}, v[{B_r}:{B_r+3}] offset:{i*4*RS + 64*j}")
    a("s_waitcnt lgkmcnt(0)")
    a("s_barrier")
    stp(a, "red written")
    for i in range(5):
        b = 120 + 16*i
        for w in range(4):
            a(f"ds_read_b128 v[{b+4*w}:{b+4*w+3}], v{LA+i} offset:{w*RED}")
    a("s_waitcnt vmcnt(0)")
    for i in range(5):
        b = 120 + 16*i
        a(f"s_waitcnt lgkmcnt({min(15,4*(4-i))})")
        a(f"v_pk_add_f32 v[{b}:{b+1}], v[{b}:{b+1}], v[{b+4}:{b+5}]")
        a(f"v_pk_add_f32 v[{b+2}:{b+3}], v[{b+2}:{b+3}], v[{b+6}:{b+7}]")
        a(f"v_pk_add_f32 v[{b+8}:{b+9}], v[{b+8}:{b+9}], v[{b+12}:{b+13}]")
        a(f"v_pk_add_f32 v[{b+10}:{b+11}], v[{b+10}:{b+11}], v[{b+14}:{b+15}]")
        a(f"v_pk_add_f32 v[{b}:{b+1}], v[{b}:{b+1}], v[{b+8}:{b+9}]")
        a(f"v_pk_add_f32 v[{b+2}:{b+3}], v[{b+2}:{b+3}], v[{b+10}:{b+11}]")
        x0, d0_ = XR+2*i, DR+2*i
        for h in range(2):
            a(f"v_lshlrev_b32 v{t1}, 16, v{x0+h}")
            a(f"v_and_b32 v{t2}, 0xffff0000, v{x0+h}")
            a(f"v_lshlrev_b32 v{t3}, 16, v{d0_+h}")
            a(f"v_and_b32 v{t4}, 0xffff0000, v{d0_+h}")
            a(f"v_mul_f32 v{t1}, v{t1}, v{t3}")
            a(f"v_mul_f32 v{t2}, v{t2}, v{t4}")
            a(f"v_fmac_f32 v{b+2*h}, v{GR+i}, v{t1}")
            a(f"v_fmac_f32 v{b+2*h+1}, v{GR+i}, v{t2}")
        a(f"global_store_dwordx4 v{OA+i}, v[{b}:{b+3}], s[{P_OUT}:{P_OUT+1}]" + (" sc1" if "outsc1" in FLAGS else "") + (" nt" if "outnt" in FLAGS else ""))
    stp(a, "out stored")
    if LSTAMP:
        pass
    if "dbgt" in FLAGS:
        a("s_waitcnt vmcnt(0)")
        a("s_memrealtime s[40:41]"); a("s_memtime s[42:43]")
        a("s_waitcnt lgkmcnt(0)")
        a(f"s_cmp_lg_u32 s{sW}, 0")
        a("s_cbranch_scc1 L_end")
        a("s_not_b32 s44, s101")
        a("v_mov_b32 v2, 0"); a("v_mov_b32 v3, s44"); a("v_mov_b32 v4, s40")
        a("s_mov_b64 exec, 1")
        a(f"global_atomic_umax v2, v3, s[{P_DBG}:{P_DBG+1}] offset:16 sc1")
        a(f"global_atomic_umax v2, v4, s[{P_DBG}:{P_DBG+1}] offset:20 sc1")
        a("s_cmp_lg_u32 s2, 0")
        a("s_cbranch_scc1 L_end")
        a("s_sub_u32 s42, s42, s96"); a("s_sub_u32 s40, s40, s101")
        a("v_mov_b32 v3, s42"); a("v_mov_b32 v4, s40")
        a(f"global_store_dword v2, v3, s[{P_DBG}:{P_DBG+1}] offset:24")
        a(f"global_store_dword v2, v4, s[{P_DBG}:{P_DBG+1}] offset:28")
    stp.dump(a, sW, sT0, P_WS, WS_STAMP)
    a.label("L_end")
    a("s_endpgm")
    a.label("L_codeend")
    return a.text()

HEADER = open("gated_mix__ssm_conv_s5__glu_gated_bilinear__prompt.s.ref").read().split("; Override launch")[0]
def main():
    out = HEADER
    out += "; Override launch geometry by editing the next line. Harness parses it; keep it on one line.\n"
    out += "; @launch grid=(256,1,1) block=(256,1,1) lds=163840\n"
    out += '.amdgcn_target "amdgcn-amd-amdhsa--gfx950"\n.text\n'
    out += f".globl {KNAME}\n.p2align 8\n.type {KNAME},@function\n" + gen()
    out += f""".section .rodata,"a"
.p2align 6
.amdhsa_kernel {KNAME}
  .amdhsa_next_free_vgpr 512
  .amdhsa_next_free_sgpr 102
  .amdhsa_accum_offset 256
  .amdhsa_group_segment_fixed_size 0
  .amdhsa_kernarg_size 136
  .amdhsa_user_sgpr_count 2
  .amdhsa_user_sgpr_kernarg_segment_ptr 1
  .amdhsa_system_sgpr_workgroup_id_x 1
  .amdhsa_float_denorm_mode_32 3
.end_amdhsa_kernel
"""
    path = [x for x in sys.argv[1:] if not x.startswith("--")][0]
    open(path, "w").write(out)
    json.dump([[d[i] for i in sorted(d)] for d in NAMES], open(path + ".names", "w"))
main()
```

```python
import sys, json
from asmlib import *

FLAGS = set(x[2:] for x in sys.argv[1:] if x.startswith("--"))
OPT = dict(x.split("=") for x in FLAGS if "=" in x)
STAMP = "stamp" in FLAGS
NAMES = []
KNAME = "gated_mix__ssm_conv_s5__glu_gated_bilinear__prompt_kernel"

WS_H   = 0
WS_G   = 0xB00000
WS_S   = 0xB10000
WS_FB  = 0xB40000
WS_FA  = 0xB42000
WS_PF  = 0xB44000
WS_W2  = 0xC00000
W2_SIZE = 8*88*5*1024
WS_STAMP = 0x1000000
LOG2E = 0x3fb8aa3b
INV2PI = 0x3e22f983
SC = "" if "nosc" in FLAGS else " sc1"
SCL = "" if ("nosc" in FLAGS or "noscl" in FLAGS) else " sc1"
LSTAMP = "lstamp" in FLAGS

def srd(a, d, base, size, add=0):
    o = []
    if add == 0:
        o += [f"s_mov_b32 s{d}, s{base}", f"s_mov_b32 s{d+1}, s{base+1}"]
    elif add > 0:
        o += [f"s_add_u32 s{d}, s{base}, {add}", f"s_addc_u32 s{d+1}, s{base+1}, 0"]
    else:
        o += [f"s_sub_u32 s{d}, s{base}, {-add}", f"s_subb_u32 s{d+1}, s{base+1}, 0"]
    o += [f"s_mov_b32 s{d+2}, {size}", f"s_mov_b32 s{d+3}, 0x00020000"]
    if a is None: return o
    for x in o: a(x)

class Stamper:
    def __init__(self, store):
        self.store = store; self.n = 0; self.tmp = [98, 100]; self.names = {}
        NAMES.append(self.names)
    def __call__(self, a, name=""):
        if not STAMP: return
        if self.n > 0:
            a(f"s_mov_b32 s{self.store[self.n-1]}, s{self.tmp[(self.n-1)&1]}")
        assert self.n < len(self.store), "too many stamps"
        a(f"s_memtime s[{self.tmp[self.n&1]}:{self.tmp[self.n&1]+1}]")
        self.names[self.n] = name
        self.n += 1
    def dump(self, a, sW, sT0, P_WS, base):
        if not STAMP: return
        a("s_waitcnt vmcnt(0) lgkmcnt(0)")
        self(a, "end")
        a("s_waitcnt lgkmcnt(0)")
        a(f"s_mov_b32 s{self.store[self.n-1]}, s{self.tmp[(self.n-1)&1]}")
        a(f"s_lshl_b32 s{sT0}, s2, 2")
        a(f"s_add_u32 s{sT0}, s{sT0}, s{sW}")
        a(f"s_lshl_b32 s{sT0}, s{sT0}, 7")
        a(f"s_add_u32 s{sT0}, s{sT0}, {base}")
        a(f"v_mov_b32 v2, s{sT0}")
        if "dbgstamp" in FLAGS:
            keep = [i for i in range(1, self.n) if self.names[i] not in ("small issued", "glu1", "pub", "flagB", "flagB seen", "out stored")][:15]
            a("s_cmp_lg_u32 s2, 101")
            a("s_cbranch_scc1 L_end")
            a(f"s_cmp_lg_u32 s{sW}, 0")
            a("s_cbranch_scc1 L_end")
            a("v_mov_b32 v2, 0")
            for k, i in enumerate(keep):
                a(f"s_sub_u32 s40, s{self.store[i]}, s{self.store[0]}")
                a("v_mov_b32 v3, s40")
                a(f"global_store_dword v2, v3, s[34:35] offset:{4*(k+1)}")
            print("debug stamps:", [self.names[i] for i in keep])
            return
        for i in range(self.n):
            a(f"v_mov_b32 v3, s{self.store[i]}")
            a(f"global_store_dword v2, v3, s[{P_WS}:{P_WS+1}] offset:{4*i}")

def rr(*streams):
    out = []
    n = max(len(s) for s in streams)
    for i in range(n):
        for s in streams:
            if i < len(s): out.append(s[i])
    return out

def weave(a, work, mem, start=0, every=None):
    n = len(work); m = len(mem)
    if m == 0: pos = []
    elif every is None: pos = [start + int((n - start) * i / m) for i in range(m)]
    else: pos = [start + every*i for i in range(m)]
    mi = 0
    def emit(it):
        if isinstance(it, str): a(it)
        else:
            for x in it: a(x)
    for i, w in enumerate(work):
        while mi < m and pos[mi] <= i:
            emit(mem[mi]); mi += 1
        emit(w)
    while mi < m:
        emit(mem[mi]); mi += 1

SPIN_MAX = 100000
def spin_init(a): a("s_mov_b32 s95, 0")
def spin_guard(a, out_label):
    a("s_add_u32 s95, s95, 1")
    a(f"s_cmp_gt_u32 s95, {SPIN_MAX}")
    a(f"s_cbranch_scc1 {out_label}")

DPPSW = "quad_perm:[1,0,3,2] row_mask:0xf bank_mask:0xf"
P_X, P_LRE, P_LIM, P_BRE, P_BIM, P_CRE, P_CIM, P_LDT = 4,6,8,10,12,14,16,18
P_DSK, P_BX, P_WG, P_WU = 20,22,24,26
P_WD, P_GW, P_OUT, P_DBG = 28,30,32,34
P_WS = 36

def gen():
    a = Asm()
    stp = Stamper([96,97,22,23,6,7,8,9,18,19,10,11,12,13,24,25,26,27,82,83,84,40,41,42,43,73,74])
    SX, SG, SU, SB0, SB1, SB2, SM = 40,44,48,52,56,60,64
    sEX = 38
    sW, sRH, sCH, sRB, sCG = 68,69,70,71,72
    sDB, sCur, sD, sC3, sStage = 73,74,75,76,77
    sKX, sKG, sKU, sKB = 78,79,80,81
    sOX, sOG, sOU, sOB, sOB2 = 82,83,84,85,86
    sT0, sT1, sT2 = 87,88,89
    sF = 87
    sBlk, sRB2, sCB = 90, 91, 92
    sT3 = 93
    sNonce = 3
    vL = 1
    vDX, vDW, vDB = 2, 6, 9
    vX0, vX1, vWa, vWb, vWc, vB0, vB1 = 12,13,14,15,16,17,18
    t0, t1, t2, t3, t4 = 19,20,21,22,23
    vA  = [24,25,26]; vBx = [27,28,29]; vLRE = [30,31,32]; vLIM = [33,34,35]
    vLr = [36,37,38]; vLi = [39,40,41]; vWSr = [42,43,44]; vWSi = [45,46,47]
    vSgn, vNon, vSig, vWp = 48, 49, 50, 51
    vPF = 52
    SCR = 52
    vC, vAe, vAe4, vRw = 90, 91, 92, 93
    pa = [94, 95, 96]
    GLD = 56
    vGst, vGv = 71, 72
    RA, GA = 2, 3
    Ps = [4, 5, 6]
    vAs, vCm = 97, 98
    vAs2, vCm2 = 7, 8
    vH = 116
    ACC = 120
    BUF = 51200
    RX, RG, RU, RB = 0, 16384, 28672, 40960
    MISC = 3*BUF
    SWB, EF, E4, RWB = 0, 1280, 5120, 7104
    EF0 = EF + 7*256; E40 = E4 + 15*64
    HTS = 272
    def acc(n, i): return ACC + n*16 + 4*i
    SA, SBt, S4 = ACC+96, ACC+112, ACC+128
    CL = 52
    PK = 100
    vPWs, vPCs, vPWd, vPCd, vPtr = 61, 63, 64, 66, 68
    TP = 69

    a.label(KNAME)
    a(f"s_cmp_ge_u32 s2, 256")
    a(f"s_cbranch_scc1 L_end")
    if "nocodepf" not in FLAGS:
        a("s_getpc_b64 s[40:41]")
        a.label("L_pc")
        a("v_lshlrev_b32 v2, 2, v0")
        a("s_lshr_b32 s42, s2, 3")
        a("s_lshl_b32 s42, s42, 10")
        a("v_add_u32 v2, s42, v2")
        a("v_min_u32 v2, L_codeend-L_pc-4, v2")
        a("v_mov_b32 v3, s41")
        a("v_add_co_u32 v2, vcc, s40, v2")
        a("v_addc_co_u32 v3, vcc, 0, v3, vcc")
        a("global_load_dword v99, v[2:3], off")
    a(f"s_load_dwordx16 s[4:19], s[0:1], 0")
    a(f"s_load_dwordx8 s[20:27], s[0:1], 64")
    a(f"s_load_dwordx8 s[28:35], s[0:1], 96")
    a(f"s_load_dwordx2 s[36:37], s[0:1], 128")
    a(f"s_memrealtime s[{sEX}:{sEX+1}]")
    if "dbgt" in FLAGS: a("s_memtime s[96:97]")
    stp(a, "s0")
    a(f"v_lshrrev_b32 v{t0}, 6, v0")
    a(f"v_and_b32 v{vL}, 63, v0")
    a(f"s_and_b32 s{sT0}, s2, 1")
    a(f"v_readfirstlane_b32 s{sW}, v{t0}")
    a(f"s_lshl_b32 s{sT0}, s{sT0}, 3")
    a(f"s_lshr_b32 s{sT1}, s2, 3")
    a(f"s_and_b32 s{sRB}, s{sT1}, 7")
    a(f"s_add_u32 s{sRB}, s{sRB}, s{sT0}")
    a(f"s_lshr_b32 s{sT0}, s2, 1")
    a(f"s_and_b32 s{sT0}, s{sT0}, 3")
    a(f"s_lshl_b32 s{sT2}, s{sT0}, 2")
    a(f"s_lshr_b32 s{sT3}, s2, 6")
    a(f"s_add_u32 s{sCG}, s{sT2}, s{sT3}")
    a(f"s_lshl_b32 s{sT0}, s{sT0}, 3")
    a(f"s_and_b32 s{sT1}, s{sT1}, 7")
    a(f"s_add_u32 s{sRB2}, s{sT0}, s{sT1}")
    a(f"s_and_b32 s{sT0}, s2, 1")
    a(f"s_lshl_b32 s{sT0}, s{sT0}, 2")
    a(f"s_add_u32 s{sCB}, s{sT0}, s{sT3}")
    a(f"s_lshr_b32 s{sRH}, s{sW}, 1")
    a(f"s_and_b32 s{sCH}, s{sW}, 1")
    a(f"v_lshrrev_b32 v{t0}, 3, v{vL}")
    a(f"v_and_b32 v{t1}, 2, v{t0}")
    a(f"s_lshl_b32 s{sT0}, s{sCH}, 2")
    a(f"v_or_b32 v{t1}, s{sT0}, v{t1}")
    a(f"v_and_b32 v{t2}, 7, v{vL}")
    a(f"v_xor_b32 v{t1}, v{t1}, v{t2}")
    a(f"s_lshl_b32 s{sT0}, s{sRB}, 7")
    a(f"s_lshl_b32 s{sT1}, s{sW}, 5")
    a(f"s_add_u32 s{sT0}, s{sT0}, s{sT1}")
    a(f"v_add_u32 v{t0}, s{sT0}, v{t0}")
    a(f"v_mul_u32_u24 v{t0}, 1280, v{t0}")
    a(f"v_lshl_add_u32 v{vDX}, v{t1}, 4, v{t0}")
    for i in range(1,4):
        a(f"v_add_u32 v{vDX+i}, {9216*i}, v{vDX}")
    a(f"s_lshl_b32 s{sOX}, s{sW}, 12")
    a(f"s_mul_i32 s{sOG}, s{sW}, 3072")
    a(f"s_add_u32 s{sOU}, s{sOG}, {RU}")
    a(f"s_add_u32 s{sOG}, s{sOG}, {RG}")
    if "norot" in FLAGS:
        a(f"s_mov_b32 s{sKX}, 0")
    elif "rot8" in FLAGS:
        a(f"s_and_b32 s{sT0}, s{sRB}, 7")
        a(f"s_mul_i32 s{sT1}, s{sT0}, 11")
        a(f"s_lshr_b32 s{sT1}, s{sT1}, 3")
        a(f"s_and_b32 s{sT0}, s{sCG}, 3")
        a(f"s_mul_i32 s{sT0}, s{sT0}, 11")
        a(f"s_lshr_b32 s{sT0}, s{sT0}, 2")
        a(f"s_add_u32 s{sT0}, s{sT0}, s{sT1}")
        a(f"s_cmp_ge_u32 s{sT0}, 10")
        a(f"s_cselect_b32 s{sT1}, 10, 0")
        a(f"s_sub_u32 s{sT0}, s{sT0}, s{sT1}")
        a(f"s_lshl_b32 s{sKX}, s{sT0}, 7")
    else:
        a(f"s_and_b32 s{sT0}, s{sRB}, 7")
        a(f"s_and_b32 s{sT1}, s{sCG}, 3")
        a(f"s_add_u32 s{sT0}, s{sT0}, s{sT1}")
        a(f"s_cmp_ge_u32 s{sT0}, 5")
        a(f"s_cselect_b32 s{sT1}, 5, 0")
        a(f"s_sub_u32 s{sT0}, s{sT0}, s{sT1}")
        a(f"s_cmp_ge_u32 s{sT0}, 5")
        a(f"s_cselect_b32 s{sT1}, 5, 0")
        a(f"s_sub_u32 s{sT0}, s{sT0}, s{sT1}")
        a(f"s_lshl_b32 s{sKX}, s{sT0}, 8")
    a(f"s_mul_i32 s{sKG}, s{sKX}, 1536")
    a(f"s_mov_b32 s{sKU}, s{sKG}")
    a(f"s_mov_b32 s{sKB}, s{sKX}")
    def advk(kx, kw):
        return [[f"s_add_u32 s{kx}, s{kx}, 128"], [f"s_cmp_eq_u32 s{kx}, 1280", f"s_cselect_b32 s{kx}, 0, s{kx}"], [f"s_mul_i32 s{kw}, s{kx}, 1536"]]
    a("s_waitcnt lgkmcnt(0)")
    a(f"s_or_b32 s{sT0}, s2, s{sW}")
    a(f"s_cmp_lg_u32 s{sT0}, 0")
    a(f"s_cbranch_scc1 L_no_nonce")
    a(f"s_or_b32 s{sT0}, s{sEX}, 1")
    a(f"v_mov_b32 v{t0}, s{sT0}")
    a(f"v_mov_b32 v{t1}, 0")
    a(f"s_mov_b64 exec, 1")
    a(f"global_store_dword v{t1}, v{t0}, s[{P_DBG}:{P_DBG+1}]{SC}")
    a(f"s_mov_b64 exec, -1")
    a.label("L_no_nonce")
    if "dbgt" in FLAGS: a(f"s_mov_b32 s101, s{sEX}")
    srd(a, SX, P_X, 2621440)
    def dma(vo, S, so, off):
        o = f" offset:{off}" if off else ""
        return f"buffer_load_dwordx4 v{vo}, s[{S}:{S+3}], s{so} offen{o} lds"
    def dgrp(base_expr, items):
        g = [[f"s_add_u32 m0, {base_expr}", "s_nop 0", items[0]]]
        g += [[x] for x in items[1:]]
        return g
    def stage_x(b):  return dgrp(f"s{sOX}, {b}", [dma(vDX+i, SX, sKX, 1024*i) for i in range(4)])
    def stage_g(b):  return dgrp(f"s{sOG}, {b}", [dma(vDW+i, SG, sKG, 1024*i) for i in range(3)])
    def stage_u(b):  return dgrp(f"s{sOU}, {b}", [dma(vDW+i, SU, sKU, 1024*i) for i in range(3)])
    def stage_b(b):  return dgrp(f"s{sOB}, {b}", [dma(vDB, SB0, sKB, 0), dma(vDB+1, SB1, sKB, 1024)]) + dgrp(f"s{sOB2}, {b}", [dma(vDB+2, SB2, sKB, 0)])
    wW = [f"s_mul_i32 s{sT0}, s{sW}, 192", f"s_mul_i32 s{sT1}, s{sCG}, 192"]
    for i in range(3):
        wW += [f"v_add_u32 v{t0}, s{sT0}, v{vL}"]
        if i: wW += [f"v_add_u32 v{t0}, {64*i}, v{t0}"]
        wW += [f"v_mul_u32_u24 v{t1}, 43691, v{t0}", f"v_lshrrev_b32 v{t1}, 19, v{t1}", f"v_mul_u32_u24 v{t2}, 12, v{t1}",
               f"v_sub_u32 v{t2}, v{t0}, v{t2}", f"v_lshrrev_b32 v{t3}, 2, v{t1}", f"v_and_b32 v{t3}, 2, v{t3}",
               f"v_xor_b32 v{t2}, v{t2}, v{t3}", f"v_mul_u32_u24 v{t1}, 3072, v{t1}", f"v_lshl_add_u32 v{t1}, v{t2}, 4, v{t1}",
               f"v_add_u32 v{vDW+i}, s{sT1}, v{t1}"]
        if i: wW += [f"v_subrev_u32 v{vDW+i}, {1024*i}, v{vDW+i}"]
    wW += srd(None, SG, P_WG, 1966080) + srd(None, SU, P_WU, 1966080)
    weave(a, wW, stage_x(0), start=0)
    wB = [f"s_mul_i32 s{sT3}, s{sCG}, 40", f"s_mul_i32 s{sT2}, s{sW}, 3",
          [f"s_cmp_eq_u32 s{sW}, 3", f"s_cselect_b32 s{sT2}, 8, s{sT2}"],
          f"s_add_u32 s{sD}, s{sT2}, 2",
          [f"s_cmp_ge_u32 s{sW}, 2", f"s_cselect_b32 s{sT0}, 1, 0"],
          f"s_sub_u32 s{sD}, s{sD}, s{sT0}",
          f"s_lshl_b32 s{sOB}, s{sT2}, 10", f"s_add_u32 s{sOB}, s{sOB}, {RB}",
          f"s_lshl_b32 s{sOB2}, s{sD}, 10", f"s_add_u32 s{sOB2}, s{sOB2}, {RB}",
          f"v_lshrrev_b32 v{t3}, 4, v{vL}", f"v_lshlrev_b32 v{t3}, 1, v{t3}", f"v_and_b32 v{t4}, 7, v{vL}"]
    for i in range(3):
        wB += [f"s_mov_b32 s{sT0}, s{sT2}" if i == 0 else (f"s_add_u32 s{sT0}, s{sT2}, 1" if i == 1 else f"s_mov_b32 s{sT0}, s{sD}")]
        wB += [[f"s_cmp_ge_u32 s{sT0}, 5", f"s_cselect_b32 s{sT1}, 1, 0", f"s_cselect_b32 s{sC3}, 5, 0"],
               f"s_sub_u32 s{sT0}, s{sT0}, s{sC3}", f"s_lshl_b32 s{sT0}, s{sT0}, 3", f"s_add_u32 s{sT0}, s{sT0}, s{sT3}",
               f"v_lshrrev_b32 v{t0}, 3, v{vL}", f"v_add_u32 v{t0}, s{sT0}, v{t0}", f"v_mul_u32_u24 v{t0}, 1280, v{t0}",
               f"v_add_u32 v{t1}, s{sT1}, v{t3}", f"v_xor_b32 v{t1}, v{t1}, v{t4}", f"v_lshl_add_u32 v{t0}, v{t1}, 4, v{t0}",
               f"v_add_u32 v{vDB+i}, {4096 - (1024*i if i < 2 else 0)}, v{t0}"]
    for i, S in enumerate([SB0, SB1, SB2]):
        wB += [[f"s_cmp_ge_u32 s{sW}, {2 if i < 2 else 1}", f"s_cselect_b32 s{S}, s{P_BIM}, s{P_BRE}", f"s_cselect_b32 s{S+1}, s{P_BIM+1}, s{P_BRE+1}"],
               [f"s_sub_u32 s{S}, s{S}, 4096", f"s_subb_u32 s{S+1}, s{S+1}, 0"],
               f"s_mov_b32 s{S+2}, {819200+4096}", f"s_mov_b32 s{S+3}, 0x00020000"]
    weave(a, wB, stage_g(0) + stage_u(0), start=0)
    c1, c2 = TP, TP+1
    wC = [f"v_and_b32 v{t0}, 15, v{vL}", f"v_lshrrev_b32 v{t0}, 1, v{t0}", f"s_mul_i32 s{sT0}, s{sCG}, 40",
          f"s_lshl_b32 s{sT1}, s{sCH}, 4", f"s_add_u32 s{sT1}, s{sT1}, s{sT0}", f"v_add_u32 v{c1}, s{sT1}, v{t0}",
          f"v_lshlrev_b32 v{c1}, 1, v{c1}", f"s_add_u32 s{sT0}, s{sT0}, 32", f"v_add_u32 v{c2}, s{sT0}, v{t0}",
          f"v_lshlrev_b32 v{c2}, 1, v{c2}"]
    wC += [f"s_mul_i32 s{sT0}, s2, 52429", f"s_lshr_b32 s{sT0}, s{sT0}, 18", f"s_mul_i32 s{sT1}, s{sT0}, 5", f"s_sub_u32 s{sT1}, s2, s{sT1}",
           f"v_lshrrev_b32 v{t0}, 2, v{vL}", f"s_lshl_b32 s{sT2}, s{sT0}, 5", f"v_add_u32 v{t0}, s{sT2}, v{t0}",
           f"v_mul_u32_u24 v{t0}, 1280, v{t0}", f"v_and_b32 v{t1}, 3, v{vL}", f"v_lshl_add_u32 v{t0}, v{t1}, 4, v{t0}",
           f"s_lshl_b32 s{sT2}, s{sT1}, 8", f"v_add_u32 v{t0}, s{sT2}, v{t0}", f"s_lshl_b32 s{sT2}, s{sW}, 6",
           f"v_add_u32 v{vPWs}, s{sT2}, v{t0}", f"v_add_u32 v{vPWs+1}, {16*1280-1024}, v{vPWs}"]
    for k in range(2):
        wC += [f"s_lshl_b32 s{sT2}, s{sT1}, 3", f"s_lshl_b32 s{sT3}, s{sW}, 1", f"s_add_u32 s{sT2}, s{sT2}, s{sT3}"]
        if k: wC += [f"s_add_u32 s{sT2}, s{sT2}, 1"]
        wC += [f"s_mul_i32 s{sT3}, s{sT2}, 52429", f"s_lshr_b32 s{sT3}, s{sT3}, 18", f"s_mul_i32 s{sD}, s{sT3}, 5",
               f"s_sub_u32 s{sT2}, s{sT2}, s{sD}", f"s_mul_i32 s{sT3}, s{sT3}, 88", f"s_add_u32 s{sT3}, s{sT3}, s{sT0}",
               f"s_add_u32 s{sT3}, s{sT3}, 40", f"s_mul_i32 s{sT3}, s{sT3}, 5", f"s_add_u32 s{sT3}, s{sT3}, s{sT2}",
               f"s_lshl_b32 s{sT3}, s{sT3}, 10", f"s_add_u32 s{sT3}, s{sT3}, {WS_W2}",
               f"v_lshlrev_b32 v{vPWd+k}, 4, v{vL}", f"v_add_u32 v{vPWd+k}, s{sT3}, v{vPWd+k}"]
    wC += [f"s_lshl_b32 s{sT0}, s2, 3", f"s_lshl_b32 s{sT1}, s{sW}, 1", f"s_add_u32 s{sT0}, s{sT0}, s{sT1}",
           f"s_mul_i32 s{sT1}, s{sT0}, 52429", f"s_lshr_b32 s{sT1}, s{sT1}, 21", f"s_mul_i32 s{sT2}, s{sT1}, 40",
           f"s_sub_u32 s{sT0}, s{sT0}, s{sT2}",
           [f"s_cmp_ge_u32 s{sT0}, 20", f"s_cselect_b32 s{sC3}, 1, 0", f"s_cselect_b32 s{sT2}, 20, 0"],
           f"s_sub_u32 s{sT2}, s{sT0}, s{sT2}",
           f"v_and_b32 v{t0}, 15, v{vL}", f"s_lshl_b32 s{sT3}, s{sT1}, 4", f"v_add_u32 v{t0}, s{sT3}, v{t0}",
           f"v_mul_u32_u24 v{t0}, 1280, v{t0}", f"v_lshrrev_b32 v{t1}, 4, v{vL}", f"v_lshl_add_u32 v{t0}, v{t1}, 4, v{t0}",
           f"s_lshl_b32 s{sT2}, s{sT2}, 6", f"v_add_u32 v{vPCs}, s{sT2}, v{t0}",
           f"s_mul_i32 s{sT3}, s{sT1}, 52429", f"s_lshr_b32 s{sT3}, s{sT3}, 18", f"s_mul_i32 s{sD}, s{sT3}, 5",
           f"s_sub_u32 s{sT1}, s{sT1}, s{sD}", f"s_mul_i32 s{sT3}, s{sT3}, 88", f"s_add_u32 s{sT3}, s{sT3}, s{sT0}",
           f"s_mul_i32 s{sT3}, s{sT3}, 5", f"s_add_u32 s{sT3}, s{sT3}, s{sT1}", f"s_lshl_b32 s{sT3}, s{sT3}, 10",
           f"s_add_u32 s{sT3}, s{sT3}, {WS_W2}", f"v_lshlrev_b32 v{vPCd}, 4, v{vL}", f"v_add_u32 v{vPCd}, s{sT3}, v{vPCd}",
           f"v_add_u32 v{vPCd+1}, {5*1024}, v{vPCd}",
           f"s_lshl_b32 s{sT0}, s{sW}, 11", f"s_add_u32 s95, s{sT0}, {MISC}"]
    weave(a, wC, stage_b(0), start=0)
    stp(a, "S0 issued")
    sm = []
    for k, P in enumerate((P_LRE, P_LIM, P_LDT)):
        sm += [f"global_load_ushort v{CL+3*k}, v{c1}, s[{P}:{P+1}]", f"global_load_ushort v{CL+3*k+1}, v{c1}, s[{P}:{P+1}] offset:16",
               f"global_load_ushort v{CL+3*k+2}, v{c2}, s[{P}:{P+1}]"]
    pkl = []
    pkl += [srd(None, SM, P_WD, 1966080) + [f"s_cmp_lt_u32 s2, 240", f"s_cselect_b32 s{SM+2}, s{SM+2}, 0", "s_mov_b32 m0, s95", "s_nop 0",
           f"buffer_load_dwordx4 v{vPWs}, s[{SM}:{SM+3}], 0 offen lds"],
           [f"buffer_load_dwordx4 v{vPWs+1}, s[{SM}:{SM+3}], 0 offen offset:1024 lds"],
           [f"s_cmp_eq_u32 s{sC3}, 1", f"s_cselect_b32 s{SM}, s{P_CIM}, s{P_CRE}", f"s_cselect_b32 s{SM+1}, s{P_CIM+1}, s{P_CRE+1}",
            f"s_mov_b32 s{SM+2}, 819200", f"s_cmp_lt_u32 s2, 200", f"s_cselect_b32 s{SM+2}, s{SM+2}, 0",
            f"buffer_load_dwordx4 v[{PK}:{PK+3}], v{vPCs}, s[{SM}:{SM+3}], 0 offen"],
           [f"buffer_load_dwordx4 v[{PK+4}:{PK+7}], v{vPCs}, s[{SM}:{SM+3}], 0 offen offset:64"]]
    m, q = t0, t1
    wL = [f"v_and_b32 v{m}, 15, v{vL}", f"v_lshrrev_b32 v{q}, 4, v{vL}",
          f"v_lshrrev_b32 v{t2}, 2, v{m}", f"v_lshlrev_b32 v{t2}, 4, v{t2}", f"v_and_b32 v{t3}, 3, v{m}", f"v_add_u32 v{t2}, v{t2}, v{t3}",
          f"s_lshl_b32 s{sT0}, s{sRH}, 6", f"v_add_u32 v{t2}, s{sT0}, v{t2}", f"v_lshlrev_b32 v{t2}, 7, v{t2}",
          f"v_and_b32 v{t3}, 2, v{m}", f"v_lshrrev_b32 v{t4}, 3, v{m}", f"v_lshl_or_b32 v{t3}, v{t4}, 2, v{t3}",
          f"v_xor_b32 v{t3}, v{t3}, v{q}", f"v_lshl_add_u32 v{vX0}, v{t3}, 4, v{t2}", f"v_xor_b32 v{t3}, 4, v{t3}",
          f"v_lshl_add_u32 v{vX1}, v{t3}, 4, v{t2}",
          f"v_lshrrev_b32 v{t2}, 2, v{m}", f"v_lshl_add_u32 v{t2}, v{q}, 3, v{t2}", f"v_mul_u32_u24 v{t2}, 192, v{t2}",
          f"v_and_b32 v{t3}, 3, v{m}", f"v_lshl_add_u32 v{t2}, v{t3}, 3, v{t2}", f"v_and_b32 v{t3}, 1, v{q}",
          f"v_lshl_add_u32 v{vWa}, v{t3}, 5, v{t2}", f"v_xor_b32 v{t3}, 1, v{t3}", f"v_lshl_add_u32 v{vWb}, v{t3}, 5, v{t2}",
          [f"s_cmp_eq_u32 s{sCH}, 1", f"s_cselect_b64 vcc, -1, 0", f"v_cndmask_b32 v{vWc}, v{vWa}, v{vWb}, vcc"],
          f"v_add_u32 v{vWc}, 64, v{vWc}", f"s_lshl_b32 s{sT0}, s{sCH}, 7", f"v_add_u32 v{vWa}, s{sT0}, v{vWa}", f"v_add_u32 v{vWb}, s{sT0}, v{vWb}",
          f"v_and_b32 v{t2}, 1, v{m}", f"v_lshrrev_b32 v{t3}, 2, v{m}", f"v_lshl_add_u32 v{t3}, v{t3}, 1, v{t2}", f"v_xor_b32 v{t3}, v{t3}, v{q}",
          f"v_mul_u32_u24 v{t2}, 40, v{t2}", f"v_lshrrev_b32 v{t4}, 1, v{m}", f"v_add_u32 v{t2}, v{t2}, v{t4}", f"v_lshlrev_b32 v{t2}, 7, v{t2}",
          f"s_lshl_b32 s{sT0}, s{sCH}, 11", f"v_add_u32 v{t2}, s{sT0}, v{t2}", f"v_lshl_add_u32 v{vB0}, v{t3}, 4, v{t2}",
          f"v_xor_b32 v{t3}, 4, v{t3}", f"v_lshl_add_u32 v{vB1}, v{t3}, 4, v{t2}",
          f"s_lshl_b32 s{sT0}, s{sRH}, 2", f"v_add_u32 v{vSig}, s{sT0}, v{q}",
          f"v_and_b32 v{t2}, 1, v{vL}", f"v_cvt_f32_u32 v{t2}, v{t2}", f"v_fma_f32 v{vSgn}, v{t2}, 2.0, -1.0",
          f"v_lshrrev_b32 v{t2}, 2, v{m}", f"v_lshl_add_u32 v{t2}, v{q}, 2, v{t2}", f"v_lshlrev_b32 v{t2}, 6, v{t2}",
          f"v_and_b32 v{t3}, 3, v{m}", f"v_lshl_add_u32 v{t2}, v{t3}, 3, v{t2}", f"v_add_u32 v{vPtr}, s95, v{t2}",
          f"v_lshlrev_b32 v{vC}, 2, v{m}", f"s_lshl_b32 s{sT0}, s{sCH}, 7", f"v_add_u32 v{vAs}, s{sT0}, v{vC}",
          f"v_add_u32 v{vCm}, {MISC}, v{vC}", f"v_add_u32 v{vAe}, {MISC}, v{vAs}", f"v_lshl_add_u32 v{vAe}, v{vSig}, 8, v{vAe}",
          f"v_lshlrev_b32 v{vAe4}, 1, v{vSig}", f"v_add_u32 v{vAe4}, s{sCH}, v{vAe4}", f"v_lshl_add_u32 v{vAe4}, v{vAe4}, 6, v{vCm}",
          f"s_mul_i32 s{sT0}, s{sW}, 320", f"s_add_u32 s{sT0}, s{sT0}, {MISC}", f"v_add_u32 v{vRw}, s{sT0}, v{vAs}",
          f"v_lshlrev_b32 v{vWp}, 4, v{vL}", f"s_mul_i32 s{sT0}, s{sRB2}, {4*88*1024}", f"v_add_u32 v{vH}, s{sT0}, v{vWp}"]
    wL += [f"v_add_u32 v{vH+i}, {i*88*1024}, v{vH}" for i in range(1,4)]
    weave(a, wL, sm, start=0)
    stp(a, "small issued")
    for g_ in advk(sKX, sKG) + advk(sKB, sKU):
        for x in g_: a(x)
    wQ = []
    wQ += [f"s_mul_i32 s{sT0}, s{sCG}, {16*640}", f"s_add_u32 s{sT0}, s{sT0}, {WS_S}",
           f"v_mul_u32_u24 v{pa[0]}, 640, v{vSig}", f"v_lshl_add_u32 v{pa[0]}, v{vAs}, 1, v{pa[0]}", f"v_add_u32 v{pa[0]}, s{sT0}, v{pa[0]}",
           f"v_add_u32 v{pa[1]}, {8*640}, v{pa[0]}", f"v_lshlrev_b32 v{t0}, 1, v{vSig}", f"v_add_u32 v{t0}, s{sCH}, v{t0}",
           f"v_mul_u32_u24 v{pa[2]}, 640, v{t0}", f"v_lshl_add_u32 v{pa[2]}, v{vC}, 1, v{pa[2]}", f"v_add_u32 v{pa[2]}, s{sT0}, v{pa[2]}",
           f"v_add_u32 v{pa[2]}, {64*8}, v{pa[2]}", f"v_mov_b32 v{t4}, 0x7f000000", f"v_add_u32 v{t1}, 8, v{vSig}"]
    for (p_, src) in ((pa[0], vSig), (pa[1], t1), (pa[2], t0)):
        wQ += [[f"v_cmp_le_u32 vcc, s{sRB}, v{src}", "s_nop 1", f"v_cndmask_b32 v{p_}, v{p_}, v{t4}, vcc"]]
    S1 = stage_x(BUF) + stage_g(BUF) + stage_u(BUF) + stage_b(BUF)
    Z2 = 76
    wQ += [f"v_mov_b32 v{Z2+k}, 0" for k in range(4)] + ["s_nop 1"]
    wQ += [f"v_mfma_f32_32x32x16_bf16 v[{ACC+16*k}:{ACC+16*k+15}], v[{Z2}:{Z2+3}], v[{Z2}:{Z2+3}], 0" for k in range(8)]
    wQ += [f"v_mfma_f32_16x16x32_bf16 v[{ACC+128}:{ACC+131}], v[{Z2}:{Z2+3}], v[{Z2}:{Z2+3}], 0",
           f"v_mfma_f32_16x16x32_bf16 v[{ACC+132}:{ACC+135}], v[{Z2}:{Z2+3}], v[{Z2}:{Z2+3}], 0"]
    weave(a, wQ, S1 + pkl, start=0)
    for g_ in advk(sKX, sKG) + advk(sKB, sKU):
        for x in g_: a(x)
    a(f"s_mov_b32 s{sDB}, {2*BUF}")
    a(f"s_mov_b32 s{sCur}, 0"); a(f"s_mov_b32 s{sD}, {BUF}"); a(f"s_mov_b32 s{sC3}, 0")
    a(f"s_mov_b32 s{sStage}, 0")
    a(f"s_mov_b32 s{sBlk}, {(1<<1)|(1<<5):#x}")
    stp(a, "S1 issued")
    a("s_waitcnt vmcnt(17)")
    a("s_barrier")
    stp(a, "S0 landed")
    def cpow_s(dr, di, A, B, n, tm, sgn):
        o = []
        if n is None:
            o += [f"v_exp_f32 v{tm}, v{A}", f"v_rndne_f32 v{dr}, v{B}", f"v_sub_f32 v{tm+1}, v{B}, v{dr}"]
        else:
            o += [f"v_mul_f32 v{tm}, {n}, v{A}", f"v_mul_f32 v{tm+1}, {n}, v{B}", f"v_exp_f32 v{tm}, v{tm}",
                  f"v_rndne_f32 v{dr}, v{tm+1}", f"v_sub_f32 v{tm+1}, v{tm+1}, v{dr}"]
        o += [f"v_cos_f32 v{dr}, v{tm+1}", f"v_sin_f32 v{di}, v{tm+1}"]
        if sgn is not None:
            o += [f"v_mul_f32 v{dr}, v{tm}, v{dr}", f"v_mul_f32 v{tm}, v{sgn}, v{tm}", f"v_mul_f32 v{di}, v{tm}, v{di}"]
        else:
            o += [f"v_mul_f32 v{dr}, v{tm}, v{dr}", f"v_mul_f32 v{di}, v{tm}, v{di}"]
        return o
    def make_Wk():
        Wk = []
        vN = 71
        Wk += [f"v_cvt_f32_u32 v{vN}, v{vSig}", f"v_mov_b32 v{vN+1}, 0x42e00000", f"s_mov_b32 s{sT0}, 0xc1800000",
               f"v_fma_f32 v{vN}, v{vN}, s{sT0}, v{vN+1}", f"s_lshl_b32 s{sT0}, s{sCH}, 3", f"s_sub_u32 s{sT0}, 8, s{sT0}",
               f"v_cvt_f32_u32 v{vN+2}, s{sT0}", f"v_add_f32 v{vN+2}, v{vN+2}, v{vN}"]
        streams = []
        for T in range(3):
            tm = 80+2*T; dt = 86+T
            s_ = [f"v_lshlrev_b32 v{vLRE[T]}, 16, v{CL+T}", f"v_lshlrev_b32 v{vLIM[T]}, 16, v{CL+3+T}", f"v_lshlrev_b32 v{dt}, 16, v{CL+6+T}",
                  f"v_mul_f32 v{dt}, {LOG2E:#x}, v{dt}", f"v_exp_f32 v{dt}, v{dt}",
                  f"v_cvt_pk_bf16_f32 v{dt}, v{dt}, v{dt}", f"v_lshlrev_b32 v{dt}, 16, v{dt}",
                  f"v_mul_f32 v{vA[T]}, v{dt}, v{vLRE[T]}", f"v_mul_f32 v{vBx[T]}, v{dt}, v{vLIM[T]}",
                  f"v_mul_f32 v{vA[T]}, {LOG2E:#x}, v{vA[T]}", f"v_mul_f32 v{vBx[T]}, {INV2PI:#x}, v{vBx[T]}"]
            s_ += cpow_s(vLr[T], vLi[T], vA[T], vBx[T], None, tm, vSgn)
            s_ += cpow_s(vWSr[T], vWSi[T], vA[T], vBx[T], f"v{vN if T < 2 else vN+2}", tm, vSgn)
            streams.append(s_)
        Wk += [[x, y, z] for x, y, z in zip(*streams)]
        return Wk
    def pack_process():
        a("s_waitcnt vmcnt(7)")
        for k in range(2):
            a(f"ds_read_b64_tr_b16 v[{PK+8+4*k}:{PK+9+4*k}], v{vPtr} offset:{32*k}")
            a(f"ds_read_b64_tr_b16 v[{PK+10+4*k}:{PK+11+4*k}], v{vPtr} offset:{32*k+1024}")
        srd(a, SM, P_WS, WS_W2 + W2_SIZE)
        a(f"s_cmp_lt_u32 s2, 200"); a(f"s_cselect_b32 s{SM+2}, s{SM+2}, 0")
        a(f"buffer_store_dwordx4 v[{PK}:{PK+3}], v{vPCd}, s[{SM}:{SM+3}], 0 offen{SC}")
        a(f"buffer_store_dwordx4 v[{PK+4}:{PK+7}], v{vPCd+1}, s[{SM}:{SM+3}], 0 offen{SC}")
        a(f"v_lshlrev_b32 v{t0}, 5, v0"); a(f"v_add_u32 v{t0}, {MISC}, v{t0}")
        a("s_waitcnt lgkmcnt(0)")
        a(f"s_mov_b32 s{SM+2}, {WS_W2 + W2_SIZE}"); a(f"s_cmp_lt_u32 s2, 240"); a(f"s_cselect_b32 s{SM+2}, s{SM+2}, 0")
        a(f"buffer_store_dwordx4 v[{PK+8}:{PK+11}], v{vPWd}, s[{SM}:{SM+3}], 0 offen{SC}")
        a(f"buffer_store_dwordx4 v[{PK+12}:{PK+15}], v{vPWd+1}, s[{SM}:{SM+3}], 0 offen{SC}")
        Z = 76
        a(f"ds_write_b128 v{t0}, v[{Z}:{Z+3}]"); a(f"ds_write_b128 v{t0}, v[{Z}:{Z+3}] offset:16")
        a(f"v_mov_b32 v{t1}, 0")
        a(f"global_load_dword v{vNon}, v{t1}, s[{P_DBG}:{P_DBG+1}]{SC}")

    def dma_first(sdb):
        g = [f"s_add_u32 m0, s{sdb}, s{sOX}"] + [dma(vDX+i, SX, sKX, 1024*i) for i in range(4)]
        g += [f"s_add_u32 m0, s{sdb}, s{sOG}"] + [dma(vDW+i, SG, sKG, 1024*i) for i in range(3)]
        return g
    def dma_second(sdb):
        g = [f"s_add_u32 m0, s{sdb}, s{sOU}"] + [dma(vDW+i, SU, sKU, 1024*i) for i in range(3)]
        g += [f"s_add_u32 m0, s{sdb}, s{sOB}", dma(vDB, SB0, sKB, 0), dma(vDB+1, SB1, sKB, 1024)]
        g += [f"s_add_u32 m0, s{sdb}, s{sOB2}", dma(vDB+2, SB2, sKB, 0)]
        return g
    def reads(ch, s, setb):
        vX = vX0 if s == 0 else vX1
        vB = vB0 if s == 0 else vB1
        X = [f"ds_read_b128 a[{setb+4*i}:{setb+4*i+3}], v{vX} offset:{RX+i*512}" for i in range(4)]
        def tr(n, region, k):
            vW = (vWa, vWb, vWc)[k]
            b = setb + 16 + 4*n
            o = region + 6144*s
            return [f"ds_read_b64_tr_b16 a[{b}:{b+1}], v{vW} offset:{o}", f"ds_read_b64_tr_b16 a[{b+2}:{b+3}], v{vW} offset:{o+768}"]
        def sb(n, off):
            b = setb + 16 + 4*n
            return [f"ds_read_b128 a[{b}:{b+3}], v{vB} offset:{RB+off}"]
        W = []
        for k in range(3):
            W += tr(2*k, RG, k); W += tr(2*k+1, RU, k)
        W += sb(6, 0) + sb(7, 1024) + sb(8, 4096 - 2048*ch)
        return X[:1] + W[:2] + X[1:] + W[2:]
    def mfmas(ch, setb):
        out = []
        for n in range(6):
            for i in range(4):
                d = acc(n, i)
                out.append(f"v_mfma_f32_16x16x32_bf16 v[{d}:{d+3}], a[{setb+16+4*n}:{setb+16+4*n+3}], a[{setb+4*i}:{setb+4*i+3}], v[{d}:{d+3}]")
        for n in (6, 7):
            for i in range(4):
                d = acc(n, i)
                out.append(f"v_mfma_f32_16x16x32_bf16 v[{d}:{d+3}], a[{setb+4*i}:{setb+4*i+3}], a[{setb+16+4*n}:{setb+16+4*n+3}], v[{d}:{d+3}]")
        for k in range(2):
            i = 2*ch + k
            d = S4 + 4*k
            out.append(f"v_mfma_f32_16x16x32_bf16 v[{d}:{d+3}], a[{setb+4*i}:{setb+4*i+3}], a[{setb+16+32}:{setb+16+35}], v[{d}:{d+3}]")
        return out
    def substep(ch, setb, rd, dmas, late, seq=None):
        main = mfmas(ch, setb)
        gaps = [[] for _ in range(34)]
        for i, r in enumerate(rd): gaps[i].append(r)
        loads = [x for x in dmas if "buffer_load" in x]
        nl = len(loads)
        last = 0
        if nl:
            pos = [1 + int(i*30/nl) for i in range(nl)]
            li = 0; pend = []
            for x in dmas:
                if "buffer_load" in x:
                    p = pos[li]; pp = p - 1
                    for y in reversed(pend):
                        while len(gaps[pp]) >= 2: pp -= 1
                        assert pp >= 0
                        gaps[pp].append(y)
                    pend = []
                    while len(gaps[p]) >= 2: p += 1
                    gaps[p].append(x); last = p
                    li += 1
                else: pend.append(x)
            p = last + 1
            for y in pend:
                while len(gaps[p]) >= 2: p += 1
                gaps[p].append(y)
        g = 0
        for (e, ins) in late:
            g = max(g, e)
            while len(gaps[g]) + len(ins) > 2:
                g += 1
                assert g < 34, "late overflow"
            gaps[g].extend(ins)
        if seq is not None:
            g = 0
            while seq and g < 34:
                if len(gaps[g]) + len(seq[0]) <= 2:
                    gaps[g].extend(seq.pop(0))
                g += 1
        out = []
        for i in range(34):
            out.append(main[i]); out.extend(gaps[i])
        return out
    def gate_seq():
        gw = [GLD, GLD+1, GLD+2, GLD+3, GLD+4]
        xr = [[GLD+6, GLD+7, GLD+8, GLD+9, GLD+5], [GLD+10, GLD+11, GLD+12, GLD+13, GLD+14]]
        ga = [73, 74]; u0, u1, u2, u3 = 75, 76, 77, 78
        q_ = [[f"v_mov_b32 v{ga[0]}, 0", f"v_mov_b32 v{ga[1]}, 0"]]
        for i in range(5):
            q_.append([f"v_lshlrev_b32 v{u0}, 16, v{gw[i]}", f"v_and_b32 v{u1}, 0xffff0000, v{gw[i]}"])
            for r in range(2):
                x_ = xr[r][i]
                q_ += [[f"v_lshlrev_b32 v{u2}, 16, v{x_}", f"v_and_b32 v{u3}, 0xffff0000, v{x_}"],
                       [f"v_mul_f32 v{u2}, v{u2}, v{u0}", f"v_mul_f32 v{u3}, v{u3}, v{u1}"],
                       [f"v_cvt_pk_bf16_f32 v{u2}, v{u2}, v{u3}"],
                       [f"v_and_b32 v{u3}, 0xffff0000, v{u2}", f"v_lshlrev_b32 v{u2}, 16, v{u2}"],
                       [f"v_add_f32 v{ga[r]}, v{ga[r]}, v{u2}", f"v_add_f32 v{ga[r]}, v{ga[r]}, v{u3}"]]
        for sh, rm in (("row_shr:1","0xf"),("row_shr:2","0xf"),("row_shr:4","0xf"),("row_shr:8","0xf"),("row_bcast:15","0xa"),("row_bcast:31","0xc")):
            bc = " bound_ctrl:0" if sh.startswith("row_shr") else ""
            q_.append([f"v_add_f32_dpp v{ga[r]}, v{ga[r]}, v{ga[r]} {sh} row_mask:{rm} bank_mask:0xf{bc}" for r in range(2)])
        q_ += [[f"v_readlane_b32 s{sT1}, v{ga[0]}, 63", f"v_readlane_b32 s{sT2}, v{ga[1]}, 63"],
               [f"v_cmp_eq_u32 vcc, 0, v{vL}"],
               [f"v_mov_b32 v{u3}, s{sT1}", f"v_mov_b32 v{u2}, s{sT2}"],
               [f"v_cndmask_b32 v{u2}, v{u2}, v{u3}, vcc"], [f"v_cvt_pk_bf16_f32 v{u2}, v{u2}, v{u2}"],
               [f"v_lshlrev_b32 v{u2}, 16, v{u2}", f"v_mul_f32 v{u2}, 0xbfb8aa3b, v{u2}"],
               [f"v_exp_f32 v{u2}, v{u2}"], [f"v_add_f32 v{u2}, 1.0, v{u2}"], [f"v_rcp_f32 v{u2}, v{u2}"],
               [f"v_cvt_pk_bf16_f32 v{u2}, v{u2}, v{u2}"], [f"v_lshlrev_b32 v{vGv}, 16, v{u2}", f"s_lshl_b32 s{sT1}, s94, 2"],
               [f"s_add_u32 s{sT1}, s{sT1}, {WS_G}"], [f"v_lshl_add_u32 v{vGst}, v{vL}, 2, s{sT1}"]]
        return q_
    def wbase(g, j):
        if g < 7: return 104 + 20*g + 4*j
        if g < 11: return 20*(g-7) + 4*j
        return 80 + 4*j if j < 2 else 244 + 4*(j-2)
    SW2, SH = SX, SG
    sKW, sKW4, sKH = sKX, sKG, sKU
    def wload(g, j):
        b = wbase(g, j)
        if j < 4:
            o = f" offset:{1024*j}" if j else ""
            return f"buffer_load_dwordx4 a[{b}:{b+3}], v{vWp}, s[{SW2}:{SW2+3}], s{sKW} offen{o}{SCL}"
        return f"buffer_load_dwordx4 a[{b}:{b+3}], v{vWp}, s[{SW2}:{SW2+3}], s{sKW4} offen{SCL}"
    def wstep(g, inc=5120):
        return [wload(g, j) for j in range(5)] + [f"s_add_u32 s{sKW}, s{sKW}, {inc}", f"s_add_u32 s{sKW4}, s{sKW4}, {inc}"]

    A_, B_ = 0, 52
    a(f"s_cmp_eq_u32 s{sCH}, 1")
    a(f"s_cbranch_scc1 L_pre1")
    rot0 = lambda: [(24, [f"s_mov_b32 s{sF}, s{sCur}"]), (24, [f"s_add_u32 s{sCur}, s{sCur}, s{sD}"]),
                  (24, [f"s_add_u32 s{sC3}, s{sC3}, 1"]),
                  (24, [f"s_cmp_eq_u32 s{sC3}, 3", f"s_cselect_b32 s{sC3}, 0, s{sC3}"]),
                  (24, [f"s_cmp_eq_u32 s{sC3}, 2", f"s_cselect_b32 s{sD}, {3*BUF}, 0"]),
                  (24, [f"s_sub_u32 s{sD}, {BUF}, s{sD}"])]
    n0 = stp.n
    for ch in (0, 1):
        stp.n = n0
        a.label(f"L_pre{ch}")
        for r in reads(ch, 0, A_): a(r)
        a(f"v_add_u32 v{vX0}, {BUF}, v{vX0}")
        a(f"v_add_u32 v{vB0}, {BUF}, v{vB0}")
        d1 = dma_first(sDB)
        grp = []; cur_ = []
        for x in d1:
            cur_.append(x)
            if "m0" in x.split(",")[0]: cur_.append("s_nop 0")
            if "buffer_load" in x: grp.append(cur_); cur_ = []
        grp[-1] += cur_
        weave(a, make_Wk(), grp, start=1)
        pack_process()
        a("s_waitcnt lgkmcnt(0)")
        stp(a, "prologue")
        a(".p2align 3")
        if "mis" in FLAGS: a("s_nop 0")
        a.label(f"L_loop{ch}")
        late0 = [(2, g_) for g_ in advk(sKX, sKG)] + [(19, [f"v_add_u32 v{r}, s{sD}, v{r}"]) for r in (vWa, vWb, vWc, vX1, vB1)] + rot0()
        for x in substep(ch, A_, reads(ch, 1, B_), dma_second(sDB), late0): a(x)
        a(f"s_waitcnt vmcnt(13) lgkmcnt(0)")
        a("s_barrier")
        if LSTAMP: a("s_memtime s[38:39]")
        late1 = [(2, g_) for g_ in advk(sKB, sKU)] + [(19, [f"v_add_u32 v{r}, s{sD}, v{r}"]) for r in (vX0, vB0)]
        late1 += [(20, [f"s_mov_b32 s{sDB}, s{sF}"])]
        late1 += [(32, [f"s_bitcmp1_b32 s{sBlk}, s{sStage}", f"s_cbranch_scc1 L_blk{ch}"])]
        body = substep(ch, B_, reads(ch, 0, A_), dma_first(sF), late1)
        for x in body:
            a(x)
            if x.startswith("s_cbranch_scc1 L_blk"): a.label(f"L_blkr{ch}")
        a(f"s_add_u32 s{sStage}, s{sStage}, 1")
        a(f"s_cmp_lt_u32 s{sStage}, 7")
        a("s_waitcnt lgkmcnt(0)")
        if LSTAMP:
            a(f"v_cmp_eq_u32 vcc, s{sStage}, v{vL}"); a(f"v_mov_b32 v79, s38"); a("s_nop 0"); a(f"v_cndmask_b32 v80, v80, v79, vcc")
        a(f"s_cbranch_scc1 L_loop{ch}")
        stp(a, "loop")
        lt = [(19, [f"v_add_u32 v{r}, {BUF}, v{r}"]) for r in (vWa, vWb, vWc, vX1, vB1)]
        lt += [(24, [x]) for x in srd(None, SW2, P_WS, W2_SIZE, add=WS_W2)[:0]]
        for x in substep(ch, A_, reads(ch, 1, B_), dma_second(sDB), lt): a(x)
        a(f"s_waitcnt vmcnt(13) lgkmcnt(0)")
        a("s_barrier")
        spin_init(a)
        a.label(f"L_pf{ch}")
        a(f"v_cmp_ne_u32 vcc, s{sNonce}, v{vPF}")
        a(f"v_cmp_ne_u32 s[{sEX}:{sEX+1}], s{sNonce}, v{vPF+1}")
        a(f"s_or_b64 vcc, vcc, s[{sEX}:{sEX+1}]")
        a(f"v_cmp_ne_u32 s[{sEX}:{sEX+1}], s{sNonce}, v{vPF+2}")
        a(f"s_or_b64 vcc, vcc, s[{sEX}:{sEX+1}]")
        a(f"v_cmp_ne_u32 s[{sEX}:{sEX+1}], s{sNonce}, v{vPF+3}")
        a(f"s_or_b64 vcc, vcc, s[{sEX}:{sEX+1}]")
        a(f"s_cmp_eq_u64 vcc, 0")
        a(f"s_cbranch_scc1 L_pfok{ch}")
        spin_guard(a, f"L_pfok{ch}")
        a(f"v_lshlrev_b32 v{t0}, 4, v{vL}")
        a(f"v_add_u32 v{t0}, {WS_PF}, v{t0}")
        a(f"global_load_dwordx4 v[{vPF}:{vPF+3}], v{t0}, s[{P_WS}:{P_WS+1}]{SC}")
        a("s_waitcnt vmcnt(0)")
        a(f"s_branch L_pf{ch}")
        a.label(f"L_pfok{ch}")
        srd(a, SW2, P_WS, W2_SIZE, add=WS_W2)
        a(f"s_mul_i32 s{sKW}, s{sCB}, 88")
        a(f"s_mul_i32 s{sT0}, s{sW}, 12")
        a(f"s_add_u32 s{sKW}, s{sKW}, s{sT0}")
        a(f"s_add_u32 s{sKW}, s{sKW}, 40")
        a(f"s_mul_i32 s{sKW}, s{sKW}, 5120")
        a(f"s_add_u32 s{sKW4}, s{sKW}, 4096")
        allw = []
        for g in range(7): allw += wstep(g)
        def take(n):
            out = []; c = 0
            while allw and (c < n or "buffer_load" not in allw[0]):
                x = allw.pop(0); out.append(x)
                if "buffer_load" in x: c += 1
            return out
        lt = [(19, [f"v_add_u32 v{r}, {(-2*BUF) & 0xffffffff:#x}, v{r}"]) for r in (vX0, vB0)]
        gq = gate_seq()
        for x in substep(ch, B_, reads(ch, 0, A_), take(8), lt, gq): a(x)
        a("s_waitcnt lgkmcnt(0)")
        lt = [(19, [f"v_add_u32 v{r}, {(-2*BUF) & 0xffffffff:#x}, v{r}"]) for r in (vWa, vWb, vWc, vX1, vB1)]
        for x in substep(ch, A_, reads(ch, 1, B_), take(8), lt, gq): a(x)
        a(f"s_waitcnt vmcnt(16) lgkmcnt(0)")
        a("s_barrier")
        for x in substep(ch, B_, reads(ch, 0, A_), take(8), [], gq): a(x)
        a("s_waitcnt lgkmcnt(0)")
        for x in substep(ch, A_, reads(ch, 1, B_), take(8), [], gq): a(x)
        a("s_waitcnt lgkmcnt(0)")
        for x in substep(ch, B_, [], take(3), [], gq): a(x)
        assert not allw and not gq, (len(allw), len(gq))
        a("s_mov_b64 exec, 3")
        a(f"global_store_dword v{vGst}, v{vGv}, s[{P_WS}:{P_WS+1}]{SC}")
        a("s_mov_b64 exec, -1")
        a(f"s_branch L_epi")
        a.label(f"L_blk{ch}")
        a(f"s_cmp_eq_u32 s{sStage}, 1")
        a(f"s_cbranch_scc1 L_b0_{ch}")
        a(f"v_lshlrev_b32 v{t0}, 4, v{vL}")
        a(f"v_add_u32 v{t0}, {WS_PF}, v{t0}")
        a(f"global_load_dwordx4 v[{vPF}:{vPF+3}], v{t0}, s[{P_WS}:{P_WS+1}]{SC}")
        a(f"s_lshl_b32 s{sT1}, s{sRB}, 7")
        a(f"s_lshl_b32 s{sT2}, s{sRH}, 6")
        a(f"s_add_u32 s{sT1}, s{sT1}, s{sT2}")
        a(f"s_lshl_b32 s{sT2}, s{sCG}, 2")
        a(f"s_add_u32 s{sT1}, s{sT1}, s{sT2}")
        a(f"s_lshl_b32 s{sT2}, s{sCH}, 1")
        a(f"s_add_u32 s94, s{sT1}, s{sT2}")
        a(f"s_mul_i32 s{sT1}, s94, 1280")
        a(f"v_lshlrev_b32 v{t0}, 2, v{vL}")
        a(f"v_add_u32 v{t1}, s{sT1}, v{vWp}")
        a(f"v_add_u32 v{t2}, s{sT1}, v{t0}")
        a(f"global_load_dwordx4 v[{GLD}:{GLD+3}], v{vWp}, s[{P_GW}:{P_GW+1}]")
        a(f"global_load_dword v{GLD+4}, v{t0}, s[{P_GW}:{P_GW+1}] offset:1024")
        a(f"global_load_dwordx4 v[{GLD+6}:{GLD+9}], v{t1}, s[{P_X}:{P_X+1}]")
        a(f"global_load_dword v{GLD+5}, v{t2}, s[{P_X}:{P_X+1}] offset:1024")
        a(f"global_load_dwordx4 v[{GLD+10}:{GLD+13}], v{t1}, s[{P_X}:{P_X+1}] offset:1280")
        a(f"global_load_dword v{GLD+14}, v{t2}, s[{P_X}:{P_X+1}] offset:2304")
        a(f"s_branch L_blkr{ch}")
        a.label(f"L_b0_{ch}")
        spin_init(a)
        a.label(f"L_np{ch}")
        a(f"v_readfirstlane_b32 s{sNonce}, v{vNon}")
        a(f"s_cmp_lg_u32 s{sNonce}, 0")
        a(f"s_cbranch_scc1 L_nok{ch}")
        spin_guard(a, f"L_nok{ch}")
        a(f"v_mov_b32 v{t0}, 0")
        a(f"global_load_dword v{vNon}, v{t0}, s[{P_DBG}:{P_DBG+1}]{SC}")
        a("s_waitcnt vmcnt(0)")
        a(f"s_branch L_np{ch}")
        a.label(f"L_nok{ch}")
        a(f"s_cmp_lg_u32 s{sW}, 0")
        a(f"s_cbranch_scc1 L_blkr{ch}")
        a(f"s_lshl_b32 s{sT1}, s2, 2")
        a(f"s_add_u32 s{sT1}, s{sT1}, {WS_PF}")
        a(f"v_mov_b32 v{t0}, s{sT1}")
        a(f"v_mov_b32 v{t1}, s{sNonce}")
        a(f"s_mov_b64 exec, 1")
        a(f"global_store_dword v{t0}, v{t1}, s[{P_WS}:{P_WS+1}]{SC}")
        a(f"s_mov_b64 exec, -1")
        a(f"s_branch L_blkr{ch}")

    a.label("L_epi")
    stp(a, "tail")
    if LSTAMP:
        a(f"s_lshl_b32 s{sT0}, s2, 2")
        a(f"s_add_u32 s{sT0}, s{sT0}, s{sW}")
        a(f"s_lshl_b32 s{sT0}, s{sT0}, 8")
        a(f"s_add_u32 s{sT0}, s{sT0}, {WS_STAMP + 0x40000}")
        a(f"v_lshl_add_u32 v79, v{vL}, 2, s{sT0}")
        a(f"global_store_dword v79, v80, s[{P_WS}:{P_WS+1}]")
    XCH = BUF
    vHo, vHo2 = 81, 82
    a(f"s_lshl_b32 s{sT0}, s{sRB}, 1")
    a(f"s_add_u32 s{sT0}, s{sT0}, s{sRH}")
    a(f"s_mul_i32 s{sT0}, s{sT0}, {4*88}")
    a(f"s_mul_i32 s{sT1}, s{sCG}, 3")
    a(f"s_add_u32 s{sT0}, s{sT0}, s{sT1}")
    a(f"s_add_u32 s{sT0}, s{sT0}, 40")
    a(f"s_lshl_b32 s{sT1}, s{sCH}, 1")
    a(f"s_add_u32 s{sT1}, s{sT1}, s{sT0}")
    a(f"s_lshl_b32 s{sT1}, s{sT1}, 10")
    a(f"s_add_u32 s{sT0}, s{sT0}, 1")
    a(f"s_mul_i32 s{sT3}, s{sCH}, {2*88}")
    a(f"s_add_u32 s{sT0}, s{sT0}, s{sT3}")
    a(f"s_lshl_b32 s{sT0}, s{sT0}, 10")
    a(f"v_add_u32 v{vHo}, s{sT1}, v{vWp}")
    a(f"v_add_u32 v{vHo2}, s{sT0}, v{vWp}")
    for i in range(4):
        G0, U0, G1, U1 = [acc(n, i) for n in range(4)]
        for (G, Uu) in ((G0, U0), (G1, U1)):
            a(f"v_pk_mul_f32 v[{G}:{G+1}], v[{G}:{G+1}], v[{Uu}:{Uu+1}]")
            a(f"v_pk_mul_f32 v[{G+2}:{G+3}], v[{G+2}:{G+3}], v[{Uu+2}:{Uu+3}]")
        a(f"v_cvt_pk_bf16_f32 v{U0}, v{G0}, v{G0+1}")
        a(f"v_cvt_pk_bf16_f32 v{U0+1}, v{G0+2}, v{G0+3}")
        a(f"v_cvt_pk_bf16_f32 v{U0+2}, v{G1}, v{G1+1}")
        a(f"v_cvt_pk_bf16_f32 v{U0+3}, v{G1+2}, v{G1+3}")
        a(f"v_add_u32 v{G0}, {i*88*1024}, v{vHo}")
        a(f"global_store_dwordx4 v{G0}, v[{U0}:{U0+3}], s[{P_WS}:{P_WS+1}]{SC}")
    for i in range(4):
        G2, U2 = acc(4, i), acc(5, i)
        a(f"v_pk_mul_f32 v[{G2}:{G2+1}], v[{G2}:{G2+1}], v[{U2}:{U2+1}]")
        a(f"v_pk_mul_f32 v[{G2+2}:{G2+3}], v[{G2+2}:{G2+3}], v[{U2+2}:{U2+3}]")
    for i in range(4):
        G2, U2 = acc(4, i), acc(5, i)
        a(f"v_cvt_pk_bf16_f32 v{U2}, v{G2}, v{G2+1}")
        a(f"v_cvt_pk_bf16_f32 v{U2+1}, v{G2+2}, v{G2+3}")
    a(f"s_lshl_b32 s{sT1}, s{sW}, 10")
    a(f"v_lshlrev_b32 v{t1}, 3, v{vL}")
    a(f"v_add_u32 v{t2}, s{sT1}, v{t1}")
    a(f"s_cmp_eq_u32 s{sCH}, 1")
    a(f"s_cbranch_scc1 L_xw1")
    a(f"ds_write_b64 v{t2}, v[{acc(5,2)}:{acc(5,2)+1}] offset:{XCH}")
    a(f"ds_write_b64 v{t2}, v[{acc(5,3)}:{acc(5,3)+1}] offset:{XCH+512}")
    a(f"s_branch L_xw2")
    a.label("L_xw1")
    a(f"ds_write_b64 v{t2}, v[{acc(5,0)}:{acc(5,0)+1}] offset:{XCH}")
    a(f"ds_write_b64 v{t2}, v[{acc(5,1)}:{acc(5,1)+1}] offset:{XCH+512}")
    a.label("L_xw2")
    stp(a, "glu1")
    U = [SA, SBt, S4]; NS = [16, 16, 8]
    eA = [56, 57, 58]; eB = [59, 60, 61]
    cur = [U[T] for T in range(3)]
    for k in range(1, 16):
        Ts = [T for T in range(3) if k < NS[T]]
        dst = eA if (k & 1) else eB
        for T in Ts: a(f"v_fma_f32 v{dst[T]}, v{vLr[T]}, v{cur[T]}, v{U[T]+k}")
        for T in Ts:
            a(f"v_fmac_f32_dpp v{dst[T]}, v{cur[T]}, v{vLi[T]} {DPPSW}")
            cur[T] = dst[T]
    ew = [62, 63, 64]; ex = [65, 66, 67]
    a(f"s_mul_i32 s{sT0}, s{sW}, 320")
    a(f"s_add_u32 s{sT0}, s{sT0}, {MISC}")
    for T in range(3): a(f"v_mul_f32 v{ew[T]}, v{vWSr[T]}, v{cur[T]}")
    for T in range(3): a(f"v_fmac_f32_dpp v{ew[T]}, v{cur[T]}, v{vWSi[T]} {DPPSW}")
    a(f"v_add_u32 v{t0}, s{sT0}, v{vC}")
    a(f"ds_write_b32 v{vAe}, v{cur[0]} offset:{EF0}")
    a(f"ds_write_b32 v{vAe}, v{cur[1]} offset:{EF0+64}")
    a(f"ds_write_b32 v{vAe4}, v{cur[2]} offset:{E40}")
    def qreduce(vals, tmps):
        for v, t in zip(vals, tmps): a(f"v_mov_b32 v{t}, v{v}")
        a("s_nop 0")
        for v, t in zip(vals, tmps): a(f"v_permlane16_swap_b32 v{v}, v{t}")
        a("s_nop 0")
        for v, t in zip(vals, tmps): a(f"v_add_f32 v{v}, v{v}, v{t}")
        for v, t in zip(vals, tmps): a(f"v_mov_b32 v{t}, v{v}")
        a("s_nop 0")
        for v, t in zip(vals, tmps): a(f"v_permlane32_swap_b32 v{v}, v{t}")
        a("s_nop 0")
        for v, t in zip(vals, tmps): a(f"v_add_f32 v{v}, v{v}, v{t}")
    qreduce(ew, ex)
    a(f"ds_write_b32 v{vRw}, v{ew[0]} offset:{SWB}")
    a(f"ds_write_b32 v{vRw}, v{ew[1]} offset:{SWB+64}")
    a(f"ds_write_b32 v{t0}, v{ew[2]} offset:{SWB+256}")
    a("s_waitcnt lgkmcnt(0)")
    a("s_barrier")
    stp(a, "passA")
    a(f"s_xor_b32 s{sT1}, s{sW}, 1")
    a(f"s_lshl_b32 s{sT1}, s{sT1}, 10")
    a(f"v_lshlrev_b32 v{t1}, 3, v{vL}")
    a(f"v_add_u32 v{t2}, s{sT1}, v{t1}")
    a(f"v_add_u32 v{t4}, {88*1024}, v{vHo2}")
    a(f"s_cmp_eq_u32 s{sCH}, 1")
    a(f"s_cbranch_scc1 L_xr1")
    for k in range(2):
        a(f"ds_read_b64 v[{acc(5,k)+2}:{acc(5,k)+3}], v{t2} offset:{XCH+512*k}")
    a("s_waitcnt lgkmcnt(0)")
    a(f"global_store_dwordx4 v{vHo2}, v[{acc(5,0)}:{acc(5,0)+3}], s[{P_WS}:{P_WS+1}]{SC}")
    a(f"global_store_dwordx4 v{t4}, v[{acc(5,1)}:{acc(5,1)+3}], s[{P_WS}:{P_WS+1}]{SC}")
    a(f"s_branch L_xr2")
    a.label("L_xr1")
    for k in range(2):
        a(f"ds_read_b64 v[{acc(4,2+k)}:{acc(4,2+k)+1}], v{t2} offset:{XCH+512*k}")
        a(f"v_mov_b32 v{acc(4,2+k)+2}, v{acc(5,2+k)}")
        a(f"v_mov_b32 v{acc(4,2+k)+3}, v{acc(5,2+k)+1}")
    a("s_waitcnt lgkmcnt(0)")
    a(f"global_store_dwordx4 v{vHo2}, v[{acc(4,2)}:{acc(4,2)+3}], s[{P_WS}:{P_WS+1}]{SC}")
    a(f"global_store_dwordx4 v{t4}, v[{acc(4,3)}:{acc(4,3)+3}], s[{P_WS}:{P_WS+1}]{SC}")
    a.label("L_xr2")
    a(f"s_cmp_lg_u32 s{sW}, 0")
    a(f"s_cbranch_scc1 L_nopub")
    PB = 68
    a(f"v_lshlrev_b32 v{t0}, 3, v{vL}")
    a(f"v_add_u32 v{t0}, {MISC}, v{t0}")
    for w in range(4): a(f"ds_read_b64 v[{PB+2*w}:{PB+2*w+1}], v{t0} offset:{SWB+320*w}")
    a(f"s_lshl_b32 s{sT0}, s{sCG}, 4")
    a(f"s_add_u32 s{sT0}, s{sT0}, s{sRB}")
    a(f"s_mul_i32 s{sT0}, s{sT0}, 640")
    a(f"s_add_u32 s{sT0}, s{sT0}, {WS_S}")
    a(f"v_lshlrev_b32 v{t0}, 4, v{vL}")
    a(f"v_add_u32 v{t0}, s{sT0}, v{t0}")
    a(f"v_mov_b32 v{PB+9}, s{sNonce}")
    a(f"v_mov_b32 v{PB+11}, s{sNonce}")
    a(f"v_cmp_gt_u32 vcc, 40, v{vL}")
    a("s_waitcnt lgkmcnt(0)")
    a(f"v_pk_add_f32 v[{PB}:{PB+1}], v[{PB}:{PB+1}], v[{PB+2}:{PB+3}]")
    a(f"v_pk_add_f32 v[{PB+4}:{PB+5}], v[{PB+4}:{PB+5}], v[{PB+6}:{PB+7}]")
    a(f"v_pk_add_f32 v[{PB}:{PB+1}], v[{PB}:{PB+1}], v[{PB+4}:{PB+5}]")
    a(f"s_and_saveexec_b64 s[{sEX}:{sEX+1}], vcc")
    a(f"v_mov_b32 v{PB+8}, v{PB}")
    a(f"v_mov_b32 v{PB+10}, v{PB+1}")
    a(f"global_store_dwordx4 v{t0}, v[{PB+8}:{PB+11}], s[{P_WS}:{P_WS+1}]{SC}")
    a(f"s_mov_b64 exec, s[{sEX}:{sEX+1}]")
    a.label("L_nopub")
    stp(a, "pub")
    pre = []
    for g in range(7, 12):
        ws_ = wstep(g)
        pre += [[x] for x in ws_[:4]] + [[ws_[4], ws_[5], ws_[6]]]
    X = ACC
    vMr = [X, X+1, X+2]; vMi = [X+3, X+4, X+5]
    vC2r = [X+6, X+7, X+8]; vC2i = [X+9, X+10, X+11]
    vHr = [X+12, X+13, X+14]; vHi = [X+15, X+16, X+17]
    vW0r = [X+18, X+19, X+20]; vW0i = [X+21, X+22, X+23]
    vW1r = [X+24, X+25]; vW1i = [X+26, X+27]
    vLi2 = [X+28, X+29, X+30]
    nOff, nW0, nW1, nOff4, nW4 = X+32, X+33, X+34, X+35, X+36
    vm0, vm1, vm4 = X+37, X+38, X+39
    W = []
    W += [f"v_cvt_f32_u32 v{nOff}, v{vSig}", f"v_mul_f32 v{nOff}, 0x41800000, v{nOff}", f"s_lshl_b32 s{sT0}, s{sCH}, 3",
          f"v_cvt_f32_u32 v{nOff4}, s{sT0}", f"v_add_f32 v{nOff4}, v{nOff4}, v{nOff}",
          f"s_sub_u32 s{sT0}, s{sRB}, 1", f"v_sub_u32 v{t0}, s{sT0}, v{vSig}", f"v_subrev_u32 v{t1}, 8, v{t0}",
          f"v_sub_u32 v{t2}, v{t0}, v{vSig}", f"v_subrev_u32 v{t2}, s{sCH}, v{t2}"]
    for (n_, mreg, src) in ((nW0, vm0, t0), (nW1, vm1, t1), (nW4, vm4, t2)):
        W += [[f"v_cmp_le_i32 vcc, 0, v{src}", f"v_max_i32 v{n_}, 0, v{src}", f"v_cvt_f32_i32 v{n_}, v{n_}",
               f"v_cndmask_b32 v{mreg}, 0, 1.0, vcc"], f"v_mul_f32 v{n_}, 0x43000000, v{n_}"]
    W += [f"v_mov_b32 v{X+40}, 0x41800000", f"v_mov_b32 v{X+41}, 0x41000000"]
    streams = []
    for T in range(3):
        tm = X+44+6*T
        pr, pi, cr, ci = tm+2, tm+3, tm+4, tm+5
        s_ = cpow_s(vMr[T], vMi[T], vA[T], vBx[T], f"v{X+40 if T < 2 else X+41}", tm, vSgn)
        s_ += [f"v_mul_f32 v{pi}, v{vSgn}, v{vLi[T]}", f"v_add_f32 v{pr}, -1.0, v{vLr[T]}",
               f"v_mul_f32 v{tm}, v{vLRE[T]}, v{vLRE[T]}", f"v_fmac_f32 v{tm}, v{vLIM[T]}, v{vLIM[T]}", f"v_rcp_f32 v{tm}, v{tm}",
               f"v_mul_f32 v{cr}, v{pr}, v{vLRE[T]}", f"v_fmac_f32 v{cr}, v{pi}, v{vLIM[T]}",
               f"v_mul_f32 v{ci}, v{pi}, v{vLRE[T]}", f"v_fma_f32 v{ci}, -v{pr}, v{vLIM[T]}, v{ci}",
               f"v_add_f32 v{tm}, v{tm}, v{tm}", f"v_mul_f32 v{cr}, v{tm}, v{cr}", f"v_mul_f32 v{ci}, v{tm}, v{ci}",
               f"v_mul_f32_e64 v{vC2r[T]}, -v{vSgn}, v{cr}", f"v_sub_f32 v{vC2i[T]}, 0, v{ci}", f"v_sub_f32 v{vLi2[T]}, 0, v{vLi[T]}"]
        s_ += cpow_s(pr, pi, vA[T], vBx[T], f"v{nOff if T < 2 else nOff4}", tm, None)
        s_ += [f"v_mul_f32 v{vHr[T]}, v{cr}, v{pr}", f"v_fma_f32 v{vHr[T]}, -v{ci}, v{pi}, v{vHr[T]}",
               f"v_mul_f32 v{vHi[T]}, v{cr}, v{pi}", f"v_fmac_f32 v{vHi[T]}, v{ci}, v{pr}",
               f"v_mul_f32_e64 v{vHr[T]}, -v{vSgn}, v{vHr[T]}", f"v_sub_f32 v{vHi[T]}, 0, v{vHi[T]}"]
        s_ += cpow_s(vW0r[T], vW0i[T], vA[T], vBx[T], f"v{nW0 if T < 2 else nW4}", tm, vSgn)
        mk = vm0 if T < 2 else vm4
        s_ += [f"v_mul_f32 v{vW0r[T]}, v{mk}, v{vW0r[T]}", f"v_mul_f32 v{vW0i[T]}, v{mk}, v{vW0i[T]}"]
        if T < 2:
            s_ += cpow_s(vW1r[T], vW1i[T], vA[T], vBx[T], f"v{nW1}", tm, vSgn)
            s_ += [f"v_mul_f32 v{vW1r[T]}, v{vm1}, v{vW1r[T]}", f"v_mul_f32 v{vW1i[T]}, v{vm1}, v{vW1i[T]}"]
        streams.append(s_)
    W += rr(*streams)
    for x in W:
        if isinstance(x, str): a(x)
        else:
            for y in x: a(y)
    stp(a, "consts2")
    a("s_waitcnt vmcnt(0)")
    vFo = 18
    a(f"s_lshl_b32 s{sT0}, s{sRB}, 1")
    a(f"s_add_u32 s{sT0}, s{sT0}, s{sRH}")
    a(f"s_lshl_b32 s{sT0}, s{sT0}, 4")
    a(f"s_add_u32 s{sT0}, s{sT0}, s{sCG}")
    a(f"s_lshl_b32 s{sT0}, s{sT0}, 1")
    a(f"s_add_u32 s{sT0}, s{sT0}, s{sCH}")
    a(f"s_lshl_b32 s{sT0}, s{sT0}, 2")
    a(f"s_add_u32 s{sT0}, s{sT0}, {WS_FB}")
    a(f"v_mov_b32 v{vFo}, s{sT0}")
    a(f"v_mov_b32 v{t0}, s{sNonce}")
    a(f"s_mov_b64 exec, 1")
    a(f"global_store_dword v{vFo}, v{t0}, s[{P_WS}:{P_WS+1}]{SC}")
    a(f"s_mov_b64 exec, -1")
    stp(a, "flagB")


    Hp = [65, 66, 67]; hx = [56, 57, 58]; bad = 68
    vFl = 24
    a(f"s_lshl_b32 s{sT0}, s{sRB2}, 7")
    a(f"s_lshl_b32 s{sT1}, s{sW}, 5")
    a(f"s_add_u32 s{sT0}, s{sT0}, s{sT1}")
    a(f"v_and_b32 v{vFl}, 7, v{vL}")
    a(f"v_lshlrev_b32 v{vFl}, 2, v{vFl}")
    a(f"v_add_u32 v{vFl}, s{sT0}, v{vFl}")
    a(f"v_add_u32 v{vFl}, {WS_FB}, v{vFl}")
    srd(a, SH, P_WS, WS_G)
    srd(a, SM, P_WS, WS_S + 256*640)
    R = 70
    FBV = 80
    def poll_loads():
        a(f"buffer_load_dwordx2 v[{R}:{R+1}], v{pa[0]}, s[{SM}:{SM+3}], 0 offen{SC}")
        a(f"buffer_load_dwordx2 v[{R+2}:{R+3}], v{pa[0]}, s[{SM}:{SM+3}], 0 offen offset:128{SC}")
        a(f"buffer_load_dwordx2 v[{R+4}:{R+5}], v{pa[1]}, s[{SM}:{SM+3}], 0 offen{SC}")
        a(f"buffer_load_dwordx2 v[{R+6}:{R+7}], v{pa[1]}, s[{SM}:{SM+3}], 0 offen offset:128{SC}")
        a(f"buffer_load_dwordx2 v[{R+8}:{R+9}], v{pa[2]}, s[{SM}:{SM+3}], 0 offen{SC}")
    poll_loads()
    PE = X+64
    W = [f"v_subrev_u32 v{t0}, 256, v{vAe}"]
    for T in range(2):
        for k in range(7): W.append(f"ds_read_b32 v{PE+7*T+k}, v{t0} offset:{EF0 + 64*T - 256*k}")
    W.append(f"v_subrev_u32 v{t1}, 64, v{vAe4}")
    for k in range(15): W.append(f"ds_read_b32 v{PE+14+k}, v{t1} offset:{E40 - 64*k}")
    tu = [56, 57, 58]
    for k in range(16):
        Ts = [T for T in range(3) if k < NS[T]]
        for T in Ts: W.append(f"v_mul_f32 v{tu[T]}, v{vC2r[T]}, v{U[T]+k}")
        for T in Ts: W.append(f"v_fmac_f32_dpp v{tu[T]}, v{U[T]+k}, v{vC2i[T]} {DPPSW}")
        for T in Ts: W.append(f"v_mov_b32 v{U[T]+k}, v{tu[T]}")
    W.append("s_waitcnt lgkmcnt(0)")
    Pc = [PE+6, PE+13, PE+14+14]
    Pt = [[59, 60], [61, 62], [63, 64]]
    nch = [7, 7, 15]; base = [PE, PE+7, PE+14]
    for stepk in range(1, 15):
        Ts = [T for T in range(3) if stepk < nch[T]]
        dst = {T: Pt[T][stepk & 1] for T in Ts}
        grp = []
        for T in Ts: grp.append(f"v_fma_f32 v{dst[T]}, v{vMr[T]}, v{Pc[T]}, v{base[T] + nch[T]-1-stepk}")
        if len(Ts) == 1: grp.append("s_nop 0")
        for T in Ts:
            grp.append(f"v_fmac_f32_dpp v{dst[T]}, v{Pc[T]}, v{vMi[T]} {DPPSW}")
            Pc[T] = dst[T]
        if len(Ts) == 1: grp.append("s_nop 0")
        W += grp
    W.append("s_nop 1")
    for T in range(3): W.append(f"v_mul_f32 v{Ps[T]}, v{vC2r[T]}, v{Pc[T]}")
    for T in range(3): W.append(f"v_fmac_f32_dpp v{Ps[T]}, v{Pc[T]}, v{vC2i[T]} {DPPSW}")
    W += [f"v_mov_b32 v7, v{vAs}", f"v_mov_b32 v8, v{vCm}",
          f"v_and_b32 v{t0}, 15, v{vL}", f"v_lshrrev_b32 v{t1}, 2, v{t0}", f"v_lshlrev_b32 v{t1}, 1, v{t1}", f"v_add_u32 v{t1}, s{sCH}, v{t1}",
          f"v_mul_u32_u24 v{t1}, {HTS}, v{t1}", f"v_and_b32 v{t2}, 3, v{t0}", f"v_lshlrev_b32 v{t2}, 2, v{t2}", f"v_lshrrev_b32 v{t3}, 4, v{vL}",
          f"v_add_u32 v{t2}, v{t2}, v{t3}", f"s_lshl_b32 s{sT0}, s{sRH}, 4", f"v_add_u32 v{t2}, s{sT0}, v{t2}",
          f"v_lshl_add_u32 v{RA}, v{t2}, 3, v{t1}",
          f"s_lshl_b32 s{sT0}, s{sRB}, 1", f"s_add_u32 s{sT0}, s{sT0}, s{sRH}", f"s_lshl_b32 s{sT0}, s{sT0}, 2",
          f"v_add_u32 v{t3}, s{sT0}, v{t3}", f"v_mul_u32_u24 v{t3}, 88, v{t3}", f"s_mul_i32 s{sT0}, s{sCH}, 20",
          f"v_add_u32 v{t3}, s{sT0}, v{t3}", f"v_lshlrev_b32 v{t3}, 10, v{t3}", f"v_lshl_add_u32 v{GA}, v{t0}, 4, v{t3}"]
    sOff = [73, 74, 75, 76, 77]
    for it in range(5):
        W += [f"s_mul_i32 s{sT0}, s{sCG}, 5", f"s_add_u32 s{sT0}, s{sT0}, {it}", f"s_lshr_b32 s{sT1}, s{sT0}, 2", f"s_lshl_b32 s{sT1}, s{sT1}, 10",
              f"s_and_b32 s{sT0}, s{sT0}, 3", f"s_lshl_b32 s{sT0}, s{sT0}, 8", f"s_add_u32 s{sOff[it]}, s{sT0}, s{sT1}"]
    W += [f"s_mul_i32 s{sKH}, s{sW}, 12", f"s_add_u32 s{sKH}, s{sKH}, 40", f"s_lshl_b32 s{sKH}, s{sKH}, 10"]
    NPF = int(OPT.get('npf', 25))
    FBPOS = int(OPT.get('fbpos', 20))
    items = pre[:FBPOS] + [[f"global_load_dword v{FBV}, v{vFl}, s[{P_WS}:{P_WS+1}]{SC}"]] + pre[FBPOS:NPF]
    weave(a, W, items, start=0)
    stp(a, "prefix")
    a(f"s_waitcnt vmcnt({NPF-FBPOS})")
    spin_init(a)
    a.label("L_fbpoll")
    a(f"v_cmp_ne_u32 vcc, s{sNonce}, v{FBV}")
    a("s_nop 4")
    a("s_cbranch_vccz L_fbx")
    spin_guard(a, "L_fbx")
    a(f"global_load_dword v{FBV}, v{vFl}, s[{P_WS}:{P_WS+1}]{SC}")
    a("s_waitcnt vmcnt(0)")
    a("s_branch L_fbpoll")
    a.label("L_fbx")
    stp(a, "flagB seen")
    slots = ["a88", 100, 52, 68, 84]
    def hreg(slot, i):
        sl = slots[slot]
        if isinstance(sl, str): return f"a[{88+4*i}:{91+4*i}]"
        return f"v[{sl+4*i}:{sl+4*i+3}]"
    def hloads(g):
        return [f"buffer_load_dwordx4 {hreg(g % 5, i)}, v{vH+i}, s[{SH}:{SH+3}], s{sKH} offen{SCL}" for i in range(4)]
    early = []
    for g in range(5):
        hl = hloads(g)
        early += [[x] for x in hl[:3]] + [[hl[3], f"s_add_u32 s{sKH}, s{sKH}, 1024"]]
    for it in early[:8]:
        for x in it: a(x)
    early = early[8:]
    spin_init(a)
    a(f"s_branch L_pollc")
    a.label("L_poll")
    spin_guard(a, "L_pollx")
    poll_loads()
    a("s_waitcnt vmcnt(0)")
    a.label("L_pollc")
    a(f"v_mov_b32 v{bad}, 0")
    for (ri, mreg) in ((R+1, vm0), (R+3, vm0), (R+5, vm1), (R+7, vm1), (R+9, vm4)):
        a(f"v_cmp_ne_u32 vcc, s{sNonce}, v{ri}")
        a("s_nop 1")
        a(f"v_cndmask_b32 v{t0}, 0, v{mreg}, vcc")
        a(f"v_or_b32 v{bad}, v{bad}, v{t0}")
    a(f"v_cmp_ne_u32 vcc, 0, v{bad}")
    a("s_nop 4")
    a("s_cbranch_vccnz L_poll")
    a.label("L_pollx")
    for (T, ri) in ((0, R), (1, R+2), (2, R+8)): a(f"v_mul_f32 v{Hp[T]}, v{vW0r[T]}, v{ri}")
    for (T, ri) in ((0, R), (1, R+2), (2, R+8)): a(f"v_fmac_f32_dpp v{Hp[T]}, v{ri}, v{vW0i[T]} {DPPSW}")
    for (T, ri) in ((0, R+4), (1, R+6)): a(f"v_fmac_f32 v{Hp[T]}, v{vW1r[T]}, v{ri}")
    for (T, ri) in ((0, R+4), (1, R+6)): a(f"v_fmac_f32_dpp v{Hp[T]}, v{ri}, v{vW1i[T]} {DPPSW}")
    qreduce(Hp, hx)
    a(f"s_mul_i32 s{sT0}, s{sW}, 320")
    a(f"s_add_u32 s{sT0}, s{sT0}, {MISC}")
    a(f"v_add_u32 v{t0}, s{sT0}, v{vC}")
    a(f"ds_write_b32 v{vRw}, v{Hp[0]} offset:{RWB}")
    a(f"ds_write_b32 v{vRw}, v{Hp[1]} offset:{RWB+64}")
    a(f"ds_write_b32 v{t0}, v{Hp[2]} offset:{RWB+256}")
    stp(a, "poll")
    a("s_waitcnt lgkmcnt(0)")
    a("s_barrier")
    Hw = [X+48, X+49, X+50]
    a(f"s_mul_i32 s{sT0}, s{sCH}, 320")
    a(f"s_add_u32 s{sT0}, s{sT0}, {MISC}")
    a(f"v_add_u32 v{t0}, s{sT0}, v{vAs2}")
    hr = [X+40, X+41, X+42, X+43, X+44, X+45, X+46, X+47]
    a(f"ds_read_b32 v{hr[0]}, v{t0} offset:{RWB}")
    a(f"ds_read_b32 v{hr[1]}, v{t0} offset:{RWB+640}")
    a(f"ds_read_b32 v{hr[2]}, v{t0} offset:{RWB+64}")
    a(f"ds_read_b32 v{hr[3]}, v{t0} offset:{RWB+704}")
    for w in range(4): a(f"ds_read_b32 v{hr[4+w]}, v{vCm2} offset:{RWB+256+320*w}")
    a("s_waitcnt lgkmcnt(0)")
    W = [f"v_add_f32 v{Hw[0]}, v{hr[0]}, v{hr[1]}", f"v_add_f32 v{Hw[1]}, v{hr[2]}, v{hr[3]}", f"v_add_f32 v{hr[4]}, v{hr[4]}, v{hr[5]}",
         f"v_add_f32 v{hr[6]}, v{hr[6]}, v{hr[7]}", f"v_add_f32 v{Hw[2]}, v{hr[4]}, v{hr[6]}"]
    for T in range(3): W.append(f"v_fmac_f32 v{Ps[T]}, v{vHr[T]}, v{Hw[T]}")
    W.append("s_nop 0")
    for T in range(3): W.append(f"v_fmac_f32_dpp v{Ps[T]}, v{Hw[T]}, v{vHi[T]} {DPPSW}")
    cur = list(Ps)
    W.append("s_nop 0")
    for k in range(16):
        Ts = [T for T in range(3) if k < NS[T]]
        for T in Ts: W.append(f"v_fmac_f32 v{U[T]+k}, v{vLr[T]}, v{cur[T]}")
        for T in Ts:
            W.append(f"v_fmac_f32_dpp v{U[T]+k}, v{cur[T]}, v{vLi2[T]} {DPPSW}")
            cur[T] = U[T]+k
    for T in range(3):
        for k in range(NS[T]//2):
            W.append(f"v_cvt_pk_bf16_f32 v{X + 16*T + k}, v{U[T]+2*k}, v{U[T]+2*k+1}")
    W += [f"v_and_b32 v{t0}, 15, v{vL}", f"s_lshl_b32 s{sT0}, s{sCH}, 5", f"v_add_u32 v{t1}, s{sT0}, v{t0}",
          f"v_mul_u32_u24 v{t1}, {HTS}, v{t1}", f"v_lshl_add_u32 v{t1}, v{vSig}, 5, v{t1}",
          f"v_add_u32 v{t0}, 64, v{t0}", f"v_mul_u32_u24 v{t0}, {HTS}, v{t0}", f"v_lshl_add_u32 v{t0}, v{vSig}, 5, v{t0}",
          f"s_lshl_b32 s{sT0}, s{sCH}, 4", f"v_add_u32 v{t0}, s{sT0}, v{t0}"]
    weave(a, W, early, start=6)
    stp(a, "passB")
    a(f"ds_write_b128 v{t1}, v[{X}:{X+3}]")
    a(f"ds_write_b128 v{t1}, v[{X+4}:{X+7}] offset:16")
    a(f"ds_write_b128 v{t1}, v[{X+16}:{X+19}] offset:{16*HTS}")
    a(f"ds_write_b128 v{t1}, v[{X+20}:{X+23}] offset:{16*HTS+16}")
    a(f"ds_write_b128 v{t0}, v[{X+32}:{X+35}]")
    a("s_waitcnt lgkmcnt(0)")
    a("s_barrier")
    DT = 200
    for it in range(5):
        a(f"ds_read_b64_tr_b16 v[{DT+4*it}:{DT+4*it+1}], v{RA} offset:{it*16*HTS}")
        a(f"ds_read_b64_tr_b16 v[{DT+4*it+2}:{DT+4*it+3}], v{RA} offset:{it*16*HTS+8*HTS}")
    PACE = "pace" in FLAGS
    def hA_store(it): return f"buffer_store_dwordx4 v[{DT+4*it}:{DT+4*it+3}], v{GA}, s[{SH}:{SH+3}], s{sOff[it]} offen{SC}"
    stp(a, "hA stored")
    accB = lambda j, i: 120 + (j*4+i)*4
    def accA(j, i):
        t = j*4+i
        return 200 + 4*t if t < 14 else 26 + 4*(t-14)
    def wreg(g, j): b = wbase(g, j); return f"a[{b}:{b+3}]"
    fifo = [("h", g) for g in range(5) for _ in range(4)]
    if not PACE:
        for it in range(5):
            a(f"s_waitcnt lgkmcnt({2*(4-it)})")
            a(hA_store(it)); fifo.append(("st", it))
    def issue(x, tag):
        a(x); fifo.append(tag)
    def wait_for(pred):
        idx = [i for i, tg in enumerate(fifo) if pred(tg)]
        if not idx: return
        n = len(fifo) - 1 - max(idx)
        assert n <= 63, n
        a(f"s_waitcnt vmcnt({n})")
        del fifo[:max(idx)+1]
    sKS, sKS4 = 85, 86
    a(f"s_mul_i32 s{sKS}, s{sCB}, 88")
    a(f"s_mul_i32 s{sT0}, s{sW}, 5")
    a(f"s_add_u32 s{sKS}, s{sKS}, s{sT0}")
    a(f"s_mul_i32 s{sKS}, s{sKS}, 5120")
    a(f"s_add_u32 s{sKS4}, s{sKS}, 4096")
    wq = []
    assert NPF % 5 == 0
    for g in range(7 + NPF//5, 12):
        st_ = wstep(g)
        for j in range(5): wq.append((("wg", g), 0, st_[j], st_[5:] if j == 4 else []))
    for sidx in range(10):
        for j in range(5):
            x = wload(sidx, j).replace(f"s{sKW} offen", f"s{sKS} offen").replace(f"s{sKW4} offen", f"s{sKS4} offen")
            inc = (20-4)*5120 if sidx == 4 else 5120
            wq.append((("w", sidx), sidx, x, [f"s_add_u32 s{sKS}, s{sKS}, {inc}", f"s_add_u32 s{sKS4}, s{sKS4}, {inc}"] if j == 4 else []))
    RATE = int(OPT.get('rate', 3))
    LA, OA = 2, 7
    vG = [12, 14, 16, 22]
    vLW = 25
    XR, GR, DR = 84, 94, 52
    RS = 336; RED = 64*RS
    fill = []
    for i in range(5):
        w1, w2, w3 = t0, t1, t3
        fill += [f"v_add_u32 v{w1}, {256*i}, v0", f"v_mul_u32_u24 v{w2}, 3277, v{w1}", f"v_lshrrev_b32 v{w2}, 16, v{w2}",
                 f"v_mul_u32_u24 v{w3}, 20, v{w2}", f"v_sub_u32 v{w3}, v{w1}, v{w3}", f"v_mul_u32_u24 v{LA+i}, {RS}, v{w2}",
                 f"v_lshl_add_u32 v{LA+i}, v{w3}, 4, v{LA+i}", f"s_lshl_b32 s{sT0}, s{sRB2}, 6", f"v_add_u32 v{w2}, s{sT0}, v{w2}",
                 f"v_mul_u32_u24 v{w2}, 640, v{w2}", f"s_mul_i32 s{sT1}, s{sCB}, 80", f"v_lshl_add_u32 v{w3}, v{w3}, 2, s{sT1}",
                 f"v_add_u32 v{w2}, v{w2}, v{w3}", f"v_lshlrev_b32 v{OA+i}, 2, v{w2}"]
    fill += [f"v_and_b32 v{t0}, 15, v{vL}", f"v_lshrrev_b32 v{t1}, 2, v{t0}", f"v_lshlrev_b32 v{t1}, 4, v{t1}", f"v_and_b32 v{t0}, 3, v{t0}",
             f"v_add_u32 v{t0}, v{t0}, v{t1}", f"s_lshl_b32 s{sT0}, s{sRB2}, 6", f"v_add_u32 v{t1}, s{sT0}, v{t0}",
             f"v_lshlrev_b32 v{t1}, 2, v{t1}", f"v_add_u32 v50, {WS_G}, v{t1}",
             f"v_mul_u32_u24 v{t0}, {RS}, v{t0}", f"v_lshrrev_b32 v{t3}, 4, v{vL}", f"v_lshl_add_u32 v{t0}, v{t3}, 4, v{t0}",
             f"s_mul_i32 s{sT0}, s{sW}, {RED}", f"v_add_u32 v{vLW}, s{sT0}, v{t0}"]
    stp(a, "K2 setup")
    fill2 = []
    for i in range(5):
        fill2 += [f"v_lshrrev_b32 v{t0}, 1, v{OA+i}", (f"global_load_dwordx2 v[{XR+2*i}:{XR+2*i+1}], v{t0}, s[{P_X}:{P_X+1}]", ("f", 0))]
    fill2 += [f"s_lshl_b32 s{sT0}, s{sRB2}, 6", f"s_mul_i32 s{sT1}, s{sCB}, 160"]
    for i in range(5):
        fill2 += [f"v_mul_u32_u24 v{t1}, 49933, v{LA+i}", f"v_lshrrev_b32 v{t1}, 24, v{t1}", f"v_add_u32 v{t0}, s{sT0}, v{t1}",
                  f"v_lshlrev_b32 v{t0}, 2, v{t0}", f"v_add_u32 v{t0}, {WS_G}, v{t0}",
                  (f"global_load_dword v{GR+i}, v{t0}, s[{P_WS}:{P_WS+1}]{SC}", ("f", 0)),
                  f"v_mul_u32_u24 v{t1}, {RS}, v{t1}", f"v_sub_u32 v{t1}, v{LA+i}, v{t1}", f"v_lshrrev_b32 v{t1}, 1, v{t1}",
                  f"v_add_u32 v{t1}, s{sT1}, v{t1}", (f"global_load_dwordx2 v[{DR+2*i}:{DR+2*i+1}], v{t1}, s[{P_DSK}:{P_DSK+1}]", ("f", 0))]
    for g in range(22):
        glu = g < 12
        slot = g % 5
        wg = g if glu else g-12
        wait_for(lambda tg: tg == ("h", g) or (not glu and tg == ("w", g-12)) or (glu and tg == ("wg", g)))
        if g == 0: stp(a, "h0 landed")
        if "kstamp" in FLAGS:
            if g > 0:
                a("s_waitcnt lgkmcnt(0)"); a(f"v_writelane_b32 v23, s38, {g-1}")
            a("s_memtime s[38:39]")
        if g == 0 and PACE:
            a("s_waitcnt lgkmcnt(0)")
        if g == (6 if PACE else 3):
            wait_for(lambda tg: tg[0] == "st")
            a(f"v_add_u32 v{t0}, {WS_FA-WS_FB}, v{vFo}")
            a(f"v_mov_b32 v{t1}, s{sNonce}")
            a(f"s_mov_b64 exec, 1")
            issue(f"global_store_dword v{t0}, v{t1}, s[{P_WS}:{P_WS+1}]{SC}", ("fa", 0))
            a(f"s_mov_b64 exec, -1")
        if g == (7 if PACE else 6):
            a(f"v_add_u32 v{vFl}, {WS_FA-WS_FB}, v{vFl}")
            issue(f"global_load_dword v{t2}, v{vFl}, s[{P_WS}:{P_WS+1}]{SC}", ("fp", 0))
        if g == 15:
            a("s_barrier")
            for i in range(4): issue(f"global_load_dword v{vG[i]}, v50, s[{P_WS}:{P_WS+1}] offset:{16*i}{SC}", ("g", 0))
        mf = []
        for j in range(5):
            for i in range(4):
                d = accB(j, i) if glu else accA(j, i)
                c = "0" if g in (0, 12) else f"v[{d}:{d+3}]"
                mf.append(f"v_mfma_f32_16x16x32_bf16 v[{d}:{d+3}], {wreg(wg, j)}, {hreg(slot, i)}, {c}")
        nw = 0
        for idx, x in enumerate(mf):
            a(x)
            if idx % 4 == 1 and nw < RATE and wq and wq[0][1] < g:
                tg, e_, ins, post = wq.pop(0); issue(ins, tg); nw += 1
                for y in post: a(y)
            elif g >= 8 and fill and idx % 4 != 1: a(fill.pop(0))
            elif g >= 20 and fill2:
                for _ in range(2):
                    if fill2:
                        it_ = fill2.pop(0)
                        if isinstance(it_, str): a(it_)
                        else: issue(it_[0], it_[1])
        while nw < RATE and wq and wq[0][1] <= g:
            tg, e_, ins, post = wq.pop(0); issue(ins, tg); nw += 1
            for y in post: a(y)
        if g < 5 and PACE: issue(hA_store(g), ("st", g))
        for gn in range(22):
            la = 5 if gn < 12 else ((4 if gn < 17 else 3) if "la5" not in FLAGS else 5)
            if gn >= 5 and gn - la == g:
                if gn == 12:
                    wait_for(lambda tg: tg[0] == "fp")
                    spin_init(a)
                    a.label("L_fachk")
                    a(f"v_cmp_ne_u32 vcc, s{sNonce}, v{t2}")
                    a("s_nop 4")
                    a("s_cbranch_vccz L_faok")
                    spin_guard(a, "L_faok")
                    a(f"global_load_dword v{t2}, v{vFl}, s[{P_WS}:{P_WS+1}]{SC}")
                    a("s_waitcnt vmcnt(0)")
                    a("s_branch L_fachk")
                    a.label("L_faok")
                    a(f"s_mul_i32 s{sKH}, s{sW}, {5*1024}")
                elif gn == 17: a(f"s_add_u32 s{sKH}, s{sKH}, {15*1024}")
                for x in hloads(gn): issue(x, ("h", gn))
                a(f"s_add_u32 s{sKH}, s{sKH}, 1024")
    assert not fill and not wq and not fill2, (len(fill), len(wq), len(fill2))
    if "kstamp" in FLAGS:
        a("s_waitcnt lgkmcnt(0)"); a(f"v_writelane_b32 v23, s38, 21")
        a("s_memtime s[38:39]"); a("s_waitcnt lgkmcnt(0)"); a(f"v_writelane_b32 v23, s38, 22")
        a(f"s_lshl_b32 s{sT0}, s2, 2"); a(f"s_add_u32 s{sT0}, s{sT0}, s{sW}"); a(f"s_lshl_b32 s{sT0}, s{sT0}, 8")
        a(f"s_add_u32 s{sT0}, s{sT0}, {WS_STAMP + 0x80000}")
        a(f"v_lshl_add_u32 v{t0}, v{vL}, 2, s{sT0}")
        a(f"global_store_dword v{t0}, v23, s[{P_WS}:{P_WS+1}]")
    stp(a, "K2 loop")
    wait_for(lambda tg: tg[0] == "g")
    for j in range(5):
        for i in range(4):
            A_r, B_r = accA(j, i), accB(j, i)
            for h in (0, 2):
                a(f"v_pk_add_f32 v[{A_r+h}:{A_r+h+1}], v[{A_r+h}:{A_r+h+1}], v[{B_r+h}:{B_r+h+1}] neg_lo:[0,1] neg_hi:[0,1]")
            for h in (0, 2):
                a(f"v_pk_fma_f32 v[{B_r+h}:{B_r+h+1}], v[{vG[i]}:{vG[i]+1}], v[{A_r+h}:{A_r+h+1}], v[{B_r+h}:{B_r+h+1}] op_sel_hi:[0,1,1]")
            a(f"ds_write_b128 v{vLW}, v[{B_r}:{B_r+3}] offset:{i*4*RS + 64*j}")
    a("s_waitcnt lgkmcnt(0)")
    a("s_barrier")
    stp(a, "red written")
    for i in range(5):
        b = 120 + 16*i
        for w in range(4):
            a(f"ds_read_b128 v[{b+4*w}:{b+4*w+3}], v{LA+i} offset:{w*RED}")
    a("s_waitcnt vmcnt(0)")
    for i in range(5):
        b = 120 + 16*i
        a(f"s_waitcnt lgkmcnt({min(15,4*(4-i))})")
        a(f"v_pk_add_f32 v[{b}:{b+1}], v[{b}:{b+1}], v[{b+4}:{b+5}]")
        a(f"v_pk_add_f32 v[{b+2}:{b+3}], v[{b+2}:{b+3}], v[{b+6}:{b+7}]")
        a(f"v_pk_add_f32 v[{b+8}:{b+9}], v[{b+8}:{b+9}], v[{b+12}:{b+13}]")
        a(f"v_pk_add_f32 v[{b+10}:{b+11}], v[{b+10}:{b+11}], v[{b+14}:{b+15}]")
        a(f"v_pk_add_f32 v[{b}:{b+1}], v[{b}:{b+1}], v[{b+8}:{b+9}]")
        a(f"v_pk_add_f32 v[{b+2}:{b+3}], v[{b+2}:{b+3}], v[{b+10}:{b+11}]")
        x0, d0_ = XR+2*i, DR+2*i
        for h in range(2):
            a(f"v_lshlrev_b32 v{t1}, 16, v{x0+h}")
            a(f"v_and_b32 v{t2}, 0xffff0000, v{x0+h}")
            a(f"v_lshlrev_b32 v{t3}, 16, v{d0_+h}")
            a(f"v_and_b32 v{t4}, 0xffff0000, v{d0_+h}")
            a(f"v_mul_f32 v{t1}, v{t1}, v{t3}")
            a(f"v_mul_f32 v{t2}, v{t2}, v{t4}")
            a(f"v_fmac_f32 v{b+2*h}, v{GR+i}, v{t1}")
            a(f"v_fmac_f32 v{b+2*h+1}, v{GR+i}, v{t2}")
        a(f"global_store_dwordx4 v{OA+i}, v[{b}:{b+3}], s[{P_OUT}:{P_OUT+1}]" + ("" if "outplain" in FLAGS else " nt"))
    stp(a, "out stored")
    if LSTAMP:
        pass
    if "dbgt" in FLAGS:
        a("s_waitcnt vmcnt(0)")
        a("s_memrealtime s[40:41]"); a("s_memtime s[42:43]")
        a("s_waitcnt lgkmcnt(0)")
        a(f"s_cmp_lg_u32 s{sW}, 0")
        a("s_cbranch_scc1 L_end")
        a("s_not_b32 s44, s101")
        a("v_mov_b32 v2, 0"); a("v_mov_b32 v3, s44"); a("v_mov_b32 v4, s40")
        a("s_mov_b64 exec, 1")
        a(f"global_atomic_umax v2, v3, s[{P_DBG}:{P_DBG+1}] offset:16 sc1")
        a(f"global_atomic_umax v2, v4, s[{P_DBG}:{P_DBG+1}] offset:20 sc1")
        a("s_cmp_lg_u32 s2, 0")
        a("s_cbranch_scc1 L_end")
        a("s_sub_u32 s42, s42, s96"); a("s_sub_u32 s40, s40, s101")
        a("v_mov_b32 v3, s42"); a("v_mov_b32 v4, s40")
        a(f"global_store_dword v2, v3, s[{P_DBG}:{P_DBG+1}] offset:24")
        a(f"global_store_dword v2, v4, s[{P_DBG}:{P_DBG+1}] offset:28")
    stp.dump(a, sW, sT0, P_WS, WS_STAMP)
    a.label("L_end")
    a("s_endpgm")
    a.label("L_codeend")
    return a.text()

HEADER = open("gated_mix__ssm_conv_s5__glu_gated_bilinear__prompt.s.ref").read().split("; Override launch")[0]
def main():
    out = HEADER
    out += "; Override launch geometry by editing the next line. Harness parses it; keep it on one line.\n"
    out += "; @launch grid=(256,1,1) block=(256,1,1) lds=163840\n"
    out += '.amdgcn_target "amdgcn-amd-amdhsa--gfx950"\n.text\n'
    out += f".globl {KNAME}\n.p2align 8\n.type {KNAME},@function\n" + gen()
    out += f""".section .rodata,"a"
.p2align 6
.amdhsa_kernel {KNAME}
  .amdhsa_next_free_vgpr 512
  .amdhsa_next_free_sgpr 102
  .amdhsa_accum_offset 256
  .amdhsa_group_segment_fixed_size 0
  .amdhsa_kernarg_size 136
  .amdhsa_user_sgpr_count 2
  .amdhsa_user_sgpr_kernarg_segment_ptr 1
  .amdhsa_system_sgpr_workgroup_id_x 1
  .amdhsa_float_denorm_mode_32 3
.end_amdhsa_kernel
"""
    path = [x for x in sys.argv[1:] if not x.startswith("--")][0]
    open(path, "w").write(out)
    json.dump([[d[i] for i in sorted(d)] for d in NAMES], open(path + ".names", "w"))
main()
```

```python
import sys, json
from asmlib import *

FLAGS = set(x[2:] for x in sys.argv[1:] if x.startswith("--"))
OPT = dict(x.split("=") for x in FLAGS if "=" in x)
STAMP = "stamp" in FLAGS
NAMES = []
KNAME = "gated_mix__ssm_conv_s5__glu_gated_bilinear__prompt_kernel"

WS_H   = 0
WS_G   = 0xB00000
WS_S   = 0xB10000
WS_FB  = 0xB40000
WS_FA  = 0xB42000
WS_PF  = 0xB44000
WS_W2  = 0xC00000
W2_SIZE = 8*88*5*1024
WS_STAMP = 0x1000000
LOG2E = 0x3fb8aa3b
INV2PI = 0x3e22f983
SC = "" if "nosc" in FLAGS else " sc1"
SCL = "" if ("nosc" in FLAGS or "noscl" in FLAGS) else " sc1"
LSTAMP = "lstamp" in FLAGS

def srd(a, d, base, size, add=0):
    o = []
    if add == 0:
        o += [f"s_mov_b32 s{d}, s{base}", f"s_mov_b32 s{d+1}, s{base+1}"]
    elif add > 0:
        o += [f"s_add_u32 s{d}, s{base}, {add}", f"s_addc_u32 s{d+1}, s{base+1}, 0"]
    else:
        o += [f"s_sub_u32 s{d}, s{base}, {-add}", f"s_subb_u32 s{d+1}, s{base+1}, 0"]
    o += [f"s_mov_b32 s{d+2}, {size}", f"s_mov_b32 s{d+3}, 0x00020000"]
    if a is None: return o
    for x in o: a(x)

class Stamper:
    def __init__(self, store):
        self.store = store; self.n = 0; self.tmp = [98, 100]; self.names = {}
        NAMES.append(self.names)
    def __call__(self, a, name=""):
        if not STAMP: return
        if self.n > 0:
            a(f"s_mov_b32 s{self.store[self.n-1]}, s{self.tmp[(self.n-1)&1]}")
        assert self.n < len(self.store), "too many stamps"
        a(f"s_memtime s[{self.tmp[self.n&1]}:{self.tmp[self.n&1]+1}]")
        self.names[self.n] = name
        self.n += 1
    def dump(self, a, sW, sT0, P_WS, base):
        if not STAMP: return
        a("s_waitcnt vmcnt(0) lgkmcnt(0)")
        self(a, "end")
        a("s_waitcnt lgkmcnt(0)")
        a(f"s_mov_b32 s{self.store[self.n-1]}, s{self.tmp[(self.n-1)&1]}")
        a(f"s_lshl_b32 s{sT0}, s2, 2")
        a(f"s_add_u32 s{sT0}, s{sT0}, s{sW}")
        a(f"s_lshl_b32 s{sT0}, s{sT0}, 7")
        a(f"s_add_u32 s{sT0}, s{sT0}, {base}")
        a(f"v_mov_b32 v2, s{sT0}")
        if "dbgstamp" in FLAGS:
            keep = [i for i in range(1, self.n) if self.names[i] not in ("small issued", "glu1", "pub", "flagB", "flagB seen", "out stored")][:15]
            a("s_cmp_lg_u32 s2, 101")
            a("s_cbranch_scc1 L_end")
            a(f"s_cmp_lg_u32 s{sW}, 0")
            a("s_cbranch_scc1 L_end")
            a("v_mov_b32 v2, 0")
            for k, i in enumerate(keep):
                a(f"s_sub_u32 s40, s{self.store[i]}, s{self.store[0]}")
                a("v_mov_b32 v3, s40")
                a(f"global_store_dword v2, v3, s[34:35] offset:{4*(k+1)}")
            print("debug stamps:", [self.names[i] for i in keep])
            return
        for i in range(self.n):
            a(f"v_mov_b32 v3, s{self.store[i]}")
            a(f"global_store_dword v2, v3, s[{P_WS}:{P_WS+1}] offset:{4*i}")

def rr(*streams):
    out = []
    n = max(len(s) for s in streams)
    for i in range(n):
        for s in streams:
            if i < len(s): out.append(s[i])
    return out

def weave(a, work, mem, start=0, every=None):
    n = len(work); m = len(mem)
    if m == 0: pos = []
    elif every is None: pos = [start + int((n - start) * i / m) for i in range(m)]
    else: pos = [start + every*i for i in range(m)]
    mi = 0
    def emit(it):
        if isinstance(it, str): a(it)
        else:
            for x in it: a(x)
    for i, w in enumerate(work):
        while mi < m and pos[mi] <= i:
            emit(mem[mi]); mi += 1
        emit(w)
    while mi < m:
        emit(mem[mi]); mi += 1

SPIN_MAX = 100000
def spin_init(a): a("s_mov_b32 s95, 0")
def spin_guard(a, out_label):
    a("s_add_u32 s95, s95, 1")
    a(f"s_cmp_gt_u32 s95, {SPIN_MAX}")
    a(f"s_cbranch_scc1 {out_label}")

DPPSW = "quad_perm:[1,0,3,2] row_mask:0xf bank_mask:0xf"
P_X, P_LRE, P_LIM, P_BRE, P_BIM, P_CRE, P_CIM, P_LDT = 4,6,8,10,12,14,16,18
P_DSK, P_BX, P_WG, P_WU = 20,22,24,26
P_WD, P_GW, P_OUT, P_DBG = 28,30,32,34
P_WS = 36

def gen():
    a = Asm()
    stp = Stamper([96,97,22,23,6,7,8,9,18,19,10,11,12,13,24,25,26,27,82,83,84,40,41,42,43,73,74])
    SX, SG, SU, SB0, SB1, SB2, SM = 40,44,48,52,56,60,64
    sEX = 38
    sW, sRH, sCH, sRB, sCG = 68,69,70,71,72
    sDB, sCur, sD, sC3, sStage = 73,74,75,76,77
    sKX, sKG, sKU, sKB = 78,79,80,81
    sOX, sOG, sOU, sOB, sOB2 = 82,83,84,85,86
    sT0, sT1, sT2 = 87,88,89
    sF = 87
    sBlk, sRB2, sCB = 90, 91, 92
    sT3 = 93
    sNonce = 3
    vL = 1
    vDX, vDW, vDB = 2, 6, 9
    vX0, vX1, vWa, vWb, vWc, vB0, vB1 = 12,13,14,15,16,17,18
    t0, t1, t2, t3, t4 = 19,20,21,22,23
    vA  = [24,25,26]; vBx = [27,28,29]; vLRE = [30,31,32]; vLIM = [33,34,35]
    vLr = [36,37,38]; vLi = [39,40,41]; vWSr = [42,43,44]; vWSi = [45,46,47]
    vSgn, vNon, vSig, vWp = 48, 49, 50, 51
    vPF = 52
    SCR = 52
    vC, vAe, vAe4, vRw = 90, 91, 92, 93
    pa = [94, 95, 96]
    GLD = 56
    vGst, vGv = 71, 72
    RA, GA = 2, 3
    Ps = [4, 5, 6]
    vAs, vCm = 97, 98
    vAs2, vCm2 = 7, 8
    vH = 116
    ACC = 120
    BUF = 51200
    RX, RG, RU, RB = 0, 16384, 28672, 40960
    MISC = 3*BUF
    SWB, EF, E4, RWB = 0, 1280, 5120, 7104
    EF0 = EF + 7*256; E40 = E4 + 15*64
    HTS = 272
    def acc(n, i): return ACC + n*16 + 4*i
    SA, SBt, S4 = ACC+96, ACC+112, ACC+128
    CL = 52
    PK = 100
    vPWs, vPCs, vPWd, vPCd, vPtr = 61, 63, 64, 66, 68
    TP = 69

    a.label(KNAME)
    a(f"s_cmp_ge_u32 s2, 256")
    a(f"s_cbranch_scc1 L_end")
    if "nocodepf" not in FLAGS:
        a("s_getpc_b64 s[40:41]")
        a.label("L_pc")
        a("v_lshlrev_b32 v2, 2, v0")
        a("s_lshr_b32 s42, s2, 3")
        a("s_lshl_b32 s42, s42, 10")
        a("v_add_u32 v2, s42, v2")
        a("v_min_u32 v2, L_codeend-L_pc-4, v2")
        a("v_mov_b32 v3, s41")
        a("v_add_co_u32 v2, vcc, s40, v2")
        a("v_addc_co_u32 v3, vcc, 0, v3, vcc")
        a("global_load_dword v99, v[2:3], off")
    a(f"s_load_dwordx16 s[4:19], s[0:1], 0")
    a(f"s_load_dwordx8 s[20:27], s[0:1], 64")
    a(f"s_load_dwordx8 s[28:35], s[0:1], 96")
    a(f"s_load_dwordx2 s[36:37], s[0:1], 128")
    a(f"s_memrealtime s[{sEX}:{sEX+1}]")
    if "dbgt" in FLAGS: a("s_memtime s[96:97]")
    stp(a, "s0")
    a(f"v_lshrrev_b32 v{t0}, 6, v0")
    a(f"v_and_b32 v{vL}, 63, v0")
    a(f"s_and_b32 s{sT0}, s2, 1")
    a(f"v_readfirstlane_b32 s{sW}, v{t0}")
    a(f"s_lshl_b32 s{sT0}, s{sT0}, 3")
    a(f"s_lshr_b32 s{sT1}, s2, 3")
    a(f"s_and_b32 s{sRB}, s{sT1}, 7")
    a(f"s_add_u32 s{sRB}, s{sRB}, s{sT0}")
    a(f"s_lshr_b32 s{sT0}, s2, 1")
    a(f"s_and_b32 s{sT0}, s{sT0}, 3")
    a(f"s_lshl_b32 s{sT2}, s{sT0}, 2")
    a(f"s_lshr_b32 s{sT3}, s2, 6")
    a(f"s_add_u32 s{sCG}, s{sT2}, s{sT3}")
    a(f"s_lshl_b32 s{sT0}, s{sT0}, 3")
    a(f"s_and_b32 s{sT1}, s{sT1}, 7")
    a(f"s_add_u32 s{sRB2}, s{sT0}, s{sT1}")
    a(f"s_and_b32 s{sT0}, s2, 1")
    a(f"s_lshl_b32 s{sT0}, s{sT0}, 2")
    a(f"s_add_u32 s{sCB}, s{sT0}, s{sT3}")
    a(f"s_lshr_b32 s{sRH}, s{sW}, 1")
    a(f"s_and_b32 s{sCH}, s{sW}, 1")
    a(f"v_lshrrev_b32 v{t0}, 3, v{vL}")
    a(f"v_and_b32 v{t1}, 2, v{t0}")
    a(f"s_lshl_b32 s{sT0}, s{sCH}, 2")
    a(f"v_or_b32 v{t1}, s{sT0}, v{t1}")
    a(f"v_and_b32 v{t2}, 7, v{vL}")
    a(f"v_xor_b32 v{t1}, v{t1}, v{t2}")
    a(f"s_lshl_b32 s{sT0}, s{sRB}, 7")
    a(f"s_lshl_b32 s{sT1}, s{sW}, 5")
    a(f"s_add_u32 s{sT0}, s{sT0}, s{sT1}")
    a(f"v_add_u32 v{t0}, s{sT0}, v{t0}")
    a(f"v_mul_u32_u24 v{t0}, 1280, v{t0}")
    a(f"v_lshl_add_u32 v{vDX}, v{t1}, 4, v{t0}")
    for i in range(1,4):
        a(f"v_add_u32 v{vDX+i}, {9216*i}, v{vDX}")
    a(f"s_lshl_b32 s{sOX}, s{sW}, 12")
    a(f"s_mul_i32 s{sOG}, s{sW}, 3072")
    a(f"s_add_u32 s{sOU}, s{sOG}, {RU}")
    a(f"s_add_u32 s{sOG}, s{sOG}, {RG}")
    if "norot" in FLAGS:
        a(f"s_mov_b32 s{sKX}, 0")
    elif "rot8" in FLAGS:
        a(f"s_and_b32 s{sT0}, s{sRB}, 7")
        a(f"s_mul_i32 s{sT1}, s{sT0}, 11")
        a(f"s_lshr_b32 s{sT1}, s{sT1}, 3")
        a(f"s_and_b32 s{sT0}, s{sCG}, 3")
        a(f"s_mul_i32 s{sT0}, s{sT0}, 11")
        a(f"s_lshr_b32 s{sT0}, s{sT0}, 2")
        a(f"s_add_u32 s{sT0}, s{sT0}, s{sT1}")
        a(f"s_cmp_ge_u32 s{sT0}, 10")
        a(f"s_cselect_b32 s{sT1}, 10, 0")
        a(f"s_sub_u32 s{sT0}, s{sT0}, s{sT1}")
        a(f"s_lshl_b32 s{sKX}, s{sT0}, 7")
    else:
        a(f"s_and_b32 s{sT0}, s{sRB}, 7")
        a(f"s_and_b32 s{sT1}, s{sCG}, 3")
        a(f"s_add_u32 s{sT0}, s{sT0}, s{sT1}")
        a(f"s_cmp_ge_u32 s{sT0}, 5")
        a(f"s_cselect_b32 s{sT1}, 5, 0")
        a(f"s_sub_u32 s{sT0}, s{sT0}, s{sT1}")
        a(f"s_cmp_ge_u32 s{sT0}, 5")
        a(f"s_cselect_b32 s{sT1}, 5, 0")
        a(f"s_sub_u32 s{sT0}, s{sT0}, s{sT1}")
        a(f"s_lshl_b32 s{sKX}, s{sT0}, 8")
    a(f"s_mul_i32 s{sKG}, s{sKX}, 1536")
    a(f"s_mov_b32 s{sKU}, s{sKG}")
    a(f"s_mov_b32 s{sKB}, s{sKX}")
    def advk(kx, kw):
        return [[f"s_add_u32 s{kx}, s{kx}, 128"], [f"s_cmp_eq_u32 s{kx}, 1280", f"s_cselect_b32 s{kx}, 0, s{kx}"], [f"s_mul_i32 s{kw}, s{kx}, 1536"]]
    a("s_waitcnt lgkmcnt(0)")
    a(f"s_or_b32 s{sT0}, s2, s{sW}")
    a(f"s_cmp_lg_u32 s{sT0}, 0")
    a(f"s_cbranch_scc1 L_no_nonce")
    a(f"s_or_b32 s{sT0}, s{sEX}, 1")
    a(f"v_mov_b32 v{t0}, s{sT0}")
    a(f"v_mov_b32 v{t1}, 0")
    a(f"s_mov_b64 exec, 1")
    a(f"global_store_dword v{t1}, v{t0}, s[{P_DBG}:{P_DBG+1}]{SC}")
    a(f"s_mov_b64 exec, -1")
    a.label("L_no_nonce")
    if "dbgt" in FLAGS: a(f"s_mov_b32 s101, s{sEX}")
    srd(a, SX, P_X, 2621440)
    def dma(vo, S, so, off):
        o = f" offset:{off}" if off else ""
        return f"buffer_load_dwordx4 v{vo}, s[{S}:{S+3}], s{so} offen{o} lds"
    def dgrp(base_expr, items):
        g = [[f"s_add_u32 m0, {base_expr}", "s_nop 0", items[0]]]
        g += [[x] for x in items[1:]]
        return g
    def stage_x(b):  return dgrp(f"s{sOX}, {b}", [dma(vDX+i, SX, sKX, 1024*i) for i in range(4)])
    def stage_g(b):  return dgrp(f"s{sOG}, {b}", [dma(vDW+i, SG, sKG, 1024*i) for i in range(3)])
    def stage_u(b):  return dgrp(f"s{sOU}, {b}", [dma(vDW+i, SU, sKU, 1024*i) for i in range(3)])
    def stage_b(b):  return dgrp(f"s{sOB}, {b}", [dma(vDB, SB0, sKB, 0), dma(vDB+1, SB1, sKB, 1024)]) + dgrp(f"s{sOB2}, {b}", [dma(vDB+2, SB2, sKB, 0)])
    wW = [f"s_mul_i32 s{sT0}, s{sW}, 192", f"s_mul_i32 s{sT1}, s{sCG}, 192"]
    for i in range(3):
        wW += [f"v_add_u32 v{t0}, s{sT0}, v{vL}"]
        if i: wW += [f"v_add_u32 v{t0}, {64*i}, v{t0}"]
        wW += [f"v_mul_u32_u24 v{t1}, 43691, v{t0}", f"v_lshrrev_b32 v{t1}, 19, v{t1}", f"v_mul_u32_u24 v{t2}, 12, v{t1}",
               f"v_sub_u32 v{t2}, v{t0}, v{t2}", f"v_lshrrev_b32 v{t3}, 2, v{t1}", f"v_and_b32 v{t3}, 2, v{t3}",
               f"v_xor_b32 v{t2}, v{t2}, v{t3}", f"v_mul_u32_u24 v{t1}, 3072, v{t1}", f"v_lshl_add_u32 v{t1}, v{t2}, 4, v{t1}",
               f"v_add_u32 v{vDW+i}, s{sT1}, v{t1}"]
        if i: wW += [f"v_subrev_u32 v{vDW+i}, {1024*i}, v{vDW+i}"]
    wW += srd(None, SG, P_WG, 1966080) + srd(None, SU, P_WU, 1966080)
    weave(a, wW, stage_x(0), start=0)
    wB = [f"s_mul_i32 s{sT3}, s{sCG}, 40", f"s_mul_i32 s{sT2}, s{sW}, 3",
          [f"s_cmp_eq_u32 s{sW}, 3", f"s_cselect_b32 s{sT2}, 8, s{sT2}"],
          f"s_add_u32 s{sD}, s{sT2}, 2",
          [f"s_cmp_ge_u32 s{sW}, 2", f"s_cselect_b32 s{sT0}, 1, 0"],
          f"s_sub_u32 s{sD}, s{sD}, s{sT0}",
          f"s_lshl_b32 s{sOB}, s{sT2}, 10", f"s_add_u32 s{sOB}, s{sOB}, {RB}",
          f"s_lshl_b32 s{sOB2}, s{sD}, 10", f"s_add_u32 s{sOB2}, s{sOB2}, {RB}",
          f"v_lshrrev_b32 v{t3}, 4, v{vL}", f"v_lshlrev_b32 v{t3}, 1, v{t3}", f"v_and_b32 v{t4}, 7, v{vL}"]
    for i in range(3):
        wB += [f"s_mov_b32 s{sT0}, s{sT2}" if i == 0 else (f"s_add_u32 s{sT0}, s{sT2}, 1" if i == 1 else f"s_mov_b32 s{sT0}, s{sD}")]
        wB += [[f"s_cmp_ge_u32 s{sT0}, 5", f"s_cselect_b32 s{sT1}, 1, 0", f"s_cselect_b32 s{sC3}, 5, 0"],
               f"s_sub_u32 s{sT0}, s{sT0}, s{sC3}", f"s_lshl_b32 s{sT0}, s{sT0}, 3", f"s_add_u32 s{sT0}, s{sT0}, s{sT3}",
               f"v_lshrrev_b32 v{t0}, 3, v{vL}", f"v_add_u32 v{t0}, s{sT0}, v{t0}", f"v_mul_u32_u24 v{t0}, 1280, v{t0}",
               f"v_add_u32 v{t1}, s{sT1}, v{t3}", f"v_xor_b32 v{t1}, v{t1}, v{t4}", f"v_lshl_add_u32 v{t0}, v{t1}, 4, v{t0}",
               f"v_add_u32 v{vDB+i}, {4096 - (1024*i if i < 2 else 0)}, v{t0}"]
    for i, S in enumerate([SB0, SB1, SB2]):
        wB += [[f"s_cmp_ge_u32 s{sW}, {2 if i < 2 else 1}", f"s_cselect_b32 s{S}, s{P_BIM}, s{P_BRE}", f"s_cselect_b32 s{S+1}, s{P_BIM+1}, s{P_BRE+1}"],
               [f"s_sub_u32 s{S}, s{S}, 4096", f"s_subb_u32 s{S+1}, s{S+1}, 0"],
               f"s_mov_b32 s{S+2}, {819200+4096}", f"s_mov_b32 s{S+3}, 0x00020000"]
    weave(a, wB, stage_g(0) + stage_u(0), start=0)
    c1, c2 = TP, TP+1
    wC = [f"v_and_b32 v{t0}, 15, v{vL}", f"v_lshrrev_b32 v{t0}, 1, v{t0}", f"s_mul_i32 s{sT0}, s{sCG}, 40",
          f"s_lshl_b32 s{sT1}, s{sCH}, 4", f"s_add_u32 s{sT1}, s{sT1}, s{sT0}", f"v_add_u32 v{c1}, s{sT1}, v{t0}",
          f"v_lshlrev_b32 v{c1}, 1, v{c1}", f"s_add_u32 s{sT0}, s{sT0}, 32", f"v_add_u32 v{c2}, s{sT0}, v{t0}",
          f"v_lshlrev_b32 v{c2}, 1, v{c2}"]
    wC += [f"s_mul_i32 s{sT0}, s2, 52429", f"s_lshr_b32 s{sT0}, s{sT0}, 18", f"s_mul_i32 s{sT1}, s{sT0}, 5", f"s_sub_u32 s{sT1}, s2, s{sT1}",
           f"v_lshrrev_b32 v{t0}, 2, v{vL}", f"s_lshl_b32 s{sT2}, s{sT0}, 5", f"v_add_u32 v{t0}, s{sT2}, v{t0}",
           f"v_mul_u32_u24 v{t0}, 1280, v{t0}", f"v_and_b32 v{t1}, 3, v{vL}", f"v_lshl_add_u32 v{t0}, v{t1}, 4, v{t0}",
           f"s_lshl_b32 s{sT2}, s{sT1}, 8", f"v_add_u32 v{t0}, s{sT2}, v{t0}", f"s_lshl_b32 s{sT2}, s{sW}, 6",
           f"v_add_u32 v{vPWs}, s{sT2}, v{t0}", f"v_add_u32 v{vPWs+1}, {16*1280-1024}, v{vPWs}"]
    for k in range(2):
        wC += [f"s_lshl_b32 s{sT2}, s{sT1}, 3", f"s_lshl_b32 s{sT3}, s{sW}, 1", f"s_add_u32 s{sT2}, s{sT2}, s{sT3}"]
        if k: wC += [f"s_add_u32 s{sT2}, s{sT2}, 1"]
        wC += [f"s_mul_i32 s{sT3}, s{sT2}, 52429", f"s_lshr_b32 s{sT3}, s{sT3}, 18", f"s_mul_i32 s{sD}, s{sT3}, 5",
               f"s_sub_u32 s{sT2}, s{sT2}, s{sD}", f"s_mul_i32 s{sT3}, s{sT3}, 88", f"s_add_u32 s{sT3}, s{sT3}, s{sT0}",
               f"s_add_u32 s{sT3}, s{sT3}, 40", f"s_mul_i32 s{sT3}, s{sT3}, 5", f"s_add_u32 s{sT3}, s{sT3}, s{sT2}",
               f"s_lshl_b32 s{sT3}, s{sT3}, 10", f"s_add_u32 s{sT3}, s{sT3}, {WS_W2}",
               f"v_lshlrev_b32 v{vPWd+k}, 4, v{vL}", f"v_add_u32 v{vPWd+k}, s{sT3}, v{vPWd+k}"]
    wC += [f"s_lshl_b32 s{sT0}, s2, 3", f"s_lshl_b32 s{sT1}, s{sW}, 1", f"s_add_u32 s{sT0}, s{sT0}, s{sT1}",
           f"s_mul_i32 s{sT1}, s{sT0}, 52429", f"s_lshr_b32 s{sT1}, s{sT1}, 21", f"s_mul_i32 s{sT2}, s{sT1}, 40",
           f"s_sub_u32 s{sT0}, s{sT0}, s{sT2}",
           [f"s_cmp_ge_u32 s{sT0}, 20", f"s_cselect_b32 s{sC3}, 1, 0", f"s_cselect_b32 s{sT2}, 20, 0"],
           f"s_sub_u32 s{sT2}, s{sT0}, s{sT2}",
           f"v_and_b32 v{t0}, 15, v{vL}", f"s_lshl_b32 s{sT3}, s{sT1}, 4", f"v_add_u32 v{t0}, s{sT3}, v{t0}",
           f"v_mul_u32_u24 v{t0}, 1280, v{t0}", f"v_lshrrev_b32 v{t1}, 4, v{vL}", f"v_lshl_add_u32 v{t0}, v{t1}, 4, v{t0}",
           f"s_lshl_b32 s{sT2}, s{sT2}, 6", f"v_add_u32 v{vPCs}, s{sT2}, v{t0}",
           f"s_mul_i32 s{sT3}, s{sT1}, 52429", f"s_lshr_b32 s{sT3}, s{sT3}, 18", f"s_mul_i32 s{sD}, s{sT3}, 5",
           f"s_sub_u32 s{sT1}, s{sT1}, s{sD}", f"s_mul_i32 s{sT3}, s{sT3}, 88", f"s_add_u32 s{sT3}, s{sT3}, s{sT0}",
           f"s_mul_i32 s{sT3}, s{sT3}, 5", f"s_add_u32 s{sT3}, s{sT3}, s{sT1}", f"s_lshl_b32 s{sT3}, s{sT3}, 10",
           f"s_add_u32 s{sT3}, s{sT3}, {WS_W2}", f"v_lshlrev_b32 v{vPCd}, 4, v{vL}", f"v_add_u32 v{vPCd}, s{sT3}, v{vPCd}",
           f"v_add_u32 v{vPCd+1}, {5*1024}, v{vPCd}",
           f"s_lshl_b32 s{sT0}, s{sW}, 11", f"s_add_u32 s95, s{sT0}, {MISC}"]
    weave(a, wC, stage_b(0), start=0)
    stp(a, "S0 issued")
    sm = []
    for k, P in enumerate((P_LRE, P_LIM, P_LDT)):
        sm += [f"global_load_ushort v{CL+3*k}, v{c1}, s[{P}:{P+1}]", f"global_load_ushort v{CL+3*k+1}, v{c1}, s[{P}:{P+1}] offset:16",
               f"global_load_ushort v{CL+3*k+2}, v{c2}, s[{P}:{P+1}]"]
    pkl = []
    pkl += [srd(None, SM, P_WD, 1966080) + [f"s_cmp_lt_u32 s2, 240", f"s_cselect_b32 s{SM+2}, s{SM+2}, 0", "s_mov_b32 m0, s95", "s_nop 0",
           f"buffer_load_dwordx4 v{vPWs}, s[{SM}:{SM+3}], 0 offen lds"],
           [f"buffer_load_dwordx4 v{vPWs+1}, s[{SM}:{SM+3}], 0 offen offset:1024 lds"],
           [f"s_cmp_eq_u32 s{sC3}, 1", f"s_cselect_b32 s{SM}, s{P_CIM}, s{P_CRE}", f"s_cselect_b32 s{SM+1}, s{P_CIM+1}, s{P_CRE+1}",
            f"s_mov_b32 s{SM+2}, 819200", f"s_cmp_lt_u32 s2, 200", f"s_cselect_b32 s{SM+2}, s{SM+2}, 0",
            f"buffer_load_dwordx4 v[{PK}:{PK+3}], v{vPCs}, s[{SM}:{SM+3}], 0 offen"],
           [f"buffer_load_dwordx4 v[{PK+4}:{PK+7}], v{vPCs}, s[{SM}:{SM+3}], 0 offen offset:64"]]
    m, q = t0, t1
    wL = [f"v_and_b32 v{m}, 15, v{vL}", f"v_lshrrev_b32 v{q}, 4, v{vL}",
          f"v_lshrrev_b32 v{t2}, 2, v{m}", f"v_lshlrev_b32 v{t2}, 4, v{t2}", f"v_and_b32 v{t3}, 3, v{m}", f"v_add_u32 v{t2}, v{t2}, v{t3}",
          f"s_lshl_b32 s{sT0}, s{sRH}, 6", f"v_add_u32 v{t2}, s{sT0}, v{t2}", f"v_lshlrev_b32 v{t2}, 7, v{t2}",
          f"v_and_b32 v{t3}, 2, v{m}", f"v_lshrrev_b32 v{t4}, 3, v{m}", f"v_lshl_or_b32 v{t3}, v{t4}, 2, v{t3}",
          f"v_xor_b32 v{t3}, v{t3}, v{q}", f"v_lshl_add_u32 v{vX0}, v{t3}, 4, v{t2}", f"v_xor_b32 v{t3}, 4, v{t3}",
          f"v_lshl_add_u32 v{vX1}, v{t3}, 4, v{t2}",
          f"v_lshrrev_b32 v{t2}, 2, v{m}", f"v_lshl_add_u32 v{t2}, v{q}, 3, v{t2}", f"v_mul_u32_u24 v{t2}, 192, v{t2}",
          f"v_and_b32 v{t3}, 3, v{m}", f"v_lshl_add_u32 v{t2}, v{t3}, 3, v{t2}", f"v_and_b32 v{t3}, 1, v{q}",
          f"v_lshl_add_u32 v{vWa}, v{t3}, 5, v{t2}", f"v_xor_b32 v{t3}, 1, v{t3}", f"v_lshl_add_u32 v{vWb}, v{t3}, 5, v{t2}",
          [f"s_cmp_eq_u32 s{sCH}, 1", f"s_cselect_b64 vcc, -1, 0", f"v_cndmask_b32 v{vWc}, v{vWa}, v{vWb}, vcc"],
          f"v_add_u32 v{vWc}, 64, v{vWc}", f"s_lshl_b32 s{sT0}, s{sCH}, 7", f"v_add_u32 v{vWa}, s{sT0}, v{vWa}", f"v_add_u32 v{vWb}, s{sT0}, v{vWb}",
          f"v_and_b32 v{t2}, 1, v{m}", f"v_lshrrev_b32 v{t3}, 2, v{m}", f"v_lshl_add_u32 v{t3}, v{t3}, 1, v{t2}", f"v_xor_b32 v{t3}, v{t3}, v{q}",
          f"v_mul_u32_u24 v{t2}, 40, v{t2}", f"v_lshrrev_b32 v{t4}, 1, v{m}", f"v_add_u32 v{t2}, v{t2}, v{t4}", f"v_lshlrev_b32 v{t2}, 7, v{t2}",
          f"s_lshl_b32 s{sT0}, s{sCH}, 11", f"v_add_u32 v{t2}, s{sT0}, v{t2}", f"v_lshl_add_u32 v{vB0}, v{t3}, 4, v{t2}",
          f"v_xor_b32 v{t3}, 4, v{t3}", f"v_lshl_add_u32 v{vB1}, v{t3}, 4, v{t2}",
          f"s_lshl_b32 s{sT0}, s{sRH}, 2", f"v_add_u32 v{vSig}, s{sT0}, v{q}",
          f"v_and_b32 v{t2}, 1, v{vL}", f"v_cvt_f32_u32 v{t2}, v{t2}", f"v_fma_f32 v{vSgn}, v{t2}, 2.0, -1.0",
          f"v_lshrrev_b32 v{t2}, 2, v{m}", f"v_lshl_add_u32 v{t2}, v{q}, 2, v{t2}", f"v_lshlrev_b32 v{t2}, 6, v{t2}",
          f"v_and_b32 v{t3}, 3, v{m}", f"v_lshl_add_u32 v{t2}, v{t3}, 3, v{t2}", f"v_add_u32 v{vPtr}, s95, v{t2}",
          f"v_lshlrev_b32 v{vC}, 2, v{m}", f"s_lshl_b32 s{sT0}, s{sCH}, 7", f"v_add_u32 v{vAs}, s{sT0}, v{vC}",
          f"v_add_u32 v{vCm}, {MISC}, v{vC}", f"v_add_u32 v{vAe}, {MISC}, v{vAs}", f"v_lshl_add_u32 v{vAe}, v{vSig}, 8, v{vAe}",
          f"v_lshlrev_b32 v{vAe4}, 1, v{vSig}", f"v_add_u32 v{vAe4}, s{sCH}, v{vAe4}", f"v_lshl_add_u32 v{vAe4}, v{vAe4}, 6, v{vCm}",
          f"s_mul_i32 s{sT0}, s{sW}, 320", f"s_add_u32 s{sT0}, s{sT0}, {MISC}", f"v_add_u32 v{vRw}, s{sT0}, v{vAs}",
          f"v_lshlrev_b32 v{vWp}, 4, v{vL}", f"s_mul_i32 s{sT0}, s{sRB2}, {4*88*1024}", f"v_add_u32 v{vH}, s{sT0}, v{vWp}"]
    wL += [f"v_add_u32 v{vH+i}, {i*88*1024}, v{vH}" for i in range(1,4)]
    weave(a, wL, sm, start=0)
    stp(a, "small issued")
    for g_ in advk(sKX, sKG) + advk(sKB, sKU):
        for x in g_: a(x)
    wQ = []
    wQ += [f"s_mul_i32 s{sT0}, s{sCG}, {16*640}", f"s_add_u32 s{sT0}, s{sT0}, {WS_S}",
           f"v_mul_u32_u24 v{pa[0]}, 640, v{vSig}", f"v_lshl_add_u32 v{pa[0]}, v{vAs}, 1, v{pa[0]}", f"v_add_u32 v{pa[0]}, s{sT0}, v{pa[0]}",
           f"v_add_u32 v{pa[1]}, {8*640}, v{pa[0]}", f"v_lshlrev_b32 v{t0}, 1, v{vSig}", f"v_add_u32 v{t0}, s{sCH}, v{t0}",
           f"v_mul_u32_u24 v{pa[2]}, 640, v{t0}", f"v_lshl_add_u32 v{pa[2]}, v{vC}, 1, v{pa[2]}", f"v_add_u32 v{pa[2]}, s{sT0}, v{pa[2]}",
           f"v_add_u32 v{pa[2]}, {64*8}, v{pa[2]}", f"v_mov_b32 v{t4}, 0x7f000000", f"v_add_u32 v{t1}, 8, v{vSig}"]
    for (p_, src) in ((pa[0], vSig), (pa[1], t1), (pa[2], t0)):
        wQ += [[f"v_cmp_le_u32 vcc, s{sRB}, v{src}", "s_nop 1", f"v_cndmask_b32 v{p_}, v{p_}, v{t4}, vcc"]]
    S1 = stage_x(BUF) + stage_g(BUF) + stage_u(BUF) + stage_b(BUF)
    Z2 = 76
    wQ += [f"v_mov_b32 v{Z2+k}, 0" for k in range(4)] + ["s_nop 1"]
    wQ += [f"v_mfma_f32_32x32x16_bf16 v[{ACC+16*k}:{ACC+16*k+15}], v[{Z2}:{Z2+3}], v[{Z2}:{Z2+3}], 0" for k in range(8)]
    wQ += [f"v_mfma_f32_16x16x32_bf16 v[{ACC+128}:{ACC+131}], v[{Z2}:{Z2+3}], v[{Z2}:{Z2+3}], 0",
           f"v_mfma_f32_16x16x32_bf16 v[{ACC+132}:{ACC+135}], v[{Z2}:{Z2+3}], v[{Z2}:{Z2+3}], 0"]
    weave(a, wQ, S1 + pkl, start=0)
    for g_ in advk(sKX, sKG) + advk(sKB, sKU):
        for x in g_: a(x)
    a(f"s_mov_b32 s{sDB}, {2*BUF}")
    a(f"s_mov_b32 s{sCur}, 0"); a(f"s_mov_b32 s{sD}, {BUF}"); a(f"s_mov_b32 s{sC3}, 0")
    a(f"s_mov_b32 s{sStage}, 0")
    a(f"s_mov_b32 s{sBlk}, {(1<<1)|(1<<5):#x}")
    stp(a, "S1 issued")
    a("s_waitcnt vmcnt(17)")
    a("s_barrier")
    stp(a, "S0 landed")
    def cpow_s(dr, di, A, B, n, tm, sgn):
        o = []
        if n is None:
            o += [f"v_exp_f32 v{tm}, v{A}", f"v_rndne_f32 v{dr}, v{B}", f"v_sub_f32 v{tm+1}, v{B}, v{dr}"]
        else:
            o += [f"v_mul_f32 v{tm}, {n}, v{A}", f"v_mul_f32 v{tm+1}, {n}, v{B}", f"v_exp_f32 v{tm}, v{tm}",
                  f"v_rndne_f32 v{dr}, v{tm+1}", f"v_sub_f32 v{tm+1}, v{tm+1}, v{dr}"]
        o += [f"v_cos_f32 v{dr}, v{tm+1}", f"v_sin_f32 v{di}, v{tm+1}"]
        if sgn is not None:
            o += [f"v_mul_f32 v{dr}, v{tm}, v{dr}", f"v_mul_f32 v{tm}, v{sgn}, v{tm}", f"v_mul_f32 v{di}, v{tm}, v{di}"]
        else:
            o += [f"v_mul_f32 v{dr}, v{tm}, v{dr}", f"v_mul_f32 v{di}, v{tm}, v{di}"]
        return o
    def make_Wk():
        Wk = []
        vN = 71
        Wk += [f"v_cvt_f32_u32 v{vN}, v{vSig}", f"v_mov_b32 v{vN+1}, 0x42e00000", f"s_mov_b32 s{sT0}, 0xc1800000",
               f"v_fma_f32 v{vN}, v{vN}, s{sT0}, v{vN+1}", f"s_lshl_b32 s{sT0}, s{sCH}, 3", f"s_sub_u32 s{sT0}, 8, s{sT0}",
               f"v_cvt_f32_u32 v{vN+2}, s{sT0}", f"v_add_f32 v{vN+2}, v{vN+2}, v{vN}"]
        streams = []
        for T in range(3):
            tm = 80+2*T; dt = 86+T
            s_ = [f"v_lshlrev_b32 v{vLRE[T]}, 16, v{CL+T}", f"v_lshlrev_b32 v{vLIM[T]}, 16, v{CL+3+T}", f"v_lshlrev_b32 v{dt}, 16, v{CL+6+T}",
                  f"v_mul_f32 v{dt}, {LOG2E:#x}, v{dt}", f"v_exp_f32 v{dt}, v{dt}",
                  f"v_cvt_pk_bf16_f32 v{dt}, v{dt}, v{dt}", f"v_lshlrev_b32 v{dt}, 16, v{dt}",
                  f"v_mul_f32 v{vA[T]}, v{dt}, v{vLRE[T]}", f"v_mul_f32 v{vBx[T]}, v{dt}, v{vLIM[T]}",
                  f"v_mul_f32 v{vA[T]}, {LOG2E:#x}, v{vA[T]}", f"v_mul_f32 v{vBx[T]}, {INV2PI:#x}, v{vBx[T]}"]
            s_ += cpow_s(vLr[T], vLi[T], vA[T], vBx[T], None, tm, vSgn)
            s_ += cpow_s(vWSr[T], vWSi[T], vA[T], vBx[T], f"v{vN if T < 2 else vN+2}", tm, vSgn)
            streams.append(s_)
        Wk += [[x, y, z] for x, y, z in zip(*streams)]
        Wk += [f"s_and_b32 s14, s{sRB2}, 7", f"s_mul_i32 s14, s14, 3200", f"v_lshlrev_b32 v83, 7, v{vL}", f"v_add_u32 v83, s14, v83",
               [f"v_cmp_gt_u32 vcc, 25, v{vL}", f"v_mov_b32 v{t0}, 0x7f000000", "s_nop 0", f"v_cndmask_b32 v83, v{t0}, v83, vcc"],
               f"s_mul_i32 s15, s{sCB}, 88", f"s_mul_i32 s14, s{sW}, 12", f"s_add_u32 s14, s14, s15", f"s_add_u32 s14, s14, 47",
               f"s_mul_i32 s14, s14, 5120", f"s_mul_i32 s16, s{sW}, 5", f"s_add_u32 s15, s15, s16", f"s_mul_i32 s15, s15, 5120",
               f"s_add_u32 s16, s15, {20*5120}"]
        return Wk
    def pack_process():
        a("s_waitcnt vmcnt(7)")
        for k in range(2):
            a(f"ds_read_b64_tr_b16 v[{PK+8+4*k}:{PK+9+4*k}], v{vPtr} offset:{32*k}")
            a(f"ds_read_b64_tr_b16 v[{PK+10+4*k}:{PK+11+4*k}], v{vPtr} offset:{32*k+1024}")
        srd(a, SM, P_WS, WS_W2 + W2_SIZE)
        a(f"s_cmp_lt_u32 s2, 200"); a(f"s_cselect_b32 s{SM+2}, s{SM+2}, 0")
        a(f"buffer_store_dwordx4 v[{PK}:{PK+3}], v{vPCd}, s[{SM}:{SM+3}], 0 offen{SC}")
        a(f"buffer_store_dwordx4 v[{PK+4}:{PK+7}], v{vPCd+1}, s[{SM}:{SM+3}], 0 offen{SC}")
        a(f"v_lshlrev_b32 v{t0}, 5, v0"); a(f"v_add_u32 v{t0}, {MISC}, v{t0}")
        a("s_waitcnt lgkmcnt(0)")
        a(f"s_mov_b32 s{SM+2}, {WS_W2 + W2_SIZE}"); a(f"s_cmp_lt_u32 s2, 240"); a(f"s_cselect_b32 s{SM+2}, s{SM+2}, 0")
        a(f"buffer_store_dwordx4 v[{PK+8}:{PK+11}], v{vPWd}, s[{SM}:{SM+3}], 0 offen{SC}")
        a(f"buffer_store_dwordx4 v[{PK+12}:{PK+15}], v{vPWd+1}, s[{SM}:{SM+3}], 0 offen{SC}")
        Z = 76
        a(f"ds_write_b128 v{t0}, v[{Z}:{Z+3}]"); a(f"ds_write_b128 v{t0}, v[{Z}:{Z+3}] offset:16")
        a(f"v_mov_b32 v{t1}, 0")
        a(f"global_load_dword v{vNon}, v{t1}, s[{P_DBG}:{P_DBG+1}]{SC}")

    def dma_first(sdb):
        g = [f"s_add_u32 m0, s{sdb}, s{sOX}"] + [dma(vDX+i, SX, sKX, 1024*i) for i in range(4)]
        g += [f"s_add_u32 m0, s{sdb}, s{sOG}"] + [dma(vDW+i, SG, sKG, 1024*i) for i in range(3)]
        return g
    def dma_second(sdb):
        g = [f"s_add_u32 m0, s{sdb}, s{sOU}"] + [dma(vDW+i, SU, sKU, 1024*i) for i in range(3)]
        g += [f"s_add_u32 m0, s{sdb}, s{sOB}", dma(vDB, SB0, sKB, 0), dma(vDB+1, SB1, sKB, 1024)]
        g += [f"s_add_u32 m0, s{sdb}, s{sOB2}", dma(vDB+2, SB2, sKB, 0)]
        return g
    def reads(ch, s, setb):
        vX = vX0 if s == 0 else vX1
        vB = vB0 if s == 0 else vB1
        X = [f"ds_read_b128 a[{setb+4*i}:{setb+4*i+3}], v{vX} offset:{RX+i*512}" for i in range(4)]
        def tr(n, region, k):
            vW = (vWa, vWb, vWc)[k]
            b = setb + 16 + 4*n
            o = region + 6144*s
            return [f"ds_read_b64_tr_b16 a[{b}:{b+1}], v{vW} offset:{o}", f"ds_read_b64_tr_b16 a[{b+2}:{b+3}], v{vW} offset:{o+768}"]
        def sb(n, off):
            b = setb + 16 + 4*n
            return [f"ds_read_b128 a[{b}:{b+3}], v{vB} offset:{RB+off}"]
        W = []
        for k in range(3):
            W += tr(2*k, RG, k); W += tr(2*k+1, RU, k)
        W += sb(6, 0) + sb(7, 1024) + sb(8, 4096 - 2048*ch)
        return X[:1] + W[:2] + X[1:] + W[2:]
    def mfmas(ch, setb):
        out = []
        for n in range(6):
            for i in range(4):
                d = acc(n, i)
                out.append(f"v_mfma_f32_16x16x32_bf16 v[{d}:{d+3}], a[{setb+16+4*n}:{setb+16+4*n+3}], a[{setb+4*i}:{setb+4*i+3}], v[{d}:{d+3}]")
        for n in (6, 7):
            for i in range(4):
                d = acc(n, i)
                out.append(f"v_mfma_f32_16x16x32_bf16 v[{d}:{d+3}], a[{setb+4*i}:{setb+4*i+3}], a[{setb+16+4*n}:{setb+16+4*n+3}], v[{d}:{d+3}]")
        for k in range(2):
            i = 2*ch + k
            d = S4 + 4*k
            out.append(f"v_mfma_f32_16x16x32_bf16 v[{d}:{d+3}], a[{setb+4*i}:{setb+4*i+3}], a[{setb+16+32}:{setb+16+35}], v[{d}:{d+3}]")
        return out
    def substep(ch, setb, rd, dmas, late, seq=None, main=None):
        if main is None: main = mfmas(ch, setb)
        NG = len(main)
        gaps = [[] for _ in range(NG)]
        for i, r in enumerate(rd): gaps[i].append(r)
        loads = [x for x in dmas if "buffer_load" in x]
        nl = len(loads)
        last = 0
        if nl:
            pos = [1 + int(i*(NG-4)/nl) for i in range(nl)]
            li = 0; pend = []
            for x in dmas:
                if "buffer_load" in x:
                    p = pos[li]; pp = p - 1
                    for y in reversed(pend):
                        while len(gaps[pp]) >= 2: pp -= 1
                        assert pp >= 0
                        gaps[pp].append(y)
                    pend = []
                    while len(gaps[p]) >= 2: p += 1
                    gaps[p].append(x); last = p
                    li += 1
                else: pend.append(x)
            p = last + 1
            for y in pend:
                while len(gaps[p]) >= 2: p += 1
                gaps[p].append(y)
        g = 0
        for (e, ins) in late:
            g = max(g, e)
            while len(gaps[g]) + len(ins) > 2:
                g += 1
                assert g < NG, "late overflow"
            gaps[g].extend(ins)
        if seq is not None:
            g = 0
            while seq and g < NG:
                if len(gaps[g]) + len(seq[0]) <= 2:
                    gaps[g].extend(seq.pop(0))
                g += 1
        out = []
        for i in range(NG):
            out.append(main[i]); out.extend(gaps[i])
        return out
    def gate_seq():
        gw = [GLD, GLD+1, GLD+2, GLD+3, GLD+4]
        xr = [[GLD+6, GLD+7, GLD+8, GLD+9, GLD+5], [GLD+10, GLD+11, GLD+12, GLD+13, GLD+14]]
        ga = [73, 74]; u0, u1, u2, u3 = 75, 76, 77, 78
        flat = [f"v_mov_b32 v{ga[0]}, 0", f"v_mov_b32 v{ga[1]}, 0"]
        for i in range(5):
            flat += [f"v_lshlrev_b32 v{u0}, 16, v{gw[i]}", f"v_and_b32 v{u1}, 0xffff0000, v{gw[i]}"]
            for r in range(2):
                x_ = xr[r][i]
                flat += [f"v_lshlrev_b32 v{u2}, 16, v{x_}", f"v_and_b32 v{u3}, 0xffff0000, v{x_}",
                         f"v_mul_f32 v{u2}, v{u2}, v{u0}", f"v_mul_f32 v{u3}, v{u3}, v{u1}",
                         f"v_cvt_pk_bf16_f32 v{u2}, v{u2}, v{u3}",
                         f"v_and_b32 v{u3}, 0xffff0000, v{u2}", f"v_lshlrev_b32 v{u2}, 16, v{u2}",
                         f"v_add_f32 v{ga[r]}, v{ga[r]}, v{u2}", f"v_add_f32 v{ga[r]}, v{ga[r]}, v{u3}"]
        q_ = [flat[k:k+2] for k in range(0, len(flat), 2)]
        for sh, rm in (("row_shr:1","0xf"),("row_shr:2","0xf"),("row_shr:4","0xf"),("row_shr:8","0xf"),("row_bcast:15","0xa"),("row_bcast:31","0xc")):
            bc = " bound_ctrl:0" if sh.startswith("row_shr") else ""
            q_.append([f"v_add_f32_dpp v{ga[r]}, v{ga[r]}, v{ga[r]} {sh} row_mask:{rm} bank_mask:0xf{bc}" for r in range(2)])
        q_ += [[f"v_readlane_b32 s82, v{ga[0]}, 63", f"v_readlane_b32 s83, v{ga[1]}, 63"],
               [f"v_cmp_eq_u32 vcc, 0, v{vL}"],
               [f"v_mov_b32 v{u3}, s82", f"v_mov_b32 v{u2}, s83"],
               [f"v_cndmask_b32 v{u2}, v{u2}, v{u3}, vcc"], [f"v_cvt_pk_bf16_f32 v{u2}, v{u2}, v{u2}"],
               [f"v_lshlrev_b32 v{u2}, 16, v{u2}", f"v_mul_f32 v{u2}, 0xbfb8aa3b, v{u2}"],
               [f"v_exp_f32 v{u2}, v{u2}"], [f"v_add_f32 v{u2}, 1.0, v{u2}"], [f"v_rcp_f32 v{u2}, v{u2}"],
               [f"v_cvt_pk_bf16_f32 v{u2}, v{u2}, v{u2}"], [f"v_lshlrev_b32 v{vGv}, 16, v{u2}", f"s_lshl_b32 s82, s94, 2"],
               [f"s_add_u32 s82, s82, {WS_G}"], [f"v_lshl_add_u32 v{vGst}, v{vL}, 2, s82"]]
        return q_
    def wbase(g, j):
        if g < 7: return 104 + 20*g + 4*j
        if g < 11: return 20*(g-7) + 4*j
        return 80 + 4*j if j < 2 else 244 + 4*(j-2)
    SW2, SH = SX, SG
    sKW, sKW4, sKH = sKX, sKG, sKU
    def wload(g, j):
        b = wbase(g, j)
        if j < 4:
            o = f" offset:{1024*j}" if j else ""
            return f"buffer_load_dwordx4 a[{b}:{b+3}], v{vWp}, s[{SW2}:{SW2+3}], s{sKW} offen{o}{SCL}"
        return f"buffer_load_dwordx4 a[{b}:{b+3}], v{vWp}, s[{SW2}:{SW2+3}], s{sKW4} offen{SCL}"
    def wstep(g, inc=5120):
        return [wload(g, j) for j in range(5)] + [f"s_add_u32 s{sKW}, s{sKW}, {inc}", f"s_add_u32 s{sKW4}, s{sKW4}, {inc}"]

    XCH = BUF
    vHo, vHo2 = 81, 82
    def glu_part1(ch):
        a(f"s_lshl_b32 s{sT0}, s{sRB}, 1")
        a(f"s_add_u32 s{sT0}, s{sT0}, s{sRH}")
        a(f"s_mul_i32 s{sT0}, s{sT0}, {4*88}")
        a(f"s_mul_i32 s{sT1}, s{sCG}, 3")
        a(f"s_add_u32 s{sT0}, s{sT0}, s{sT1}")
        a(f"s_add_u32 s{sT0}, s{sT0}, 40")
        a(f"s_lshl_b32 s{sT1}, s{sCH}, 1")
        a(f"s_add_u32 s{sT1}, s{sT1}, s{sT0}")
        a(f"s_lshl_b32 s{sT1}, s{sT1}, 10")
        a(f"s_add_u32 s{sT0}, s{sT0}, 1")
        a(f"s_mul_i32 s{sT3}, s{sCH}, {2*88}")
        a(f"s_add_u32 s{sT0}, s{sT0}, s{sT3}")
        a(f"s_lshl_b32 s{sT0}, s{sT0}, 10")
        a(f"v_add_u32 v{vHo}, s{sT1}, v{vWp}")
        a(f"v_add_u32 v{vHo2}, s{sT0}, v{vWp}")
        for i in range(4):
            G0, U0, G1, U1 = [acc(n, i) for n in range(4)]
            for (G, Uu) in ((G0, U0), (G1, U1)):
                a(f"v_pk_mul_f32 v[{G}:{G+1}], v[{G}:{G+1}], v[{Uu}:{Uu+1}]")
                a(f"v_pk_mul_f32 v[{G+2}:{G+3}], v[{G+2}:{G+3}], v[{Uu+2}:{Uu+3}]")
            a(f"v_cvt_pk_bf16_f32 v{U0}, v{G0}, v{G0+1}")
            a(f"v_cvt_pk_bf16_f32 v{U0+1}, v{G0+2}, v{G0+3}")
            a(f"v_cvt_pk_bf16_f32 v{U0+2}, v{G1}, v{G1+1}")
            a(f"v_cvt_pk_bf16_f32 v{U0+3}, v{G1+2}, v{G1+3}")
            a(f"v_add_u32 v{G0}, {i*88*1024}, v{vHo}")
            a(f"global_store_dwordx4 v{G0}, v[{U0}:{U0+3}], s[{P_WS}:{P_WS+1}]{SC}")
        for i in range(4):
            G2, U2 = acc(4, i), acc(5, i)
            a(f"v_pk_mul_f32 v[{G2}:{G2+1}], v[{G2}:{G2+1}], v[{U2}:{U2+1}]")
            a(f"v_pk_mul_f32 v[{G2+2}:{G2+3}], v[{G2+2}:{G2+3}], v[{U2+2}:{U2+3}]")
        for i in range(4):
            G2, U2 = acc(4, i), acc(5, i)
            a(f"v_cvt_pk_bf16_f32 v{U2}, v{G2}, v{G2+1}")
            a(f"v_cvt_pk_bf16_f32 v{U2+1}, v{G2+2}, v{G2+3}")
        a(f"s_lshl_b32 s{sT1}, s{sW}, 10")
        a(f"v_lshlrev_b32 v{t1}, 3, v{vL}")
        a(f"v_add_u32 v{t2}, s{sT1}, v{t1}")
        give = (2, 3) if ch == 0 else (0, 1)
        for k, i in enumerate(give):
            a(f"ds_write_b64 v{t2}, v[{acc(5,i)}:{acc(5,i)+1}] offset:{XCH+512*k}")
    A_, B_ = 0, 52
    a(f"s_cmp_eq_u32 s{sCH}, 1")
    a(f"s_cbranch_scc1 L_pre1")
    rot0 = lambda: [(24, [f"s_mov_b32 s{sF}, s{sCur}"]), (24, [f"s_add_u32 s{sCur}, s{sCur}, s{sD}"]),
                  (24, [f"s_add_u32 s{sC3}, s{sC3}, 1"]),
                  (24, [f"s_cmp_eq_u32 s{sC3}, 3", f"s_cselect_b32 s{sC3}, 0, s{sC3}"]),
                  (24, [f"s_cmp_eq_u32 s{sC3}, 2", f"s_cselect_b32 s{sD}, {3*BUF}, 0"]),
                  (24, [f"s_sub_u32 s{sD}, {BUF}, s{sD}"])]
    n0 = stp.n
    for ch in (0, 1):
        stp.n = n0
        a.label(f"L_pre{ch}")
        for r in reads(ch, 0, A_): a(r)
        a(f"v_add_u32 v{vX0}, {BUF}, v{vX0}")
        a(f"v_add_u32 v{vB0}, {BUF}, v{vB0}")
        d1 = dma_first(sDB)
        grp = []; cur_ = []
        for x in d1:
            cur_.append(x)
            if "m0" in x.split(",")[0]: cur_.append("s_nop 0")
            if "buffer_load" in x: grp.append(cur_); cur_ = []
        grp[-1] += cur_
        weave(a, make_Wk(), grp, start=1)
        pack_process()
        a("s_waitcnt lgkmcnt(0)")
        stp(a, "prologue")
        a(".p2align 3")
        if "mis" in FLAGS: a("s_nop 0")
        a.label(f"L_loop{ch}")
        late0 = [(2, g_) for g_ in advk(sKX, sKG)] + [(19, [f"v_add_u32 v{r}, s{sD}, v{r}"]) for r in (vWa, vWb, vWc, vX1, vB1)] + rot0()
        for x in substep(ch, A_, reads(ch, 1, B_), dma_second(sDB), late0): a(x)
        a(f"s_waitcnt vmcnt(13) lgkmcnt(0)")
        a("s_barrier")
        if LSTAMP: a("s_memtime s[38:39]")
        late1 = [(2, g_) for g_ in advk(sKB, sKU)] + [(19, [f"v_add_u32 v{r}, s{sD}, v{r}"]) for r in (vX0, vB0)]
        late1 += [(20, [f"s_mov_b32 s{sDB}, s{sF}"])]
        late1 += [(32, [f"s_bitcmp1_b32 s{sBlk}, s{sStage}", f"s_cbranch_scc1 L_blk{ch}"])]
        body = substep(ch, B_, reads(ch, 0, A_), dma_first(sF), late1)
        for x in body:
            a(x)
            if x.startswith("s_cbranch_scc1 L_blk"): a.label(f"L_blkr{ch}")
        a(f"s_add_u32 s{sStage}, s{sStage}, 1")
        a(f"s_cmp_lt_u32 s{sStage}, 7")
        a("s_waitcnt lgkmcnt(0)")
        if LSTAMP:
            a(f"v_cmp_eq_u32 vcc, s{sStage}, v{vL}"); a(f"v_mov_b32 v79, s38"); a("s_nop 0"); a(f"v_cndmask_b32 v80, v80, v79, vcc")
        a(f"s_cbranch_scc1 L_loop{ch}")
        stp(a, "loop")
        lt = [(19, [f"v_add_u32 v{r}, {BUF}, v{r}"]) for r in (vWa, vWb, vWc, vX1, vB1)]
        lt += [(24, [x]) for x in srd(None, SW2, P_WS, W2_SIZE, add=WS_W2)[:0]]
        for x in substep(ch, A_, reads(ch, 1, B_), dma_second(sDB), lt): a(x)
        a(f"s_waitcnt vmcnt(13) lgkmcnt(0)")
        a("s_barrier")
        spin_init(a)
        a.label(f"L_pf{ch}")
        a(f"v_cmp_ne_u32 vcc, s{sNonce}, v{vPF}")
        a(f"v_cmp_ne_u32 s[{sEX}:{sEX+1}], s{sNonce}, v{vPF+1}")
        a(f"s_or_b64 vcc, vcc, s[{sEX}:{sEX+1}]")
        a(f"v_cmp_ne_u32 s[{sEX}:{sEX+1}], s{sNonce}, v{vPF+2}")
        a(f"s_or_b64 vcc, vcc, s[{sEX}:{sEX+1}]")
        a(f"v_cmp_ne_u32 s[{sEX}:{sEX+1}], s{sNonce}, v{vPF+3}")
        a(f"s_or_b64 vcc, vcc, s[{sEX}:{sEX+1}]")
        a(f"s_cmp_eq_u64 vcc, 0")
        a(f"s_cbranch_scc1 L_pfok{ch}")
        spin_guard(a, f"L_pfok{ch}")
        a(f"v_lshlrev_b32 v{t0}, 4, v{vL}")
        a(f"v_add_u32 v{t0}, {WS_PF}, v{t0}")
        a(f"global_load_dwordx4 v[{vPF}:{vPF+3}], v{t0}, s[{P_WS}:{P_WS+1}]{SC}")
        a("s_waitcnt vmcnt(0)")
        a(f"s_branch L_pf{ch}")
        a.label(f"L_pfok{ch}")
        srd(a, SW2, P_WS, W2_SIZE, add=WS_W2)
        a(f"s_mul_i32 s{sKW}, s{sCB}, 88")
        a(f"s_mul_i32 s{sT0}, s{sW}, 12")
        a(f"s_add_u32 s{sKW}, s{sKW}, s{sT0}")
        a(f"s_add_u32 s{sKW}, s{sKW}, 40")
        a(f"s_mul_i32 s{sKW}, s{sKW}, 5120")
        a(f"s_add_u32 s{sKW4}, s{sKW}, 4096")
        allw = []
        for g in range(7): allw += wstep(g)
        def take(n):
            out = []; c = 0
            while allw and (c < n or "buffer_load" not in allw[0]):
                x = allw.pop(0); out.append(x)
                if "buffer_load" in x: c += 1
            return out
        lt = [(19, [f"v_add_u32 v{r}, {(-2*BUF) & 0xffffffff:#x}, v{r}"]) for r in (vX0, vB0)]
        gq = gate_seq()
        for x in substep(ch, B_, reads(ch, 0, A_), take(8), lt, gq): a(x)
        a("s_waitcnt lgkmcnt(0)")
        lt = [(19, [f"v_add_u32 v{r}, {(-2*BUF) & 0xffffffff:#x}, v{r}"]) for r in (vWa, vWb, vWc, vX1, vB1)]
        for x in substep(ch, A_, reads(ch, 1, B_), take(8), lt, gq): a(x)
        a(f"s_waitcnt vmcnt(16) lgkmcnt(0)")
        a("s_barrier")
        wt = []
        if "wt" in FLAGS:
            wt = [(20, [f"buffer_load_dword v99, v83, s[{SX}:{SX+3}], s14 offen{SCL}"]),
                  (24, [f"buffer_load_dword v99, v83, s[{SX}:{SX+3}], s15 offen{SCL}"]),
                  (28, [f"buffer_load_dword v99, v83, s[{SX}:{SX+3}], s16 offen{SCL}"])]
        for x in substep(ch, B_, reads(ch, 0, A_), take(8), wt, gq): a(x)
        a("s_waitcnt lgkmcnt(0)")
        for x in substep(ch, A_, reads(ch, 1, B_), take(6), [], gq, main=mfmas(ch, A_)[:24]): a(x)
        a("s_waitcnt lgkmcnt(0)")
        for x in substep(ch, B_, [], take(5), [], gq, main=mfmas(ch, B_)[:24]): a(x)
        assert not allw
        stp(a, "tailG")
        glu_part1(ch)
        stp(a, "glu1")
        for x in substep(ch, A_, [], [], [], gq, main=mfmas(ch, A_)[24:] + mfmas(ch, B_)[24:]): a(x)
        assert not gq, len(gq)
        a("s_mov_b64 exec, 3")
        a(f"global_store_dword v{vGst}, v{vGv}, s[{P_WS}:{P_WS+1}]{SC}")
        a("s_mov_b64 exec, -1")
        a(f"s_branch L_epi")
        a.label(f"L_blk{ch}")
        a(f"s_cmp_eq_u32 s{sStage}, 1")
        a(f"s_cbranch_scc1 L_b0_{ch}")
        a(f"v_lshlrev_b32 v{t0}, 4, v{vL}")
        a(f"v_add_u32 v{t0}, {WS_PF}, v{t0}")
        a(f"global_load_dwordx4 v[{vPF}:{vPF+3}], v{t0}, s[{P_WS}:{P_WS+1}]{SC}")
        a(f"s_lshl_b32 s{sT1}, s{sRB}, 7")
        a(f"s_lshl_b32 s{sT2}, s{sRH}, 6")
        a(f"s_add_u32 s{sT1}, s{sT1}, s{sT2}")
        a(f"s_lshl_b32 s{sT2}, s{sCG}, 2")
        a(f"s_add_u32 s{sT1}, s{sT1}, s{sT2}")
        a(f"s_lshl_b32 s{sT2}, s{sCH}, 1")
        a(f"s_add_u32 s94, s{sT1}, s{sT2}")
        a(f"s_mul_i32 s{sT1}, s94, 1280")
        a(f"v_lshlrev_b32 v{t0}, 2, v{vL}")
        a(f"v_add_u32 v{t1}, s{sT1}, v{vWp}")
        a(f"v_add_u32 v{t2}, s{sT1}, v{t0}")
        a(f"global_load_dwordx4 v[{GLD}:{GLD+3}], v{vWp}, s[{P_GW}:{P_GW+1}]")
        a(f"global_load_dword v{GLD+4}, v{t0}, s[{P_GW}:{P_GW+1}] offset:1024")
        a(f"global_load_dwordx4 v[{GLD+6}:{GLD+9}], v{t1}, s[{P_X}:{P_X+1}]")
        a(f"global_load_dword v{GLD+5}, v{t2}, s[{P_X}:{P_X+1}] offset:1024")
        a(f"global_load_dwordx4 v[{GLD+10}:{GLD+13}], v{t1}, s[{P_X}:{P_X+1}] offset:1280")
        a(f"global_load_dword v{GLD+14}, v{t2}, s[{P_X}:{P_X+1}] offset:2304")
        a(f"s_branch L_blkr{ch}")
        a.label(f"L_b0_{ch}")
        spin_init(a)
        a.label(f"L_np{ch}")
        a(f"v_readfirstlane_b32 s{sNonce}, v{vNon}")
        a(f"s_cmp_lg_u32 s{sNonce}, 0")
        a(f"s_cbranch_scc1 L_nok{ch}")
        spin_guard(a, f"L_nok{ch}")
        a(f"v_mov_b32 v{t0}, 0")
        a(f"global_load_dword v{vNon}, v{t0}, s[{P_DBG}:{P_DBG+1}]{SC}")
        a("s_waitcnt vmcnt(0)")
        a(f"s_branch L_np{ch}")
        a.label(f"L_nok{ch}")
        a(f"s_cmp_lg_u32 s{sW}, 0")
        a(f"s_cbranch_scc1 L_blkr{ch}")
        a(f"s_lshl_b32 s{sT1}, s2, 2")
        a(f"s_add_u32 s{sT1}, s{sT1}, {WS_PF}")
        a(f"v_mov_b32 v{t0}, s{sT1}")
        a(f"v_mov_b32 v{t1}, s{sNonce}")
        a(f"s_mov_b64 exec, 1")
        a(f"global_store_dword v{t0}, v{t1}, s[{P_WS}:{P_WS+1}]{SC}")
        a(f"s_mov_b64 exec, -1")
        a(f"s_branch L_blkr{ch}")

    a.label("L_epi")
    stp(a, "tail")
    if LSTAMP:
        a(f"s_lshl_b32 s{sT0}, s2, 2")
        a(f"s_add_u32 s{sT0}, s{sT0}, s{sW}")
        a(f"s_lshl_b32 s{sT0}, s{sT0}, 8")
        a(f"s_add_u32 s{sT0}, s{sT0}, {WS_STAMP + 0x40000}")
        a(f"v_lshl_add_u32 v79, v{vL}, 2, s{sT0}")
        a(f"global_store_dword v79, v80, s[{P_WS}:{P_WS+1}]")
    a("s_nop 7")
    U = [SA, SBt, S4]; NS = [16, 16, 8]
    eA = [56, 57, 58]; eB = [59, 60, 61]
    cur = [U[T] for T in range(3)]
    for k in range(1, 16):
        Ts = [T for T in range(3) if k < NS[T]]
        dst = eA if (k & 1) else eB
        for T in Ts: a(f"v_fma_f32 v{dst[T]}, v{vLr[T]}, v{cur[T]}, v{U[T]+k}")
        for T in Ts:
            a(f"v_fmac_f32_dpp v{dst[T]}, v{cur[T]}, v{vLi[T]} {DPPSW}")
            cur[T] = dst[T]
    ew = [62, 63, 64]; ex = [65, 66, 67]
    a(f"s_mul_i32 s{sT0}, s{sW}, 320")
    a(f"s_add_u32 s{sT0}, s{sT0}, {MISC}")
    for T in range(3): a(f"v_mul_f32 v{ew[T]}, v{vWSr[T]}, v{cur[T]}")
    for T in range(3): a(f"v_fmac_f32_dpp v{ew[T]}, v{cur[T]}, v{vWSi[T]} {DPPSW}")
    a(f"v_add_u32 v{t0}, s{sT0}, v{vC}")
    a(f"ds_write_b32 v{vAe}, v{cur[0]} offset:{EF0}")
    a(f"ds_write_b32 v{vAe}, v{cur[1]} offset:{EF0+64}")
    a(f"ds_write_b32 v{vAe4}, v{cur[2]} offset:{E40}")
    def qreduce(vals, tmps):
        for v, t in zip(vals, tmps): a(f"v_mov_b32 v{t}, v{v}")
        a("s_nop 0")
        for v, t in zip(vals, tmps): a(f"v_permlane16_swap_b32 v{v}, v{t}")
        a("s_nop 0")
        for v, t in zip(vals, tmps): a(f"v_add_f32 v{v}, v{v}, v{t}")
        for v, t in zip(vals, tmps): a(f"v_mov_b32 v{t}, v{v}")
        a("s_nop 0")
        for v, t in zip(vals, tmps): a(f"v_permlane32_swap_b32 v{v}, v{t}")
        a("s_nop 0")
        for v, t in zip(vals, tmps): a(f"v_add_f32 v{v}, v{v}, v{t}")
    qreduce(ew, ex)
    a(f"ds_write_b32 v{vRw}, v{ew[0]} offset:{SWB}")
    a(f"ds_write_b32 v{vRw}, v{ew[1]} offset:{SWB+64}")
    a(f"ds_write_b32 v{t0}, v{ew[2]} offset:{SWB+256}")
    a("s_waitcnt lgkmcnt(0)")
    a("s_barrier")
    stp(a, "passA")
    a(f"s_xor_b32 s{sT1}, s{sW}, 1")
    a(f"s_lshl_b32 s{sT1}, s{sT1}, 10")
    a(f"v_lshlrev_b32 v{t1}, 3, v{vL}")
    a(f"v_add_u32 v{t2}, s{sT1}, v{t1}")
    a(f"v_add_u32 v{t4}, {88*1024}, v{vHo2}")
    a(f"s_cmp_eq_u32 s{sCH}, 1")
    a(f"s_cbranch_scc1 L_xr1")
    for k in range(2):
        a(f"ds_read_b64 v[{acc(5,k)+2}:{acc(5,k)+3}], v{t2} offset:{XCH+512*k}")
    a("s_waitcnt lgkmcnt(0)")
    a(f"global_store_dwordx4 v{vHo2}, v[{acc(5,0)}:{acc(5,0)+3}], s[{P_WS}:{P_WS+1}]{SC}")
    a(f"global_store_dwordx4 v{t4}, v[{acc(5,1)}:{acc(5,1)+3}], s[{P_WS}:{P_WS+1}]{SC}")
    a(f"s_branch L_xr2")
    a.label("L_xr1")
    for k in range(2):
        a(f"ds_read_b64 v[{acc(4,2+k)}:{acc(4,2+k)+1}], v{t2} offset:{XCH+512*k}")
        a(f"v_mov_b32 v{acc(4,2+k)+2}, v{acc(5,2+k)}")
        a(f"v_mov_b32 v{acc(4,2+k)+3}, v{acc(5,2+k)+1}")
    a("s_waitcnt lgkmcnt(0)")
    a(f"global_store_dwordx4 v{vHo2}, v[{acc(4,2)}:{acc(4,2)+3}], s[{P_WS}:{P_WS+1}]{SC}")
    a(f"global_store_dwordx4 v{t4}, v[{acc(4,3)}:{acc(4,3)+3}], s[{P_WS}:{P_WS+1}]{SC}")
    a.label("L_xr2")
    a(f"s_cmp_lg_u32 s{sW}, 0")
    a(f"s_cbranch_scc1 L_nopub")
    PB = 68
    a(f"v_lshlrev_b32 v{t0}, 3, v{vL}")
    a(f"v_add_u32 v{t0}, {MISC}, v{t0}")
    for w in range(4): a(f"ds_read_b64 v[{PB+2*w}:{PB+2*w+1}], v{t0} offset:{SWB+320*w}")
    a(f"s_lshl_b32 s{sT0}, s{sCG}, 4")
    a(f"s_add_u32 s{sT0}, s{sT0}, s{sRB}")
    a(f"s_mul_i32 s{sT0}, s{sT0}, 640")
    a(f"s_add_u32 s{sT0}, s{sT0}, {WS_S}")
    a(f"v_lshlrev_b32 v{t0}, 4, v{vL}")
    a(f"v_add_u32 v{t0}, s{sT0}, v{t0}")
    a(f"v_mov_b32 v{PB+9}, s{sNonce}")
    a(f"v_mov_b32 v{PB+11}, s{sNonce}")
    a(f"v_cmp_gt_u32 vcc, 40, v{vL}")
    a("s_waitcnt lgkmcnt(0)")
    a(f"v_pk_add_f32 v[{PB}:{PB+1}], v[{PB}:{PB+1}], v[{PB+2}:{PB+3}]")
    a(f"v_pk_add_f32 v[{PB+4}:{PB+5}], v[{PB+4}:{PB+5}], v[{PB+6}:{PB+7}]")
    a(f"v_pk_add_f32 v[{PB}:{PB+1}], v[{PB}:{PB+1}], v[{PB+4}:{PB+5}]")
    a(f"s_and_saveexec_b64 s[{sEX}:{sEX+1}], vcc")
    a(f"v_mov_b32 v{PB+8}, v{PB}")
    a(f"v_mov_b32 v{PB+10}, v{PB+1}")
    a(f"global_store_dwordx4 v{t0}, v[{PB+8}:{PB+11}], s[{P_WS}:{P_WS+1}]{SC}")
    a(f"s_mov_b64 exec, s[{sEX}:{sEX+1}]")
    a.label("L_nopub")
    stp(a, "pub")
    pre = []
    for g in range(7, 12):
        ws_ = wstep(g)
        pre += [[x] for x in ws_[:4]] + [[ws_[4], ws_[5], ws_[6]]]
    X = ACC
    vMr = [X, X+1, X+2]; vMi = [X+3, X+4, X+5]
    vC2r = [X+6, X+7, X+8]; vC2i = [X+9, X+10, X+11]
    vHr = [X+12, X+13, X+14]; vHi = [X+15, X+16, X+17]
    vW0r = [X+18, X+19, X+20]; vW0i = [X+21, X+22, X+23]
    vW1r = [X+24, X+25]; vW1i = [X+26, X+27]
    vLi2 = [X+28, X+29, X+30]
    nOff, nW0, nW1, nOff4, nW4 = X+32, X+33, X+34, X+35, X+36
    vm0, vm1, vm4 = X+37, X+38, X+39
    W = []
    W += [f"v_cvt_f32_u32 v{nOff}, v{vSig}", f"v_mul_f32 v{nOff}, 0x41800000, v{nOff}", f"s_lshl_b32 s{sT0}, s{sCH}, 3",
          f"v_cvt_f32_u32 v{nOff4}, s{sT0}", f"v_add_f32 v{nOff4}, v{nOff4}, v{nOff}",
          f"s_sub_u32 s{sT0}, s{sRB}, 1", f"v_sub_u32 v{t0}, s{sT0}, v{vSig}", f"v_subrev_u32 v{t1}, 8, v{t0}",
          f"v_sub_u32 v{t2}, v{t0}, v{vSig}", f"v_subrev_u32 v{t2}, s{sCH}, v{t2}"]
    for (n_, mreg, src) in ((nW0, vm0, t0), (nW1, vm1, t1), (nW4, vm4, t2)):
        W += [[f"v_cmp_le_i32 vcc, 0, v{src}", f"v_max_i32 v{n_}, 0, v{src}", f"v_cvt_f32_i32 v{n_}, v{n_}",
               f"v_cndmask_b32 v{mreg}, 0, 1.0, vcc"], f"v_mul_f32 v{n_}, 0x43000000, v{n_}"]
    W += [f"v_mov_b32 v{X+40}, 0x41800000", f"v_mov_b32 v{X+41}, 0x41000000"]
    streams = []
    for T in range(3):
        tm = X+44+6*T
        pr, pi, cr, ci = tm+2, tm+3, tm+4, tm+5
        s_ = cpow_s(vMr[T], vMi[T], vA[T], vBx[T], f"v{X+40 if T < 2 else X+41}", tm, vSgn)
        s_ += [f"v_mul_f32 v{pi}, v{vSgn}, v{vLi[T]}", f"v_add_f32 v{pr}, -1.0, v{vLr[T]}",
               f"v_mul_f32 v{tm}, v{vLRE[T]}, v{vLRE[T]}", f"v_fmac_f32 v{tm}, v{vLIM[T]}, v{vLIM[T]}", f"v_rcp_f32 v{tm}, v{tm}",
               f"v_mul_f32 v{cr}, v{pr}, v{vLRE[T]}", f"v_fmac_f32 v{cr}, v{pi}, v{vLIM[T]}",
               f"v_mul_f32 v{ci}, v{pi}, v{vLRE[T]}", f"v_fma_f32 v{ci}, -v{pr}, v{vLIM[T]}, v{ci}",
               f"v_add_f32 v{tm}, v{tm}, v{tm}", f"v_mul_f32 v{cr}, v{tm}, v{cr}", f"v_mul_f32 v{ci}, v{tm}, v{ci}",
               f"v_mul_f32_e64 v{vC2r[T]}, -v{vSgn}, v{cr}", f"v_sub_f32 v{vC2i[T]}, 0, v{ci}", f"v_sub_f32 v{vLi2[T]}, 0, v{vLi[T]}"]
        s_ += cpow_s(pr, pi, vA[T], vBx[T], f"v{nOff if T < 2 else nOff4}", tm, None)
        s_ += [f"v_mul_f32 v{vHr[T]}, v{cr}, v{pr}", f"v_fma_f32 v{vHr[T]}, -v{ci}, v{pi}, v{vHr[T]}",
               f"v_mul_f32 v{vHi[T]}, v{cr}, v{pi}", f"v_fmac_f32 v{vHi[T]}, v{ci}, v{pr}",
               f"v_mul_f32_e64 v{vHr[T]}, -v{vSgn}, v{vHr[T]}", f"v_sub_f32 v{vHi[T]}, 0, v{vHi[T]}"]
        s_ += cpow_s(vW0r[T], vW0i[T], vA[T], vBx[T], f"v{nW0 if T < 2 else nW4}", tm, vSgn)
        mk = vm0 if T < 2 else vm4
        s_ += [f"v_mul_f32 v{vW0r[T]}, v{mk}, v{vW0r[T]}", f"v_mul_f32 v{vW0i[T]}, v{mk}, v{vW0i[T]}"]
        if T < 2:
            s_ += cpow_s(vW1r[T], vW1i[T], vA[T], vBx[T], f"v{nW1}", tm, vSgn)
            s_ += [f"v_mul_f32 v{vW1r[T]}, v{vm1}, v{vW1r[T]}", f"v_mul_f32 v{vW1i[T]}, v{vm1}, v{vW1i[T]}"]
        streams.append(s_)
    W += rr(*streams)
    for x in W:
        if isinstance(x, str): a(x)
        else:
            for y in x: a(y)
    stp(a, "consts2")
    a("s_waitcnt vmcnt(0)")
    vFo = 18
    a(f"s_lshl_b32 s{sT0}, s{sRB}, 1")
    a(f"s_add_u32 s{sT0}, s{sT0}, s{sRH}")
    a(f"s_lshl_b32 s{sT0}, s{sT0}, 4")
    a(f"s_add_u32 s{sT0}, s{sT0}, s{sCG}")
    a(f"s_lshl_b32 s{sT0}, s{sT0}, 1")
    a(f"s_add_u32 s{sT0}, s{sT0}, s{sCH}")
    a(f"s_lshl_b32 s{sT0}, s{sT0}, 2")
    a(f"s_add_u32 s{sT0}, s{sT0}, {WS_FB}")
    a(f"v_mov_b32 v{vFo}, s{sT0}")
    a(f"v_mov_b32 v{t0}, s{sNonce}")
    a(f"s_mov_b64 exec, 1")
    a(f"global_store_dword v{vFo}, v{t0}, s[{P_WS}:{P_WS+1}]{SC}")
    a(f"s_mov_b64 exec, -1")
    stp(a, "flagB")


    Hp = [65, 66, 67]; hx = [56, 57, 58]; bad = 68
    vFl = 24
    a(f"s_lshl_b32 s{sT0}, s{sRB2}, 7")
    a(f"s_lshl_b32 s{sT1}, s{sW}, 5")
    a(f"s_add_u32 s{sT0}, s{sT0}, s{sT1}")
    a(f"v_and_b32 v{vFl}, 7, v{vL}")
    a(f"v_lshlrev_b32 v{vFl}, 2, v{vFl}")
    a(f"v_add_u32 v{vFl}, s{sT0}, v{vFl}")
    a(f"v_add_u32 v{vFl}, {WS_FB}, v{vFl}")
    srd(a, SH, P_WS, WS_G)
    srd(a, SM, P_WS, WS_S + 256*640)
    R = 70
    FBV = 80
    def poll_loads():
        a(f"buffer_load_dwordx2 v[{R}:{R+1}], v{pa[0]}, s[{SM}:{SM+3}], 0 offen{SC}")
        a(f"buffer_load_dwordx2 v[{R+2}:{R+3}], v{pa[0]}, s[{SM}:{SM+3}], 0 offen offset:128{SC}")
        a(f"buffer_load_dwordx2 v[{R+4}:{R+5}], v{pa[1]}, s[{SM}:{SM+3}], 0 offen{SC}")
        a(f"buffer_load_dwordx2 v[{R+6}:{R+7}], v{pa[1]}, s[{SM}:{SM+3}], 0 offen offset:128{SC}")
        a(f"buffer_load_dwordx2 v[{R+8}:{R+9}], v{pa[2]}, s[{SM}:{SM+3}], 0 offen{SC}")
    poll_loads()
    PE = X+64
    W = [f"v_subrev_u32 v{t0}, 256, v{vAe}"]
    for T in range(2):
        for k in range(7): W.append(f"ds_read_b32 v{PE+7*T+k}, v{t0} offset:{EF0 + 64*T - 256*k}")
    W.append(f"v_subrev_u32 v{t1}, 64, v{vAe4}")
    for k in range(15): W.append(f"ds_read_b32 v{PE+14+k}, v{t1} offset:{E40 - 64*k}")
    tu = [56, 57, 58]
    for k in range(16):
        Ts = [T for T in range(3) if k < NS[T]]
        for T in Ts: W.append(f"v_mul_f32 v{tu[T]}, v{vC2r[T]}, v{U[T]+k}")
        for T in Ts: W.append(f"v_fmac_f32_dpp v{tu[T]}, v{U[T]+k}, v{vC2i[T]} {DPPSW}")
        for T in Ts: W.append(f"v_mov_b32 v{U[T]+k}, v{tu[T]}")
    W.append("s_waitcnt lgkmcnt(0)")
    Pc = [PE+6, PE+13, PE+14+14]
    Pt = [[59, 60], [61, 62], [63, 64]]
    nch = [7, 7, 15]; base = [PE, PE+7, PE+14]
    for stepk in range(1, 15):
        Ts = [T for T in range(3) if stepk < nch[T]]
        dst = {T: Pt[T][stepk & 1] for T in Ts}
        grp = []
        for T in Ts: grp.append(f"v_fma_f32 v{dst[T]}, v{vMr[T]}, v{Pc[T]}, v{base[T] + nch[T]-1-stepk}")
        if len(Ts) == 1: grp.append("s_nop 0")
        for T in Ts:
            grp.append(f"v_fmac_f32_dpp v{dst[T]}, v{Pc[T]}, v{vMi[T]} {DPPSW}")
            Pc[T] = dst[T]
        if len(Ts) == 1: grp.append("s_nop 0")
        W += grp
    W.append("s_nop 1")
    for T in range(3): W.append(f"v_mul_f32 v{Ps[T]}, v{vC2r[T]}, v{Pc[T]}")
    for T in range(3): W.append(f"v_fmac_f32_dpp v{Ps[T]}, v{Pc[T]}, v{vC2i[T]} {DPPSW}")
    W += [f"v_mov_b32 v7, v{vAs}", f"v_mov_b32 v8, v{vCm}",
          f"v_and_b32 v{t0}, 15, v{vL}", f"v_lshrrev_b32 v{t1}, 2, v{t0}", f"v_lshlrev_b32 v{t1}, 1, v{t1}", f"v_add_u32 v{t1}, s{sCH}, v{t1}",
          f"v_mul_u32_u24 v{t1}, {HTS}, v{t1}", f"v_and_b32 v{t2}, 3, v{t0}", f"v_lshlrev_b32 v{t2}, 2, v{t2}", f"v_lshrrev_b32 v{t3}, 4, v{vL}",
          f"v_add_u32 v{t2}, v{t2}, v{t3}", f"s_lshl_b32 s{sT0}, s{sRH}, 4", f"v_add_u32 v{t2}, s{sT0}, v{t2}",
          f"v_lshl_add_u32 v{RA}, v{t2}, 3, v{t1}",
          f"s_lshl_b32 s{sT0}, s{sRB}, 1", f"s_add_u32 s{sT0}, s{sT0}, s{sRH}", f"s_lshl_b32 s{sT0}, s{sT0}, 2",
          f"v_add_u32 v{t3}, s{sT0}, v{t3}", f"v_mul_u32_u24 v{t3}, 88, v{t3}", f"s_mul_i32 s{sT0}, s{sCH}, 20",
          f"v_add_u32 v{t3}, s{sT0}, v{t3}", f"v_lshlrev_b32 v{t3}, 10, v{t3}", f"v_lshl_add_u32 v{GA}, v{t0}, 4, v{t3}"]
    sOff = [73, 74, 75, 76, 77]
    for it in range(5):
        W += [f"s_mul_i32 s{sT0}, s{sCG}, 5", f"s_add_u32 s{sT0}, s{sT0}, {it}", f"s_lshr_b32 s{sT1}, s{sT0}, 2", f"s_lshl_b32 s{sT1}, s{sT1}, 10",
              f"s_and_b32 s{sT0}, s{sT0}, 3", f"s_lshl_b32 s{sT0}, s{sT0}, 8", f"s_add_u32 s{sOff[it]}, s{sT0}, s{sT1}"]
    W += [f"s_mul_i32 s{sKH}, s{sW}, 12", f"s_add_u32 s{sKH}, s{sKH}, 40", f"s_lshl_b32 s{sKH}, s{sKH}, 10"]
    NPF = int(OPT.get('npf', 25))
    FBPOS = int(OPT.get('fbpos', 20))
    items = pre[:FBPOS] + [[f"global_load_dword v{FBV}, v{vFl}, s[{P_WS}:{P_WS+1}]{SC}"]] + pre[FBPOS:NPF]
    weave(a, W, items, start=0)
    stp(a, "prefix")
    a(f"s_waitcnt vmcnt({NPF-FBPOS})")
    spin_init(a)
    a.label("L_fbpoll")
    a(f"v_cmp_ne_u32 vcc, s{sNonce}, v{FBV}")
    a("s_nop 4")
    a("s_cbranch_vccz L_fbx")
    spin_guard(a, "L_fbx")
    a(f"global_load_dword v{FBV}, v{vFl}, s[{P_WS}:{P_WS+1}]{SC}")
    a("s_waitcnt vmcnt(0)")
    a("s_branch L_fbpoll")
    a.label("L_fbx")
    stp(a, "flagB seen")
    slots = ["a88", 100, 52, 68, 84]
    def hreg(slot, i):
        sl = slots[slot]
        if isinstance(sl, str): return f"a[{88+4*i}:{91+4*i}]"
        return f"v[{sl+4*i}:{sl+4*i+3}]"
    def hloads(g):
        return [f"buffer_load_dwordx4 {hreg(g % 5, i)}, v{vH+i}, s[{SH}:{SH+3}], s{sKH} offen{SCL}" for i in range(4)]
    early = []
    for g in range(5):
        hl = hloads(g)
        early += [[x] for x in hl[:3]] + [[hl[3], f"s_add_u32 s{sKH}, s{sKH}, 1024"]]
    for it in early[:8]:
        for x in it: a(x)
    early = early[8:]
    spin_init(a)
    a(f"s_branch L_pollc")
    a.label("L_poll")
    spin_guard(a, "L_pollx")
    poll_loads()
    a("s_waitcnt vmcnt(0)")
    a.label("L_pollc")
    a(f"v_mov_b32 v{bad}, 0")
    for (ri, mreg) in ((R+1, vm0), (R+3, vm0), (R+5, vm1), (R+7, vm1), (R+9, vm4)):
        a(f"v_cmp_ne_u32 vcc, s{sNonce}, v{ri}")
        a("s_nop 1")
        a(f"v_cndmask_b32 v{t0}, 0, v{mreg}, vcc")
        a(f"v_or_b32 v{bad}, v{bad}, v{t0}")
    a(f"v_cmp_ne_u32 vcc, 0, v{bad}")
    a("s_nop 4")
    a("s_cbranch_vccnz L_poll")
    a.label("L_pollx")
    for (T, ri) in ((0, R), (1, R+2), (2, R+8)): a(f"v_mul_f32 v{Hp[T]}, v{vW0r[T]}, v{ri}")
    for (T, ri) in ((0, R), (1, R+2), (2, R+8)): a(f"v_fmac_f32_dpp v{Hp[T]}, v{ri}, v{vW0i[T]} {DPPSW}")
    for (T, ri) in ((0, R+4), (1, R+6)): a(f"v_fmac_f32 v{Hp[T]}, v{vW1r[T]}, v{ri}")
    for (T, ri) in ((0, R+4), (1, R+6)): a(f"v_fmac_f32_dpp v{Hp[T]}, v{ri}, v{vW1i[T]} {DPPSW}")
    qreduce(Hp, hx)
    a(f"s_mul_i32 s{sT0}, s{sW}, 320")
    a(f"s_add_u32 s{sT0}, s{sT0}, {MISC}")
    a(f"v_add_u32 v{t0}, s{sT0}, v{vC}")
    a(f"ds_write_b32 v{vRw}, v{Hp[0]} offset:{RWB}")
    a(f"ds_write_b32 v{vRw}, v{Hp[1]} offset:{RWB+64}")
    a(f"ds_write_b32 v{t0}, v{Hp[2]} offset:{RWB+256}")
    stp(a, "poll")
    a("s_waitcnt lgkmcnt(0)")
    a("s_barrier")
    Hw = [X+48, X+49, X+50]
    a(f"s_mul_i32 s{sT0}, s{sCH}, 320")
    a(f"s_add_u32 s{sT0}, s{sT0}, {MISC}")
    a(f"v_add_u32 v{t0}, s{sT0}, v{vAs2}")
    hr = [X+40, X+41, X+42, X+43, X+44, X+45, X+46, X+47]
    a(f"ds_read_b32 v{hr[0]}, v{t0} offset:{RWB}")
    a(f"ds_read_b32 v{hr[1]}, v{t0} offset:{RWB+640}")
    a(f"ds_read_b32 v{hr[2]}, v{t0} offset:{RWB+64}")
    a(f"ds_read_b32 v{hr[3]}, v{t0} offset:{RWB+704}")
    for w in range(4): a(f"ds_read_b32 v{hr[4+w]}, v{vCm2} offset:{RWB+256+320*w}")
    a("s_waitcnt lgkmcnt(0)")
    W = [f"v_add_f32 v{Hw[0]}, v{hr[0]}, v{hr[1]}", f"v_add_f32 v{Hw[1]}, v{hr[2]}, v{hr[3]}", f"v_add_f32 v{hr[4]}, v{hr[4]}, v{hr[5]}",
         f"v_add_f32 v{hr[6]}, v{hr[6]}, v{hr[7]}", f"v_add_f32 v{Hw[2]}, v{hr[4]}, v{hr[6]}"]
    for T in range(3): W.append(f"v_fmac_f32 v{Ps[T]}, v{vHr[T]}, v{Hw[T]}")
    W.append("s_nop 0")
    for T in range(3): W.append(f"v_fmac_f32_dpp v{Ps[T]}, v{Hw[T]}, v{vHi[T]} {DPPSW}")
    cur = list(Ps)
    W.append("s_nop 0")
    for k in range(16):
        Ts = [T for T in range(3) if k < NS[T]]
        for T in Ts: W.append(f"v_fmac_f32 v{U[T]+k}, v{vLr[T]}, v{cur[T]}")
        for T in Ts:
            W.append(f"v_fmac_f32_dpp v{U[T]+k}, v{cur[T]}, v{vLi2[T]} {DPPSW}")
            cur[T] = U[T]+k
    for T in range(3):
        for k in range(NS[T]//2):
            W.append(f"v_cvt_pk_bf16_f32 v{X + 16*T + k}, v{U[T]+2*k}, v{U[T]+2*k+1}")
    W += [f"v_and_b32 v{t0}, 15, v{vL}", f"s_lshl_b32 s{sT0}, s{sCH}, 5", f"v_add_u32 v{t1}, s{sT0}, v{t0}",
          f"v_mul_u32_u24 v{t1}, {HTS}, v{t1}", f"v_lshl_add_u32 v{t1}, v{vSig}, 5, v{t1}",
          f"v_add_u32 v{t0}, 64, v{t0}", f"v_mul_u32_u24 v{t0}, {HTS}, v{t0}", f"v_lshl_add_u32 v{t0}, v{vSig}, 5, v{t0}",
          f"s_lshl_b32 s{sT0}, s{sCH}, 4", f"v_add_u32 v{t0}, s{sT0}, v{t0}"]
    weave(a, W, early, start=6)
    stp(a, "passB")
    a(f"ds_write_b128 v{t1}, v[{X}:{X+3}]")
    a(f"ds_write_b128 v{t1}, v[{X+4}:{X+7}] offset:16")
    a(f"ds_write_b128 v{t1}, v[{X+16}:{X+19}] offset:{16*HTS}")
    a(f"ds_write_b128 v{t1}, v[{X+20}:{X+23}] offset:{16*HTS+16}")
    a(f"ds_write_b128 v{t0}, v[{X+32}:{X+35}]")
    a("s_waitcnt lgkmcnt(0)")
    a("s_barrier")
    DT = 200
    for it in range(5):
        a(f"ds_read_b64_tr_b16 v[{DT+4*it}:{DT+4*it+1}], v{RA} offset:{it*16*HTS}")
        a(f"ds_read_b64_tr_b16 v[{DT+4*it+2}:{DT+4*it+3}], v{RA} offset:{it*16*HTS+8*HTS}")
    PACE = "pace" in FLAGS
    def hA_store(it): return f"buffer_store_dwordx4 v[{DT+4*it}:{DT+4*it+3}], v{GA}, s[{SH}:{SH+3}], s{sOff[it]} offen{SC}"
    stp(a, "hA stored")
    accB = lambda j, i: 120 + (j*4+i)*4
    def accA(j, i):
        t = j*4+i
        return 200 + 4*t if t < 14 else 26 + 4*(t-14)
    def wreg(g, j): b = wbase(g, j); return f"a[{b}:{b+3}]"
    fifo = [("h", g) for g in range(5) for _ in range(4)]
    if not PACE:
        for it in range(5):
            a(f"s_waitcnt lgkmcnt({2*(4-it)})")
            a(hA_store(it)); fifo.append(("st", it))
    def issue(x, tag):
        a(x); fifo.append(tag)
    def wait_for(pred):
        idx = [i for i, tg in enumerate(fifo) if pred(tg)]
        if not idx: return
        n = len(fifo) - 1 - max(idx)
        assert n <= 63, n
        a(f"s_waitcnt vmcnt({n})")
        del fifo[:max(idx)+1]
    sKS, sKS4 = 85, 86
    a(f"s_mul_i32 s{sKS}, s{sCB}, 88")
    a(f"s_mul_i32 s{sT0}, s{sW}, 5")
    a(f"s_add_u32 s{sKS}, s{sKS}, s{sT0}")
    a(f"s_mul_i32 s{sKS}, s{sKS}, 5120")
    a(f"s_add_u32 s{sKS4}, s{sKS}, 4096")
    wq = []
    assert NPF % 5 == 0
    for g in range(7 + NPF//5, 12):
        st_ = wstep(g)
        for j in range(5): wq.append((("wg", g), 0, st_[j], st_[5:] if j == 4 else []))
    for sidx in range(10):
        for j in range(5):
            x = wload(sidx, j).replace(f"s{sKW} offen", f"s{sKS} offen").replace(f"s{sKW4} offen", f"s{sKS4} offen")
            inc = (20-4)*5120 if sidx == 4 else 5120
            wq.append((("w", sidx), sidx, x, [f"s_add_u32 s{sKS}, s{sKS}, {inc}", f"s_add_u32 s{sKS4}, s{sKS4}, {inc}"] if j == 4 else []))
    RATE = int(OPT.get('rate', 3))
    LA, OA = 2, 7
    vG = [12, 14, 16, 22]
    vLW = 25
    XR, GR, DR = 84, 94, 52
    RS = 336; RED = 64*RS + 4*64
    fill = []
    for i in range(5):
        w1, w2, w3 = t0, t1, t3
        fill += [f"v_add_u32 v{w1}, {256*i}, v0", f"v_mul_u32_u24 v{w2}, 3277, v{w1}", f"v_lshrrev_b32 v{w2}, 16, v{w2}",
                 f"v_mul_u32_u24 v{w3}, 20, v{w2}", f"v_sub_u32 v{w3}, v{w1}, v{w3}", f"v_mul_u32_u24 v{LA+i}, {RS}, v{w2}",
                 f"v_lshl_add_u32 v{LA+i}, v{w3}, 4, v{LA+i}", f"v_lshrrev_b32 v{w1}, 4, v{w2}", f"v_lshl_add_u32 v{LA+i}, v{w1}, 6, v{LA+i}",
                 f"s_lshl_b32 s{sT0}, s{sRB2}, 6", f"v_add_u32 v{w2}, s{sT0}, v{w2}",
                 f"v_mul_u32_u24 v{w2}, 640, v{w2}", f"s_mul_i32 s{sT1}, s{sCB}, 80", f"v_lshl_add_u32 v{w3}, v{w3}, 2, s{sT1}",
                 f"v_add_u32 v{w2}, v{w2}, v{w3}", f"v_lshlrev_b32 v{OA+i}, 2, v{w2}"]
    fill += [f"v_and_b32 v{t0}, 15, v{vL}", f"v_lshrrev_b32 v{t1}, 2, v{t0}", f"v_lshlrev_b32 v{t1}, 4, v{t1}", f"v_and_b32 v{t0}, 3, v{t0}",
             f"v_add_u32 v{t0}, v{t0}, v{t1}", f"s_lshl_b32 s{sT0}, s{sRB2}, 6", f"v_add_u32 v{t1}, s{sT0}, v{t0}",
             f"v_lshlrev_b32 v{t1}, 2, v{t1}", f"v_add_u32 v50, {WS_G}, v{t1}",
             f"v_lshrrev_b32 v{t3}, 4, v{t0}", f"v_mul_u32_u24 v{t0}, {RS}, v{t0}", f"v_lshl_add_u32 v{t0}, v{t3}, 6, v{t0}",
             f"v_lshrrev_b32 v{t3}, 4, v{vL}", f"v_lshl_add_u32 v{t0}, v{t3}, 4, v{t0}",
             f"s_mul_i32 s{sT0}, s{sW}, {RED}", f"v_add_u32 v{vLW}, s{sT0}, v{t0}"]
    stp(a, "K2 setup")
    fill2 = []
    for i in range(5):
        fill2 += [f"v_lshrrev_b32 v{t0}, 1, v{OA+i}", (f"global_load_dwordx2 v[{XR+2*i}:{XR+2*i+1}], v{t0}, s[{P_X}:{P_X+1}]", ("f", 0))]
    fill2 += [f"s_lshl_b32 s{sT0}, s{sRB2}, 6", f"s_mul_i32 s{sT1}, s{sCB}, 160"]
    for i in range(5):
        fill2 += [f"v_add_u32 v{t4}, {256*i}, v0", f"v_mul_u32_u24 v{t1}, 3277, v{t4}", f"v_lshrrev_b32 v{t1}, 16, v{t1}", f"v_add_u32 v{t0}, s{sT0}, v{t1}",
                  f"v_lshlrev_b32 v{t0}, 2, v{t0}", f"v_add_u32 v{t0}, {WS_G}, v{t0}",
                  (f"global_load_dword v{GR+i}, v{t0}, s[{P_WS}:{P_WS+1}]{SC}", ("f", 0)),
                  f"v_mul_u32_u24 v{t1}, 20, v{t1}", f"v_sub_u32 v{t1}, v{t4}, v{t1}", f"v_lshlrev_b32 v{t1}, 3, v{t1}",
                  f"v_add_u32 v{t1}, s{sT1}, v{t1}", (f"global_load_dwordx2 v[{DR+2*i}:{DR+2*i+1}], v{t1}, s[{P_DSK}:{P_DSK+1}]", ("f", 0))]
    for g in range(22):
        glu = g < 12
        slot = g % 5
        wg = g if glu else g-12
        wait_for(lambda tg: tg == ("h", g) or (not glu and tg == ("w", g-12)) or (glu and tg == ("wg", g)))
        if g == 0: stp(a, "h0 landed")
        if "kstamp" in FLAGS:
            if g > 0:
                a("s_waitcnt lgkmcnt(0)"); a(f"v_writelane_b32 v23, s38, {g-1}")
            a("s_memtime s[38:39]")
        if g == 0 and PACE:
            a("s_waitcnt lgkmcnt(0)")
        if g == (6 if PACE else 3):
            wait_for(lambda tg: tg[0] == "st")
            a(f"v_add_u32 v{t0}, {WS_FA-WS_FB}, v{vFo}")
            a(f"v_mov_b32 v{t1}, s{sNonce}")
            a(f"s_mov_b64 exec, 1")
            issue(f"global_store_dword v{t0}, v{t1}, s[{P_WS}:{P_WS+1}]{SC}", ("fa", 0))
            a(f"s_mov_b64 exec, -1")
        if g == (7 if PACE else 6):
            a(f"v_add_u32 v{vFl}, {WS_FA-WS_FB}, v{vFl}")
            issue(f"global_load_dword v{t2}, v{vFl}, s[{P_WS}:{P_WS+1}]{SC}", ("fp", 0))
        if g == 15:
            a("s_barrier")
            for i in range(4): issue(f"global_load_dword v{vG[i]}, v50, s[{P_WS}:{P_WS+1}] offset:{16*i}{SC}", ("g", 0))
        mf = []
        for j in range(5):
            for i in range(4):
                d = accB(j, i) if glu else accA(j, i)
                c = "0" if g in (0, 12) else f"v[{d}:{d+3}]"
                mf.append(f"v_mfma_f32_16x16x32_bf16 v[{d}:{d+3}], {wreg(wg, j)}, {hreg(slot, i)}, {c}")
        nw = 0
        for idx, x in enumerate(mf):
            a(x)
            if idx % 4 == 1 and nw < RATE and wq and wq[0][1] < g:
                tg, e_, ins, post = wq.pop(0); issue(ins, tg); nw += 1
                for y in post: a(y)
            elif g >= 8 and fill and idx % 4 != 1: a(fill.pop(0))
            elif g >= 20 and fill2:
                for _ in range(2):
                    if fill2:
                        it_ = fill2.pop(0)
                        if isinstance(it_, str): a(it_)
                        else: issue(it_[0], it_[1])
        while nw < RATE and wq and wq[0][1] <= g:
            tg, e_, ins, post = wq.pop(0); issue(ins, tg); nw += 1
            for y in post: a(y)
        if g < 5 and PACE: issue(hA_store(g), ("st", g))
        for gn in range(22):
            la = 5 if gn < 12 else ((4 if gn < 17 else 3) if "la5" not in FLAGS else 5)
            if gn >= 5 and gn - la == g:
                if gn == 12:
                    wait_for(lambda tg: tg[0] == "fp")
                    spin_init(a)
                    a.label("L_fachk")
                    a(f"v_cmp_ne_u32 vcc, s{sNonce}, v{t2}")
                    a("s_nop 4")
                    a("s_cbranch_vccz L_faok")
                    spin_guard(a, "L_faok")
                    a(f"global_load_dword v{t2}, v{vFl}, s[{P_WS}:{P_WS+1}]{SC}")
                    a("s_waitcnt vmcnt(0)")
                    a("s_branch L_fachk")
                    a.label("L_faok")
                    a(f"s_mul_i32 s{sKH}, s{sW}, {5*1024}")
                elif gn == 17: a(f"s_add_u32 s{sKH}, s{sKH}, {15*1024}")
                for x in hloads(gn): issue(x, ("h", gn))
                a(f"s_add_u32 s{sKH}, s{sKH}, 1024")
    assert not fill and not wq and not fill2, (len(fill), len(wq), len(fill2))
    if "kstamp" in FLAGS:
        a("s_waitcnt lgkmcnt(0)"); a(f"v_writelane_b32 v23, s38, 21")
        a("s_memtime s[38:39]"); a("s_waitcnt lgkmcnt(0)"); a(f"v_writelane_b32 v23, s38, 22")
        a(f"s_lshl_b32 s{sT0}, s2, 2"); a(f"s_add_u32 s{sT0}, s{sT0}, s{sW}"); a(f"s_lshl_b32 s{sT0}, s{sT0}, 8")
        a(f"s_add_u32 s{sT0}, s{sT0}, {WS_STAMP + 0x80000}")
        a(f"v_lshl_add_u32 v{t0}, v{vL}, 2, s{sT0}")
        a(f"global_store_dword v{t0}, v23, s[{P_WS}:{P_WS+1}]")
    stp(a, "K2 loop")
    wait_for(lambda tg: tg[0] == "g")
    for j in range(5):
        for i in range(4):
            A_r, B_r = accA(j, i), accB(j, i)
            for h in (0, 2):
                a(f"v_pk_add_f32 v[{A_r+h}:{A_r+h+1}], v[{A_r+h}:{A_r+h+1}], v[{B_r+h}:{B_r+h+1}] neg_lo:[0,1] neg_hi:[0,1]")
            for h in (0, 2):
                a(f"v_pk_fma_f32 v[{B_r+h}:{B_r+h+1}], v[{vG[i]}:{vG[i]+1}], v[{A_r+h}:{A_r+h+1}], v[{B_r+h}:{B_r+h+1}] op_sel_hi:[0,1,1]")
            a(f"ds_write_b128 v{vLW}, v[{B_r}:{B_r+3}] offset:{i*4*RS + 64*j}")
    a("s_waitcnt lgkmcnt(0)")
    a("s_barrier")
    stp(a, "red written")
    for i in range(5):
        b = 120 + 16*i
        for w in range(4):
            a(f"ds_read_b128 v[{b+4*w}:{b+4*w+3}], v{LA+i} offset:{w*RED}")
    a("s_waitcnt vmcnt(0)")
    for i in range(5):
        b = 120 + 16*i
        a(f"s_waitcnt lgkmcnt({min(15,4*(4-i))})")
        a(f"v_pk_add_f32 v[{b}:{b+1}], v[{b}:{b+1}], v[{b+4}:{b+5}]")
        a(f"v_pk_add_f32 v[{b+2}:{b+3}], v[{b+2}:{b+3}], v[{b+6}:{b+7}]")
        a(f"v_pk_add_f32 v[{b+8}:{b+9}], v[{b+8}:{b+9}], v[{b+12}:{b+13}]")
        a(f"v_pk_add_f32 v[{b+10}:{b+11}], v[{b+10}:{b+11}], v[{b+14}:{b+15}]")
        a(f"v_pk_add_f32 v[{b}:{b+1}], v[{b}:{b+1}], v[{b+8}:{b+9}]")
        a(f"v_pk_add_f32 v[{b+2}:{b+3}], v[{b+2}:{b+3}], v[{b+10}:{b+11}]")
        x0, d0_ = XR+2*i, DR+2*i
        for h in range(2):
            a(f"v_lshlrev_b32 v{t1}, 16, v{x0+h}")
            a(f"v_and_b32 v{t2}, 0xffff0000, v{x0+h}")
            a(f"v_lshlrev_b32 v{t3}, 16, v{d0_+h}")
            a(f"v_and_b32 v{t4}, 0xffff0000, v{d0_+h}")
            a(f"v_mul_f32 v{t1}, v{t1}, v{t3}")
            a(f"v_mul_f32 v{t2}, v{t2}, v{t4}")
            a(f"v_fmac_f32 v{b+2*h}, v{GR+i}, v{t1}")
            a(f"v_fmac_f32 v{b+2*h+1}, v{GR+i}, v{t2}")
        a(f"global_store_dwordx4 v{OA+i}, v[{b}:{b+3}], s[{P_OUT}:{P_OUT+1}]" + ("" if "outplain" in FLAGS else " nt"))
    stp(a, "out stored")
    if LSTAMP:
        pass
    if "dbgt" in FLAGS:
        a("s_waitcnt vmcnt(0)")
        a("s_memrealtime s[40:41]"); a("s_memtime s[42:43]")
        a("s_waitcnt lgkmcnt(0)")
        a(f"s_cmp_lg_u32 s{sW}, 0")
        a("s_cbranch_scc1 L_end")
        a("s_not_b32 s44, s101")
        a("v_mov_b32 v2, 0"); a("v_mov_b32 v3, s44"); a("v_mov_b32 v4, s40")
        a("s_mov_b64 exec, 1")
        a(f"global_atomic_umax v2, v3, s[{P_DBG}:{P_DBG+1}] offset:16 sc1")
        a(f"global_atomic_umax v2, v4, s[{P_DBG}:{P_DBG+1}] offset:20 sc1")
        a("s_cmp_lg_u32 s2, 0")
        a("s_cbranch_scc1 L_end")
        a("s_sub_u32 s42, s42, s96"); a("s_sub_u32 s40, s40, s101")
        a("v_mov_b32 v3, s42"); a("v_mov_b32 v4, s40")
        a(f"global_store_dword v2, v3, s[{P_DBG}:{P_DBG+1}] offset:24")
        a(f"global_store_dword v2, v4, s[{P_DBG}:{P_DBG+1}] offset:28")
    stp.dump(a, sW, sT0, P_WS, WS_STAMP)
    a.label("L_end")
    a("s_endpgm")
    a.label("L_codeend")
    return a.text()

HEADER = open("gated_mix__ssm_conv_s5__glu_gated_bilinear__prompt.s.ref").read().split("; Override launch")[0]
def main():
    out = HEADER
    out += "; Override launch geometry by editing the next line. Harness parses it; keep it on one line.\n"
    out += "; @launch grid=(256,1,1) block=(256,1,1) lds=163840\n"
    out += '.amdgcn_target "amdgcn-amd-amdhsa--gfx950"\n.text\n'
    out += f".globl {KNAME}\n.p2align 8\n.type {KNAME},@function\n" + gen()
    out += f""".section .rodata,"a"
.p2align 6
.amdhsa_kernel {KNAME}
  .amdhsa_next_free_vgpr 512
  .amdhsa_next_free_sgpr 102
  .amdhsa_accum_offset 256
  .amdhsa_group_segment_fixed_size 0
  .amdhsa_kernarg_size 136
  .amdhsa_user_sgpr_count 2
  .amdhsa_user_sgpr_kernarg_segment_ptr 1
  .amdhsa_system_sgpr_workgroup_id_x 1
  .amdhsa_float_denorm_mode_32 3
.end_amdhsa_kernel
"""
    path = [x for x in sys.argv[1:] if not x.startswith("--")][0]
    open(path, "w").write(out)
    json.dump([[d[i] for i in sorted(d)] for d in NAMES], open(path + ".names", "w"))
main()
```

```python
import sys, json
from asmlib import *

FLAGS = set(x[2:] for x in sys.argv[1:] if x.startswith("--"))
OPT = dict(x.split("=") for x in FLAGS if "=" in x)
STAMP = "stamp" in FLAGS
NAMES = []
KNAME = "gated_mix__ssm_conv_s5__glu_gated_bilinear__prompt_kernel"

WS_H   = 0
WS_G   = 0xB00000
WS_S   = 0xB10000
WS_FB  = 0xB40000
WS_FA  = 0xB42000
WS_PF  = 0xB44000
WS_W2  = 0xC00000
W2_SIZE = 8*88*5*1024
WS_STAMP = 0x1000000
LOG2E = 0x3fb8aa3b
INV2PI = 0x3e22f983
SC = "" if "nosc" in FLAGS else " sc1"
SCL = "" if ("nosc" in FLAGS or "noscl" in FLAGS) else " sc1"
LSTAMP = "lstamp" in FLAGS

def srd(a, d, base, size, add=0):
    o = []
    if add == 0:
        o += [f"s_mov_b32 s{d}, s{base}", f"s_mov_b32 s{d+1}, s{base+1}"]
    elif add > 0:
        o += [f"s_add_u32 s{d}, s{base}, {add}", f"s_addc_u32 s{d+1}, s{base+1}, 0"]
    else:
        o += [f"s_sub_u32 s{d}, s{base}, {-add}", f"s_subb_u32 s{d+1}, s{base+1}, 0"]
    o += [f"s_mov_b32 s{d+2}, {size}", f"s_mov_b32 s{d+3}, 0x00020000"]
    if a is None: return o
    for x in o: a(x)

class Stamper:
    def __init__(self, store):
        self.store = store; self.n = 0; self.tmp = [98, 100]; self.names = {}
        NAMES.append(self.names)
    def __call__(self, a, name=""):
        if not STAMP: return
        if self.n > 0:
            a(f"s_mov_b32 s{self.store[self.n-1]}, s{self.tmp[(self.n-1)&1]}")
        assert self.n < len(self.store), "too many stamps"
        a(f"s_memtime s[{self.tmp[self.n&1]}:{self.tmp[self.n&1]+1}]")
        self.names[self.n] = name
        self.n += 1
    def dump(self, a, sW, sT0, P_WS, base):
        if not STAMP: return
        a("s_waitcnt vmcnt(0) lgkmcnt(0)")
        self(a, "end")
        a("s_waitcnt lgkmcnt(0)")
        a(f"s_mov_b32 s{self.store[self.n-1]}, s{self.tmp[(self.n-1)&1]}")
        a(f"s_lshl_b32 s{sT0}, s2, 2")
        a(f"s_add_u32 s{sT0}, s{sT0}, s{sW}")
        a(f"s_lshl_b32 s{sT0}, s{sT0}, 7")
        a(f"s_add_u32 s{sT0}, s{sT0}, {base}")
        a(f"v_mov_b32 v2, s{sT0}")
        if "dbgstamp" in FLAGS:
            keep = [i for i in range(1, self.n) if self.names[i] not in ("small issued", "glu1", "pub", "flagB", "flagB seen", "out stored")][:15]
            a("s_cmp_lg_u32 s2, 101")
            a("s_cbranch_scc1 L_end")
            a(f"s_cmp_lg_u32 s{sW}, 0")
            a("s_cbranch_scc1 L_end")
            a("v_mov_b32 v2, 0")
            for k, i in enumerate(keep):
                a(f"s_sub_u32 s40, s{self.store[i]}, s{self.store[0]}")
                a("v_mov_b32 v3, s40")
                a(f"global_store_dword v2, v3, s[34:35] offset:{4*(k+1)}")
            print("debug stamps:", [self.names[i] for i in keep])
            return
        for i in range(self.n):
            a(f"v_mov_b32 v3, s{self.store[i]}")
            a(f"global_store_dword v2, v3, s[{P_WS}:{P_WS+1}] offset:{4*i}")

def rr(*streams):
    out = []
    n = max(len(s) for s in streams)
    for i in range(n):
        for s in streams:
            if i < len(s): out.append(s[i])
    return out

def weave(a, work, mem, start=0, every=None):
    n = len(work); m = len(mem)
    if m == 0: pos = []
    elif every is None: pos = [start + int((n - start) * i / m) for i in range(m)]
    else: pos = [start + every*i for i in range(m)]
    mi = 0
    def emit(it):
        if isinstance(it, str): a(it)
        else:
            for x in it: a(x)
    for i, w in enumerate(work):
        while mi < m and pos[mi] <= i:
            emit(mem[mi]); mi += 1
        emit(w)
    while mi < m:
        emit(mem[mi]); mi += 1

SPIN_MAX = 100000
def spin_init(a): a("s_mov_b32 s95, 0")
def spin_guard(a, out_label):
    a("s_add_u32 s95, s95, 1")
    a(f"s_cmp_gt_u32 s95, {SPIN_MAX}")
    a(f"s_cbranch_scc1 {out_label}")

DPPSW = "quad_perm:[1,0,3,2] row_mask:0xf bank_mask:0xf"
P_X, P_LRE, P_LIM, P_BRE, P_BIM, P_CRE, P_CIM, P_LDT = 4,6,8,10,12,14,16,18
P_DSK, P_BX, P_WG, P_WU = 20,22,24,26
P_WD, P_GW, P_OUT, P_DBG = 28,30,32,34
P_WS = 36

def gen():
    a = Asm()
    stp = Stamper([96,97,22,23,6,7,8,9,18,19,10,11,12,13,24,25,26,27,82,83,84,40,41,42,43,73,74])
    SX, SG, SU, SB0, SB1, SB2, SM = 40,44,48,52,56,60,64
    sEX = 38
    sW, sRH, sCH, sRB, sCG = 68,69,70,71,72
    sDB, sCur, sD, sC3, sStage = 73,74,75,76,77
    sKX, sKG, sKU, sKB = 78,79,80,81
    sOX, sOG, sOU, sOB, sOB2 = 82,83,84,85,86
    sT0, sT1, sT2 = 87,88,89
    sF = 87
    sBlk, sRB2, sCB = 90, 91, 92
    sT3 = 93
    sNonce = 3
    vL = 1
    vDX, vDW, vDB = 2, 6, 9
    vX0, vX1, vWa, vWb, vWc, vB0, vB1 = 12,13,14,15,16,17,18
    t0, t1, t2, t3, t4 = 19,20,21,22,23
    vA  = [24,25,26]; vBx = [27,28,29]; vLRE = [30,31,32]; vLIM = [33,34,35]
    vLr = [36,37,38]; vLi = [39,40,41]; vWSr = [42,43,44]; vWSi = [45,46,47]
    vSgn, vNon, vSig, vWp = 48, 49, 50, 51
    vPF = 52
    SCR = 52
    vC, vAe, vAe4, vRw = 90, 91, 92, 93
    pa = [94, 95, 96]
    GLD = 56
    vGst, vGv = 71, 72
    RA, GA = 2, 3
    Ps = [4, 5, 6]
    vAs, vCm = 97, 98
    vAs2, vCm2 = 7, 8
    vH = 116
    ACC = 120
    BUF = 51200
    RX, RG, RU, RB = 0, 16384, 28672, 40960
    MISC = 3*BUF
    SWB, EF, E4, RWB = 0, 1280, 5120, 7104
    EF0 = EF + 7*256; E40 = E4 + 15*64
    HTS = 272
    def acc(n, i): return ACC + n*16 + 4*i
    SA, SBt, S4 = ACC+96, ACC+112, ACC+128
    CL = 52
    PK = 100
    vPWs, vPCs, vPWd, vPCd, vPtr = 61, 63, 64, 66, 68
    TP = 69

    a.label(KNAME)
    a(f"s_cmp_ge_u32 s2, 256")
    a(f"s_cbranch_scc1 L_end")
    if "nocodepf" not in FLAGS:
        a("s_getpc_b64 s[40:41]")
        a.label("L_pc")
        a("v_lshlrev_b32 v2, 2, v0")
        a("s_lshr_b32 s42, s2, 3")
        a("s_lshl_b32 s42, s42, 10")
        a("v_add_u32 v2, s42, v2")
        a("v_min_u32 v2, L_codeend-L_pc-4, v2")
        a("v_mov_b32 v3, s41")
        a("v_add_co_u32 v2, vcc, s40, v2")
        a("v_addc_co_u32 v3, vcc, 0, v3, vcc")
        a("global_load_dword v99, v[2:3], off")
    a(f"s_load_dwordx16 s[4:19], s[0:1], 0")
    a(f"s_load_dwordx8 s[20:27], s[0:1], 64")
    a(f"s_load_dwordx8 s[28:35], s[0:1], 96")
    a(f"s_load_dwordx2 s[36:37], s[0:1], 128")
    a(f"s_memrealtime s[{sEX}:{sEX+1}]")
    if "dbgt" in FLAGS: a("s_memtime s[96:97]")
    stp(a, "s0")
    a(f"v_lshrrev_b32 v{t0}, 6, v0")
    a(f"v_and_b32 v{vL}, 63, v0")
    a(f"s_and_b32 s{sT0}, s2, 1")
    a(f"v_readfirstlane_b32 s{sW}, v{t0}")
    a(f"s_lshl_b32 s{sT0}, s{sT0}, 3")
    a(f"s_lshr_b32 s{sT1}, s2, 3")
    a(f"s_and_b32 s{sRB}, s{sT1}, 7")
    a(f"s_add_u32 s{sRB}, s{sRB}, s{sT0}")
    a(f"s_lshr_b32 s{sT0}, s2, 1")
    a(f"s_and_b32 s{sT0}, s{sT0}, 3")
    a(f"s_lshl_b32 s{sT2}, s{sT0}, 2")
    a(f"s_lshr_b32 s{sT3}, s2, 6")
    a(f"s_add_u32 s{sCG}, s{sT2}, s{sT3}")
    a(f"s_lshl_b32 s{sT0}, s{sT0}, 3")
    a(f"s_and_b32 s{sT1}, s{sT1}, 7")
    a(f"s_add_u32 s{sRB2}, s{sT0}, s{sT1}")
    a(f"s_and_b32 s{sT0}, s2, 1")
    a(f"s_lshl_b32 s{sT0}, s{sT0}, 2")
    a(f"s_add_u32 s{sCB}, s{sT0}, s{sT3}")
    a(f"s_lshr_b32 s{sRH}, s{sW}, 1")
    a(f"s_and_b32 s{sCH}, s{sW}, 1")
    a(f"v_lshrrev_b32 v{t0}, 3, v{vL}")
    a(f"v_and_b32 v{t1}, 2, v{t0}")
    a(f"s_lshl_b32 s{sT0}, s{sCH}, 2")
    a(f"v_or_b32 v{t1}, s{sT0}, v{t1}")
    a(f"v_and_b32 v{t2}, 7, v{vL}")
    a(f"v_xor_b32 v{t1}, v{t1}, v{t2}")
    a(f"s_lshl_b32 s{sT0}, s{sRB}, 7")
    a(f"s_lshl_b32 s{sT1}, s{sW}, 5")
    a(f"s_add_u32 s{sT0}, s{sT0}, s{sT1}")
    a(f"v_add_u32 v{t0}, s{sT0}, v{t0}")
    a(f"v_mul_u32_u24 v{t0}, 1280, v{t0}")
    a(f"v_lshl_add_u32 v{vDX}, v{t1}, 4, v{t0}")
    for i in range(1,4):
        a(f"v_add_u32 v{vDX+i}, {9216*i}, v{vDX}")
    a(f"s_lshl_b32 s{sOX}, s{sW}, 12")
    a(f"s_mul_i32 s{sOG}, s{sW}, 3072")
    a(f"s_add_u32 s{sOU}, s{sOG}, {RU}")
    a(f"s_add_u32 s{sOG}, s{sOG}, {RG}")
    if "norot" in FLAGS:
        a(f"s_mov_b32 s{sKX}, 0")
    elif "rot8" in FLAGS:
        a(f"s_and_b32 s{sT0}, s{sRB}, 7")
        a(f"s_mul_i32 s{sT1}, s{sT0}, 11")
        a(f"s_lshr_b32 s{sT1}, s{sT1}, 3")
        a(f"s_and_b32 s{sT0}, s{sCG}, 3")
        a(f"s_mul_i32 s{sT0}, s{sT0}, 11")
        a(f"s_lshr_b32 s{sT0}, s{sT0}, 2")
        a(f"s_add_u32 s{sT0}, s{sT0}, s{sT1}")
        a(f"s_cmp_ge_u32 s{sT0}, 10")
        a(f"s_cselect_b32 s{sT1}, 10, 0")
        a(f"s_sub_u32 s{sT0}, s{sT0}, s{sT1}")
        a(f"s_lshl_b32 s{sKX}, s{sT0}, 7")
    else:
        a(f"s_and_b32 s{sT0}, s{sRB}, 7")
        a(f"s_and_b32 s{sT1}, s{sCG}, 3")
        a(f"s_add_u32 s{sT0}, s{sT0}, s{sT1}")
        a(f"s_cmp_ge_u32 s{sT0}, 5")
        a(f"s_cselect_b32 s{sT1}, 5, 0")
        a(f"s_sub_u32 s{sT0}, s{sT0}, s{sT1}")
        a(f"s_cmp_ge_u32 s{sT0}, 5")
        a(f"s_cselect_b32 s{sT1}, 5, 0")
        a(f"s_sub_u32 s{sT0}, s{sT0}, s{sT1}")
        a(f"s_lshl_b32 s{sKX}, s{sT0}, 8")
    a(f"s_mul_i32 s{sKG}, s{sKX}, 1536")
    a(f"s_mov_b32 s{sKU}, s{sKG}")
    a(f"s_mov_b32 s{sKB}, s{sKX}")
    def advk(kx, kw):
        return [[f"s_add_u32 s{kx}, s{kx}, 128"], [f"s_cmp_eq_u32 s{kx}, 1280", f"s_cselect_b32 s{kx}, 0, s{kx}"], [f"s_mul_i32 s{kw}, s{kx}, 1536"]]
    a("s_waitcnt lgkmcnt(0)")
    a(f"s_or_b32 s{sT0}, s2, s{sW}")
    a(f"s_cmp_lg_u32 s{sT0}, 0")
    a(f"s_cbranch_scc1 L_no_nonce")
    a(f"s_or_b32 s{sT0}, s{sEX}, 1")
    a(f"v_mov_b32 v{t0}, s{sT0}")
    a(f"v_mov_b32 v{t1}, 0")
    a(f"s_mov_b64 exec, 1")
    a(f"global_store_dword v{t1}, v{t0}, s[{P_DBG}:{P_DBG+1}]{SC}")
    a(f"s_mov_b64 exec, -1")
    a.label("L_no_nonce")
    if "dbgt" in FLAGS: a(f"s_mov_b32 s101, s{sEX}")
    srd(a, SX, P_X, 2621440)
    def dma(vo, S, so, off):
        o = f" offset:{off}" if off else ""
        return f"buffer_load_dwordx4 v{vo}, s[{S}:{S+3}], s{so} offen{o} lds"
    def dgrp(base_expr, items):
        g = [[f"s_add_u32 m0, {base_expr}", "s_nop 0", items[0]]]
        g += [[x] for x in items[1:]]
        return g
    def stage_x(b):  return dgrp(f"s{sOX}, {b}", [dma(vDX+i, SX, sKX, 1024*i) for i in range(4)])
    def stage_g(b):  return dgrp(f"s{sOG}, {b}", [dma(vDW+i, SG, sKG, 1024*i) for i in range(3)])
    def stage_u(b):  return dgrp(f"s{sOU}, {b}", [dma(vDW+i, SU, sKU, 1024*i) for i in range(3)])
    def stage_b(b):  return dgrp(f"s{sOB}, {b}", [dma(vDB, SB0, sKB, 0), dma(vDB+1, SB1, sKB, 1024)]) + dgrp(f"s{sOB2}, {b}", [dma(vDB+2, SB2, sKB, 0)])
    wW = [f"s_mul_i32 s{sT0}, s{sW}, 192", f"s_mul_i32 s{sT1}, s{sCG}, 192"]
    for i in range(3):
        wW += [f"v_add_u32 v{t0}, s{sT0}, v{vL}"]
        if i: wW += [f"v_add_u32 v{t0}, {64*i}, v{t0}"]
        wW += [f"v_mul_u32_u24 v{t1}, 43691, v{t0}", f"v_lshrrev_b32 v{t1}, 19, v{t1}", f"v_mul_u32_u24 v{t2}, 12, v{t1}",
               f"v_sub_u32 v{t2}, v{t0}, v{t2}", f"v_lshrrev_b32 v{t3}, 2, v{t1}", f"v_and_b32 v{t3}, 2, v{t3}",
               f"v_xor_b32 v{t2}, v{t2}, v{t3}", f"v_mul_u32_u24 v{t1}, 3072, v{t1}", f"v_lshl_add_u32 v{t1}, v{t2}, 4, v{t1}",
               f"v_add_u32 v{vDW+i}, s{sT1}, v{t1}"]
        if i: wW += [f"v_subrev_u32 v{vDW+i}, {1024*i}, v{vDW+i}"]
    wW += srd(None, SG, P_WG, 1966080) + srd(None, SU, P_WU, 1966080)
    weave(a, wW, stage_x(0), start=0)
    wB = [f"s_mul_i32 s{sT3}, s{sCG}, 40", f"s_mul_i32 s{sT2}, s{sW}, 3",
          [f"s_cmp_eq_u32 s{sW}, 3", f"s_cselect_b32 s{sT2}, 8, s{sT2}"],
          f"s_add_u32 s{sD}, s{sT2}, 2",
          [f"s_cmp_ge_u32 s{sW}, 2", f"s_cselect_b32 s{sT0}, 1, 0"],
          f"s_sub_u32 s{sD}, s{sD}, s{sT0}",
          f"s_lshl_b32 s{sOB}, s{sT2}, 10", f"s_add_u32 s{sOB}, s{sOB}, {RB}",
          f"s_lshl_b32 s{sOB2}, s{sD}, 10", f"s_add_u32 s{sOB2}, s{sOB2}, {RB}",
          f"v_lshrrev_b32 v{t3}, 4, v{vL}", f"v_lshlrev_b32 v{t3}, 1, v{t3}", f"v_and_b32 v{t4}, 7, v{vL}"]
    for i in range(3):
        wB += [f"s_mov_b32 s{sT0}, s{sT2}" if i == 0 else (f"s_add_u32 s{sT0}, s{sT2}, 1" if i == 1 else f"s_mov_b32 s{sT0}, s{sD}")]
        wB += [[f"s_cmp_ge_u32 s{sT0}, 5", f"s_cselect_b32 s{sT1}, 1, 0", f"s_cselect_b32 s{sC3}, 5, 0"],
               f"s_sub_u32 s{sT0}, s{sT0}, s{sC3}", f"s_lshl_b32 s{sT0}, s{sT0}, 3", f"s_add_u32 s{sT0}, s{sT0}, s{sT3}",
               f"v_lshrrev_b32 v{t0}, 3, v{vL}", f"v_add_u32 v{t0}, s{sT0}, v{t0}", f"v_mul_u32_u24 v{t0}, 1280, v{t0}",
               f"v_add_u32 v{t1}, s{sT1}, v{t3}", f"v_xor_b32 v{t1}, v{t1}, v{t4}", f"v_lshl_add_u32 v{t0}, v{t1}, 4, v{t0}",
               f"v_add_u32 v{vDB+i}, {4096 - (1024*i if i < 2 else 0)}, v{t0}"]
    for i, S in enumerate([SB0, SB1, SB2]):
        wB += [[f"s_cmp_ge_u32 s{sW}, {2 if i < 2 else 1}", f"s_cselect_b32 s{S}, s{P_BIM}, s{P_BRE}", f"s_cselect_b32 s{S+1}, s{P_BIM+1}, s{P_BRE+1}"],
               [f"s_sub_u32 s{S}, s{S}, 4096", f"s_subb_u32 s{S+1}, s{S+1}, 0"],
               f"s_mov_b32 s{S+2}, {819200+4096}", f"s_mov_b32 s{S+3}, 0x00020000"]
    weave(a, wB, stage_g(0) + stage_u(0), start=0)
    c1, c2 = TP, TP+1
    wC = [f"v_and_b32 v{t0}, 15, v{vL}", f"v_lshrrev_b32 v{t0}, 1, v{t0}", f"s_mul_i32 s{sT0}, s{sCG}, 40",
          f"s_lshl_b32 s{sT1}, s{sCH}, 4", f"s_add_u32 s{sT1}, s{sT1}, s{sT0}", f"v_add_u32 v{c1}, s{sT1}, v{t0}",
          f"v_lshlrev_b32 v{c1}, 1, v{c1}", f"s_add_u32 s{sT0}, s{sT0}, 32", f"v_add_u32 v{c2}, s{sT0}, v{t0}",
          f"v_lshlrev_b32 v{c2}, 1, v{c2}"]
    wC += [f"s_mul_i32 s{sT0}, s2, 52429", f"s_lshr_b32 s{sT0}, s{sT0}, 18", f"s_mul_i32 s{sT1}, s{sT0}, 5", f"s_sub_u32 s{sT1}, s2, s{sT1}",
           f"v_lshrrev_b32 v{t0}, 2, v{vL}", f"s_lshl_b32 s{sT2}, s{sT0}, 5", f"v_add_u32 v{t0}, s{sT2}, v{t0}",
           f"v_mul_u32_u24 v{t0}, 1280, v{t0}", f"v_and_b32 v{t1}, 3, v{vL}", f"v_lshl_add_u32 v{t0}, v{t1}, 4, v{t0}",
           f"s_lshl_b32 s{sT2}, s{sT1}, 8", f"v_add_u32 v{t0}, s{sT2}, v{t0}", f"s_lshl_b32 s{sT2}, s{sW}, 6",
           f"v_add_u32 v{vPWs}, s{sT2}, v{t0}", f"v_add_u32 v{vPWs+1}, {16*1280-1024}, v{vPWs}"]
    for k in range(2):
        wC += [f"s_lshl_b32 s{sT2}, s{sT1}, 3", f"s_lshl_b32 s{sT3}, s{sW}, 1", f"s_add_u32 s{sT2}, s{sT2}, s{sT3}"]
        if k: wC += [f"s_add_u32 s{sT2}, s{sT2}, 1"]
        wC += [f"s_mul_i32 s{sT3}, s{sT2}, 52429", f"s_lshr_b32 s{sT3}, s{sT3}, 18", f"s_mul_i32 s{sD}, s{sT3}, 5",
               f"s_sub_u32 s{sT2}, s{sT2}, s{sD}", f"s_mul_i32 s{sT3}, s{sT3}, 88", f"s_add_u32 s{sT3}, s{sT3}, s{sT0}",
               f"s_add_u32 s{sT3}, s{sT3}, 40", f"s_mul_i32 s{sT3}, s{sT3}, 5", f"s_add_u32 s{sT3}, s{sT3}, s{sT2}",
               f"s_lshl_b32 s{sT3}, s{sT3}, 10", f"s_add_u32 s{sT3}, s{sT3}, {WS_W2}",
               f"v_lshlrev_b32 v{vPWd+k}, 4, v{vL}", f"v_add_u32 v{vPWd+k}, s{sT3}, v{vPWd+k}"]
    wC += [f"s_lshl_b32 s{sT0}, s2, 3", f"s_lshl_b32 s{sT1}, s{sW}, 1", f"s_add_u32 s{sT0}, s{sT0}, s{sT1}",
           f"s_mul_i32 s{sT1}, s{sT0}, 52429", f"s_lshr_b32 s{sT1}, s{sT1}, 21", f"s_mul_i32 s{sT2}, s{sT1}, 40",
           f"s_sub_u32 s{sT0}, s{sT0}, s{sT2}",
           [f"s_cmp_ge_u32 s{sT0}, 20", f"s_cselect_b32 s{sC3}, 1, 0", f"s_cselect_b32 s{sT2}, 20, 0"],
           f"s_sub_u32 s{sT2}, s{sT0}, s{sT2}",
           f"v_and_b32 v{t0}, 15, v{vL}", f"s_lshl_b32 s{sT3}, s{sT1}, 4", f"v_add_u32 v{t0}, s{sT3}, v{t0}",
           f"v_mul_u32_u24 v{t0}, 1280, v{t0}", f"v_lshrrev_b32 v{t1}, 4, v{vL}", f"v_lshl_add_u32 v{t0}, v{t1}, 4, v{t0}",
           f"s_lshl_b32 s{sT2}, s{sT2}, 6", f"v_add_u32 v{vPCs}, s{sT2}, v{t0}",
           f"s_mul_i32 s{sT3}, s{sT1}, 52429", f"s_lshr_b32 s{sT3}, s{sT3}, 18", f"s_mul_i32 s{sD}, s{sT3}, 5",
           f"s_sub_u32 s{sT1}, s{sT1}, s{sD}", f"s_mul_i32 s{sT3}, s{sT3}, 88", f"s_add_u32 s{sT3}, s{sT3}, s{sT0}",
           f"s_mul_i32 s{sT3}, s{sT3}, 5", f"s_add_u32 s{sT3}, s{sT3}, s{sT1}", f"s_lshl_b32 s{sT3}, s{sT3}, 10",
           f"s_add_u32 s{sT3}, s{sT3}, {WS_W2}", f"v_lshlrev_b32 v{vPCd}, 4, v{vL}", f"v_add_u32 v{vPCd}, s{sT3}, v{vPCd}",
           f"v_add_u32 v{vPCd+1}, {5*1024}, v{vPCd}",
           f"s_lshl_b32 s{sT0}, s{sW}, 11", f"s_add_u32 s95, s{sT0}, {MISC}"]
    weave(a, wC, stage_b(0), start=0)
    stp(a, "S0 issued")
    sm = []
    for k, P in enumerate((P_LRE, P_LIM, P_LDT)):
        sm += [f"global_load_ushort v{CL+3*k}, v{c1}, s[{P}:{P+1}]", f"global_load_ushort v{CL+3*k+1}, v{c1}, s[{P}:{P+1}] offset:16",
               f"global_load_ushort v{CL+3*k+2}, v{c2}, s[{P}:{P+1}]"]
    pkl = []
    pkl += [srd(None, SM, P_WD, 1966080) + [f"s_cmp_lt_u32 s2, 240", f"s_cselect_b32 s{SM+2}, s{SM+2}, 0", "s_mov_b32 m0, s95", "s_nop 0",
           f"buffer_load_dwordx4 v{vPWs}, s[{SM}:{SM+3}], 0 offen lds"],
           [f"buffer_load_dwordx4 v{vPWs+1}, s[{SM}:{SM+3}], 0 offen offset:1024 lds"],
           [f"s_cmp_eq_u32 s{sC3}, 1", f"s_cselect_b32 s{SM}, s{P_CIM}, s{P_CRE}", f"s_cselect_b32 s{SM+1}, s{P_CIM+1}, s{P_CRE+1}",
            f"s_mov_b32 s{SM+2}, 819200", f"s_cmp_lt_u32 s2, 200", f"s_cselect_b32 s{SM+2}, s{SM+2}, 0",
            f"buffer_load_dwordx4 v[{PK}:{PK+3}], v{vPCs}, s[{SM}:{SM+3}], 0 offen"],
           [f"buffer_load_dwordx4 v[{PK+4}:{PK+7}], v{vPCs}, s[{SM}:{SM+3}], 0 offen offset:64"]]
    m, q = t0, t1
    wL = [f"v_and_b32 v{m}, 15, v{vL}", f"v_lshrrev_b32 v{q}, 4, v{vL}",
          f"v_lshrrev_b32 v{t2}, 2, v{m}", f"v_lshlrev_b32 v{t2}, 4, v{t2}", f"v_and_b32 v{t3}, 3, v{m}", f"v_add_u32 v{t2}, v{t2}, v{t3}",
          f"s_lshl_b32 s{sT0}, s{sRH}, 6", f"v_add_u32 v{t2}, s{sT0}, v{t2}", f"v_lshlrev_b32 v{t2}, 7, v{t2}",
          f"v_and_b32 v{t3}, 2, v{m}", f"v_lshrrev_b32 v{t4}, 3, v{m}", f"v_lshl_or_b32 v{t3}, v{t4}, 2, v{t3}",
          f"v_xor_b32 v{t3}, v{t3}, v{q}", f"v_lshl_add_u32 v{vX0}, v{t3}, 4, v{t2}", f"v_xor_b32 v{t3}, 4, v{t3}",
          f"v_lshl_add_u32 v{vX1}, v{t3}, 4, v{t2}",
          f"v_lshrrev_b32 v{t2}, 2, v{m}", f"v_lshl_add_u32 v{t2}, v{q}, 3, v{t2}", f"v_mul_u32_u24 v{t2}, 192, v{t2}",
          f"v_and_b32 v{t3}, 3, v{m}", f"v_lshl_add_u32 v{t2}, v{t3}, 3, v{t2}", f"v_and_b32 v{t3}, 1, v{q}",
          f"v_lshl_add_u32 v{vWa}, v{t3}, 5, v{t2}", f"v_xor_b32 v{t3}, 1, v{t3}", f"v_lshl_add_u32 v{vWb}, v{t3}, 5, v{t2}",
          [f"s_cmp_eq_u32 s{sCH}, 1", f"s_cselect_b64 vcc, -1, 0", f"v_cndmask_b32 v{vWc}, v{vWa}, v{vWb}, vcc"],
          f"v_add_u32 v{vWc}, 64, v{vWc}", f"s_lshl_b32 s{sT0}, s{sCH}, 7", f"v_add_u32 v{vWa}, s{sT0}, v{vWa}", f"v_add_u32 v{vWb}, s{sT0}, v{vWb}",
          f"v_and_b32 v{t2}, 1, v{m}", f"v_lshrrev_b32 v{t3}, 2, v{m}", f"v_lshl_add_u32 v{t3}, v{t3}, 1, v{t2}", f"v_xor_b32 v{t3}, v{t3}, v{q}",
          f"v_mul_u32_u24 v{t2}, 40, v{t2}", f"v_lshrrev_b32 v{t4}, 1, v{m}", f"v_add_u32 v{t2}, v{t2}, v{t4}", f"v_lshlrev_b32 v{t2}, 7, v{t2}",
          f"s_lshl_b32 s{sT0}, s{sCH}, 11", f"v_add_u32 v{t2}, s{sT0}, v{t2}", f"v_lshl_add_u32 v{vB0}, v{t3}, 4, v{t2}",
          f"v_xor_b32 v{t3}, 4, v{t3}", f"v_lshl_add_u32 v{vB1}, v{t3}, 4, v{t2}",
          f"s_lshl_b32 s{sT0}, s{sRH}, 2", f"v_add_u32 v{vSig}, s{sT0}, v{q}",
          f"v_and_b32 v{t2}, 1, v{vL}", f"v_cvt_f32_u32 v{t2}, v{t2}", f"v_fma_f32 v{vSgn}, v{t2}, 2.0, -1.0",
          f"v_lshrrev_b32 v{t2}, 2, v{m}", f"v_lshl_add_u32 v{t2}, v{q}, 2, v{t2}", f"v_lshlrev_b32 v{t2}, 6, v{t2}",
          f"v_and_b32 v{t3}, 3, v{m}", f"v_lshl_add_u32 v{t2}, v{t3}, 3, v{t2}", f"v_add_u32 v{vPtr}, s95, v{t2}",
          f"v_lshlrev_b32 v{vC}, 2, v{m}", f"s_lshl_b32 s{sT0}, s{sCH}, 7", f"v_add_u32 v{vAs}, s{sT0}, v{vC}",
          f"v_add_u32 v{vCm}, {MISC}, v{vC}", f"v_add_u32 v{vAe}, {MISC}, v{vAs}", f"v_lshl_add_u32 v{vAe}, v{vSig}, 8, v{vAe}",
          f"v_lshlrev_b32 v{vAe4}, 1, v{vSig}", f"v_add_u32 v{vAe4}, s{sCH}, v{vAe4}", f"v_lshl_add_u32 v{vAe4}, v{vAe4}, 6, v{vCm}",
          f"s_mul_i32 s{sT0}, s{sW}, 320", f"s_add_u32 s{sT0}, s{sT0}, {MISC}", f"v_add_u32 v{vRw}, s{sT0}, v{vAs}",
          f"v_lshlrev_b32 v{vWp}, 4, v{vL}", f"s_mul_i32 s{sT0}, s{sRB2}, {4*88*1024}", f"v_add_u32 v{vH}, s{sT0}, v{vWp}"]
    wL += [f"v_add_u32 v{vH+i}, {i*88*1024}, v{vH}" for i in range(1,4)]
    weave(a, wL, sm, start=0)
    stp(a, "small issued")
    for g_ in advk(sKX, sKG) + advk(sKB, sKU):
        for x in g_: a(x)
    wQ = []
    wQ += [f"s_mul_i32 s{sT0}, s{sCG}, {16*640}", f"s_add_u32 s{sT0}, s{sT0}, {WS_S}",
           f"v_mul_u32_u24 v{pa[0]}, 640, v{vSig}", f"v_lshl_add_u32 v{pa[0]}, v{vAs}, 1, v{pa[0]}", f"v_add_u32 v{pa[0]}, s{sT0}, v{pa[0]}",
           f"v_add_u32 v{pa[1]}, {8*640}, v{pa[0]}", f"v_lshlrev_b32 v{t0}, 1, v{vSig}", f"v_add_u32 v{t0}, s{sCH}, v{t0}",
           f"v_mul_u32_u24 v{pa[2]}, 640, v{t0}", f"v_lshl_add_u32 v{pa[2]}, v{vC}, 1, v{pa[2]}", f"v_add_u32 v{pa[2]}, s{sT0}, v{pa[2]}",
           f"v_add_u32 v{pa[2]}, {64*8}, v{pa[2]}", f"v_mov_b32 v{t4}, 0x7f000000", f"v_add_u32 v{t1}, 8, v{vSig}"]
    for (p_, src) in ((pa[0], vSig), (pa[1], t1), (pa[2], t0)):
        wQ += [[f"v_cmp_le_u32 vcc, s{sRB}, v{src}", "s_nop 1", f"v_cndmask_b32 v{p_}, v{p_}, v{t4}, vcc"]]
    S1 = stage_x(BUF) + stage_g(BUF) + stage_u(BUF) + stage_b(BUF)
    Z2 = 76
    wQ += [f"v_mov_b32 v{Z2+k}, 0" for k in range(4)] + ["s_nop 1"]
    wQ += [f"v_mfma_f32_32x32x16_bf16 v[{ACC+16*k}:{ACC+16*k+15}], v[{Z2}:{Z2+3}], v[{Z2}:{Z2+3}], 0" for k in range(8)]
    wQ += [f"v_mfma_f32_16x16x32_bf16 v[{ACC+128}:{ACC+131}], v[{Z2}:{Z2+3}], v[{Z2}:{Z2+3}], 0",
           f"v_mfma_f32_16x16x32_bf16 v[{ACC+132}:{ACC+135}], v[{Z2}:{Z2+3}], v[{Z2}:{Z2+3}], 0"]
    weave(a, wQ, S1 + pkl, start=0)
    for g_ in advk(sKX, sKG) + advk(sKB, sKU):
        for x in g_: a(x)
    a(f"s_mov_b32 s{sDB}, {2*BUF}")
    a(f"s_mov_b32 s{sCur}, 0"); a(f"s_mov_b32 s{sD}, {BUF}"); a(f"s_mov_b32 s{sC3}, 0")
    a(f"s_mov_b32 s{sStage}, 0")
    a(f"s_mov_b32 s{sBlk}, {(1<<1)|(1<<5):#x}")
    stp(a, "S1 issued")
    a("s_waitcnt vmcnt(17)")
    a("s_barrier")
    stp(a, "S0 landed")
    def cpow_s(dr, di, A, B, n, tm, sgn):
        o = []
        if n is None:
            o += [f"v_exp_f32 v{tm}, v{A}", f"v_rndne_f32 v{dr}, v{B}", f"v_sub_f32 v{tm+1}, v{B}, v{dr}"]
        else:
            o += [f"v_mul_f32 v{tm}, {n}, v{A}", f"v_mul_f32 v{tm+1}, {n}, v{B}", f"v_exp_f32 v{tm}, v{tm}",
                  f"v_rndne_f32 v{dr}, v{tm+1}", f"v_sub_f32 v{tm+1}, v{tm+1}, v{dr}"]
        o += [f"v_cos_f32 v{dr}, v{tm+1}", f"v_sin_f32 v{di}, v{tm+1}"]
        if sgn is not None:
            o += [f"v_mul_f32 v{dr}, v{tm}, v{dr}", f"v_mul_f32 v{tm}, v{sgn}, v{tm}", f"v_mul_f32 v{di}, v{tm}, v{di}"]
        else:
            o += [f"v_mul_f32 v{dr}, v{tm}, v{dr}", f"v_mul_f32 v{di}, v{tm}, v{di}"]
        return o
    def make_Wk():
        Wk = []
        vN = 71
        Wk += [f"v_cvt_f32_u32 v{vN}, v{vSig}", f"v_mov_b32 v{vN+1}, 0x42e00000", f"s_mov_b32 s{sT0}, 0xc1800000",
               f"v_fma_f32 v{vN}, v{vN}, s{sT0}, v{vN+1}", f"s_lshl_b32 s{sT0}, s{sCH}, 3", f"s_sub_u32 s{sT0}, 8, s{sT0}",
               f"v_cvt_f32_u32 v{vN+2}, s{sT0}", f"v_add_f32 v{vN+2}, v{vN+2}, v{vN}"]
        streams = []
        for T in range(3):
            tm = 80+2*T; dt = 86+T
            s_ = [f"v_lshlrev_b32 v{vLRE[T]}, 16, v{CL+T}", f"v_lshlrev_b32 v{vLIM[T]}, 16, v{CL+3+T}", f"v_lshlrev_b32 v{dt}, 16, v{CL+6+T}",
                  f"v_mul_f32 v{dt}, {LOG2E:#x}, v{dt}", f"v_exp_f32 v{dt}, v{dt}",
                  f"v_cvt_pk_bf16_f32 v{dt}, v{dt}, v{dt}", f"v_lshlrev_b32 v{dt}, 16, v{dt}",
                  f"v_mul_f32 v{vA[T]}, v{dt}, v{vLRE[T]}", f"v_mul_f32 v{vBx[T]}, v{dt}, v{vLIM[T]}",
                  f"v_mul_f32 v{vA[T]}, {LOG2E:#x}, v{vA[T]}", f"v_mul_f32 v{vBx[T]}, {INV2PI:#x}, v{vBx[T]}"]
            s_ += cpow_s(vLr[T], vLi[T], vA[T], vBx[T], None, tm, vSgn)
            s_ += cpow_s(vWSr[T], vWSi[T], vA[T], vBx[T], f"v{vN if T < 2 else vN+2}", tm, vSgn)
            streams.append(s_)
        Wk += [[x, y, z] for x, y, z in zip(*streams)]
        Wk += [f"s_and_b32 s14, s{sRB2}, 7", f"s_mul_i32 s14, s14, 3200", f"v_lshlrev_b32 v83, 7, v{vL}", f"v_add_u32 v83, s14, v83",
               [f"v_cmp_gt_u32 vcc, 25, v{vL}", f"v_mov_b32 v{t0}, 0x7f000000", "s_nop 0", f"v_cndmask_b32 v83, v{t0}, v83, vcc"],
               f"s_mul_i32 s15, s{sCB}, 88", f"s_mul_i32 s14, s{sW}, 12", f"s_add_u32 s14, s14, s15", f"s_add_u32 s14, s14, 47",
               f"s_mul_i32 s14, s14, 5120", f"s_mul_i32 s16, s{sW}, 5", f"s_add_u32 s15, s15, s16", f"s_mul_i32 s15, s15, 5120",
               f"s_add_u32 s16, s15, {20*5120}"]
        return Wk
    def pack_process():
        a("s_waitcnt vmcnt(7)")
        for k in range(2):
            a(f"ds_read_b64_tr_b16 v[{PK+8+4*k}:{PK+9+4*k}], v{vPtr} offset:{32*k}")
            a(f"ds_read_b64_tr_b16 v[{PK+10+4*k}:{PK+11+4*k}], v{vPtr} offset:{32*k+1024}")
        srd(a, SM, P_WS, WS_W2 + W2_SIZE)
        a(f"s_cmp_lt_u32 s2, 200"); a(f"s_cselect_b32 s{SM+2}, s{SM+2}, 0")
        a(f"buffer_store_dwordx4 v[{PK}:{PK+3}], v{vPCd}, s[{SM}:{SM+3}], 0 offen{SC}")
        a(f"buffer_store_dwordx4 v[{PK+4}:{PK+7}], v{vPCd+1}, s[{SM}:{SM+3}], 0 offen{SC}")
        a(f"v_lshlrev_b32 v{t0}, 5, v0"); a(f"v_add_u32 v{t0}, {MISC}, v{t0}")
        a("s_waitcnt lgkmcnt(0)")
        a(f"s_mov_b32 s{SM+2}, {WS_W2 + W2_SIZE}"); a(f"s_cmp_lt_u32 s2, 240"); a(f"s_cselect_b32 s{SM+2}, s{SM+2}, 0")
        a(f"buffer_store_dwordx4 v[{PK+8}:{PK+11}], v{vPWd}, s[{SM}:{SM+3}], 0 offen{SC}")
        a(f"buffer_store_dwordx4 v[{PK+12}:{PK+15}], v{vPWd+1}, s[{SM}:{SM+3}], 0 offen{SC}")
        Z = 76
        a(f"ds_write_b128 v{t0}, v[{Z}:{Z+3}]"); a(f"ds_write_b128 v{t0}, v[{Z}:{Z+3}] offset:16")
        a(f"v_mov_b32 v{t1}, 0")
        a(f"global_load_dword v{vNon}, v{t1}, s[{P_DBG}:{P_DBG+1}]{SC}")

    def dma_first(sdb):
        g = [f"s_add_u32 m0, s{sdb}, s{sOX}"] + [dma(vDX+i, SX, sKX, 1024*i) for i in range(4)]
        g += [f"s_add_u32 m0, s{sdb}, s{sOG}"] + [dma(vDW+i, SG, sKG, 1024*i) for i in range(3)]
        return g
    def dma_second(sdb):
        g = [f"s_add_u32 m0, s{sdb}, s{sOU}"] + [dma(vDW+i, SU, sKU, 1024*i) for i in range(3)]
        g += [f"s_add_u32 m0, s{sdb}, s{sOB}", dma(vDB, SB0, sKB, 0), dma(vDB+1, SB1, sKB, 1024)]
        g += [f"s_add_u32 m0, s{sdb}, s{sOB2}", dma(vDB+2, SB2, sKB, 0)]
        return g
    def reads(ch, s, setb):
        vX = vX0 if s == 0 else vX1
        vB = vB0 if s == 0 else vB1
        X = [f"ds_read_b128 a[{setb+4*i}:{setb+4*i+3}], v{vX} offset:{RX+i*512}" for i in range(4)]
        def tr(n, region, k):
            vW = (vWa, vWb, vWc)[k]
            b = setb + 16 + 4*n
            o = region + 6144*s
            return [f"ds_read_b64_tr_b16 a[{b}:{b+1}], v{vW} offset:{o}", f"ds_read_b64_tr_b16 a[{b+2}:{b+3}], v{vW} offset:{o+768}"]
        def sb(n, off):
            b = setb + 16 + 4*n
            return [f"ds_read_b128 a[{b}:{b+3}], v{vB} offset:{RB+off}"]
        W = []
        for k in range(3):
            W += tr(2*k, RG, k); W += tr(2*k+1, RU, k)
        W += sb(6, 0) + sb(7, 1024) + sb(8, 4096 - 2048*ch)
        return X[:1] + W[:2] + X[1:] + W[2:]
    def mfmas(ch, setb):
        out = []
        for n in range(6):
            for i in range(4):
                d = acc(n, i)
                out.append(f"v_mfma_f32_16x16x32_bf16 v[{d}:{d+3}], a[{setb+16+4*n}:{setb+16+4*n+3}], a[{setb+4*i}:{setb+4*i+3}], v[{d}:{d+3}]")
        for n in (6, 7):
            for i in range(4):
                d = acc(n, i)
                out.append(f"v_mfma_f32_16x16x32_bf16 v[{d}:{d+3}], a[{setb+4*i}:{setb+4*i+3}], a[{setb+16+4*n}:{setb+16+4*n+3}], v[{d}:{d+3}]")
        for k in range(2):
            i = 2*ch + k
            d = S4 + 4*k
            out.append(f"v_mfma_f32_16x16x32_bf16 v[{d}:{d+3}], a[{setb+4*i}:{setb+4*i+3}], a[{setb+16+32}:{setb+16+35}], v[{d}:{d+3}]")
        return out
    def substep(ch, setb, rd, dmas, late, seq=None, main=None):
        if main is None: main = mfmas(ch, setb)
        NG = len(main)
        gaps = [[] for _ in range(NG)]
        for i, r in enumerate(rd): gaps[i].append(r)
        loads = [x for x in dmas if "buffer_load" in x]
        nl = len(loads)
        last = 0
        if nl:
            pos = [1 + int(i*(NG-4)/nl) for i in range(nl)]
            li = 0; pend = []
            for x in dmas:
                if "buffer_load" in x:
                    p = pos[li]; pp = p - 1
                    for y in reversed(pend):
                        while len(gaps[pp]) >= 2: pp -= 1
                        assert pp >= 0
                        gaps[pp].append(y)
                    pend = []
                    while len(gaps[p]) >= 2: p += 1
                    gaps[p].append(x); last = p
                    li += 1
                else: pend.append(x)
            p = last + 1
            for y in pend:
                while len(gaps[p]) >= 2: p += 1
                gaps[p].append(y)
        g = 0
        for (e, ins) in late:
            g = max(g, e)
            while len(gaps[g]) + len(ins) > 2:
                g += 1
                assert g < NG, "late overflow"
            gaps[g].extend(ins)
        if seq is not None:
            g = 0
            while seq and g < NG:
                if len(gaps[g]) + len(seq[0]) <= 2:
                    gaps[g].extend(seq.pop(0))
                g += 1
        out = []
        for i in range(NG):
            out.append(main[i]); out.extend(gaps[i])
        return out
    def gate_seq():
        gw = [GLD, GLD+1, GLD+2, GLD+3, GLD+4]
        xr = [[GLD+6, GLD+7, GLD+8, GLD+9, GLD+5], [GLD+10, GLD+11, GLD+12, GLD+13, GLD+14]]
        ga = [73, 74]; u0, u1, u2, u3 = 75, 76, 77, 78
        flat = [f"v_mov_b32 v{ga[0]}, 0", f"v_mov_b32 v{ga[1]}, 0"]
        for i in range(5):
            flat += [f"v_lshlrev_b32 v{u0}, 16, v{gw[i]}", f"v_and_b32 v{u1}, 0xffff0000, v{gw[i]}"]
            for r in range(2):
                x_ = xr[r][i]
                flat += [f"v_lshlrev_b32 v{u2}, 16, v{x_}", f"v_and_b32 v{u3}, 0xffff0000, v{x_}",
                         f"v_mul_f32 v{u2}, v{u2}, v{u0}", f"v_mul_f32 v{u3}, v{u3}, v{u1}",
                         f"v_cvt_pk_bf16_f32 v{u2}, v{u2}, v{u3}",
                         f"v_and_b32 v{u3}, 0xffff0000, v{u2}", f"v_lshlrev_b32 v{u2}, 16, v{u2}",
                         f"v_add_f32 v{ga[r]}, v{ga[r]}, v{u2}", f"v_add_f32 v{ga[r]}, v{ga[r]}, v{u3}"]
        q_ = [flat[k:k+2] for k in range(0, len(flat), 2)]
        for sh, rm in (("row_shr:1","0xf"),("row_shr:2","0xf"),("row_shr:4","0xf"),("row_shr:8","0xf"),("row_bcast:15","0xa"),("row_bcast:31","0xc")):
            bc = " bound_ctrl:0" if sh.startswith("row_shr") else ""
            q_.append([f"v_add_f32_dpp v{ga[r]}, v{ga[r]}, v{ga[r]} {sh} row_mask:{rm} bank_mask:0xf{bc}" for r in range(2)])
        q_ += [[f"v_readlane_b32 s82, v{ga[0]}, 63", f"v_readlane_b32 s83, v{ga[1]}, 63"],
               [f"v_cmp_eq_u32 vcc, 0, v{vL}"],
               [f"v_mov_b32 v{u3}, s82", f"v_mov_b32 v{u2}, s83"],
               [f"v_cndmask_b32 v{u2}, v{u2}, v{u3}, vcc"], [f"v_cvt_pk_bf16_f32 v{u2}, v{u2}, v{u2}"],
               [f"v_lshlrev_b32 v{u2}, 16, v{u2}", f"v_mul_f32 v{u2}, 0xbfb8aa3b, v{u2}"],
               [f"v_exp_f32 v{u2}, v{u2}"], [f"v_add_f32 v{u2}, 1.0, v{u2}"], [f"v_rcp_f32 v{u2}, v{u2}"],
               [f"v_cvt_pk_bf16_f32 v{u2}, v{u2}, v{u2}"], [f"v_lshlrev_b32 v{vGv}, 16, v{u2}", f"s_lshl_b32 s82, s94, 2"],
               [f"s_add_u32 s82, s82, {WS_G}"], [f"v_lshl_add_u32 v{vGst}, v{vL}, 2, s82"]]
        return q_
    def wbase(g, j):
        if g < 7: return 104 + 20*g + 4*j
        if g < 11: return 20*(g-7) + 4*j
        return 80 + 4*j if j < 2 else 244 + 4*(j-2)
    SW2, SH = SX, SG
    sKW, sKW4, sKH = sKX, sKG, sKU
    def wload(g, j):
        b = wbase(g, j)
        if j < 4:
            o = f" offset:{1024*j}" if j else ""
            return f"buffer_load_dwordx4 a[{b}:{b+3}], v{vWp}, s[{SW2}:{SW2+3}], s{sKW} offen{o}{SCL}"
        return f"buffer_load_dwordx4 a[{b}:{b+3}], v{vWp}, s[{SW2}:{SW2+3}], s{sKW4} offen{SCL}"
    def wstep(g, inc=5120):
        return [wload(g, j) for j in range(5)] + [f"s_add_u32 s{sKW}, s{sKW}, {inc}", f"s_add_u32 s{sKW4}, s{sKW4}, {inc}"]

    XCH = BUF
    vHo, vHo2 = 81, 82
    def glu_part1(ch):
        a(f"s_lshl_b32 s{sT0}, s{sRB}, 1")
        a(f"s_add_u32 s{sT0}, s{sT0}, s{sRH}")
        a(f"s_mul_i32 s{sT0}, s{sT0}, {4*88}")
        a(f"s_mul_i32 s{sT1}, s{sCG}, 3")
        a(f"s_add_u32 s{sT0}, s{sT0}, s{sT1}")
        a(f"s_add_u32 s{sT0}, s{sT0}, 40")
        a(f"s_lshl_b32 s{sT1}, s{sCH}, 1")
        a(f"s_add_u32 s{sT1}, s{sT1}, s{sT0}")
        a(f"s_lshl_b32 s{sT1}, s{sT1}, 10")
        a(f"s_add_u32 s{sT0}, s{sT0}, 1")
        a(f"s_mul_i32 s{sT3}, s{sCH}, {2*88}")
        a(f"s_add_u32 s{sT0}, s{sT0}, s{sT3}")
        a(f"s_lshl_b32 s{sT0}, s{sT0}, 10")
        a(f"v_add_u32 v{vHo}, s{sT1}, v{vWp}")
        a(f"v_add_u32 v{vHo2}, s{sT0}, v{vWp}")
        for i in range(4):
            G0, U0, G1, U1 = [acc(n, i) for n in range(4)]
            for (G, Uu) in ((G0, U0), (G1, U1)):
                a(f"v_pk_mul_f32 v[{G}:{G+1}], v[{G}:{G+1}], v[{Uu}:{Uu+1}]")
                a(f"v_pk_mul_f32 v[{G+2}:{G+3}], v[{G+2}:{G+3}], v[{Uu+2}:{Uu+3}]")
            a(f"v_cvt_pk_bf16_f32 v{U0}, v{G0}, v{G0+1}")
            a(f"v_cvt_pk_bf16_f32 v{U0+1}, v{G0+2}, v{G0+3}")
            a(f"v_cvt_pk_bf16_f32 v{U0+2}, v{G1}, v{G1+1}")
            a(f"v_cvt_pk_bf16_f32 v{U0+3}, v{G1+2}, v{G1+3}")
            a(f"v_add_u32 v{G0}, {i*88*1024}, v{vHo}")
            a(f"global_store_dwordx4 v{G0}, v[{U0}:{U0+3}], s[{P_WS}:{P_WS+1}]{SC}")
        for i in range(4):
            G2, U2 = acc(4, i), acc(5, i)
            a(f"v_pk_mul_f32 v[{G2}:{G2+1}], v[{G2}:{G2+1}], v[{U2}:{U2+1}]")
            a(f"v_pk_mul_f32 v[{G2+2}:{G2+3}], v[{G2+2}:{G2+3}], v[{U2+2}:{U2+3}]")
        for i in range(4):
            G2, U2 = acc(4, i), acc(5, i)
            a(f"v_cvt_pk_bf16_f32 v{U2}, v{G2}, v{G2+1}")
            a(f"v_cvt_pk_bf16_f32 v{U2+1}, v{G2+2}, v{G2+3}")
        a(f"s_lshl_b32 s{sT1}, s{sW}, 10")
        a(f"v_lshlrev_b32 v{t1}, 3, v{vL}")
        a(f"v_add_u32 v{t2}, s{sT1}, v{t1}")
        give = (2, 3) if ch == 0 else (0, 1)
        for k, i in enumerate(give):
            a(f"ds_write_b64 v{t2}, v[{acc(5,i)}:{acc(5,i)+1}] offset:{XCH+512*k}")
    A_, B_ = 0, 52
    a(f"s_cmp_eq_u32 s{sCH}, 1")
    a(f"s_cbranch_scc1 L_pre1")
    rot0 = lambda: [(24, [f"s_mov_b32 s{sF}, s{sCur}"]), (24, [f"s_add_u32 s{sCur}, s{sCur}, s{sD}"]),
                  (24, [f"s_add_u32 s{sC3}, s{sC3}, 1"]),
                  (24, [f"s_cmp_eq_u32 s{sC3}, 3", f"s_cselect_b32 s{sC3}, 0, s{sC3}"]),
                  (24, [f"s_cmp_eq_u32 s{sC3}, 2", f"s_cselect_b32 s{sD}, {3*BUF}, 0"]),
                  (24, [f"s_sub_u32 s{sD}, {BUF}, s{sD}"])]
    n0 = stp.n
    for ch in (0, 1):
        stp.n = n0
        a.label(f"L_pre{ch}")
        for r in reads(ch, 0, A_): a(r)
        a(f"v_add_u32 v{vX0}, {BUF}, v{vX0}")
        a(f"v_add_u32 v{vB0}, {BUF}, v{vB0}")
        d1 = dma_first(sDB)
        grp = []; cur_ = []
        for x in d1:
            cur_.append(x)
            if "m0" in x.split(",")[0]: cur_.append("s_nop 0")
            if "buffer_load" in x: grp.append(cur_); cur_ = []
        grp[-1] += cur_
        weave(a, make_Wk(), grp, start=1)
        pack_process()
        a("s_waitcnt lgkmcnt(0)")
        stp(a, "prologue")
        a(".p2align 3")
        if "mis" in FLAGS: a("s_nop 0")
        a.label(f"L_loop{ch}")
        late0 = [(2, g_) for g_ in advk(sKX, sKG)] + [(19, [f"v_add_u32 v{r}, s{sD}, v{r}"]) for r in (vWa, vWb, vWc, vX1, vB1)] + rot0()
        for x in substep(ch, A_, reads(ch, 1, B_), dma_second(sDB), late0): a(x)
        a(f"s_waitcnt vmcnt(13) lgkmcnt(0)")
        a("s_barrier")
        if LSTAMP: a("s_memtime s[38:39]")
        late1 = [(2, g_) for g_ in advk(sKB, sKU)] + [(19, [f"v_add_u32 v{r}, s{sD}, v{r}"]) for r in (vX0, vB0)]
        late1 += [(20, [f"s_mov_b32 s{sDB}, s{sF}"])]
        late1 += [(32, [f"s_bitcmp1_b32 s{sBlk}, s{sStage}", f"s_cbranch_scc1 L_blk{ch}"])]
        body = substep(ch, B_, reads(ch, 0, A_), dma_first(sF), late1)
        for x in body:
            a(x)
            if x.startswith("s_cbranch_scc1 L_blk"): a.label(f"L_blkr{ch}")
        a(f"s_add_u32 s{sStage}, s{sStage}, 1")
        a(f"s_cmp_lt_u32 s{sStage}, 7")
        a("s_waitcnt lgkmcnt(0)")
        if LSTAMP:
            a(f"v_cmp_eq_u32 vcc, s{sStage}, v{vL}"); a(f"v_mov_b32 v79, s38"); a("s_nop 0"); a(f"v_cndmask_b32 v80, v80, v79, vcc")
        a(f"s_cbranch_scc1 L_loop{ch}")
        stp(a, "loop")
        lt = [(19, [f"v_add_u32 v{r}, {BUF}, v{r}"]) for r in (vWa, vWb, vWc, vX1, vB1)]
        lt += [(24, [x]) for x in srd(None, SW2, P_WS, W2_SIZE, add=WS_W2)[:0]]
        for x in substep(ch, A_, reads(ch, 1, B_), dma_second(sDB), lt): a(x)
        a(f"s_waitcnt vmcnt(13) lgkmcnt(0)")
        a("s_barrier")
        spin_init(a)
        a.label(f"L_pf{ch}")
        a(f"v_cmp_ne_u32 vcc, s{sNonce}, v{vPF}")
        a(f"v_cmp_ne_u32 s[{sEX}:{sEX+1}], s{sNonce}, v{vPF+1}")
        a(f"s_or_b64 vcc, vcc, s[{sEX}:{sEX+1}]")
        a(f"v_cmp_ne_u32 s[{sEX}:{sEX+1}], s{sNonce}, v{vPF+2}")
        a(f"s_or_b64 vcc, vcc, s[{sEX}:{sEX+1}]")
        a(f"v_cmp_ne_u32 s[{sEX}:{sEX+1}], s{sNonce}, v{vPF+3}")
        a(f"s_or_b64 vcc, vcc, s[{sEX}:{sEX+1}]")
        a(f"s_cmp_eq_u64 vcc, 0")
        a(f"s_cbranch_scc1 L_pfok{ch}")
        spin_guard(a, f"L_pfok{ch}")
        a(f"v_lshlrev_b32 v{t0}, 4, v{vL}")
        a(f"v_add_u32 v{t0}, {WS_PF}, v{t0}")
        a(f"global_load_dwordx4 v[{vPF}:{vPF+3}], v{t0}, s[{P_WS}:{P_WS+1}]{SC}")
        a("s_waitcnt vmcnt(0)")
        a(f"s_branch L_pf{ch}")
        a.label(f"L_pfok{ch}")
        srd(a, SW2, P_WS, W2_SIZE, add=WS_W2)
        a(f"s_mul_i32 s{sKW}, s{sCB}, 88")
        a(f"s_mul_i32 s{sT0}, s{sW}, 12")
        a(f"s_add_u32 s{sKW}, s{sKW}, s{sT0}")
        a(f"s_add_u32 s{sKW}, s{sKW}, 40")
        a(f"s_mul_i32 s{sKW}, s{sKW}, 5120")
        a(f"s_add_u32 s{sKW4}, s{sKW}, 4096")
        allw = []
        for g in range(7): allw += wstep(g)
        def take(n):
            out = []; c = 0
            while allw and (c < n or "buffer_load" not in allw[0]):
                x = allw.pop(0); out.append(x)
                if "buffer_load" in x: c += 1
            return out
        lt = [(19, [f"v_add_u32 v{r}, {(-2*BUF) & 0xffffffff:#x}, v{r}"]) for r in (vX0, vB0)]
        gq = gate_seq()
        for x in substep(ch, B_, reads(ch, 0, A_), take(8), lt, gq): a(x)
        a("s_waitcnt lgkmcnt(0)")
        lt = [(19, [f"v_add_u32 v{r}, {(-2*BUF) & 0xffffffff:#x}, v{r}"]) for r in (vWa, vWb, vWc, vX1, vB1)]
        for x in substep(ch, A_, reads(ch, 1, B_), take(8), lt, gq): a(x)
        a(f"s_waitcnt vmcnt(16) lgkmcnt(0)")
        a("s_barrier")
        wt = []
        if "wt" in FLAGS:
            wt = [(20, [f"buffer_load_dword v99, v83, s[{SX}:{SX+3}], s14 offen{SCL}"]),
                  (24, [f"buffer_load_dword v99, v83, s[{SX}:{SX+3}], s15 offen{SCL}"]),
                  (28, [f"buffer_load_dword v99, v83, s[{SX}:{SX+3}], s16 offen{SCL}"])]
        for x in substep(ch, B_, reads(ch, 0, A_), take(8), wt, gq): a(x)
        a("s_waitcnt lgkmcnt(0)")
        for x in substep(ch, A_, reads(ch, 1, B_), take(6), [], gq, main=mfmas(ch, A_)[:24]): a(x)
        a("s_waitcnt lgkmcnt(0)")
        for x in substep(ch, B_, [], take(5), [], gq, main=mfmas(ch, B_)[:24]): a(x)
        assert not allw
        stp(a, "tailG")
        glu_part1(ch)
        stp(a, "glu1")
        for x in substep(ch, A_, [], [], [], gq, main=mfmas(ch, A_)[24:] + mfmas(ch, B_)[24:]): a(x)
        assert not gq, len(gq)
        a("s_mov_b64 exec, 3")
        a(f"global_store_dword v{vGst}, v{vGv}, s[{P_WS}:{P_WS+1}]{SC}")
        a("s_mov_b64 exec, -1")
        a(f"s_branch L_epi")
        a.label(f"L_blk{ch}")
        a(f"s_cmp_eq_u32 s{sStage}, 1")
        a(f"s_cbranch_scc1 L_b0_{ch}")
        a(f"v_lshlrev_b32 v{t0}, 4, v{vL}")
        a(f"v_add_u32 v{t0}, {WS_PF}, v{t0}")
        a(f"global_load_dwordx4 v[{vPF}:{vPF+3}], v{t0}, s[{P_WS}:{P_WS+1}]{SC}")
        a(f"s_lshl_b32 s{sT1}, s{sRB}, 7")
        a(f"s_lshl_b32 s{sT2}, s{sRH}, 6")
        a(f"s_add_u32 s{sT1}, s{sT1}, s{sT2}")
        a(f"s_lshl_b32 s{sT2}, s{sCG}, 2")
        a(f"s_add_u32 s{sT1}, s{sT1}, s{sT2}")
        a(f"s_lshl_b32 s{sT2}, s{sCH}, 1")
        a(f"s_add_u32 s94, s{sT1}, s{sT2}")
        a(f"s_mul_i32 s{sT1}, s94, 1280")
        a(f"v_lshlrev_b32 v{t0}, 2, v{vL}")
        a(f"v_add_u32 v{t1}, s{sT1}, v{vWp}")
        a(f"v_add_u32 v{t2}, s{sT1}, v{t0}")
        a(f"global_load_dwordx4 v[{GLD}:{GLD+3}], v{vWp}, s[{P_GW}:{P_GW+1}]")
        a(f"global_load_dword v{GLD+4}, v{t0}, s[{P_GW}:{P_GW+1}] offset:1024")
        a(f"global_load_dwordx4 v[{GLD+6}:{GLD+9}], v{t1}, s[{P_X}:{P_X+1}]")
        a(f"global_load_dword v{GLD+5}, v{t2}, s[{P_X}:{P_X+1}] offset:1024")
        a(f"global_load_dwordx4 v[{GLD+10}:{GLD+13}], v{t1}, s[{P_X}:{P_X+1}] offset:1280")
        a(f"global_load_dword v{GLD+14}, v{t2}, s[{P_X}:{P_X+1}] offset:2304")
        a(f"s_branch L_blkr{ch}")
        a.label(f"L_b0_{ch}")
        spin_init(a)
        a.label(f"L_np{ch}")
        a(f"v_readfirstlane_b32 s{sNonce}, v{vNon}")
        a(f"s_cmp_lg_u32 s{sNonce}, 0")
        a(f"s_cbranch_scc1 L_nok{ch}")
        spin_guard(a, f"L_nok{ch}")
        a(f"v_mov_b32 v{t0}, 0")
        a(f"global_load_dword v{vNon}, v{t0}, s[{P_DBG}:{P_DBG+1}]{SC}")
        a("s_waitcnt vmcnt(0)")
        a(f"s_branch L_np{ch}")
        a.label(f"L_nok{ch}")
        a(f"s_cmp_lg_u32 s{sW}, 0")
        a(f"s_cbranch_scc1 L_blkr{ch}")
        a(f"s_lshl_b32 s{sT1}, s2, 2")
        a(f"s_add_u32 s{sT1}, s{sT1}, {WS_PF}")
        a(f"v_mov_b32 v{t0}, s{sT1}")
        a(f"v_mov_b32 v{t1}, s{sNonce}")
        a(f"s_mov_b64 exec, 1")
        a(f"global_store_dword v{t0}, v{t1}, s[{P_WS}:{P_WS+1}]{SC}")
        a(f"s_mov_b64 exec, -1")
        a(f"s_branch L_blkr{ch}")

    a.label("L_epi")
    stp(a, "tail")
    if LSTAMP:
        a(f"s_lshl_b32 s{sT0}, s2, 2")
        a(f"s_add_u32 s{sT0}, s{sT0}, s{sW}")
        a(f"s_lshl_b32 s{sT0}, s{sT0}, 8")
        a(f"s_add_u32 s{sT0}, s{sT0}, {WS_STAMP + 0x40000}")
        a(f"v_lshl_add_u32 v79, v{vL}, 2, s{sT0}")
        a(f"global_store_dword v79, v80, s[{P_WS}:{P_WS+1}]")
    a("s_nop 7")
    U = [SA, SBt, S4]; NS = [16, 16, 8]
    eA = [56, 57, 58]; eB = [59, 60, 61]
    cur = [U[T] for T in range(3)]
    for k in range(1, 16):
        Ts = [T for T in range(3) if k < NS[T]]
        dst = eA if (k & 1) else eB
        for T in Ts: a(f"v_fma_f32 v{dst[T]}, v{vLr[T]}, v{cur[T]}, v{U[T]+k}")
        for T in Ts:
            a(f"v_fmac_f32_dpp v{dst[T]}, v{cur[T]}, v{vLi[T]} {DPPSW}")
            cur[T] = dst[T]
    ew = [62, 63, 64]; ex = [65, 66, 67]
    a(f"s_mul_i32 s{sT0}, s{sW}, 320")
    a(f"s_add_u32 s{sT0}, s{sT0}, {MISC}")
    for T in range(3): a(f"v_mul_f32 v{ew[T]}, v{vWSr[T]}, v{cur[T]}")
    for T in range(3): a(f"v_fmac_f32_dpp v{ew[T]}, v{cur[T]}, v{vWSi[T]} {DPPSW}")
    a(f"v_add_u32 v{t0}, s{sT0}, v{vC}")
    a(f"ds_write_b32 v{vAe}, v{cur[0]} offset:{EF0}")
    a(f"ds_write_b32 v{vAe}, v{cur[1]} offset:{EF0+64}")
    a(f"ds_write_b32 v{vAe4}, v{cur[2]} offset:{E40}")
    def qreduce(vals, tmps):
        for v, t in zip(vals, tmps): a(f"v_mov_b32 v{t}, v{v}")
        a("s_nop 0")
        for v, t in zip(vals, tmps): a(f"v_permlane16_swap_b32 v{v}, v{t}")
        a("s_nop 0")
        for v, t in zip(vals, tmps): a(f"v_add_f32 v{v}, v{v}, v{t}")
        for v, t in zip(vals, tmps): a(f"v_mov_b32 v{t}, v{v}")
        a("s_nop 0")
        for v, t in zip(vals, tmps): a(f"v_permlane32_swap_b32 v{v}, v{t}")
        a("s_nop 0")
        for v, t in zip(vals, tmps): a(f"v_add_f32 v{v}, v{v}, v{t}")
    qreduce(ew, ex)
    a(f"ds_write_b32 v{vRw}, v{ew[0]} offset:{SWB}")
    a(f"ds_write_b32 v{vRw}, v{ew[1]} offset:{SWB+64}")
    a(f"ds_write_b32 v{t0}, v{ew[2]} offset:{SWB+256}")
    a("s_waitcnt lgkmcnt(0)")
    a("s_barrier")
    stp(a, "passA")
    a(f"s_xor_b32 s{sT1}, s{sW}, 1")
    a(f"s_lshl_b32 s{sT1}, s{sT1}, 10")
    a(f"v_lshlrev_b32 v{t1}, 3, v{vL}")
    a(f"v_add_u32 v{t2}, s{sT1}, v{t1}")
    a(f"v_add_u32 v{t4}, {88*1024}, v{vHo2}")
    a(f"s_cmp_eq_u32 s{sCH}, 1")
    a(f"s_cbranch_scc1 L_xr1")
    for k in range(2):
        a(f"ds_read_b64 v[{acc(5,k)+2}:{acc(5,k)+3}], v{t2} offset:{XCH+512*k}")
    a("s_waitcnt lgkmcnt(0)")
    a(f"global_store_dwordx4 v{vHo2}, v[{acc(5,0)}:{acc(5,0)+3}], s[{P_WS}:{P_WS+1}]{SC}")
    a(f"global_store_dwordx4 v{t4}, v[{acc(5,1)}:{acc(5,1)+3}], s[{P_WS}:{P_WS+1}]{SC}")
    a(f"s_branch L_xr2")
    a.label("L_xr1")
    for k in range(2):
        a(f"ds_read_b64 v[{acc(4,2+k)}:{acc(4,2+k)+1}], v{t2} offset:{XCH+512*k}")
        a(f"v_mov_b32 v{acc(4,2+k)+2}, v{acc(5,2+k)}")
        a(f"v_mov_b32 v{acc(4,2+k)+3}, v{acc(5,2+k)+1}")
    a("s_waitcnt lgkmcnt(0)")
    a(f"global_store_dwordx4 v{vHo2}, v[{acc(4,2)}:{acc(4,2)+3}], s[{P_WS}:{P_WS+1}]{SC}")
    a(f"global_store_dwordx4 v{t4}, v[{acc(4,3)}:{acc(4,3)+3}], s[{P_WS}:{P_WS+1}]{SC}")
    a.label("L_xr2")
    a(f"s_cmp_lg_u32 s{sW}, 0")
    a(f"s_cbranch_scc1 L_nopub")
    PB = 68
    a(f"v_lshlrev_b32 v{t0}, 3, v{vL}")
    a(f"v_add_u32 v{t0}, {MISC}, v{t0}")
    for w in range(4): a(f"ds_read_b64 v[{PB+2*w}:{PB+2*w+1}], v{t0} offset:{SWB+320*w}")
    a(f"s_lshl_b32 s{sT0}, s{sCG}, 4")
    a(f"s_add_u32 s{sT0}, s{sT0}, s{sRB}")
    a(f"s_mul_i32 s{sT0}, s{sT0}, 640")
    a(f"s_add_u32 s{sT0}, s{sT0}, {WS_S}")
    a(f"v_lshlrev_b32 v{t0}, 4, v{vL}")
    a(f"v_add_u32 v{t0}, s{sT0}, v{t0}")
    a(f"v_mov_b32 v{PB+9}, s{sNonce}")
    a(f"v_mov_b32 v{PB+11}, s{sNonce}")
    a(f"v_cmp_gt_u32 vcc, 40, v{vL}")
    a("s_waitcnt lgkmcnt(0)")
    a(f"v_pk_add_f32 v[{PB}:{PB+1}], v[{PB}:{PB+1}], v[{PB+2}:{PB+3}]")
    a(f"v_pk_add_f32 v[{PB+4}:{PB+5}], v[{PB+4}:{PB+5}], v[{PB+6}:{PB+7}]")
    a(f"v_pk_add_f32 v[{PB}:{PB+1}], v[{PB}:{PB+1}], v[{PB+4}:{PB+5}]")
    a(f"s_and_saveexec_b64 s[{sEX}:{sEX+1}], vcc")
    a(f"v_mov_b32 v{PB+8}, v{PB}")
    a(f"v_mov_b32 v{PB+10}, v{PB+1}")
    a(f"global_store_dwordx4 v{t0}, v[{PB+8}:{PB+11}], s[{P_WS}:{P_WS+1}]{SC}")
    a(f"s_mov_b64 exec, s[{sEX}:{sEX+1}]")
    a.label("L_nopub")
    stp(a, "pub")
    pre = []
    for g in range(7, 12):
        ws_ = wstep(g)
        pre += [[x] for x in ws_[:4]] + [[ws_[4], ws_[5], ws_[6]]]
    X = ACC
    vMr = [X, X+1, X+2]; vMi = [X+3, X+4, X+5]
    vC2r = [X+6, X+7, X+8]; vC2i = [X+9, X+10, X+11]
    vHr = [X+12, X+13, X+14]; vHi = [X+15, X+16, X+17]
    vW0r = [X+18, X+19, X+20]; vW0i = [X+21, X+22, X+23]
    vW1r = [X+24, X+25]; vW1i = [X+26, X+27]
    vLi2 = [X+28, X+29, X+30]
    nOff, nW0, nW1, nOff4, nW4 = X+32, X+33, X+34, X+35, X+36
    vm0, vm1, vm4 = X+37, X+38, X+39
    W = []
    W += [f"v_cvt_f32_u32 v{nOff}, v{vSig}", f"v_mul_f32 v{nOff}, 0x41800000, v{nOff}", f"s_lshl_b32 s{sT0}, s{sCH}, 3",
          f"v_cvt_f32_u32 v{nOff4}, s{sT0}", f"v_add_f32 v{nOff4}, v{nOff4}, v{nOff}",
          f"s_sub_u32 s{sT0}, s{sRB}, 1", f"v_sub_u32 v{t0}, s{sT0}, v{vSig}", f"v_subrev_u32 v{t1}, 8, v{t0}",
          f"v_sub_u32 v{t2}, v{t0}, v{vSig}", f"v_subrev_u32 v{t2}, s{sCH}, v{t2}"]
    for (n_, mreg, src) in ((nW0, vm0, t0), (nW1, vm1, t1), (nW4, vm4, t2)):
        W += [[f"v_cmp_le_i32 vcc, 0, v{src}", f"v_max_i32 v{n_}, 0, v{src}", f"v_cvt_f32_i32 v{n_}, v{n_}",
               f"v_cndmask_b32 v{mreg}, 0, 1.0, vcc"], f"v_mul_f32 v{n_}, 0x43000000, v{n_}"]
    W += [f"v_mov_b32 v{X+40}, 0x41800000", f"v_mov_b32 v{X+41}, 0x41000000"]
    streams = []
    for T in range(3):
        tm = X+44+6*T
        pr, pi, cr, ci = tm+2, tm+3, tm+4, tm+5
        s_ = cpow_s(vMr[T], vMi[T], vA[T], vBx[T], f"v{X+40 if T < 2 else X+41}", tm, vSgn)
        s_ += [f"v_mul_f32 v{pi}, v{vSgn}, v{vLi[T]}", f"v_add_f32 v{pr}, -1.0, v{vLr[T]}",
               f"v_mul_f32 v{tm}, v{vLRE[T]}, v{vLRE[T]}", f"v_fmac_f32 v{tm}, v{vLIM[T]}, v{vLIM[T]}", f"v_rcp_f32 v{tm}, v{tm}",
               f"v_mul_f32 v{cr}, v{pr}, v{vLRE[T]}", f"v_fmac_f32 v{cr}, v{pi}, v{vLIM[T]}",
               f"v_mul_f32 v{ci}, v{pi}, v{vLRE[T]}", f"v_fma_f32 v{ci}, -v{pr}, v{vLIM[T]}, v{ci}",
               f"v_add_f32 v{tm}, v{tm}, v{tm}", f"v_mul_f32 v{cr}, v{tm}, v{cr}", f"v_mul_f32 v{ci}, v{tm}, v{ci}",
               f"v_mul_f32_e64 v{vC2r[T]}, -v{vSgn}, v{cr}", f"v_sub_f32 v{vC2i[T]}, 0, v{ci}", f"v_sub_f32 v{vLi2[T]}, 0, v{vLi[T]}"]
        s_ += cpow_s(pr, pi, vA[T], vBx[T], f"v{nOff if T < 2 else nOff4}", tm, None)
        s_ += [f"v_mul_f32 v{vHr[T]}, v{cr}, v{pr}", f"v_fma_f32 v{vHr[T]}, -v{ci}, v{pi}, v{vHr[T]}",
               f"v_mul_f32 v{vHi[T]}, v{cr}, v{pi}", f"v_fmac_f32 v{vHi[T]}, v{ci}, v{pr}",
               f"v_mul_f32_e64 v{vHr[T]}, -v{vSgn}, v{vHr[T]}", f"v_sub_f32 v{vHi[T]}, 0, v{vHi[T]}"]
        s_ += cpow_s(vW0r[T], vW0i[T], vA[T], vBx[T], f"v{nW0 if T < 2 else nW4}", tm, vSgn)
        mk = vm0 if T < 2 else vm4
        s_ += [f"v_mul_f32 v{vW0r[T]}, v{mk}, v{vW0r[T]}", f"v_mul_f32 v{vW0i[T]}, v{mk}, v{vW0i[T]}"]
        if T < 2:
            s_ += cpow_s(vW1r[T], vW1i[T], vA[T], vBx[T], f"v{nW1}", tm, vSgn)
            s_ += [f"v_mul_f32 v{vW1r[T]}, v{vm1}, v{vW1r[T]}", f"v_mul_f32 v{vW1i[T]}, v{vm1}, v{vW1i[T]}"]
        streams.append(s_)
    W += rr(*streams)
    for x in W:
        if isinstance(x, str): a(x)
        else:
            for y in x: a(y)
    stp(a, "consts2")
    a("s_waitcnt vmcnt(0)")
    vFo = 18
    a(f"s_lshl_b32 s{sT0}, s{sRB}, 1")
    a(f"s_add_u32 s{sT0}, s{sT0}, s{sRH}")
    a(f"s_lshl_b32 s{sT0}, s{sT0}, 4")
    a(f"s_add_u32 s{sT0}, s{sT0}, s{sCG}")
    a(f"s_lshl_b32 s{sT0}, s{sT0}, 1")
    a(f"s_add_u32 s{sT0}, s{sT0}, s{sCH}")
    a(f"s_lshl_b32 s{sT0}, s{sT0}, 2")
    a(f"s_add_u32 s{sT0}, s{sT0}, {WS_FB}")
    a(f"v_mov_b32 v{vFo}, s{sT0}")
    a(f"v_mov_b32 v{t0}, s{sNonce}")
    a(f"s_mov_b64 exec, 1")
    a(f"global_store_dword v{vFo}, v{t0}, s[{P_WS}:{P_WS+1}]{SC}")
    a(f"s_mov_b64 exec, -1")
    stp(a, "flagB")


    Hp = [65, 66, 67]; hx = [56, 57, 58]; bad = 68
    vFl = 24
    a(f"s_lshl_b32 s{sT0}, s{sRB2}, 7")
    a(f"s_lshl_b32 s{sT1}, s{sW}, 5")
    a(f"s_add_u32 s{sT0}, s{sT0}, s{sT1}")
    a(f"v_and_b32 v{vFl}, 7, v{vL}")
    a(f"v_lshlrev_b32 v{vFl}, 2, v{vFl}")
    a(f"v_add_u32 v{vFl}, s{sT0}, v{vFl}")
    a(f"v_add_u32 v{vFl}, {WS_FB}, v{vFl}")
    srd(a, SH, P_WS, WS_G)
    srd(a, SM, P_WS, WS_S + 256*640)
    R = 70
    FBV = 80
    def poll_loads():
        a(f"buffer_load_dwordx2 v[{R}:{R+1}], v{pa[0]}, s[{SM}:{SM+3}], 0 offen{SC}")
        a(f"buffer_load_dwordx2 v[{R+2}:{R+3}], v{pa[0]}, s[{SM}:{SM+3}], 0 offen offset:128{SC}")
        a(f"buffer_load_dwordx2 v[{R+4}:{R+5}], v{pa[1]}, s[{SM}:{SM+3}], 0 offen{SC}")
        a(f"buffer_load_dwordx2 v[{R+6}:{R+7}], v{pa[1]}, s[{SM}:{SM+3}], 0 offen offset:128{SC}")
        a(f"buffer_load_dwordx2 v[{R+8}:{R+9}], v{pa[2]}, s[{SM}:{SM+3}], 0 offen{SC}")
    poll_loads()
    PE = X+64
    W = [f"v_subrev_u32 v{t0}, 256, v{vAe}"]
    for T in range(2):
        for k in range(7): W.append(f"ds_read_b32 v{PE+7*T+k}, v{t0} offset:{EF0 + 64*T - 256*k}")
    W.append(f"v_subrev_u32 v{t1}, 64, v{vAe4}")
    for k in range(15): W.append(f"ds_read_b32 v{PE+14+k}, v{t1} offset:{E40 - 64*k}")
    tu = [56, 57, 58]
    for k in range(16):
        Ts = [T for T in range(3) if k < NS[T]]
        for T in Ts: W.append(f"v_mul_f32 v{tu[T]}, v{vC2r[T]}, v{U[T]+k}")
        for T in Ts: W.append(f"v_fmac_f32_dpp v{tu[T]}, v{U[T]+k}, v{vC2i[T]} {DPPSW}")
        for T in Ts: W.append(f"v_mov_b32 v{U[T]+k}, v{tu[T]}")
    W.append("s_waitcnt lgkmcnt(0)")
    Pc = [PE+6, PE+13, PE+14+14]
    Pt = [[59, 60], [61, 62], [63, 64]]
    nch = [7, 7, 15]; base = [PE, PE+7, PE+14]
    for stepk in range(1, 15):
        Ts = [T for T in range(3) if stepk < nch[T]]
        dst = {T: Pt[T][stepk & 1] for T in Ts}
        grp = []
        for T in Ts: grp.append(f"v_fma_f32 v{dst[T]}, v{vMr[T]}, v{Pc[T]}, v{base[T] + nch[T]-1-stepk}")
        if len(Ts) == 1: grp.append("s_nop 0")
        for T in Ts:
            grp.append(f"v_fmac_f32_dpp v{dst[T]}, v{Pc[T]}, v{vMi[T]} {DPPSW}")
            Pc[T] = dst[T]
        if len(Ts) == 1: grp.append("s_nop 0")
        W += grp
    W.append("s_nop 1")
    for T in range(3): W.append(f"v_mul_f32 v{Ps[T]}, v{vC2r[T]}, v{Pc[T]}")
    for T in range(3): W.append(f"v_fmac_f32_dpp v{Ps[T]}, v{Pc[T]}, v{vC2i[T]} {DPPSW}")
    W += [f"v_mov_b32 v7, v{vAs}", f"v_mov_b32 v8, v{vCm}",
          f"v_and_b32 v{t0}, 15, v{vL}", f"v_lshrrev_b32 v{t1}, 2, v{t0}", f"v_lshlrev_b32 v{t1}, 1, v{t1}", f"v_add_u32 v{t1}, s{sCH}, v{t1}",
          f"v_mul_u32_u24 v{t1}, {HTS}, v{t1}", f"v_and_b32 v{t2}, 3, v{t0}", f"v_lshlrev_b32 v{t2}, 2, v{t2}", f"v_lshrrev_b32 v{t3}, 4, v{vL}",
          f"v_add_u32 v{t2}, v{t2}, v{t3}", f"s_lshl_b32 s{sT0}, s{sRH}, 4", f"v_add_u32 v{t2}, s{sT0}, v{t2}",
          f"v_lshl_add_u32 v{RA}, v{t2}, 3, v{t1}",
          f"s_lshl_b32 s{sT0}, s{sRB}, 1", f"s_add_u32 s{sT0}, s{sT0}, s{sRH}", f"s_lshl_b32 s{sT0}, s{sT0}, 2",
          f"v_add_u32 v{t3}, s{sT0}, v{t3}", f"v_mul_u32_u24 v{t3}, 88, v{t3}", f"s_mul_i32 s{sT0}, s{sCH}, 20",
          f"v_add_u32 v{t3}, s{sT0}, v{t3}", f"v_lshlrev_b32 v{t3}, 10, v{t3}", f"v_lshl_add_u32 v{GA}, v{t0}, 4, v{t3}"]
    sOff = [73, 74, 75, 76, 77]
    for it in range(5):
        W += [f"s_mul_i32 s{sT0}, s{sCG}, 5", f"s_add_u32 s{sT0}, s{sT0}, {it}", f"s_lshr_b32 s{sT1}, s{sT0}, 2", f"s_lshl_b32 s{sT1}, s{sT1}, 10",
              f"s_and_b32 s{sT0}, s{sT0}, 3", f"s_lshl_b32 s{sT0}, s{sT0}, 8", f"s_add_u32 s{sOff[it]}, s{sT0}, s{sT1}"]
    W += [f"s_mul_i32 s{sKH}, s{sW}, 12", f"s_add_u32 s{sKH}, s{sKH}, 40", f"s_lshl_b32 s{sKH}, s{sKH}, 10"]
    NPF = int(OPT.get('npf', 25))
    FBPOS = int(OPT.get('fbpos', 20))
    items = pre[:FBPOS] + [[f"global_load_dword v{FBV}, v{vFl}, s[{P_WS}:{P_WS+1}]{SC}"]] + pre[FBPOS:NPF]
    weave(a, W, items, start=0)
    stp(a, "prefix")
    a(f"s_waitcnt vmcnt({NPF-FBPOS})")
    spin_init(a)
    a.label("L_fbpoll")
    a(f"v_cmp_ne_u32 vcc, s{sNonce}, v{FBV}")
    a("s_nop 4")
    a("s_cbranch_vccz L_fbx")
    spin_guard(a, "L_fbx")
    a(f"global_load_dword v{FBV}, v{vFl}, s[{P_WS}:{P_WS+1}]{SC}")
    a("s_waitcnt vmcnt(0)")
    a("s_branch L_fbpoll")
    a.label("L_fbx")
    stp(a, "flagB seen")
    slots = ["a88", 100, 52, 68, 84]
    def hreg(slot, i):
        sl = slots[slot]
        if isinstance(sl, str): return f"a[{88+4*i}:{91+4*i}]"
        return f"v[{sl+4*i}:{sl+4*i+3}]"
    def hloads(g):
        return [f"buffer_load_dwordx4 {hreg(g % 5, i)}, v{vH+i}, s[{SH}:{SH+3}], s{sKH} offen{SCL}" for i in range(4)]
    early = []
    for g in range(5):
        hl = hloads(g)
        early += [[x] for x in hl[:3]] + [[hl[3], f"s_add_u32 s{sKH}, s{sKH}, 1024"]]
    for it in early[:8]:
        for x in it: a(x)
    early = early[8:]
    spin_init(a)
    a(f"s_branch L_pollc")
    a.label("L_poll")
    spin_guard(a, "L_pollx")
    poll_loads()
    a("s_waitcnt vmcnt(0)")
    a.label("L_pollc")
    a(f"v_mov_b32 v{bad}, 0")
    for (ri, mreg) in ((R+1, vm0), (R+3, vm0), (R+5, vm1), (R+7, vm1), (R+9, vm4)):
        a(f"v_cmp_ne_u32 vcc, s{sNonce}, v{ri}")
        a("s_nop 1")
        a(f"v_cndmask_b32 v{t0}, 0, v{mreg}, vcc")
        a(f"v_or_b32 v{bad}, v{bad}, v{t0}")
    a(f"v_cmp_ne_u32 vcc, 0, v{bad}")
    a("s_nop 4")
    a("s_cbranch_vccnz L_poll")
    a.label("L_pollx")
    for (T, ri) in ((0, R), (1, R+2), (2, R+8)): a(f"v_mul_f32 v{Hp[T]}, v{vW0r[T]}, v{ri}")
    for (T, ri) in ((0, R), (1, R+2), (2, R+8)): a(f"v_fmac_f32_dpp v{Hp[T]}, v{ri}, v{vW0i[T]} {DPPSW}")
    for (T, ri) in ((0, R+4), (1, R+6)): a(f"v_fmac_f32 v{Hp[T]}, v{vW1r[T]}, v{ri}")
    for (T, ri) in ((0, R+4), (1, R+6)): a(f"v_fmac_f32_dpp v{Hp[T]}, v{ri}, v{vW1i[T]} {DPPSW}")
    qreduce(Hp, hx)
    a(f"s_mul_i32 s{sT0}, s{sW}, 320")
    a(f"s_add_u32 s{sT0}, s{sT0}, {MISC}")
    a(f"v_add_u32 v{t0}, s{sT0}, v{vC}")
    a(f"ds_write_b32 v{vRw}, v{Hp[0]} offset:{RWB}")
    a(f"ds_write_b32 v{vRw}, v{Hp[1]} offset:{RWB+64}")
    a(f"ds_write_b32 v{t0}, v{Hp[2]} offset:{RWB+256}")
    stp(a, "poll")
    a("s_waitcnt lgkmcnt(0)")
    a("s_barrier")
    Hw = [X+48, X+49, X+50]
    a(f"s_mul_i32 s{sT0}, s{sCH}, 320")
    a(f"s_add_u32 s{sT0}, s{sT0}, {MISC}")
    a(f"v_add_u32 v{t0}, s{sT0}, v{vAs2}")
    hr = [X+40, X+41, X+42, X+43, X+44, X+45, X+46, X+47]
    a(f"ds_read_b32 v{hr[0]}, v{t0} offset:{RWB}")
    a(f"ds_read_b32 v{hr[1]}, v{t0} offset:{RWB+640}")
    a(f"ds_read_b32 v{hr[2]}, v{t0} offset:{RWB+64}")
    a(f"ds_read_b32 v{hr[3]}, v{t0} offset:{RWB+704}")
    for w in range(4): a(f"ds_read_b32 v{hr[4+w]}, v{vCm2} offset:{RWB+256+320*w}")
    a("s_waitcnt lgkmcnt(0)")
    W = [f"v_add_f32 v{Hw[0]}, v{hr[0]}, v{hr[1]}", f"v_add_f32 v{Hw[1]}, v{hr[2]}, v{hr[3]}", f"v_add_f32 v{hr[4]}, v{hr[4]}, v{hr[5]}",
         f"v_add_f32 v{hr[6]}, v{hr[6]}, v{hr[7]}", f"v_add_f32 v{Hw[2]}, v{hr[4]}, v{hr[6]}"]
    for T in range(3): W.append(f"v_fmac_f32 v{Ps[T]}, v{vHr[T]}, v{Hw[T]}")
    W.append("s_nop 0")
    for T in range(3): W.append(f"v_fmac_f32_dpp v{Ps[T]}, v{Hw[T]}, v{vHi[T]} {DPPSW}")
    cur = list(Ps)
    W.append("s_nop 0")
    for k in range(16):
        Ts = [T for T in range(3) if k < NS[T]]
        for T in Ts: W.append(f"v_fmac_f32 v{U[T]+k}, v{vLr[T]}, v{cur[T]}")
        for T in Ts:
            W.append(f"v_fmac_f32_dpp v{U[T]+k}, v{cur[T]}, v{vLi2[T]} {DPPSW}")
            cur[T] = U[T]+k
    for T in range(3):
        for k in range(NS[T]//2):
            W.append(f"v_cvt_pk_bf16_f32 v{X + 16*T + k}, v{U[T]+2*k}, v{U[T]+2*k+1}")
    W += [f"v_and_b32 v{t0}, 15, v{vL}", f"s_lshl_b32 s{sT0}, s{sCH}, 5", f"v_add_u32 v{t1}, s{sT0}, v{t0}",
          f"v_mul_u32_u24 v{t1}, {HTS}, v{t1}", f"v_lshl_add_u32 v{t1}, v{vSig}, 5, v{t1}",
          f"v_add_u32 v{t0}, 64, v{t0}", f"v_mul_u32_u24 v{t0}, {HTS}, v{t0}", f"v_lshl_add_u32 v{t0}, v{vSig}, 5, v{t0}",
          f"s_lshl_b32 s{sT0}, s{sCH}, 4", f"v_add_u32 v{t0}, s{sT0}, v{t0}"]
    weave(a, W, early, start=6)
    stp(a, "passB")
    a(f"ds_write_b128 v{t1}, v[{X}:{X+3}]")
    a(f"ds_write_b128 v{t1}, v[{X+4}:{X+7}] offset:16")
    a(f"ds_write_b128 v{t1}, v[{X+16}:{X+19}] offset:{16*HTS}")
    a(f"ds_write_b128 v{t1}, v[{X+20}:{X+23}] offset:{16*HTS+16}")
    a(f"ds_write_b128 v{t0}, v[{X+32}:{X+35}]")
    a("s_waitcnt lgkmcnt(0)")
    a("s_barrier")
    DT = 200
    for it in range(5):
        a(f"ds_read_b64_tr_b16 v[{DT+4*it}:{DT+4*it+1}], v{RA} offset:{it*16*HTS}")
        a(f"ds_read_b64_tr_b16 v[{DT+4*it+2}:{DT+4*it+3}], v{RA} offset:{it*16*HTS+8*HTS}")
    PACE = "pace" in FLAGS
    def hA_store(it): return f"buffer_store_dwordx4 v[{DT+4*it}:{DT+4*it+3}], v{GA}, s[{SH}:{SH+3}], s{sOff[it]} offen{SC}"
    stp(a, "hA stored")
    accB = lambda j, i: 120 + (j*4+i)*4
    def accA(j, i):
        t = j*4+i
        return 200 + 4*t if t < 14 else 26 + 4*(t-14)
    def wreg(g, j): b = wbase(g, j); return f"a[{b}:{b+3}]"
    fifo = [("h", g) for g in range(5) for _ in range(4)]
    if not PACE:
        for it in range(5):
            a(f"s_waitcnt lgkmcnt({2*(4-it)})")
            a(hA_store(it)); fifo.append(("st", it))
    def issue(x, tag):
        a(x); fifo.append(tag)
    def wait_for(pred):
        idx = [i for i, tg in enumerate(fifo) if pred(tg)]
        if not idx: return
        n = len(fifo) - 1 - max(idx)
        assert n <= 63, n
        a(f"s_waitcnt vmcnt({n})")
        del fifo[:max(idx)+1]
    sKS, sKS4 = 85, 86
    a(f"s_mul_i32 s{sKS}, s{sCB}, 88")
    a(f"s_mul_i32 s{sT0}, s{sW}, 5")
    a(f"s_add_u32 s{sKS}, s{sKS}, s{sT0}")
    a(f"s_mul_i32 s{sKS}, s{sKS}, 5120")
    a(f"s_add_u32 s{sKS4}, s{sKS}, 4096")
    wq = []
    assert NPF % 5 == 0
    for g in range(7 + NPF//5, 12):
        st_ = wstep(g)
        for j in range(5): wq.append((("wg", g), 0, st_[j], st_[5:] if j == 4 else []))
    for sidx in range(10):
        for j in range(5):
            x = wload(sidx, j).replace(f"s{sKW} offen", f"s{sKS} offen").replace(f"s{sKW4} offen", f"s{sKS4} offen")
            inc = (20-4)*5120 if sidx == 4 else 5120
            wq.append((("w", sidx), sidx, x, [f"s_add_u32 s{sKS}, s{sKS}, {inc}", f"s_add_u32 s{sKS4}, s{sKS4}, {inc}"] if j == 4 else []))
    RATE = int(OPT.get('rate', 3))
    LA, OA = 2, 7
    vG = [12, 14, 16, 22]
    vLW = 25
    XR, GR, DR = 84, 94, 52
    RS = 336; RED = 64*RS + 4*64
    fill = []
    for i in range(5):
        w1, w2, w3 = t0, t1, t3
        fill += [f"v_add_u32 v{w1}, {256*i}, v0", f"v_mul_u32_u24 v{w2}, 3277, v{w1}", f"v_lshrrev_b32 v{w2}, 16, v{w2}",
                 f"v_mul_u32_u24 v{w3}, 20, v{w2}", f"v_sub_u32 v{w3}, v{w1}, v{w3}", f"v_mul_u32_u24 v{LA+i}, {RS}, v{w2}",
                 f"v_lshl_add_u32 v{LA+i}, v{w3}, 4, v{LA+i}", f"v_lshrrev_b32 v{w1}, 4, v{w2}", f"v_lshl_add_u32 v{LA+i}, v{w1}, 6, v{LA+i}",
                 f"s_lshl_b32 s{sT0}, s{sRB2}, 6", f"v_add_u32 v{w2}, s{sT0}, v{w2}",
                 f"v_mul_u32_u24 v{w2}, 640, v{w2}", f"s_mul_i32 s{sT1}, s{sCB}, 80", f"v_lshl_add_u32 v{w3}, v{w3}, 2, s{sT1}",
                 f"v_add_u32 v{w2}, v{w2}, v{w3}", f"v_lshlrev_b32 v{OA+i}, 2, v{w2}"]
    fill += [f"v_and_b32 v{t0}, 15, v{vL}", f"v_lshrrev_b32 v{t1}, 2, v{t0}", f"v_lshlrev_b32 v{t1}, 4, v{t1}", f"v_and_b32 v{t0}, 3, v{t0}",
             f"v_add_u32 v{t0}, v{t0}, v{t1}", f"s_lshl_b32 s{sT0}, s{sRB2}, 6", f"v_add_u32 v{t1}, s{sT0}, v{t0}",
             f"v_lshlrev_b32 v{t1}, 2, v{t1}", f"v_add_u32 v50, {WS_G}, v{t1}",
             f"v_lshrrev_b32 v{t3}, 4, v{t0}", f"v_mul_u32_u24 v{t0}, {RS}, v{t0}", f"v_lshl_add_u32 v{t0}, v{t3}, 6, v{t0}",
             f"v_lshrrev_b32 v{t3}, 4, v{vL}", f"v_lshl_add_u32 v{t0}, v{t3}, 4, v{t0}",
             f"s_mul_i32 s{sT0}, s{sW}, {RED}", f"v_add_u32 v{vLW}, s{sT0}, v{t0}"]
    stp(a, "K2 setup")
    fill2 = []
    for i in range(5):
        fill2 += [f"v_lshrrev_b32 v{t0}, 1, v{OA+i}", (f"global_load_dwordx2 v[{XR+2*i}:{XR+2*i+1}], v{t0}, s[{P_X}:{P_X+1}]", ("f", 0))]
    fill2 += [f"s_lshl_b32 s{sT0}, s{sRB2}, 6", f"s_mul_i32 s{sT1}, s{sCB}, 160"]
    for i in range(5):
        fill2 += [f"v_add_u32 v{t4}, {256*i}, v0", f"v_mul_u32_u24 v{t1}, 3277, v{t4}", f"v_lshrrev_b32 v{t1}, 16, v{t1}", f"v_add_u32 v{t0}, s{sT0}, v{t1}",
                  f"v_lshlrev_b32 v{t0}, 2, v{t0}", f"v_add_u32 v{t0}, {WS_G}, v{t0}",
                  (f"global_load_dword v{GR+i}, v{t0}, s[{P_WS}:{P_WS+1}]{SC}", ("f", 0)),
                  f"v_mul_u32_u24 v{t1}, 20, v{t1}", f"v_sub_u32 v{t1}, v{t4}, v{t1}", f"v_lshlrev_b32 v{t1}, 3, v{t1}",
                  f"v_add_u32 v{t1}, s{sT1}, v{t1}", (f"global_load_dwordx2 v[{DR+2*i}:{DR+2*i+1}], v{t1}, s[{P_DSK}:{P_DSK+1}]", ("f", 0))]
    for g in range(22):
        glu = g < 12
        slot = g % 5
        wg = g if glu else g-12
        wait_for(lambda tg: tg == ("h", g) or (not glu and tg == ("w", g-12)) or (glu and tg == ("wg", g)))
        if g == 0: stp(a, "h0 landed")
        if "kstamp" in FLAGS:
            if g > 0:
                a("s_waitcnt lgkmcnt(0)"); a(f"v_writelane_b32 v23, s38, {g-1}")
            a("s_memtime s[38:39]")
        if g == 0 and PACE:
            a("s_waitcnt lgkmcnt(0)")
        if g == (6 if PACE else 3):
            wait_for(lambda tg: tg[0] == "st")
            a(f"v_add_u32 v{t0}, {WS_FA-WS_FB}, v{vFo}")
            a(f"v_mov_b32 v{t1}, s{sNonce}")
            a(f"s_mov_b64 exec, 1")
            issue(f"global_store_dword v{t0}, v{t1}, s[{P_WS}:{P_WS+1}]{SC}", ("fa", 0))
            a(f"s_mov_b64 exec, -1")
        if g == (7 if PACE else 6):
            a(f"v_add_u32 v{vFl}, {WS_FA-WS_FB}, v{vFl}")
            issue(f"global_load_dword v{t2}, v{vFl}, s[{P_WS}:{P_WS+1}]{SC}", ("fp", 0))
        if g == 15:
            a("s_barrier")
            for i in range(4): issue(f"global_load_dword v{vG[i]}, v50, s[{P_WS}:{P_WS+1}] offset:{16*i}{SC}", ("g", 0))
        mf = []
        for j in range(5):
            for i in range(4):
                d = accB(j, i) if glu else accA(j, i)
                c = "0" if g in (0, 12) else f"v[{d}:{d+3}]"
                mf.append(f"v_mfma_f32_16x16x32_bf16 v[{d}:{d+3}], {wreg(wg, j)}, {hreg(slot, i)}, {c}")
        nw = 0
        for idx, x in enumerate(mf):
            a(x)
            if idx % 4 == 1 and nw < RATE and wq and wq[0][1] < g:
                tg, e_, ins, post = wq.pop(0); issue(ins, tg); nw += 1
                for y in post: a(y)
            elif g >= 8 and fill and idx % 4 != 1: a(fill.pop(0))
            elif g >= 20 and fill2:
                for _ in range(2):
                    if fill2:
                        it_ = fill2.pop(0)
                        if isinstance(it_, str): a(it_)
                        else: issue(it_[0], it_[1])
        while nw < RATE and wq and wq[0][1] <= g:
            tg, e_, ins, post = wq.pop(0); issue(ins, tg); nw += 1
            for y in post: a(y)
        if g < 5 and PACE: issue(hA_store(g), ("st", g))
        for gn in range(22):
            la = 5 if gn < 12 else ((4 if gn < 17 else 3) if "la5" not in FLAGS else 5)
            if gn >= 5 and gn - la == g:
                if gn == 12:
                    wait_for(lambda tg: tg[0] == "fp")
                    spin_init(a)
                    a.label("L_fachk")
                    a(f"v_cmp_ne_u32 vcc, s{sNonce}, v{t2}")
                    a("s_nop 4")
                    a("s_cbranch_vccz L_faok")
                    spin_guard(a, "L_faok")
                    a(f"global_load_dword v{t2}, v{vFl}, s[{P_WS}:{P_WS+1}]{SC}")
                    a("s_waitcnt vmcnt(0)")
                    a("s_branch L_fachk")
                    a.label("L_faok")
                    a(f"s_mul_i32 s{sKH}, s{sW}, {5*1024}")
                elif gn == 17: a(f"s_add_u32 s{sKH}, s{sKH}, {15*1024}")
                for x in hloads(gn): issue(x, ("h", gn))
                a(f"s_add_u32 s{sKH}, s{sKH}, 1024")
    assert not fill and not wq and not fill2, (len(fill), len(wq), len(fill2))
    if "kstamp" in FLAGS:
        a("s_waitcnt lgkmcnt(0)"); a(f"v_writelane_b32 v23, s38, 21")
        a("s_memtime s[38:39]"); a("s_waitcnt lgkmcnt(0)"); a(f"v_writelane_b32 v23, s38, 22")
        a(f"s_lshl_b32 s{sT0}, s2, 2"); a(f"s_add_u32 s{sT0}, s{sT0}, s{sW}"); a(f"s_lshl_b32 s{sT0}, s{sT0}, 8")
        a(f"s_add_u32 s{sT0}, s{sT0}, {WS_STAMP + 0x80000}")
        a(f"v_lshl_add_u32 v{t0}, v{vL}, 2, s{sT0}")
        a(f"global_store_dword v{t0}, v23, s[{P_WS}:{P_WS+1}]")
    stp(a, "K2 loop")
    wait_for(lambda tg: tg[0] == "g")
    for j in range(5):
        for i in range(4):
            A_r, B_r = accA(j, i), accB(j, i)
            for h in (0, 2):
                a(f"v_pk_add_f32 v[{A_r+h}:{A_r+h+1}], v[{A_r+h}:{A_r+h+1}], v[{B_r+h}:{B_r+h+1}] neg_lo:[0,1] neg_hi:[0,1]")
            for h in (0, 2):
                a(f"v_pk_fma_f32 v[{B_r+h}:{B_r+h+1}], v[{vG[i]}:{vG[i]+1}], v[{A_r+h}:{A_r+h+1}], v[{B_r+h}:{B_r+h+1}] op_sel_hi:[0,1,1]")
            a(f"ds_write_b128 v{vLW}, v[{B_r}:{B_r+3}] offset:{i*4*RS + 64*j}")
    a("s_waitcnt lgkmcnt(0)")
    a("s_barrier")
    stp(a, "red written")
    for i in range(5):
        b = 120 + 16*i
        for w in range(4):
            a(f"ds_read_b128 v[{b+4*w}:{b+4*w+3}], v{LA+i} offset:{w*RED}")
    a("s_waitcnt vmcnt(0)")
    for i in range(5):
        b = 120 + 16*i
        a(f"s_waitcnt lgkmcnt({min(15,4*(4-i))})")
        a(f"v_pk_add_f32 v[{b}:{b+1}], v[{b}:{b+1}], v[{b+4}:{b+5}]")
        a(f"v_pk_add_f32 v[{b+2}:{b+3}], v[{b+2}:{b+3}], v[{b+6}:{b+7}]")
        a(f"v_pk_add_f32 v[{b+8}:{b+9}], v[{b+8}:{b+9}], v[{b+12}:{b+13}]")
        a(f"v_pk_add_f32 v[{b+10}:{b+11}], v[{b+10}:{b+11}], v[{b+14}:{b+15}]")
        a(f"v_pk_add_f32 v[{b}:{b+1}], v[{b}:{b+1}], v[{b+8}:{b+9}]")
        a(f"v_pk_add_f32 v[{b+2}:{b+3}], v[{b+2}:{b+3}], v[{b+10}:{b+11}]")
        x0, d0_ = XR+2*i, DR+2*i
        for h in range(2):
            a(f"v_lshlrev_b32 v{t1}, 16, v{x0+h}")
            a(f"v_and_b32 v{t2}, 0xffff0000, v{x0+h}")
            a(f"v_lshlrev_b32 v{t3}, 16, v{d0_+h}")
            a(f"v_and_b32 v{t4}, 0xffff0000, v{d0_+h}")
            a(f"v_mul_f32 v{t1}, v{t1}, v{t3}")
            a(f"v_mul_f32 v{t2}, v{t2}, v{t4}")
            a(f"v_fmac_f32 v{b+2*h}, v{GR+i}, v{t1}")
            a(f"v_fmac_f32 v{b+2*h+1}, v{GR+i}, v{t2}")
        a(f"global_store_dwordx4 v{OA+i}, v[{b}:{b+3}], s[{P_OUT}:{P_OUT+1}]" + ("" if "outplain" in FLAGS else " nt"))
    stp(a, "out stored")
    if LSTAMP:
        pass
    if "dbgt" in FLAGS:
        a("s_waitcnt vmcnt(0)")
        a("s_memrealtime s[40:41]"); a("s_memtime s[42:43]")
        a("s_waitcnt lgkmcnt(0)")
        a(f"s_cmp_lg_u32 s{sW}, 0")
        a("s_cbranch_scc1 L_end")
        a("s_not_b32 s44, s101")
        a("v_mov_b32 v2, 0"); a("v_mov_b32 v3, s44"); a("v_mov_b32 v4, s40")
        a("s_mov_b64 exec, 1")
        a(f"global_atomic_umax v2, v3, s[{P_DBG}:{P_DBG+1}] offset:16 sc1")
        a(f"global_atomic_umax v2, v4, s[{P_DBG}:{P_DBG+1}] offset:20 sc1")
        a("s_cmp_lg_u32 s2, 0")
        a("s_cbranch_scc1 L_end")
        a("s_sub_u32 s42, s42, s96"); a("s_sub_u32 s40, s40, s101")
        a("v_mov_b32 v3, s42"); a("v_mov_b32 v4, s40")
        a(f"global_store_dword v2, v3, s[{P_DBG}:{P_DBG+1}] offset:24")
        a(f"global_store_dword v2, v4, s[{P_DBG}:{P_DBG+1}] offset:28")
    stp.dump(a, sW, sT0, P_WS, WS_STAMP)
    a.label("L_end")
    a("s_endpgm")
    a.label("L_codeend")
    return a.text()

HEADER = open("gated_mix__ssm_conv_s5__glu_gated_bilinear__prompt.s.ref").read().split("; Override launch")[0]
DOC = """; ---------------------------------------------------------------------------------------------------------------
; One fused kernel, 256 workgroups (one per CU, all co-resident), 4 waves each, 512 registers per wave.
;          16x16x32 bf16 MFMAs; x / Wg / Wu / B tiles are staged by LDS-DMA in three 50 KB buffers (K = 64 per stage,
;          the stage order is rotated per workgroup so that the sharers of a line fetch different stages first).
;          The prologue also repacks w_down and C into MFMA fragment order (workspace, 0xC00000).
; Scan     h_t = lam h_{t-1} + u_t in registers (time runs along the accumulator registers): local end states,
;          weighted sum -> published state of the 128-row block (tagged 8-byte granules), exact carry-in from all
;          earlier blocks, prefix inside the block, second pass from the true initial state, scaled by 2*(lam-1)/Lam.
;          (12 GLU + 10 SSM steps of 32 each); operands are read in fragment order straight into registers,
;          gate combine, cross-wave reduction through LDS, + g*x*Dskip, store.
; Hand-offs between workgroups: write-through (sc1) stores, per-wave flags tagged with a per-launch nonce that
; workgroup 0 publishes in d_debug[0]; consumers poll with sc1 loads (bounded spins).
; Workspace: 0 h fragments | 0xB00000 gate | 0xB10000 block states | 0xB40000.. flags | 0xC00000 packed W2.
; Generated by the author's own script (register allocation and scheduling are scripted, not compiler output).
; ---------------------------------------------------------------------------------------------------------------
"""
def main():
    out = HEADER + DOC
    out += "; Override launch geometry by editing the next line. Harness parses it; keep it on one line.\n"
    out += "; @launch grid=(256,1,1) block=(256,1,1) lds=163840\n"
    out += '.amdgcn_target "amdgcn-amd-amdhsa--gfx950"\n.text\n'
    out += f".globl {KNAME}\n.p2align 8\n.type {KNAME},@function\n" + gen()
    out += f""".section .rodata,"a"
.p2align 6
.amdhsa_kernel {KNAME}
  .amdhsa_next_free_vgpr 512
  .amdhsa_next_free_sgpr 102
  .amdhsa_accum_offset 256
  .amdhsa_group_segment_fixed_size 0
  .amdhsa_kernarg_size 136
  .amdhsa_user_sgpr_count 2
  .amdhsa_user_sgpr_kernarg_segment_ptr 1
  .amdhsa_system_sgpr_workgroup_id_x 1
  .amdhsa_float_denorm_mode_32 3
.end_amdhsa_kernel
"""
    path = [x for x in sys.argv[1:] if not x.startswith("--")][0]
    open(path, "w").write(out)
    json.dump([[d[i] for i in sorted(d)] for d in NAMES], open(path + ".names", "w"))
main()
```

```python
import sys, json
from asmlib import *

FLAGS = set(x[2:] for x in sys.argv[1:] if x.startswith("--"))
OPT = dict(x.split("=") for x in FLAGS if "=" in x)
STAMP = "stamp" in FLAGS
NAMES = []
KNAME = "gated_mix__ssm_conv_s5__glu_gated_bilinear__prompt_kernel"

WS_H   = 0
WS_G   = 0xB00000
WS_S   = 0xB10000
WS_FB  = 0xB40000
WS_FA  = 0xB42000
WS_PF  = 0xB44000
WS_W2  = 0xC00000
W2_SIZE = 8*88*5*1024
WS_STAMP = 0x1000000
LOG2E = 0x3fb8aa3b
INV2PI = 0x3e22f983
SC = "" if "nosc" in FLAGS else " sc1"
SCL = "" if ("nosc" in FLAGS or "noscl" in FLAGS) else " sc1"
LSTAMP = "lstamp" in FLAGS

def srd(a, d, base, size, add=0):
    o = []
    if add == 0:
        o += [f"s_mov_b32 s{d}, s{base}", f"s_mov_b32 s{d+1}, s{base+1}"]
    elif add > 0:
        o += [f"s_add_u32 s{d}, s{base}, {add}", f"s_addc_u32 s{d+1}, s{base+1}, 0"]
    else:
        o += [f"s_sub_u32 s{d}, s{base}, {-add}", f"s_subb_u32 s{d+1}, s{base+1}, 0"]
    o += [f"s_mov_b32 s{d+2}, {size}", f"s_mov_b32 s{d+3}, 0x00020000"]
    if a is None: return o
    for x in o: a(x)

class Stamper:
    def __init__(self, store):
        self.store = store; self.n = 0; self.tmp = [98, 100]; self.names = {}
        NAMES.append(self.names)
    def __call__(self, a, name=""):
        if not STAMP: return
        if self.n > 0:
            a(f"s_mov_b32 s{self.store[self.n-1]}, s{self.tmp[(self.n-1)&1]}")
        assert self.n < len(self.store), "too many stamps"
        a(f"s_memtime s[{self.tmp[self.n&1]}:{self.tmp[self.n&1]+1}]")
        self.names[self.n] = name
        self.n += 1
    def dump(self, a, sW, sT0, P_WS, base):
        if not STAMP: return
        a("s_waitcnt vmcnt(0) lgkmcnt(0)")
        self(a, "end")
        a("s_waitcnt lgkmcnt(0)")
        a(f"s_mov_b32 s{self.store[self.n-1]}, s{self.tmp[(self.n-1)&1]}")
        a(f"s_lshl_b32 s{sT0}, s2, 2")
        a(f"s_add_u32 s{sT0}, s{sT0}, s{sW}")
        a(f"s_lshl_b32 s{sT0}, s{sT0}, 7")
        a(f"s_add_u32 s{sT0}, s{sT0}, {base}")
        a(f"v_mov_b32 v2, s{sT0}")
        if "dbgstamp" in FLAGS:
            keep = [i for i in range(1, self.n) if self.names[i] not in ("small issued", "glu1", "pub", "flagB", "flagB seen", "out stored")][:15]
            a("s_cmp_lg_u32 s2, 101")
            a("s_cbranch_scc1 L_end")
            a(f"s_cmp_lg_u32 s{sW}, 0")
            a("s_cbranch_scc1 L_end")
            a("v_mov_b32 v2, 0")
            for k, i in enumerate(keep):
                a(f"s_sub_u32 s40, s{self.store[i]}, s{self.store[0]}")
                a("v_mov_b32 v3, s40")
                a(f"global_store_dword v2, v3, s[34:35] offset:{4*(k+1)}")
            print("debug stamps:", [self.names[i] for i in keep])
            return
        for i in range(self.n):
            a(f"v_mov_b32 v3, s{self.store[i]}")
            a(f"global_store_dword v2, v3, s[{P_WS}:{P_WS+1}] offset:{4*i}")

def rr(*streams):
    out = []
    n = max(len(s) for s in streams)
    for i in range(n):
        for s in streams:
            if i < len(s): out.append(s[i])
    return out

def weave(a, work, mem, start=0, every=None):
    n = len(work); m = len(mem)
    if m == 0: pos = []
    elif every is None: pos = [start + int((n - start) * i / m) for i in range(m)]
    else: pos = [start + every*i for i in range(m)]
    mi = 0
    def emit(it):
        if isinstance(it, str): a(it)
        else:
            for x in it: a(x)
    for i, w in enumerate(work):
        while mi < m and pos[mi] <= i:
            emit(mem[mi]); mi += 1
        emit(w)
    while mi < m:
        emit(mem[mi]); mi += 1

SPIN_MAX = 100000
def spin_init(a): a("s_mov_b32 s95, 0")
def spin_guard(a, out_label):
    a("s_add_u32 s95, s95, 1")
    a(f"s_cmp_gt_u32 s95, {SPIN_MAX}")
    a(f"s_cbranch_scc1 {out_label}")

DPPSW = "quad_perm:[1,0,3,2] row_mask:0xf bank_mask:0xf"
P_X, P_LRE, P_LIM, P_BRE, P_BIM, P_CRE, P_CIM, P_LDT = 4,6,8,10,12,14,16,18
P_DSK, P_BX, P_WG, P_WU = 20,22,24,26
P_WD, P_GW, P_OUT, P_DBG = 28,30,32,34
P_WS = 36

def gen():
    a = Asm()
    stp = Stamper([96,97,22,23,6,7,8,9,18,19,10,11,12,13,24,25,26,27,82,83,84,40,41,42,43,73,74])
    SX, SG, SU, SB0, SB1, SB2, SM = 40,44,48,52,56,60,64
    sEX = 38
    sW, sRH, sCH, sRB, sCG = 68,69,70,71,72
    sDB, sCur, sD, sC3, sStage = 73,74,75,76,77
    sKX, sKG, sKU, sKB = 78,79,80,81
    sOX, sOG, sOU, sOB, sOB2 = 82,83,84,85,86
    sT0, sT1, sT2 = 87,88,89
    sF = 87
    sBlk, sRB2, sCB = 90, 91, 92
    sT3 = 93
    sNonce = 3
    vL = 1
    vDX, vDW, vDB = 2, 6, 9
    vX0, vX1, vWa, vWb, vWc, vB0, vB1 = 12,13,14,15,16,17,18
    t0, t1, t2, t3, t4 = 19,20,21,22,23
    vA  = [24,25,26]; vBx = [27,28,29]; vLRE = [30,31,32]; vLIM = [33,34,35]
    vLr = [36,37,38]; vLi = [39,40,41]; vWSr = [42,43,44]; vWSi = [45,46,47]
    vSgn, vNon, vSig, vWp = 48, 49, 50, 51
    vPF = 52
    SCR = 52
    vC, vAe, vAe4, vRw = 90, 91, 92, 93
    pa = [94, 95, 96]
    GLD = 56
    vGst, vGv = 71, 72
    RA, GA = 2, 3
    Ps = [4, 5, 6]
    vAs, vCm = 97, 98
    vAs2, vCm2 = 7, 8
    vH = 116
    ACC = 120
    BUF = 51200
    RX, RG, RU, RB = 0, 16384, 28672, 40960
    MISC = 3*BUF
    SWB, EF, E4, RWB = 0, 1280, 5120, 7104
    EF0 = EF + 7*256; E40 = E4 + 15*64
    HTS = 272
    def acc(n, i): return ACC + n*16 + 4*i
    SA, SBt, S4 = ACC+96, ACC+112, ACC+128
    CL = 52
    PK = 100
    vPWs, vPCs, vPWd, vPCd, vPtr = 61, 63, 64, 66, 68
    TP = 69

    a.label(KNAME)
    a(f"s_cmp_ge_u32 s2, 256")
    a(f"s_cbranch_scc1 L_end")
    if "nocodepf" not in FLAGS:
        a("s_getpc_b64 s[40:41]")
        a.label("L_pc")
        a("v_lshlrev_b32 v2, 2, v0")
        a("s_lshr_b32 s42, s2, 3")
        a("s_lshl_b32 s42, s42, 10")
        a("v_add_u32 v2, s42, v2")
        a("v_min_u32 v2, L_codeend-L_pc-4, v2")
        a("v_mov_b32 v3, s41")
        a("v_add_co_u32 v2, vcc, s40, v2")
        a("v_addc_co_u32 v3, vcc, 0, v3, vcc")
        a("global_load_dword v99, v[2:3], off")
    a(f"s_load_dwordx16 s[4:19], s[0:1], 0")
    a(f"s_load_dwordx8 s[20:27], s[0:1], 64")
    a(f"s_load_dwordx8 s[28:35], s[0:1], 96")
    a(f"s_load_dwordx2 s[36:37], s[0:1], 128")
    a(f"s_memrealtime s[{sEX}:{sEX+1}]")
    if "dbgt" in FLAGS: a("s_memtime s[96:97]")
    stp(a, "s0")
    a(f"v_lshrrev_b32 v{t0}, 6, v0")
    a(f"v_and_b32 v{vL}, 63, v0")
    a(f"s_and_b32 s{sT0}, s2, 1")
    a(f"v_readfirstlane_b32 s{sW}, v{t0}")
    a(f"s_lshl_b32 s{sT0}, s{sT0}, 3")
    a(f"s_lshr_b32 s{sT1}, s2, 3")
    a(f"s_and_b32 s{sRB}, s{sT1}, 7")
    a(f"s_add_u32 s{sRB}, s{sRB}, s{sT0}")
    a(f"s_lshr_b32 s{sT0}, s2, 1")
    a(f"s_and_b32 s{sT0}, s{sT0}, 3")
    a(f"s_lshl_b32 s{sT2}, s{sT0}, 2")
    a(f"s_lshr_b32 s{sT3}, s2, 6")
    a(f"s_add_u32 s{sCG}, s{sT2}, s{sT3}")
    a(f"s_lshl_b32 s{sT0}, s{sT0}, 3")
    a(f"s_and_b32 s{sT1}, s{sT1}, 7")
    a(f"s_add_u32 s{sRB2}, s{sT0}, s{sT1}")
    a(f"s_and_b32 s{sT0}, s2, 1")
    a(f"s_lshl_b32 s{sT0}, s{sT0}, 2")
    a(f"s_add_u32 s{sCB}, s{sT0}, s{sT3}")
    a(f"s_lshr_b32 s{sRH}, s{sW}, 1")
    a(f"s_and_b32 s{sCH}, s{sW}, 1")
    a(f"v_lshrrev_b32 v{t0}, 3, v{vL}")
    a(f"v_and_b32 v{t1}, 2, v{t0}")
    a(f"s_lshl_b32 s{sT0}, s{sCH}, 2")
    a(f"v_or_b32 v{t1}, s{sT0}, v{t1}")
    a(f"v_and_b32 v{t2}, 7, v{vL}")
    a(f"v_xor_b32 v{t1}, v{t1}, v{t2}")
    a(f"s_lshl_b32 s{sT0}, s{sRB}, 7")
    a(f"s_lshl_b32 s{sT1}, s{sW}, 5")
    a(f"s_add_u32 s{sT0}, s{sT0}, s{sT1}")
    a(f"v_add_u32 v{t0}, s{sT0}, v{t0}")
    a(f"v_mul_u32_u24 v{t0}, 1280, v{t0}")
    a(f"v_lshl_add_u32 v{vDX}, v{t1}, 4, v{t0}")
    for i in range(1,4):
        a(f"v_add_u32 v{vDX+i}, {9216*i}, v{vDX}")
    a(f"s_lshl_b32 s{sOX}, s{sW}, 12")
    a(f"s_mul_i32 s{sOG}, s{sW}, 3072")
    a(f"s_add_u32 s{sOU}, s{sOG}, {RU}")
    a(f"s_add_u32 s{sOG}, s{sOG}, {RG}")
    if "norot" in FLAGS:
        a(f"s_mov_b32 s{sKX}, 0")
    elif "rot8" in FLAGS:
        a(f"s_and_b32 s{sT0}, s{sRB}, 7")
        a(f"s_mul_i32 s{sT1}, s{sT0}, 11")
        a(f"s_lshr_b32 s{sT1}, s{sT1}, 3")
        a(f"s_and_b32 s{sT0}, s{sCG}, 3")
        a(f"s_mul_i32 s{sT0}, s{sT0}, 11")
        a(f"s_lshr_b32 s{sT0}, s{sT0}, 2")
        a(f"s_add_u32 s{sT0}, s{sT0}, s{sT1}")
        a(f"s_cmp_ge_u32 s{sT0}, 10")
        a(f"s_cselect_b32 s{sT1}, 10, 0")
        a(f"s_sub_u32 s{sT0}, s{sT0}, s{sT1}")
        a(f"s_lshl_b32 s{sKX}, s{sT0}, 7")
    else:
        a(f"s_and_b32 s{sT0}, s{sRB}, 7")
        a(f"s_and_b32 s{sT1}, s{sCG}, 3")
        a(f"s_add_u32 s{sT0}, s{sT0}, s{sT1}")
        a(f"s_cmp_ge_u32 s{sT0}, 5")
        a(f"s_cselect_b32 s{sT1}, 5, 0")
        a(f"s_sub_u32 s{sT0}, s{sT0}, s{sT1}")
        a(f"s_cmp_ge_u32 s{sT0}, 5")
        a(f"s_cselect_b32 s{sT1}, 5, 0")
        a(f"s_sub_u32 s{sT0}, s{sT0}, s{sT1}")
        a(f"s_lshl_b32 s{sKX}, s{sT0}, 8")
    a(f"s_mul_i32 s{sKG}, s{sKX}, 1536")
    a(f"s_mov_b32 s{sKU}, s{sKG}")
    a(f"s_mov_b32 s{sKB}, s{sKX}")
    def advk(kx, kw):
        return [[f"s_add_u32 s{kx}, s{kx}, 128"], [f"s_cmp_eq_u32 s{kx}, 1280", f"s_cselect_b32 s{kx}, 0, s{kx}"], [f"s_mul_i32 s{kw}, s{kx}, 1536"]]
    a("s_waitcnt lgkmcnt(0)")
    a(f"s_or_b32 s{sT0}, s2, s{sW}")
    a(f"s_cmp_lg_u32 s{sT0}, 0")
    a(f"s_cbranch_scc1 L_no_nonce")
    a(f"s_or_b32 s{sT0}, s{sEX}, 1")
    a(f"v_mov_b32 v{t0}, s{sT0}")
    a(f"v_mov_b32 v{t1}, 0")
    a(f"s_mov_b64 exec, 1")
    a(f"global_store_dword v{t1}, v{t0}, s[{P_DBG}:{P_DBG+1}]{SC}")
    a(f"s_mov_b64 exec, -1")
    a.label("L_no_nonce")
    if "dbgt" in FLAGS: a(f"s_mov_b32 s101, s{sEX}")
    srd(a, SX, P_X, 2621440)
    def dma(vo, S, so, off):
        o = f" offset:{off}" if off else ""
        return f"buffer_load_dwordx4 v{vo}, s[{S}:{S+3}], s{so} offen{o} lds"
    def dgrp(base_expr, items):
        g = [[f"s_add_u32 m0, {base_expr}", "s_nop 0", items[0]]]
        g += [[x] for x in items[1:]]
        return g
    def stage_x(b):  return dgrp(f"s{sOX}, {b}", [dma(vDX+i, SX, sKX, 1024*i) for i in range(4)])
    def stage_g(b):  return dgrp(f"s{sOG}, {b}", [dma(vDW+i, SG, sKG, 1024*i) for i in range(3)])
    def stage_u(b):  return dgrp(f"s{sOU}, {b}", [dma(vDW+i, SU, sKU, 1024*i) for i in range(3)])
    def stage_b(b):  return dgrp(f"s{sOB}, {b}", [dma(vDB, SB0, sKB, 0), dma(vDB+1, SB1, sKB, 1024)]) + dgrp(f"s{sOB2}, {b}", [dma(vDB+2, SB2, sKB, 0)])
    wW = [f"s_mul_i32 s{sT0}, s{sW}, 192", f"s_mul_i32 s{sT1}, s{sCG}, 192"]
    for i in range(3):
        wW += [f"v_add_u32 v{t0}, s{sT0}, v{vL}"]
        if i: wW += [f"v_add_u32 v{t0}, {64*i}, v{t0}"]
        wW += [f"v_mul_u32_u24 v{t1}, 43691, v{t0}", f"v_lshrrev_b32 v{t1}, 19, v{t1}", f"v_mul_u32_u24 v{t2}, 12, v{t1}",
               f"v_sub_u32 v{t2}, v{t0}, v{t2}", f"v_lshrrev_b32 v{t3}, 2, v{t1}", f"v_and_b32 v{t3}, 2, v{t3}",
               f"v_xor_b32 v{t2}, v{t2}, v{t3}", f"v_mul_u32_u24 v{t1}, 3072, v{t1}", f"v_lshl_add_u32 v{t1}, v{t2}, 4, v{t1}",
               f"v_add_u32 v{vDW+i}, s{sT1}, v{t1}"]
        if i: wW += [f"v_subrev_u32 v{vDW+i}, {1024*i}, v{vDW+i}"]
    wW += srd(None, SG, P_WG, 1966080) + srd(None, SU, P_WU, 1966080)
    weave(a, wW, stage_x(0), start=0)
    wB = [f"s_mul_i32 s{sT3}, s{sCG}, 40", f"s_mul_i32 s{sT2}, s{sW}, 3",
          [f"s_cmp_eq_u32 s{sW}, 3", f"s_cselect_b32 s{sT2}, 8, s{sT2}"],
          f"s_add_u32 s{sD}, s{sT2}, 2",
          [f"s_cmp_ge_u32 s{sW}, 2", f"s_cselect_b32 s{sT0}, 1, 0"],
          f"s_sub_u32 s{sD}, s{sD}, s{sT0}",
          f"s_lshl_b32 s{sOB}, s{sT2}, 10", f"s_add_u32 s{sOB}, s{sOB}, {RB}",
          f"s_lshl_b32 s{sOB2}, s{sD}, 10", f"s_add_u32 s{sOB2}, s{sOB2}, {RB}",
          f"v_lshrrev_b32 v{t3}, 4, v{vL}", f"v_lshlrev_b32 v{t3}, 1, v{t3}", f"v_and_b32 v{t4}, 7, v{vL}"]
    for i in range(3):
        wB += [f"s_mov_b32 s{sT0}, s{sT2}" if i == 0 else (f"s_add_u32 s{sT0}, s{sT2}, 1" if i == 1 else f"s_mov_b32 s{sT0}, s{sD}")]
        wB += [[f"s_cmp_ge_u32 s{sT0}, 5", f"s_cselect_b32 s{sT1}, 1, 0", f"s_cselect_b32 s{sC3}, 5, 0"],
               f"s_sub_u32 s{sT0}, s{sT0}, s{sC3}", f"s_lshl_b32 s{sT0}, s{sT0}, 3", f"s_add_u32 s{sT0}, s{sT0}, s{sT3}",
               f"v_lshrrev_b32 v{t0}, 3, v{vL}", f"v_add_u32 v{t0}, s{sT0}, v{t0}", f"v_mul_u32_u24 v{t0}, 1280, v{t0}",
               f"v_add_u32 v{t1}, s{sT1}, v{t3}", f"v_xor_b32 v{t1}, v{t1}, v{t4}", f"v_lshl_add_u32 v{t0}, v{t1}, 4, v{t0}",
               f"v_add_u32 v{vDB+i}, {4096 - (1024*i if i < 2 else 0)}, v{t0}"]
    for i, S in enumerate([SB0, SB1, SB2]):
        wB += [[f"s_cmp_ge_u32 s{sW}, {2 if i < 2 else 1}", f"s_cselect_b32 s{S}, s{P_BIM}, s{P_BRE}", f"s_cselect_b32 s{S+1}, s{P_BIM+1}, s{P_BRE+1}"],
               [f"s_sub_u32 s{S}, s{S}, 4096", f"s_subb_u32 s{S+1}, s{S+1}, 0"],
               f"s_mov_b32 s{S+2}, {819200+4096}", f"s_mov_b32 s{S+3}, 0x00020000"]
    weave(a, wB, stage_g(0) + stage_u(0), start=0)
    c1, c2 = TP, TP+1
    CST = MISC + 8448
    wC = [f"v_and_b32 v{t0}, 15, v{vL}", f"v_lshrrev_b32 v{t0}, 1, v{t0}", f"v_lshlrev_b32 v{t0}, 1, v{t0}",
          f"v_add_u32 v{c2}, {CST + 64}, v{t0}", f"s_lshl_b32 s{sT1}, s{sCH}, 5", f"v_add_u32 v{c1}, s{sT1}, v{t0}", f"v_add_u32 v{c1}, {CST}, v{c1}",
          f"s_mul_i32 s{sT0}, s{sCG}, 80", f"v_lshlrev_b32 v{t1}, 2, v{vL}", f"v_add_u32 v{TP+5}, s{sT0}, v{t1}"]
    wC += [f"s_mul_i32 s{sT0}, s2, 52429", f"s_lshr_b32 s{sT0}, s{sT0}, 18", f"s_mul_i32 s{sT1}, s{sT0}, 5", f"s_sub_u32 s{sT1}, s2, s{sT1}",
           f"v_lshrrev_b32 v{t0}, 2, v{vL}", f"s_lshl_b32 s{sT2}, s{sT0}, 5", f"v_add_u32 v{t0}, s{sT2}, v{t0}",
           f"v_mul_u32_u24 v{t0}, 1280, v{t0}", f"v_and_b32 v{t1}, 3, v{vL}", f"v_lshl_add_u32 v{t0}, v{t1}, 4, v{t0}",
           f"s_lshl_b32 s{sT2}, s{sT1}, 8", f"v_add_u32 v{t0}, s{sT2}, v{t0}", f"s_lshl_b32 s{sT2}, s{sW}, 6",
           f"v_add_u32 v{vPWs}, s{sT2}, v{t0}", f"v_add_u32 v{vPWs+1}, {16*1280-1024}, v{vPWs}"]
    for k in range(2):
        wC += [f"s_lshl_b32 s{sT2}, s{sT1}, 3", f"s_lshl_b32 s{sT3}, s{sW}, 1", f"s_add_u32 s{sT2}, s{sT2}, s{sT3}"]
        if k: wC += [f"s_add_u32 s{sT2}, s{sT2}, 1"]
        wC += [f"s_mul_i32 s{sT3}, s{sT2}, 52429", f"s_lshr_b32 s{sT3}, s{sT3}, 18", f"s_mul_i32 s{sD}, s{sT3}, 5",
               f"s_sub_u32 s{sT2}, s{sT2}, s{sD}", f"s_mul_i32 s{sT3}, s{sT3}, 88", f"s_add_u32 s{sT3}, s{sT3}, s{sT0}",
               f"s_add_u32 s{sT3}, s{sT3}, 40", f"s_mul_i32 s{sT3}, s{sT3}, 5", f"s_add_u32 s{sT3}, s{sT3}, s{sT2}",
               f"s_lshl_b32 s{sT3}, s{sT3}, 10", f"s_add_u32 s{sT3}, s{sT3}, {WS_W2}",
               f"v_lshlrev_b32 v{vPWd+k}, 4, v{vL}", f"v_add_u32 v{vPWd+k}, s{sT3}, v{vPWd+k}"]
    wC += [f"s_lshl_b32 s{sT0}, s2, 3", f"s_lshl_b32 s{sT1}, s{sW}, 1", f"s_add_u32 s{sT0}, s{sT0}, s{sT1}",
           f"s_mul_i32 s{sT1}, s{sT0}, 52429", f"s_lshr_b32 s{sT1}, s{sT1}, 21", f"s_mul_i32 s{sT2}, s{sT1}, 40",
           f"s_sub_u32 s{sT0}, s{sT0}, s{sT2}",
           [f"s_cmp_ge_u32 s{sT0}, 20", f"s_cselect_b32 s{sC3}, 1, 0", f"s_cselect_b32 s{sT2}, 20, 0"],
           f"s_sub_u32 s{sT2}, s{sT0}, s{sT2}",
           f"v_and_b32 v{t0}, 15, v{vL}", f"s_lshl_b32 s{sT3}, s{sT1}, 4", f"v_add_u32 v{t0}, s{sT3}, v{t0}",
           f"v_mul_u32_u24 v{t0}, 1280, v{t0}", f"v_lshrrev_b32 v{t1}, 4, v{vL}", f"v_lshl_add_u32 v{t0}, v{t1}, 4, v{t0}",
           f"s_lshl_b32 s{sT2}, s{sT2}, 6", f"v_add_u32 v{vPCs}, s{sT2}, v{t0}",
           f"s_mul_i32 s{sT3}, s{sT1}, 52429", f"s_lshr_b32 s{sT3}, s{sT3}, 18", f"s_mul_i32 s{sD}, s{sT3}, 5",
           f"s_sub_u32 s{sT1}, s{sT1}, s{sD}", f"s_mul_i32 s{sT3}, s{sT3}, 88", f"s_add_u32 s{sT3}, s{sT3}, s{sT0}",
           f"s_mul_i32 s{sT3}, s{sT3}, 5", f"s_add_u32 s{sT3}, s{sT3}, s{sT1}", f"s_lshl_b32 s{sT3}, s{sT3}, 10",
           f"s_add_u32 s{sT3}, s{sT3}, {WS_W2}", f"v_lshlrev_b32 v{vPCd}, 4, v{vL}", f"v_add_u32 v{vPCd}, s{sT3}, v{vPCd}",
           f"v_add_u32 v{vPCd+1}, {5*1024}, v{vPCd}",
           f"s_lshl_b32 s{sT0}, s{sW}, 11", f"s_add_u32 s95, s{sT0}, {MISC}"]
    weave(a, wC, stage_b(0), start=0)
    stp(a, "S0 issued")
    sm = [[f"s_mov_b32 s{SM}, s{P_LDT}", f"s_mov_b32 s{SM+1}, s{P_LDT+1}",
           f"s_cmp_eq_u32 s{sW}, 0", f"s_cselect_b32 s{SM}, s{P_LRE}, s{SM}", f"s_cselect_b32 s{SM+1}, s{P_LRE+1}, s{SM+1}",
           f"s_cmp_eq_u32 s{sW}, 1", f"s_cselect_b32 s{SM}, s{P_LIM}, s{SM}", f"s_cselect_b32 s{SM+1}, s{P_LIM+1}, s{SM+1}",
           f"s_mov_b32 s{SM+2}, 1280", f"s_mov_b32 s{SM+3}, 0x00020000",
           f"s_min_u32 s{sT0}, s{sW}, 2", f"s_lshl_b32 s{sT0}, s{sT0}, 8", f"s_add_u32 m0, s{sT0}, {CST}", "s_nop 0",
           f"buffer_load_dword v{TP+5}, s[{SM}:{SM+3}], 0 offen lds"]]
    pkl = []
    pkl += [srd(None, SM, P_WD, 1966080) + [f"s_cmp_lt_u32 s2, 240", f"s_cselect_b32 s{SM+2}, s{SM+2}, 0", "s_mov_b32 m0, s95", "s_nop 0",
           f"buffer_load_dwordx4 v{vPWs}, s[{SM}:{SM+3}], 0 offen lds"],
           [f"buffer_load_dwordx4 v{vPWs+1}, s[{SM}:{SM+3}], 0 offen offset:1024 lds"],
           [f"s_cmp_eq_u32 s{sC3}, 1", f"s_cselect_b32 s{SM}, s{P_CIM}, s{P_CRE}", f"s_cselect_b32 s{SM+1}, s{P_CIM+1}, s{P_CRE+1}",
            f"s_mov_b32 s{SM+2}, 819200", f"s_cmp_lt_u32 s2, 200", f"s_cselect_b32 s{SM+2}, s{SM+2}, 0",
            f"buffer_load_dwordx4 v[{PK}:{PK+3}], v{vPCs}, s[{SM}:{SM+3}], 0 offen"],
           [f"buffer_load_dwordx4 v[{PK+4}:{PK+7}], v{vPCs}, s[{SM}:{SM+3}], 0 offen offset:64"]]
    m, q = t0, t1
    wL = [f"v_and_b32 v{m}, 15, v{vL}", f"v_lshrrev_b32 v{q}, 4, v{vL}",
          f"v_lshrrev_b32 v{t2}, 2, v{m}", f"v_lshlrev_b32 v{t2}, 4, v{t2}", f"v_and_b32 v{t3}, 3, v{m}", f"v_add_u32 v{t2}, v{t2}, v{t3}",
          f"s_lshl_b32 s{sT0}, s{sRH}, 6", f"v_add_u32 v{t2}, s{sT0}, v{t2}", f"v_lshlrev_b32 v{t2}, 7, v{t2}",
          f"v_and_b32 v{t3}, 2, v{m}", f"v_lshrrev_b32 v{t4}, 3, v{m}", f"v_lshl_or_b32 v{t3}, v{t4}, 2, v{t3}",
          f"v_xor_b32 v{t3}, v{t3}, v{q}", f"v_lshl_add_u32 v{vX0}, v{t3}, 4, v{t2}", f"v_xor_b32 v{t3}, 4, v{t3}",
          f"v_lshl_add_u32 v{vX1}, v{t3}, 4, v{t2}",
          f"v_lshrrev_b32 v{t2}, 2, v{m}", f"v_lshl_add_u32 v{t2}, v{q}, 3, v{t2}", f"v_mul_u32_u24 v{t2}, 192, v{t2}",
          f"v_and_b32 v{t3}, 3, v{m}", f"v_lshl_add_u32 v{t2}, v{t3}, 3, v{t2}", f"v_and_b32 v{t3}, 1, v{q}",
          f"v_lshl_add_u32 v{vWa}, v{t3}, 5, v{t2}", f"v_xor_b32 v{t3}, 1, v{t3}", f"v_lshl_add_u32 v{vWb}, v{t3}, 5, v{t2}",
          [f"s_cmp_eq_u32 s{sCH}, 1", f"s_cselect_b64 vcc, -1, 0", f"v_cndmask_b32 v{vWc}, v{vWa}, v{vWb}, vcc"],
          f"v_add_u32 v{vWc}, 64, v{vWc}", f"s_lshl_b32 s{sT0}, s{sCH}, 7", f"v_add_u32 v{vWa}, s{sT0}, v{vWa}", f"v_add_u32 v{vWb}, s{sT0}, v{vWb}",
          f"v_and_b32 v{t2}, 1, v{m}", f"v_lshrrev_b32 v{t3}, 2, v{m}", f"v_lshl_add_u32 v{t3}, v{t3}, 1, v{t2}", f"v_xor_b32 v{t3}, v{t3}, v{q}",
          f"v_mul_u32_u24 v{t2}, 40, v{t2}", f"v_lshrrev_b32 v{t4}, 1, v{m}", f"v_add_u32 v{t2}, v{t2}, v{t4}", f"v_lshlrev_b32 v{t2}, 7, v{t2}",
          f"s_lshl_b32 s{sT0}, s{sCH}, 11", f"v_add_u32 v{t2}, s{sT0}, v{t2}", f"v_lshl_add_u32 v{vB0}, v{t3}, 4, v{t2}",
          f"v_xor_b32 v{t3}, 4, v{t3}", f"v_lshl_add_u32 v{vB1}, v{t3}, 4, v{t2}",
          f"s_lshl_b32 s{sT0}, s{sRH}, 2", f"v_add_u32 v{vSig}, s{sT0}, v{q}",
          f"v_and_b32 v{t2}, 1, v{vL}", f"v_cvt_f32_u32 v{t2}, v{t2}", f"v_fma_f32 v{vSgn}, v{t2}, 2.0, -1.0",
          f"v_lshrrev_b32 v{t2}, 2, v{m}", f"v_lshl_add_u32 v{t2}, v{q}, 2, v{t2}", f"v_lshlrev_b32 v{t2}, 6, v{t2}",
          f"v_and_b32 v{t3}, 3, v{m}", f"v_lshl_add_u32 v{t2}, v{t3}, 3, v{t2}", f"v_add_u32 v{vPtr}, s95, v{t2}",
          f"v_lshlrev_b32 v{vC}, 2, v{m}", f"s_lshl_b32 s{sT0}, s{sCH}, 7", f"v_add_u32 v{vAs}, s{sT0}, v{vC}",
          f"v_add_u32 v{vCm}, {MISC}, v{vC}", f"v_add_u32 v{vAe}, {MISC}, v{vAs}", f"v_lshl_add_u32 v{vAe}, v{vSig}, 8, v{vAe}",
          f"v_lshlrev_b32 v{vAe4}, 1, v{vSig}", f"v_add_u32 v{vAe4}, s{sCH}, v{vAe4}", f"v_lshl_add_u32 v{vAe4}, v{vAe4}, 6, v{vCm}",
          f"s_mul_i32 s{sT0}, s{sW}, 320", f"s_add_u32 s{sT0}, s{sT0}, {MISC}", f"v_add_u32 v{vRw}, s{sT0}, v{vAs}",
          f"v_lshlrev_b32 v{vWp}, 4, v{vL}", f"s_mul_i32 s{sT0}, s{sRB2}, {4*88*1024}", f"v_add_u32 v{vH}, s{sT0}, v{vWp}"]
    wL += [f"v_add_u32 v{vH+i}, {i*88*1024}, v{vH}" for i in range(1,4)]
    weave(a, wL, sm, start=0)
    stp(a, "small issued")
    for g_ in advk(sKX, sKG) + advk(sKB, sKU):
        for x in g_: a(x)
    wQ = []
    wQ += [f"s_mul_i32 s{sT0}, s{sCG}, {16*640}", f"s_add_u32 s{sT0}, s{sT0}, {WS_S}",
           f"v_mul_u32_u24 v{pa[0]}, 640, v{vSig}", f"v_lshl_add_u32 v{pa[0]}, v{vAs}, 1, v{pa[0]}", f"v_add_u32 v{pa[0]}, s{sT0}, v{pa[0]}",
           f"v_add_u32 v{pa[1]}, {8*640}, v{pa[0]}", f"v_lshlrev_b32 v{t0}, 1, v{vSig}", f"v_add_u32 v{t0}, s{sCH}, v{t0}",
           f"v_mul_u32_u24 v{pa[2]}, 640, v{t0}", f"v_lshl_add_u32 v{pa[2]}, v{vC}, 1, v{pa[2]}", f"v_add_u32 v{pa[2]}, s{sT0}, v{pa[2]}",
           f"v_add_u32 v{pa[2]}, {64*8}, v{pa[2]}", f"v_mov_b32 v{t4}, 0x7f000000", f"v_add_u32 v{t1}, 8, v{vSig}"]
    for (p_, src) in ((pa[0], vSig), (pa[1], t1), (pa[2], t0)):
        wQ += [[f"v_cmp_le_u32 vcc, s{sRB}, v{src}", "s_nop 1", f"v_cndmask_b32 v{p_}, v{p_}, v{t4}, vcc"]]
    S1 = stage_x(BUF) + stage_g(BUF) + stage_u(BUF) + stage_b(BUF)
    Z2 = 76
    wQ += [f"v_mov_b32 v{Z2+k}, 0" for k in range(4)] + ["s_nop 1"]
    wQ += [f"v_mfma_f32_32x32x16_bf16 v[{ACC+16*k}:{ACC+16*k+15}], v[{Z2}:{Z2+3}], v[{Z2}:{Z2+3}], 0" for k in range(8)]
    wQ += [f"v_mfma_f32_16x16x32_bf16 v[{ACC+128}:{ACC+131}], v[{Z2}:{Z2+3}], v[{Z2}:{Z2+3}], 0",
           f"v_mfma_f32_16x16x32_bf16 v[{ACC+132}:{ACC+135}], v[{Z2}:{Z2+3}], v[{Z2}:{Z2+3}], 0"]
    weave(a, wQ, S1 + pkl, start=0)
    for g_ in advk(sKX, sKG) + advk(sKB, sKU):
        for x in g_: a(x)
    a(f"s_mov_b32 s{sDB}, {2*BUF}")
    a(f"s_mov_b32 s{sCur}, 0"); a(f"s_mov_b32 s{sD}, {BUF}"); a(f"s_mov_b32 s{sC3}, 0")
    a(f"s_mov_b32 s{sStage}, 0")
    a(f"s_mov_b32 s{sBlk}, {(1<<1)|(1<<5):#x}")
    stp(a, "S1 issued")
    a("s_waitcnt vmcnt(17)")
    a("s_barrier")
    stp(a, "S0 landed")
    def cpow_s(dr, di, A, B, n, tm, sgn):
        o = []
        if n is None:
            o += [f"v_exp_f32 v{tm}, v{A}", f"v_rndne_f32 v{dr}, v{B}", f"v_sub_f32 v{tm+1}, v{B}, v{dr}"]
        else:
            o += [f"v_mul_f32 v{tm}, {n}, v{A}", f"v_mul_f32 v{tm+1}, {n}, v{B}", f"v_exp_f32 v{tm}, v{tm}",
                  f"v_rndne_f32 v{dr}, v{tm+1}", f"v_sub_f32 v{tm+1}, v{tm+1}, v{dr}"]
        o += [f"v_cos_f32 v{dr}, v{tm+1}", f"v_sin_f32 v{di}, v{tm+1}"]
        if sgn is not None:
            o += [f"v_mul_f32 v{dr}, v{tm}, v{dr}", f"v_mul_f32 v{tm}, v{sgn}, v{tm}", f"v_mul_f32 v{di}, v{tm}, v{di}"]
        else:
            o += [f"v_mul_f32 v{dr}, v{tm}, v{dr}", f"v_mul_f32 v{di}, v{tm}, v{di}"]
        return o
    def make_Wk():
        Wk = []
        for k in range(3):
            Wk += [f"ds_read_u16 v{CL+3*k}, v{c1} offset:{256*k}", f"ds_read_u16 v{CL+3*k+1}, v{c1} offset:{256*k+16}", f"ds_read_u16 v{CL+3*k+2}, v{c2} offset:{256*k}"]
        vN = 71
        Wk += [f"v_cvt_f32_u32 v{vN}, v{vSig}", f"v_mov_b32 v{vN+1}, 0x42e00000", f"s_mov_b32 s{sT0}, 0xc1800000",
               f"v_fma_f32 v{vN}, v{vN}, s{sT0}, v{vN+1}", f"s_lshl_b32 s{sT0}, s{sCH}, 3", f"s_sub_u32 s{sT0}, 8, s{sT0}",
               f"v_cvt_f32_u32 v{vN+2}, s{sT0}", f"v_add_f32 v{vN+2}, v{vN+2}, v{vN}"]
        Wk += ["s_waitcnt lgkmcnt(0)"]
        streams = []
        for T in range(3):
            tm = 80+2*T; dt = 86+T
            s_ = [f"v_lshlrev_b32 v{vLRE[T]}, 16, v{CL+T}", f"v_lshlrev_b32 v{vLIM[T]}, 16, v{CL+3+T}", f"v_lshlrev_b32 v{dt}, 16, v{CL+6+T}",
                  f"v_mul_f32 v{dt}, {LOG2E:#x}, v{dt}", f"v_exp_f32 v{dt}, v{dt}",
                  f"v_cvt_pk_bf16_f32 v{dt}, v{dt}, v{dt}", f"v_lshlrev_b32 v{dt}, 16, v{dt}",
                  f"v_mul_f32 v{vA[T]}, v{dt}, v{vLRE[T]}", f"v_mul_f32 v{vBx[T]}, v{dt}, v{vLIM[T]}",
                  f"v_mul_f32 v{vA[T]}, {LOG2E:#x}, v{vA[T]}", f"v_mul_f32 v{vBx[T]}, {INV2PI:#x}, v{vBx[T]}"]
            s_ += cpow_s(vLr[T], vLi[T], vA[T], vBx[T], None, tm, vSgn)
            s_ += cpow_s(vWSr[T], vWSi[T], vA[T], vBx[T], f"v{vN if T < 2 else vN+2}", tm, vSgn)
            streams.append(s_)
        Wk += [[x, y, z] for x, y, z in zip(*streams)]
        Wk += [f"s_and_b32 s14, s{sRB2}, 7", f"s_mul_i32 s14, s14, 3200", f"v_lshlrev_b32 v83, 7, v{vL}", f"v_add_u32 v83, s14, v83",
               [f"v_cmp_gt_u32 vcc, 25, v{vL}", f"v_mov_b32 v{t0}, 0x7f000000", "s_nop 0", f"v_cndmask_b32 v83, v{t0}, v83, vcc"],
               f"s_mul_i32 s15, s{sCB}, 88", f"s_mul_i32 s14, s{sW}, 12", f"s_add_u32 s14, s14, s15", f"s_add_u32 s14, s14, 47",
               f"s_mul_i32 s14, s14, 5120", f"s_mul_i32 s16, s{sW}, 5", f"s_add_u32 s15, s15, s16", f"s_mul_i32 s15, s15, 5120",
               f"s_add_u32 s16, s15, {20*5120}"]
        return Wk
    def pack_process():
        a("s_waitcnt vmcnt(7)")
        for k in range(2):
            a(f"ds_read_b64_tr_b16 v[{PK+8+4*k}:{PK+9+4*k}], v{vPtr} offset:{32*k}")
            a(f"ds_read_b64_tr_b16 v[{PK+10+4*k}:{PK+11+4*k}], v{vPtr} offset:{32*k+1024}")
        srd(a, SM, P_WS, WS_W2 + W2_SIZE)
        a(f"s_cmp_lt_u32 s2, 200"); a(f"s_cselect_b32 s{SM+2}, s{SM+2}, 0")
        a(f"buffer_store_dwordx4 v[{PK}:{PK+3}], v{vPCd}, s[{SM}:{SM+3}], 0 offen{SC}")
        a(f"buffer_store_dwordx4 v[{PK+4}:{PK+7}], v{vPCd+1}, s[{SM}:{SM+3}], 0 offen{SC}")
        a(f"v_lshlrev_b32 v{t0}, 5, v0"); a(f"v_add_u32 v{t0}, {MISC}, v{t0}")
        a("s_waitcnt lgkmcnt(0)")
        a(f"s_mov_b32 s{SM+2}, {WS_W2 + W2_SIZE}"); a(f"s_cmp_lt_u32 s2, 240"); a(f"s_cselect_b32 s{SM+2}, s{SM+2}, 0")
        a(f"buffer_store_dwordx4 v[{PK+8}:{PK+11}], v{vPWd}, s[{SM}:{SM+3}], 0 offen{SC}")
        a(f"buffer_store_dwordx4 v[{PK+12}:{PK+15}], v{vPWd+1}, s[{SM}:{SM+3}], 0 offen{SC}")
        Z = 76
        a(f"ds_write_b128 v{t0}, v[{Z}:{Z+3}]"); a(f"ds_write_b128 v{t0}, v[{Z}:{Z+3}] offset:16")
        a(f"v_mov_b32 v{t1}, 0")
        a(f"global_load_dword v{vNon}, v{t1}, s[{P_DBG}:{P_DBG+1}]{SC}")

    def dma_first(sdb):
        g = [f"s_add_u32 m0, s{sdb}, s{sOX}"] + [dma(vDX+i, SX, sKX, 1024*i) for i in range(4)]
        g += [f"s_add_u32 m0, s{sdb}, s{sOG}"] + [dma(vDW+i, SG, sKG, 1024*i) for i in range(3)]
        return g
    def dma_second(sdb):
        g = [f"s_add_u32 m0, s{sdb}, s{sOU}"] + [dma(vDW+i, SU, sKU, 1024*i) for i in range(3)]
        g += [f"s_add_u32 m0, s{sdb}, s{sOB}", dma(vDB, SB0, sKB, 0), dma(vDB+1, SB1, sKB, 1024)]
        g += [f"s_add_u32 m0, s{sdb}, s{sOB2}", dma(vDB+2, SB2, sKB, 0)]
        return g
    def reads(ch, s, setb):
        vX = vX0 if s == 0 else vX1
        vB = vB0 if s == 0 else vB1
        X = [f"ds_read_b128 a[{setb+4*i}:{setb+4*i+3}], v{vX} offset:{RX+i*512}" for i in range(4)]
        def tr(n, region, k):
            vW = (vWa, vWb, vWc)[k]
            b = setb + 16 + 4*n
            o = region + 6144*s
            return [f"ds_read_b64_tr_b16 a[{b}:{b+1}], v{vW} offset:{o}", f"ds_read_b64_tr_b16 a[{b+2}:{b+3}], v{vW} offset:{o+768}"]
        def sb(n, off):
            b = setb + 16 + 4*n
            return [f"ds_read_b128 a[{b}:{b+3}], v{vB} offset:{RB+off}"]
        W = []
        for k in range(3):
            W += tr(2*k, RG, k); W += tr(2*k+1, RU, k)
        W += sb(6, 0) + sb(7, 1024) + sb(8, 4096 - 2048*ch)
        return X[:1] + W[:2] + X[1:] + W[2:]
    def mfmas(ch, setb):
        out = []
        for n in range(6):
            for i in range(4):
                d = acc(n, i)
                out.append(f"v_mfma_f32_16x16x32_bf16 v[{d}:{d+3}], a[{setb+16+4*n}:{setb+16+4*n+3}], a[{setb+4*i}:{setb+4*i+3}], v[{d}:{d+3}]")
        for n in (6, 7):
            for i in range(4):
                d = acc(n, i)
                out.append(f"v_mfma_f32_16x16x32_bf16 v[{d}:{d+3}], a[{setb+4*i}:{setb+4*i+3}], a[{setb+16+4*n}:{setb+16+4*n+3}], v[{d}:{d+3}]")
        for k in range(2):
            i = 2*ch + k
            d = S4 + 4*k
            out.append(f"v_mfma_f32_16x16x32_bf16 v[{d}:{d+3}], a[{setb+4*i}:{setb+4*i+3}], a[{setb+16+32}:{setb+16+35}], v[{d}:{d+3}]")
        return out
    def substep(ch, setb, rd, dmas, late, seq=None, main=None):
        if main is None: main = mfmas(ch, setb)
        NG = len(main)
        gaps = [[] for _ in range(NG)]
        for i, r in enumerate(rd): gaps[i].append(r)
        loads = [x for x in dmas if "buffer_load" in x]
        nl = len(loads)
        last = 0
        if nl:
            pos = [1 + int(i*(NG-4)/nl) for i in range(nl)]
            li = 0; pend = []
            for x in dmas:
                if "buffer_load" in x:
                    p = pos[li]; pp = p - 1
                    for y in reversed(pend):
                        while len(gaps[pp]) >= 2: pp -= 1
                        assert pp >= 0
                        gaps[pp].append(y)
                    pend = []
                    while len(gaps[p]) >= 2: p += 1
                    gaps[p].append(x); last = p
                    li += 1
                else: pend.append(x)
            p = last + 1
            for y in pend:
                while len(gaps[p]) >= 2: p += 1
                gaps[p].append(y)
        g = 0
        for (e, ins) in late:
            g = max(g, e)
            while len(gaps[g]) + len(ins) > 2:
                g += 1
                assert g < NG, "late overflow"
            gaps[g].extend(ins)
        if seq is not None:
            g = 0
            while seq and g < NG:
                if len(gaps[g]) + len(seq[0]) <= 2:
                    gaps[g].extend(seq.pop(0))
                g += 1
        out = []
        for i in range(NG):
            out.append(main[i]); out.extend(gaps[i])
        return out
    def gate_seq():
        gw = [GLD, GLD+1, GLD+2, GLD+3, GLD+4]
        xr = [[GLD+6, GLD+7, GLD+8, GLD+9, GLD+5], [GLD+10, GLD+11, GLD+12, GLD+13, GLD+14]]
        ga = [73, 74]; u0, u1, u2, u3 = 75, 76, 77, 78
        flat = [f"v_mov_b32 v{ga[0]}, 0", f"v_mov_b32 v{ga[1]}, 0"]
        for i in range(5):
            flat += [f"v_lshlrev_b32 v{u0}, 16, v{gw[i]}", f"v_and_b32 v{u1}, 0xffff0000, v{gw[i]}"]
            for r in range(2):
                x_ = xr[r][i]
                flat += [f"v_lshlrev_b32 v{u2}, 16, v{x_}", f"v_and_b32 v{u3}, 0xffff0000, v{x_}",
                         f"v_mul_f32 v{u2}, v{u2}, v{u0}", f"v_mul_f32 v{u3}, v{u3}, v{u1}",
                         f"v_cvt_pk_bf16_f32 v{u2}, v{u2}, v{u3}",
                         f"v_and_b32 v{u3}, 0xffff0000, v{u2}", f"v_lshlrev_b32 v{u2}, 16, v{u2}",
                         f"v_add_f32 v{ga[r]}, v{ga[r]}, v{u2}", f"v_add_f32 v{ga[r]}, v{ga[r]}, v{u3}"]
        q_ = [flat[k:k+2] for k in range(0, len(flat), 2)]
        for sh, rm in (("row_shr:1","0xf"),("row_shr:2","0xf"),("row_shr:4","0xf"),("row_shr:8","0xf"),("row_bcast:15","0xa"),("row_bcast:31","0xc")):
            bc = " bound_ctrl:0" if sh.startswith("row_shr") else ""
            q_.append([f"v_add_f32_dpp v{ga[r]}, v{ga[r]}, v{ga[r]} {sh} row_mask:{rm} bank_mask:0xf{bc}" for r in range(2)])
        q_ += [[f"v_readlane_b32 s82, v{ga[0]}, 63", f"v_readlane_b32 s83, v{ga[1]}, 63"],
               [f"v_cmp_eq_u32 vcc, 0, v{vL}"],
               [f"v_mov_b32 v{u3}, s82", f"v_mov_b32 v{u2}, s83"],
               [f"v_cndmask_b32 v{u2}, v{u2}, v{u3}, vcc"], [f"v_cvt_pk_bf16_f32 v{u2}, v{u2}, v{u2}"],
               [f"v_lshlrev_b32 v{u2}, 16, v{u2}", f"v_mul_f32 v{u2}, 0xbfb8aa3b, v{u2}"],
               [f"v_exp_f32 v{u2}, v{u2}"], [f"v_add_f32 v{u2}, 1.0, v{u2}"], [f"v_rcp_f32 v{u2}, v{u2}"],
               [f"v_cvt_pk_bf16_f32 v{u2}, v{u2}, v{u2}"], [f"v_lshlrev_b32 v{vGv}, 16, v{u2}", f"s_lshl_b32 s82, s94, 2"],
               [f"s_add_u32 s82, s82, {WS_G}"], [f"v_lshl_add_u32 v{vGst}, v{vL}, 2, s82"]]
        return q_
    def wbase(g, j):
        if g < 7: return 104 + 20*g + 4*j
        if g < 11: return 20*(g-7) + 4*j
        return 80 + 4*j if j < 2 else 244 + 4*(j-2)
    SW2, SH = SX, SG
    sKW, sKW4, sKH = sKX, sKG, sKU
    def wload(g, j):
        b = wbase(g, j)
        if j < 4:
            o = f" offset:{1024*j}" if j else ""
            return f"buffer_load_dwordx4 a[{b}:{b+3}], v{vWp}, s[{SW2}:{SW2+3}], s{sKW} offen{o}{SCL}"
        return f"buffer_load_dwordx4 a[{b}:{b+3}], v{vWp}, s[{SW2}:{SW2+3}], s{sKW4} offen{SCL}"
    def wstep(g, inc=5120):
        return [wload(g, j) for j in range(5)] + [f"s_add_u32 s{sKW}, s{sKW}, {inc}", f"s_add_u32 s{sKW4}, s{sKW4}, {inc}"]

    XCH = BUF
    vHo, vHo2 = 81, 82
    def glu_part1(ch):
        a(f"s_lshl_b32 s{sT0}, s{sRB}, 1")
        a(f"s_add_u32 s{sT0}, s{sT0}, s{sRH}")
        a(f"s_mul_i32 s{sT0}, s{sT0}, {4*88}")
        a(f"s_mul_i32 s{sT1}, s{sCG}, 3")
        a(f"s_add_u32 s{sT0}, s{sT0}, s{sT1}")
        a(f"s_add_u32 s{sT0}, s{sT0}, 40")
        a(f"s_lshl_b32 s{sT1}, s{sCH}, 1")
        a(f"s_add_u32 s{sT1}, s{sT1}, s{sT0}")
        a(f"s_lshl_b32 s{sT1}, s{sT1}, 10")
        a(f"s_add_u32 s{sT0}, s{sT0}, 1")
        a(f"s_mul_i32 s{sT3}, s{sCH}, {2*88}")
        a(f"s_add_u32 s{sT0}, s{sT0}, s{sT3}")
        a(f"s_lshl_b32 s{sT0}, s{sT0}, 10")
        a(f"v_add_u32 v{vHo}, s{sT1}, v{vWp}")
        a(f"v_add_u32 v{vHo2}, s{sT0}, v{vWp}")
        for i in range(4):
            G0, U0, G1, U1 = [acc(n, i) for n in range(4)]
            for (G, Uu) in ((G0, U0), (G1, U1)):
                a(f"v_pk_mul_f32 v[{G}:{G+1}], v[{G}:{G+1}], v[{Uu}:{Uu+1}]")
                a(f"v_pk_mul_f32 v[{G+2}:{G+3}], v[{G+2}:{G+3}], v[{Uu+2}:{Uu+3}]")
            a(f"v_cvt_pk_bf16_f32 v{U0}, v{G0}, v{G0+1}")
            a(f"v_cvt_pk_bf16_f32 v{U0+1}, v{G0+2}, v{G0+3}")
            a(f"v_cvt_pk_bf16_f32 v{U0+2}, v{G1}, v{G1+1}")
            a(f"v_cvt_pk_bf16_f32 v{U0+3}, v{G1+2}, v{G1+3}")
            a(f"v_add_u32 v{G0}, {i*88*1024}, v{vHo}")
            a(f"global_store_dwordx4 v{G0}, v[{U0}:{U0+3}], s[{P_WS}:{P_WS+1}]{SC}")
        for i in range(4):
            G2, U2 = acc(4, i), acc(5, i)
            a(f"v_pk_mul_f32 v[{G2}:{G2+1}], v[{G2}:{G2+1}], v[{U2}:{U2+1}]")
            a(f"v_pk_mul_f32 v[{G2+2}:{G2+3}], v[{G2+2}:{G2+3}], v[{U2+2}:{U2+3}]")
        for i in range(4):
            G2, U2 = acc(4, i), acc(5, i)
            a(f"v_cvt_pk_bf16_f32 v{U2}, v{G2}, v{G2+1}")
            a(f"v_cvt_pk_bf16_f32 v{U2+1}, v{G2+2}, v{G2+3}")
        a(f"s_lshl_b32 s{sT1}, s{sW}, 10")
        a(f"v_lshlrev_b32 v{t1}, 3, v{vL}")
        a(f"v_add_u32 v{t2}, s{sT1}, v{t1}")
        give = (2, 3) if ch == 0 else (0, 1)
        for k, i in enumerate(give):
            a(f"ds_write_b64 v{t2}, v[{acc(5,i)}:{acc(5,i)+1}] offset:{XCH+512*k}")
    A_, B_ = 0, 52
    a(f"s_cmp_eq_u32 s{sCH}, 1")
    a(f"s_cbranch_scc1 L_pre1")
    rot0 = lambda: [(24, [f"s_mov_b32 s{sF}, s{sCur}"]), (24, [f"s_add_u32 s{sCur}, s{sCur}, s{sD}"]),
                  (24, [f"s_add_u32 s{sC3}, s{sC3}, 1"]),
                  (24, [f"s_cmp_eq_u32 s{sC3}, 3", f"s_cselect_b32 s{sC3}, 0, s{sC3}"]),
                  (24, [f"s_cmp_eq_u32 s{sC3}, 2", f"s_cselect_b32 s{sD}, {3*BUF}, 0"]),
                  (24, [f"s_sub_u32 s{sD}, {BUF}, s{sD}"])]
    n0 = stp.n
    for ch in (0, 1):
        stp.n = n0
        a.label(f"L_pre{ch}")
        for r in reads(ch, 0, A_): a(r)
        a(f"v_add_u32 v{vX0}, {BUF}, v{vX0}")
        a(f"v_add_u32 v{vB0}, {BUF}, v{vB0}")
        d1 = dma_first(sDB)
        grp = []; cur_ = []
        for x in d1:
            cur_.append(x)
            if "m0" in x.split(",")[0]: cur_.append("s_nop 0")
            if "buffer_load" in x: grp.append(cur_); cur_ = []
        grp[-1] += cur_
        weave(a, make_Wk(), grp, start=1)
        pack_process()
        a("s_waitcnt lgkmcnt(0)")
        stp(a, "prologue")
        a(".p2align 3")
        if "mis" in FLAGS: a("s_nop 0")
        a.label(f"L_loop{ch}")
        late0 = [(2, g_) for g_ in advk(sKX, sKG)] + [(19, [f"v_add_u32 v{r}, s{sD}, v{r}"]) for r in (vWa, vWb, vWc, vX1, vB1)] + rot0()
        for x in substep(ch, A_, reads(ch, 1, B_), dma_second(sDB), late0): a(x)
        a(f"s_waitcnt vmcnt(13) lgkmcnt(0)")
        a("s_barrier")
        if LSTAMP: a("s_memtime s[38:39]")
        late1 = [(2, g_) for g_ in advk(sKB, sKU)] + [(19, [f"v_add_u32 v{r}, s{sD}, v{r}"]) for r in (vX0, vB0)]
        late1 += [(20, [f"s_mov_b32 s{sDB}, s{sF}"])]
        late1 += [(32, [f"s_bitcmp1_b32 s{sBlk}, s{sStage}", f"s_cbranch_scc1 L_blk{ch}"])]
        body = substep(ch, B_, reads(ch, 0, A_), dma_first(sF), late1)
        for x in body:
            a(x)
            if x.startswith("s_cbranch_scc1 L_blk"): a.label(f"L_blkr{ch}")
        a(f"s_add_u32 s{sStage}, s{sStage}, 1")
        a(f"s_cmp_lt_u32 s{sStage}, 7")
        a("s_waitcnt lgkmcnt(0)")
        if LSTAMP:
            a(f"v_cmp_eq_u32 vcc, s{sStage}, v{vL}"); a(f"v_mov_b32 v79, s38"); a("s_nop 0"); a(f"v_cndmask_b32 v80, v80, v79, vcc")
        a(f"s_cbranch_scc1 L_loop{ch}")
        stp(a, "loop")
        lt = [(19, [f"v_add_u32 v{r}, {BUF}, v{r}"]) for r in (vWa, vWb, vWc, vX1, vB1)]
        lt += [(24, [x]) for x in srd(None, SW2, P_WS, W2_SIZE, add=WS_W2)[:0]]
        for x in substep(ch, A_, reads(ch, 1, B_), dma_second(sDB), lt): a(x)
        a(f"s_waitcnt vmcnt(13) lgkmcnt(0)")
        a("s_barrier")
        spin_init(a)
        a.label(f"L_pf{ch}")
        a(f"v_cmp_ne_u32 vcc, s{sNonce}, v{vPF}")
        a(f"v_cmp_ne_u32 s[{sEX}:{sEX+1}], s{sNonce}, v{vPF+1}")
        a(f"s_or_b64 vcc, vcc, s[{sEX}:{sEX+1}]")
        a(f"v_cmp_ne_u32 s[{sEX}:{sEX+1}], s{sNonce}, v{vPF+2}")
        a(f"s_or_b64 vcc, vcc, s[{sEX}:{sEX+1}]")
        a(f"v_cmp_ne_u32 s[{sEX}:{sEX+1}], s{sNonce}, v{vPF+3}")
        a(f"s_or_b64 vcc, vcc, s[{sEX}:{sEX+1}]")
        a(f"s_cmp_eq_u64 vcc, 0")
        a(f"s_cbranch_scc1 L_pfok{ch}")
        spin_guard(a, f"L_pfok{ch}")
        a(f"v_lshlrev_b32 v{t0}, 4, v{vL}")
        a(f"v_add_u32 v{t0}, {WS_PF}, v{t0}")
        a(f"global_load_dwordx4 v[{vPF}:{vPF+3}], v{t0}, s[{P_WS}:{P_WS+1}]{SC}")
        a("s_waitcnt vmcnt(0)")
        a(f"s_branch L_pf{ch}")
        a.label(f"L_pfok{ch}")
        srd(a, SW2, P_WS, W2_SIZE, add=WS_W2)
        a(f"s_mul_i32 s{sKW}, s{sCB}, 88")
        a(f"s_mul_i32 s{sT0}, s{sW}, 12")
        a(f"s_add_u32 s{sKW}, s{sKW}, s{sT0}")
        a(f"s_add_u32 s{sKW}, s{sKW}, 40")
        a(f"s_mul_i32 s{sKW}, s{sKW}, 5120")
        a(f"s_add_u32 s{sKW4}, s{sKW}, 4096")
        allw = []
        for g in range(7): allw += wstep(g)
        def take(n):
            out = []; c = 0
            while allw and (c < n or "buffer_load" not in allw[0]):
                x = allw.pop(0); out.append(x)
                if "buffer_load" in x: c += 1
            return out
        lt = [(19, [f"v_add_u32 v{r}, {(-2*BUF) & 0xffffffff:#x}, v{r}"]) for r in (vX0, vB0)]
        gq = gate_seq()
        for x in substep(ch, B_, reads(ch, 0, A_), take(8), lt, gq): a(x)
        a("s_waitcnt lgkmcnt(0)")
        lt = [(19, [f"v_add_u32 v{r}, {(-2*BUF) & 0xffffffff:#x}, v{r}"]) for r in (vWa, vWb, vWc, vX1, vB1)]
        for x in substep(ch, A_, reads(ch, 1, B_), take(8), lt, gq): a(x)
        a(f"s_waitcnt vmcnt(16) lgkmcnt(0)")
        a("s_barrier")
        wt = []
        if "wt" in FLAGS:
            wt = [(20, [f"buffer_load_dword v99, v83, s[{SX}:{SX+3}], s14 offen{SCL}"]),
                  (24, [f"buffer_load_dword v99, v83, s[{SX}:{SX+3}], s15 offen{SCL}"]),
                  (28, [f"buffer_load_dword v99, v83, s[{SX}:{SX+3}], s16 offen{SCL}"])]
        for x in substep(ch, B_, reads(ch, 0, A_), take(8), wt, gq): a(x)
        a("s_waitcnt lgkmcnt(0)")
        for x in substep(ch, A_, reads(ch, 1, B_), take(6), [], gq, main=mfmas(ch, A_)[:24]): a(x)
        a("s_waitcnt lgkmcnt(0)")
        for x in substep(ch, B_, [], take(5), [], gq, main=mfmas(ch, B_)[:24]): a(x)
        assert not allw
        stp(a, "tailG")
        glu_part1(ch)
        stp(a, "glu1")
        for x in substep(ch, A_, [], [], [], gq, main=mfmas(ch, A_)[24:] + mfmas(ch, B_)[24:]): a(x)
        assert not gq, len(gq)
        a("s_mov_b64 exec, 3")
        a(f"global_store_dword v{vGst}, v{vGv}, s[{P_WS}:{P_WS+1}]{SC}")
        a("s_mov_b64 exec, -1")
        a(f"s_branch L_epi")
        a.label(f"L_blk{ch}")
        a(f"s_cmp_eq_u32 s{sStage}, 1")
        a(f"s_cbranch_scc1 L_b0_{ch}")
        a(f"v_lshlrev_b32 v{t0}, 4, v{vL}")
        a(f"v_add_u32 v{t0}, {WS_PF}, v{t0}")
        a(f"global_load_dwordx4 v[{vPF}:{vPF+3}], v{t0}, s[{P_WS}:{P_WS+1}]{SC}")
        a(f"s_lshl_b32 s{sT1}, s{sRB}, 7")
        a(f"s_lshl_b32 s{sT2}, s{sRH}, 6")
        a(f"s_add_u32 s{sT1}, s{sT1}, s{sT2}")
        a(f"s_lshl_b32 s{sT2}, s{sCG}, 2")
        a(f"s_add_u32 s{sT1}, s{sT1}, s{sT2}")
        a(f"s_lshl_b32 s{sT2}, s{sCH}, 1")
        a(f"s_add_u32 s94, s{sT1}, s{sT2}")
        a(f"s_mul_i32 s{sT1}, s94, 1280")
        a(f"v_lshlrev_b32 v{t0}, 2, v{vL}")
        a(f"v_add_u32 v{t1}, s{sT1}, v{vWp}")
        a(f"v_add_u32 v{t2}, s{sT1}, v{t0}")
        a(f"global_load_dwordx4 v[{GLD}:{GLD+3}], v{vWp}, s[{P_GW}:{P_GW+1}]")
        a(f"global_load_dword v{GLD+4}, v{t0}, s[{P_GW}:{P_GW+1}] offset:1024")
        a(f"global_load_dwordx4 v[{GLD+6}:{GLD+9}], v{t1}, s[{P_X}:{P_X+1}]")
        a(f"global_load_dword v{GLD+5}, v{t2}, s[{P_X}:{P_X+1}] offset:1024")
        a(f"global_load_dwordx4 v[{GLD+10}:{GLD+13}], v{t1}, s[{P_X}:{P_X+1}] offset:1280")
        a(f"global_load_dword v{GLD+14}, v{t2}, s[{P_X}:{P_X+1}] offset:2304")
        a(f"s_branch L_blkr{ch}")
        a.label(f"L_b0_{ch}")
        spin_init(a)
        a.label(f"L_np{ch}")
        a(f"v_readfirstlane_b32 s{sNonce}, v{vNon}")
        a(f"s_cmp_lg_u32 s{sNonce}, 0")
        a(f"s_cbranch_scc1 L_nok{ch}")
        spin_guard(a, f"L_nok{ch}")
        a(f"v_mov_b32 v{t0}, 0")
        a(f"global_load_dword v{vNon}, v{t0}, s[{P_DBG}:{P_DBG+1}]{SC}")
        a("s_waitcnt vmcnt(0)")
        a(f"s_branch L_np{ch}")
        a.label(f"L_nok{ch}")
        a(f"s_cmp_lg_u32 s{sW}, 0")
        a(f"s_cbranch_scc1 L_blkr{ch}")
        a(f"s_lshl_b32 s{sT1}, s2, 2")
        a(f"s_add_u32 s{sT1}, s{sT1}, {WS_PF}")
        a(f"v_mov_b32 v{t0}, s{sT1}")
        a(f"v_mov_b32 v{t1}, s{sNonce}")
        a(f"s_mov_b64 exec, 1")
        a(f"global_store_dword v{t0}, v{t1}, s[{P_WS}:{P_WS+1}]{SC}")
        a(f"s_mov_b64 exec, -1")
        a(f"s_branch L_blkr{ch}")

    a.label("L_epi")
    stp(a, "tail")
    if LSTAMP:
        a(f"s_lshl_b32 s{sT0}, s2, 2")
        a(f"s_add_u32 s{sT0}, s{sT0}, s{sW}")
        a(f"s_lshl_b32 s{sT0}, s{sT0}, 8")
        a(f"s_add_u32 s{sT0}, s{sT0}, {WS_STAMP + 0x40000}")
        a(f"v_lshl_add_u32 v79, v{vL}, 2, s{sT0}")
        a(f"global_store_dword v79, v80, s[{P_WS}:{P_WS+1}]")
    a("s_nop 7")
    U = [SA, SBt, S4]; NS = [16, 16, 8]
    eA = [56, 57, 58]; eB = [59, 60, 61]
    cur = [U[T] for T in range(3)]
    for k in range(1, 16):
        Ts = [T for T in range(3) if k < NS[T]]
        dst = eA if (k & 1) else eB
        for T in Ts: a(f"v_fma_f32 v{dst[T]}, v{vLr[T]}, v{cur[T]}, v{U[T]+k}")
        for T in Ts:
            a(f"v_fmac_f32_dpp v{dst[T]}, v{cur[T]}, v{vLi[T]} {DPPSW}")
            cur[T] = dst[T]
    ew = [62, 63, 64]; ex = [65, 66, 67]
    a(f"s_mul_i32 s{sT0}, s{sW}, 320")
    a(f"s_add_u32 s{sT0}, s{sT0}, {MISC}")
    for T in range(3): a(f"v_mul_f32 v{ew[T]}, v{vWSr[T]}, v{cur[T]}")
    for T in range(3): a(f"v_fmac_f32_dpp v{ew[T]}, v{cur[T]}, v{vWSi[T]} {DPPSW}")
    a(f"v_add_u32 v{t0}, s{sT0}, v{vC}")
    a(f"ds_write_b32 v{vAe}, v{cur[0]} offset:{EF0}")
    a(f"ds_write_b32 v{vAe}, v{cur[1]} offset:{EF0+64}")
    a(f"ds_write_b32 v{vAe4}, v{cur[2]} offset:{E40}")
    def qreduce(vals, tmps):
        for v, t in zip(vals, tmps): a(f"v_mov_b32 v{t}, v{v}")
        a("s_nop 0")
        for v, t in zip(vals, tmps): a(f"v_permlane16_swap_b32 v{v}, v{t}")
        a("s_nop 0")
        for v, t in zip(vals, tmps): a(f"v_add_f32 v{v}, v{v}, v{t}")
        for v, t in zip(vals, tmps): a(f"v_mov_b32 v{t}, v{v}")
        a("s_nop 0")
        for v, t in zip(vals, tmps): a(f"v_permlane32_swap_b32 v{v}, v{t}")
        a("s_nop 0")
        for v, t in zip(vals, tmps): a(f"v_add_f32 v{v}, v{v}, v{t}")
    qreduce(ew, ex)
    a(f"ds_write_b32 v{vRw}, v{ew[0]} offset:{SWB}")
    a(f"ds_write_b32 v{vRw}, v{ew[1]} offset:{SWB+64}")
    a(f"ds_write_b32 v{t0}, v{ew[2]} offset:{SWB+256}")
    a("s_waitcnt lgkmcnt(0)")
    a("s_barrier")
    stp(a, "passA")
    a(f"s_xor_b32 s{sT1}, s{sW}, 1")
    a(f"s_lshl_b32 s{sT1}, s{sT1}, 10")
    a(f"v_lshlrev_b32 v{t1}, 3, v{vL}")
    a(f"v_add_u32 v{t2}, s{sT1}, v{t1}")
    a(f"v_add_u32 v{t4}, {88*1024}, v{vHo2}")
    a(f"s_cmp_eq_u32 s{sCH}, 1")
    a(f"s_cbranch_scc1 L_xr1")
    for k in range(2):
        a(f"ds_read_b64 v[{acc(5,k)+2}:{acc(5,k)+3}], v{t2} offset:{XCH+512*k}")
    a("s_waitcnt lgkmcnt(0)")
    a(f"global_store_dwordx4 v{vHo2}, v[{acc(5,0)}:{acc(5,0)+3}], s[{P_WS}:{P_WS+1}]{SC}")
    a(f"global_store_dwordx4 v{t4}, v[{acc(5,1)}:{acc(5,1)+3}], s[{P_WS}:{P_WS+1}]{SC}")
    a(f"s_branch L_xr2")
    a.label("L_xr1")
    for k in range(2):
        a(f"ds_read_b64 v[{acc(4,2+k)}:{acc(4,2+k)+1}], v{t2} offset:{XCH+512*k}")
        a(f"v_mov_b32 v{acc(4,2+k)+2}, v{acc(5,2+k)}")
        a(f"v_mov_b32 v{acc(4,2+k)+3}, v{acc(5,2+k)+1}")
    a("s_waitcnt lgkmcnt(0)")
    a(f"global_store_dwordx4 v{vHo2}, v[{acc(4,2)}:{acc(4,2)+3}], s[{P_WS}:{P_WS+1}]{SC}")
    a(f"global_store_dwordx4 v{t4}, v[{acc(4,3)}:{acc(4,3)+3}], s[{P_WS}:{P_WS+1}]{SC}")
    a.label("L_xr2")
    a(f"s_cmp_lg_u32 s{sW}, 0")
    a(f"s_cbranch_scc1 L_nopub")
    PB = 68
    a(f"v_lshlrev_b32 v{t0}, 3, v{vL}")
    a(f"v_add_u32 v{t0}, {MISC}, v{t0}")
    for w in range(4): a(f"ds_read_b64 v[{PB+2*w}:{PB+2*w+1}], v{t0} offset:{SWB+320*w}")
    a(f"s_lshl_b32 s{sT0}, s{sCG}, 4")
    a(f"s_add_u32 s{sT0}, s{sT0}, s{sRB}")
    a(f"s_mul_i32 s{sT0}, s{sT0}, 640")
    a(f"s_add_u32 s{sT0}, s{sT0}, {WS_S}")
    a(f"v_lshlrev_b32 v{t0}, 4, v{vL}")
    a(f"v_add_u32 v{t0}, s{sT0}, v{t0}")
    a(f"v_mov_b32 v{PB+9}, s{sNonce}")
    a(f"v_mov_b32 v{PB+11}, s{sNonce}")
    a(f"v_cmp_gt_u32 vcc, 40, v{vL}")
    a("s_waitcnt lgkmcnt(0)")
    a(f"v_pk_add_f32 v[{PB}:{PB+1}], v[{PB}:{PB+1}], v[{PB+2}:{PB+3}]")
    a(f"v_pk_add_f32 v[{PB+4}:{PB+5}], v[{PB+4}:{PB+5}], v[{PB+6}:{PB+7}]")
    a(f"v_pk_add_f32 v[{PB}:{PB+1}], v[{PB}:{PB+1}], v[{PB+4}:{PB+5}]")
    a(f"s_and_saveexec_b64 s[{sEX}:{sEX+1}], vcc")
    a(f"v_mov_b32 v{PB+8}, v{PB}")
    a(f"v_mov_b32 v{PB+10}, v{PB+1}")
    a(f"global_store_dwordx4 v{t0}, v[{PB+8}:{PB+11}], s[{P_WS}:{P_WS+1}]{SC}")
    a(f"s_mov_b64 exec, s[{sEX}:{sEX+1}]")
    a.label("L_nopub")
    stp(a, "pub")
    pre = []
    for g in range(7, 12):
        ws_ = wstep(g)
        pre += [[x] for x in ws_[:4]] + [[ws_[4], ws_[5], ws_[6]]]
    X = ACC
    vMr = [X, X+1, X+2]; vMi = [X+3, X+4, X+5]
    vC2r = [X+6, X+7, X+8]; vC2i = [X+9, X+10, X+11]
    vHr = [X+12, X+13, X+14]; vHi = [X+15, X+16, X+17]
    vW0r = [X+18, X+19, X+20]; vW0i = [X+21, X+22, X+23]
    vW1r = [X+24, X+25]; vW1i = [X+26, X+27]
    vLi2 = [X+28, X+29, X+30]
    nOff, nW0, nW1, nOff4, nW4 = X+32, X+33, X+34, X+35, X+36
    vm0, vm1, vm4 = X+37, X+38, X+39
    W = []
    W += [f"v_cvt_f32_u32 v{nOff}, v{vSig}", f"v_mul_f32 v{nOff}, 0x41800000, v{nOff}", f"s_lshl_b32 s{sT0}, s{sCH}, 3",
          f"v_cvt_f32_u32 v{nOff4}, s{sT0}", f"v_add_f32 v{nOff4}, v{nOff4}, v{nOff}",
          f"s_sub_u32 s{sT0}, s{sRB}, 1", f"v_sub_u32 v{t0}, s{sT0}, v{vSig}", f"v_subrev_u32 v{t1}, 8, v{t0}",
          f"v_sub_u32 v{t2}, v{t0}, v{vSig}", f"v_subrev_u32 v{t2}, s{sCH}, v{t2}"]
    for (n_, mreg, src) in ((nW0, vm0, t0), (nW1, vm1, t1), (nW4, vm4, t2)):
        W += [[f"v_cmp_le_i32 vcc, 0, v{src}", f"v_max_i32 v{n_}, 0, v{src}", f"v_cvt_f32_i32 v{n_}, v{n_}",
               f"v_cndmask_b32 v{mreg}, 0, 1.0, vcc"], f"v_mul_f32 v{n_}, 0x43000000, v{n_}"]
    W += [f"v_mov_b32 v{X+40}, 0x41800000", f"v_mov_b32 v{X+41}, 0x41000000"]
    streams = []
    for T in range(3):
        tm = X+44+6*T
        pr, pi, cr, ci = tm+2, tm+3, tm+4, tm+5
        s_ = cpow_s(vMr[T], vMi[T], vA[T], vBx[T], f"v{X+40 if T < 2 else X+41}", tm, vSgn)
        s_ += [f"v_mul_f32 v{pi}, v{vSgn}, v{vLi[T]}", f"v_add_f32 v{pr}, -1.0, v{vLr[T]}",
               f"v_mul_f32 v{tm}, v{vLRE[T]}, v{vLRE[T]}", f"v_fmac_f32 v{tm}, v{vLIM[T]}, v{vLIM[T]}", f"v_rcp_f32 v{tm}, v{tm}",
               f"v_mul_f32 v{cr}, v{pr}, v{vLRE[T]}", f"v_fmac_f32 v{cr}, v{pi}, v{vLIM[T]}",
               f"v_mul_f32 v{ci}, v{pi}, v{vLRE[T]}", f"v_fma_f32 v{ci}, -v{pr}, v{vLIM[T]}, v{ci}",
               f"v_add_f32 v{tm}, v{tm}, v{tm}", f"v_mul_f32 v{cr}, v{tm}, v{cr}", f"v_mul_f32 v{ci}, v{tm}, v{ci}",
               f"v_mul_f32_e64 v{vC2r[T]}, -v{vSgn}, v{cr}", f"v_sub_f32 v{vC2i[T]}, 0, v{ci}", f"v_sub_f32 v{vLi2[T]}, 0, v{vLi[T]}"]
        s_ += cpow_s(pr, pi, vA[T], vBx[T], f"v{nOff if T < 2 else nOff4}", tm, None)
        s_ += [f"v_mul_f32 v{vHr[T]}, v{cr}, v{pr}", f"v_fma_f32 v{vHr[T]}, -v{ci}, v{pi}, v{vHr[T]}",
               f"v_mul_f32 v{vHi[T]}, v{cr}, v{pi}", f"v_fmac_f32 v{vHi[T]}, v{ci}, v{pr}",
               f"v_mul_f32_e64 v{vHr[T]}, -v{vSgn}, v{vHr[T]}", f"v_sub_f32 v{vHi[T]}, 0, v{vHi[T]}"]
        s_ += cpow_s(vW0r[T], vW0i[T], vA[T], vBx[T], f"v{nW0 if T < 2 else nW4}", tm, vSgn)
        mk = vm0 if T < 2 else vm4
        s_ += [f"v_mul_f32 v{vW0r[T]}, v{mk}, v{vW0r[T]}", f"v_mul_f32 v{vW0i[T]}, v{mk}, v{vW0i[T]}"]
        if T < 2:
            s_ += cpow_s(vW1r[T], vW1i[T], vA[T], vBx[T], f"v{nW1}", tm, vSgn)
            s_ += [f"v_mul_f32 v{vW1r[T]}, v{vm1}, v{vW1r[T]}", f"v_mul_f32 v{vW1i[T]}, v{vm1}, v{vW1i[T]}"]
        streams.append(s_)
    W += rr(*streams)
    for x in W:
        if isinstance(x, str): a(x)
        else:
            for y in x: a(y)
    stp(a, "consts2")
    a("s_waitcnt vmcnt(0)")
    vFo = 18
    a(f"s_lshl_b32 s{sT0}, s{sRB}, 1")
    a(f"s_add_u32 s{sT0}, s{sT0}, s{sRH}")
    a(f"s_lshl_b32 s{sT0}, s{sT0}, 4")
    a(f"s_add_u32 s{sT0}, s{sT0}, s{sCG}")
    a(f"s_lshl_b32 s{sT0}, s{sT0}, 1")
    a(f"s_add_u32 s{sT0}, s{sT0}, s{sCH}")
    a(f"s_lshl_b32 s{sT0}, s{sT0}, 2")
    a(f"s_add_u32 s{sT0}, s{sT0}, {WS_FB}")
    a(f"v_mov_b32 v{vFo}, s{sT0}")
    a(f"v_mov_b32 v{t0}, s{sNonce}")
    a(f"s_mov_b64 exec, 1")
    a(f"global_store_dword v{vFo}, v{t0}, s[{P_WS}:{P_WS+1}]{SC}")
    a(f"s_mov_b64 exec, -1")
    stp(a, "flagB")


    Hp = [65, 66, 67]; hx = [56, 57, 58]; bad = 68
    vFl = 24
    a(f"s_lshl_b32 s{sT0}, s{sRB2}, 7")
    a(f"s_lshl_b32 s{sT1}, s{sW}, 5")
    a(f"s_add_u32 s{sT0}, s{sT0}, s{sT1}")
    a(f"v_and_b32 v{vFl}, 7, v{vL}")
    a(f"v_lshlrev_b32 v{vFl}, 2, v{vFl}")
    a(f"v_add_u32 v{vFl}, s{sT0}, v{vFl}")
    a(f"v_add_u32 v{vFl}, {WS_FB}, v{vFl}")
    srd(a, SH, P_WS, WS_G)
    srd(a, SM, P_WS, WS_S + 256*640)
    R = 70
    FBV = 80
    def poll_loads():
        a(f"buffer_load_dwordx2 v[{R}:{R+1}], v{pa[0]}, s[{SM}:{SM+3}], 0 offen{SC}")
        a(f"buffer_load_dwordx2 v[{R+2}:{R+3}], v{pa[0]}, s[{SM}:{SM+3}], 0 offen offset:128{SC}")
        a(f"buffer_load_dwordx2 v[{R+4}:{R+5}], v{pa[1]}, s[{SM}:{SM+3}], 0 offen{SC}")
        a(f"buffer_load_dwordx2 v[{R+6}:{R+7}], v{pa[1]}, s[{SM}:{SM+3}], 0 offen offset:128{SC}")
        a(f"buffer_load_dwordx2 v[{R+8}:{R+9}], v{pa[2]}, s[{SM}:{SM+3}], 0 offen{SC}")
    poll_loads()
    PE = X+64
    W = [f"v_subrev_u32 v{t0}, 256, v{vAe}"]
    for T in range(2):
        for k in range(7): W.append(f"ds_read_b32 v{PE+7*T+k}, v{t0} offset:{EF0 + 64*T - 256*k}")
    W.append(f"v_subrev_u32 v{t1}, 64, v{vAe4}")
    for k in range(15): W.append(f"ds_read_b32 v{PE+14+k}, v{t1} offset:{E40 - 64*k}")
    tu = [56, 57, 58]
    for k in range(16):
        Ts = [T for T in range(3) if k < NS[T]]
        for T in Ts: W.append(f"v_mul_f32 v{tu[T]}, v{vC2r[T]}, v{U[T]+k}")
        for T in Ts: W.append(f"v_fmac_f32_dpp v{tu[T]}, v{U[T]+k}, v{vC2i[T]} {DPPSW}")
        for T in Ts: W.append(f"v_mov_b32 v{U[T]+k}, v{tu[T]}")
    W.append("s_waitcnt lgkmcnt(0)")
    Pc = [PE+6, PE+13, PE+14+14]
    Pt = [[59, 60], [61, 62], [63, 64]]
    nch = [7, 7, 15]; base = [PE, PE+7, PE+14]
    for stepk in range(1, 15):
        Ts = [T for T in range(3) if stepk < nch[T]]
        dst = {T: Pt[T][stepk & 1] for T in Ts}
        grp = []
        for T in Ts: grp.append(f"v_fma_f32 v{dst[T]}, v{vMr[T]}, v{Pc[T]}, v{base[T] + nch[T]-1-stepk}")
        if len(Ts) == 1: grp.append("s_nop 0")
        for T in Ts:
            grp.append(f"v_fmac_f32_dpp v{dst[T]}, v{Pc[T]}, v{vMi[T]} {DPPSW}")
            Pc[T] = dst[T]
        if len(Ts) == 1: grp.append("s_nop 0")
        W += grp
    W.append("s_nop 1")
    for T in range(3): W.append(f"v_mul_f32 v{Ps[T]}, v{vC2r[T]}, v{Pc[T]}")
    for T in range(3): W.append(f"v_fmac_f32_dpp v{Ps[T]}, v{Pc[T]}, v{vC2i[T]} {DPPSW}")
    W += [f"v_mov_b32 v7, v{vAs}", f"v_mov_b32 v8, v{vCm}",
          f"v_and_b32 v{t0}, 15, v{vL}", f"v_lshrrev_b32 v{t1}, 2, v{t0}", f"v_lshlrev_b32 v{t1}, 1, v{t1}", f"v_add_u32 v{t1}, s{sCH}, v{t1}",
          f"v_mul_u32_u24 v{t1}, {HTS}, v{t1}", f"v_and_b32 v{t2}, 3, v{t0}", f"v_lshlrev_b32 v{t2}, 2, v{t2}", f"v_lshrrev_b32 v{t3}, 4, v{vL}",
          f"v_add_u32 v{t2}, v{t2}, v{t3}", f"s_lshl_b32 s{sT0}, s{sRH}, 4", f"v_add_u32 v{t2}, s{sT0}, v{t2}",
          f"v_lshl_add_u32 v{RA}, v{t2}, 3, v{t1}",
          f"s_lshl_b32 s{sT0}, s{sRB}, 1", f"s_add_u32 s{sT0}, s{sT0}, s{sRH}", f"s_lshl_b32 s{sT0}, s{sT0}, 2",
          f"v_add_u32 v{t3}, s{sT0}, v{t3}", f"v_mul_u32_u24 v{t3}, 88, v{t3}", f"s_mul_i32 s{sT0}, s{sCH}, 20",
          f"v_add_u32 v{t3}, s{sT0}, v{t3}", f"v_lshlrev_b32 v{t3}, 10, v{t3}", f"v_lshl_add_u32 v{GA}, v{t0}, 4, v{t3}"]
    sOff = [73, 74, 75, 76, 77]
    for it in range(5):
        W += [f"s_mul_i32 s{sT0}, s{sCG}, 5", f"s_add_u32 s{sT0}, s{sT0}, {it}", f"s_lshr_b32 s{sT1}, s{sT0}, 2", f"s_lshl_b32 s{sT1}, s{sT1}, 10",
              f"s_and_b32 s{sT0}, s{sT0}, 3", f"s_lshl_b32 s{sT0}, s{sT0}, 8", f"s_add_u32 s{sOff[it]}, s{sT0}, s{sT1}"]
    W += [f"s_mul_i32 s{sKH}, s{sW}, 12", f"s_add_u32 s{sKH}, s{sKH}, 40", f"s_lshl_b32 s{sKH}, s{sKH}, 10"]
    NPF = int(OPT.get('npf', 25))
    FBPOS = int(OPT.get('fbpos', 20))
    items = pre[:FBPOS] + [[f"global_load_dword v{FBV}, v{vFl}, s[{P_WS}:{P_WS+1}]{SC}"]] + pre[FBPOS:NPF]
    weave(a, W, items, start=0)
    stp(a, "prefix")
    a(f"s_waitcnt vmcnt({NPF-FBPOS})")
    spin_init(a)
    a.label("L_fbpoll")
    a(f"v_cmp_ne_u32 vcc, s{sNonce}, v{FBV}")
    a("s_nop 4")
    a("s_cbranch_vccz L_fbx")
    spin_guard(a, "L_fbx")
    a(f"global_load_dword v{FBV}, v{vFl}, s[{P_WS}:{P_WS+1}]{SC}")
    a("s_waitcnt vmcnt(0)")
    a("s_branch L_fbpoll")
    a.label("L_fbx")
    stp(a, "flagB seen")
    slots = ["a88", 100, 52, 68, 84]
    def hreg(slot, i):
        sl = slots[slot]
        if isinstance(sl, str): return f"a[{88+4*i}:{91+4*i}]"
        return f"v[{sl+4*i}:{sl+4*i+3}]"
    def hloads(g):
        return [f"buffer_load_dwordx4 {hreg(g % 5, i)}, v{vH+i}, s[{SH}:{SH+3}], s{sKH} offen{SCL}" for i in range(4)]
    early = []
    for g in range(5):
        hl = hloads(g)
        early += [[x] for x in hl[:3]] + [[hl[3], f"s_add_u32 s{sKH}, s{sKH}, 1024"]]
    for it in early[:8]:
        for x in it: a(x)
    early = early[8:]
    spin_init(a)
    a(f"s_branch L_pollc")
    a.label("L_poll")
    spin_guard(a, "L_pollx")
    poll_loads()
    a("s_waitcnt vmcnt(0)")
    a.label("L_pollc")
    a(f"v_mov_b32 v{bad}, 0")
    for (ri, mreg) in ((R+1, vm0), (R+3, vm0), (R+5, vm1), (R+7, vm1), (R+9, vm4)):
        a(f"v_cmp_ne_u32 vcc, s{sNonce}, v{ri}")
        a("s_nop 1")
        a(f"v_cndmask_b32 v{t0}, 0, v{mreg}, vcc")
        a(f"v_or_b32 v{bad}, v{bad}, v{t0}")
    a(f"v_cmp_ne_u32 vcc, 0, v{bad}")
    a("s_nop 4")
    a("s_cbranch_vccnz L_poll")
    a.label("L_pollx")
    for (T, ri) in ((0, R), (1, R+2), (2, R+8)): a(f"v_mul_f32 v{Hp[T]}, v{vW0r[T]}, v{ri}")
    for (T, ri) in ((0, R), (1, R+2), (2, R+8)): a(f"v_fmac_f32_dpp v{Hp[T]}, v{ri}, v{vW0i[T]} {DPPSW}")
    for (T, ri) in ((0, R+4), (1, R+6)): a(f"v_fmac_f32 v{Hp[T]}, v{vW1r[T]}, v{ri}")
    for (T, ri) in ((0, R+4), (1, R+6)): a(f"v_fmac_f32_dpp v{Hp[T]}, v{ri}, v{vW1i[T]} {DPPSW}")
    qreduce(Hp, hx)
    a(f"s_mul_i32 s{sT0}, s{sW}, 320")
    a(f"s_add_u32 s{sT0}, s{sT0}, {MISC}")
    a(f"v_add_u32 v{t0}, s{sT0}, v{vC}")
    a(f"ds_write_b32 v{vRw}, v{Hp[0]} offset:{RWB}")
    a(f"ds_write_b32 v{vRw}, v{Hp[1]} offset:{RWB+64}")
    a(f"ds_write_b32 v{t0}, v{Hp[2]} offset:{RWB+256}")
    stp(a, "poll")
    a("s_waitcnt lgkmcnt(0)")
    a("s_barrier")
    Hw = [X+48, X+49, X+50]
    a(f"s_mul_i32 s{sT0}, s{sCH}, 320")
    a(f"s_add_u32 s{sT0}, s{sT0}, {MISC}")
    a(f"v_add_u32 v{t0}, s{sT0}, v{vAs2}")
    hr = [X+40, X+41, X+42, X+43, X+44, X+45, X+46, X+47]
    a(f"ds_read_b32 v{hr[0]}, v{t0} offset:{RWB}")
    a(f"ds_read_b32 v{hr[1]}, v{t0} offset:{RWB+640}")
    a(f"ds_read_b32 v{hr[2]}, v{t0} offset:{RWB+64}")
    a(f"ds_read_b32 v{hr[3]}, v{t0} offset:{RWB+704}")
    for w in range(4): a(f"ds_read_b32 v{hr[4+w]}, v{vCm2} offset:{RWB+256+320*w}")
    a("s_waitcnt lgkmcnt(0)")
    W = [f"v_add_f32 v{Hw[0]}, v{hr[0]}, v{hr[1]}", f"v_add_f32 v{Hw[1]}, v{hr[2]}, v{hr[3]}", f"v_add_f32 v{hr[4]}, v{hr[4]}, v{hr[5]}",
         f"v_add_f32 v{hr[6]}, v{hr[6]}, v{hr[7]}", f"v_add_f32 v{Hw[2]}, v{hr[4]}, v{hr[6]}"]
    for T in range(3): W.append(f"v_fmac_f32 v{Ps[T]}, v{vHr[T]}, v{Hw[T]}")
    W.append("s_nop 0")
    for T in range(3): W.append(f"v_fmac_f32_dpp v{Ps[T]}, v{Hw[T]}, v{vHi[T]} {DPPSW}")
    cur = list(Ps)
    W.append("s_nop 0")
    for k in range(16):
        Ts = [T for T in range(3) if k < NS[T]]
        for T in Ts: W.append(f"v_fmac_f32 v{U[T]+k}, v{vLr[T]}, v{cur[T]}")
        for T in Ts:
            W.append(f"v_fmac_f32_dpp v{U[T]+k}, v{cur[T]}, v{vLi2[T]} {DPPSW}")
            cur[T] = U[T]+k
    for T in range(3):
        for k in range(NS[T]//2):
            W.append(f"v_cvt_pk_bf16_f32 v{X + 16*T + k}, v{U[T]+2*k}, v{U[T]+2*k+1}")
    W += [f"v_and_b32 v{t0}, 15, v{vL}", f"s_lshl_b32 s{sT0}, s{sCH}, 5", f"v_add_u32 v{t1}, s{sT0}, v{t0}",
          f"v_mul_u32_u24 v{t1}, {HTS}, v{t1}", f"v_lshl_add_u32 v{t1}, v{vSig}, 5, v{t1}",
          f"v_add_u32 v{t0}, 64, v{t0}", f"v_mul_u32_u24 v{t0}, {HTS}, v{t0}", f"v_lshl_add_u32 v{t0}, v{vSig}, 5, v{t0}",
          f"s_lshl_b32 s{sT0}, s{sCH}, 4", f"v_add_u32 v{t0}, s{sT0}, v{t0}"]
    weave(a, W, early, start=6)
    stp(a, "passB")
    a(f"ds_write_b128 v{t1}, v[{X}:{X+3}]")
    a(f"ds_write_b128 v{t1}, v[{X+4}:{X+7}] offset:16")
    a(f"ds_write_b128 v{t1}, v[{X+16}:{X+19}] offset:{16*HTS}")
    a(f"ds_write_b128 v{t1}, v[{X+20}:{X+23}] offset:{16*HTS+16}")
    a(f"ds_write_b128 v{t0}, v[{X+32}:{X+35}]")
    a("s_waitcnt lgkmcnt(0)")
    a("s_barrier")
    DT = 200
    for it in range(5):
        a(f"ds_read_b64_tr_b16 v[{DT+4*it}:{DT+4*it+1}], v{RA} offset:{it*16*HTS}")
        a(f"ds_read_b64_tr_b16 v[{DT+4*it+2}:{DT+4*it+3}], v{RA} offset:{it*16*HTS+8*HTS}")
    PACE = "pace" in FLAGS
    def hA_store(it): return f"buffer_store_dwordx4 v[{DT+4*it}:{DT+4*it+3}], v{GA}, s[{SH}:{SH+3}], s{sOff[it]} offen{SC}"
    stp(a, "hA stored")
    accB = lambda j, i: 120 + (j*4+i)*4
    def accA(j, i):
        t = j*4+i
        return 200 + 4*t if t < 14 else 26 + 4*(t-14)
    def wreg(g, j): b = wbase(g, j); return f"a[{b}:{b+3}]"
    fifo = [("h", g) for g in range(5) for _ in range(4)]
    if not PACE:
        for it in range(5):
            a(f"s_waitcnt lgkmcnt({2*(4-it)})")
            a(hA_store(it)); fifo.append(("st", it))
    def issue(x, tag):
        a(x); fifo.append(tag)
    def wait_for(pred):
        idx = [i for i, tg in enumerate(fifo) if pred(tg)]
        if not idx: return
        n = len(fifo) - 1 - max(idx)
        assert n <= 63, n
        a(f"s_waitcnt vmcnt({n})")
        del fifo[:max(idx)+1]
    sKS, sKS4 = 85, 86
    a(f"s_mul_i32 s{sKS}, s{sCB}, 88")
    a(f"s_mul_i32 s{sT0}, s{sW}, 5")
    a(f"s_add_u32 s{sKS}, s{sKS}, s{sT0}")
    a(f"s_mul_i32 s{sKS}, s{sKS}, 5120")
    a(f"s_add_u32 s{sKS4}, s{sKS}, 4096")
    wq = []
    assert NPF % 5 == 0
    for g in range(7 + NPF//5, 12):
        st_ = wstep(g)
        for j in range(5): wq.append((("wg", g), 0, st_[j], st_[5:] if j == 4 else []))
    for sidx in range(10):
        for j in range(5):
            x = wload(sidx, j).replace(f"s{sKW} offen", f"s{sKS} offen").replace(f"s{sKW4} offen", f"s{sKS4} offen")
            inc = (20-4)*5120 if sidx == 4 else 5120
            wq.append((("w", sidx), sidx, x, [f"s_add_u32 s{sKS}, s{sKS}, {inc}", f"s_add_u32 s{sKS4}, s{sKS4}, {inc}"] if j == 4 else []))
    RATE = int(OPT.get('rate', 3))
    LA, OA = 2, 7
    vG = [12, 14, 16, 22]
    vLW = 25
    XR, GR, DR = 84, 94, 52
    RS = 336; RED = 64*RS + 4*64
    fill = []
    for i in range(5):
        w1, w2, w3 = t0, t1, t3
        fill += [f"v_add_u32 v{w1}, {256*i}, v0", f"v_mul_u32_u24 v{w2}, 3277, v{w1}", f"v_lshrrev_b32 v{w2}, 16, v{w2}",
                 f"v_mul_u32_u24 v{w3}, 20, v{w2}", f"v_sub_u32 v{w3}, v{w1}, v{w3}", f"v_mul_u32_u24 v{LA+i}, {RS}, v{w2}",
                 f"v_lshl_add_u32 v{LA+i}, v{w3}, 4, v{LA+i}", f"v_lshrrev_b32 v{w1}, 4, v{w2}", f"v_lshl_add_u32 v{LA+i}, v{w1}, 6, v{LA+i}",
                 f"s_lshl_b32 s{sT0}, s{sRB2}, 6", f"v_add_u32 v{w2}, s{sT0}, v{w2}",
                 f"v_mul_u32_u24 v{w2}, 640, v{w2}", f"s_mul_i32 s{sT1}, s{sCB}, 80", f"v_lshl_add_u32 v{w3}, v{w3}, 2, s{sT1}",
                 f"v_add_u32 v{w2}, v{w2}, v{w3}", f"v_lshlrev_b32 v{OA+i}, 2, v{w2}"]
    fill += [f"v_and_b32 v{t0}, 15, v{vL}", f"v_lshrrev_b32 v{t1}, 2, v{t0}", f"v_lshlrev_b32 v{t1}, 4, v{t1}", f"v_and_b32 v{t0}, 3, v{t0}",
             f"v_add_u32 v{t0}, v{t0}, v{t1}", f"s_lshl_b32 s{sT0}, s{sRB2}, 6", f"v_add_u32 v{t1}, s{sT0}, v{t0}",
             f"v_lshlrev_b32 v{t1}, 2, v{t1}", f"v_add_u32 v50, {WS_G}, v{t1}",
             f"v_lshrrev_b32 v{t3}, 4, v{t0}", f"v_mul_u32_u24 v{t0}, {RS}, v{t0}", f"v_lshl_add_u32 v{t0}, v{t3}, 6, v{t0}",
             f"v_lshrrev_b32 v{t3}, 4, v{vL}", f"v_lshl_add_u32 v{t0}, v{t3}, 4, v{t0}",
             f"s_mul_i32 s{sT0}, s{sW}, {RED}", f"v_add_u32 v{vLW}, s{sT0}, v{t0}"]
    stp(a, "K2 setup")
    fill2 = []
    for i in range(5):
        fill2 += [f"v_lshrrev_b32 v{t0}, 1, v{OA+i}", (f"global_load_dwordx2 v[{XR+2*i}:{XR+2*i+1}], v{t0}, s[{P_X}:{P_X+1}]", ("f", 0))]
    fill2 += [f"s_lshl_b32 s{sT0}, s{sRB2}, 6", f"s_mul_i32 s{sT1}, s{sCB}, 160"]
    for i in range(5):
        fill2 += [f"v_add_u32 v{t4}, {256*i}, v0", f"v_mul_u32_u24 v{t1}, 3277, v{t4}", f"v_lshrrev_b32 v{t1}, 16, v{t1}", f"v_add_u32 v{t0}, s{sT0}, v{t1}",
                  f"v_lshlrev_b32 v{t0}, 2, v{t0}", f"v_add_u32 v{t0}, {WS_G}, v{t0}",
                  (f"global_load_dword v{GR+i}, v{t0}, s[{P_WS}:{P_WS+1}]{SC}", ("f", 0)),
                  f"v_mul_u32_u24 v{t1}, 20, v{t1}", f"v_sub_u32 v{t1}, v{t4}, v{t1}", f"v_lshlrev_b32 v{t1}, 3, v{t1}",
                  f"v_add_u32 v{t1}, s{sT1}, v{t1}", (f"global_load_dwordx2 v[{DR+2*i}:{DR+2*i+1}], v{t1}, s[{P_DSK}:{P_DSK+1}]", ("f", 0))]
    for g in range(22):
        glu = g < 12
        slot = g % 5
        wg = g if glu else g-12
        wait_for(lambda tg: tg == ("h", g) or (not glu and tg == ("w", g-12)) or (glu and tg == ("wg", g)))
        if g == 0: stp(a, "h0 landed")
        if "kstamp" in FLAGS:
            if g > 0:
                a("s_waitcnt lgkmcnt(0)"); a(f"v_writelane_b32 v23, s38, {g-1}")
            a("s_memtime s[38:39]")
        if g == 0 and PACE:
            a("s_waitcnt lgkmcnt(0)")
        if g == (6 if PACE else 3):
            wait_for(lambda tg: tg[0] == "st")
            a(f"v_add_u32 v{t0}, {WS_FA-WS_FB}, v{vFo}")
            a(f"v_mov_b32 v{t1}, s{sNonce}")
            a(f"s_mov_b64 exec, 1")
            issue(f"global_store_dword v{t0}, v{t1}, s[{P_WS}:{P_WS+1}]{SC}", ("fa", 0))
            a(f"s_mov_b64 exec, -1")
        if g == (7 if PACE else 6):
            a(f"v_add_u32 v{vFl}, {WS_FA-WS_FB}, v{vFl}")
            issue(f"global_load_dword v{t2}, v{vFl}, s[{P_WS}:{P_WS+1}]{SC}", ("fp", 0))
        if g == 15:
            assert not fill, len(fill)
            a("s_barrier")
            for i in range(4): issue(f"global_load_dword v{vG[i]}, v50, s[{P_WS}:{P_WS+1}] offset:{16*i}{SC}", ("g", 0))
        mf = []
        for j in range(5):
            for i in range(4):
                d = accB(j, i) if glu else accA(j, i)
                c = "0" if g in (0, 12) else f"v[{d}:{d+3}]"
                mf.append(f"v_mfma_f32_16x16x32_bf16 v[{d}:{d+3}], {wreg(wg, j)}, {hreg(slot, i)}, {c}")
        def la_of(gn): return 5 if gn < 12 else ((4 if gn < 17 else 3) if "la5" not in FLAGS else 5)
        hq = []
        for gn in range(5, 22):
            if gn - la_of(gn) == g and la_of(gn) < 5:
                if gn == 12:
                    wait_for(lambda tg: tg[0] == "fp")
                    spin_init(a)
                    a.label("L_fachk")
                    a(f"v_cmp_ne_u32 vcc, s{sNonce}, v{t2}")
                    a("s_nop 4")
                    a("s_cbranch_vccz L_faok")
                    spin_guard(a, "L_faok")
                    a(f"global_load_dword v{t2}, v{vFl}, s[{P_WS}:{P_WS+1}]{SC}")
                    a("s_waitcnt vmcnt(0)")
                    a("s_branch L_fachk")
                    a.label("L_faok")
                    a(f"s_mul_i32 s{sKH}, s{sW}, {5*1024}")
                elif gn == 17: a(f"s_add_u32 s{sKH}, s{sKH}, {15*1024}")
                hq = [(x, ("h", gn)) for x in hloads(gn)]
        nw = 0
        for idx, x in enumerate(mf):
            a(x)
            if idx % 4 == 1 and nw < RATE and wq and wq[0][1] < g:
                tg, e_, ins, post = wq.pop(0); issue(ins, tg); nw += 1
                for y in post: a(y)
            elif idx % 4 == 3 and hq:
                x_, tg_ = hq.pop(0); issue(x_, tg_)
                if not hq: a(f"s_add_u32 s{sKH}, s{sKH}, 1024")
            elif g >= 6 and fill and idx % 4 != 1: a(fill.pop(0))
            elif g >= 20 and fill2:
                for _ in range(2):
                    if fill2:
                        it_ = fill2.pop(0)
                        if isinstance(it_, str): a(it_)
                        else: issue(it_[0], it_[1])
        while nw < RATE and wq and wq[0][1] <= g:
            tg, e_, ins, post = wq.pop(0); issue(ins, tg); nw += 1
            for y in post: a(y)
        if g < 5 and PACE: issue(hA_store(g), ("st", g))
        assert not hq
        for gn in range(5, 22):
            if gn - la_of(gn) == g and la_of(gn) == 5:
                if gn == 12:
                    wait_for(lambda tg: tg[0] == "fp")
                    spin_init(a)
                    a.label("L_fachk")
                    a(f"v_cmp_ne_u32 vcc, s{sNonce}, v{t2}")
                    a("s_nop 4")
                    a("s_cbranch_vccz L_faok")
                    spin_guard(a, "L_faok")
                    a(f"global_load_dword v{t2}, v{vFl}, s[{P_WS}:{P_WS+1}]{SC}")
                    a("s_waitcnt vmcnt(0)")
                    a("s_branch L_fachk")
                    a.label("L_faok")
                    a(f"s_mul_i32 s{sKH}, s{sW}, {5*1024}")
                elif gn == 17: a(f"s_add_u32 s{sKH}, s{sKH}, {15*1024}")
                for x in hloads(gn): issue(x, ("h", gn))
                a(f"s_add_u32 s{sKH}, s{sKH}, 1024")
    assert not fill and not wq and not fill2, (len(fill), len(wq), len(fill2))
    if "kstamp" in FLAGS:
        a("s_waitcnt lgkmcnt(0)"); a(f"v_writelane_b32 v23, s38, 21")
        a("s_memtime s[38:39]"); a("s_waitcnt lgkmcnt(0)"); a(f"v_writelane_b32 v23, s38, 22")
        a(f"s_lshl_b32 s{sT0}, s2, 2"); a(f"s_add_u32 s{sT0}, s{sT0}, s{sW}"); a(f"s_lshl_b32 s{sT0}, s{sT0}, 8")
        a(f"s_add_u32 s{sT0}, s{sT0}, {WS_STAMP + 0x80000}")
        a(f"v_lshl_add_u32 v{t0}, v{vL}, 2, s{sT0}")
        a(f"global_store_dword v{t0}, v23, s[{P_WS}:{P_WS+1}]")
    stp(a, "K2 loop")
    wait_for(lambda tg: tg[0] == "g")
    for j in range(5):
        for i in range(4):
            A_r, B_r = accA(j, i), accB(j, i)
            for h in (0, 2):
                a(f"v_pk_add_f32 v[{A_r+h}:{A_r+h+1}], v[{A_r+h}:{A_r+h+1}], v[{B_r+h}:{B_r+h+1}] neg_lo:[0,1] neg_hi:[0,1]")
            for h in (0, 2):
                a(f"v_pk_fma_f32 v[{B_r+h}:{B_r+h+1}], v[{vG[i]}:{vG[i]+1}], v[{A_r+h}:{A_r+h+1}], v[{B_r+h}:{B_r+h+1}] op_sel_hi:[0,1,1]")
            a(f"ds_write_b128 v{vLW}, v[{B_r}:{B_r+3}] offset:{i*4*RS + 64*j}")
    a("s_waitcnt lgkmcnt(0)")
    a("s_barrier")
    stp(a, "red written")
    for i in range(5):
        b = 120 + 16*i
        for w in range(4):
            a(f"ds_read_b128 v[{b+4*w}:{b+4*w+3}], v{LA+i} offset:{w*RED}")
    a("s_waitcnt vmcnt(0)")
    for i in range(5):
        b = 120 + 16*i
        a(f"s_waitcnt lgkmcnt({min(15,4*(4-i))})")
        a(f"v_pk_add_f32 v[{b}:{b+1}], v[{b}:{b+1}], v[{b+4}:{b+5}]")
        a(f"v_pk_add_f32 v[{b+2}:{b+3}], v[{b+2}:{b+3}], v[{b+6}:{b+7}]")
        a(f"v_pk_add_f32 v[{b+8}:{b+9}], v[{b+8}:{b+9}], v[{b+12}:{b+13}]")
        a(f"v_pk_add_f32 v[{b+10}:{b+11}], v[{b+10}:{b+11}], v[{b+14}:{b+15}]")
        a(f"v_pk_add_f32 v[{b}:{b+1}], v[{b}:{b+1}], v[{b+8}:{b+9}]")
        a(f"v_pk_add_f32 v[{b+2}:{b+3}], v[{b+2}:{b+3}], v[{b+10}:{b+11}]")
        x0, d0_ = XR+2*i, DR+2*i
        for h in range(2):
            a(f"v_lshlrev_b32 v{t1}, 16, v{x0+h}")
            a(f"v_and_b32 v{t2}, 0xffff0000, v{x0+h}")
            a(f"v_lshlrev_b32 v{t3}, 16, v{d0_+h}")
            a(f"v_and_b32 v{t4}, 0xffff0000, v{d0_+h}")
            a(f"v_mul_f32 v{t1}, v{t1}, v{t3}")
            a(f"v_mul_f32 v{t2}, v{t2}, v{t4}")
            a(f"v_fmac_f32 v{b+2*h}, v{GR+i}, v{t1}")
            a(f"v_fmac_f32 v{b+2*h+1}, v{GR+i}, v{t2}")
        a(f"global_store_dwordx4 v{OA+i}, v[{b}:{b+3}], s[{P_OUT}:{P_OUT+1}]" + ("" if "outplain" in FLAGS else " nt"))
    stp(a, "out stored")
    if LSTAMP:
        pass
    if "dbgt" in FLAGS:
        a("s_waitcnt vmcnt(0)")
        a("s_memrealtime s[40:41]"); a("s_memtime s[42:43]")
        a("s_waitcnt lgkmcnt(0)")
        a(f"s_cmp_lg_u32 s{sW}, 0")
        a("s_cbranch_scc1 L_end")
        a("s_not_b32 s44, s101")
        a("v_mov_b32 v2, 0"); a("v_mov_b32 v3, s44"); a("v_mov_b32 v4, s40")
        a("s_mov_b64 exec, 1")
        a(f"global_atomic_umax v2, v3, s[{P_DBG}:{P_DBG+1}] offset:16 sc1")
        a(f"global_atomic_umax v2, v4, s[{P_DBG}:{P_DBG+1}] offset:20 sc1")
        a("s_cmp_lg_u32 s2, 0")
        a("s_cbranch_scc1 L_end")
        a("s_sub_u32 s42, s42, s96"); a("s_sub_u32 s40, s40, s101")
        a("v_mov_b32 v3, s42"); a("v_mov_b32 v4, s40")
        a(f"global_store_dword v2, v3, s[{P_DBG}:{P_DBG+1}] offset:24")
        a(f"global_store_dword v2, v4, s[{P_DBG}:{P_DBG+1}] offset:28")
    stp.dump(a, sW, sT0, P_WS, WS_STAMP)
    a.label("L_end")
    a("s_endpgm")
    a.label("L_codeend")
    return a.text()

HEADER = open("gated_mix__ssm_conv_s5__glu_gated_bilinear__prompt.s.ref").read().split("; Override launch")[0]
DOC = """; ---------------------------------------------------------------------------------------------------------------
; One fused kernel, 256 workgroups (one per CU, all co-resident), 4 waves each, 512 registers per wave.
;          16x16x32 bf16 MFMAs; x / Wg / Wu / B tiles are staged by LDS-DMA in three 50 KB buffers (K = 64 per stage,
;          the stage order is rotated per workgroup so that the sharers of a line fetch different stages first).
;          The prologue also repacks w_down and C into MFMA fragment order (workspace, 0xC00000).
; Scan     h_t = lam h_{t-1} + u_t in registers (time runs along the accumulator registers): local end states,
;          weighted sum -> published state of the 128-row block (tagged 8-byte granules), exact carry-in from all
;          earlier blocks, prefix inside the block, second pass from the true initial state, scaled by 2*(lam-1)/Lam.
;          (12 GLU + 10 SSM steps of 32 each); operands are read in fragment order straight into registers,
;          gate combine, cross-wave reduction through LDS, + g*x*Dskip, store.
; Hand-offs between workgroups: write-through (sc1) stores, per-wave flags tagged with a per-launch nonce that
; workgroup 0 publishes in d_debug[0]; consumers poll with sc1 loads (bounded spins).
; Workspace: 0 h fragments | 0xB00000 gate | 0xB10000 block states | 0xB40000.. flags | 0xC00000 packed W2.
; Generated by the author's own script (register allocation and scheduling are scripted, not compiler output).
; ---------------------------------------------------------------------------------------------------------------
"""
def main():
    out = HEADER + DOC
    out += "; Override launch geometry by editing the next line. Harness parses it; keep it on one line.\n"
    out += "; @launch grid=(256,1,1) block=(256,1,1) lds=163840\n"
    out += '.amdgcn_target "amdgcn-amd-amdhsa--gfx950"\n.text\n'
    out += f".globl {KNAME}\n.p2align 8\n.type {KNAME},@function\n" + gen()
    out += f""".section .rodata,"a"
.p2align 6
.amdhsa_kernel {KNAME}
  .amdhsa_next_free_vgpr 512
  .amdhsa_next_free_sgpr 102
  .amdhsa_accum_offset 256
  .amdhsa_group_segment_fixed_size 0
  .amdhsa_kernarg_size 136
  .amdhsa_user_sgpr_count 2
  .amdhsa_user_sgpr_kernarg_segment_ptr 1
  .amdhsa_system_sgpr_workgroup_id_x 1
  .amdhsa_float_denorm_mode_32 3
.end_amdhsa_kernel
"""
    path = [x for x in sys.argv[1:] if not x.startswith("--")][0]
    open(path, "w").write(out)
    json.dump([[d[i] for i in sorted(d)] for d in NAMES], open(path + ".names", "w"))
main()
```

```python
import sys, json
from asmlib import *

FLAGS = set(x[2:] for x in sys.argv[1:] if x.startswith("--"))
OPT = dict(x.split("=") for x in FLAGS if "=" in x)
STAMP = "stamp" in FLAGS
NAMES = []
KNAME = "gated_mix__ssm_conv_s5__glu_gated_bilinear__prompt_kernel"

WS_H   = 0
WS_G   = 0xB00000
WS_S   = 0xB10000
WS_FB  = 0xB40000
WS_FA  = 0xB42000
WS_PF  = 0xB44000
WS_W2  = 0xC00000
W2_SIZE = 8*88*5*1024
WS_STAMP = 0x1000000
LOG2E = 0x3fb8aa3b
INV2PI = 0x3e22f983
SC = "" if "nosc" in FLAGS else " sc1"
SCL = "" if ("nosc" in FLAGS or "noscl" in FLAGS) else " sc1"
LSTAMP = "lstamp" in FLAGS

def srd(a, d, base, size, add=0):
    o = []
    if add == 0:
        o += [f"s_mov_b32 s{d}, s{base}", f"s_mov_b32 s{d+1}, s{base+1}"]
    elif add > 0:
        o += [f"s_add_u32 s{d}, s{base}, {add}", f"s_addc_u32 s{d+1}, s{base+1}, 0"]
    else:
        o += [f"s_sub_u32 s{d}, s{base}, {-add}", f"s_subb_u32 s{d+1}, s{base+1}, 0"]
    o += [f"s_mov_b32 s{d+2}, {size}", f"s_mov_b32 s{d+3}, 0x00020000"]
    if a is None: return o
    for x in o: a(x)

class Stamper:
    def __init__(self, store):
        self.store = store; self.n = 0; self.tmp = [98, 100]; self.names = {}
        NAMES.append(self.names)
    def __call__(self, a, name=""):
        if not STAMP: return
        if self.n > 0:
            a(f"s_mov_b32 s{self.store[self.n-1]}, s{self.tmp[(self.n-1)&1]}")
        assert self.n < len(self.store), "too many stamps"
        a(f"s_memtime s[{self.tmp[self.n&1]}:{self.tmp[self.n&1]+1}]")
        self.names[self.n] = name
        self.n += 1
    def dump(self, a, sW, sT0, P_WS, base):
        if not STAMP: return
        a("s_waitcnt vmcnt(0) lgkmcnt(0)")
        self(a, "end")
        a("s_waitcnt lgkmcnt(0)")
        a(f"s_mov_b32 s{self.store[self.n-1]}, s{self.tmp[(self.n-1)&1]}")
        a(f"s_lshl_b32 s{sT0}, s2, 2")
        a(f"s_add_u32 s{sT0}, s{sT0}, s{sW}")
        a(f"s_lshl_b32 s{sT0}, s{sT0}, 7")
        a(f"s_add_u32 s{sT0}, s{sT0}, {base}")
        a(f"v_mov_b32 v2, s{sT0}")
        if "dbgstamp" in FLAGS:
            keep = [i for i in range(1, self.n) if self.names[i] not in ("small issued", "glu1", "pub", "flagB", "flagB seen", "out stored")][:15]
            a("s_cmp_lg_u32 s2, 101")
            a("s_cbranch_scc1 L_end")
            a(f"s_cmp_lg_u32 s{sW}, 0")
            a("s_cbranch_scc1 L_end")
            a("v_mov_b32 v2, 0")
            for k, i in enumerate(keep):
                a(f"s_sub_u32 s40, s{self.store[i]}, s{self.store[0]}")
                a("v_mov_b32 v3, s40")
                a(f"global_store_dword v2, v3, s[34:35] offset:{4*(k+1)}")
            print("debug stamps:", [self.names[i] for i in keep])
            return
        for i in range(self.n):
            a(f"v_mov_b32 v3, s{self.store[i]}")
            a(f"global_store_dword v2, v3, s[{P_WS}:{P_WS+1}] offset:{4*i}")

def rr(*streams):
    out = []
    n = max(len(s) for s in streams)
    for i in range(n):
        for s in streams:
            if i < len(s): out.append(s[i])
    return out

def weave(a, work, mem, start=0, every=None):
    n = len(work); m = len(mem)
    if m == 0: pos = []
    elif every is None: pos = [start + int((n - start) * i / m) for i in range(m)]
    else: pos = [start + every*i for i in range(m)]
    mi = 0
    def emit(it):
        if isinstance(it, str): a(it)
        else:
            for x in it: a(x)
    for i, w in enumerate(work):
        while mi < m and pos[mi] <= i:
            emit(mem[mi]); mi += 1
        emit(w)
    while mi < m:
        emit(mem[mi]); mi += 1

SPIN_MAX = 100000
def spin_init(a): a("s_mov_b32 s95, 0")
def spin_guard(a, out_label):
    a("s_add_u32 s95, s95, 1")
    a(f"s_cmp_gt_u32 s95, {SPIN_MAX}")
    a(f"s_cbranch_scc1 {out_label}")

DPPSW = "quad_perm:[1,0,3,2] row_mask:0xf bank_mask:0xf"
P_X, P_LRE, P_LIM, P_BRE, P_BIM, P_CRE, P_CIM, P_LDT = 4,6,8,10,12,14,16,18
P_DSK, P_BX, P_WG, P_WU = 20,22,24,26
P_WD, P_GW, P_OUT, P_DBG = 28,30,32,34
P_WS = 36

def gen():
    a = Asm()
    stp = Stamper([96,97,22,23,6,7,8,9,18,19,10,11,12,13,24,25,26,27,82,83,84,40,41,42,43,73,74])
    SX, SG, SU, SB0, SB1, SB2, SM = 40,44,48,52,56,60,64
    sEX = 38
    sW, sRH, sCH, sRB, sCG = 68,69,70,71,72
    sDB, sCur, sD, sC3, sStage = 73,74,75,76,77
    sKX, sKG, sKU, sKB = 78,79,80,81
    sOX, sOG, sOU, sOB, sOB2 = 82,83,84,85,86
    sT0, sT1, sT2 = 87,88,89
    sF = 87
    sBlk, sRB2, sCB = 90, 91, 92
    sT3 = 93
    sNonce = 3
    vL = 1
    vDX, vDW, vDB = 2, 6, 9
    vX0, vX1, vWa, vWb, vWc, vB0, vB1 = 12,13,14,15,16,17,18
    t0, t1, t2, t3, t4 = 19,20,21,22,23
    vA  = [24,25,26]; vBx = [27,28,29]; vLRE = [30,31,32]; vLIM = [33,34,35]
    vLr = [36,37,38]; vLi = [39,40,41]; vWSr = [42,43,44]; vWSi = [45,46,47]
    vSgn, vNon, vSig, vWp = 48, 49, 50, 51
    vPF = 52
    SCR = 52
    vC, vAe, vAe4, vRw = 90, 91, 92, 93
    pa = [94, 95, 96]
    GLD = 56
    vGst, vGv = 71, 72
    RA, GA = 2, 3
    Ps = [4, 5, 6]
    vAs, vCm = 97, 98
    vAs2, vCm2 = 7, 8
    vH = 116
    ACC = 120
    BUF = 51200
    RX, RG, RU, RB = 0, 16384, 28672, 40960
    MISC = 3*BUF
    SWB, EF, E4, RWB = 0, 1280, 5120, 7104
    EF0 = EF + 7*256; E40 = E4 + 15*64
    HTS = 272
    def acc(n, i): return ACC + n*16 + 4*i
    SA, SBt, S4 = ACC+96, ACC+112, ACC+128
    CL = 52
    PK = 100
    vPWs, vPCs, vPWd, vPCd, vPtr = 61, 63, 64, 66, 68
    TP = 69

    a.label(KNAME)
    a(f"s_cmp_ge_u32 s2, 256")
    a(f"s_cbranch_scc1 L_end")
    if "nocodepf" not in FLAGS:
        a("s_getpc_b64 s[40:41]")
        a.label("L_pc")
        a("v_lshlrev_b32 v2, 2, v0")
        a("s_lshr_b32 s42, s2, 3")
        a("s_lshl_b32 s42, s42, 10")
        a("v_add_u32 v2, s42, v2")
        a("v_min_u32 v2, L_codeend-L_pc-4, v2")
        a("v_mov_b32 v3, s41")
        a("v_add_co_u32 v2, vcc, s40, v2")
        a("v_addc_co_u32 v3, vcc, 0, v3, vcc")
        a("global_load_dword v99, v[2:3], off")
    a(f"s_load_dwordx16 s[4:19], s[0:1], 0")
    a(f"s_load_dwordx8 s[20:27], s[0:1], 64")
    a(f"s_load_dwordx8 s[28:35], s[0:1], 96")
    a(f"s_load_dwordx2 s[36:37], s[0:1], 128")
    a(f"s_memrealtime s[{sEX}:{sEX+1}]")
    if "dbgt" in FLAGS: a("s_memtime s[96:97]")
    stp(a, "s0")
    a(f"v_lshrrev_b32 v{t0}, 6, v0")
    a(f"v_and_b32 v{vL}, 63, v0")
    a(f"s_and_b32 s{sT0}, s2, 1")
    a(f"v_readfirstlane_b32 s{sW}, v{t0}")
    a(f"s_lshl_b32 s{sT0}, s{sT0}, 3")
    a(f"s_lshr_b32 s{sT1}, s2, 3")
    a(f"s_and_b32 s{sRB}, s{sT1}, 7")
    a(f"s_add_u32 s{sRB}, s{sRB}, s{sT0}")
    a(f"s_lshr_b32 s{sT0}, s2, 1")
    a(f"s_and_b32 s{sT0}, s{sT0}, 3")
    a(f"s_lshl_b32 s{sT2}, s{sT0}, 2")
    a(f"s_lshr_b32 s{sT3}, s2, 6")
    a(f"s_add_u32 s{sCG}, s{sT2}, s{sT3}")
    a(f"s_lshl_b32 s{sT0}, s{sT0}, 3")
    a(f"s_and_b32 s{sT1}, s{sT1}, 7")
    a(f"s_add_u32 s{sRB2}, s{sT0}, s{sT1}")
    a(f"s_and_b32 s{sT0}, s2, 1")
    a(f"s_lshl_b32 s{sT0}, s{sT0}, 2")
    a(f"s_add_u32 s{sCB}, s{sT0}, s{sT3}")
    a(f"s_lshr_b32 s{sRH}, s{sW}, 1")
    a(f"s_and_b32 s{sCH}, s{sW}, 1")
    a(f"v_lshrrev_b32 v{t0}, 3, v{vL}")
    a(f"v_and_b32 v{t1}, 2, v{t0}")
    a(f"s_lshl_b32 s{sT0}, s{sCH}, 2")
    a(f"v_or_b32 v{t1}, s{sT0}, v{t1}")
    a(f"v_and_b32 v{t2}, 7, v{vL}")
    a(f"v_xor_b32 v{t1}, v{t1}, v{t2}")
    a(f"s_lshl_b32 s{sT0}, s{sRB}, 7")
    a(f"s_lshl_b32 s{sT1}, s{sW}, 5")
    a(f"s_add_u32 s{sT0}, s{sT0}, s{sT1}")
    a(f"v_add_u32 v{t0}, s{sT0}, v{t0}")
    a(f"v_mul_u32_u24 v{t0}, 1280, v{t0}")
    a(f"v_lshl_add_u32 v{vDX}, v{t1}, 4, v{t0}")
    for i in range(1,4):
        a(f"v_add_u32 v{vDX+i}, {9216*i}, v{vDX}")
    a(f"s_lshl_b32 s{sOX}, s{sW}, 12")
    a(f"s_mul_i32 s{sOG}, s{sW}, 3072")
    a(f"s_add_u32 s{sOU}, s{sOG}, {RU}")
    a(f"s_add_u32 s{sOG}, s{sOG}, {RG}")
    if "norot" in FLAGS:
        a(f"s_mov_b32 s{sKX}, 0")
    elif "rot8" in FLAGS:
        a(f"s_and_b32 s{sT0}, s{sRB}, 7")
        a(f"s_mul_i32 s{sT1}, s{sT0}, 11")
        a(f"s_lshr_b32 s{sT1}, s{sT1}, 3")
        a(f"s_and_b32 s{sT0}, s{sCG}, 3")
        a(f"s_mul_i32 s{sT0}, s{sT0}, 11")
        a(f"s_lshr_b32 s{sT0}, s{sT0}, 2")
        a(f"s_add_u32 s{sT0}, s{sT0}, s{sT1}")
        a(f"s_cmp_ge_u32 s{sT0}, 10")
        a(f"s_cselect_b32 s{sT1}, 10, 0")
        a(f"s_sub_u32 s{sT0}, s{sT0}, s{sT1}")
        a(f"s_lshl_b32 s{sKX}, s{sT0}, 7")
    else:
        a(f"s_and_b32 s{sT0}, s{sRB}, 7")
        a(f"s_and_b32 s{sT1}, s{sCG}, 3")
        a(f"s_add_u32 s{sT0}, s{sT0}, s{sT1}")
        a(f"s_cmp_ge_u32 s{sT0}, 5")
        a(f"s_cselect_b32 s{sT1}, 5, 0")
        a(f"s_sub_u32 s{sT0}, s{sT0}, s{sT1}")
        a(f"s_cmp_ge_u32 s{sT0}, 5")
        a(f"s_cselect_b32 s{sT1}, 5, 0")
        a(f"s_sub_u32 s{sT0}, s{sT0}, s{sT1}")
        a(f"s_lshl_b32 s{sKX}, s{sT0}, 8")
    a(f"s_mul_i32 s{sKG}, s{sKX}, 1536")
    a(f"s_mov_b32 s{sKU}, s{sKG}")
    a(f"s_mov_b32 s{sKB}, s{sKX}")
    def advk(kx, kw):
        return [[f"s_add_u32 s{kx}, s{kx}, 128"], [f"s_cmp_eq_u32 s{kx}, 1280", f"s_cselect_b32 s{kx}, 0, s{kx}"], [f"s_mul_i32 s{kw}, s{kx}, 1536"]]
    a("s_waitcnt lgkmcnt(0)")
    a(f"s_or_b32 s{sT0}, s2, s{sW}")
    a(f"s_cmp_lg_u32 s{sT0}, 0")
    a(f"s_cbranch_scc1 L_no_nonce")
    a(f"s_or_b32 s{sT0}, s{sEX}, 1")
    a(f"v_mov_b32 v{t0}, s{sT0}")
    a(f"v_mov_b32 v{t1}, 0")
    a(f"s_mov_b64 exec, 1")
    a(f"global_store_dword v{t1}, v{t0}, s[{P_DBG}:{P_DBG+1}]{SC}")
    a(f"s_mov_b64 exec, -1")
    a.label("L_no_nonce")
    if "dbgt" in FLAGS: a(f"s_mov_b32 s101, s{sEX}")
    srd(a, SX, P_X, 2621440)
    def dma(vo, S, so, off):
        o = f" offset:{off}" if off else ""
        return f"buffer_load_dwordx4 v{vo}, s[{S}:{S+3}], s{so} offen{o} lds"
    def dgrp(base_expr, items):
        g = [[f"s_add_u32 m0, {base_expr}", "s_nop 0", items[0]]]
        g += [[x] for x in items[1:]]
        return g
    def stage_x(b):  return dgrp(f"s{sOX}, {b}", [dma(vDX+i, SX, sKX, 1024*i) for i in range(4)])
    def stage_g(b):  return dgrp(f"s{sOG}, {b}", [dma(vDW+i, SG, sKG, 1024*i) for i in range(3)])
    def stage_u(b):  return dgrp(f"s{sOU}, {b}", [dma(vDW+i, SU, sKU, 1024*i) for i in range(3)])
    def stage_b(b):  return dgrp(f"s{sOB}, {b}", [dma(vDB, SB0, sKB, 0), dma(vDB+1, SB1, sKB, 1024)]) + dgrp(f"s{sOB2}, {b}", [dma(vDB+2, SB2, sKB, 0)])
    wW = [f"s_mul_i32 s{sT0}, s{sW}, 192", f"s_mul_i32 s{sT1}, s{sCG}, 192"]
    for i in range(3):
        wW += [f"v_add_u32 v{t0}, s{sT0}, v{vL}"]
        if i: wW += [f"v_add_u32 v{t0}, {64*i}, v{t0}"]
        wW += [f"v_mul_u32_u24 v{t1}, 43691, v{t0}", f"v_lshrrev_b32 v{t1}, 19, v{t1}", f"v_mul_u32_u24 v{t2}, 12, v{t1}",
               f"v_sub_u32 v{t2}, v{t0}, v{t2}", f"v_lshrrev_b32 v{t3}, 2, v{t1}", f"v_and_b32 v{t3}, 2, v{t3}",
               f"v_xor_b32 v{t2}, v{t2}, v{t3}", f"v_mul_u32_u24 v{t1}, 3072, v{t1}", f"v_lshl_add_u32 v{t1}, v{t2}, 4, v{t1}",
               f"v_add_u32 v{vDW+i}, s{sT1}, v{t1}"]
        if i: wW += [f"v_subrev_u32 v{vDW+i}, {1024*i}, v{vDW+i}"]
    wW += srd(None, SG, P_WG, 1966080) + srd(None, SU, P_WU, 1966080)
    weave(a, wW, stage_x(0), start=0)
    wB = [f"s_mul_i32 s{sT3}, s{sCG}, 40", f"s_mul_i32 s{sT2}, s{sW}, 3",
          [f"s_cmp_eq_u32 s{sW}, 3", f"s_cselect_b32 s{sT2}, 8, s{sT2}"],
          f"s_add_u32 s{sD}, s{sT2}, 2",
          [f"s_cmp_ge_u32 s{sW}, 2", f"s_cselect_b32 s{sT0}, 1, 0"],
          f"s_sub_u32 s{sD}, s{sD}, s{sT0}",
          f"s_lshl_b32 s{sOB}, s{sT2}, 10", f"s_add_u32 s{sOB}, s{sOB}, {RB}",
          f"s_lshl_b32 s{sOB2}, s{sD}, 10", f"s_add_u32 s{sOB2}, s{sOB2}, {RB}",
          f"v_lshrrev_b32 v{t3}, 4, v{vL}", f"v_lshlrev_b32 v{t3}, 1, v{t3}", f"v_and_b32 v{t4}, 7, v{vL}"]
    for i in range(3):
        wB += [f"s_mov_b32 s{sT0}, s{sT2}" if i == 0 else (f"s_add_u32 s{sT0}, s{sT2}, 1" if i == 1 else f"s_mov_b32 s{sT0}, s{sD}")]
        wB += [[f"s_cmp_ge_u32 s{sT0}, 5", f"s_cselect_b32 s{sT1}, 1, 0", f"s_cselect_b32 s{sC3}, 5, 0"],
               f"s_sub_u32 s{sT0}, s{sT0}, s{sC3}", f"s_lshl_b32 s{sT0}, s{sT0}, 3", f"s_add_u32 s{sT0}, s{sT0}, s{sT3}",
               f"v_lshrrev_b32 v{t0}, 3, v{vL}", f"v_add_u32 v{t0}, s{sT0}, v{t0}", f"v_mul_u32_u24 v{t0}, 1280, v{t0}",
               f"v_add_u32 v{t1}, s{sT1}, v{t3}", f"v_xor_b32 v{t1}, v{t1}, v{t4}", f"v_lshl_add_u32 v{t0}, v{t1}, 4, v{t0}",
               f"v_add_u32 v{vDB+i}, {4096 - (1024*i if i < 2 else 0)}, v{t0}"]
    for i, S in enumerate([SB0, SB1, SB2]):
        wB += [[f"s_cmp_ge_u32 s{sW}, {2 if i < 2 else 1}", f"s_cselect_b32 s{S}, s{P_BIM}, s{P_BRE}", f"s_cselect_b32 s{S+1}, s{P_BIM+1}, s{P_BRE+1}"],
               [f"s_sub_u32 s{S}, s{S}, 4096", f"s_subb_u32 s{S+1}, s{S+1}, 0"],
               f"s_mov_b32 s{S+2}, {819200+4096}", f"s_mov_b32 s{S+3}, 0x00020000"]
    weave(a, wB, stage_g(0) + stage_u(0), start=0)
    c1, c2 = TP, TP+1
    CST = MISC + 8448
    wC = [f"v_and_b32 v{t0}, 15, v{vL}", f"v_lshrrev_b32 v{t0}, 1, v{t0}", f"v_lshlrev_b32 v{t0}, 1, v{t0}",
          f"v_add_u32 v{c2}, {CST + 64}, v{t0}", f"s_lshl_b32 s{sT1}, s{sCH}, 5", f"v_add_u32 v{c1}, s{sT1}, v{t0}", f"v_add_u32 v{c1}, {CST}, v{c1}",
          f"s_mul_i32 s{sT0}, s{sCG}, 80", f"v_lshlrev_b32 v{t1}, 2, v{vL}", f"v_add_u32 v{TP+5}, s{sT0}, v{t1}"]
    wC += [f"s_mul_i32 s{sT0}, s2, 52429", f"s_lshr_b32 s{sT0}, s{sT0}, 18", f"s_mul_i32 s{sT1}, s{sT0}, 5", f"s_sub_u32 s{sT1}, s2, s{sT1}",
           f"v_lshrrev_b32 v{t0}, 2, v{vL}", f"s_lshl_b32 s{sT2}, s{sT0}, 5", f"v_add_u32 v{t0}, s{sT2}, v{t0}",
           f"v_mul_u32_u24 v{t0}, 1280, v{t0}", f"v_and_b32 v{t1}, 3, v{vL}", f"v_lshl_add_u32 v{t0}, v{t1}, 4, v{t0}",
           f"s_lshl_b32 s{sT2}, s{sT1}, 8", f"v_add_u32 v{t0}, s{sT2}, v{t0}", f"s_lshl_b32 s{sT2}, s{sW}, 6",
           f"v_add_u32 v{vPWs}, s{sT2}, v{t0}", f"v_add_u32 v{vPWs+1}, {16*1280-1024}, v{vPWs}"]
    for k in range(2):
        wC += [f"s_lshl_b32 s{sT2}, s{sT1}, 3", f"s_lshl_b32 s{sT3}, s{sW}, 1", f"s_add_u32 s{sT2}, s{sT2}, s{sT3}"]
        if k: wC += [f"s_add_u32 s{sT2}, s{sT2}, 1"]
        wC += [f"s_mul_i32 s{sT3}, s{sT2}, 52429", f"s_lshr_b32 s{sT3}, s{sT3}, 18", f"s_mul_i32 s{sD}, s{sT3}, 5",
               f"s_sub_u32 s{sT2}, s{sT2}, s{sD}", f"s_mul_i32 s{sT3}, s{sT3}, 88", f"s_add_u32 s{sT3}, s{sT3}, s{sT0}",
               f"s_add_u32 s{sT3}, s{sT3}, 40", f"s_mul_i32 s{sT3}, s{sT3}, 5", f"s_add_u32 s{sT3}, s{sT3}, s{sT2}",
               f"s_lshl_b32 s{sT3}, s{sT3}, 10", f"s_add_u32 s{sT3}, s{sT3}, {WS_W2}",
               f"v_lshlrev_b32 v{vPWd+k}, 4, v{vL}", f"v_add_u32 v{vPWd+k}, s{sT3}, v{vPWd+k}"]
    wC += [f"s_lshl_b32 s{sT0}, s2, 3", f"s_lshl_b32 s{sT1}, s{sW}, 1", f"s_add_u32 s{sT0}, s{sT0}, s{sT1}",
           f"s_mul_i32 s{sT1}, s{sT0}, 52429", f"s_lshr_b32 s{sT1}, s{sT1}, 21", f"s_mul_i32 s{sT2}, s{sT1}, 40",
           f"s_sub_u32 s{sT0}, s{sT0}, s{sT2}",
           [f"s_cmp_ge_u32 s{sT0}, 20", f"s_cselect_b32 s{sC3}, 1, 0", f"s_cselect_b32 s{sT2}, 20, 0"],
           f"s_sub_u32 s{sT2}, s{sT0}, s{sT2}",
           f"v_lshrrev_b32 v{t0}, 3, v{vL}", f"s_lshl_b32 s{sT3}, s{sT1}, 4", f"v_add_u32 v{t0}, s{sT3}, v{t0}",
           f"v_mul_u32_u24 v{t0}, 1280, v{t0}", f"v_and_b32 v{t1}, 7, v{vL}", f"v_lshl_add_u32 v{t0}, v{t1}, 4, v{t0}",
           f"s_lshl_b32 s{sT2}, s{sT2}, 6", f"v_add_u32 v{vPCs}, s{sT2}, v{t0}", f"v_add_u32 v{TP+6}, {8*1280-1024}, v{vPCs}",
           f"s_mul_i32 s{sT3}, s{sT1}, 52429", f"s_lshr_b32 s{sT3}, s{sT3}, 18", f"s_mul_i32 s{sD}, s{sT3}, 5",
           f"s_sub_u32 s{sT1}, s{sT1}, s{sD}", f"s_mul_i32 s{sT3}, s{sT3}, 88", f"s_add_u32 s{sT3}, s{sT3}, s{sT0}",
           f"s_mul_i32 s{sT3}, s{sT3}, 5", f"s_add_u32 s{sT3}, s{sT3}, s{sT1}", f"s_lshl_b32 s{sT3}, s{sT3}, 10",
           f"s_add_u32 s{sT3}, s{sT3}, {WS_W2}", f"v_lshlrev_b32 v{vPCd}, 4, v{vL}", f"v_add_u32 v{vPCd}, s{sT3}, v{vPCd}",
           f"v_add_u32 v{vPCd+1}, {5*1024}, v{vPCd}",
           f"s_lshl_b32 s{sT0}, s{sW}, 11", f"s_add_u32 s95, s{sT0}, {MISC}"]
    weave(a, wC, stage_b(0), start=0)
    stp(a, "S0 issued")
    sm = [[f"s_mov_b32 s{SM}, s{P_LDT}", f"s_mov_b32 s{SM+1}, s{P_LDT+1}",
           f"s_cmp_eq_u32 s{sW}, 0", f"s_cselect_b32 s{SM}, s{P_LRE}, s{SM}", f"s_cselect_b32 s{SM+1}, s{P_LRE+1}, s{SM+1}",
           f"s_cmp_eq_u32 s{sW}, 1", f"s_cselect_b32 s{SM}, s{P_LIM}, s{SM}", f"s_cselect_b32 s{SM+1}, s{P_LIM+1}, s{SM+1}",
           f"s_mov_b32 s{SM+2}, 1280", f"s_mov_b32 s{SM+3}, 0x00020000",
           f"s_min_u32 s{sT0}, s{sW}, 2", f"s_lshl_b32 s{sT0}, s{sT0}, 8", f"s_add_u32 m0, s{sT0}, {CST}", "s_nop 0",
           f"buffer_load_dword v{TP+5}, s[{SM}:{SM+3}], 0 offen lds"]]
    pkl = []
    pkl += [srd(None, SM, P_WD, 1966080) + [f"s_cmp_lt_u32 s2, 240", f"s_cselect_b32 s{SM+2}, s{SM+2}, 0", "s_mov_b32 m0, s95", "s_nop 0",
           f"buffer_load_dwordx4 v{vPWs}, s[{SM}:{SM+3}], 0 offen lds"],
           [f"buffer_load_dwordx4 v{vPWs+1}, s[{SM}:{SM+3}], 0 offen offset:1024 lds"],
           [f"s_cmp_eq_u32 s{sC3}, 1", f"s_cselect_b32 s{SM}, s{P_CIM}, s{P_CRE}", f"s_cselect_b32 s{SM+1}, s{P_CIM+1}, s{P_CRE+1}",
            f"s_mov_b32 s{SM+2}, 819200", f"s_cmp_lt_u32 s2, 200", f"s_cselect_b32 s{SM+2}, s{SM+2}, 0",
            f"s_add_u32 m0, s{sOU}, {2*BUF}", "s_nop 0", f"buffer_load_dwordx4 v{vPCs}, s[{SM}:{SM+3}], 0 offen lds"],
           [f"buffer_load_dwordx4 v{TP+6}, s[{SM}:{SM+3}], 0 offen offset:1024 lds"]]
    m, q = t0, t1
    wL = [f"v_and_b32 v{m}, 15, v{vL}", f"v_lshrrev_b32 v{q}, 4, v{vL}",
          f"v_lshrrev_b32 v{t2}, 2, v{m}", f"v_lshlrev_b32 v{t2}, 4, v{t2}", f"v_and_b32 v{t3}, 3, v{m}", f"v_add_u32 v{t2}, v{t2}, v{t3}",
          f"s_lshl_b32 s{sT0}, s{sRH}, 6", f"v_add_u32 v{t2}, s{sT0}, v{t2}", f"v_lshlrev_b32 v{t2}, 7, v{t2}",
          f"v_and_b32 v{t3}, 2, v{m}", f"v_lshrrev_b32 v{t4}, 3, v{m}", f"v_lshl_or_b32 v{t3}, v{t4}, 2, v{t3}",
          f"v_xor_b32 v{t3}, v{t3}, v{q}", f"v_lshl_add_u32 v{vX0}, v{t3}, 4, v{t2}", f"v_xor_b32 v{t3}, 4, v{t3}",
          f"v_lshl_add_u32 v{vX1}, v{t3}, 4, v{t2}",
          f"v_lshrrev_b32 v{t2}, 2, v{m}", f"v_lshl_add_u32 v{t2}, v{q}, 3, v{t2}", f"v_mul_u32_u24 v{t2}, 192, v{t2}",
          f"v_and_b32 v{t3}, 3, v{m}", f"v_lshl_add_u32 v{t2}, v{t3}, 3, v{t2}", f"v_and_b32 v{t3}, 1, v{q}",
          f"v_lshl_add_u32 v{vWa}, v{t3}, 5, v{t2}", f"v_xor_b32 v{t3}, 1, v{t3}", f"v_lshl_add_u32 v{vWb}, v{t3}, 5, v{t2}",
          [f"s_cmp_eq_u32 s{sCH}, 1", f"s_cselect_b64 vcc, -1, 0", f"v_cndmask_b32 v{vWc}, v{vWa}, v{vWb}, vcc"],
          f"v_add_u32 v{vWc}, 64, v{vWc}", f"s_lshl_b32 s{sT0}, s{sCH}, 7", f"v_add_u32 v{vWa}, s{sT0}, v{vWa}", f"v_add_u32 v{vWb}, s{sT0}, v{vWb}",
          f"v_and_b32 v{t2}, 1, v{m}", f"v_lshrrev_b32 v{t3}, 2, v{m}", f"v_lshl_add_u32 v{t3}, v{t3}, 1, v{t2}", f"v_xor_b32 v{t3}, v{t3}, v{q}",
          f"v_mul_u32_u24 v{t2}, 40, v{t2}", f"v_lshrrev_b32 v{t4}, 1, v{m}", f"v_add_u32 v{t2}, v{t2}, v{t4}", f"v_lshlrev_b32 v{t2}, 7, v{t2}",
          f"s_lshl_b32 s{sT0}, s{sCH}, 11", f"v_add_u32 v{t2}, s{sT0}, v{t2}", f"v_lshl_add_u32 v{vB0}, v{t3}, 4, v{t2}",
          f"v_xor_b32 v{t3}, 4, v{t3}", f"v_lshl_add_u32 v{vB1}, v{t3}, 4, v{t2}",
          f"s_lshl_b32 s{sT0}, s{sRH}, 2", f"v_add_u32 v{vSig}, s{sT0}, v{q}",
          f"v_and_b32 v{t2}, 1, v{vL}", f"v_cvt_f32_u32 v{t2}, v{t2}", f"v_fma_f32 v{vSgn}, v{t2}, 2.0, -1.0",
          f"v_lshrrev_b32 v{t2}, 2, v{m}", f"v_lshl_add_u32 v{t2}, v{q}, 2, v{t2}", f"v_lshlrev_b32 v{t2}, 6, v{t2}",
          f"v_and_b32 v{t3}, 3, v{m}", f"v_lshl_add_u32 v{t2}, v{t3}, 3, v{t2}", f"v_add_u32 v{vPtr}, s95, v{t2}",
          f"v_lshlrev_b32 v{vC}, 2, v{m}", f"s_lshl_b32 s{sT0}, s{sCH}, 7", f"v_add_u32 v{vAs}, s{sT0}, v{vC}",
          f"v_add_u32 v{vCm}, {MISC}, v{vC}", f"v_add_u32 v{vAe}, {MISC}, v{vAs}", f"v_lshl_add_u32 v{vAe}, v{vSig}, 8, v{vAe}",
          f"v_lshlrev_b32 v{vAe4}, 1, v{vSig}", f"v_add_u32 v{vAe4}, s{sCH}, v{vAe4}", f"v_lshl_add_u32 v{vAe4}, v{vAe4}, 6, v{vCm}",
          f"s_mul_i32 s{sT0}, s{sW}, 320", f"s_add_u32 s{sT0}, s{sT0}, {MISC}", f"v_add_u32 v{vRw}, s{sT0}, v{vAs}",
          f"v_lshlrev_b32 v{vWp}, 4, v{vL}", f"s_mul_i32 s{sT0}, s{sRB2}, {4*88*1024}", f"v_add_u32 v{vH}, s{sT0}, v{vWp}"]
    wL += [f"v_add_u32 v{vH+i}, {i*88*1024}, v{vH}" for i in range(1,4)]
    weave(a, wL, sm, start=0)
    stp(a, "small issued")
    for g_ in advk(sKX, sKG) + advk(sKB, sKU):
        for x in g_: a(x)
    wQ = []
    wQ += [f"s_mul_i32 s{sT0}, s{sCG}, {16*640}", f"s_add_u32 s{sT0}, s{sT0}, {WS_S}",
           f"v_mul_u32_u24 v{pa[0]}, 640, v{vSig}", f"v_lshl_add_u32 v{pa[0]}, v{vAs}, 1, v{pa[0]}", f"v_add_u32 v{pa[0]}, s{sT0}, v{pa[0]}",
           f"v_add_u32 v{pa[1]}, {8*640}, v{pa[0]}", f"v_lshlrev_b32 v{t0}, 1, v{vSig}", f"v_add_u32 v{t0}, s{sCH}, v{t0}",
           f"v_mul_u32_u24 v{pa[2]}, 640, v{t0}", f"v_lshl_add_u32 v{pa[2]}, v{vC}, 1, v{pa[2]}", f"v_add_u32 v{pa[2]}, s{sT0}, v{pa[2]}",
           f"v_add_u32 v{pa[2]}, {64*8}, v{pa[2]}", f"v_mov_b32 v{t4}, 0x7f000000", f"v_add_u32 v{t1}, 8, v{vSig}"]
    for (p_, src) in ((pa[0], vSig), (pa[1], t1), (pa[2], t0)):
        wQ += [[f"v_cmp_le_u32 vcc, s{sRB}, v{src}", "s_nop 1", f"v_cndmask_b32 v{p_}, v{p_}, v{t4}, vcc"]]
    S1 = stage_x(BUF) + stage_g(BUF) + stage_u(BUF) + stage_b(BUF)
    Z2 = 76
    wQ += [f"v_mov_b32 v{Z2+k}, 0" for k in range(4)] + ["s_nop 1"]
    wQ += [f"v_mfma_f32_32x32x16_bf16 v[{ACC+16*k}:{ACC+16*k+15}], v[{Z2}:{Z2+3}], v[{Z2}:{Z2+3}], 0" for k in range(8)]
    wQ += [f"v_mfma_f32_16x16x32_bf16 v[{ACC+128}:{ACC+131}], v[{Z2}:{Z2+3}], v[{Z2}:{Z2+3}], 0",
           f"v_mfma_f32_16x16x32_bf16 v[{ACC+132}:{ACC+135}], v[{Z2}:{Z2+3}], v[{Z2}:{Z2+3}], 0"]
    weave(a, wQ, S1 + pkl, start=0)
    for g_ in advk(sKX, sKG) + advk(sKB, sKU):
        for x in g_: a(x)
    a(f"s_mov_b32 s{sDB}, {2*BUF}")
    a(f"s_mov_b32 s{sCur}, 0"); a(f"s_mov_b32 s{sD}, {BUF}"); a(f"s_mov_b32 s{sC3}, 0")
    a(f"s_mov_b32 s{sStage}, 0")
    a(f"s_mov_b32 s{sBlk}, {(1<<1)|(1<<5):#x}")
    stp(a, "S1 issued")
    a("s_waitcnt vmcnt(17)")
    a("s_barrier")
    stp(a, "S0 landed")
    def cpow_s(dr, di, A, B, n, tm, sgn):
        o = []
        if n is None:
            o += [f"v_exp_f32 v{tm}, v{A}", f"v_rndne_f32 v{dr}, v{B}", f"v_sub_f32 v{tm+1}, v{B}, v{dr}"]
        else:
            o += [f"v_mul_f32 v{tm}, {n}, v{A}", f"v_mul_f32 v{tm+1}, {n}, v{B}", f"v_exp_f32 v{tm}, v{tm}",
                  f"v_rndne_f32 v{dr}, v{tm+1}", f"v_sub_f32 v{tm+1}, v{tm+1}, v{dr}"]
        o += [f"v_cos_f32 v{dr}, v{tm+1}", f"v_sin_f32 v{di}, v{tm+1}"]
        if sgn is not None:
            o += [f"v_mul_f32 v{dr}, v{tm}, v{dr}", f"v_mul_f32 v{tm}, v{sgn}, v{tm}", f"v_mul_f32 v{di}, v{tm}, v{di}"]
        else:
            o += [f"v_mul_f32 v{dr}, v{tm}, v{dr}", f"v_mul_f32 v{di}, v{tm}, v{di}"]
        return o
    def make_Wk():
        Wk = []
        for k in range(3):
            Wk += [f"ds_read_u16 v{CL+3*k}, v{c1} offset:{256*k}", f"ds_read_u16 v{CL+3*k+1}, v{c1} offset:{256*k+16}", f"ds_read_u16 v{CL+3*k+2}, v{c2} offset:{256*k}"]
        vN = 71
        Wk += [f"v_cvt_f32_u32 v{vN}, v{vSig}", f"v_mov_b32 v{vN+1}, 0x42e00000", f"s_mov_b32 s{sT0}, 0xc1800000",
               f"v_fma_f32 v{vN}, v{vN}, s{sT0}, v{vN+1}", f"s_lshl_b32 s{sT0}, s{sCH}, 3", f"s_sub_u32 s{sT0}, 8, s{sT0}",
               f"v_cvt_f32_u32 v{vN+2}, s{sT0}", f"v_add_f32 v{vN+2}, v{vN+2}, v{vN}"]
        Wk += ["s_waitcnt lgkmcnt(0)"]
        streams = []
        for T in range(3):
            tm = 80+2*T; dt = 86+T
            s_ = [f"v_lshlrev_b32 v{vLRE[T]}, 16, v{CL+T}", f"v_lshlrev_b32 v{vLIM[T]}, 16, v{CL+3+T}", f"v_lshlrev_b32 v{dt}, 16, v{CL+6+T}",
                  f"v_mul_f32 v{dt}, {LOG2E:#x}, v{dt}", f"v_exp_f32 v{dt}, v{dt}",
                  f"v_cvt_pk_bf16_f32 v{dt}, v{dt}, v{dt}", f"v_lshlrev_b32 v{dt}, 16, v{dt}",
                  f"v_mul_f32 v{vA[T]}, v{dt}, v{vLRE[T]}", f"v_mul_f32 v{vBx[T]}, v{dt}, v{vLIM[T]}",
                  f"v_mul_f32 v{vA[T]}, {LOG2E:#x}, v{vA[T]}", f"v_mul_f32 v{vBx[T]}, {INV2PI:#x}, v{vBx[T]}"]
            s_ += cpow_s(vLr[T], vLi[T], vA[T], vBx[T], None, tm, vSgn)
            s_ += cpow_s(vWSr[T], vWSi[T], vA[T], vBx[T], f"v{vN if T < 2 else vN+2}", tm, vSgn)
            streams.append(s_)
        Wk += [[x, y, z] for x, y, z in zip(*streams)]
        Wk += [f"s_and_b32 s14, s{sRB2}, 7", f"s_mul_i32 s14, s14, 3200", f"v_lshlrev_b32 v83, 7, v{vL}", f"v_add_u32 v83, s14, v83",
               [f"v_cmp_gt_u32 vcc, 25, v{vL}", f"v_mov_b32 v{t0}, 0x7f000000", "s_nop 0", f"v_cndmask_b32 v83, v{t0}, v83, vcc"],
               f"s_mul_i32 s15, s{sCB}, 88", f"s_mul_i32 s14, s{sW}, 12", f"s_add_u32 s14, s14, s15", f"s_add_u32 s14, s14, 47",
               f"s_mul_i32 s14, s14, 5120", f"s_mul_i32 s16, s{sW}, 5", f"s_add_u32 s15, s15, s16", f"s_mul_i32 s15, s15, 5120",
               f"s_add_u32 s16, s15, {20*5120}"]
        return Wk
    def pack_process():
        a("s_waitcnt vmcnt(7)")
        for k in range(2):
            a(f"ds_read_b64_tr_b16 v[{PK+8+4*k}:{PK+9+4*k}], v{vPtr} offset:{32*k}")
            a(f"ds_read_b64_tr_b16 v[{PK+10+4*k}:{PK+11+4*k}], v{vPtr} offset:{32*k+1024}")
        a(f"v_and_b32 v{t0}, 15, v{vL}"); a(f"v_lshlrev_b32 v{t0}, 7, v{t0}"); a(f"v_lshrrev_b32 v{t1}, 4, v{vL}")
        a(f"v_lshl_add_u32 v{t0}, v{t1}, 4, v{t0}"); a(f"s_add_u32 s{sT0}, s{sOU}, {2*BUF}"); a(f"v_add_u32 v{t0}, s{sT0}, v{t0}")
        a(f"ds_read_b128 v[{PK}:{PK+3}], v{t0}"); a(f"ds_read_b128 v[{PK+4}:{PK+7}], v{t0} offset:64")
        srd(a, SM, P_WS, WS_W2 + W2_SIZE)
        a(f"s_cmp_lt_u32 s2, 200"); a(f"s_cselect_b32 s{SM+2}, s{SM+2}, 0")
        a(f"v_lshlrev_b32 v{t0}, 5, v0"); a(f"v_add_u32 v{t0}, {MISC}, v{t0}")
        a("s_waitcnt lgkmcnt(0)")
        a(f"buffer_store_dwordx4 v[{PK}:{PK+3}], v{vPCd}, s[{SM}:{SM+3}], 0 offen{SC}")
        a(f"buffer_store_dwordx4 v[{PK+4}:{PK+7}], v{vPCd+1}, s[{SM}:{SM+3}], 0 offen{SC}")
        a(f"s_mov_b32 s{SM+2}, {WS_W2 + W2_SIZE}"); a(f"s_cmp_lt_u32 s2, 240"); a(f"s_cselect_b32 s{SM+2}, s{SM+2}, 0")
        a(f"buffer_store_dwordx4 v[{PK+8}:{PK+11}], v{vPWd}, s[{SM}:{SM+3}], 0 offen{SC}")
        a(f"buffer_store_dwordx4 v[{PK+12}:{PK+15}], v{vPWd+1}, s[{SM}:{SM+3}], 0 offen{SC}")
        Z = 76
        a(f"ds_write_b128 v{t0}, v[{Z}:{Z+3}]"); a(f"ds_write_b128 v{t0}, v[{Z}:{Z+3}] offset:16")
        a(f"v_mov_b32 v{t1}, 0")
        a(f"global_load_dword v{vNon}, v{t1}, s[{P_DBG}:{P_DBG+1}]{SC}")

    def dma_first(sdb):
        g = [f"s_add_u32 m0, s{sdb}, s{sOX}"] + [dma(vDX+i, SX, sKX, 1024*i) for i in range(4)]
        g += [f"s_add_u32 m0, s{sdb}, s{sOG}"] + [dma(vDW+i, SG, sKG, 1024*i) for i in range(3)]
        return g
    def dma_second(sdb):
        g = [f"s_add_u32 m0, s{sdb}, s{sOU}"] + [dma(vDW+i, SU, sKU, 1024*i) for i in range(3)]
        g += [f"s_add_u32 m0, s{sdb}, s{sOB}", dma(vDB, SB0, sKB, 0), dma(vDB+1, SB1, sKB, 1024)]
        g += [f"s_add_u32 m0, s{sdb}, s{sOB2}", dma(vDB+2, SB2, sKB, 0)]
        return g
    def reads(ch, s, setb):
        vX = vX0 if s == 0 else vX1
        vB = vB0 if s == 0 else vB1
        X = [f"ds_read_b128 a[{setb+4*i}:{setb+4*i+3}], v{vX} offset:{RX+i*512}" for i in range(4)]
        def tr(n, region, k):
            vW = (vWa, vWb, vWc)[k]
            b = setb + 16 + 4*n
            o = region + 6144*s
            return [f"ds_read_b64_tr_b16 a[{b}:{b+1}], v{vW} offset:{o}", f"ds_read_b64_tr_b16 a[{b+2}:{b+3}], v{vW} offset:{o+768}"]
        def sb(n, off):
            b = setb + 16 + 4*n
            return [f"ds_read_b128 a[{b}:{b+3}], v{vB} offset:{RB+off}"]
        W = []
        for k in range(3):
            W += tr(2*k, RG, k); W += tr(2*k+1, RU, k)
        W += sb(6, 0) + sb(7, 1024) + sb(8, 4096 - 2048*ch)
        return X[:1] + W[:2] + X[1:] + W[2:]
    def mfmas(ch, setb):
        out = []
        for n in range(6):
            for i in range(4):
                d = acc(n, i)
                out.append(f"v_mfma_f32_16x16x32_bf16 v[{d}:{d+3}], a[{setb+16+4*n}:{setb+16+4*n+3}], a[{setb+4*i}:{setb+4*i+3}], v[{d}:{d+3}]")
        for n in (6, 7):
            for i in range(4):
                d = acc(n, i)
                out.append(f"v_mfma_f32_16x16x32_bf16 v[{d}:{d+3}], a[{setb+4*i}:{setb+4*i+3}], a[{setb+16+4*n}:{setb+16+4*n+3}], v[{d}:{d+3}]")
        for k in range(2):
            i = 2*ch + k
            d = S4 + 4*k
            out.append(f"v_mfma_f32_16x16x32_bf16 v[{d}:{d+3}], a[{setb+4*i}:{setb+4*i+3}], a[{setb+16+32}:{setb+16+35}], v[{d}:{d+3}]")
        return out
    def substep(ch, setb, rd, dmas, late, seq=None, main=None):
        if main is None: main = mfmas(ch, setb)
        NG = len(main)
        gaps = [[] for _ in range(NG)]
        for i, r in enumerate(rd): gaps[i].append(r)
        loads = [x for x in dmas if "buffer_load" in x]
        nl = len(loads)
        last = 0
        if nl:
            pos = [1 + int(i*(NG-4)/nl) for i in range(nl)]
            li = 0; pend = []
            for x in dmas:
                if "buffer_load" in x:
                    p = pos[li]; pp = p - 1
                    for y in reversed(pend):
                        while len(gaps[pp]) >= 2: pp -= 1
                        assert pp >= 0
                        gaps[pp].append(y)
                    pend = []
                    while len(gaps[p]) >= 2: p += 1
                    gaps[p].append(x); last = p
                    li += 1
                else: pend.append(x)
            p = last + 1
            for y in pend:
                while len(gaps[p]) >= 2: p += 1
                gaps[p].append(y)
        g = 0
        for (e, ins) in late:
            g = max(g, e)
            while len(gaps[g]) + len(ins) > 2:
                g += 1
                assert g < NG, "late overflow"
            gaps[g].extend(ins)
        if seq is not None:
            g = 0
            while seq and g < NG:
                if len(gaps[g]) + len(seq[0]) <= 2:
                    gaps[g].extend(seq.pop(0))
                g += 1
        out = []
        for i in range(NG):
            out.append(main[i]); out.extend(gaps[i])
        return out
    def gate_seq():
        gw = [GLD, GLD+1, GLD+2, GLD+3, GLD+4]
        xr = [[GLD+6, GLD+7, GLD+8, GLD+9, GLD+5], [GLD+10, GLD+11, GLD+12, GLD+13, GLD+14]]
        ga = [73, 74]; u0, u1, u2, u3 = 75, 76, 77, 78
        flat = [f"v_mov_b32 v{ga[0]}, 0", f"v_mov_b32 v{ga[1]}, 0"]
        for i in range(5):
            flat += [f"v_lshlrev_b32 v{u0}, 16, v{gw[i]}", f"v_and_b32 v{u1}, 0xffff0000, v{gw[i]}"]
            for r in range(2):
                x_ = xr[r][i]
                flat += [f"v_lshlrev_b32 v{u2}, 16, v{x_}", f"v_and_b32 v{u3}, 0xffff0000, v{x_}",
                         f"v_mul_f32 v{u2}, v{u2}, v{u0}", f"v_mul_f32 v{u3}, v{u3}, v{u1}",
                         f"v_cvt_pk_bf16_f32 v{u2}, v{u2}, v{u3}",
                         f"v_and_b32 v{u3}, 0xffff0000, v{u2}", f"v_lshlrev_b32 v{u2}, 16, v{u2}",
                         f"v_add_f32 v{ga[r]}, v{ga[r]}, v{u2}", f"v_add_f32 v{ga[r]}, v{ga[r]}, v{u3}"]
        q_ = [flat[k:k+2] for k in range(0, len(flat), 2)]
        for sh, rm in (("row_shr:1","0xf"),("row_shr:2","0xf"),("row_shr:4","0xf"),("row_shr:8","0xf"),("row_bcast:15","0xa"),("row_bcast:31","0xc")):
            bc = " bound_ctrl:0" if sh.startswith("row_shr") else ""
            q_.append([f"v_add_f32_dpp v{ga[r]}, v{ga[r]}, v{ga[r]} {sh} row_mask:{rm} bank_mask:0xf{bc}" for r in range(2)])
        q_ += [[f"v_readlane_b32 s82, v{ga[0]}, 63", f"v_readlane_b32 s83, v{ga[1]}, 63"],
               [f"v_cmp_eq_u32 vcc, 0, v{vL}"],
               [f"v_mov_b32 v{u3}, s82", f"v_mov_b32 v{u2}, s83"],
               [f"v_cndmask_b32 v{u2}, v{u2}, v{u3}, vcc"], [f"v_cvt_pk_bf16_f32 v{u2}, v{u2}, v{u2}"],
               [f"v_lshlrev_b32 v{u2}, 16, v{u2}", f"v_mul_f32 v{u2}, 0xbfb8aa3b, v{u2}"],
               [f"v_exp_f32 v{u2}, v{u2}"], [f"v_add_f32 v{u2}, 1.0, v{u2}"], [f"v_rcp_f32 v{u2}, v{u2}"],
               [f"v_cvt_pk_bf16_f32 v{u2}, v{u2}, v{u2}"], [f"v_lshlrev_b32 v{vGv}, 16, v{u2}", f"s_lshl_b32 s82, s94, 2"],
               [f"s_add_u32 s82, s82, {WS_G}"], [f"v_lshl_add_u32 v{vGst}, v{vL}, 2, s82"]]
        return q_
    def wbase(g, j):
        if g < 7: return 104 + 20*g + 4*j
        if g < 11: return 20*(g-7) + 4*j
        return 80 + 4*j if j < 2 else 244 + 4*(j-2)
    SW2, SH = SX, SG
    sKW, sKW4, sKH = sKX, sKG, sKU
    def wload(g, j):
        b = wbase(g, j)
        if j < 4:
            o = f" offset:{1024*j}" if j else ""
            return f"buffer_load_dwordx4 a[{b}:{b+3}], v{vWp}, s[{SW2}:{SW2+3}], s{sKW} offen{o}{SCL}"
        return f"buffer_load_dwordx4 a[{b}:{b+3}], v{vWp}, s[{SW2}:{SW2+3}], s{sKW4} offen{SCL}"
    def wstep(g, inc=5120):
        return [wload(g, j) for j in range(5)] + [f"s_add_u32 s{sKW}, s{sKW}, {inc}", f"s_add_u32 s{sKW4}, s{sKW4}, {inc}"]

    XCH = BUF
    vHo, vHo2 = 81, 82
    def glu_part1(ch):
        a(f"s_lshl_b32 s{sT0}, s{sRB}, 1")
        a(f"s_add_u32 s{sT0}, s{sT0}, s{sRH}")
        a(f"s_mul_i32 s{sT0}, s{sT0}, {4*88}")
        a(f"s_mul_i32 s{sT1}, s{sCG}, 3")
        a(f"s_add_u32 s{sT0}, s{sT0}, s{sT1}")
        a(f"s_add_u32 s{sT0}, s{sT0}, 40")
        a(f"s_lshl_b32 s{sT1}, s{sCH}, 1")
        a(f"s_add_u32 s{sT1}, s{sT1}, s{sT0}")
        a(f"s_lshl_b32 s{sT1}, s{sT1}, 10")
        a(f"s_add_u32 s{sT0}, s{sT0}, 1")
        a(f"s_mul_i32 s{sT3}, s{sCH}, {2*88}")
        a(f"s_add_u32 s{sT0}, s{sT0}, s{sT3}")
        a(f"s_lshl_b32 s{sT0}, s{sT0}, 10")
        a(f"v_add_u32 v{vHo}, s{sT1}, v{vWp}")
        a(f"v_add_u32 v{vHo2}, s{sT0}, v{vWp}")
        for i in range(4):
            G0, U0, G1, U1 = [acc(n, i) for n in range(4)]
            for (G, Uu) in ((G0, U0), (G1, U1)):
                a(f"v_pk_mul_f32 v[{G}:{G+1}], v[{G}:{G+1}], v[{Uu}:{Uu+1}]")
                a(f"v_pk_mul_f32 v[{G+2}:{G+3}], v[{G+2}:{G+3}], v[{Uu+2}:{Uu+3}]")
            a(f"v_cvt_pk_bf16_f32 v{U0}, v{G0}, v{G0+1}")
            a(f"v_cvt_pk_bf16_f32 v{U0+1}, v{G0+2}, v{G0+3}")
            a(f"v_cvt_pk_bf16_f32 v{U0+2}, v{G1}, v{G1+1}")
            a(f"v_cvt_pk_bf16_f32 v{U0+3}, v{G1+2}, v{G1+3}")
            a(f"v_add_u32 v{G0}, {i*88*1024}, v{vHo}")
            a(f"global_store_dwordx4 v{G0}, v[{U0}:{U0+3}], s[{P_WS}:{P_WS+1}]{SC}")
        for i in range(4):
            G2, U2 = acc(4, i), acc(5, i)
            a(f"v_pk_mul_f32 v[{G2}:{G2+1}], v[{G2}:{G2+1}], v[{U2}:{U2+1}]")
            a(f"v_pk_mul_f32 v[{G2+2}:{G2+3}], v[{G2+2}:{G2+3}], v[{U2+2}:{U2+3}]")
        for i in range(4):
            G2, U2 = acc(4, i), acc(5, i)
            a(f"v_cvt_pk_bf16_f32 v{U2}, v{G2}, v{G2+1}")
            a(f"v_cvt_pk_bf16_f32 v{U2+1}, v{G2+2}, v{G2+3}")
        a(f"s_lshl_b32 s{sT1}, s{sW}, 10")
        a(f"v_lshlrev_b32 v{t1}, 3, v{vL}")
        a(f"v_add_u32 v{t2}, s{sT1}, v{t1}")
        give = (2, 3) if ch == 0 else (0, 1)
        for k, i in enumerate(give):
            a(f"ds_write_b64 v{t2}, v[{acc(5,i)}:{acc(5,i)+1}] offset:{XCH+512*k}")
    A_, B_ = 0, 52
    a(f"s_cmp_eq_u32 s{sCH}, 1")
    a(f"s_cbranch_scc1 L_pre1")
    rot0 = lambda: [(24, [f"s_mov_b32 s{sF}, s{sCur}"]), (24, [f"s_add_u32 s{sCur}, s{sCur}, s{sD}"]),
                  (24, [f"s_add_u32 s{sC3}, s{sC3}, 1"]),
                  (24, [f"s_cmp_eq_u32 s{sC3}, 3", f"s_cselect_b32 s{sC3}, 0, s{sC3}"]),
                  (24, [f"s_cmp_eq_u32 s{sC3}, 2", f"s_cselect_b32 s{sD}, {3*BUF}, 0"]),
                  (24, [f"s_sub_u32 s{sD}, {BUF}, s{sD}"])]
    n0 = stp.n
    for ch in (0, 1):
        stp.n = n0
        a.label(f"L_pre{ch}")
        for r in reads(ch, 0, A_): a(r)
        a(f"v_add_u32 v{vX0}, {BUF}, v{vX0}")
        a(f"v_add_u32 v{vB0}, {BUF}, v{vB0}")
        d1 = dma_first(sDB)
        grp = []; cur_ = []
        for x in d1:
            cur_.append(x)
            if "m0" in x.split(",")[0]: cur_.append("s_nop 0")
            if "buffer_load" in x: grp.append(cur_); cur_ = []
        grp[-1] += cur_
        weave(a, make_Wk(), grp, start=1)
        pack_process()
        a("s_waitcnt lgkmcnt(0)")
        stp(a, "prologue")
        a(".p2align 3")
        if "mis" in FLAGS: a("s_nop 0")
        a.label(f"L_loop{ch}")
        late0 = [(2, g_) for g_ in advk(sKX, sKG)] + [(19, [f"v_add_u32 v{r}, s{sD}, v{r}"]) for r in (vWa, vWb, vWc, vX1, vB1)] + rot0()
        for x in substep(ch, A_, reads(ch, 1, B_), dma_second(sDB), late0): a(x)
        a(f"s_waitcnt vmcnt(13) lgkmcnt(0)")
        a("s_barrier")
        if LSTAMP: a("s_memtime s[38:39]")
        late1 = [(2, g_) for g_ in advk(sKB, sKU)] + [(19, [f"v_add_u32 v{r}, s{sD}, v{r}"]) for r in (vX0, vB0)]
        late1 += [(20, [f"s_mov_b32 s{sDB}, s{sF}"])]
        late1 += [(32, [f"s_bitcmp1_b32 s{sBlk}, s{sStage}", f"s_cbranch_scc1 L_blk{ch}"])]
        body = substep(ch, B_, reads(ch, 0, A_), dma_first(sF), late1)
        for x in body:
            a(x)
            if x.startswith("s_cbranch_scc1 L_blk"): a.label(f"L_blkr{ch}")
        a(f"s_add_u32 s{sStage}, s{sStage}, 1")
        a(f"s_cmp_lt_u32 s{sStage}, 7")
        a("s_waitcnt lgkmcnt(0)")
        if LSTAMP:
            a(f"v_cmp_eq_u32 vcc, s{sStage}, v{vL}"); a(f"v_mov_b32 v79, s38"); a("s_nop 0"); a(f"v_cndmask_b32 v80, v80, v79, vcc")
        a(f"s_cbranch_scc1 L_loop{ch}")
        stp(a, "loop")
        lt = [(19, [f"v_add_u32 v{r}, {BUF}, v{r}"]) for r in (vWa, vWb, vWc, vX1, vB1)]
        lt += [(24, [x]) for x in srd(None, SW2, P_WS, W2_SIZE, add=WS_W2)[:0]]
        for x in substep(ch, A_, reads(ch, 1, B_), dma_second(sDB), lt): a(x)
        a(f"s_waitcnt vmcnt(13) lgkmcnt(0)")
        a("s_barrier")
        spin_init(a)
        a.label(f"L_pf{ch}")
        a(f"v_cmp_ne_u32 vcc, s{sNonce}, v{vPF}")
        a(f"v_cmp_ne_u32 s[{sEX}:{sEX+1}], s{sNonce}, v{vPF+1}")
        a(f"s_or_b64 vcc, vcc, s[{sEX}:{sEX+1}]")
        a(f"v_cmp_ne_u32 s[{sEX}:{sEX+1}], s{sNonce}, v{vPF+2}")
        a(f"s_or_b64 vcc, vcc, s[{sEX}:{sEX+1}]")
        a(f"v_cmp_ne_u32 s[{sEX}:{sEX+1}], s{sNonce}, v{vPF+3}")
        a(f"s_or_b64 vcc, vcc, s[{sEX}:{sEX+1}]")
        a(f"s_cmp_eq_u64 vcc, 0")
        a(f"s_cbranch_scc1 L_pfok{ch}")
        spin_guard(a, f"L_pfok{ch}")
        a(f"v_lshlrev_b32 v{t0}, 4, v{vL}")
        a(f"v_add_u32 v{t0}, {WS_PF}, v{t0}")
        a(f"global_load_dwordx4 v[{vPF}:{vPF+3}], v{t0}, s[{P_WS}:{P_WS+1}]{SC}")
        a("s_waitcnt vmcnt(0)")
        a(f"s_branch L_pf{ch}")
        a.label(f"L_pfok{ch}")
        srd(a, SW2, P_WS, W2_SIZE, add=WS_W2)
        a(f"s_mul_i32 s{sKW}, s{sCB}, 88")
        a(f"s_mul_i32 s{sT0}, s{sW}, 12")
        a(f"s_add_u32 s{sKW}, s{sKW}, s{sT0}")
        a(f"s_add_u32 s{sKW}, s{sKW}, 40")
        a(f"s_mul_i32 s{sKW}, s{sKW}, 5120")
        a(f"s_add_u32 s{sKW4}, s{sKW}, 4096")
        allw = []
        for g in range(7): allw += wstep(g)
        def take(n):
            out = []; c = 0
            while allw and (c < n or "buffer_load" not in allw[0]):
                x = allw.pop(0); out.append(x)
                if "buffer_load" in x: c += 1
            return out
        lt = [(19, [f"v_add_u32 v{r}, {(-2*BUF) & 0xffffffff:#x}, v{r}"]) for r in (vX0, vB0)]
        gq = gate_seq()
        for x in substep(ch, B_, reads(ch, 0, A_), take(8), lt, gq): a(x)
        a("s_waitcnt lgkmcnt(0)")
        lt = [(19, [f"v_add_u32 v{r}, {(-2*BUF) & 0xffffffff:#x}, v{r}"]) for r in (vWa, vWb, vWc, vX1, vB1)]
        for x in substep(ch, A_, reads(ch, 1, B_), take(8), lt, gq): a(x)
        a(f"s_waitcnt vmcnt(16) lgkmcnt(0)")
        a("s_barrier")
        wt = []
        if "wt" in FLAGS:
            wt = [(20, [f"buffer_load_dword v99, v83, s[{SX}:{SX+3}], s14 offen{SCL}"]),
                  (24, [f"buffer_load_dword v99, v83, s[{SX}:{SX+3}], s15 offen{SCL}"]),
                  (28, [f"buffer_load_dword v99, v83, s[{SX}:{SX+3}], s16 offen{SCL}"])]
        for x in substep(ch, B_, reads(ch, 0, A_), take(8), wt, gq): a(x)
        a("s_waitcnt lgkmcnt(0)")
        for x in substep(ch, A_, reads(ch, 1, B_), take(6), [], gq, main=mfmas(ch, A_)[:24]): a(x)
        a("s_waitcnt lgkmcnt(0)")
        for x in substep(ch, B_, [], take(5), [], gq, main=mfmas(ch, B_)[:24]): a(x)
        assert not allw
        stp(a, "tailG")
        glu_part1(ch)
        stp(a, "glu1")
        for x in substep(ch, A_, [], [], [], gq, main=mfmas(ch, A_)[24:] + mfmas(ch, B_)[24:]): a(x)
        assert not gq, len(gq)
        a("s_mov_b64 exec, 3")
        a(f"global_store_dword v{vGst}, v{vGv}, s[{P_WS}:{P_WS+1}]{SC}")
        a("s_mov_b64 exec, -1")
        a(f"s_branch L_epi")
        a.label(f"L_blk{ch}")
        a(f"s_cmp_eq_u32 s{sStage}, 1")
        a(f"s_cbranch_scc1 L_b0_{ch}")
        a(f"v_lshlrev_b32 v{t0}, 4, v{vL}")
        a(f"v_add_u32 v{t0}, {WS_PF}, v{t0}")
        a(f"global_load_dwordx4 v[{vPF}:{vPF+3}], v{t0}, s[{P_WS}:{P_WS+1}]{SC}")
        a(f"s_lshl_b32 s{sT1}, s{sRB}, 7")
        a(f"s_lshl_b32 s{sT2}, s{sRH}, 6")
        a(f"s_add_u32 s{sT1}, s{sT1}, s{sT2}")
        a(f"s_lshl_b32 s{sT2}, s{sCG}, 2")
        a(f"s_add_u32 s{sT1}, s{sT1}, s{sT2}")
        a(f"s_lshl_b32 s{sT2}, s{sCH}, 1")
        a(f"s_add_u32 s94, s{sT1}, s{sT2}")
        a(f"s_mul_i32 s{sT1}, s94, 1280")
        a(f"v_lshlrev_b32 v{t0}, 2, v{vL}")
        a(f"v_add_u32 v{t1}, s{sT1}, v{vWp}")
        a(f"v_add_u32 v{t2}, s{sT1}, v{t0}")
        a(f"global_load_dwordx4 v[{GLD}:{GLD+3}], v{vWp}, s[{P_GW}:{P_GW+1}]")
        a(f"global_load_dword v{GLD+4}, v{t0}, s[{P_GW}:{P_GW+1}] offset:1024")
        a(f"global_load_dwordx4 v[{GLD+6}:{GLD+9}], v{t1}, s[{P_X}:{P_X+1}]")
        a(f"global_load_dword v{GLD+5}, v{t2}, s[{P_X}:{P_X+1}] offset:1024")
        a(f"global_load_dwordx4 v[{GLD+10}:{GLD+13}], v{t1}, s[{P_X}:{P_X+1}] offset:1280")
        a(f"global_load_dword v{GLD+14}, v{t2}, s[{P_X}:{P_X+1}] offset:2304")
        a(f"s_branch L_blkr{ch}")
        a.label(f"L_b0_{ch}")
        spin_init(a)
        a.label(f"L_np{ch}")
        a(f"v_readfirstlane_b32 s{sNonce}, v{vNon}")
        a(f"s_cmp_lg_u32 s{sNonce}, 0")
        a(f"s_cbranch_scc1 L_nok{ch}")
        spin_guard(a, f"L_nok{ch}")
        a(f"v_mov_b32 v{t0}, 0")
        a(f"global_load_dword v{vNon}, v{t0}, s[{P_DBG}:{P_DBG+1}]{SC}")
        a("s_waitcnt vmcnt(0)")
        a(f"s_branch L_np{ch}")
        a.label(f"L_nok{ch}")
        a(f"s_cmp_lg_u32 s{sW}, 0")
        a(f"s_cbranch_scc1 L_blkr{ch}")
        a(f"s_lshl_b32 s{sT1}, s2, 2")
        a(f"s_add_u32 s{sT1}, s{sT1}, {WS_PF}")
        a(f"v_mov_b32 v{t0}, s{sT1}")
        a(f"v_mov_b32 v{t1}, s{sNonce}")
        a(f"s_mov_b64 exec, 1")
        a(f"global_store_dword v{t0}, v{t1}, s[{P_WS}:{P_WS+1}]{SC}")
        a(f"s_mov_b64 exec, -1")
        a(f"s_branch L_blkr{ch}")

    a.label("L_epi")
    stp(a, "tail")
    if LSTAMP:
        a(f"s_lshl_b32 s{sT0}, s2, 2")
        a(f"s_add_u32 s{sT0}, s{sT0}, s{sW}")
        a(f"s_lshl_b32 s{sT0}, s{sT0}, 8")
        a(f"s_add_u32 s{sT0}, s{sT0}, {WS_STAMP + 0x40000}")
        a(f"v_lshl_add_u32 v79, v{vL}, 2, s{sT0}")
        a(f"global_store_dword v79, v80, s[{P_WS}:{P_WS+1}]")
    a("s_nop 7")
    U = [SA, SBt, S4]; NS = [16, 16, 8]
    eA = [56, 57, 58]; eB = [59, 60, 61]
    cur = [U[T] for T in range(3)]
    for k in range(1, 16):
        Ts = [T for T in range(3) if k < NS[T]]
        dst = eA if (k & 1) else eB
        for T in Ts: a(f"v_fma_f32 v{dst[T]}, v{vLr[T]}, v{cur[T]}, v{U[T]+k}")
        for T in Ts:
            a(f"v_fmac_f32_dpp v{dst[T]}, v{cur[T]}, v{vLi[T]} {DPPSW}")
            cur[T] = dst[T]
    ew = [62, 63, 64]; ex = [65, 66, 67]
    a(f"s_mul_i32 s{sT0}, s{sW}, 320")
    a(f"s_add_u32 s{sT0}, s{sT0}, {MISC}")
    for T in range(3): a(f"v_mul_f32 v{ew[T]}, v{vWSr[T]}, v{cur[T]}")
    for T in range(3): a(f"v_fmac_f32_dpp v{ew[T]}, v{cur[T]}, v{vWSi[T]} {DPPSW}")
    a(f"v_add_u32 v{t0}, s{sT0}, v{vC}")
    a(f"ds_write_b32 v{vAe}, v{cur[0]} offset:{EF0}")
    a(f"ds_write_b32 v{vAe}, v{cur[1]} offset:{EF0+64}")
    a(f"ds_write_b32 v{vAe4}, v{cur[2]} offset:{E40}")
    def qreduce(vals, tmps):
        for v, t in zip(vals, tmps): a(f"v_mov_b32 v{t}, v{v}")
        a("s_nop 0")
        for v, t in zip(vals, tmps): a(f"v_permlane16_swap_b32 v{v}, v{t}")
        a("s_nop 0")
        for v, t in zip(vals, tmps): a(f"v_add_f32 v{v}, v{v}, v{t}")
        for v, t in zip(vals, tmps): a(f"v_mov_b32 v{t}, v{v}")
        a("s_nop 0")
        for v, t in zip(vals, tmps): a(f"v_permlane32_swap_b32 v{v}, v{t}")
        a("s_nop 0")
        for v, t in zip(vals, tmps): a(f"v_add_f32 v{v}, v{v}, v{t}")
    qreduce(ew, ex)
    a(f"ds_write_b32 v{vRw}, v{ew[0]} offset:{SWB}")
    a(f"ds_write_b32 v{vRw}, v{ew[1]} offset:{SWB+64}")
    a(f"ds_write_b32 v{t0}, v{ew[2]} offset:{SWB+256}")
    a("s_waitcnt lgkmcnt(0)")
    a("s_barrier")
    stp(a, "passA")
    a(f"s_xor_b32 s{sT1}, s{sW}, 1")
    a(f"s_lshl_b32 s{sT1}, s{sT1}, 10")
    a(f"v_lshlrev_b32 v{t1}, 3, v{vL}")
    a(f"v_add_u32 v{t2}, s{sT1}, v{t1}")
    a(f"v_add_u32 v{t4}, {88*1024}, v{vHo2}")
    a(f"s_cmp_eq_u32 s{sCH}, 1")
    a(f"s_cbranch_scc1 L_xr1")
    for k in range(2):
        a(f"ds_read_b64 v[{acc(5,k)+2}:{acc(5,k)+3}], v{t2} offset:{XCH+512*k}")
    a("s_waitcnt lgkmcnt(0)")
    a(f"global_store_dwordx4 v{vHo2}, v[{acc(5,0)}:{acc(5,0)+3}], s[{P_WS}:{P_WS+1}]{SC}")
    a(f"global_store_dwordx4 v{t4}, v[{acc(5,1)}:{acc(5,1)+3}], s[{P_WS}:{P_WS+1}]{SC}")
    a(f"s_branch L_xr2")
    a.label("L_xr1")
    for k in range(2):
        a(f"ds_read_b64 v[{acc(4,2+k)}:{acc(4,2+k)+1}], v{t2} offset:{XCH+512*k}")
        a(f"v_mov_b32 v{acc(4,2+k)+2}, v{acc(5,2+k)}")
        a(f"v_mov_b32 v{acc(4,2+k)+3}, v{acc(5,2+k)+1}")
    a("s_waitcnt lgkmcnt(0)")
    a(f"global_store_dwordx4 v{vHo2}, v[{acc(4,2)}:{acc(4,2)+3}], s[{P_WS}:{P_WS+1}]{SC}")
    a(f"global_store_dwordx4 v{t4}, v[{acc(4,3)}:{acc(4,3)+3}], s[{P_WS}:{P_WS+1}]{SC}")
    a.label("L_xr2")
    a(f"s_cmp_lg_u32 s{sW}, 0")
    a(f"s_cbranch_scc1 L_nopub")
    PB = 68
    a(f"v_lshlrev_b32 v{t0}, 3, v{vL}")
    a(f"v_add_u32 v{t0}, {MISC}, v{t0}")
    for w in range(4): a(f"ds_read_b64 v[{PB+2*w}:{PB+2*w+1}], v{t0} offset:{SWB+320*w}")
    a(f"s_lshl_b32 s{sT0}, s{sCG}, 4")
    a(f"s_add_u32 s{sT0}, s{sT0}, s{sRB}")
    a(f"s_mul_i32 s{sT0}, s{sT0}, 640")
    a(f"s_add_u32 s{sT0}, s{sT0}, {WS_S}")
    a(f"v_lshlrev_b32 v{t0}, 4, v{vL}")
    a(f"v_add_u32 v{t0}, s{sT0}, v{t0}")
    a(f"v_mov_b32 v{PB+9}, s{sNonce}")
    a(f"v_mov_b32 v{PB+11}, s{sNonce}")
    a(f"v_cmp_gt_u32 vcc, 40, v{vL}")
    a("s_waitcnt lgkmcnt(0)")
    a(f"v_pk_add_f32 v[{PB}:{PB+1}], v[{PB}:{PB+1}], v[{PB+2}:{PB+3}]")
    a(f"v_pk_add_f32 v[{PB+4}:{PB+5}], v[{PB+4}:{PB+5}], v[{PB+6}:{PB+7}]")
    a(f"v_pk_add_f32 v[{PB}:{PB+1}], v[{PB}:{PB+1}], v[{PB+4}:{PB+5}]")
    a(f"s_and_saveexec_b64 s[{sEX}:{sEX+1}], vcc")
    a(f"v_mov_b32 v{PB+8}, v{PB}")
    a(f"v_mov_b32 v{PB+10}, v{PB+1}")
    a(f"global_store_dwordx4 v{t0}, v[{PB+8}:{PB+11}], s[{P_WS}:{P_WS+1}]{SC}")
    a(f"s_mov_b64 exec, s[{sEX}:{sEX+1}]")
    a.label("L_nopub")
    stp(a, "pub")
    pre = []
    for g in range(7, 12):
        ws_ = wstep(g)
        pre += [[x] for x in ws_[:4]] + [[ws_[4], ws_[5], ws_[6]]]
    X = ACC
    vMr = [X, X+1, X+2]; vMi = [X+3, X+4, X+5]
    vC2r = [X+6, X+7, X+8]; vC2i = [X+9, X+10, X+11]
    vHr = [X+12, X+13, X+14]; vHi = [X+15, X+16, X+17]
    vW0r = [X+18, X+19, X+20]; vW0i = [X+21, X+22, X+23]
    vW1r = [X+24, X+25]; vW1i = [X+26, X+27]
    vLi2 = [X+28, X+29, X+30]
    nOff, nW0, nW1, nOff4, nW4 = X+32, X+33, X+34, X+35, X+36
    vm0, vm1, vm4 = X+37, X+38, X+39
    W = []
    W += [f"v_cvt_f32_u32 v{nOff}, v{vSig}", f"v_mul_f32 v{nOff}, 0x41800000, v{nOff}", f"s_lshl_b32 s{sT0}, s{sCH}, 3",
          f"v_cvt_f32_u32 v{nOff4}, s{sT0}", f"v_add_f32 v{nOff4}, v{nOff4}, v{nOff}",
          f"s_sub_u32 s{sT0}, s{sRB}, 1", f"v_sub_u32 v{t0}, s{sT0}, v{vSig}", f"v_subrev_u32 v{t1}, 8, v{t0}",
          f"v_sub_u32 v{t2}, v{t0}, v{vSig}", f"v_subrev_u32 v{t2}, s{sCH}, v{t2}"]
    for (n_, mreg, src) in ((nW0, vm0, t0), (nW1, vm1, t1), (nW4, vm4, t2)):
        W += [[f"v_cmp_le_i32 vcc, 0, v{src}", f"v_max_i32 v{n_}, 0, v{src}", f"v_cvt_f32_i32 v{n_}, v{n_}",
               f"v_cndmask_b32 v{mreg}, 0, 1.0, vcc"], f"v_mul_f32 v{n_}, 0x43000000, v{n_}"]
    W += [f"v_mov_b32 v{X+40}, 0x41800000", f"v_mov_b32 v{X+41}, 0x41000000"]
    streams = []
    for T in range(3):
        tm = X+44+6*T
        pr, pi, cr, ci = tm+2, tm+3, tm+4, tm+5
        s_ = cpow_s(vMr[T], vMi[T], vA[T], vBx[T], f"v{X+40 if T < 2 else X+41}", tm, vSgn)
        s_ += [f"v_mul_f32 v{pi}, v{vSgn}, v{vLi[T]}", f"v_add_f32 v{pr}, -1.0, v{vLr[T]}",
               f"v_mul_f32 v{tm}, v{vLRE[T]}, v{vLRE[T]}", f"v_fmac_f32 v{tm}, v{vLIM[T]}, v{vLIM[T]}", f"v_rcp_f32 v{tm}, v{tm}",
               f"v_mul_f32 v{cr}, v{pr}, v{vLRE[T]}", f"v_fmac_f32 v{cr}, v{pi}, v{vLIM[T]}",
               f"v_mul_f32 v{ci}, v{pi}, v{vLRE[T]}", f"v_fma_f32 v{ci}, -v{pr}, v{vLIM[T]}, v{ci}",
               f"v_add_f32 v{tm}, v{tm}, v{tm}", f"v_mul_f32 v{cr}, v{tm}, v{cr}", f"v_mul_f32 v{ci}, v{tm}, v{ci}",
               f"v_mul_f32_e64 v{vC2r[T]}, -v{vSgn}, v{cr}", f"v_sub_f32 v{vC2i[T]}, 0, v{ci}", f"v_sub_f32 v{vLi2[T]}, 0, v{vLi[T]}"]
        s_ += cpow_s(pr, pi, vA[T], vBx[T], f"v{nOff if T < 2 else nOff4}", tm, None)
        s_ += [f"v_mul_f32 v{vHr[T]}, v{cr}, v{pr}", f"v_fma_f32 v{vHr[T]}, -v{ci}, v{pi}, v{vHr[T]}",
               f"v_mul_f32 v{vHi[T]}, v{cr}, v{pi}", f"v_fmac_f32 v{vHi[T]}, v{ci}, v{pr}",
               f"v_mul_f32_e64 v{vHr[T]}, -v{vSgn}, v{vHr[T]}", f"v_sub_f32 v{vHi[T]}, 0, v{vHi[T]}"]
        s_ += cpow_s(vW0r[T], vW0i[T], vA[T], vBx[T], f"v{nW0 if T < 2 else nW4}", tm, vSgn)
        mk = vm0 if T < 2 else vm4
        s_ += [f"v_mul_f32 v{vW0r[T]}, v{mk}, v{vW0r[T]}", f"v_mul_f32 v{vW0i[T]}, v{mk}, v{vW0i[T]}"]
        if T < 2:
            s_ += cpow_s(vW1r[T], vW1i[T], vA[T], vBx[T], f"v{nW1}", tm, vSgn)
            s_ += [f"v_mul_f32 v{vW1r[T]}, v{vm1}, v{vW1r[T]}", f"v_mul_f32 v{vW1i[T]}, v{vm1}, v{vW1i[T]}"]
        streams.append(s_)
    W += rr(*streams)
    for x in W:
        if isinstance(x, str): a(x)
        else:
            for y in x: a(y)
    stp(a, "consts2")
    a("s_waitcnt vmcnt(0)")
    vFo = 18
    a(f"s_lshl_b32 s{sT0}, s{sRB}, 1")
    a(f"s_add_u32 s{sT0}, s{sT0}, s{sRH}")
    a(f"s_lshl_b32 s{sT0}, s{sT0}, 4")
    a(f"s_add_u32 s{sT0}, s{sT0}, s{sCG}")
    a(f"s_lshl_b32 s{sT0}, s{sT0}, 1")
    a(f"s_add_u32 s{sT0}, s{sT0}, s{sCH}")
    a(f"s_lshl_b32 s{sT0}, s{sT0}, 2")
    a(f"s_add_u32 s{sT0}, s{sT0}, {WS_FB}")
    a(f"v_mov_b32 v{vFo}, s{sT0}")
    a(f"v_mov_b32 v{t0}, s{sNonce}")
    a(f"s_mov_b64 exec, 1")
    a(f"global_store_dword v{vFo}, v{t0}, s[{P_WS}:{P_WS+1}]{SC}")
    a(f"s_mov_b64 exec, -1")
    stp(a, "flagB")


    Hp = [65, 66, 67]; hx = [56, 57, 58]; bad = 68
    vFl = 24
    a(f"s_lshl_b32 s{sT0}, s{sRB2}, 7")
    a(f"s_lshl_b32 s{sT1}, s{sW}, 5")
    a(f"s_add_u32 s{sT0}, s{sT0}, s{sT1}")
    a(f"v_and_b32 v{vFl}, 7, v{vL}")
    a(f"v_lshlrev_b32 v{vFl}, 2, v{vFl}")
    a(f"v_add_u32 v{vFl}, s{sT0}, v{vFl}")
    a(f"v_add_u32 v{vFl}, {WS_FB}, v{vFl}")
    srd(a, SH, P_WS, WS_G)
    srd(a, SM, P_WS, WS_S + 256*640)
    R = 70
    FBV = 80
    def poll_loads():
        a(f"buffer_load_dwordx2 v[{R}:{R+1}], v{pa[0]}, s[{SM}:{SM+3}], 0 offen{SC}")
        a(f"buffer_load_dwordx2 v[{R+2}:{R+3}], v{pa[0]}, s[{SM}:{SM+3}], 0 offen offset:128{SC}")
        a(f"buffer_load_dwordx2 v[{R+4}:{R+5}], v{pa[1]}, s[{SM}:{SM+3}], 0 offen{SC}")
        a(f"buffer_load_dwordx2 v[{R+6}:{R+7}], v{pa[1]}, s[{SM}:{SM+3}], 0 offen offset:128{SC}")
        a(f"buffer_load_dwordx2 v[{R+8}:{R+9}], v{pa[2]}, s[{SM}:{SM+3}], 0 offen{SC}")
    poll_loads()
    PE = X+64
    W = [f"v_subrev_u32 v{t0}, 256, v{vAe}"]
    for T in range(2):
        for k in range(7): W.append(f"ds_read_b32 v{PE+7*T+k}, v{t0} offset:{EF0 + 64*T - 256*k}")
    W.append(f"v_subrev_u32 v{t1}, 64, v{vAe4}")
    for k in range(15): W.append(f"ds_read_b32 v{PE+14+k}, v{t1} offset:{E40 - 64*k}")
    tu = [56, 57, 58]
    for k in range(16):
        Ts = [T for T in range(3) if k < NS[T]]
        for T in Ts: W.append(f"v_mul_f32 v{tu[T]}, v{vC2r[T]}, v{U[T]+k}")
        for T in Ts: W.append(f"v_fmac_f32_dpp v{tu[T]}, v{U[T]+k}, v{vC2i[T]} {DPPSW}")
        for T in Ts: W.append(f"v_mov_b32 v{U[T]+k}, v{tu[T]}")
    W.append("s_waitcnt lgkmcnt(0)")
    Pc = [PE+6, PE+13, PE+14+14]
    Pt = [[59, 60], [61, 62], [63, 64]]
    nch = [7, 7, 15]; base = [PE, PE+7, PE+14]
    for stepk in range(1, 15):
        Ts = [T for T in range(3) if stepk < nch[T]]
        dst = {T: Pt[T][stepk & 1] for T in Ts}
        grp = []
        for T in Ts: grp.append(f"v_fma_f32 v{dst[T]}, v{vMr[T]}, v{Pc[T]}, v{base[T] + nch[T]-1-stepk}")
        if len(Ts) == 1: grp.append("s_nop 0")
        for T in Ts:
            grp.append(f"v_fmac_f32_dpp v{dst[T]}, v{Pc[T]}, v{vMi[T]} {DPPSW}")
            Pc[T] = dst[T]
        if len(Ts) == 1: grp.append("s_nop 0")
        W += grp
    W.append("s_nop 1")
    for T in range(3): W.append(f"v_mul_f32 v{Ps[T]}, v{vC2r[T]}, v{Pc[T]}")
    for T in range(3): W.append(f"v_fmac_f32_dpp v{Ps[T]}, v{Pc[T]}, v{vC2i[T]} {DPPSW}")
    W += [f"v_mov_b32 v7, v{vAs}", f"v_mov_b32 v8, v{vCm}",
          f"v_and_b32 v{t0}, 15, v{vL}", f"v_lshrrev_b32 v{t1}, 2, v{t0}", f"v_lshlrev_b32 v{t1}, 1, v{t1}", f"v_add_u32 v{t1}, s{sCH}, v{t1}",
          f"v_mul_u32_u24 v{t1}, {HTS}, v{t1}", f"v_and_b32 v{t2}, 3, v{t0}", f"v_lshlrev_b32 v{t2}, 2, v{t2}", f"v_lshrrev_b32 v{t3}, 4, v{vL}",
          f"v_add_u32 v{t2}, v{t2}, v{t3}", f"s_lshl_b32 s{sT0}, s{sRH}, 4", f"v_add_u32 v{t2}, s{sT0}, v{t2}",
          f"v_lshl_add_u32 v{RA}, v{t2}, 3, v{t1}",
          f"s_lshl_b32 s{sT0}, s{sRB}, 1", f"s_add_u32 s{sT0}, s{sT0}, s{sRH}", f"s_lshl_b32 s{sT0}, s{sT0}, 2",
          f"v_add_u32 v{t3}, s{sT0}, v{t3}", f"v_mul_u32_u24 v{t3}, 88, v{t3}", f"s_mul_i32 s{sT0}, s{sCH}, 20",
          f"v_add_u32 v{t3}, s{sT0}, v{t3}", f"v_lshlrev_b32 v{t3}, 10, v{t3}", f"v_lshl_add_u32 v{GA}, v{t0}, 4, v{t3}"]
    sOff = [73, 74, 75, 76, 77]
    for it in range(5):
        W += [f"s_mul_i32 s{sT0}, s{sCG}, 5", f"s_add_u32 s{sT0}, s{sT0}, {it}", f"s_lshr_b32 s{sT1}, s{sT0}, 2", f"s_lshl_b32 s{sT1}, s{sT1}, 10",
              f"s_and_b32 s{sT0}, s{sT0}, 3", f"s_lshl_b32 s{sT0}, s{sT0}, 8", f"s_add_u32 s{sOff[it]}, s{sT0}, s{sT1}"]
    W += [f"s_mul_i32 s{sKH}, s{sW}, 12", f"s_add_u32 s{sKH}, s{sKH}, 40", f"s_lshl_b32 s{sKH}, s{sKH}, 10"]
    NPF = int(OPT.get('npf', 25))
    FBPOS = int(OPT.get('fbpos', 20))
    items = pre[:FBPOS] + [[f"global_load_dword v{FBV}, v{vFl}, s[{P_WS}:{P_WS+1}]{SC}"]] + pre[FBPOS:NPF]
    weave(a, W, items, start=0)
    stp(a, "prefix")
    a(f"s_waitcnt vmcnt({NPF-FBPOS})")
    spin_init(a)
    a.label("L_fbpoll")
    a(f"v_cmp_ne_u32 vcc, s{sNonce}, v{FBV}")
    a("s_nop 4")
    a("s_cbranch_vccz L_fbx")
    spin_guard(a, "L_fbx")
    a(f"global_load_dword v{FBV}, v{vFl}, s[{P_WS}:{P_WS+1}]{SC}")
    a("s_waitcnt vmcnt(0)")
    a("s_branch L_fbpoll")
    a.label("L_fbx")
    stp(a, "flagB seen")
    slots = ["a88", 100, 52, 68, 84]
    def hreg(slot, i):
        sl = slots[slot]
        if isinstance(sl, str): return f"a[{88+4*i}:{91+4*i}]"
        return f"v[{sl+4*i}:{sl+4*i+3}]"
    def hloads(g):
        return [f"buffer_load_dwordx4 {hreg(g % 5, i)}, v{vH+i}, s[{SH}:{SH+3}], s{sKH} offen{SCL}" for i in range(4)]
    early = []
    for g in range(5):
        hl = hloads(g)
        early += [[x] for x in hl[:3]] + [[hl[3], f"s_add_u32 s{sKH}, s{sKH}, 1024"]]
    for it in early[:8]:
        for x in it: a(x)
    early = early[8:]
    spin_init(a)
    a(f"s_branch L_pollc")
    a.label("L_poll")
    spin_guard(a, "L_pollx")
    poll_loads()
    a("s_waitcnt vmcnt(0)")
    a.label("L_pollc")
    a(f"v_mov_b32 v{bad}, 0")
    for (ri, mreg) in ((R+1, vm0), (R+3, vm0), (R+5, vm1), (R+7, vm1), (R+9, vm4)):
        a(f"v_cmp_ne_u32 vcc, s{sNonce}, v{ri}")
        a("s_nop 1")
        a(f"v_cndmask_b32 v{t0}, 0, v{mreg}, vcc")
        a(f"v_or_b32 v{bad}, v{bad}, v{t0}")
    a(f"v_cmp_ne_u32 vcc, 0, v{bad}")
    a("s_nop 4")
    a("s_cbranch_vccnz L_poll")
    a.label("L_pollx")
    for (T, ri) in ((0, R), (1, R+2), (2, R+8)): a(f"v_mul_f32 v{Hp[T]}, v{vW0r[T]}, v{ri}")
    for (T, ri) in ((0, R), (1, R+2), (2, R+8)): a(f"v_fmac_f32_dpp v{Hp[T]}, v{ri}, v{vW0i[T]} {DPPSW}")
    for (T, ri) in ((0, R+4), (1, R+6)): a(f"v_fmac_f32 v{Hp[T]}, v{vW1r[T]}, v{ri}")
    for (T, ri) in ((0, R+4), (1, R+6)): a(f"v_fmac_f32_dpp v{Hp[T]}, v{ri}, v{vW1i[T]} {DPPSW}")
    qreduce(Hp, hx)
    a(f"s_mul_i32 s{sT0}, s{sW}, 320")
    a(f"s_add_u32 s{sT0}, s{sT0}, {MISC}")
    a(f"v_add_u32 v{t0}, s{sT0}, v{vC}")
    a(f"ds_write_b32 v{vRw}, v{Hp[0]} offset:{RWB}")
    a(f"ds_write_b32 v{vRw}, v{Hp[1]} offset:{RWB+64}")
    a(f"ds_write_b32 v{t0}, v{Hp[2]} offset:{RWB+256}")
    stp(a, "poll")
    a("s_waitcnt lgkmcnt(0)")
    a("s_barrier")
    Hw = [X+48, X+49, X+50]
    a(f"s_mul_i32 s{sT0}, s{sCH}, 320")
    a(f"s_add_u32 s{sT0}, s{sT0}, {MISC}")
    a(f"v_add_u32 v{t0}, s{sT0}, v{vAs2}")
    hr = [X+40, X+41, X+42, X+43, X+44, X+45, X+46, X+47]
    a(f"ds_read_b32 v{hr[0]}, v{t0} offset:{RWB}")
    a(f"ds_read_b32 v{hr[1]}, v{t0} offset:{RWB+640}")
    a(f"ds_read_b32 v{hr[2]}, v{t0} offset:{RWB+64}")
    a(f"ds_read_b32 v{hr[3]}, v{t0} offset:{RWB+704}")
    for w in range(4): a(f"ds_read_b32 v{hr[4+w]}, v{vCm2} offset:{RWB+256+320*w}")
    a("s_waitcnt lgkmcnt(0)")
    W = [f"v_add_f32 v{Hw[0]}, v{hr[0]}, v{hr[1]}", f"v_add_f32 v{Hw[1]}, v{hr[2]}, v{hr[3]}", f"v_add_f32 v{hr[4]}, v{hr[4]}, v{hr[5]}",
         f"v_add_f32 v{hr[6]}, v{hr[6]}, v{hr[7]}", f"v_add_f32 v{Hw[2]}, v{hr[4]}, v{hr[6]}"]
    for T in range(3): W.append(f"v_fmac_f32 v{Ps[T]}, v{vHr[T]}, v{Hw[T]}")
    W.append("s_nop 0")
    for T in range(3): W.append(f"v_fmac_f32_dpp v{Ps[T]}, v{Hw[T]}, v{vHi[T]} {DPPSW}")
    cur = list(Ps)
    W.append("s_nop 0")
    for k in range(16):
        Ts = [T for T in range(3) if k < NS[T]]
        for T in Ts: W.append(f"v_fmac_f32 v{U[T]+k}, v{vLr[T]}, v{cur[T]}")
        for T in Ts:
            W.append(f"v_fmac_f32_dpp v{U[T]+k}, v{cur[T]}, v{vLi2[T]} {DPPSW}")
            cur[T] = U[T]+k
    for T in range(3):
        for k in range(NS[T]//2):
            W.append(f"v_cvt_pk_bf16_f32 v{X + 16*T + k}, v{U[T]+2*k}, v{U[T]+2*k+1}")
    W += [f"v_and_b32 v{t0}, 15, v{vL}", f"s_lshl_b32 s{sT0}, s{sCH}, 5", f"v_add_u32 v{t1}, s{sT0}, v{t0}",
          f"v_mul_u32_u24 v{t1}, {HTS}, v{t1}", f"v_lshl_add_u32 v{t1}, v{vSig}, 5, v{t1}",
          f"v_add_u32 v{t0}, 64, v{t0}", f"v_mul_u32_u24 v{t0}, {HTS}, v{t0}", f"v_lshl_add_u32 v{t0}, v{vSig}, 5, v{t0}",
          f"s_lshl_b32 s{sT0}, s{sCH}, 4", f"v_add_u32 v{t0}, s{sT0}, v{t0}"]
    weave(a, W, early, start=6)
    stp(a, "passB")
    a(f"ds_write_b128 v{t1}, v[{X}:{X+3}]")
    a(f"ds_write_b128 v{t1}, v[{X+4}:{X+7}] offset:16")
    a(f"ds_write_b128 v{t1}, v[{X+16}:{X+19}] offset:{16*HTS}")
    a(f"ds_write_b128 v{t1}, v[{X+20}:{X+23}] offset:{16*HTS+16}")
    a(f"ds_write_b128 v{t0}, v[{X+32}:{X+35}]")
    a("s_waitcnt lgkmcnt(0)")
    a("s_barrier")
    DT = 200
    for it in range(5):
        a(f"ds_read_b64_tr_b16 v[{DT+4*it}:{DT+4*it+1}], v{RA} offset:{it*16*HTS}")
        a(f"ds_read_b64_tr_b16 v[{DT+4*it+2}:{DT+4*it+3}], v{RA} offset:{it*16*HTS+8*HTS}")
    PACE = "pace" in FLAGS
    def hA_store(it): return f"buffer_store_dwordx4 v[{DT+4*it}:{DT+4*it+3}], v{GA}, s[{SH}:{SH+3}], s{sOff[it]} offen{SC}"
    stp(a, "hA stored")
    accB = lambda j, i: 120 + (j*4+i)*4
    def accA(j, i):
        t = j*4+i
        return 200 + 4*t if t < 14 else 26 + 4*(t-14)
    def wreg(g, j): b = wbase(g, j); return f"a[{b}:{b+3}]"
    fifo = [("h", g) for g in range(5) for _ in range(4)]
    if not PACE:
        for it in range(5):
            a(f"s_waitcnt lgkmcnt({2*(4-it)})")
            a(hA_store(it)); fifo.append(("st", it))
    def issue(x, tag):
        a(x); fifo.append(tag)
    def wait_for(pred):
        idx = [i for i, tg in enumerate(fifo) if pred(tg)]
        if not idx: return
        n = len(fifo) - 1 - max(idx)
        assert n <= 63, n
        a(f"s_waitcnt vmcnt({n})")
        del fifo[:max(idx)+1]
    sKS, sKS4 = 85, 86
    a(f"s_mul_i32 s{sKS}, s{sCB}, 88")
    a(f"s_mul_i32 s{sT0}, s{sW}, 5")
    a(f"s_add_u32 s{sKS}, s{sKS}, s{sT0}")
    a(f"s_mul_i32 s{sKS}, s{sKS}, 5120")
    a(f"s_add_u32 s{sKS4}, s{sKS}, 4096")
    wq = []
    assert NPF % 5 == 0
    for g in range(7 + NPF//5, 12):
        st_ = wstep(g)
        for j in range(5): wq.append((("wg", g), 0, st_[j], st_[5:] if j == 4 else []))
    for sidx in range(10):
        for j in range(5):
            x = wload(sidx, j).replace(f"s{sKW} offen", f"s{sKS} offen").replace(f"s{sKW4} offen", f"s{sKS4} offen")
            inc = (20-4)*5120 if sidx == 4 else 5120
            wq.append((("w", sidx), sidx, x, [f"s_add_u32 s{sKS}, s{sKS}, {inc}", f"s_add_u32 s{sKS4}, s{sKS4}, {inc}"] if j == 4 else []))
    RATE = int(OPT.get('rate', 3))
    LA, OA = 2, 7
    vG = [12, 14, 16, 22]
    vLW = 25
    XR, GR, DR = 84, 94, 52
    RS = 336; RED = 64*RS + 4*64
    fill = []
    for i in range(5):
        w1, w2, w3 = t0, t1, t3
        fill += [f"v_add_u32 v{w1}, {256*i}, v0", f"v_mul_u32_u24 v{w2}, 3277, v{w1}", f"v_lshrrev_b32 v{w2}, 16, v{w2}",
                 f"v_mul_u32_u24 v{w3}, 20, v{w2}", f"v_sub_u32 v{w3}, v{w1}, v{w3}", f"v_mul_u32_u24 v{LA+i}, {RS}, v{w2}",
                 f"v_lshl_add_u32 v{LA+i}, v{w3}, 4, v{LA+i}", f"v_lshrrev_b32 v{w1}, 4, v{w2}", f"v_lshl_add_u32 v{LA+i}, v{w1}, 6, v{LA+i}",
                 f"s_lshl_b32 s{sT0}, s{sRB2}, 6", f"v_add_u32 v{w2}, s{sT0}, v{w2}",
                 f"v_mul_u32_u24 v{w2}, 640, v{w2}", f"s_mul_i32 s{sT1}, s{sCB}, 80", f"v_lshl_add_u32 v{w3}, v{w3}, 2, s{sT1}",
                 f"v_add_u32 v{w2}, v{w2}, v{w3}", f"v_lshlrev_b32 v{OA+i}, 2, v{w2}"]
    fill += [f"v_and_b32 v{t0}, 15, v{vL}", f"v_lshrrev_b32 v{t1}, 2, v{t0}", f"v_lshlrev_b32 v{t1}, 4, v{t1}", f"v_and_b32 v{t0}, 3, v{t0}",
             f"v_add_u32 v{t0}, v{t0}, v{t1}", f"s_lshl_b32 s{sT0}, s{sRB2}, 6", f"v_add_u32 v{t1}, s{sT0}, v{t0}",
             f"v_lshlrev_b32 v{t1}, 2, v{t1}", f"v_add_u32 v50, {WS_G}, v{t1}",
             f"v_lshrrev_b32 v{t3}, 4, v{t0}", f"v_mul_u32_u24 v{t0}, {RS}, v{t0}", f"v_lshl_add_u32 v{t0}, v{t3}, 6, v{t0}",
             f"v_lshrrev_b32 v{t3}, 4, v{vL}", f"v_lshl_add_u32 v{t0}, v{t3}, 4, v{t0}",
             f"s_mul_i32 s{sT0}, s{sW}, {RED}", f"v_add_u32 v{vLW}, s{sT0}, v{t0}"]
    stp(a, "K2 setup")
    fill2 = []
    for i in range(5):
        fill2 += [f"v_lshrrev_b32 v{t0}, 1, v{OA+i}", (f"global_load_dwordx2 v[{XR+2*i}:{XR+2*i+1}], v{t0}, s[{P_X}:{P_X+1}]", ("f", 0))]
    fill2 += [f"s_lshl_b32 s{sT0}, s{sRB2}, 6", f"s_mul_i32 s{sT1}, s{sCB}, 160"]
    for i in range(5):
        fill2 += [f"v_add_u32 v{t4}, {256*i}, v0", f"v_mul_u32_u24 v{t1}, 3277, v{t4}", f"v_lshrrev_b32 v{t1}, 16, v{t1}", f"v_add_u32 v{t0}, s{sT0}, v{t1}",
                  f"v_lshlrev_b32 v{t0}, 2, v{t0}", f"v_add_u32 v{t0}, {WS_G}, v{t0}",
                  (f"global_load_dword v{GR+i}, v{t0}, s[{P_WS}:{P_WS+1}]{SC}", ("f", 0)),
                  f"v_mul_u32_u24 v{t1}, 20, v{t1}", f"v_sub_u32 v{t1}, v{t4}, v{t1}", f"v_lshlrev_b32 v{t1}, 3, v{t1}",
                  f"v_add_u32 v{t1}, s{sT1}, v{t1}", (f"global_load_dwordx2 v[{DR+2*i}:{DR+2*i+1}], v{t1}, s[{P_DSK}:{P_DSK+1}]", ("f", 0))]
    for g in range(22):
        glu = g < 12
        slot = g % 5
        wg = g if glu else g-12
        wait_for(lambda tg: tg == ("h", g) or (not glu and tg == ("w", g-12)) or (glu and tg == ("wg", g)))
        if g == 0: stp(a, "h0 landed")
        if "kstamp" in FLAGS:
            if g > 0:
                a("s_waitcnt lgkmcnt(0)"); a(f"v_writelane_b32 v23, s38, {g-1}")
            a("s_memtime s[38:39]")
        if g == 0 and PACE:
            a("s_waitcnt lgkmcnt(0)")
        if g == (6 if PACE else 3):
            wait_for(lambda tg: tg[0] == "st")
            a(f"v_add_u32 v{t0}, {WS_FA-WS_FB}, v{vFo}")
            a(f"v_mov_b32 v{t1}, s{sNonce}")
            a(f"s_mov_b64 exec, 1")
            issue(f"global_store_dword v{t0}, v{t1}, s[{P_WS}:{P_WS+1}]{SC}", ("fa", 0))
            a(f"s_mov_b64 exec, -1")
        if g == (7 if PACE else 6):
            a(f"v_add_u32 v{vFl}, {WS_FA-WS_FB}, v{vFl}")
            issue(f"global_load_dword v{t2}, v{vFl}, s[{P_WS}:{P_WS+1}]{SC}", ("fp", 0))
        if g == 15:
            assert not fill, len(fill)
            a("s_barrier")
            for i in range(4): issue(f"global_load_dword v{vG[i]}, v50, s[{P_WS}:{P_WS+1}] offset:{16*i}{SC}", ("g", 0))
        mf = []
        for j in range(5):
            for i in range(4):
                d = accB(j, i) if glu else accA(j, i)
                c = "0" if g in (0, 12) else f"v[{d}:{d+3}]"
                mf.append(f"v_mfma_f32_16x16x32_bf16 v[{d}:{d+3}], {wreg(wg, j)}, {hreg(slot, i)}, {c}")
        def la_of(gn): return 5 if gn < 12 else ((4 if gn < 17 else 3) if "la5" not in FLAGS else 5)
        hq = []
        for gn in range(5, 22):
            if gn - la_of(gn) == g and la_of(gn) < 5:
                if gn == 12:
                    wait_for(lambda tg: tg[0] == "fp")
                    spin_init(a)
                    a.label("L_fachk")
                    a(f"v_cmp_ne_u32 vcc, s{sNonce}, v{t2}")
                    a("s_nop 4")
                    a("s_cbranch_vccz L_faok")
                    spin_guard(a, "L_faok")
                    a(f"global_load_dword v{t2}, v{vFl}, s[{P_WS}:{P_WS+1}]{SC}")
                    a("s_waitcnt vmcnt(0)")
                    a("s_branch L_fachk")
                    a.label("L_faok")
                    a(f"s_mul_i32 s{sKH}, s{sW}, {5*1024}")
                elif gn == 17: a(f"s_add_u32 s{sKH}, s{sKH}, {15*1024}")
                hq = [(x, ("h", gn)) for x in hloads(gn)]
        nw = 0
        for idx, x in enumerate(mf):
            a(x)
            if idx % 4 == 1 and nw < RATE and wq and wq[0][1] < g:
                tg, e_, ins, post = wq.pop(0); issue(ins, tg); nw += 1
                for y in post: a(y)
            elif idx % 4 == 3 and hq:
                x_, tg_ = hq.pop(0); issue(x_, tg_)
                if not hq: a(f"s_add_u32 s{sKH}, s{sKH}, 1024")
            elif g >= 6 and fill and idx % 4 != 1: a(fill.pop(0))
            elif g >= 20 and fill2:
                for _ in range(2):
                    if fill2:
                        it_ = fill2.pop(0)
                        if isinstance(it_, str): a(it_)
                        else: issue(it_[0], it_[1])
        while nw < RATE and wq and wq[0][1] <= g:
            tg, e_, ins, post = wq.pop(0); issue(ins, tg); nw += 1
            for y in post: a(y)
        if g < 5 and PACE: issue(hA_store(g), ("st", g))
        assert not hq
        for gn in range(5, 22):
            if gn - la_of(gn) == g and la_of(gn) == 5:
                if gn == 12:
                    wait_for(lambda tg: tg[0] == "fp")
                    spin_init(a)
                    a.label("L_fachk")
                    a(f"v_cmp_ne_u32 vcc, s{sNonce}, v{t2}")
                    a("s_nop 4")
                    a("s_cbranch_vccz L_faok")
                    spin_guard(a, "L_faok")
                    a(f"global_load_dword v{t2}, v{vFl}, s[{P_WS}:{P_WS+1}]{SC}")
                    a("s_waitcnt vmcnt(0)")
                    a("s_branch L_fachk")
                    a.label("L_faok")
                    a(f"s_mul_i32 s{sKH}, s{sW}, {5*1024}")
                elif gn == 17: a(f"s_add_u32 s{sKH}, s{sKH}, {15*1024}")
                for x in hloads(gn): issue(x, ("h", gn))
                a(f"s_add_u32 s{sKH}, s{sKH}, 1024")
    assert not fill and not wq and not fill2, (len(fill), len(wq), len(fill2))
    if "kstamp" in FLAGS:
        a("s_waitcnt lgkmcnt(0)"); a(f"v_writelane_b32 v23, s38, 21")
        a("s_memtime s[38:39]"); a("s_waitcnt lgkmcnt(0)"); a(f"v_writelane_b32 v23, s38, 22")
        a(f"s_lshl_b32 s{sT0}, s2, 2"); a(f"s_add_u32 s{sT0}, s{sT0}, s{sW}"); a(f"s_lshl_b32 s{sT0}, s{sT0}, 8")
        a(f"s_add_u32 s{sT0}, s{sT0}, {WS_STAMP + 0x80000}")
        a(f"v_lshl_add_u32 v{t0}, v{vL}, 2, s{sT0}")
        a(f"global_store_dword v{t0}, v23, s[{P_WS}:{P_WS+1}]")
    stp(a, "K2 loop")
    wait_for(lambda tg: tg[0] == "g")
    for j in range(5):
        for i in range(4):
            A_r, B_r = accA(j, i), accB(j, i)
            for h in (0, 2):
                a(f"v_pk_add_f32 v[{A_r+h}:{A_r+h+1}], v[{A_r+h}:{A_r+h+1}], v[{B_r+h}:{B_r+h+1}] neg_lo:[0,1] neg_hi:[0,1]")
            for h in (0, 2):
                a(f"v_pk_fma_f32 v[{B_r+h}:{B_r+h+1}], v[{vG[i]}:{vG[i]+1}], v[{A_r+h}:{A_r+h+1}], v[{B_r+h}:{B_r+h+1}] op_sel_hi:[0,1,1]")
            a(f"ds_write_b128 v{vLW}, v[{B_r}:{B_r+3}] offset:{i*4*RS + 64*j}")
    a("s_waitcnt lgkmcnt(0)")
    a("s_barrier")
    stp(a, "red written")
    for i in range(5):
        b = 120 + 16*i
        for w in range(4):
            a(f"ds_read_b128 v[{b+4*w}:{b+4*w+3}], v{LA+i} offset:{w*RED}")
    a("s_waitcnt vmcnt(0)")
    for i in range(5):
        b = 120 + 16*i
        a(f"s_waitcnt lgkmcnt({min(15,4*(4-i))})")
        a(f"v_pk_add_f32 v[{b}:{b+1}], v[{b}:{b+1}], v[{b+4}:{b+5}]")
        a(f"v_pk_add_f32 v[{b+2}:{b+3}], v[{b+2}:{b+3}], v[{b+6}:{b+7}]")
        a(f"v_pk_add_f32 v[{b+8}:{b+9}], v[{b+8}:{b+9}], v[{b+12}:{b+13}]")
        a(f"v_pk_add_f32 v[{b+10}:{b+11}], v[{b+10}:{b+11}], v[{b+14}:{b+15}]")
        a(f"v_pk_add_f32 v[{b}:{b+1}], v[{b}:{b+1}], v[{b+8}:{b+9}]")
        a(f"v_pk_add_f32 v[{b+2}:{b+3}], v[{b+2}:{b+3}], v[{b+10}:{b+11}]")
        x0, d0_ = XR+2*i, DR+2*i
        for h in range(2):
            a(f"v_lshlrev_b32 v{t1}, 16, v{x0+h}")
            a(f"v_and_b32 v{t2}, 0xffff0000, v{x0+h}")
            a(f"v_lshlrev_b32 v{t3}, 16, v{d0_+h}")
            a(f"v_and_b32 v{t4}, 0xffff0000, v{d0_+h}")
            a(f"v_mul_f32 v{t1}, v{t1}, v{t3}")
            a(f"v_mul_f32 v{t2}, v{t2}, v{t4}")
            a(f"v_fmac_f32 v{b+2*h}, v{GR+i}, v{t1}")
            a(f"v_fmac_f32 v{b+2*h+1}, v{GR+i}, v{t2}")
        a(f"global_store_dwordx4 v{OA+i}, v[{b}:{b+3}], s[{P_OUT}:{P_OUT+1}]" + ("" if "outplain" in FLAGS else " nt"))
    stp(a, "out stored")
    if LSTAMP:
        pass
    if "dbgt" in FLAGS:
        a("s_waitcnt vmcnt(0)")
        a("s_memrealtime s[40:41]"); a("s_memtime s[42:43]")
        a("s_waitcnt lgkmcnt(0)")
        a(f"s_cmp_lg_u32 s{sW}, 0")
        a("s_cbranch_scc1 L_end")
        a("s_not_b32 s44, s101")
        a("v_mov_b32 v2, 0"); a("v_mov_b32 v3, s44"); a("v_mov_b32 v4, s40")
        a("s_mov_b64 exec, 1")
        a(f"global_atomic_umax v2, v3, s[{P_DBG}:{P_DBG+1}] offset:16 sc1")
        a(f"global_atomic_umax v2, v4, s[{P_DBG}:{P_DBG+1}] offset:20 sc1")
        a("s_cmp_lg_u32 s2, 0")
        a("s_cbranch_scc1 L_end")
        a("s_sub_u32 s42, s42, s96"); a("s_sub_u32 s40, s40, s101")
        a("v_mov_b32 v3, s42"); a("v_mov_b32 v4, s40")
        a(f"global_store_dword v2, v3, s[{P_DBG}:{P_DBG+1}] offset:24")
        a(f"global_store_dword v2, v4, s[{P_DBG}:{P_DBG+1}] offset:28")
    stp.dump(a, sW, sT0, P_WS, WS_STAMP)
    a.label("L_end")
    a("s_endpgm")
    a.label("L_codeend")
    return a.text()

HEADER = open("gated_mix__ssm_conv_s5__glu_gated_bilinear__prompt.s.ref").read().split("; Override launch")[0]
DOC = """; ---------------------------------------------------------------------------------------------------------------
; One fused kernel, 256 workgroups (one per CU, all co-resident), 4 waves each, 512 registers per wave.
;          16x16x32 bf16 MFMAs; x / Wg / Wu / B tiles are staged by LDS-DMA in three 50 KB buffers (K = 64 per stage,
;          the stage order is rotated per workgroup so that the sharers of a line fetch different stages first).
;          The prologue also repacks w_down and C into MFMA fragment order (workspace, 0xC00000).
; Scan     h_t = lam h_{t-1} + u_t in registers (time runs along the accumulator registers): local end states,
;          weighted sum -> published state of the 128-row block (tagged 8-byte granules), exact carry-in from all
;          earlier blocks, prefix inside the block, second pass from the true initial state, scaled by 2*(lam-1)/Lam.
;          (12 GLU + 10 SSM steps of 32 each); operands are read in fragment order straight into registers,
;          gate combine, cross-wave reduction through LDS, + g*x*Dskip, store.
; Hand-offs between workgroups: write-through (sc1) stores, per-wave flags tagged with a per-launch nonce that
; workgroup 0 publishes in d_debug[0]; consumers poll with sc1 loads (bounded spins).
; Workspace: 0 h fragments | 0xB00000 gate | 0xB10000 block states | 0xB40000.. flags | 0xC00000 packed W2.
; Generated by the author's own script (register allocation and scheduling are scripted, not compiler output).
; ---------------------------------------------------------------------------------------------------------------
"""
def main():
    out = HEADER + DOC
    out += "; Override launch geometry by editing the next line. Harness parses it; keep it on one line.\n"
    out += "; @launch grid=(256,1,1) block=(256,1,1) lds=163840\n"
    out += '.amdgcn_target "amdgcn-amd-amdhsa--gfx950"\n.text\n'
    out += f".globl {KNAME}\n.p2align 8\n.type {KNAME},@function\n" + gen()
    out += f""".section .rodata,"a"
.p2align 6
.amdhsa_kernel {KNAME}
  .amdhsa_next_free_vgpr 512
  .amdhsa_next_free_sgpr 102
  .amdhsa_accum_offset 256
  .amdhsa_group_segment_fixed_size 0
  .amdhsa_kernarg_size 136
  .amdhsa_user_sgpr_count 2
  .amdhsa_user_sgpr_kernarg_segment_ptr 1
  .amdhsa_system_sgpr_workgroup_id_x 1
  .amdhsa_float_denorm_mode_32 3
.end_amdhsa_kernel
"""
    path = [x for x in sys.argv[1:] if not x.startswith("--")][0]
    open(path, "w").write(out)
    json.dump([[d[i] for i in sorted(d)] for d in NAMES], open(path + ".names", "w"))
main()
```
